```python
import torch

def _softmax(x, axis=-1):
    return torch.softmax(x, dim=axis)
def _gelu(x):
    return torch.nn.functional.gelu(x, approximate="tanh")
def _silu(x):
    return torch.nn.functional.silu(x)
def _sigmoid(x):
    return torch.sigmoid(x)
def _layernorm(x, axis=-1, eps=1e-5):
    m = x.mean(dim=axis, keepdim=True)
    v = x.var(dim=axis, keepdim=True, unbiased=False)
    return (x - m) / torch.sqrt(v + eps)
def _scatter_add(tgt, idx, src, axis=0):
    return tgt.clone().index_add_(axis, idx, src)
def _segment_sum(src, seg, n):
    out = torch.zeros((n,) + src.shape[1:], dtype=src.dtype)
    return out.index_add_(0, seg, src)
def _pad(x, pw):
    flat = tuple(v for pair in reversed(pw) for v in pair)
    return torch.nn.functional.pad(x, flat)

kernel_name = 'parallel_sum__sliding_block_cached__swiglu_ffn__decode'

def setup_inputs():

    _w = (lambda a: (lambda t: t.to(torch.bfloat16) if t.is_floating_point() else t)(torch.as_tensor(a)))
    def _A_setup():
        B, Sq, D = 1, 1, 512
        Hq, Hkv, Sk, Dh = 32, 8, 65536, 128
        assert Hq % Hkv == 0, (Hq, Hkv)
        return {
            "x": _w((lambda *s: torch.randn(*s, dtype=torch.bfloat16) * 0.05)(B, Sq, D)),
            "k_cache": _w((lambda *s: torch.randn(*s, dtype=torch.bfloat16) * 3.2)(B, Hkv, Sk, Dh)),
            "v_cache": _w((lambda *s: torch.randn(*s, dtype=torch.bfloat16) * 1.6)(B, Hkv, Sk, Dh)),
            "wq": _w((lambda *s: torch.randn(*s, dtype=torch.bfloat16) * 3.2)(D, Hq * Dh) * (D ** -0.5)),
            "wo": _w((lambda *s: torch.randn(*s, dtype=torch.bfloat16) * 1.6)(Hq * Dh, D) * ((Hq * Dh) ** -0.5)),
        }
    _A_in = _A_setup()

    def _B_setup():
        B, S, D, F = 1, 1, 512, 1792
        return {
            "x": _w((lambda *s: torch.randn(*s, dtype=torch.bfloat16) * 0.05)(B, S, D)),
            "w_gate": _w((lambda *s: torch.randn(*s, dtype=torch.bfloat16) * 0.05)(D, F)),
            "w_up": _w((lambda *s: torch.randn(*s, dtype=torch.bfloat16) * 0.05)(D, F)),
            "w_down": _w((lambda *s: torch.randn(*s, dtype=torch.bfloat16) * 0.05)(F, D)),
        }
    _B_in = _B_setup()

    return {
        "A_x": _A_in["x"],
        "A_k_cache": _A_in["k_cache"],
        "A_v_cache": _A_in["v_cache"],
        "A_wq": _A_in["wq"],
        "A_wo": _A_in["wo"],
        "B_x": _B_in["x"],
        "B_w_gate": _B_in["w_gate"],
        "B_w_up": _B_in["w_up"],
        "B_w_down": _B_in["w_down"],
    }

def reference(A_x, A_k_cache, A_v_cache, A_wq, A_wo, B_x, B_w_gate, B_w_up, B_w_down):
    def _A_ref(x, k_cache, v_cache, wq, wo):
        B, Sq, D = x.shape
        Hq, Dh = 32, 128
        Hkv, Sk = k_cache.shape[1], k_cache.shape[2]
        W = min(4096, max(256, Sk // 4))
        rep = Hq // Hkv
        q = (lambda x, *d: x.permute(*d))((x @ wq).reshape(B, Sq, Hq, Dh), 0, 2, 1, 3)
        k = (lambda x, n, axis: torch.repeat_interleave(x, n, dim=axis))(k_cache[:, :, Sk - W:, :], rep, axis=1)
        v = (lambda x, n, axis: torch.repeat_interleave(x, n, dim=axis))(v_cache[:, :, Sk - W:, :], rep, axis=1)
        scores = torch.einsum("bhqd,bhkd->bhqk", q, k) * (Dh ** -0.5)
        p = _softmax(scores, axis=-1)
        o = torch.einsum("bhqk,bhkd->bhqd", p, v)
        return (lambda x, *d: x.permute(*d))(o, 0, 2, 1, 3).reshape(B, Sq, Hq * Dh) @ wo

    def _B_ref(x, w_gate, w_up, w_down):
        g = _silu(x @ w_gate)
        u = x @ w_up
        return (g * u) @ w_down

    x = A_x
    xn = _layernorm(x, axis=-1)
    return x + _A_ref(xn, A_k_cache, A_v_cache, A_wq, A_wo) + _B_ref(xn, B_w_gate, B_w_up, B_w_down)
```

```python
import re

REG = re.compile(r'^(-|abs\()?([vsa])(\d+)\)?$')
RNG = re.compile(r'^(-)?([vsa])\[(\d+):(\d+)\]$')

def regs_of(op):
    op = op.strip()
    m = REG.match(op)
    if m: return {(m.group(2), int(m.group(3)))}
    m = RNG.match(op)
    if m: return {(m.group(2), i) for i in range(int(m.group(3)), int(m.group(4)) + 1)}
    if op == 'vcc': return {('s', 'vcc_lo'), ('s', 'vcc_hi')}
    if op in ('vcc_lo', 'vcc_hi'): return {('s', op)}
    if op == 'exec': return {('s', 'exec_lo'), ('s', 'exec_hi')}
    if op in ('exec_lo', 'exec_hi'): return {('s', op)}
    if op == 'm0': return {('s', 'm0')}
    return set()

TRANS = ('v_exp_f32', 'v_log_f32', 'v_rcp_f32', 'v_rsq_f32', 'v_sqrt_f32', 'v_sin_f32', 'v_cos_f32')

class Ins:
    def __init__(self, text):
        self.text = text
        t = text.split(';')[0].strip()
        self.label = t.endswith(':')
        if self.label or not t or t.startswith('.'):
            self.op = ''; self.w = set(); self.r = set(); self.kind = 'none'; return
        parts = t.split(None, 1)
        self.op = op = parts[0]
        rest = parts[1] if len(parts) > 1 else ''
        rest = re.sub(r'(op_sel|op_sel_hi|quad_perm|neg_lo|neg_hi):\[([^\]]*)\]', lambda m: m.group(1) + ':[' + m.group(2).replace(',', '/') + ']', rest)
        ops = [o.strip() for o in rest.split(',')] if rest else []
        if ops:
            last = ops[-1].split()
            ops[-1] = last[0] if last else ''
            self.mods = ' '.join(last[1:])
        else:
            self.mods = ''
        self.ops = ops
        w = set(); r = set()
        base = op.replace('_e32', '').replace('_e64', '').replace('_dpp', '').replace('_sdwa', '')
        self.base = base
        self.dpp = op.endswith('_dpp') or 'quad_perm' in self.mods or 'row_' in self.mods
        if op.startswith('v_mfma'):
            self.kind = 'mfma'
            w |= regs_of(ops[0]); self.A = regs_of(ops[1]); self.B = regs_of(ops[2]); self.C = regs_of(ops[3])
            r |= self.A | self.B | self.C
            self.passes = 2 if '4x4x4' in op else 4 if '16x16' in op else 8
        elif op.startswith('v_'):
            self.kind = 'valu'
            if base.startswith('v_cmp'):
                w |= regs_of(ops[0]); [r.update(regs_of(o)) for o in ops[1:]]
                if base.startswith('v_cmpx'): w |= regs_of('exec')
            elif base in ('v_permlane16_swap_b32', 'v_permlane32_swap_b32', 'v_swap_b32'):
                for o in ops: w |= regs_of(o); r |= regs_of(o)
            elif base.startswith(('v_add_co', 'v_sub_co', 'v_addc_co', 'v_subb_co', 'v_subrev_co')):
                w |= regs_of(ops[0]) | regs_of(ops[1]); [r.update(regs_of(o)) for o in ops[2:]]
            elif base == 'v_nop':
                pass
            else:
                w |= regs_of(ops[0]); [r.update(regs_of(o)) for o in ops[1:]]
                if base in ('v_fmac_f32', 'v_writelane_b32', 'v_dot2c_f32_bf16') or self.dpp: r |= regs_of(ops[0])
                if base == 'v_cndmask_b32' and len(ops) == 3: r |= regs_of('vcc')
        elif op.startswith('ds_'):
            self.kind = 'ds'
            if op.startswith(('ds_read', 'ds_bpermute', 'ds_permute', 'ds_swizzle')) or '_rtn_' in op:
                w |= regs_of(ops[0]); [r.update(regs_of(o)) for o in ops[1:]]
            else:
                [r.update(regs_of(o)) for o in ops]
        elif op.startswith(('global_', 'buffer_', 'flat_')):
            self.kind = 'vmem'
            self.store = 'store' in op or 'atomic' in op
            self.lds = '_lds_' in op or ' lds' in (' ' + self.mods)
            if 'load' in op and not self.lds:
                w |= regs_of(ops[0]); [r.update(regs_of(o)) for o in ops[1:]]
            else:
                [r.update(regs_of(o)) for o in ops]
            if self.lds: r |= regs_of('m0')
            self.wide = self.store and ('x3' in op or 'x4' in op)
            if self.wide:
                self.data = regs_of(ops[1]) if op.startswith('global_') else regs_of(ops[0])
        elif op.startswith('s_'):
            self.kind = 'salu'
            if op in ('s_nop', 's_waitcnt', 's_barrier', 's_endpgm', 's_sleep', 's_setprio', 's_branch') or op.startswith(('s_cbranch', 's_cmp')):
                [r.update(regs_of(o)) for o in ops]
            else:
                w |= regs_of(ops[0]); [r.update(regs_of(o)) for o in ops[1:]]
                if 'saveexec' in op: w |= regs_of('exec')
        else:
            raise ValueError('unknown instruction: ' + text)
        self.w = w; self.r = r

    def states(self):
        if self.kind == 'none': return 0
        if self.op == 's_nop': return int(self.ops[0], 0) + 1
        return 1

def isv(x): return x[0] in 'va'
def iss(x): return x[0] == 's'

def need(p, c):
    n = 0
    pv = {x for x in p.w if isv(x)}; ps = {x for x in p.w if iss(x)}
    if p.kind == 'valu':
        if c.kind == 'mfma' and pv & c.r: n = max(n, 2)
        if c.kind == 'valu':
            if c.dpp and pv & c.r: n = max(n, 2)
            if c.base.startswith('v_permlane') and pv & c.r: n = max(n, 2)
            if c.base in ('v_readlane_b32', 'v_readfirstlane_b32') and pv & c.r: n = max(n, 1)
            if p.base in TRANS and pv & c.r: n = max(n, 1)
            if ps & c.r: n = max(n, 2)
            if c.base in ('v_readlane_b32', 'v_writelane_b32') and ps & regs_of(c.ops[2]): n = max(n, 4)
            if ('s', 'exec_lo') in ps and (c.dpp or c.base.startswith('v_permlane') or 'lane' in c.base): n = max(n, 5)
        if c.kind == 'vmem' and ps & c.r: n = max(n, 5)
        if c.kind == 'mfma' and ('s', 'exec_lo') in ps: n = max(n, 4)
        if c.kind == 'salu' and ps & c.r: n = max(n, 1)
    if p.kind == 'mfma':
        P = p.passes
        late = {2: 5, 4: 8, 8: 12}[P]
        if c.kind == 'mfma':
            if pv & (c.A | c.B): n = max(n, late)
            if pv & c.C:
                if pv == c.C and c.passes == P: n = max(n, 2 if P == 2 else 0)
                else: n = max(n, {2: 4, 4: 6, 8: 10}[P])
            elif pv & c.w: n = max(n, late)
        elif c.kind in ('valu', 'vmem', 'ds'):
            if pv & (c.r | c.w): n = max(n, late)
        if c.kind == 'valu' and p.C & c.w: n = max(n, {2: 1, 4: 3, 8: 7}[P])
    if p.kind == 'salu' and ('s', 'm0') in p.w and c.kind == 'vmem' and c.lds: n = max(n, 1)
    if p.kind == 'vmem' and getattr(p, 'wide', False) and c.kind in ('valu', 'mfma') and p.data & c.w: n = max(n, 2)
    if p.kind == 'ds' and p.op.startswith('ds_write_b128') and False: pass
    return n

def fix_hazards(lines):
    out = []
    added = 0
    for t in lines:
        c = Ins(t)
        if c.kind != 'none':
            dist = 0; req = 0
            for p in reversed(out):
                if p.kind == 'none': continue
                k = need(p, c) - dist
                req = max(req, k)
                dist += p.states()
                if dist >= 20: break
                if p.op in ('s_branch', 's_endpgm'): break
            if req > 0:
                out.append(Ins(f'  s_nop {req - 1}')); added += 1
        out.append(c)
    return [i.text for i in out], added

class Asm:
    def __init__(self):
        self.lines = []
        self.nlab = 0
    def __call__(self, s):
        for l in s.split('\n'):
            l = l.strip()
            if not l: continue
            self.lines.append(l if l.endswith(':') else '  ' + l)
    def label(self, base='L'):
        self.nlab += 1
        return f'{base}_{self.nlab}'
    def text(self):
        lines, added = fix_hazards(self.lines)
        return '\n'.join(lines) + '\n'
```

```python
import sys, argparse
from asmlib import Asm

NAME = "parallel_sum__sliding_block_cached__swiglu_ffn__decode"

L_K, L_V, L_GU, L_WO, L_WD = 0, 32768, 65536, 81920, 98304
L_XX = 106496
L_Q  = L_XX + 2048
L_OW = L_Q + 1280
L_ML = L_OW + 8192
L_O  = L_ML + 128
L_H  = L_O + 256
L_F  = L_H + 128
L_END = L_F + 64
F_LD, F_H, F_Q, F_OW, F_O = 0, 4, 16, 32, 48

W_EP  = 0
W_H1  = 0x1000
W_HB  = W_H1 + 256 * 512
W_ML  = W_HB + 256 * 1024
W_H3  = W_ML + 32 * 512
W_H2  = W_H3 + 32 * 4096
W_END = W_H2 + 1024 * 1024
W_ST  = 0x400000

LOG2E = 0x3fb8aa3b
SCALE = 0x3db504f3
SPIN = 1 << 16

def gen(TH=22, stamps=False, stpol="sc1", order=("K", "V", "GU", "WO", "WD"), h1delay=0):
    a = Asm()
    st_n = {}
    def stamp(role, idx):
        if stamps:
            a(f"s_memrealtime s[{64 + 2 * idx}:{65 + 2 * idx}]")
            st_n[role] = max(st_n.get(role, 0), idx + 1)
    def dump(role):
        if not stamps: return
        a("s_waitcnt lgkmcnt(0)")
        a(f"s_lshl_b32 s60, s2, 9\ns_lshl_b32 s61, s3, 6\ns_add_u32 s60, s60, s61\ns_add_u32 s60, s60, {W_ST}")
        a("s_mov_b64 exec, 1\nv_mov_b32 v126, s60")
        for i in range(16):
            a(f"v_mov_b32 v127, s{64 + 2 * i}\nbuffer_store_dword v127, v126, s[48:51], 0 offen offset:{4 * i}")
    def srd(d, p, size):
        a(f"s_mov_b32 s{d}, s{p}\ns_and_b32 s{d + 1}, s{p + 1}, 0xffff\ns_mov_b32 s{d + 2}, {size}\ns_mov_b32 s{d + 3}, 0x20000")
    WS = "s[48:51]"
    WSZ = W_ST + 256 * 512 if stamps else W_END
    def seg_flag(name):
        return order.index(name) + 1

    def lds_spin(flag_off, want, reads, kind, tmp):
        L = a.label("spin"); D = a.label("spun")
        a(f"s_mov_b32 s40, {SPIN}")
        a(f"{L}:")
        if kind == 'ge':
            a(f"ds_read_b32 v{tmp}, v1 offset:{flag_off}")
        else:
            a(f"ds_read_b128 v[{tmp}:{tmp + 3}], v1 offset:{flag_off}")
        for r in reads: a(r)
        a("s_sub_u32 s40, s40, 1\ns_cbranch_scc1 L_end")
        a("s_waitcnt lgkmcnt(0)")
        if kind == 'ge':
            a(f"v_cmp_gt_u32 vcc, {want}, v{tmp}")
        else:
            a(f"v_and_b32 v{tmp}, v{tmp}, v{tmp + 1}\nv_and_b32 v{tmp + 2}, v{tmp + 2}, v{tmp + 3}\nv_and_b32 v{tmp}, v{tmp}, v{tmp + 2}")
            a(f"v_cmp_eq_u32 vcc, 0, v{tmp}")
        a(f"s_cbranch_vccnz {L}")

    a(f"{NAME}_kernel:")
    stamp('all', 0)
    a("""s_cmp_ge_u32 s2, 256
    s_cbranch_scc1 L_end
    s_load_dwordx16 s[8:23], s[0:1], 0
    s_load_dwordx8 s[24:31], s[0:1], 64
    v_lshrrev_b32 v2, 6, v0
    v_and_b32 v0, 63, v0
    v_readfirstlane_b32 s3, v2
    s_and_b32 s4, s2, 7
    s_lshr_b32 s5, s2, 3
    s_and_b32 s6, s5, 7
    s_lshr_b32 s7, s5, 3
    s_lshl_b32 s33, s7, 3
    s_add_u32 s33, s33, s4""")
    a(f"v_mov_b32 v1, {L_F}")
    a("s_cmp_eq_u32 s3, 0\ns_cbranch_scc1 L_aux\ns_cmp_eq_u32 s3, 1\ns_cbranch_scc1 L_loader")

    a("s_sub_u32 s34, s3, 2")
    a("s_cmp_eq_u32 s34, 0\ns_cbranch_scc0 L_nopf")
    a(f"s_getpc_b64 s[36:37]\nL_pc:\ns_sub_u32 s36, s36, L_pc-{NAME}_kernel\ns_subb_u32 s37, s37, 0")
    a(f"v_lshlrev_b32 v2, 7, v0\nv_min_u32 v2, L_end-{NAME}_kernel, v2\nglobal_load_dword v124, v2, s[36:37]")
    a(f"v_add_u32 v2, 8192, v2\nv_min_u32 v2, L_end-{NAME}_kernel, v2\nglobal_load_dword v124, v2, s[36:37]")
    a("v_mov_b32 v4, 0\nv_mov_b32 v5, 0\nv_mov_b32 v6, 0\nv_mov_b32 v7, 0")
    for i in range(4): a(f"ds_write_b128 v1, v[4:7] offset:{16 * i}")
    a("L_nopf:")
    a("""v_and_b32 v2, 15, v0
    v_lshrrev_b32 v3, 4, v0""")
    a("""v_xor_b32 v4, v2, v3
    v_lshlrev_b32 v4, 4, v4
    v_lshlrev_b32 v5, 8, v2
    s_lshl_b32 s35, s34, 13
    v_add_u32 v5, s35, v5""")
    for s in range(4):
        a(f"v_xor_b32 v{8 + s}, {64 * s}, v4\nv_add_u32 v{8 + s}, v{8 + s}, v5")
    a("""v_lshrrev_b32 v4, 2, v2
    v_lshrrev_b32 v5, 1, v3
    v_xor_b32 v5, v5, v4
    v_lshlrev_b32 v5, 6, v5
    v_lshl_add_u32 v5, v4, 8, v5
    v_and_b32 v6, 1, v3
    v_lshl_add_u32 v5, v6, 5, v5
    v_and_b32 v6, 3, v0
    v_lshl_add_u32 v5, v6, 3, v5""")
    a(f"s_add_u32 s35, s35, {L_V}\nv_add_u32 v12, s35, v5\nv_xor_b32 v13, 128, v12")
    a("""v_lshl_add_u32 v5, v3, 2, v4
    v_lshrrev_b32 v7, 1, v5
    v_and_b32 v7, 3, v7
    v_xor_b32 v7, s34, v7
    v_lshlrev_b32 v7, 5, v7
    v_lshl_add_u32 v7, v5, 7, v7
    v_lshl_add_u32 v14, v6, 3, v7""")
    a(f"v_add_u32 v14, {L_WO}, v14")
    a(f"v_mul_u32_u24 v15, 320, v6\nv_lshl_add_u32 v15, v3, 4, v15\nv_add_u32 v15, {L_Q}, v15")
    a("""v_lshrrev_b32 v4, 5, v0
    v_lshlrev_b32 v4, 11, v4
    v_and_b32 v5, 31, v0
    v_lshl_add_u32 v16, v5, 4, v4
    s_lshl_b32 s35, s4, 14
    s_lshl_b32 s36, s34, 12
    s_add_u32 s35, s35, s36""")
    a(f"s_add_u32 s35, s35, {W_H1}\nv_add_u32 v16, s35, v16")
    a(f"s_mul_i32 s35, s34, 320\ns_add_u32 s35, s35, {L_Q}\nv_lshl_add_u32 v17, v0, 2, s35")
    a("s_waitcnt lgkmcnt(0)")
    a("s_load_dword s32, s[30:31], 0")
    srd(48, 30, WSZ)
    a("s_barrier")
    a("s_waitcnt lgkmcnt(0)")
    a("s_add_u32 s32, s32, 0x9e3779b9")
    kreads = [f"ds_read_b128 v[{32 + 16 * t + 4 * s}:{35 + 16 * t + 4 * s}], v{8 + s} offset:{L_K + 4096 * t}" for t in range(2) for s in range(4)]
    lds_spin(F_LD, seg_flag("K"), [], 'ge', 20)
    stamp('c', 1)
    for r in kreads: a(r)
    L = a.label("h1")
    a(f"s_mov_b32 s40, {SPIN}\n{L}:")
    for i in range(4): a(f"buffer_load_dwordx4 v[{96 + 4 * i}:{99 + 4 * i}], v16, {WS}, 0 offen offset:{512 * i} sc1")
    a("s_sub_u32 s40, s40, 1\ns_cbranch_scc1 L_end")
    a("s_waitcnt vmcnt(0)")
    a("v_xor_b32 v20, s32, v97")
    for r in (99, 101, 103, 105, 107, 109, 111): a(f"v_bitop3_b32 v20, v20, v{r}, s32 bitop3:0xf6")
    a(f"v_cmp_ne_u32 vcc, 0, v20\ns_cbranch_vccnz {L}")
    stamp('c', 2)
    a("""v_add_f32 v96, v96, v100
    v_add_f32 v98, v98, v102
    v_add_f32 v104, v104, v108
    v_add_f32 v106, v106, v110
    v_add_f32 v96, v96, v104
    v_add_f32 v98, v98, v106
    v_cvt_pk_bf16_f32 v96, v96, v98
    v_mov_b32 v21, 1
    s_lshl_b32 s35, s34, 2
    v_add_u32 v18, s35, v1""")
    a(f"ds_write_b32 v17, v96\nds_write_b32 v18, v21 offset:{F_Q}")
    lds_spin(F_Q, 0, [f"ds_read_b128 v[{96 + 4 * s}:{99 + 4 * s}], v15 offset:{64 * s}" for s in range(4)], 'all4', 20)
    stamp('c', 3)
    for s in range(4):
        for t in range(2):
            c = "0" if s == 0 else f"v[{24 + 4 * t}:{27 + 4 * t}]"
            a(f"v_mfma_f32_16x16x32_bf16 v[{24 + 4 * t}:{27 + 4 * t}], v[{32 + 16 * t + 4 * s}:{35 + 16 * t + 4 * s}], v[{96 + 4 * s}:{99 + 4 * s}], {c}")
    lds_spin(F_LD, seg_flag("V"), [], 'ge', 20)
    stamp('c', 4)
    for tq in range(8):
        for h in range(2):
            a(f"ds_read_b64_tr_b16 v[{64 + 4 * tq + 2 * h}:{65 + 4 * tq + 2 * h}], v{12 + h} offset:{1024 * tq}")
    a(f"s_mov_b32 s35, {SCALE:#x}\ns_mov_b32 s36, {LOG2E:#x}")
    for r in range(24, 32): a(f"v_cvt_pk_bf16_f32 v{r}, 0, v{r}")
    for r in range(24, 32): a(f"v_mul_f32 v{r}, s35, v{r}")
    for r in range(24, 32): a(f"v_cvt_pk_bf16_f32 v{r}, 0, v{r}")
    a("""v_max3_f32 v20, v24, v25, v26
    v_max3_f32 v21, v27, v28, v29
    v_max3_f32 v20, v20, v30, v31
    v_max_f32 v20, v20, v21
    v_mov_b32 v21, v20
    v_permlane16_swap_b32 v20, v21
    v_max_f32 v20, v20, v21
    v_mov_b32 v21, v20
    v_permlane32_swap_b32 v20, v21
    v_max_f32 v20, v20, v21
    v_mul_f32 v22, s36, v20""")
    for r in range(24, 32): a(f"v_fma_f32 v{r}, v{r}, s36, -v22")
    for r in range(24, 32): a(f"v_exp_f32 v{r}, v{r}")
    for k in range(4): a(f"v_cvt_pk_bf16_f32 v{32 + k}, v{24 + 2 * k}, v{25 + 2 * k}")
    a("s_waitcnt lgkmcnt(0)")
    for tq in range(8):
        t, rg = tq >> 2, tq & 3
        for h in range(2):
            c = "0" if tq == 0 else f"v[{40 + 4 * h}:{43 + 4 * h}]"
            a(f"v_mfma_f32_4x4x4_16b_bf16 v[{40 + 4 * h}:{43 + 4 * h}], v[{32 + 2 * t}:{33 + 2 * t}], v[{64 + 4 * tq + 2 * h}:{65 + 4 * tq + 2 * h}], {c} cbsz:4 abid:{4 * rg}")
        if tq == 0:
            a("v_add_f32 v24, v24, v25\nv_add_f32 v26, v26, v27")
        if tq == 1:
            a("v_add_f32 v28, v28, v29\nv_add_f32 v30, v30, v31")
        if tq == 2:
            a("v_add_f32 v24, v24, v26\nv_add_f32 v28, v28, v30")
        if tq == 3:
            a("v_add_f32 v23, v24, v28\nv_mov_b32 v21, v23")
        if tq == 4:
            a("v_permlane16_swap_b32 v23, v21\nv_add_f32 v23, v23, v21")
        if tq == 5:
            a("v_mov_b32 v21, v23")
        if tq == 6:
            a("v_permlane32_swap_b32 v23, v21\nv_add_f32 v23, v23, v21")
    a(f"s_lshl_b32 s35, s34, 11\ns_add_u32 s35, s35, {L_OW}\nv_lshl_add_u32 v19, v0, 2, s35")
    a(f"s_lshl_b32 s35, s34, 5\ns_add_u32 s35, s35, {L_ML}\nv_lshl_add_u32 v20, v0, 3, s35\nv_mov_b32 v21, 1")
    for h in range(4): a(f"ds_write2st64_b32 v19, v{40 + h}, v{44 + h} offset0:{2 * h} offset1:{2 * h + 1}")
    a("s_mov_b64 exec, 15\nds_write_b64 v20, v[22:23]\ns_mov_b64 exec, -1")
    a(f"ds_write_b32 v18, v21 offset:{F_OW}")
    stamp('c', 5)
    a(f"s_lshl_b32 s35, s34, 9\ns_add_u32 s35, s35, {L_OW}\nv_lshl_add_u32 v19, v0, 3, s35")
    a(f"s_lshl_b32 s35, s34, 3\ns_add_u32 s35, s35, {L_ML}\nv_mov_b32 v24, s35")
    a(f"s_lshl_b32 s35, s4, 2\ns_add_u32 s35, s35, s34\ns_lshl_b32 s35, s35, 5\ns_add_u32 s35, s35, s5")
    a(f"s_lshl_b32 s36, s35, 10\ns_add_u32 s36, s36, {W_H2}\nv_lshl_add_u32 v25, v0, 4, s36")
    a(f"s_lshl_b32 s36, s35, 4\ns_add_u32 s36, s36, {W_ML}\nv_mov_b32 v26, s36")
    reads = [f"ds_read_b64 v[{32 + 2 * w}:{33 + 2 * w}], v24 offset:{32 * w}" for w in range(4)]
    reads += [f"ds_read_b64 v[{40 + 2 * w}:{41 + 2 * w}], v19 offset:{2048 * w}" for w in range(4)]
    lds_spin(F_OW, 0, reads, 'all4', 20)
    stamp('c', 6)
    a("""v_max3_f32 v48, v32, v34, v36
    v_max_f32 v48, v48, v38
    v_sub_f32 v32, v32, v48
    v_sub_f32 v34, v34, v48
    v_sub_f32 v36, v36, v48
    v_sub_f32 v38, v38, v48
    v_exp_f32 v32, v32
    v_exp_f32 v34, v34
    v_exp_f32 v36, v36
    v_exp_f32 v38, v38
    v_mov_b32 v53, s32
    v_mov_b32 v55, s32
    v_mul_f32 v52, v32, v40
    v_mul_f32 v54, v32, v41
    v_fmac_f32 v52, v34, v42
    v_fmac_f32 v54, v34, v43
    v_fmac_f32 v52, v36, v44
    v_fmac_f32 v54, v36, v45
    v_fmac_f32 v52, v38, v46
    v_fmac_f32 v54, v38, v47""")
    a(f"buffer_store_dwordx4 v[52:55], v25, {WS}, 0 offen {stpol}")
    a("""v_mul_f32 v50, v32, v33
    v_mov_b32 v49, s32
    v_fmac_f32 v50, v34, v35
    v_mov_b32 v51, s32
    v_fmac_f32 v50, v36, v37
    v_fmac_f32 v50, v38, v39
    s_mov_b64 exec, 1""")
    a(f"buffer_store_dwordx4 v[48:51], v26, {WS}, 0 offen {stpol}")
    a("s_mov_b64 exec, -1")
    stamp('c', 7)
    a(f"s_lshl_b32 s35, s4, 2\ns_add_u32 s35, s35, s7")
    a(f"s_lshl_b32 s36, s35, 15\ns_lshl_b32 s37, s34, 8\ns_add_u32 s36, s36, s37\ns_add_u32 s36, s36, {W_H2}")
    a("v_lshlrev_b32 v24, 10, v3\nv_lshl_add_u32 v24, v2, 4, v24\nv_add_u32 v24, s36, v24")
    a(f"s_lshl_b32 s36, s35, 9\ns_add_u32 s36, s36, {W_ML}\nv_lshl_add_u32 v25, v3, 4, s36")
    for i in range(1, 8): a(f"s_movk_i32 s{51 + i}, {4096 * i}")
    a("""v_bfe_u32 v29, v0, 1, 2
    v_lshlrev_b32 v29, 4, v29
    v_bfe_u32 v30, v0, 3, 1
    v_lshl_add_u32 v29, v30, 3, v29
    v_and_b32 v30, 1, v0
    v_lshl_add_u32 v29, v30, 2, v29""")
    a(f"s_lshl_b32 s35, s34, 6\ns_add_u32 s35, s35, {L_O}\nv_add_u32 v29, s35, v29")
    L = a.label("h2")
    a(f"s_mov_b32 s40, {SPIN}\n{L}:")
    for i in range(8): a(f"buffer_load_dwordx4 v[{32 + 4 * i}:{35 + 4 * i}], v25, {WS}, 0 offen offset:{64 * i} sc1")
    for i in range(8): a(f"buffer_load_dwordx4 v[{64 + 4 * i}:{67 + 4 * i}], v24, {WS}, {'s%d' % (51 + i) if i else 0} offen sc1")
    a("s_sub_u32 s40, s40, 1\ns_cbranch_scc1 L_end")
    a("s_waitcnt vmcnt(8)")
    a("v_xor_b32 v20, s32, v33")
    for r in [35] + [x for i in range(1, 8) for x in (33 + 4 * i, 35 + 4 * i)]: a(f"v_bitop3_b32 v20, v20, v{r}, s32 bitop3:0xf6")
    a("""v_max3_f32 v21, v32, v36, v40
    v_max3_f32 v22, v44, v48, v52
    v_max3_f32 v21, v21, v56, v60
    v_max_f32 v21, v21, v22
    v_mov_b32 v22, v21
    v_permlane16_swap_b32 v21, v22
    v_max_f32 v21, v21, v22
    v_mov_b32 v22, v21
    v_permlane32_swap_b32 v21, v22
    v_max_f32 v21, v21, v22""")
    for i in range(8): a(f"v_sub_f32 v{32 + 4 * i}, v{32 + 4 * i}, v21")
    for i in range(8): a(f"v_exp_f32 v{32 + 4 * i}, v{32 + 4 * i}")
    a("v_mul_f32 v22, v32, v34")
    for i in range(1, 8): a(f"v_fmac_f32 v22, v{32 + 4 * i}, v{34 + 4 * i}")
    a("""v_mov_b32 v23, v22
    v_permlane16_swap_b32 v22, v23
    v_add_f32 v22, v22, v23
    v_mov_b32 v23, v22
    v_permlane32_swap_b32 v22, v23
    v_add_f32 v22, v22, v23
    v_rcp_f32 v23, v22""")
    for i in range(8):
        a(f"s_waitcnt vmcnt({7 - i})")
        if i == 0: a("v_mul_f32 v30, v32, v64\nv_mul_f32 v31, v32, v66")
        else: a(f"v_fmac_f32 v30, v{32 + 4 * i}, v{64 + 4 * i}\nv_fmac_f32 v31, v{32 + 4 * i}, v{66 + 4 * i}")
        a(f"v_bitop3_b32 v20, v20, v{65 + 4 * i}, s32 bitop3:0xf6\nv_bitop3_b32 v20, v20, v{67 + 4 * i}, s32 bitop3:0xf6")
    a(f"v_cmp_ne_u32 vcc, 0, v20\ns_cbranch_vccnz {L}")
    stamp('c', 8)
    a("""v_permlane16_swap_b32 v30, v31
    v_add_f32 v30, v30, v31
    v_mov_b32 v31, v30
    v_permlane32_swap_b32 v30, v31
    v_add_f32 v30, v30, v31
    v_mul_f32 v30, v30, v23
    v_mov_b32 v31, v30
    v_permlane16_swap_b32 v30, v31
    v_cvt_pk_bf16_f32 v30, v30, v31
    v_mov_b32 v21, 1""")
    a(f"ds_write_b32 v29, v30\nds_write_b32 v18, v21 offset:{F_O}")
    lds_spin(F_LD, seg_flag("WO"), [], 'ge', 20)
    stamp('c', 9)
    for s in range(4):
        for x in range(2): a(f"ds_read_b64_tr_b16 v[{32 + 4 * s + 2 * x}:{33 + 4 * s + 2 * x}], v14 offset:{4096 * s + 2048 * x}")
    a(f"v_lshlrev_b32 v24, 4, v3\nv_add_u32 v24, {L_O}, v24")
    a("v_mov_b32 v96, 0\nv_mov_b32 v97, 0\nv_mov_b32 v98, 0\nv_mov_b32 v99, 0")
    a("s_cmp_ge_u32 s33, 28\ns_cbranch_scc1 L_noffn")
    lds_spin(F_LD, seg_flag("WD"), [], 'ge', 20)
    for s in range(2):
        for x in range(2): a(f"ds_read_b64_tr_b16 v[{48 + 4 * s + 2 * x}:{49 + 4 * s + 2 * x}], v14 offset:{L_WD - L_WO + 4096 * s + 2048 * x}")
    lds_spin(F_H, 1, [f"ds_read_b128 v[{56 + 4 * s}:{59 + 4 * s}], v24 offset:{L_H - L_O + 64 * s}" for s in range(2)], 'ge', 20)
    for s in range(2): a(f"v_mfma_f32_16x16x32_bf16 v[96:99], v[{56 + 4 * s}:{59 + 4 * s}], v[{48 + 4 * s}:{51 + 4 * s}], v[96:99]")
    a("L_noffn:")
    a(f"s_lshl_b32 s35, s6, 2\ns_add_u32 s35, s35, s34\ns_lshl_b32 s35, s35, 5\ns_lshl_b32 s36, s4, 2\ns_add_u32 s35, s35, s36\ns_add_u32 s35, s35, s7")
    a(f"s_lshl_b32 s35, s35, 7\ns_add_u32 s35, s35, {W_H3}\nv_lshl_add_u32 v25, v0, 3, s35")
    lds_spin(F_O, 0, [f"ds_read_b128 v[{64 + 4 * s}:{67 + 4 * s}], v24 offset:{64 * s}" for s in range(4)], 'all4', 20)
    stamp('c', 10)
    for s in range(4): a(f"v_mfma_f32_16x16x32_bf16 v[96:99], v[{64 + 4 * s}:{67 + 4 * s}], v[{32 + 4 * s}:{35 + 4 * s}], v[96:99]")
    a("v_mov_b32 v101, s32\nv_mov_b32 v103, s32")
    a("v_mov_b32 v100, v96\nv_mov_b32_dpp v102, v96 quad_perm:[1,1,3,3] row_mask:0xf bank_mask:0xf")
    a(f"s_mov_b64 exec, 0x5555\nbuffer_store_dwordx4 v[100:103], v25, {WS}, 0 offen sc1\ns_mov_b64 exec, -1")
    stamp('c', 11)
    a("s_cmp_lt_u32 s2, 32\ns_cbranch_scc0 L_cdone\ns_cmp_eq_u32 s34, 0\ns_cbranch_scc0 L_cdone")
    a(f"s_lshl_b32 s35, s2, 12\ns_add_u32 s35, s35, {W_H3}\nv_lshl_add_u32 v24, v0, 4, s35")
    a("v_and_b32 v25, 7, v0\ns_lshl_b32 s35, s2, 5\nv_lshl_add_u32 v25, v25, 2, s35")
    srd(44, 8, 1024)
    a("buffer_load_dword v26, v25, s[44:47], 0 offen")
    srd(52, 26, 1024)
    L = a.label("h3")
    a(f"s_mov_b32 s40, {SPIN}\n{L}:")
    for i in range(4): a(f"buffer_load_dwordx4 v[{32 + 4 * i}:{35 + 4 * i}], v24, {WS}, 0 offen offset:{1024 * i} sc1")
    a("s_sub_u32 s40, s40, 1\ns_cbranch_scc1 L_end")
    a("s_waitcnt vmcnt(0)")
    a("v_xor_b32 v20, s32, v33")
    for r in (35, 37, 39, 41, 43, 45, 47): a(f"v_bitop3_b32 v20, v20, v{r}, s32 bitop3:0xf6")
    a(f"v_cmp_ne_u32 vcc, 0, v20\ns_cbranch_vccnz {L}")
    stamp('c', 12)
    a("""v_add_f32 v32, v32, v36
    v_add_f32 v34, v34, v38
    v_add_f32 v40, v40, v44
    v_add_f32 v42, v42, v46
    v_add_f32 v32, v32, v40
    v_add_f32 v34, v34, v42
    v_permlane32_swap_b32 v32, v34
    v_add_f32 v32, v32, v34
    v_mov_b32 v34, v32
    v_permlane16_swap_b32 v32, v34
    v_add_f32 v32, v32, v34
    v_add_f32_dpp v32, v32, v32 row_ror:8 row_mask:0xf bank_mask:0xf
    v_mov_b32 v34, v32
    v_permlane32_swap_b32 v32, v34
    v_lshlrev_b32 v27, 16, v26
    v_and_b32 v28, 0xffff0000, v26
    v_add_f32 v32, v32, v27
    v_add_f32 v34, v34, v28
    v_cvt_pk_bf16_f32 v32, v32, v34
    s_mov_b64 exec, 0xff
    buffer_store_dword v32, v25, s[52:55], 0 offen""")
    a("s_cmp_eq_u32 s2, 0\ns_cbranch_scc0 L_cdone\ns_mov_b64 exec, 1\nv_mov_b32 v25, s32\nbuffer_store_dword v25, off, s[48:51], 0")
    a("L_cdone:")
    stamp('c', 13)
    dump('c')
    a("s_endpgm")

    a("L_aux:")
    a("""v_lshlrev_b32 v2, 4, v0
    v_lshrrev_b32 v3, 3, v0
    v_and_b32 v4, 7, v0
    v_lshlrev_b32 v5, 17, v3
    v_lshl_add_u32 v5, v4, 4, v5
    s_lshl_b32 s35, s7, 20
    s_lshl_b32 s36, s4, 10
    s_add_u32 s35, s35, s36
    s_lshl_b32 s36, s6, 7
    s_add_u32 s35, s35, s36
    v_add_u32 v5, s35, v5
    s_mov_b32 s36, 0
    s_waitcnt lgkmcnt(0)""")
    srd(44, 8, 1024)
    a("buffer_load_dwordx4 v[8:11], v2, s[44:47], 0 offen")
    srd(44, 14, 4194304)
    for i in range(16):
        a(f"buffer_load_dwordx4 v[{64 + 4 * i}:{67 + 4 * i}], v5, s[44:47], s36 offen nt")
        if i < 15: a("s_addk_i32 s36, 0x2000")
    a("s_load_dword s32, s[30:31], 0")
    srd(48, 30, WSZ)
    a("s_barrier")
    stamp('a', 1)
    a("""v_and_b32 v6, 1, v0
    v_lshlrev_b32 v6, 4, v6
    v_mov_b32 v7, 0xffff
    v_lshlrev_b32 v6, v6, v7
    v_bfe_u32 v7, v0, 1, 2""")
    for d in range(4): a(f"v_cmp_eq_u32 vcc, {d}, v7\nv_cndmask_b32 v{12 + d}, 0, v6, vcc")
    a(f"v_lshlrev_b32 v6, 5, v0\nv_add_u32 v6, {L_XX}, v6")
    a(f"s_lshl_b32 s35, s7, 9\ns_add_u32 s35, s35, {L_XX}\nv_lshl_add_u32 v7, v3, 6, s35")
    a("s_waitcnt vmcnt(16)")
    stamp('a', 2)
    for k in range(4): a(f"v_lshlrev_b32 v{16 + 2 * k}, 16, v{8 + k}\nv_and_b32 v{17 + 2 * k}, 0xffff0000, v{8 + k}")
    def wave_sum(r, t):
        for n in (8, 4, 2, 1): a(f"v_add_f32_dpp v{r}, v{r}, v{r} row_ror:{n} row_mask:0xf bank_mask:0xf")
        a(f"v_mov_b32 v{t}, v{r}\nv_permlane16_swap_b32 v{r}, v{t}\nv_add_f32 v{r}, v{r}, v{t}")
        a(f"v_mov_b32 v{t}, v{r}\nv_permlane32_swap_b32 v{r}, v{t}\nv_add_f32 v{r}, v{r}, v{t}")
    a("""v_add_f32 v24, v16, v17
    v_add_f32 v25, v18, v19
    v_add_f32 v26, v20, v21
    v_add_f32 v27, v22, v23
    v_add_f32 v24, v24, v25
    v_add_f32 v26, v26, v27
    v_add_f32 v24, v24, v26""")
    wave_sum(24, 25)
    a("v_mul_f32 v24, 0x3b000000, v24")
    for k in range(8): a(f"v_sub_f32 v{32 + k}, v{16 + k}, v24")
    a("v_mul_f32 v26, v32, v32\nv_mul_f32 v27, v33, v33")
    for k in range(2, 8): a(f"v_fmac_f32 v{26 + (k & 1)}, v{32 + k}, v{32 + k}")
    a("v_add_f32 v26, v26, v27\nv_cvt_pk_bf16_f32 v24, 0, v24")
    wave_sum(26, 25)
    for k in range(8): a(f"v_sub_f32 v{16 + k}, v{16 + k}, v24")
    a("""v_mul_f32 v26, 0x3b000000, v26
    v_cvt_pk_bf16_f32 v26, 0, v26
    v_add_f32 v26, 0x3727c5ac, v26
    v_cvt_pk_bf16_f32 v26, 0, v26
    v_sqrt_f32 v26, v26""")
    for k in range(8): a(f"v_cvt_pk_bf16_f32 v{16 + k}, 0, v{16 + k}")
    a("v_cvt_pk_bf16_f32 v26, 0, v26\nv_rcp_f32 v27, v26")
    for k in range(8): a(f"v_mul_f32 v{32 + k}, v{16 + k}, v27")
    for k in range(8): a(f"v_fma_f32 v{16 + k}, -v{32 + k}, v26, v{16 + k}")
    for k in range(8): a(f"v_fmac_f32 v{32 + k}, v{16 + k}, v27")
    for k in range(8): a(f"v_cvt_pk_bf16_f32 v{32 + k}, v{32 + k}, v{32 + k}")
    a("ds_write_b128 v6, v[32:35]\nds_write_b128 v6, v[36:39] offset:16")
    for k in range(4): a(f"ds_read_b128 v[{16 + 4 * k}:{19 + 4 * k}], v7 offset:{16 * k}")
    a("""v_lshlrev_b32 v5, 6, v4
    v_bfe_u32 v6, v0, 4, 1
    v_lshl_add_u32 v5, v6, 5, v5
    v_lshrrev_b32 v6, 5, v0
    v_lshl_add_u32 v5, v6, 4, v5
    s_lshl_b32 s35, s4, 5
    s_lshl_b32 s36, s6, 2
    s_add_u32 s35, s35, s36
    s_add_u32 s35, s35, s7
    s_lshl_b32 s35, s35, 9""")
    a(f"s_add_u32 s35, s35, {W_H1}\nv_add_u32 v9, s35, v5")
    a("s_waitcnt lgkmcnt(0)")
    stamp('a', 3)
    a("s_add_u32 s32, s32, 0x9e3779b9")
    a("v_mov_b32 v49, s32\nv_mov_b32 v51, s32")
    for i in range(16):
        A = 40 + 4 * (i & 1)
        for d in range(4): a(f"v_and_b32 v{A + d}, v{16 + i}, v{12 + d}")
        a(f"s_waitcnt vmcnt({15 - i})")
        c = "0" if i == 0 else "v[32:35]"
        a(f"v_mfma_f32_16x16x32_bf16 v[32:35], v[{A}:{A + 3}], v[{64 + 4 * i}:{67 + 4 * i}], {c}")
    stamp('a', 4)
    a("""v_permlane32_swap_b32 v32, v34
    v_permlane32_swap_b32 v33, v35
    v_add_f32_dpp v48, v34, v32 row_shl:8 row_mask:0xf bank_mask:0xf
    v_add_f32_dpp v50, v35, v33 row_shl:8 row_mask:0xf bank_mask:0xf
    s_mov_b32 exec_lo, 0x00ff00ff
    s_mov_b32 exec_hi, 0x00ff00ff""")
    a(f"buffer_store_dwordx4 v[48:51], v9, {WS}, 0 offen {stpol}")
    a("s_mov_b64 exec, -1")
    stamp('a', 5)
    a("s_cmp_ge_u32 s33, 28\ns_cbranch_scc1 L_adone")
    a(f"s_lshl_b32 s35, s6, 8\ns_add_u32 s35, s35, {L_XX}\nv_lshl_add_u32 v7, v3, 5, s35")
    a("ds_read_b128 v[16:19], v7\nds_read_b128 v[20:23], v7 offset:16")
    a(f"s_lshl_b32 s35, s4, 2\ns_add_u32 s35, s35, s7\ns_lshl_b32 s35, s35, 13\ns_add_u32 s35, s35, {W_HB}")
    a("v_add_u32 v10, s35, v2\ns_lshl_b32 s36, s6, 10\ns_add_u32 s35, s35, s36\nv_lshl_add_u32 v9, v5, 1, s35")
    a(f"v_add_u32 v11, {L_GU}, v2")
    a("""v_lshrrev_b32 v8, 5, v0
    v_lshlrev_b32 v8, 6, v8
    v_bfe_u32 v6, v0, 2, 2
    v_lshl_add_u32 v8, v6, 4, v8
    v_bfe_u32 v6, v0, 4, 1
    v_lshl_add_u32 v8, v6, 3, v8
    v_and_b32 v6, 3, v0
    v_lshl_add_u32 v8, v6, 1, v8""")
    a(f"v_add_u32 v8, {L_H}, v8")
    lds_spin(F_LD, seg_flag("GU"), [], 'ge', 24)
    stamp('a', 6)
    for i in range(16): a(f"ds_read_b128 v[{64 + 4 * i}:{67 + 4 * i}], v11 offset:{1024 * i}")
    for i in range(8):
        A = 40 + 4 * (i & 1)
        for d in range(4): a(f"v_and_b32 v{A + d}, v{16 + i}, v{12 + d}")
        if i == 0: a("s_waitcnt lgkmcnt(0)")
        for m in range(2):
            c = "0" if i == 0 else f"v[{32 + 4 * m}:{35 + 4 * m}]"
            a(f"v_mfma_f32_16x16x32_bf16 v[{32 + 4 * m}:{35 + 4 * m}], v[{A}:{A + 3}], v[{64 + 8 * i + 4 * m}:{67 + 8 * i + 4 * m}], {c}")
    a("v_mov_b32 v53, s32\nv_mov_b32 v55, s32")
    a("""v_permlane32_swap_b32 v32, v34
    v_permlane32_swap_b32 v33, v35
    v_permlane32_swap_b32 v36, v38
    v_permlane32_swap_b32 v37, v39
    v_add_f32_dpp v48, v34, v32 row_shl:8 row_mask:0xf bank_mask:0xf
    v_add_f32_dpp v52, v35, v33 row_shl:8 row_mask:0xf bank_mask:0xf
    v_add_f32_dpp v50, v38, v36 row_shl:8 row_mask:0xf bank_mask:0xf
    v_add_f32_dpp v54, v39, v37 row_shl:8 row_mask:0xf bank_mask:0xf
    s_mov_b32 exec_lo, 0x00ff00ff
    s_mov_b32 exec_hi, 0x00ff00ff""")
    a(f"buffer_store_dwordx4 v[48:51], v9, {WS}, 0 offen {stpol}\nbuffer_store_dwordx4 v[52:55], v9, {WS}, 0 offen offset:16 {stpol}")
    a("s_mov_b64 exec, -1\nv_add_u32 v11, 4096, v10")
    stamp('a', 7)
    L = a.label("hb")
    a(f"s_mov_b32 s40, {SPIN}\n{L}:")
    for i in range(8): a(f"buffer_load_dwordx4 v[{64 + 4 * i}:{67 + 4 * i}], v{10 + (i >> 2)}, {WS}, 0 offen offset:{1024 * (i & 3)} sc1")
    a("s_sub_u32 s40, s40, 1\ns_cbranch_scc1 L_end")
    a("s_waitcnt vmcnt(0)")
    a("v_xor_b32 v20, s32, v65")
    for r in [67] + [x for i in range(1, 8) for x in (65 + 4 * i, 67 + 4 * i)]: a(f"v_bitop3_b32 v20, v20, v{r}, s32 bitop3:0xf6")
    a(f"v_cmp_ne_u32 vcc, 0, v20\ns_cbranch_vccnz {L}")
    stamp('a', 8)
    for step in (1, 2, 4):
        for i in range(0, 8, 2 * step):
            a(f"v_add_f32 v{64 + 4 * i}, v{64 + 4 * i}, v{64 + 4 * (i + step)}\nv_add_f32 v{66 + 4 * i}, v{66 + 4 * i}, v{66 + 4 * (i + step)}")
    a(f"""v_cvt_pk_bf16_f32 v64, 0, v64
    v_cvt_pk_bf16_f32 v66, 0, v66
    v_mul_f32 v20, {(LOG2E | 0x80000000):#x}, v64
    v_exp_f32 v20, v20
    v_add_f32 v20, 1.0, v20
    v_rcp_f32 v21, v20
    v_mul_f32 v22, v64, v21
    v_fma_f32 v23, -v22, v20, v64
    v_fma_f32 v23, v23, v21, v22
    v_cmp_class_f32 vcc, v23, 3
    v_cndmask_b32 v22, v23, v22, vcc
    v_cvt_pk_bf16_f32 v22, 0, v22
    v_mul_f32 v22, v22, v66
    v_cvt_pk_bf16_f32 v22, v22, v22
    v_mov_b32 v21, 1
    ds_write_b16 v8, v22
    ds_write_b32 v1, v21 offset:{F_H}""")
    a("L_adone:")
    stamp('a', 9)
    dump('a')
    a("s_endpgm")

    a("L_loader:")
    a("s_setprio 3")
    a("""v_and_b32 v2, 15, v0
    v_lshrrev_b32 v3, 4, v0
    v_xor_b32 v4, v2, v3
    v_lshlrev_b32 v4, 4, v4
    v_lshlrev_b32 v5, 8, v3""")
    for i in range(4): a(f"v_xor_b32 v{8 + i}, {64 * i}, v4\nv_add_u32 v{8 + i}, v{8 + i}, v5")
    a("""v_lshrrev_b32 v4, 2, v2
    v_xor_b32 v4, v4, v3
    v_lshl_add_u32 v12, v4, 6, v5
    v_and_b32 v4, 3, v0
    v_lshl_add_u32 v12, v4, 4, v12
    v_lshrrev_b32 v6, 3, v0
    v_and_b32 v7, 7, v0
    v_mul_u32_u24 v13, 28672, v6
    v_lshl_add_u32 v13, v7, 4, v13
    v_lshlrev_b32 v4, 1, v3
    v_xor_b32 v4, v4, v7
    v_lshlrev_b32 v4, 4, v4
    v_lshl_add_u32 v14, v6, 10, v4
    s_lshl_b32 s35, s4, 24
    s_lshl_b32 s36, s5, 15
    s_add_u32 s35, s35, s36
    s_add_u32 s35, s35, 15728640
    s_mul_i32 s41, s6, 229376
    s_lshl_b32 s37, s33, 7
    s_add_u32 s41, s41, s37
    s_lshl_b32 s42, s4, 19
    s_lshl_b32 s38, s7, 17
    s_add_u32 s42, s42, s38
    s_lshl_b32 s38, s6, 7
    s_add_u32 s42, s42, s38
    s_lshl_b32 s43, s33, 16
    s_add_u32 s43, s43, s38
    s_waitcnt lgkmcnt(0)
    s_add_u32 s10, s10, s35
    s_addc_u32 s11, s11, 0
    s_add_u32 s12, s12, s35
    s_addc_u32 s13, s13, 0""")
    srd(44, 10, 32768)
    a("s_mov_b32 s40, 0\ns_barrier")
    stamp('l', 1)
    def seg_loads(name):
        r = []
        if name in ("K", "V"):
            base = L_K if name == "K" else L_V
            for i in range(32):
                v = f"v{8 + (i & 3)}" if name == "K" else "v12"
                r.append((base + 1024 * i if i % 4 == 0 else None, f"{v}, s[44:47], s40 offen offset:{1024 * (i & 3)}", "s_addk_i32 s40, 0x1000" if i % 4 == 3 else None))
        if name == "GU":
            for i in range(16): r.append((L_GU + 1024 * i, f"v13, s[{44 + 8 * (i & 1)}:{47 + 8 * (i & 1)}], s41 offen", "s_addk_i32 s41, 0xe00" if i & 1 else None))
        if name == "WO":
            for i in range(16): r.append((L_WO + 1024 * i, "v14, s[44:47], s42 offen", "s_addk_i32 s42, 0x2000"))
        if name == "WD":
            for i in range(8): r.append((L_WD + 1024 * i, "v14, s[44:47], s43 offen", "s_addk_i32 s43, 0x2000"))
        return r
    def seg_setup(name):
        if name == "K": srd(44, 10, 32768); a("s_mov_b32 s40, 0")
        if name == "V": srd(44, 12, 32768); a("s_mov_b32 s40, 0")
        if name == "GU": srd(44, 20, 1835008); srd(52, 22, 1835008)
        if name == "WO": srd(44, 16, 4194304)
        if name == "WD": srd(44, 24, 1835008)
    def emit(segs, n0, pend, final):
        n = n0
        for name in segs:
            if n or name != "K": seg_setup(name)
            for (m0, ad, inc) in seg_loads(name):
                if m0 is not None: a(f"s_mov_b32 m0, {m0}")
                if n >= TH:
                    a(f"s_waitcnt vmcnt({TH - 1})")
                    while pend and pend[0][0] <= n - (TH - 1):
                        signal(pend.pop(0)[1])
                a(f"buffer_load_dwordx4 {ad} nt lds")
                if inc: a(inc)
                n += 1
            pend.append((n, seg_flag(name)))
        if final:
            stamp('l', 8)
            while pend:
                e, f = pend.pop(0)
                a(f"s_waitcnt vmcnt({n - e})")
                signal(f)
        return n
    def signal(f):
        a(f"v_mov_b32 v20, {f}\nds_write_b32 v1, v20 offset:{F_LD}")
        stamp('l', 1 + f)
    ffn = ("GU", "WD")
    k = min(order.index(x) for x in ffn)
    pend = []
    n = emit(order[:k], 0, pend, False)
    a("s_cmp_ge_u32 s33, 28\ns_cbranch_scc1 L_ldb")
    emit(order[k:], n, list(pend), True)
    a("s_branch L_lde\nL_ldb:")
    emit([x for x in order[k:] if x not in ffn], n, list(pend), True)
    a("L_lde:")
    stamp('l', 9)
    if stamps: srd(48, 30, WSZ)
    dump('l')
    a("L_end:\ns_endpgm")

    head = open(f"cdna_kernels/{NAME}.s.ref").read().split("; Override")[0]
    out = head + f"; Generated by gen/gen.py (hand-designed kernel; see that script for the layout notes)\n; @launch grid=(256,1,1) block=(384,1,1) lds={L_END}\n"
    out += f'.amdgcn_target "amdgcn-amd-amdhsa--gfx950"\n.text\n.globl {NAME}_kernel\n.p2align 8\n.type {NAME}_kernel,@function\n'
    out += a.text()
    out += f""".section .rodata,"a"
.p2align 6
.amdhsa_kernel {NAME}_kernel
  .amdhsa_next_free_vgpr 128
  .amdhsa_next_free_sgpr 102
  .amdhsa_accum_offset 128
  .amdhsa_group_segment_fixed_size 0
  .amdhsa_kernarg_size 96
  .amdhsa_user_sgpr_count 2
  .amdhsa_user_sgpr_kernarg_segment_ptr 1
  .amdhsa_system_sgpr_workgroup_id_x 1
  .amdhsa_float_denorm_mode_32 3
.end_amdhsa_kernel
"""
    return out

if __name__ == "__main__":
    kw = eval("dict(" + (sys.argv[2] if len(sys.argv) > 2 else "") + ")")
    open(sys.argv[1], "w").write(gen(**kw))
```

```python
import sys, argparse
from asmlib import Asm

NAME = "parallel_sum__sliding_block_cached__swiglu_ffn__decode"

L_K, L_V, L_GU, L_WO, L_WD = 0, 32768, 65536, 81920, 98304
L_XX = 106496
L_Q  = L_XX + 2048
L_OW = L_Q + 1280
L_ML = L_OW + 8192
L_O  = L_ML + 128
L_H  = L_O + 256
L_F  = L_H + 128
L_END = L_F + 64
F_LD, F_H, F_Q, F_OW, F_O = 0, 4, 16, 32, 48

W_EP  = 0
W_H1  = 0x1000
W_HB  = W_H1 + 256 * 512
W_ML  = W_HB + 256 * 1024
W_H3  = W_ML + 32 * 512
W_H2  = W_H3 + 32 * 4096
W_END = W_H2 + 1024 * 1024
W_ST  = 0x400000

LOG2E = 0x3fb8aa3b
SCALE = 0x3db504f3
SPIN = 1 << 16

def gen(TH=22, stamps=False, stpol="sc1", order=("K", "V", "GU", "WO", "WD"), h1delay=0, dbgtime=False):
    a = Asm()
    st_n = {}
    def stamp(role, idx):
        if stamps:
            a(f"s_memrealtime s[{64 + 2 * idx}:{65 + 2 * idx}]")
            st_n[role] = max(st_n.get(role, 0), idx + 1)
    def dump(role):
        if not stamps: return
        a("s_waitcnt lgkmcnt(0)")
        a(f"s_lshl_b32 s60, s2, 9\ns_lshl_b32 s61, s3, 6\ns_add_u32 s60, s60, s61\ns_add_u32 s60, s60, {W_ST}")
        a("s_mov_b64 exec, 1\nv_mov_b32 v126, s60")
        for i in range(16):
            a(f"v_mov_b32 v127, s{64 + 2 * i}\nbuffer_store_dword v127, v126, s[48:51], 0 offen offset:{4 * i}")
    def srd(d, p, size):
        a(f"s_mov_b32 s{d}, s{p}\ns_and_b32 s{d + 1}, s{p + 1}, 0xffff\ns_mov_b32 s{d + 2}, {size}\ns_mov_b32 s{d + 3}, 0x20000")
    WS = "s[48:51]"
    WSZ = W_ST + 256 * 512 if stamps else W_END
    def seg_flag(name):
        return order.index(name) + 1

    def lds_spin(flag_off, want, reads, kind, tmp):
        L = a.label("spin"); D = a.label("spun")
        a(f"s_mov_b32 s40, {SPIN}")
        a(f"{L}:")
        if kind == 'ge':
            a(f"ds_read_b32 v{tmp}, v1 offset:{flag_off}")
        else:
            a(f"ds_read_b128 v[{tmp}:{tmp + 3}], v1 offset:{flag_off}")
        for r in reads: a(r)
        a("s_sub_u32 s40, s40, 1\ns_cbranch_scc1 L_end")
        a("s_waitcnt lgkmcnt(0)")
        if kind == 'ge':
            a(f"v_cmp_gt_u32 vcc, {want}, v{tmp}")
        else:
            a(f"v_and_b32 v{tmp}, v{tmp}, v{tmp + 1}\nv_and_b32 v{tmp + 2}, v{tmp + 2}, v{tmp + 3}\nv_and_b32 v{tmp}, v{tmp}, v{tmp + 2}")
            a(f"v_cmp_eq_u32 vcc, 0, v{tmp}")
        a(f"s_cbranch_vccnz {L}")

    a(f"{NAME}_kernel:")
    stamp('all', 0)
    if dbgtime: a("s_memrealtime s[96:97]")
    a("""s_cmp_ge_u32 s2, 256
    s_cbranch_scc1 L_end
    s_load_dwordx16 s[8:23], s[0:1], 0
    s_load_dwordx8 s[24:31], s[0:1], 64
    v_lshrrev_b32 v2, 6, v0
    v_and_b32 v0, 63, v0
    v_readfirstlane_b32 s3, v2
    s_and_b32 s4, s2, 7
    s_lshr_b32 s5, s2, 3
    s_and_b32 s6, s5, 7
    s_lshr_b32 s7, s5, 3
    s_lshl_b32 s33, s7, 3
    s_add_u32 s33, s33, s4""")
    a(f"v_mov_b32 v1, {L_F}")
    a("s_cmp_eq_u32 s3, 0\ns_cbranch_scc1 L_aux\ns_cmp_eq_u32 s3, 1\ns_cbranch_scc1 L_loader")

    a("s_sub_u32 s34, s3, 2")
    a("s_cmp_eq_u32 s34, 0\ns_cbranch_scc0 L_nopf")
    a(f"s_getpc_b64 s[36:37]\nL_pc:\ns_sub_u32 s36, s36, L_pc-{NAME}_kernel\ns_subb_u32 s37, s37, 0")
    a(f"v_lshlrev_b32 v2, 7, v0\nv_min_u32 v2, L_end-{NAME}_kernel, v2\nglobal_load_dword v124, v2, s[36:37]")
    a(f"v_add_u32 v2, 8192, v2\nv_min_u32 v2, L_end-{NAME}_kernel, v2\nglobal_load_dword v124, v2, s[36:37]")
    a("v_mov_b32 v4, 0\nv_mov_b32 v5, 0\nv_mov_b32 v6, 0\nv_mov_b32 v7, 0")
    for i in range(4): a(f"ds_write_b128 v1, v[4:7] offset:{16 * i}")
    a("L_nopf:")
    a("""v_and_b32 v2, 15, v0
    v_lshrrev_b32 v3, 4, v0""")
    a("""v_xor_b32 v4, v2, v3
    v_lshlrev_b32 v4, 4, v4
    v_lshlrev_b32 v5, 8, v2
    s_lshl_b32 s35, s34, 13
    v_add_u32 v5, s35, v5""")
    for s in range(4):
        a(f"v_xor_b32 v{8 + s}, {64 * s}, v4\nv_add_u32 v{8 + s}, v{8 + s}, v5")
    a("""v_lshrrev_b32 v4, 2, v2
    v_lshrrev_b32 v5, 1, v3
    v_xor_b32 v5, v5, v4
    v_lshlrev_b32 v5, 6, v5
    v_lshl_add_u32 v5, v4, 8, v5
    v_and_b32 v6, 1, v3
    v_lshl_add_u32 v5, v6, 5, v5
    v_and_b32 v6, 3, v0
    v_lshl_add_u32 v5, v6, 3, v5""")
    a(f"s_add_u32 s35, s35, {L_V}\nv_add_u32 v12, s35, v5\nv_xor_b32 v13, 128, v12")
    a("""v_lshl_add_u32 v5, v3, 2, v4
    v_lshrrev_b32 v7, 1, v5
    v_and_b32 v7, 3, v7
    v_xor_b32 v7, s34, v7
    v_lshlrev_b32 v7, 5, v7
    v_lshl_add_u32 v7, v5, 7, v7
    v_lshl_add_u32 v14, v6, 3, v7""")
    a(f"v_add_u32 v14, {L_WO}, v14")
    a(f"v_mul_u32_u24 v15, 320, v6\nv_lshl_add_u32 v15, v3, 4, v15\nv_add_u32 v15, {L_Q}, v15")
    a("""v_lshrrev_b32 v4, 5, v0
    v_lshlrev_b32 v4, 11, v4
    v_and_b32 v5, 31, v0
    v_lshl_add_u32 v16, v5, 4, v4
    s_lshl_b32 s35, s4, 14
    s_lshl_b32 s36, s34, 12
    s_add_u32 s35, s35, s36""")
    a(f"s_add_u32 s35, s35, {W_H1}\nv_add_u32 v16, s35, v16")
    a(f"s_mul_i32 s35, s34, 320\ns_add_u32 s35, s35, {L_Q}\nv_lshl_add_u32 v17, v0, 2, s35")
    a("s_waitcnt lgkmcnt(0)")
    a("s_load_dword s32, s[30:31], 0")
    srd(48, 30, WSZ)
    a("s_barrier")
    a("s_waitcnt lgkmcnt(0)")
    a("s_add_u32 s32, s32, 0x9e3779b9")
    kreads = [f"ds_read_b128 v[{32 + 16 * t + 4 * s}:{35 + 16 * t + 4 * s}], v{8 + s} offset:{L_K + 4096 * t}" for t in range(2) for s in range(4)]
    lds_spin(F_LD, seg_flag("K"), [], 'ge', 20)
    stamp('c', 1)
    for r in kreads: a(r)
    L = a.label("h1")
    a(f"s_mov_b32 s40, {SPIN}\n{L}:")
    for i in range(4): a(f"buffer_load_dwordx4 v[{96 + 4 * i}:{99 + 4 * i}], v16, {WS}, 0 offen offset:{512 * i} sc1")
    a("s_sub_u32 s40, s40, 1\ns_cbranch_scc1 L_end")
    a("s_waitcnt vmcnt(0)")
    a("v_xor_b32 v20, s32, v97")
    for r in (99, 101, 103, 105, 107, 109, 111): a(f"v_bitop3_b32 v20, v20, v{r}, s32 bitop3:0xf6")
    a(f"v_cmp_ne_u32 vcc, 0, v20\ns_cbranch_vccnz {L}")
    stamp('c', 2)
    a("""v_add_f32 v96, v96, v100
    v_add_f32 v98, v98, v102
    v_add_f32 v104, v104, v108
    v_add_f32 v106, v106, v110
    v_add_f32 v96, v96, v104
    v_add_f32 v98, v98, v106
    v_cvt_pk_bf16_f32 v96, v96, v98
    v_mov_b32 v21, 1
    s_lshl_b32 s35, s34, 2
    v_add_u32 v18, s35, v1""")
    a(f"ds_write_b32 v17, v96\nds_write_b32 v18, v21 offset:{F_Q}")
    lds_spin(F_Q, 0, [f"ds_read_b128 v[{96 + 4 * s}:{99 + 4 * s}], v15 offset:{64 * s}" for s in range(4)], 'all4', 20)
    stamp('c', 3)
    for s in range(4):
        for t in range(2):
            c = "0" if s == 0 else f"v[{24 + 4 * t}:{27 + 4 * t}]"
            a(f"v_mfma_f32_16x16x32_bf16 v[{24 + 4 * t}:{27 + 4 * t}], v[{32 + 16 * t + 4 * s}:{35 + 16 * t + 4 * s}], v[{96 + 4 * s}:{99 + 4 * s}], {c}")
    lds_spin(F_LD, seg_flag("V"), [], 'ge', 20)
    stamp('c', 4)
    for tq in range(8):
        for h in range(2):
            a(f"ds_read_b64_tr_b16 v[{64 + 4 * tq + 2 * h}:{65 + 4 * tq + 2 * h}], v{12 + h} offset:{1024 * tq}")
    a(f"s_mov_b32 s35, {SCALE:#x}\ns_mov_b32 s36, {LOG2E:#x}")
    for r in range(24, 32): a(f"v_cvt_pk_bf16_f32 v{r}, 0, v{r}")
    for r in range(24, 32): a(f"v_mul_f32 v{r}, s35, v{r}")
    for r in range(24, 32): a(f"v_cvt_pk_bf16_f32 v{r}, 0, v{r}")
    a("""v_max3_f32 v20, v24, v25, v26
    v_max3_f32 v21, v27, v28, v29
    v_max3_f32 v20, v20, v30, v31
    v_max_f32 v20, v20, v21
    v_mov_b32 v21, v20
    v_permlane16_swap_b32 v20, v21
    v_max_f32 v20, v20, v21
    v_mov_b32 v21, v20
    v_permlane32_swap_b32 v20, v21
    v_max_f32 v20, v20, v21
    v_mul_f32 v22, s36, v20""")
    for r in range(24, 32): a(f"v_fma_f32 v{r}, v{r}, s36, -v22")
    for r in range(24, 32): a(f"v_exp_f32 v{r}, v{r}")
    for k in range(4): a(f"v_cvt_pk_bf16_f32 v{32 + k}, v{24 + 2 * k}, v{25 + 2 * k}")
    a("s_waitcnt lgkmcnt(0)")
    for tq in range(8):
        t, rg = tq >> 2, tq & 3
        for h in range(2):
            c = "0" if tq == 0 else f"v[{40 + 4 * h}:{43 + 4 * h}]"
            a(f"v_mfma_f32_4x4x4_16b_bf16 v[{40 + 4 * h}:{43 + 4 * h}], v[{32 + 2 * t}:{33 + 2 * t}], v[{64 + 4 * tq + 2 * h}:{65 + 4 * tq + 2 * h}], {c} cbsz:4 abid:{4 * rg}")
        if tq == 0:
            a("v_add_f32 v24, v24, v25\nv_add_f32 v26, v26, v27")
        if tq == 1:
            a("v_add_f32 v28, v28, v29\nv_add_f32 v30, v30, v31")
        if tq == 2:
            a("v_add_f32 v24, v24, v26\nv_add_f32 v28, v28, v30")
        if tq == 3:
            a("v_add_f32 v23, v24, v28\nv_mov_b32 v21, v23")
        if tq == 4:
            a("v_permlane16_swap_b32 v23, v21\nv_add_f32 v23, v23, v21")
        if tq == 5:
            a("v_mov_b32 v21, v23")
        if tq == 6:
            a("v_permlane32_swap_b32 v23, v21\nv_add_f32 v23, v23, v21")
    a(f"s_lshl_b32 s35, s34, 11\ns_add_u32 s35, s35, {L_OW}\nv_lshl_add_u32 v19, v0, 2, s35")
    a(f"s_lshl_b32 s35, s34, 5\ns_add_u32 s35, s35, {L_ML}\nv_lshl_add_u32 v20, v0, 3, s35\nv_mov_b32 v21, 1")
    for h in range(4): a(f"ds_write2st64_b32 v19, v{40 + h}, v{44 + h} offset0:{2 * h} offset1:{2 * h + 1}")
    a("s_mov_b64 exec, 15\nds_write_b64 v20, v[22:23]\ns_mov_b64 exec, -1")
    a(f"ds_write_b32 v18, v21 offset:{F_OW}")
    stamp('c', 5)
    a(f"s_lshl_b32 s35, s34, 9\ns_add_u32 s35, s35, {L_OW}\nv_lshl_add_u32 v19, v0, 3, s35")
    a(f"s_lshl_b32 s35, s34, 3\ns_add_u32 s35, s35, {L_ML}\nv_mov_b32 v24, s35")
    a(f"s_lshl_b32 s35, s4, 2\ns_add_u32 s35, s35, s34\ns_lshl_b32 s35, s35, 5\ns_add_u32 s35, s35, s5")
    a(f"s_lshl_b32 s36, s35, 10\ns_add_u32 s36, s36, {W_H2}\nv_lshl_add_u32 v25, v0, 4, s36")
    a(f"s_lshl_b32 s36, s35, 4\ns_add_u32 s36, s36, {W_ML}\nv_mov_b32 v26, s36")
    reads = [f"ds_read_b64 v[{32 + 2 * w}:{33 + 2 * w}], v24 offset:{32 * w}" for w in range(4)]
    reads += [f"ds_read_b64 v[{40 + 2 * w}:{41 + 2 * w}], v19 offset:{2048 * w}" for w in range(4)]
    lds_spin(F_OW, 0, reads, 'all4', 20)
    stamp('c', 6)
    a("""v_max3_f32 v48, v32, v34, v36
    v_max_f32 v48, v48, v38
    v_sub_f32 v32, v32, v48
    v_sub_f32 v34, v34, v48
    v_sub_f32 v36, v36, v48
    v_sub_f32 v38, v38, v48
    v_exp_f32 v32, v32
    v_exp_f32 v34, v34
    v_exp_f32 v36, v36
    v_exp_f32 v38, v38
    v_mov_b32 v53, s32
    v_mov_b32 v55, s32
    v_mul_f32 v52, v32, v40
    v_mul_f32 v54, v32, v41
    v_fmac_f32 v52, v34, v42
    v_fmac_f32 v54, v34, v43
    v_fmac_f32 v52, v36, v44
    v_fmac_f32 v54, v36, v45
    v_fmac_f32 v52, v38, v46
    v_fmac_f32 v54, v38, v47""")
    a(f"buffer_store_dwordx4 v[52:55], v25, {WS}, 0 offen {stpol}")
    a("""v_mul_f32 v50, v32, v33
    v_mov_b32 v49, s32
    v_fmac_f32 v50, v34, v35
    v_mov_b32 v51, s32
    v_fmac_f32 v50, v36, v37
    v_fmac_f32 v50, v38, v39
    s_mov_b64 exec, 1""")
    a(f"buffer_store_dwordx4 v[48:51], v26, {WS}, 0 offen {stpol}")
    a("s_mov_b64 exec, -1")
    stamp('c', 7)
    a(f"s_lshl_b32 s35, s4, 2\ns_add_u32 s35, s35, s7")
    a(f"s_lshl_b32 s36, s35, 15\ns_lshl_b32 s37, s34, 8\ns_add_u32 s36, s36, s37\ns_add_u32 s36, s36, {W_H2}")
    a("v_lshlrev_b32 v24, 10, v3\nv_lshl_add_u32 v24, v2, 4, v24\nv_add_u32 v24, s36, v24")
    a(f"s_lshl_b32 s36, s35, 9\ns_add_u32 s36, s36, {W_ML}\nv_lshl_add_u32 v25, v3, 4, s36")
    for i in range(1, 8): a(f"s_movk_i32 s{51 + i}, {4096 * i}")
    a("""v_bfe_u32 v29, v0, 1, 2
    v_lshlrev_b32 v29, 4, v29
    v_bfe_u32 v30, v0, 3, 1
    v_lshl_add_u32 v29, v30, 3, v29
    v_and_b32 v30, 1, v0
    v_lshl_add_u32 v29, v30, 2, v29""")
    a(f"s_lshl_b32 s35, s34, 6\ns_add_u32 s35, s35, {L_O}\nv_add_u32 v29, s35, v29")
    L = a.label("h2")
    a(f"s_mov_b32 s40, {SPIN}\n{L}:")
    for i in range(8): a(f"buffer_load_dwordx4 v[{32 + 4 * i}:{35 + 4 * i}], v25, {WS}, 0 offen offset:{64 * i} sc1")
    for i in range(8): a(f"buffer_load_dwordx4 v[{64 + 4 * i}:{67 + 4 * i}], v24, {WS}, {'s%d' % (51 + i) if i else 0} offen sc1")
    a("s_sub_u32 s40, s40, 1\ns_cbranch_scc1 L_end")
    a("s_waitcnt vmcnt(8)")
    a("v_xor_b32 v20, s32, v33")
    for r in [35] + [x for i in range(1, 8) for x in (33 + 4 * i, 35 + 4 * i)]: a(f"v_bitop3_b32 v20, v20, v{r}, s32 bitop3:0xf6")
    a("""v_max3_f32 v21, v32, v36, v40
    v_max3_f32 v22, v44, v48, v52
    v_max3_f32 v21, v21, v56, v60
    v_max_f32 v21, v21, v22
    v_mov_b32 v22, v21
    v_permlane16_swap_b32 v21, v22
    v_max_f32 v21, v21, v22
    v_mov_b32 v22, v21
    v_permlane32_swap_b32 v21, v22
    v_max_f32 v21, v21, v22""")
    for i in range(8): a(f"v_sub_f32 v{32 + 4 * i}, v{32 + 4 * i}, v21")
    for i in range(8): a(f"v_exp_f32 v{32 + 4 * i}, v{32 + 4 * i}")
    a("v_mul_f32 v22, v32, v34")
    for i in range(1, 8): a(f"v_fmac_f32 v22, v{32 + 4 * i}, v{34 + 4 * i}")
    a("""v_mov_b32 v23, v22
    v_permlane16_swap_b32 v22, v23
    v_add_f32 v22, v22, v23
    v_mov_b32 v23, v22
    v_permlane32_swap_b32 v22, v23
    v_add_f32 v22, v22, v23
    v_rcp_f32 v23, v22""")
    for i in range(8):
        a(f"s_waitcnt vmcnt({7 - i})")
        if i == 0: a("v_mul_f32 v30, v32, v64\nv_mul_f32 v31, v32, v66")
        else: a(f"v_fmac_f32 v30, v{32 + 4 * i}, v{64 + 4 * i}\nv_fmac_f32 v31, v{32 + 4 * i}, v{66 + 4 * i}")
        a(f"v_bitop3_b32 v20, v20, v{65 + 4 * i}, s32 bitop3:0xf6\nv_bitop3_b32 v20, v20, v{67 + 4 * i}, s32 bitop3:0xf6")
    a(f"v_cmp_ne_u32 vcc, 0, v20\ns_cbranch_vccnz {L}")
    stamp('c', 8)
    a("""v_permlane16_swap_b32 v30, v31
    v_add_f32 v30, v30, v31
    v_mov_b32 v31, v30
    v_permlane32_swap_b32 v30, v31
    v_add_f32 v30, v30, v31
    v_mul_f32 v30, v30, v23
    v_mov_b32 v31, v30
    v_permlane16_swap_b32 v30, v31
    v_cvt_pk_bf16_f32 v30, v30, v31
    v_mov_b32 v21, 1""")
    a(f"ds_write_b32 v29, v30\nds_write_b32 v18, v21 offset:{F_O}")
    lds_spin(F_LD, seg_flag("WO"), [], 'ge', 20)
    stamp('c', 9)
    for s in range(4):
        for x in range(2): a(f"ds_read_b64_tr_b16 v[{32 + 4 * s + 2 * x}:{33 + 4 * s + 2 * x}], v14 offset:{4096 * s + 2048 * x}")
    a(f"v_lshlrev_b32 v24, 4, v3\nv_add_u32 v24, {L_O}, v24")
    a("v_mov_b32 v96, 0\nv_mov_b32 v97, 0\nv_mov_b32 v98, 0\nv_mov_b32 v99, 0")
    a("s_cmp_ge_u32 s33, 28\ns_cbranch_scc1 L_noffn")
    lds_spin(F_LD, seg_flag("WD"), [], 'ge', 20)
    for s in range(2):
        for x in range(2): a(f"ds_read_b64_tr_b16 v[{48 + 4 * s + 2 * x}:{49 + 4 * s + 2 * x}], v14 offset:{L_WD - L_WO + 4096 * s + 2048 * x}")
    lds_spin(F_H, 1, [f"ds_read_b128 v[{56 + 4 * s}:{59 + 4 * s}], v24 offset:{L_H - L_O + 64 * s}" for s in range(2)], 'ge', 20)
    for s in range(2): a(f"v_mfma_f32_16x16x32_bf16 v[96:99], v[{56 + 4 * s}:{59 + 4 * s}], v[{48 + 4 * s}:{51 + 4 * s}], v[96:99]")
    a("L_noffn:")
    a(f"s_lshl_b32 s35, s6, 2\ns_add_u32 s35, s35, s34\ns_lshl_b32 s35, s35, 5\ns_lshl_b32 s36, s4, 2\ns_add_u32 s35, s35, s36\ns_add_u32 s35, s35, s7")
    a(f"s_lshl_b32 s35, s35, 7\ns_add_u32 s35, s35, {W_H3}\nv_lshl_add_u32 v25, v0, 3, s35")
    lds_spin(F_O, 0, [f"ds_read_b128 v[{64 + 4 * s}:{67 + 4 * s}], v24 offset:{64 * s}" for s in range(4)], 'all4', 20)
    stamp('c', 10)
    for s in range(4): a(f"v_mfma_f32_16x16x32_bf16 v[96:99], v[{64 + 4 * s}:{67 + 4 * s}], v[{32 + 4 * s}:{35 + 4 * s}], v[96:99]")
    a("v_mov_b32 v101, s32\nv_mov_b32 v103, s32")
    a("v_mov_b32 v100, v96\nv_mov_b32_dpp v102, v96 quad_perm:[1,1,3,3] row_mask:0xf bank_mask:0xf")
    a(f"s_mov_b64 exec, 0x5555\nbuffer_store_dwordx4 v[100:103], v25, {WS}, 0 offen sc1\ns_mov_b64 exec, -1")
    stamp('c', 11)
    a("s_cmp_lt_u32 s2, 32\ns_cbranch_scc0 L_cdone\ns_cmp_eq_u32 s34, 0\ns_cbranch_scc0 L_cdone")
    a(f"s_lshl_b32 s35, s2, 12\ns_add_u32 s35, s35, {W_H3}\nv_lshl_add_u32 v24, v0, 4, s35")
    a("v_and_b32 v25, 7, v0\ns_lshl_b32 s35, s2, 5\nv_lshl_add_u32 v25, v25, 2, s35")
    srd(44, 8, 1024)
    a("buffer_load_dword v26, v25, s[44:47], 0 offen")
    srd(52, 26, 1024)
    L = a.label("h3")
    a(f"s_mov_b32 s40, {SPIN}\n{L}:")
    for i in range(4): a(f"buffer_load_dwordx4 v[{32 + 4 * i}:{35 + 4 * i}], v24, {WS}, 0 offen offset:{1024 * i} sc1")
    a("s_sub_u32 s40, s40, 1\ns_cbranch_scc1 L_end")
    a("s_waitcnt vmcnt(0)")
    a("v_xor_b32 v20, s32, v33")
    for r in (35, 37, 39, 41, 43, 45, 47): a(f"v_bitop3_b32 v20, v20, v{r}, s32 bitop3:0xf6")
    a(f"v_cmp_ne_u32 vcc, 0, v20\ns_cbranch_vccnz {L}")
    stamp('c', 12)
    a("""v_add_f32 v32, v32, v36
    v_add_f32 v34, v34, v38
    v_add_f32 v40, v40, v44
    v_add_f32 v42, v42, v46
    v_add_f32 v32, v32, v40
    v_add_f32 v34, v34, v42
    v_permlane32_swap_b32 v32, v34
    v_add_f32 v32, v32, v34
    v_mov_b32 v34, v32
    v_permlane16_swap_b32 v32, v34
    v_add_f32 v32, v32, v34
    v_add_f32_dpp v32, v32, v32 row_ror:8 row_mask:0xf bank_mask:0xf
    v_mov_b32 v34, v32
    v_permlane32_swap_b32 v32, v34
    v_lshlrev_b32 v27, 16, v26
    v_and_b32 v28, 0xffff0000, v26
    v_add_f32 v32, v32, v27
    v_add_f32 v34, v34, v28
    v_cvt_pk_bf16_f32 v32, v32, v34
    s_mov_b64 exec, 0xff
    buffer_store_dword v32, v25, s[52:55], 0 offen""")
    a("s_cmp_eq_u32 s2, 0\ns_cbranch_scc0 L_cdone\ns_mov_b64 exec, 1\nv_mov_b32 v25, s32\nbuffer_store_dword v25, off, s[48:51], 0")
    a("L_cdone:")
    stamp('c', 13)
    if dbgtime:
        a("s_cmp_eq_u32 s34, 0\ns_cbranch_scc0 L_nodbg\ns_memrealtime s[98:99]")
        srd(44, 28, 256)
        a("s_waitcnt lgkmcnt(0)\ns_not_b32 s96, s96\ns_mov_b64 exec, 1\nv_mov_b32 v24, s96\nv_mov_b32 v25, s98\ns_lshl_b32 s35, s4, 2\nv_mov_b32 v26, s35")
        a("buffer_atomic_umax v24, off, s[44:47], 0\nbuffer_atomic_umax v25, off, s[44:47], 0 offset:4\nbuffer_atomic_umax v24, v26, s[44:47], 0 offen offset:8\nL_nodbg:")
    dump('c')
    a("s_endpgm")

    a("L_aux:")
    a("""v_lshlrev_b32 v2, 4, v0
    v_lshrrev_b32 v3, 3, v0
    v_and_b32 v4, 7, v0
    v_lshlrev_b32 v5, 17, v3
    v_lshl_add_u32 v5, v4, 4, v5
    s_lshl_b32 s35, s7, 20
    s_lshl_b32 s36, s4, 10
    s_add_u32 s35, s35, s36
    s_lshl_b32 s36, s6, 7
    s_add_u32 s35, s35, s36
    v_add_u32 v5, s35, v5
    s_mov_b32 s36, 0
    s_waitcnt lgkmcnt(0)""")
    srd(44, 8, 1024)
    a("buffer_load_dwordx4 v[8:11], v2, s[44:47], 0 offen")
    srd(44, 14, 4194304)
    for i in range(16):
        a(f"buffer_load_dwordx4 v[{64 + 4 * i}:{67 + 4 * i}], v5, s[44:47], s36 offen nt")
        if i < 15: a("s_addk_i32 s36, 0x2000")
    a("s_load_dword s32, s[30:31], 0")
    srd(48, 30, WSZ)
    a("s_barrier")
    stamp('a', 1)
    a("""v_and_b32 v6, 1, v0
    v_lshlrev_b32 v6, 4, v6
    v_mov_b32 v7, 0xffff
    v_lshlrev_b32 v6, v6, v7
    v_bfe_u32 v7, v0, 1, 2""")
    for d in range(4): a(f"v_cmp_eq_u32 vcc, {d}, v7\nv_cndmask_b32 v{12 + d}, 0, v6, vcc")
    a(f"v_lshlrev_b32 v6, 5, v0\nv_add_u32 v6, {L_XX}, v6")
    a(f"s_lshl_b32 s35, s7, 9\ns_add_u32 s35, s35, {L_XX}\nv_lshl_add_u32 v7, v3, 6, s35")
    a("s_waitcnt vmcnt(16)")
    stamp('a', 2)
    for k in range(4): a(f"v_lshlrev_b32 v{16 + 2 * k}, 16, v{8 + k}\nv_and_b32 v{17 + 2 * k}, 0xffff0000, v{8 + k}")
    def wave_sum(r, t):
        for n in (8, 4, 2, 1): a(f"v_add_f32_dpp v{r}, v{r}, v{r} row_ror:{n} row_mask:0xf bank_mask:0xf")
        a(f"v_mov_b32 v{t}, v{r}\nv_permlane16_swap_b32 v{r}, v{t}\nv_add_f32 v{r}, v{r}, v{t}")
        a(f"v_mov_b32 v{t}, v{r}\nv_permlane32_swap_b32 v{r}, v{t}\nv_add_f32 v{r}, v{r}, v{t}")
    a("""v_add_f32 v24, v16, v17
    v_add_f32 v25, v18, v19
    v_add_f32 v26, v20, v21
    v_add_f32 v27, v22, v23
    v_add_f32 v24, v24, v25
    v_add_f32 v26, v26, v27
    v_add_f32 v24, v24, v26""")
    wave_sum(24, 25)
    a("v_mul_f32 v24, 0x3b000000, v24")
    for k in range(8): a(f"v_sub_f32 v{32 + k}, v{16 + k}, v24")
    a("v_mul_f32 v26, v32, v32\nv_mul_f32 v27, v33, v33")
    for k in range(2, 8): a(f"v_fmac_f32 v{26 + (k & 1)}, v{32 + k}, v{32 + k}")
    a("v_add_f32 v26, v26, v27\nv_cvt_pk_bf16_f32 v24, 0, v24")
    wave_sum(26, 25)
    for k in range(8): a(f"v_sub_f32 v{16 + k}, v{16 + k}, v24")
    a("""v_mul_f32 v26, 0x3b000000, v26
    v_cvt_pk_bf16_f32 v26, 0, v26
    v_add_f32 v26, 0x3727c5ac, v26
    v_cvt_pk_bf16_f32 v26, 0, v26
    v_sqrt_f32 v26, v26""")
    for k in range(8): a(f"v_cvt_pk_bf16_f32 v{16 + k}, 0, v{16 + k}")
    a("v_cvt_pk_bf16_f32 v26, 0, v26\nv_rcp_f32 v27, v26")
    for k in range(8): a(f"v_mul_f32 v{32 + k}, v{16 + k}, v27")
    for k in range(8): a(f"v_fma_f32 v{16 + k}, -v{32 + k}, v26, v{16 + k}")
    for k in range(8): a(f"v_fmac_f32 v{32 + k}, v{16 + k}, v27")
    for k in range(8): a(f"v_cvt_pk_bf16_f32 v{32 + k}, v{32 + k}, v{32 + k}")
    a("ds_write_b128 v6, v[32:35]\nds_write_b128 v6, v[36:39] offset:16")
    for k in range(4): a(f"ds_read_b128 v[{16 + 4 * k}:{19 + 4 * k}], v7 offset:{16 * k}")
    a("""v_lshlrev_b32 v5, 6, v4
    v_bfe_u32 v6, v0, 4, 1
    v_lshl_add_u32 v5, v6, 5, v5
    v_lshrrev_b32 v6, 5, v0
    v_lshl_add_u32 v5, v6, 4, v5
    s_lshl_b32 s35, s4, 5
    s_lshl_b32 s36, s6, 2
    s_add_u32 s35, s35, s36
    s_add_u32 s35, s35, s7
    s_lshl_b32 s35, s35, 9""")
    a(f"s_add_u32 s35, s35, {W_H1}\nv_add_u32 v9, s35, v5")
    a("s_waitcnt lgkmcnt(0)")
    stamp('a', 3)
    a("s_add_u32 s32, s32, 0x9e3779b9")
    a("v_mov_b32 v49, s32\nv_mov_b32 v51, s32")
    for i in range(16):
        A = 40 + 4 * (i & 1)
        for d in range(4): a(f"v_and_b32 v{A + d}, v{16 + i}, v{12 + d}")
        a(f"s_waitcnt vmcnt({15 - i})")
        c = "0" if i == 0 else "v[32:35]"
        a(f"v_mfma_f32_16x16x32_bf16 v[32:35], v[{A}:{A + 3}], v[{64 + 4 * i}:{67 + 4 * i}], {c}")
    stamp('a', 4)
    a("""v_permlane32_swap_b32 v32, v34
    v_permlane32_swap_b32 v33, v35
    v_add_f32_dpp v48, v34, v32 row_shl:8 row_mask:0xf bank_mask:0xf
    v_add_f32_dpp v50, v35, v33 row_shl:8 row_mask:0xf bank_mask:0xf
    s_mov_b32 exec_lo, 0x00ff00ff
    s_mov_b32 exec_hi, 0x00ff00ff""")
    a(f"buffer_store_dwordx4 v[48:51], v9, {WS}, 0 offen {stpol}")
    a("s_mov_b64 exec, -1")
    stamp('a', 5)
    a("s_cmp_ge_u32 s33, 28\ns_cbranch_scc1 L_adone")
    a(f"s_lshl_b32 s35, s6, 8\ns_add_u32 s35, s35, {L_XX}\nv_lshl_add_u32 v7, v3, 5, s35")
    a("ds_read_b128 v[16:19], v7\nds_read_b128 v[20:23], v7 offset:16")
    a(f"s_lshl_b32 s35, s4, 2\ns_add_u32 s35, s35, s7\ns_lshl_b32 s35, s35, 13\ns_add_u32 s35, s35, {W_HB}")
    a("v_add_u32 v10, s35, v2\ns_lshl_b32 s36, s6, 10\ns_add_u32 s35, s35, s36\nv_lshl_add_u32 v9, v5, 1, s35")
    a(f"v_add_u32 v11, {L_GU}, v2")
    a("""v_lshrrev_b32 v8, 5, v0
    v_lshlrev_b32 v8, 6, v8
    v_bfe_u32 v6, v0, 2, 2
    v_lshl_add_u32 v8, v6, 4, v8
    v_bfe_u32 v6, v0, 4, 1
    v_lshl_add_u32 v8, v6, 3, v8
    v_and_b32 v6, 3, v0
    v_lshl_add_u32 v8, v6, 1, v8""")
    a(f"v_add_u32 v8, {L_H}, v8")
    lds_spin(F_LD, seg_flag("GU"), [], 'ge', 24)
    stamp('a', 6)
    for i in range(16): a(f"ds_read_b128 v[{64 + 4 * i}:{67 + 4 * i}], v11 offset:{1024 * i}")
    for i in range(8):
        A = 40 + 4 * (i & 1)
        for d in range(4): a(f"v_and_b32 v{A + d}, v{16 + i}, v{12 + d}")
        if i == 0: a("s_waitcnt lgkmcnt(0)")
        for m in range(2):
            c = "0" if i == 0 else f"v[{32 + 4 * m}:{35 + 4 * m}]"
            a(f"v_mfma_f32_16x16x32_bf16 v[{32 + 4 * m}:{35 + 4 * m}], v[{A}:{A + 3}], v[{64 + 8 * i + 4 * m}:{67 + 8 * i + 4 * m}], {c}")
    a("v_mov_b32 v53, s32\nv_mov_b32 v55, s32")
    a("""v_permlane32_swap_b32 v32, v34
    v_permlane32_swap_b32 v33, v35
    v_permlane32_swap_b32 v36, v38
    v_permlane32_swap_b32 v37, v39
    v_add_f32_dpp v48, v34, v32 row_shl:8 row_mask:0xf bank_mask:0xf
    v_add_f32_dpp v52, v35, v33 row_shl:8 row_mask:0xf bank_mask:0xf
    v_add_f32_dpp v50, v38, v36 row_shl:8 row_mask:0xf bank_mask:0xf
    v_add_f32_dpp v54, v39, v37 row_shl:8 row_mask:0xf bank_mask:0xf
    s_mov_b32 exec_lo, 0x00ff00ff
    s_mov_b32 exec_hi, 0x00ff00ff""")
    a(f"buffer_store_dwordx4 v[48:51], v9, {WS}, 0 offen {stpol}\nbuffer_store_dwordx4 v[52:55], v9, {WS}, 0 offen offset:16 {stpol}")
    a("s_mov_b64 exec, -1\nv_add_u32 v11, 4096, v10")
    stamp('a', 7)
    L = a.label("hb")
    a(f"s_mov_b32 s40, {SPIN}\n{L}:")
    for i in range(8): a(f"buffer_load_dwordx4 v[{64 + 4 * i}:{67 + 4 * i}], v{10 + (i >> 2)}, {WS}, 0 offen offset:{1024 * (i & 3)} sc1")
    a("s_sub_u32 s40, s40, 1\ns_cbranch_scc1 L_end")
    a("s_waitcnt vmcnt(0)")
    a("v_xor_b32 v20, s32, v65")
    for r in [67] + [x for i in range(1, 8) for x in (65 + 4 * i, 67 + 4 * i)]: a(f"v_bitop3_b32 v20, v20, v{r}, s32 bitop3:0xf6")
    a(f"v_cmp_ne_u32 vcc, 0, v20\ns_cbranch_vccnz {L}")
    stamp('a', 8)
    for step in (1, 2, 4):
        for i in range(0, 8, 2 * step):
            a(f"v_add_f32 v{64 + 4 * i}, v{64 + 4 * i}, v{64 + 4 * (i + step)}\nv_add_f32 v{66 + 4 * i}, v{66 + 4 * i}, v{66 + 4 * (i + step)}")
    a(f"""v_cvt_pk_bf16_f32 v64, 0, v64
    v_cvt_pk_bf16_f32 v66, 0, v66
    v_mul_f32 v20, {(LOG2E | 0x80000000):#x}, v64
    v_exp_f32 v20, v20
    v_add_f32 v20, 1.0, v20
    v_rcp_f32 v21, v20
    v_mul_f32 v22, v64, v21
    v_fma_f32 v23, -v22, v20, v64
    v_fma_f32 v23, v23, v21, v22
    v_cmp_class_f32 vcc, v23, 3
    v_cndmask_b32 v22, v23, v22, vcc
    v_cvt_pk_bf16_f32 v22, 0, v22
    v_mul_f32 v22, v22, v66
    v_cvt_pk_bf16_f32 v22, v22, v22
    v_mov_b32 v21, 1
    ds_write_b16 v8, v22
    ds_write_b32 v1, v21 offset:{F_H}""")
    a("L_adone:")
    stamp('a', 9)
    dump('a')
    a("s_endpgm")

    a("L_loader:")
    a("s_setprio 3")
    a("""v_and_b32 v2, 15, v0
    v_lshrrev_b32 v3, 4, v0
    v_xor_b32 v4, v2, v3
    v_lshlrev_b32 v4, 4, v4
    v_lshlrev_b32 v5, 8, v3""")
    for i in range(4): a(f"v_xor_b32 v{8 + i}, {64 * i}, v4\nv_add_u32 v{8 + i}, v{8 + i}, v5")
    a("""v_lshrrev_b32 v4, 2, v2
    v_xor_b32 v4, v4, v3
    v_lshl_add_u32 v12, v4, 6, v5
    v_and_b32 v4, 3, v0
    v_lshl_add_u32 v12, v4, 4, v12
    v_lshrrev_b32 v6, 3, v0
    v_and_b32 v7, 7, v0
    v_mul_u32_u24 v13, 28672, v6
    v_lshl_add_u32 v13, v7, 4, v13
    v_lshlrev_b32 v4, 1, v3
    v_xor_b32 v4, v4, v7
    v_lshlrev_b32 v4, 4, v4
    v_lshl_add_u32 v14, v6, 10, v4
    s_lshl_b32 s35, s4, 24
    s_lshl_b32 s36, s5, 15
    s_add_u32 s35, s35, s36
    s_add_u32 s35, s35, 15728640
    s_mul_i32 s41, s6, 229376
    s_lshl_b32 s37, s33, 7
    s_add_u32 s41, s41, s37
    s_lshl_b32 s42, s4, 19
    s_lshl_b32 s38, s7, 17
    s_add_u32 s42, s42, s38
    s_lshl_b32 s38, s6, 7
    s_add_u32 s42, s42, s38
    s_lshl_b32 s43, s33, 16
    s_add_u32 s43, s43, s38
    s_waitcnt lgkmcnt(0)
    s_add_u32 s10, s10, s35
    s_addc_u32 s11, s11, 0
    s_add_u32 s12, s12, s35
    s_addc_u32 s13, s13, 0""")
    srd(44, 10, 32768)
    a("s_mov_b32 s40, 0\ns_barrier")
    stamp('l', 1)
    def seg_loads(name):
        r = []
        if name in ("K", "V"):
            base = L_K if name == "K" else L_V
            for i in range(32):
                v = f"v{8 + (i & 3)}" if name == "K" else "v12"
                r.append((base + 1024 * i if i % 4 == 0 else None, f"{v}, s[44:47], s40 offen offset:{1024 * (i & 3)}", "s_addk_i32 s40, 0x1000" if i % 4 == 3 else None))
        if name == "GU":
            for i in range(16): r.append((L_GU + 1024 * i, f"v13, s[{44 + 8 * (i & 1)}:{47 + 8 * (i & 1)}], s41 offen", "s_addk_i32 s41, 0xe00" if i & 1 else None))
        if name == "WO":
            for i in range(16): r.append((L_WO + 1024 * i, "v14, s[44:47], s42 offen", "s_addk_i32 s42, 0x2000"))
        if name == "WD":
            for i in range(8): r.append((L_WD + 1024 * i, "v14, s[44:47], s43 offen", "s_addk_i32 s43, 0x2000"))
        return r
    def seg_setup(name):
        if name == "K": srd(44, 10, 32768); a("s_mov_b32 s40, 0")
        if name == "V": srd(44, 12, 32768); a("s_mov_b32 s40, 0")
        if name == "GU": srd(44, 20, 1835008); srd(52, 22, 1835008)
        if name == "WO": srd(44, 16, 4194304)
        if name == "WD": srd(44, 24, 1835008)
    def emit(segs, n0, pend, final):
        n = n0
        for name in segs:
            if n or name != "K": seg_setup(name)
            for (m0, ad, inc) in seg_loads(name):
                if m0 is not None: a(f"s_mov_b32 m0, {m0}")
                if n >= TH:
                    a(f"s_waitcnt vmcnt({TH - 1})")
                    while pend and pend[0][0] <= n - (TH - 1):
                        signal(pend.pop(0)[1])
                a(f"buffer_load_dwordx4 {ad} nt lds")
                if inc: a(inc)
                n += 1
            pend.append((n, seg_flag(name)))
        if final:
            stamp('l', 8)
            while pend:
                e, f = pend.pop(0)
                a(f"s_waitcnt vmcnt({n - e})")
                signal(f)
        return n
    def signal(f):
        a(f"v_mov_b32 v20, {f}\nds_write_b32 v1, v20 offset:{F_LD}")
        stamp('l', 1 + f)
    ffn = ("GU", "WD")
    k = min(order.index(x) for x in ffn)
    pend = []
    n = emit(order[:k], 0, pend, False)
    a("s_cmp_ge_u32 s33, 28\ns_cbranch_scc1 L_ldb")
    emit(order[k:], n, list(pend), True)
    a("s_branch L_lde\nL_ldb:")
    emit([x for x in order[k:] if x not in ffn], n, list(pend), True)
    a("L_lde:")
    stamp('l', 9)
    if stamps: srd(48, 30, WSZ)
    dump('l')
    a("L_end:\ns_endpgm")

    head = open(f"cdna_kernels/{NAME}.s.ref").read().split("; Override")[0]
    out = head + f"; Generated by gen/gen.py (hand-designed kernel; see that script for the layout notes)\n; @launch grid=(256,1,1) block=(384,1,1) lds={L_END}\n"
    out += f'.amdgcn_target "amdgcn-amd-amdhsa--gfx950"\n.text\n.globl {NAME}_kernel\n.p2align 8\n.type {NAME}_kernel,@function\n'
    out += a.text()
    out += f""".section .rodata,"a"
.p2align 6
.amdhsa_kernel {NAME}_kernel
  .amdhsa_next_free_vgpr 128
  .amdhsa_next_free_sgpr 102
  .amdhsa_accum_offset 128
  .amdhsa_group_segment_fixed_size 0
  .amdhsa_kernarg_size 96
  .amdhsa_user_sgpr_count 2
  .amdhsa_user_sgpr_kernarg_segment_ptr 1
  .amdhsa_system_sgpr_workgroup_id_x 1
  .amdhsa_float_denorm_mode_32 3
.end_amdhsa_kernel
"""
    return out

if __name__ == "__main__":
    kw = eval("dict(" + (sys.argv[2] if len(sys.argv) > 2 else "") + ")")
    open(sys.argv[1], "w").write(gen(**kw))
```

```python
import sys, argparse
from asmlib import Asm

NAME = "parallel_sum__sliding_block_cached__swiglu_ffn__decode"

L_K, L_V, L_GU, L_WO, L_WD = 0, 32768, 65536, 81920, 98304
L_XX = 106496
L_Q  = L_XX + 2048
L_OW = L_Q + 1280
L_ML = L_OW + 8192
L_O  = L_ML + 128
L_H  = L_O + 256
L_F  = L_H + 128
L_END = L_F + 64
F_LD, F_H, F_Q, F_OW, F_O = 0, 4, 16, 32, 48

W_EP  = 0
W_H1  = 0x1000
W_HB  = W_H1 + 256 * 512
W_ML  = W_HB + 256 * 1024
W_H3  = W_ML + 32 * 512
W_H2  = W_H3 + 32 * 4096
W_END = W_H2 + 1024 * 1024
W_ST  = 0x400000

LOG2E = 0x3fb8aa3b
SCALE = 0x3db504f3
SPIN = 1 << 16

def gen(TH=22, stamps=False, stpol="sc1", order=("K", "V", "GU", "WO", "WD"), h1delay=0, dbgtime=False, padto=0):
    a = Asm()
    st_n = {}
    def stamp(role, idx):
        if stamps:
            a(f"s_memrealtime s[{64 + 2 * idx}:{65 + 2 * idx}]")
            st_n[role] = max(st_n.get(role, 0), idx + 1)
    def dump(role):
        if not stamps: return
        a("s_waitcnt lgkmcnt(0)")
        a(f"s_lshl_b32 s60, s2, 9\ns_lshl_b32 s61, s3, 6\ns_add_u32 s60, s60, s61\ns_add_u32 s60, s60, {W_ST}")
        a("s_mov_b64 exec, 1\nv_mov_b32 v126, s60")
        for i in range(16):
            a(f"v_mov_b32 v127, s{64 + 2 * i}\nbuffer_store_dword v127, v126, s[48:51], 0 offen offset:{4 * i}")
    def srd(d, p, size):
        a(f"s_mov_b32 s{d}, s{p}\ns_and_b32 s{d + 1}, s{p + 1}, 0xffff\ns_mov_b32 s{d + 2}, {size}\ns_mov_b32 s{d + 3}, 0x20000")
    WS = "s[48:51]"
    WSZ = W_ST + 256 * 512 if stamps else W_END
    def seg_flag(name):
        return order.index(name) + 1

    def lds_spin(flag_off, want, reads, kind, tmp):
        L = a.label("spin"); D = a.label("spun")
        a(f"s_mov_b32 s40, {SPIN}")
        a(f"{L}:")
        if kind == 'ge':
            a(f"ds_read_b32 v{tmp}, v1 offset:{flag_off}")
        else:
            a(f"ds_read_b128 v[{tmp}:{tmp + 3}], v1 offset:{flag_off}")
        for r in reads: a(r)
        a("s_sub_u32 s40, s40, 1\ns_cbranch_scc1 L_end")
        a("s_waitcnt lgkmcnt(0)")
        if kind == 'ge':
            a(f"v_cmp_gt_u32 vcc, {want}, v{tmp}")
        else:
            a(f"v_and_b32 v{tmp}, v{tmp}, v{tmp + 1}\nv_and_b32 v{tmp + 2}, v{tmp + 2}, v{tmp + 3}\nv_and_b32 v{tmp}, v{tmp}, v{tmp + 2}")
            a(f"v_cmp_eq_u32 vcc, 0, v{tmp}")
        a(f"s_cbranch_vccnz {L}")

    a(f"{NAME}_kernel:")
    stamp('all', 0)
    if dbgtime or padto: a("s_memrealtime s[96:97]")
    a("""s_cmp_ge_u32 s2, 256
    s_cbranch_scc1 L_end
    s_load_dwordx16 s[8:23], s[0:1], 0
    s_load_dwordx8 s[24:31], s[0:1], 64
    v_lshrrev_b32 v2, 6, v0
    v_and_b32 v0, 63, v0
    v_readfirstlane_b32 s3, v2
    s_and_b32 s4, s2, 7
    s_lshr_b32 s5, s2, 3
    s_and_b32 s6, s5, 7
    s_lshr_b32 s7, s5, 3
    s_lshl_b32 s33, s7, 3
    s_add_u32 s33, s33, s4""")
    a(f"v_mov_b32 v1, {L_F}")
    a("s_cmp_eq_u32 s3, 0\ns_cbranch_scc1 L_aux\ns_cmp_eq_u32 s3, 1\ns_cbranch_scc1 L_loader")

    a("s_sub_u32 s34, s3, 2")
    a("s_cmp_eq_u32 s34, 0\ns_cbranch_scc0 L_nopf")
    a(f"s_getpc_b64 s[36:37]\nL_pc:\ns_sub_u32 s36, s36, L_pc-{NAME}_kernel\ns_subb_u32 s37, s37, 0")
    a(f"v_lshlrev_b32 v2, 7, v0\nv_min_u32 v2, L_end-{NAME}_kernel, v2\nglobal_load_dword v124, v2, s[36:37]")
    a(f"v_add_u32 v2, 8192, v2\nv_min_u32 v2, L_end-{NAME}_kernel, v2\nglobal_load_dword v124, v2, s[36:37]")
    a("v_mov_b32 v4, 0\nv_mov_b32 v5, 0\nv_mov_b32 v6, 0\nv_mov_b32 v7, 0")
    for i in range(4): a(f"ds_write_b128 v1, v[4:7] offset:{16 * i}")
    a("L_nopf:")
    a("""v_and_b32 v2, 15, v0
    v_lshrrev_b32 v3, 4, v0""")
    a("""v_xor_b32 v4, v2, v3
    v_lshlrev_b32 v4, 4, v4
    v_lshlrev_b32 v5, 8, v2
    s_lshl_b32 s35, s34, 13
    v_add_u32 v5, s35, v5""")
    for s in range(4):
        a(f"v_xor_b32 v{8 + s}, {64 * s}, v4\nv_add_u32 v{8 + s}, v{8 + s}, v5")
    a("""v_lshrrev_b32 v4, 2, v2
    v_lshrrev_b32 v5, 1, v3
    v_xor_b32 v5, v5, v4
    v_lshlrev_b32 v5, 6, v5
    v_lshl_add_u32 v5, v4, 8, v5
    v_and_b32 v6, 1, v3
    v_lshl_add_u32 v5, v6, 5, v5
    v_and_b32 v6, 3, v0
    v_lshl_add_u32 v5, v6, 3, v5""")
    a(f"s_add_u32 s35, s35, {L_V}\nv_add_u32 v12, s35, v5\nv_xor_b32 v13, 128, v12")
    a("""v_lshl_add_u32 v5, v3, 2, v4
    v_lshrrev_b32 v7, 1, v5
    v_and_b32 v7, 3, v7
    v_xor_b32 v7, s34, v7
    v_lshlrev_b32 v7, 5, v7
    v_lshl_add_u32 v7, v5, 7, v7
    v_lshl_add_u32 v14, v6, 3, v7""")
    a(f"v_add_u32 v14, {L_WO}, v14")
    a(f"v_mul_u32_u24 v15, 320, v6\nv_lshl_add_u32 v15, v3, 4, v15\nv_add_u32 v15, {L_Q}, v15")
    a("""v_lshrrev_b32 v4, 5, v0
    v_lshlrev_b32 v4, 11, v4
    v_and_b32 v5, 31, v0
    v_lshl_add_u32 v16, v5, 4, v4
    s_lshl_b32 s35, s4, 14
    s_lshl_b32 s36, s34, 12
    s_add_u32 s35, s35, s36""")
    a(f"s_add_u32 s35, s35, {W_H1}\nv_add_u32 v16, s35, v16")
    a(f"s_mul_i32 s35, s34, 320\ns_add_u32 s35, s35, {L_Q}\nv_lshl_add_u32 v17, v0, 2, s35")
    a("s_waitcnt lgkmcnt(0)")
    a("s_load_dword s32, s[30:31], 0")
    srd(48, 30, WSZ)
    a("s_barrier")
    a("s_waitcnt lgkmcnt(0)")
    a("s_add_u32 s32, s32, 0x9e3779b9")
    kreads = [f"ds_read_b128 v[{32 + 16 * t + 4 * s}:{35 + 16 * t + 4 * s}], v{8 + s} offset:{L_K + 4096 * t}" for t in range(2) for s in range(4)]
    lds_spin(F_LD, seg_flag("K"), [], 'ge', 20)
    stamp('c', 1)
    for r in kreads: a(r)
    L = a.label("h1")
    a(f"s_mov_b32 s40, {SPIN}\n{L}:")
    for i in range(4): a(f"buffer_load_dwordx4 v[{96 + 4 * i}:{99 + 4 * i}], v16, {WS}, 0 offen offset:{512 * i} sc1")
    a("s_sub_u32 s40, s40, 1\ns_cbranch_scc1 L_end")
    a("s_waitcnt vmcnt(0)")
    a("v_xor_b32 v20, s32, v97")
    for r in (99, 101, 103, 105, 107, 109, 111): a(f"v_bitop3_b32 v20, v20, v{r}, s32 bitop3:0xf6")
    a(f"v_cmp_ne_u32 vcc, 0, v20\ns_cbranch_vccnz {L}")
    stamp('c', 2)
    a("""v_add_f32 v96, v96, v100
    v_add_f32 v98, v98, v102
    v_add_f32 v104, v104, v108
    v_add_f32 v106, v106, v110
    v_add_f32 v96, v96, v104
    v_add_f32 v98, v98, v106
    v_cvt_pk_bf16_f32 v96, v96, v98
    v_mov_b32 v21, 1
    s_lshl_b32 s35, s34, 2
    v_add_u32 v18, s35, v1""")
    a(f"ds_write_b32 v17, v96\nds_write_b32 v18, v21 offset:{F_Q}")
    lds_spin(F_Q, 0, [f"ds_read_b128 v[{96 + 4 * s}:{99 + 4 * s}], v15 offset:{64 * s}" for s in range(4)], 'all4', 20)
    stamp('c', 3)
    for s in range(4):
        for t in range(2):
            c = "0" if s == 0 else f"v[{24 + 4 * t}:{27 + 4 * t}]"
            a(f"v_mfma_f32_16x16x32_bf16 v[{24 + 4 * t}:{27 + 4 * t}], v[{32 + 16 * t + 4 * s}:{35 + 16 * t + 4 * s}], v[{96 + 4 * s}:{99 + 4 * s}], {c}")
    lds_spin(F_LD, seg_flag("V"), [], 'ge', 20)
    stamp('c', 4)
    for tq in range(8):
        for h in range(2):
            a(f"ds_read_b64_tr_b16 v[{64 + 4 * tq + 2 * h}:{65 + 4 * tq + 2 * h}], v{12 + h} offset:{1024 * tq}")
    a(f"s_mov_b32 s35, {SCALE:#x}\ns_mov_b32 s36, {LOG2E:#x}")
    for r in range(24, 32): a(f"v_cvt_pk_bf16_f32 v{r}, 0, v{r}")
    for r in range(24, 32): a(f"v_mul_f32 v{r}, s35, v{r}")
    for r in range(24, 32): a(f"v_cvt_pk_bf16_f32 v{r}, 0, v{r}")
    a("""v_max3_f32 v20, v24, v25, v26
    v_max3_f32 v21, v27, v28, v29
    v_max3_f32 v20, v20, v30, v31
    v_max_f32 v20, v20, v21
    v_mov_b32 v21, v20
    v_permlane16_swap_b32 v20, v21
    v_max_f32 v20, v20, v21
    v_mov_b32 v21, v20
    v_permlane32_swap_b32 v20, v21
    v_max_f32 v20, v20, v21
    v_mul_f32 v22, s36, v20""")
    for r in range(24, 32): a(f"v_fma_f32 v{r}, v{r}, s36, -v22")
    for r in range(24, 32): a(f"v_exp_f32 v{r}, v{r}")
    for k in range(4): a(f"v_cvt_pk_bf16_f32 v{32 + k}, v{24 + 2 * k}, v{25 + 2 * k}")
    a("s_waitcnt lgkmcnt(0)")
    for tq in range(8):
        t, rg = tq >> 2, tq & 3
        for h in range(2):
            c = "0" if tq == 0 else f"v[{40 + 4 * h}:{43 + 4 * h}]"
            a(f"v_mfma_f32_4x4x4_16b_bf16 v[{40 + 4 * h}:{43 + 4 * h}], v[{32 + 2 * t}:{33 + 2 * t}], v[{64 + 4 * tq + 2 * h}:{65 + 4 * tq + 2 * h}], {c} cbsz:4 abid:{4 * rg}")
        if tq == 0:
            a("v_add_f32 v24, v24, v25\nv_add_f32 v26, v26, v27")
        if tq == 1:
            a("v_add_f32 v28, v28, v29\nv_add_f32 v30, v30, v31")
        if tq == 2:
            a("v_add_f32 v24, v24, v26\nv_add_f32 v28, v28, v30")
        if tq == 3:
            a("v_add_f32 v23, v24, v28\nv_mov_b32 v21, v23")
        if tq == 4:
            a("v_permlane16_swap_b32 v23, v21\nv_add_f32 v23, v23, v21")
        if tq == 5:
            a("v_mov_b32 v21, v23")
        if tq == 6:
            a("v_permlane32_swap_b32 v23, v21\nv_add_f32 v23, v23, v21")
    a(f"s_lshl_b32 s35, s34, 11\ns_add_u32 s35, s35, {L_OW}\nv_lshl_add_u32 v19, v0, 2, s35")
    a(f"s_lshl_b32 s35, s34, 5\ns_add_u32 s35, s35, {L_ML}\nv_lshl_add_u32 v20, v0, 3, s35\nv_mov_b32 v21, 1")
    for h in range(4): a(f"ds_write2st64_b32 v19, v{40 + h}, v{44 + h} offset0:{2 * h} offset1:{2 * h + 1}")
    a("s_mov_b64 exec, 15\nds_write_b64 v20, v[22:23]\ns_mov_b64 exec, -1")
    a(f"ds_write_b32 v18, v21 offset:{F_OW}")
    stamp('c', 5)
    a(f"s_lshl_b32 s35, s34, 9\ns_add_u32 s35, s35, {L_OW}\nv_lshl_add_u32 v19, v0, 3, s35")
    a(f"s_lshl_b32 s35, s34, 3\ns_add_u32 s35, s35, {L_ML}\nv_mov_b32 v24, s35")
    a(f"s_lshl_b32 s35, s4, 2\ns_add_u32 s35, s35, s34\ns_lshl_b32 s35, s35, 5\ns_add_u32 s35, s35, s5")
    a(f"s_lshl_b32 s36, s35, 10\ns_add_u32 s36, s36, {W_H2}\nv_lshl_add_u32 v25, v0, 4, s36")
    a(f"s_lshl_b32 s36, s35, 4\ns_add_u32 s36, s36, {W_ML}\nv_mov_b32 v26, s36")
    reads = [f"ds_read_b64 v[{32 + 2 * w}:{33 + 2 * w}], v24 offset:{32 * w}" for w in range(4)]
    reads += [f"ds_read_b64 v[{40 + 2 * w}:{41 + 2 * w}], v19 offset:{2048 * w}" for w in range(4)]
    lds_spin(F_OW, 0, reads, 'all4', 20)
    stamp('c', 6)
    a("""v_max3_f32 v48, v32, v34, v36
    v_max_f32 v48, v48, v38
    v_sub_f32 v32, v32, v48
    v_sub_f32 v34, v34, v48
    v_sub_f32 v36, v36, v48
    v_sub_f32 v38, v38, v48
    v_exp_f32 v32, v32
    v_exp_f32 v34, v34
    v_exp_f32 v36, v36
    v_exp_f32 v38, v38
    v_mov_b32 v53, s32
    v_mov_b32 v55, s32
    v_mul_f32 v52, v32, v40
    v_mul_f32 v54, v32, v41
    v_fmac_f32 v52, v34, v42
    v_fmac_f32 v54, v34, v43
    v_fmac_f32 v52, v36, v44
    v_fmac_f32 v54, v36, v45
    v_fmac_f32 v52, v38, v46
    v_fmac_f32 v54, v38, v47""")
    a(f"buffer_store_dwordx4 v[52:55], v25, {WS}, 0 offen {stpol}")
    a("""v_mul_f32 v50, v32, v33
    v_mov_b32 v49, s32
    v_fmac_f32 v50, v34, v35
    v_mov_b32 v51, s32
    v_fmac_f32 v50, v36, v37
    v_fmac_f32 v50, v38, v39
    s_mov_b64 exec, 1""")
    a(f"buffer_store_dwordx4 v[48:51], v26, {WS}, 0 offen {stpol}")
    a("s_mov_b64 exec, -1")
    stamp('c', 7)
    a(f"s_lshl_b32 s35, s4, 2\ns_add_u32 s35, s35, s7")
    a(f"s_lshl_b32 s36, s35, 15\ns_lshl_b32 s37, s34, 8\ns_add_u32 s36, s36, s37\ns_add_u32 s36, s36, {W_H2}")
    a("v_lshlrev_b32 v24, 10, v3\nv_lshl_add_u32 v24, v2, 4, v24\nv_add_u32 v24, s36, v24")
    a(f"s_lshl_b32 s36, s35, 9\ns_add_u32 s36, s36, {W_ML}\nv_lshl_add_u32 v25, v3, 4, s36")
    for i in range(1, 8): a(f"s_movk_i32 s{51 + i}, {4096 * i}")
    a("""v_bfe_u32 v29, v0, 1, 2
    v_lshlrev_b32 v29, 4, v29
    v_bfe_u32 v30, v0, 3, 1
    v_lshl_add_u32 v29, v30, 3, v29
    v_and_b32 v30, 1, v0
    v_lshl_add_u32 v29, v30, 2, v29""")
    a(f"s_lshl_b32 s35, s34, 6\ns_add_u32 s35, s35, {L_O}\nv_add_u32 v29, s35, v29")
    L = a.label("h2")
    a(f"s_mov_b32 s40, {SPIN}\n{L}:")
    for i in range(8): a(f"buffer_load_dwordx4 v[{32 + 4 * i}:{35 + 4 * i}], v25, {WS}, 0 offen offset:{64 * i} sc1")
    for i in range(8): a(f"buffer_load_dwordx4 v[{64 + 4 * i}:{67 + 4 * i}], v24, {WS}, {'s%d' % (51 + i) if i else 0} offen sc1")
    a("s_sub_u32 s40, s40, 1\ns_cbranch_scc1 L_end")
    a("s_waitcnt vmcnt(8)")
    a("v_xor_b32 v20, s32, v33")
    for r in [35] + [x for i in range(1, 8) for x in (33 + 4 * i, 35 + 4 * i)]: a(f"v_bitop3_b32 v20, v20, v{r}, s32 bitop3:0xf6")
    a("""v_max3_f32 v21, v32, v36, v40
    v_max3_f32 v22, v44, v48, v52
    v_max3_f32 v21, v21, v56, v60
    v_max_f32 v21, v21, v22
    v_mov_b32 v22, v21
    v_permlane16_swap_b32 v21, v22
    v_max_f32 v21, v21, v22
    v_mov_b32 v22, v21
    v_permlane32_swap_b32 v21, v22
    v_max_f32 v21, v21, v22""")
    for i in range(8): a(f"v_sub_f32 v{32 + 4 * i}, v{32 + 4 * i}, v21")
    for i in range(8): a(f"v_exp_f32 v{32 + 4 * i}, v{32 + 4 * i}")
    a("v_mul_f32 v22, v32, v34")
    for i in range(1, 8): a(f"v_fmac_f32 v22, v{32 + 4 * i}, v{34 + 4 * i}")
    a("""v_mov_b32 v23, v22
    v_permlane16_swap_b32 v22, v23
    v_add_f32 v22, v22, v23
    v_mov_b32 v23, v22
    v_permlane32_swap_b32 v22, v23
    v_add_f32 v22, v22, v23
    v_rcp_f32 v23, v22""")
    for i in range(8):
        a(f"s_waitcnt vmcnt({7 - i})")
        if i == 0: a("v_mul_f32 v30, v32, v64\nv_mul_f32 v31, v32, v66")
        else: a(f"v_fmac_f32 v30, v{32 + 4 * i}, v{64 + 4 * i}\nv_fmac_f32 v31, v{32 + 4 * i}, v{66 + 4 * i}")
        a(f"v_bitop3_b32 v20, v20, v{65 + 4 * i}, s32 bitop3:0xf6\nv_bitop3_b32 v20, v20, v{67 + 4 * i}, s32 bitop3:0xf6")
    a(f"v_cmp_ne_u32 vcc, 0, v20\ns_cbranch_vccnz {L}")
    stamp('c', 8)
    a("""v_permlane16_swap_b32 v30, v31
    v_add_f32 v30, v30, v31
    v_mov_b32 v31, v30
    v_permlane32_swap_b32 v30, v31
    v_add_f32 v30, v30, v31
    v_mul_f32 v30, v30, v23
    v_mov_b32 v31, v30
    v_permlane16_swap_b32 v30, v31
    v_cvt_pk_bf16_f32 v30, v30, v31
    v_mov_b32 v21, 1""")
    a(f"ds_write_b32 v29, v30\nds_write_b32 v18, v21 offset:{F_O}")
    lds_spin(F_LD, seg_flag("WO"), [], 'ge', 20)
    stamp('c', 9)
    for s in range(4):
        for x in range(2): a(f"ds_read_b64_tr_b16 v[{32 + 4 * s + 2 * x}:{33 + 4 * s + 2 * x}], v14 offset:{4096 * s + 2048 * x}")
    a(f"v_lshlrev_b32 v24, 4, v3\nv_add_u32 v24, {L_O}, v24")
    a("v_mov_b32 v96, 0\nv_mov_b32 v97, 0\nv_mov_b32 v98, 0\nv_mov_b32 v99, 0")
    a("s_cmp_ge_u32 s33, 28\ns_cbranch_scc1 L_noffn")
    lds_spin(F_LD, seg_flag("WD"), [], 'ge', 20)
    for s in range(2):
        for x in range(2): a(f"ds_read_b64_tr_b16 v[{48 + 4 * s + 2 * x}:{49 + 4 * s + 2 * x}], v14 offset:{L_WD - L_WO + 4096 * s + 2048 * x}")
    lds_spin(F_H, 1, [f"ds_read_b128 v[{56 + 4 * s}:{59 + 4 * s}], v24 offset:{L_H - L_O + 64 * s}" for s in range(2)], 'ge', 20)
    for s in range(2): a(f"v_mfma_f32_16x16x32_bf16 v[96:99], v[{56 + 4 * s}:{59 + 4 * s}], v[{48 + 4 * s}:{51 + 4 * s}], v[96:99]")
    a("L_noffn:")
    a(f"s_lshl_b32 s35, s6, 2\ns_add_u32 s35, s35, s34\ns_lshl_b32 s35, s35, 5\ns_lshl_b32 s36, s4, 2\ns_add_u32 s35, s35, s36\ns_add_u32 s35, s35, s7")
    a(f"s_lshl_b32 s35, s35, 7\ns_add_u32 s35, s35, {W_H3}\nv_lshl_add_u32 v25, v0, 3, s35")
    lds_spin(F_O, 0, [f"ds_read_b128 v[{64 + 4 * s}:{67 + 4 * s}], v24 offset:{64 * s}" for s in range(4)], 'all4', 20)
    stamp('c', 10)
    for s in range(4): a(f"v_mfma_f32_16x16x32_bf16 v[96:99], v[{64 + 4 * s}:{67 + 4 * s}], v[{32 + 4 * s}:{35 + 4 * s}], v[96:99]")
    a("v_mov_b32 v101, s32\nv_mov_b32 v103, s32")
    a("v_mov_b32 v100, v96\nv_mov_b32_dpp v102, v96 quad_perm:[1,1,3,3] row_mask:0xf bank_mask:0xf")
    a(f"s_mov_b64 exec, 0x5555\nbuffer_store_dwordx4 v[100:103], v25, {WS}, 0 offen sc1\ns_mov_b64 exec, -1")
    stamp('c', 11)
    a("s_cmp_lt_u32 s2, 32\ns_cbranch_scc0 L_cdone\ns_cmp_eq_u32 s34, 0\ns_cbranch_scc0 L_cdone")
    a(f"s_lshl_b32 s35, s2, 12\ns_add_u32 s35, s35, {W_H3}\nv_lshl_add_u32 v24, v0, 4, s35")
    a("v_and_b32 v25, 7, v0\ns_lshl_b32 s35, s2, 5\nv_lshl_add_u32 v25, v25, 2, s35")
    srd(44, 8, 1024)
    a("buffer_load_dword v26, v25, s[44:47], 0 offen")
    srd(52, 26, 1024)
    L = a.label("h3")
    a(f"s_mov_b32 s40, {SPIN}\n{L}:")
    for i in range(4): a(f"buffer_load_dwordx4 v[{32 + 4 * i}:{35 + 4 * i}], v24, {WS}, 0 offen offset:{1024 * i} sc1")
    a("s_sub_u32 s40, s40, 1\ns_cbranch_scc1 L_end")
    a("s_waitcnt vmcnt(0)")
    a("v_xor_b32 v20, s32, v33")
    for r in (35, 37, 39, 41, 43, 45, 47): a(f"v_bitop3_b32 v20, v20, v{r}, s32 bitop3:0xf6")
    a(f"v_cmp_ne_u32 vcc, 0, v20\ns_cbranch_vccnz {L}")
    stamp('c', 12)
    a("""v_add_f32 v32, v32, v36
    v_add_f32 v34, v34, v38
    v_add_f32 v40, v40, v44
    v_add_f32 v42, v42, v46
    v_add_f32 v32, v32, v40
    v_add_f32 v34, v34, v42
    v_permlane32_swap_b32 v32, v34
    v_add_f32 v32, v32, v34
    v_mov_b32 v34, v32
    v_permlane16_swap_b32 v32, v34
    v_add_f32 v32, v32, v34
    v_add_f32_dpp v32, v32, v32 row_ror:8 row_mask:0xf bank_mask:0xf
    v_mov_b32 v34, v32
    v_permlane32_swap_b32 v32, v34
    v_lshlrev_b32 v27, 16, v26
    v_and_b32 v28, 0xffff0000, v26
    v_add_f32 v32, v32, v27
    v_add_f32 v34, v34, v28
    v_cvt_pk_bf16_f32 v32, v32, v34
    s_mov_b64 exec, 0xff
    buffer_store_dword v32, v25, s[52:55], 0 offen""")
    a("s_cmp_eq_u32 s2, 0\ns_cbranch_scc0 L_cdone\ns_mov_b64 exec, 1\nv_mov_b32 v25, s32\nbuffer_store_dword v25, off, s[48:51], 0")
    a("L_cdone:")
    stamp('c', 13)
    if padto:
        a(f"s_waitcnt lgkmcnt(0)\ns_add_u32 s96, s96, {padto}\nL_pad:\ns_sleep 8\ns_memrealtime s[98:99]\ns_waitcnt lgkmcnt(0)\ns_sub_u32 s35, s98, s96\ns_cmp_lt_i32 s35, 0\ns_cbranch_scc1 L_pad")
    if dbgtime:
        a("s_cmp_eq_u32 s34, 0\ns_cbranch_scc0 L_nodbg\ns_memrealtime s[98:99]")
        srd(44, 28, 256)
        a("s_waitcnt lgkmcnt(0)\ns_not_b32 s96, s96\ns_mov_b64 exec, 1\nv_mov_b32 v24, s96\nv_mov_b32 v25, s98\ns_lshl_b32 s35, s4, 2\nv_mov_b32 v26, s35")
        a("buffer_atomic_umax v24, off, s[44:47], 0\nbuffer_atomic_umax v25, off, s[44:47], 0 offset:4\nbuffer_atomic_umax v24, v26, s[44:47], 0 offen offset:8\nL_nodbg:")
    dump('c')
    a("s_endpgm")

    a("L_aux:")
    a("""v_lshlrev_b32 v2, 4, v0
    v_lshrrev_b32 v3, 3, v0
    v_and_b32 v4, 7, v0
    v_lshlrev_b32 v5, 17, v3
    v_lshl_add_u32 v5, v4, 4, v5
    s_lshl_b32 s35, s7, 20
    s_lshl_b32 s36, s4, 10
    s_add_u32 s35, s35, s36
    s_lshl_b32 s36, s6, 7
    s_add_u32 s35, s35, s36
    v_add_u32 v5, s35, v5
    s_mov_b32 s36, 0
    s_waitcnt lgkmcnt(0)""")
    srd(44, 8, 1024)
    a("buffer_load_dwordx4 v[8:11], v2, s[44:47], 0 offen")
    srd(44, 14, 4194304)
    for i in range(16):
        a(f"buffer_load_dwordx4 v[{64 + 4 * i}:{67 + 4 * i}], v5, s[44:47], s36 offen nt")
        if i < 15: a("s_addk_i32 s36, 0x2000")
    a("s_load_dword s32, s[30:31], 0")
    srd(48, 30, WSZ)
    a("s_barrier")
    stamp('a', 1)
    a("""v_and_b32 v6, 1, v0
    v_lshlrev_b32 v6, 4, v6
    v_mov_b32 v7, 0xffff
    v_lshlrev_b32 v6, v6, v7
    v_bfe_u32 v7, v0, 1, 2""")
    for d in range(4): a(f"v_cmp_eq_u32 vcc, {d}, v7\nv_cndmask_b32 v{12 + d}, 0, v6, vcc")
    a(f"v_lshlrev_b32 v6, 5, v0\nv_add_u32 v6, {L_XX}, v6")
    a(f"s_lshl_b32 s35, s7, 9\ns_add_u32 s35, s35, {L_XX}\nv_lshl_add_u32 v7, v3, 6, s35")
    a("s_waitcnt vmcnt(16)")
    stamp('a', 2)
    for k in range(4): a(f"v_lshlrev_b32 v{16 + 2 * k}, 16, v{8 + k}\nv_and_b32 v{17 + 2 * k}, 0xffff0000, v{8 + k}")
    def wave_sum(r, t):
        for n in (8, 4, 2, 1): a(f"v_add_f32_dpp v{r}, v{r}, v{r} row_ror:{n} row_mask:0xf bank_mask:0xf")
        a(f"v_mov_b32 v{t}, v{r}\nv_permlane16_swap_b32 v{r}, v{t}\nv_add_f32 v{r}, v{r}, v{t}")
        a(f"v_mov_b32 v{t}, v{r}\nv_permlane32_swap_b32 v{r}, v{t}\nv_add_f32 v{r}, v{r}, v{t}")
    a("""v_add_f32 v24, v16, v17
    v_add_f32 v25, v18, v19
    v_add_f32 v26, v20, v21
    v_add_f32 v27, v22, v23
    v_add_f32 v24, v24, v25
    v_add_f32 v26, v26, v27
    v_add_f32 v24, v24, v26""")
    wave_sum(24, 25)
    a("v_mul_f32 v24, 0x3b000000, v24")
    for k in range(8): a(f"v_sub_f32 v{32 + k}, v{16 + k}, v24")
    a("v_mul_f32 v26, v32, v32\nv_mul_f32 v27, v33, v33")
    for k in range(2, 8): a(f"v_fmac_f32 v{26 + (k & 1)}, v{32 + k}, v{32 + k}")
    a("v_add_f32 v26, v26, v27\nv_cvt_pk_bf16_f32 v24, 0, v24")
    wave_sum(26, 25)
    for k in range(8): a(f"v_sub_f32 v{16 + k}, v{16 + k}, v24")
    a("""v_mul_f32 v26, 0x3b000000, v26
    v_cvt_pk_bf16_f32 v26, 0, v26
    v_add_f32 v26, 0x3727c5ac, v26
    v_cvt_pk_bf16_f32 v26, 0, v26
    v_sqrt_f32 v26, v26""")
    for k in range(8): a(f"v_cvt_pk_bf16_f32 v{16 + k}, 0, v{16 + k}")
    a("v_cvt_pk_bf16_f32 v26, 0, v26\nv_rcp_f32 v27, v26")
    for k in range(8): a(f"v_mul_f32 v{32 + k}, v{16 + k}, v27")
    for k in range(8): a(f"v_fma_f32 v{16 + k}, -v{32 + k}, v26, v{16 + k}")
    for k in range(8): a(f"v_fmac_f32 v{32 + k}, v{16 + k}, v27")
    for k in range(8): a(f"v_cvt_pk_bf16_f32 v{32 + k}, v{32 + k}, v{32 + k}")
    a("ds_write_b128 v6, v[32:35]\nds_write_b128 v6, v[36:39] offset:16")
    for k in range(4): a(f"ds_read_b128 v[{16 + 4 * k}:{19 + 4 * k}], v7 offset:{16 * k}")
    a("""v_lshlrev_b32 v5, 6, v4
    v_bfe_u32 v6, v0, 4, 1
    v_lshl_add_u32 v5, v6, 5, v5
    v_lshrrev_b32 v6, 5, v0
    v_lshl_add_u32 v5, v6, 4, v5
    s_lshl_b32 s35, s4, 5
    s_lshl_b32 s36, s6, 2
    s_add_u32 s35, s35, s36
    s_add_u32 s35, s35, s7
    s_lshl_b32 s35, s35, 9""")
    a(f"s_add_u32 s35, s35, {W_H1}\nv_add_u32 v9, s35, v5")
    a("s_waitcnt lgkmcnt(0)")
    stamp('a', 3)
    a("s_add_u32 s32, s32, 0x9e3779b9")
    a("v_mov_b32 v49, s32\nv_mov_b32 v51, s32")
    for i in range(16):
        A = 40 + 4 * (i & 1)
        for d in range(4): a(f"v_and_b32 v{A + d}, v{16 + i}, v{12 + d}")
        a(f"s_waitcnt vmcnt({15 - i})")
        c = "0" if i == 0 else "v[32:35]"
        a(f"v_mfma_f32_16x16x32_bf16 v[32:35], v[{A}:{A + 3}], v[{64 + 4 * i}:{67 + 4 * i}], {c}")
    stamp('a', 4)
    a("""v_permlane32_swap_b32 v32, v34
    v_permlane32_swap_b32 v33, v35
    v_add_f32_dpp v48, v34, v32 row_shl:8 row_mask:0xf bank_mask:0xf
    v_add_f32_dpp v50, v35, v33 row_shl:8 row_mask:0xf bank_mask:0xf
    s_mov_b32 exec_lo, 0x00ff00ff
    s_mov_b32 exec_hi, 0x00ff00ff""")
    a(f"buffer_store_dwordx4 v[48:51], v9, {WS}, 0 offen {stpol}")
    a("s_mov_b64 exec, -1")
    stamp('a', 5)
    a("s_cmp_ge_u32 s33, 28\ns_cbranch_scc1 L_adone")
    a(f"s_lshl_b32 s35, s6, 8\ns_add_u32 s35, s35, {L_XX}\nv_lshl_add_u32 v7, v3, 5, s35")
    a("ds_read_b128 v[16:19], v7\nds_read_b128 v[20:23], v7 offset:16")
    a(f"s_lshl_b32 s35, s4, 2\ns_add_u32 s35, s35, s7\ns_lshl_b32 s35, s35, 13\ns_add_u32 s35, s35, {W_HB}")
    a("v_add_u32 v10, s35, v2\ns_lshl_b32 s36, s6, 10\ns_add_u32 s35, s35, s36\nv_lshl_add_u32 v9, v5, 1, s35")
    a(f"v_add_u32 v11, {L_GU}, v2")
    a("""v_lshrrev_b32 v8, 5, v0
    v_lshlrev_b32 v8, 6, v8
    v_bfe_u32 v6, v0, 2, 2
    v_lshl_add_u32 v8, v6, 4, v8
    v_bfe_u32 v6, v0, 4, 1
    v_lshl_add_u32 v8, v6, 3, v8
    v_and_b32 v6, 3, v0
    v_lshl_add_u32 v8, v6, 1, v8""")
    a(f"v_add_u32 v8, {L_H}, v8")
    lds_spin(F_LD, seg_flag("GU"), [], 'ge', 24)
    stamp('a', 6)
    for i in range(16): a(f"ds_read_b128 v[{64 + 4 * i}:{67 + 4 * i}], v11 offset:{1024 * i}")
    for i in range(8):
        A = 40 + 4 * (i & 1)
        for d in range(4): a(f"v_and_b32 v{A + d}, v{16 + i}, v{12 + d}")
        if i == 0: a("s_waitcnt lgkmcnt(0)")
        for m in range(2):
            c = "0" if i == 0 else f"v[{32 + 4 * m}:{35 + 4 * m}]"
            a(f"v_mfma_f32_16x16x32_bf16 v[{32 + 4 * m}:{35 + 4 * m}], v[{A}:{A + 3}], v[{64 + 8 * i + 4 * m}:{67 + 8 * i + 4 * m}], {c}")
    a("v_mov_b32 v53, s32\nv_mov_b32 v55, s32")
    a("""v_permlane32_swap_b32 v32, v34
    v_permlane32_swap_b32 v33, v35
    v_permlane32_swap_b32 v36, v38
    v_permlane32_swap_b32 v37, v39
    v_add_f32_dpp v48, v34, v32 row_shl:8 row_mask:0xf bank_mask:0xf
    v_add_f32_dpp v52, v35, v33 row_shl:8 row_mask:0xf bank_mask:0xf
    v_add_f32_dpp v50, v38, v36 row_shl:8 row_mask:0xf bank_mask:0xf
    v_add_f32_dpp v54, v39, v37 row_shl:8 row_mask:0xf bank_mask:0xf
    s_mov_b32 exec_lo, 0x00ff00ff
    s_mov_b32 exec_hi, 0x00ff00ff""")
    a(f"buffer_store_dwordx4 v[48:51], v9, {WS}, 0 offen {stpol}\nbuffer_store_dwordx4 v[52:55], v9, {WS}, 0 offen offset:16 {stpol}")
    a("s_mov_b64 exec, -1\nv_add_u32 v11, 4096, v10")
    stamp('a', 7)
    L = a.label("hb")
    a(f"s_mov_b32 s40, {SPIN}\n{L}:")
    for i in range(8): a(f"buffer_load_dwordx4 v[{64 + 4 * i}:{67 + 4 * i}], v{10 + (i >> 2)}, {WS}, 0 offen offset:{1024 * (i & 3)} sc1")
    a("s_sub_u32 s40, s40, 1\ns_cbranch_scc1 L_end")
    a("s_waitcnt vmcnt(0)")
    a("v_xor_b32 v20, s32, v65")
    for r in [67] + [x for i in range(1, 8) for x in (65 + 4 * i, 67 + 4 * i)]: a(f"v_bitop3_b32 v20, v20, v{r}, s32 bitop3:0xf6")
    a(f"v_cmp_ne_u32 vcc, 0, v20\ns_cbranch_vccnz {L}")
    stamp('a', 8)
    for step in (1, 2, 4):
        for i in range(0, 8, 2 * step):
            a(f"v_add_f32 v{64 + 4 * i}, v{64 + 4 * i}, v{64 + 4 * (i + step)}\nv_add_f32 v{66 + 4 * i}, v{66 + 4 * i}, v{66 + 4 * (i + step)}")
    a(f"""v_cvt_pk_bf16_f32 v64, 0, v64
    v_cvt_pk_bf16_f32 v66, 0, v66
    v_mul_f32 v20, {(LOG2E | 0x80000000):#x}, v64
    v_exp_f32 v20, v20
    v_add_f32 v20, 1.0, v20
    v_rcp_f32 v21, v20
    v_mul_f32 v22, v64, v21
    v_fma_f32 v23, -v22, v20, v64
    v_fma_f32 v23, v23, v21, v22
    v_cmp_class_f32 vcc, v23, 3
    v_cndmask_b32 v22, v23, v22, vcc
    v_cvt_pk_bf16_f32 v22, 0, v22
    v_mul_f32 v22, v22, v66
    v_cvt_pk_bf16_f32 v22, v22, v22
    v_mov_b32 v21, 1
    ds_write_b16 v8, v22
    ds_write_b32 v1, v21 offset:{F_H}""")
    a("L_adone:")
    stamp('a', 9)
    dump('a')
    a("s_endpgm")

    a("L_loader:")
    a("s_setprio 3")
    a("""v_and_b32 v2, 15, v0
    v_lshrrev_b32 v3, 4, v0
    v_xor_b32 v4, v2, v3
    v_lshlrev_b32 v4, 4, v4
    v_lshlrev_b32 v5, 8, v3""")
    for i in range(4): a(f"v_xor_b32 v{8 + i}, {64 * i}, v4\nv_add_u32 v{8 + i}, v{8 + i}, v5")
    a("""v_lshrrev_b32 v4, 2, v2
    v_xor_b32 v4, v4, v3
    v_lshl_add_u32 v12, v4, 6, v5
    v_and_b32 v4, 3, v0
    v_lshl_add_u32 v12, v4, 4, v12
    v_lshrrev_b32 v6, 3, v0
    v_and_b32 v7, 7, v0
    v_mul_u32_u24 v13, 28672, v6
    v_lshl_add_u32 v13, v7, 4, v13
    v_lshlrev_b32 v4, 1, v3
    v_xor_b32 v4, v4, v7
    v_lshlrev_b32 v4, 4, v4
    v_lshl_add_u32 v14, v6, 10, v4
    s_lshl_b32 s35, s4, 24
    s_lshl_b32 s36, s5, 15
    s_add_u32 s35, s35, s36
    s_add_u32 s35, s35, 15728640
    s_mul_i32 s41, s6, 229376
    s_lshl_b32 s37, s33, 7
    s_add_u32 s41, s41, s37
    s_lshl_b32 s42, s4, 19
    s_lshl_b32 s38, s7, 17
    s_add_u32 s42, s42, s38
    s_lshl_b32 s38, s6, 7
    s_add_u32 s42, s42, s38
    s_lshl_b32 s43, s33, 16
    s_add_u32 s43, s43, s38
    s_waitcnt lgkmcnt(0)
    s_add_u32 s10, s10, s35
    s_addc_u32 s11, s11, 0
    s_add_u32 s12, s12, s35
    s_addc_u32 s13, s13, 0""")
    srd(44, 10, 32768)
    a("s_mov_b32 s40, 0\ns_barrier")
    stamp('l', 1)
    def seg_loads(name):
        r = []
        if name in ("K", "V"):
            base = L_K if name == "K" else L_V
            for i in range(32):
                v = f"v{8 + (i & 3)}" if name == "K" else "v12"
                r.append((base + 1024 * i if i % 4 == 0 else None, f"{v}, s[44:47], s40 offen offset:{1024 * (i & 3)}", "s_addk_i32 s40, 0x1000" if i % 4 == 3 else None))
        if name == "GU":
            for i in range(16): r.append((L_GU + 1024 * i, f"v13, s[{44 + 8 * (i & 1)}:{47 + 8 * (i & 1)}], s41 offen", "s_addk_i32 s41, 0xe00" if i & 1 else None))
        if name == "WO":
            for i in range(16): r.append((L_WO + 1024 * i, "v14, s[44:47], s42 offen", "s_addk_i32 s42, 0x2000"))
        if name == "WD":
            for i in range(8): r.append((L_WD + 1024 * i, "v14, s[44:47], s43 offen", "s_addk_i32 s43, 0x2000"))
        return r
    def seg_setup(name):
        if name == "K": srd(44, 10, 32768); a("s_mov_b32 s40, 0")
        if name == "V": srd(44, 12, 32768); a("s_mov_b32 s40, 0")
        if name == "GU": srd(44, 20, 1835008); srd(52, 22, 1835008)
        if name == "WO": srd(44, 16, 4194304)
        if name == "WD": srd(44, 24, 1835008)
    def emit(segs, n0, pend, final):
        n = n0
        for name in segs:
            if n or name != "K": seg_setup(name)
            for (m0, ad, inc) in seg_loads(name):
                if m0 is not None: a(f"s_mov_b32 m0, {m0}")
                if n >= TH:
                    a(f"s_waitcnt vmcnt({TH - 1})")
                    while pend and pend[0][0] <= n - (TH - 1):
                        signal(pend.pop(0)[1])
                a(f"buffer_load_dwordx4 {ad} nt lds")
                if inc: a(inc)
                n += 1
            pend.append((n, seg_flag(name)))
        if final:
            stamp('l', 8)
            while pend:
                e, f = pend.pop(0)
                a(f"s_waitcnt vmcnt({n - e})")
                signal(f)
        return n
    def signal(f):
        a(f"v_mov_b32 v20, {f}\nds_write_b32 v1, v20 offset:{F_LD}")
        stamp('l', 1 + f)
    ffn = ("GU", "WD")
    k = min(order.index(x) for x in ffn)
    pend = []
    n = emit(order[:k], 0, pend, False)
    a("s_cmp_ge_u32 s33, 28\ns_cbranch_scc1 L_ldb")
    emit(order[k:], n, list(pend), True)
    a("s_branch L_lde\nL_ldb:")
    emit([x for x in order[k:] if x not in ffn], n, list(pend), True)
    a("L_lde:")
    stamp('l', 9)
    if stamps: srd(48, 30, WSZ)
    dump('l')
    a("L_end:\ns_endpgm")

    head = open(f"cdna_kernels/{NAME}.s.ref").read().split("; Override")[0]
    out = head + f"; Generated by gen/gen.py (hand-designed kernel; see that script for the layout notes)\n; @launch grid=(256,1,1) block=(384,1,1) lds={L_END}\n"
    out += f'.amdgcn_target "amdgcn-amd-amdhsa--gfx950"\n.text\n.globl {NAME}_kernel\n.p2align 8\n.type {NAME}_kernel,@function\n'
    out += a.text()
    out += f""".section .rodata,"a"
.p2align 6
.amdhsa_kernel {NAME}_kernel
  .amdhsa_next_free_vgpr 128
  .amdhsa_next_free_sgpr 102
  .amdhsa_accum_offset 128
  .amdhsa_group_segment_fixed_size 0
  .amdhsa_kernarg_size 96
  .amdhsa_user_sgpr_count 2
  .amdhsa_user_sgpr_kernarg_segment_ptr 1
  .amdhsa_system_sgpr_workgroup_id_x 1
  .amdhsa_float_denorm_mode_32 3
.end_amdhsa_kernel
"""
    return out

if __name__ == "__main__":
    kw = eval("dict(" + (sys.argv[2] if len(sys.argv) > 2 else "") + ")")
    open(sys.argv[1], "w").write(gen(**kw))
```

```python
import sys, argparse
from asmlib import Asm

NAME = "parallel_sum__sliding_block_cached__swiglu_ffn__decode"

L_K, L_V, L_GU, L_WO, L_WD = 0, 32768, 65536, 81920, 98304
L_XX = 106496
L_Q  = L_XX + 2048
L_OW = L_Q + 1280
L_ML = L_OW + 8192
L_O  = L_ML + 128
L_H  = L_O + 256
L_F  = L_H + 128
L_END = L_F + 64
F_LD, F_H, F_IS, F_Q, F_OW, F_O = 0, 4, 8, 16, 32, 48

W_EP  = 0
W_H1  = 0x1000
W_H1B = W_H1 + 256 * 512
W_HB  = W_H1B + 256 * 512
W_ML  = W_HB + 256 * 1024
W_H3  = W_ML + 32 * 512
W_H2  = W_H3 + 32 * 4096
W_END = W_H2 + 1024 * 1024
W_ST  = 0x400000

LOG2E = 0x3fb8aa3b
SCALE = 0x3db504f3
SPIN = 1 << 16

def gen(TH=22, stamps=False, order=("K", "V", "GU", "WO", "WD"), dbgtime=False, padto=0, warm=64, h2wait=True, NA=24, h3depth=4, forceslow=False, h1trig=32):
    a = Asm()
    st_n = {}
    def stamp(role, idx):
        if stamps:
            a(f"s_memtime s[{64 + 2 * idx}:{65 + 2 * idx}]")
            if idx == 0: a("s_memrealtime s[94:95]")
            st_n[role] = max(st_n.get(role, 0), idx + 1)
    def dump(role):
        if not stamps: return
        a("s_waitcnt lgkmcnt(0)")
        a(f"s_lshl_b32 s60, s2, 9\ns_lshl_b32 s61, s3, 6\ns_add_u32 s60, s60, s61\ns_add_u32 s60, s60, {W_ST}")
        a("s_mov_b64 exec, 1\nv_mov_b32 v126, s60")
        for i in range(16):
            a(f"v_mov_b32 v127, s{64 + 2 * i}\nbuffer_store_dword v127, v126, s[48:51], 0 offen offset:{4 * i}")
    def srd(d, p, size):
        a(f"s_mov_b32 s{d}, s{p}\ns_and_b32 s{d + 1}, s{p + 1}, 0xffff\ns_mov_b32 s{d + 2}, {size}\ns_mov_b32 s{d + 3}, 0x20000")
    WS = "s[48:51]"
    WSZ = W_ST + 256 * 512 if stamps else W_END
    events = []
    for nm in order:
        if nm == "K" and h1trig < 32: events.append("Kpart")
        events.append(nm)
    def seg_flag(name):
        return events.index(name) + 1
    def lgk(n):
        a(f"s_waitcnt lgkmcnt({0 if stamps else n})")
    def st2(ops):
        L1 = a.label("slow"); L2 = a.label("st")
        a(f"s_cmp_eq_u32 s41, 0\ns_cbranch_scc1 {L1}")
        for o in ops: a(o)
        a(f"s_branch {L2}\n{L1}:")
        for o in ops: a(o + " sc1" if o.startswith("buffer_store") else o)
        a(f"{L2}:")

    def lds_spin(flag_off, want, reads, kind, tmp):
        L = a.label("spin"); D = a.label("spun")
        a(f"s_mov_b32 s40, {SPIN}")
        a(f"{L}:")
        if kind == 'ge':
            a(f"ds_read_b32 v{tmp}, v1 offset:{flag_off}")
        else:
            a(f"ds_read_b128 v[{tmp}:{tmp + 3}], v1 offset:{flag_off}")
        for r in reads: a(r)
        a("s_sub_u32 s40, s40, 1\ns_cbranch_scc1 L_end")
        a("s_waitcnt lgkmcnt(0)")
        if kind == 'ge':
            a(f"v_cmp_gt_u32 vcc, {want}, v{tmp}")
        else:
            a(f"v_and_b32 v{tmp}, v{tmp}, v{tmp + 1}\nv_and_b32 v{tmp + 2}, v{tmp + 2}, v{tmp + 3}\nv_and_b32 v{tmp}, v{tmp}, v{tmp + 2}")
            a(f"v_cmp_eq_u32 vcc, 0, v{tmp}")
        a(f"s_cbranch_vccnz {L}")

    a(f"{NAME}_kernel:")
    stamp('all', 0)
    if dbgtime or padto: a("s_memrealtime s[96:97]")
    a("""s_cmp_ge_u32 s2, 256
    s_cbranch_scc1 L_end
    s_load_dwordx16 s[8:23], s[0:1], 0
    s_load_dwordx8 s[24:31], s[0:1], 64
    v_lshrrev_b32 v2, 6, v0
    v_and_b32 v0, 63, v0
    v_readfirstlane_b32 s3, v2
    s_and_b32 s4, s2, 7
    s_lshr_b32 s5, s2, 3
    s_and_b32 s6, s5, 7
    s_lshr_b32 s7, s5, 3
    s_lshl_b32 s33, s7, 3
    s_add_u32 s33, s33, s4""")
    a(f"v_mov_b32 v1, {L_F}")
    a("s_cmp_eq_u32 s3, 0\ns_cbranch_scc1 L_aux\ns_cmp_eq_u32 s3, 1\ns_cbranch_scc1 L_loader")

    a("s_sub_u32 s34, s3, 2")
    a("s_cmp_eq_u32 s34, 0\ns_cbranch_scc0 L_nopf")
    a(f"s_getpc_b64 s[36:37]\nL_pc:\ns_sub_u32 s36, s36, L_pc-{NAME}_kernel\ns_subb_u32 s37, s37, 0")
    a(f"v_lshlrev_b32 v2, 7, v0\nv_min_u32 v2, L_end-{NAME}_kernel, v2\nglobal_load_dword v124, v2, s[36:37]")
    a(f"v_add_u32 v2, 8192, v2\nv_min_u32 v2, L_end-{NAME}_kernel, v2\nglobal_load_dword v124, v2, s[36:37]")
    a("v_mov_b32 v4, 0\nv_mov_b32 v5, 0\nv_mov_b32 v6, 0\nv_mov_b32 v7, 0")
    for i in range(4): a(f"ds_write_b128 v1, v[4:7] offset:{16 * i}")
    a("L_nopf:")
    a("""v_and_b32 v2, 15, v0
    v_lshrrev_b32 v3, 4, v0""")
    a("""v_xor_b32 v4, v2, v3
    v_lshlrev_b32 v4, 4, v4
    v_lshlrev_b32 v5, 8, v2
    s_lshl_b32 s35, s34, 13
    v_add_u32 v5, s35, v5""")
    for s in range(4):
        a(f"v_xor_b32 v{8 + s}, {64 * s}, v4\nv_add_u32 v{8 + s}, v{8 + s}, v5")
    a("""v_lshrrev_b32 v4, 2, v2
    v_lshrrev_b32 v5, 1, v3
    v_xor_b32 v5, v5, v4
    v_lshlrev_b32 v5, 6, v5
    v_lshl_add_u32 v5, v4, 8, v5
    v_and_b32 v6, 1, v3
    v_lshl_add_u32 v5, v6, 5, v5
    v_and_b32 v6, 3, v0
    v_lshl_add_u32 v5, v6, 3, v5""")
    a(f"s_add_u32 s35, s35, {L_V}\nv_add_u32 v12, s35, v5\nv_xor_b32 v13, 128, v12")
    a("""v_lshl_add_u32 v5, v3, 2, v4
    v_lshrrev_b32 v7, 1, v5
    v_and_b32 v7, 3, v7
    v_xor_b32 v7, s34, v7
    v_lshlrev_b32 v7, 5, v7
    v_lshl_add_u32 v7, v5, 7, v7
    v_lshl_add_u32 v14, v6, 3, v7""")
    a(f"v_add_u32 v14, {L_WO}, v14")
    a(f"v_mul_u32_u24 v15, 320, v6\nv_lshl_add_u32 v15, v3, 4, v15\nv_add_u32 v15, {L_Q}, v15")
    a("""v_lshrrev_b32 v4, 5, v0
    v_lshlrev_b32 v4, 11, v4
    v_and_b32 v5, 31, v0
    v_lshl_add_u32 v16, v5, 4, v4
    s_lshl_b32 s35, s4, 14
    s_lshl_b32 s36, s34, 12
    s_add_u32 s35, s35, s36""")
    a(f"s_add_u32 s35, s35, {W_H1}\nv_add_u32 v16, s35, v16")
    a("s_lshl_b32 s35, s34, 2\nv_add_u32 v18, s35, v1")
    a(f"s_mul_i32 s35, s34, 320\ns_add_u32 s35, s35, {L_Q}\nv_lshl_add_u32 v17, v0, 2, s35")
    a("s_waitcnt lgkmcnt(0)")
    a("s_load_dword s32, s[30:31], 0")
    srd(48, 30, WSZ)
    a("s_barrier")
    if warm:
        a("s_cmp_eq_u32 s34, 1\ns_cbranch_scc0 L_nowarm")
        a(f"s_lshl_b32 s35, s4, 5\ns_lshl_b32 s36, s6, 2\ns_add_u32 s35, s35, s36\ns_add_u32 s35, s35, s7\ns_lshl_b32 s35, s35, 9\ns_add_u32 s35, s35, {W_H1}")
        a(f"v_lshlrev_b32 v4, {warm.bit_length() - 1}, v0\ns_mov_b64 exec, {(1 << (512 // warm)) - 1}\nbuffer_load_dword v124, v4, {WS}, s35 offen sc1\ns_mov_b64 exec, -1\nL_nowarm:")
    a("s_waitcnt lgkmcnt(0)")
    a("s_add_u32 s32, s32, 0x9e3779b9")
    a("s_getreg_b32 s42, hwreg(HW_REG_XCC_ID, 0, 4)\ns_add_u32 s42, s42, s32\ns_add_u32 s42, s42, 1")
    kreads = [f"ds_read_b128 v[{32 + 16 * t + 4 * s}:{35 + 16 * t + 4 * s}], v{8 + s} offset:{L_K + 4096 * t}" for t in range(2) for s in range(4)]
    lds_spin(F_LD, seg_flag("Kpart" if h1trig < 32 else "K"), [], 'ge', 20)
    stamp('c', 1)
    L = a.label("h1"); L2 = a.label("h1k")
    a(f"s_mov_b32 s43, 0\ns_mov_b32 s41, 3\ns_mov_b32 s39, 0")
    if forceslow: a(f"s_mov_b32 s39, {NA}")
    a(f"{L}:\ns_cmp_lt_u32 s39, {NA}\ns_cbranch_scc1 {L2}")
    a(f"s_mov_b32 s43, {W_H1B - W_H1}\ns_mov_b32 s41, 1\ns_mov_b32 s42, s32\n{L2}:")
    for i in range(4): a(f"buffer_load_dwordx4 v[{96 + 4 * i}:{99 + 4 * i}], v16, {WS}, s43 offen offset:{512 * i} sc1")
    a(f"s_add_u32 s39, s39, 1\ns_cmp_gt_u32 s39, {SPIN}\ns_cbranch_scc1 L_end")
    if h1trig == 32:
        for r in kreads: a(r)
    a("s_waitcnt vmcnt(0)")
    a("v_xor_b32 v20, s42, v97")
    for r in (99, 101, 103, 105, 107, 109, 111): a(f"v_bitop3_b32 v20, v20, v{r}, s42 bitop3:0xf6")
    a("""v_add_f32 v96, v96, v100
    v_add_f32 v98, v98, v102
    v_add_f32 v104, v104, v108
    v_add_f32 v106, v106, v110""")
    a(f"v_cmp_ne_u32 vcc, 0, v20\nv_add_f32 v96, v96, v104\nv_add_f32 v98, v98, v106\ns_cbranch_vccnz {L}")
    stamp('c', 2)
    a("""v_cvt_pk_bf16_f32 v96, v96, v98
    v_mov_b32 v21, s41""")
    a(f"ds_write_b32 v17, v96\nds_write_b32 v18, v21 offset:{F_Q}")
    if h1trig < 32: lds_spin(F_LD, seg_flag("K"), kreads, 'ge', 20)
    lds_spin(F_Q, 0, [f"ds_read_b128 v[{96 + 4 * s}:{99 + 4 * s}], v15 offset:{64 * s}" for s in range(4)], 'all4', 20)
    stamp('c', 3)
    for s in range(4):
        for t in range(2):
            c = "0" if s == 0 else f"v[{24 + 4 * t}:{27 + 4 * t}]"
            a(f"v_mfma_f32_16x16x32_bf16 v[{24 + 4 * t}:{27 + 4 * t}], v[{32 + 16 * t + 4 * s}:{35 + 16 * t + 4 * s}], v[{96 + 4 * s}:{99 + 4 * s}], {c}")
    a("v_readfirstlane_b32 s41, v20\ns_and_b32 s41, s41, 2")
    a(f"s_mov_b32 s35, {SCALE:#x}\ns_mov_b32 s36, {LOG2E:#x}")
    for r in range(24, 32): a(f"v_cvt_pk_bf16_f32 v{r}, 0, v{r}")
    for r in range(24, 32): a(f"v_mul_f32 v{r}, s35, v{r}")
    for r in range(24, 32): a(f"v_cvt_pk_bf16_f32 v{r}, 0, v{r}")
    a("""v_max3_f32 v20, v24, v25, v26
    v_max3_f32 v21, v27, v28, v29
    v_max3_f32 v20, v20, v30, v31
    v_max_f32 v20, v20, v21
    v_mov_b32 v21, v20
    v_permlane16_swap_b32 v20, v21
    v_max_f32 v20, v20, v21
    v_mov_b32 v21, v20
    v_permlane32_swap_b32 v20, v21
    v_max_f32 v20, v20, v21
    v_mul_f32 v22, s36, v20""")
    for r in range(24, 32): a(f"v_fma_f32 v{r}, v{r}, s36, -v22")
    for r in range(24, 32): a(f"v_exp_f32 v{r}, v{r}")
    for k in range(4): a(f"v_cvt_pk_bf16_f32 v{32 + k}, v{24 + 2 * k}, v{25 + 2 * k}")
    stamp('c', 4)
    lds_spin(F_LD, seg_flag("V"), [f"ds_read_b64_tr_b16 v[{64 + 4 * tq + 2 * h}:{65 + 4 * tq + 2 * h}], v{12 + h} offset:{1024 * tq}" for tq in range(8) for h in range(2)], 'ge', 20)
    for tq in range(8):
        t, rg = tq >> 2, tq & 3
        for h in range(2):
            c = "0" if tq == 0 else f"v[{40 + 4 * h}:{43 + 4 * h}]"
            a(f"v_mfma_f32_4x4x4_16b_bf16 v[{40 + 4 * h}:{43 + 4 * h}], v[{32 + 2 * t}:{33 + 2 * t}], v[{64 + 4 * tq + 2 * h}:{65 + 4 * tq + 2 * h}], {c} cbsz:4 abid:{4 * rg}")
        if tq == 0:
            a("v_add_f32 v24, v24, v25\nv_add_f32 v26, v26, v27")
        if tq == 1:
            a("v_add_f32 v28, v28, v29\nv_add_f32 v30, v30, v31")
        if tq == 2:
            a("v_add_f32 v24, v24, v26\nv_add_f32 v28, v28, v30")
        if tq == 3:
            a("v_add_f32 v23, v24, v28\nv_mov_b32 v21, v23")
        if tq == 4:
            a("v_permlane16_swap_b32 v23, v21\nv_add_f32 v23, v23, v21")
        if tq == 5:
            a("v_mov_b32 v21, v23")
        if tq == 6:
            a("v_permlane32_swap_b32 v23, v21\nv_add_f32 v23, v23, v21")
    a(f"s_lshl_b32 s35, s34, 11\ns_add_u32 s35, s35, {L_OW}\nv_lshl_add_u32 v19, v0, 2, s35")
    a(f"s_lshl_b32 s35, s34, 5\ns_add_u32 s35, s35, {L_ML}\nv_lshl_add_u32 v20, v0, 3, s35\nv_mov_b32 v21, 1")
    for h in range(4): a(f"ds_write2st64_b32 v19, v{40 + h}, v{44 + h} offset0:{2 * h} offset1:{2 * h + 1}")
    a("s_mov_b64 exec, 15\nds_write_b64 v20, v[22:23]\ns_mov_b64 exec, -1")
    a(f"ds_write_b32 v18, v21 offset:{F_OW}")
    stamp('c', 5)
    a(f"s_lshl_b32 s35, s34, 9\ns_add_u32 s35, s35, {L_OW}\nv_lshl_add_u32 v19, v0, 3, s35")
    a(f"s_lshl_b32 s35, s34, 3\ns_add_u32 s35, s35, {L_ML}\nv_mov_b32 v24, s35")
    a(f"s_lshl_b32 s35, s4, 2\ns_add_u32 s35, s35, s34\ns_lshl_b32 s35, s35, 5\ns_add_u32 s35, s35, s5")
    a(f"s_lshl_b32 s36, s35, 10\ns_add_u32 s36, s36, {W_H2}\nv_lshl_add_u32 v25, v0, 4, s36")
    a(f"s_lshl_b32 s36, s35, 4\ns_add_u32 s36, s36, {W_ML}\nv_mov_b32 v26, s36")
    reads = [f"ds_read_b64 v[{32 + 2 * w}:{33 + 2 * w}], v24 offset:{32 * w}" for w in range(4)]
    reads += [f"ds_read_b64 v[{40 + 2 * w}:{41 + 2 * w}], v19 offset:{2048 * w}" for w in range(4)]
    lds_spin(F_OW, 0, reads, 'all4', 20)
    stamp('c', 6)
    a("""v_max3_f32 v48, v32, v34, v36
    v_max_f32 v48, v48, v38
    v_sub_f32 v32, v32, v48
    v_sub_f32 v34, v34, v48
    v_sub_f32 v36, v36, v48
    v_sub_f32 v38, v38, v48
    v_exp_f32 v32, v32
    v_exp_f32 v34, v34
    v_exp_f32 v36, v36
    v_exp_f32 v38, v38
    v_mov_b32 v53, s32
    v_mov_b32 v55, s32
    v_mul_f32 v52, v32, v40
    v_mul_f32 v54, v32, v41
    v_fmac_f32 v52, v34, v42
    v_fmac_f32 v54, v34, v43
    v_fmac_f32 v52, v36, v44
    v_fmac_f32 v54, v36, v45
    v_fmac_f32 v52, v38, v46
    v_fmac_f32 v54, v38, v47""")
    a("""v_mul_f32 v50, v32, v33
    v_mov_b32 v49, s32
    v_fmac_f32 v50, v34, v35
    v_mov_b32 v51, s32
    v_fmac_f32 v50, v36, v37
    v_fmac_f32 v50, v38, v39""")
    st2([f"buffer_store_dwordx4 v[52:55], v25, {WS}, 0 offen", "s_mov_b64 exec, 1", f"buffer_store_dwordx4 v[48:51], v26, {WS}, 0 offen"])
    a("s_mov_b64 exec, -1")
    stamp('c', 7)
    a(f"s_lshl_b32 s35, s4, 2\ns_add_u32 s35, s35, s7")
    a(f"s_lshl_b32 s36, s35, 15\ns_lshl_b32 s37, s34, 8\ns_add_u32 s36, s36, s37\ns_add_u32 s36, s36, {W_H2}")
    a("v_lshlrev_b32 v24, 10, v3\nv_lshl_add_u32 v24, v2, 4, v24\nv_add_u32 v24, s36, v24")
    a(f"s_lshl_b32 s36, s35, 9\ns_add_u32 s36, s36, {W_ML}\nv_lshl_add_u32 v25, v3, 4, s36")
    for i in range(1, 8): a(f"s_movk_i32 s{51 + i}, {4096 * i}")
    a("""v_bfe_u32 v29, v0, 1, 2
    v_lshlrev_b32 v29, 4, v29
    v_bfe_u32 v30, v0, 3, 1
    v_lshl_add_u32 v29, v30, 3, v29
    v_and_b32 v30, 1, v0
    v_lshl_add_u32 v29, v30, 2, v29""")
    a(f"s_lshl_b32 s35, s34, 6\ns_add_u32 s35, s35, {L_O}\nv_add_u32 v29, s35, v29")
    if h2wait: lds_spin(F_IS, 1, [], 'ge', 20)
    L = a.label("h2")
    a(f"s_mov_b32 s40, {SPIN}\n{L}:")
    for i in range(8): a(f"buffer_load_dwordx4 v[{32 + 4 * i}:{35 + 4 * i}], v25, {WS}, 0 offen offset:{64 * i} sc1")
    for i in range(8): a(f"buffer_load_dwordx4 v[{64 + 4 * i}:{67 + 4 * i}], v24, {WS}, {'s%d' % (51 + i) if i else 0} offen sc1")
    a("s_sub_u32 s40, s40, 1\ns_cbranch_scc1 L_end")
    a("s_waitcnt vmcnt(8)")
    a("v_xor_b32 v20, s32, v33")
    for r in [35] + [x for i in range(1, 8) for x in (33 + 4 * i, 35 + 4 * i)]: a(f"v_bitop3_b32 v20, v20, v{r}, s32 bitop3:0xf6")
    a("""v_max3_f32 v21, v32, v36, v40
    v_max3_f32 v22, v44, v48, v52
    v_max3_f32 v21, v21, v56, v60
    v_max_f32 v21, v21, v22
    v_mov_b32 v22, v21
    v_permlane16_swap_b32 v21, v22
    v_max_f32 v21, v21, v22
    v_mov_b32 v22, v21
    v_permlane32_swap_b32 v21, v22
    v_max_f32 v21, v21, v22""")
    for i in range(8): a(f"v_sub_f32 v{32 + 4 * i}, v{32 + 4 * i}, v21")
    for i in range(8): a(f"v_exp_f32 v{32 + 4 * i}, v{32 + 4 * i}")
    a("v_mul_f32 v22, v32, v34")
    for i in range(1, 8): a(f"v_fmac_f32 v22, v{32 + 4 * i}, v{34 + 4 * i}")
    a("""v_mov_b32 v23, v22
    v_permlane16_swap_b32 v22, v23
    v_add_f32 v22, v22, v23
    v_mov_b32 v23, v22
    v_permlane32_swap_b32 v22, v23
    v_add_f32 v22, v22, v23
    v_rcp_f32 v23, v22""")
    for i in range(8):
        a(f"s_waitcnt vmcnt({7 - i})")
        if i == 0: a("v_mul_f32 v30, v32, v64\nv_mul_f32 v31, v32, v66")
        else: a(f"v_fmac_f32 v30, v{32 + 4 * i}, v{64 + 4 * i}\nv_fmac_f32 v31, v{32 + 4 * i}, v{66 + 4 * i}")
        a(f"v_bitop3_b32 v20, v20, v{65 + 4 * i}, s32 bitop3:0xf6\nv_bitop3_b32 v20, v20, v{67 + 4 * i}, s32 bitop3:0xf6")
    a(f"v_cmp_ne_u32 vcc, 0, v20\ns_cbranch_vccnz {L}")
    stamp('c', 8)
    a("""v_permlane16_swap_b32 v30, v31
    v_add_f32 v30, v30, v31
    v_mov_b32 v31, v30
    v_permlane32_swap_b32 v30, v31
    v_add_f32 v30, v30, v31
    v_mul_f32 v30, v30, v23
    v_mov_b32 v31, v30
    v_permlane16_swap_b32 v30, v31
    v_cvt_pk_bf16_f32 v30, v30, v31
    v_mov_b32 v21, 1""")
    a(f"ds_write_b32 v29, v30\nds_write_b32 v18, v21 offset:{F_O}")
    lds_spin(F_LD, seg_flag("WO"), [], 'ge', 20)
    stamp('c', 9)
    for s in range(4):
        for x in range(2): a(f"ds_read_b64_tr_b16 v[{32 + 4 * s + 2 * x}:{33 + 4 * s + 2 * x}], v14 offset:{4096 * s + 2048 * x}")
    a(f"v_lshlrev_b32 v24, 4, v3\nv_add_u32 v24, {L_O}, v24")
    a("v_mov_b32 v96, 0\nv_mov_b32 v97, 0\nv_mov_b32 v98, 0\nv_mov_b32 v99, 0")
    a("s_cmp_ge_u32 s33, 28\ns_cbranch_scc1 L_noffn")
    lds_spin(F_LD, seg_flag("WD"), [], 'ge', 20)
    for s in range(2):
        for x in range(2): a(f"ds_read_b64_tr_b16 v[{48 + 4 * s + 2 * x}:{49 + 4 * s + 2 * x}], v14 offset:{L_WD - L_WO + 4096 * s + 2048 * x}")
    lds_spin(F_H, 1, [f"ds_read_b128 v[{56 + 4 * s}:{59 + 4 * s}], v24 offset:{L_H - L_O + 64 * s}" for s in range(2)], 'ge', 20)
    for s in range(2): a(f"v_mfma_f32_16x16x32_bf16 v[96:99], v[{56 + 4 * s}:{59 + 4 * s}], v[{48 + 4 * s}:{51 + 4 * s}], v[96:99]")
    a("L_noffn:")
    a(f"s_lshl_b32 s35, s6, 2\ns_add_u32 s35, s35, s34\ns_lshl_b32 s35, s35, 5\ns_lshl_b32 s36, s4, 2\ns_add_u32 s35, s35, s36\ns_add_u32 s35, s35, s7")
    a(f"s_lshl_b32 s35, s35, 7\ns_add_u32 s35, s35, {W_H3}\nv_lshl_add_u32 v25, v0, 3, s35")
    lds_spin(F_O, 0, [f"ds_read_b128 v[{64 + 4 * s}:{67 + 4 * s}], v24 offset:{64 * s}" for s in range(4)], 'all4', 20)
    stamp('c', 10)
    for s in range(4): a(f"v_mfma_f32_16x16x32_bf16 v[96:99], v[{64 + 4 * s}:{67 + 4 * s}], v[{32 + 4 * s}:{35 + 4 * s}], v[96:99]")
    a("v_mov_b32 v101, s32\nv_mov_b32 v103, s32")
    a("v_mov_b32 v100, v96\nv_mov_b32_dpp v102, v96 quad_perm:[1,1,3,3] row_mask:0xf bank_mask:0xf")
    a(f"s_mov_b64 exec, 0x5555\nbuffer_store_dwordx4 v[100:103], v25, {WS}, 0 offen sc1\ns_mov_b64 exec, -1")
    stamp('c', 11)
    a("s_cmp_lt_u32 s2, 32\ns_cbranch_scc0 L_cdone\ns_cmp_eq_u32 s34, 0\ns_cbranch_scc0 L_cdone")
    a(f"s_lshl_b32 s35, s2, 12\ns_add_u32 s35, s35, {W_H3}\nv_lshl_add_u32 v24, v0, 4, s35")
    a("v_and_b32 v25, 7, v0\ns_lshl_b32 s35, s2, 5\nv_lshl_add_u32 v25, v25, 2, s35")
    srd(44, 8, 1024)
    a("buffer_load_dword v26, v25, s[44:47], 0 offen")
    srd(52, 26, 1024)
    L = a.label("h3"); LD = a.label("h3d")
    def h3issue(k):
        for i in range(4): a(f"buffer_load_dwordx4 v[{32 + 16 * k + 4 * i}:{35 + 16 * k + 4 * i}], v24, {WS}, 0 offen offset:{1024 * i} sc1")
    a(f"s_mov_b32 s40, {SPIN}")
    for k in range(h3depth - 1): h3issue(k)
    a(f"{L}:")
    for k in range(h3depth):
        h3issue((k + h3depth - 1) % h3depth)
        a(f"s_waitcnt vmcnt({4 * (h3depth - 1)})")
        b = 32 + 16 * k
        a(f"v_xor_b32 v20, s32, v{b + 1}")
        for r in range(b + 3, b + 16, 2): a(f"v_bitop3_b32 v20, v20, v{r}, s32 bitop3:0xf6")
        a(f"v_add_f32 v22, v{b}, v{b + 4}\nv_add_f32 v23, v{b + 2}, v{b + 6}\nv_cmp_ne_u32 vcc, 0, v20")
        a(f"v_add_f32 v30, v{b + 8}, v{b + 12}\nv_add_f32 v31, v{b + 10}, v{b + 14}\ns_cbranch_vccz {LD}")
    a(f"s_sub_u32 s40, s40, 1\ns_cbranch_scc0 {L}\ns_branch L_end\n{LD}:")
    stamp('c', 12)
    a("""v_add_f32 v22, v22, v30
    v_add_f32 v23, v23, v31
    v_lshlrev_b32 v27, 16, v26
    v_and_b32 v28, 0xffff0000, v26
    v_permlane32_swap_b32 v22, v23
    v_add_f32 v22, v22, v23
    v_mov_b32 v23, v22
    v_permlane16_swap_b32 v22, v23
    v_add_f32 v22, v22, v23
    v_add_f32_dpp v22, v22, v22 row_ror:8 row_mask:0xf bank_mask:0xf
    v_mov_b32 v23, v22
    v_permlane32_swap_b32 v22, v23
    v_add_f32 v22, v22, v27
    v_add_f32 v23, v23, v28
    v_cvt_pk_bf16_f32 v22, v22, v23
    s_mov_b64 exec, 0xff
    buffer_store_dword v22, v25, s[52:55], 0 offen""")
    a("s_cmp_eq_u32 s2, 0\ns_cbranch_scc0 L_cdone\ns_mov_b64 exec, 1\nv_mov_b32 v25, s32\nbuffer_store_dword v25, off, s[48:51], 0")
    a("L_cdone:")
    stamp('c', 13)
    if padto:
        a(f"s_waitcnt lgkmcnt(0)\ns_add_u32 s96, s96, {padto}\nL_pad:\ns_sleep 8\ns_memrealtime s[98:99]\ns_waitcnt lgkmcnt(0)\ns_sub_u32 s35, s98, s96\ns_cmp_lt_i32 s35, 0\ns_cbranch_scc1 L_pad")
    if dbgtime:
        a("s_cmp_eq_u32 s34, 0\ns_cbranch_scc0 L_nodbg\ns_memrealtime s[98:99]")
        srd(44, 28, 256)
        a("s_waitcnt lgkmcnt(0)\ns_not_b32 s96, s96\ns_mov_b64 exec, 1\nv_mov_b32 v24, s96\nv_mov_b32 v25, s98\ns_lshl_b32 s35, s4, 2\nv_mov_b32 v26, s35")
        a("buffer_atomic_umax v24, off, s[44:47], 0\nbuffer_atomic_umax v25, off, s[44:47], 0 offset:4\nbuffer_atomic_umax v24, v26, s[44:47], 0 offen offset:8\nL_nodbg:")
    dump('c')
    a("s_endpgm")

    a("L_aux:")
    a("""v_lshlrev_b32 v2, 4, v0
    v_lshrrev_b32 v3, 3, v0
    v_and_b32 v4, 7, v0
    v_lshlrev_b32 v5, 17, v3
    v_lshl_add_u32 v5, v4, 4, v5
    s_lshl_b32 s35, s7, 20
    s_lshl_b32 s36, s4, 10
    s_add_u32 s35, s35, s36
    s_lshl_b32 s36, s6, 7
    s_add_u32 s35, s35, s36
    v_add_u32 v5, s35, v5
    s_mov_b32 s36, 0
    s_waitcnt lgkmcnt(0)""")
    srd(44, 8, 1024)
    a("buffer_load_dwordx4 v[8:11], v2, s[44:47], 0 offen")
    srd(44, 14, 4194304)
    for i in range(16):
        a(f"buffer_load_dwordx4 v[{64 + 4 * i}:{67 + 4 * i}], v5, s[44:47], s36 offen nt")
        if i < 15: a("s_addk_i32 s36, 0x2000")
    a("s_load_dword s32, s[30:31], 0")
    srd(48, 30, WSZ)
    a("s_barrier")
    stamp('a', 1)
    a("""v_and_b32 v6, 1, v0
    v_lshlrev_b32 v6, 4, v6
    v_mov_b32 v7, 0xffff
    v_lshlrev_b32 v6, v6, v7
    v_bfe_u32 v7, v0, 1, 2""")
    for d in range(4): a(f"v_cmp_eq_u32 vcc, {d}, v7\nv_cndmask_b32 v{12 + d}, 0, v6, vcc")
    a(f"v_lshlrev_b32 v6, 5, v0\nv_add_u32 v6, {L_XX}, v6")
    a(f"s_lshl_b32 s35, s7, 9\ns_add_u32 s35, s35, {L_XX}\nv_lshl_add_u32 v7, v3, 6, s35")
    a("s_waitcnt vmcnt(16)")
    stamp('a', 2)
    for k in range(4): a(f"v_lshlrev_b32 v{16 + 2 * k}, 16, v{8 + k}\nv_and_b32 v{17 + 2 * k}, 0xffff0000, v{8 + k}")
    def wave_sum(r, t):
        for n in (8, 4, 2, 1): a(f"v_add_f32_dpp v{r}, v{r}, v{r} row_ror:{n} row_mask:0xf bank_mask:0xf")
        a(f"v_mov_b32 v{t}, v{r}\nv_permlane16_swap_b32 v{r}, v{t}\nv_add_f32 v{r}, v{r}, v{t}")
        a(f"v_mov_b32 v{t}, v{r}\nv_permlane32_swap_b32 v{r}, v{t}\nv_add_f32 v{r}, v{r}, v{t}")
    a("""v_add_f32 v24, v16, v17
    v_add_f32 v25, v18, v19
    v_add_f32 v26, v20, v21
    v_add_f32 v27, v22, v23
    v_add_f32 v24, v24, v25
    v_add_f32 v26, v26, v27
    v_add_f32 v24, v24, v26""")
    wave_sum(24, 25)
    a("v_mul_f32 v24, 0x3b000000, v24")
    for k in range(8): a(f"v_sub_f32 v{32 + k}, v{16 + k}, v24")
    a("v_mul_f32 v26, v32, v32\nv_mul_f32 v27, v33, v33")
    for k in range(2, 8): a(f"v_fmac_f32 v{26 + (k & 1)}, v{32 + k}, v{32 + k}")
    a("v_add_f32 v26, v26, v27\nv_cvt_pk_bf16_f32 v24, 0, v24")
    wave_sum(26, 25)
    for k in range(8): a(f"v_sub_f32 v{16 + k}, v{16 + k}, v24")
    a("""v_mul_f32 v26, 0x3b000000, v26
    v_cvt_pk_bf16_f32 v26, 0, v26
    v_add_f32 v26, 0x3727c5ac, v26
    v_cvt_pk_bf16_f32 v26, 0, v26
    v_sqrt_f32 v26, v26""")
    for k in range(8): a(f"v_cvt_pk_bf16_f32 v{16 + k}, 0, v{16 + k}")
    a("v_cvt_pk_bf16_f32 v26, 0, v26\nv_rcp_f32 v27, v26")
    for k in range(8): a(f"v_mul_f32 v{32 + k}, v{16 + k}, v27")
    for k in range(8): a(f"v_fma_f32 v{16 + k}, -v{32 + k}, v26, v{16 + k}")
    for k in range(8): a(f"v_fmac_f32 v{32 + k}, v{16 + k}, v27")
    for k in range(8): a(f"v_cvt_pk_bf16_f32 v{32 + k}, v{32 + k}, v{32 + k}")
    a("ds_write_b128 v6, v[32:35]\nds_write_b128 v6, v[36:39] offset:16")
    for k in range(4): a(f"ds_read_b128 v[{16 + 4 * k}:{19 + 4 * k}], v7 offset:{16 * k}")
    a("""v_lshlrev_b32 v5, 6, v4
    v_bfe_u32 v6, v0, 4, 1
    v_lshl_add_u32 v5, v6, 5, v5
    v_lshrrev_b32 v6, 5, v0
    v_lshl_add_u32 v5, v6, 4, v5
    s_lshl_b32 s35, s4, 5
    s_lshl_b32 s36, s6, 2
    s_add_u32 s35, s35, s36
    s_add_u32 s35, s35, s7
    s_lshl_b32 s35, s35, 9""")
    a(f"s_add_u32 s35, s35, {W_H1}\nv_add_u32 v9, s35, v5")
    a("s_waitcnt lgkmcnt(0)")
    stamp('a', 3)
    a("s_add_u32 s32, s32, 0x9e3779b9")
    a("s_getreg_b32 s42, hwreg(HW_REG_XCC_ID, 0, 4)\ns_add_u32 s42, s42, s32\ns_add_u32 s42, s42, 1")
    a(f"v_mov_b32 v49, s42\nv_mov_b32 v51, s42\nv_mov_b32 v53, s32\nv_mov_b32 v55, s32\ns_mov_b32 s43, {W_H1B - W_H1}")
    for i in range(16):
        A = 40 + 4 * (i & 1)
        for d in range(4): a(f"v_and_b32 v{A + d}, v{16 + i}, v{12 + d}")
        a(f"s_waitcnt vmcnt({15 - i})")
        c = "0" if i == 0 else "v[32:35]"
        a(f"v_mfma_f32_16x16x32_bf16 v[32:35], v[{A}:{A + 3}], v[{64 + 4 * i}:{67 + 4 * i}], {c}")
    stamp('a', 4)
    a("""v_permlane32_swap_b32 v32, v34
    v_permlane32_swap_b32 v33, v35
    v_add_f32_dpp v48, v34, v32 row_shl:8 row_mask:0xf bank_mask:0xf
    v_add_f32_dpp v50, v35, v33 row_shl:8 row_mask:0xf bank_mask:0xf
    s_mov_b32 exec_lo, 0x00ff00ff
    s_mov_b32 exec_hi, 0x00ff00ff""")
    a(f"buffer_store_dwordx4 v[48:51], v9, {WS}, 0 offen")
    a(f"v_mov_b32 v52, v48\nv_mov_b32 v54, v50\nbuffer_store_dwordx4 v[52:55], v9, {WS}, s43 offen sc1")
    a("s_mov_b64 exec, -1")
    stamp('a', 5)
    a("s_cmp_ge_u32 s33, 28\ns_cbranch_scc1 L_adone")
    a(f"s_lshl_b32 s35, s6, 8\ns_add_u32 s35, s35, {L_XX}\nv_lshl_add_u32 v7, v3, 5, s35")
    a("ds_read_b128 v[16:19], v7\nds_read_b128 v[20:23], v7 offset:16")
    a(f"s_lshl_b32 s35, s4, 2\ns_add_u32 s35, s35, s7\ns_lshl_b32 s35, s35, 13\ns_add_u32 s35, s35, {W_HB}")
    a("v_add_u32 v10, s35, v2\ns_lshl_b32 s36, s6, 10\ns_add_u32 s35, s35, s36\nv_lshl_add_u32 v9, v5, 1, s35")
    a(f"v_add_u32 v11, {L_GU}, v2")
    a("""v_lshrrev_b32 v8, 5, v0
    v_lshlrev_b32 v8, 6, v8
    v_bfe_u32 v6, v0, 2, 2
    v_lshl_add_u32 v8, v6, 4, v8
    v_bfe_u32 v6, v0, 4, 1
    v_lshl_add_u32 v8, v6, 3, v8
    v_and_b32 v6, 3, v0
    v_lshl_add_u32 v8, v6, 1, v8""")
    a(f"v_add_u32 v8, {L_H}, v8")
    a("s_waitcnt lgkmcnt(0)\nv_mov_b32 v49, s32\nv_mov_b32 v51, s32")
    for i in range(8):
        for d in range(4): a(f"v_and_b32 v{128 + 4 * i + d}, v{16 + i}, v{12 + d}")
    lds_spin(F_LD, seg_flag("GU"), [], 'ge', 24)
    stamp('a', 6)
    a(f"ds_read_b128 v[24:27], v1 offset:{F_Q}")
    for i in range(16): a(f"ds_read_b128 v[{64 + 4 * i}:{67 + 4 * i}], v11 offset:{1024 * i}")
    for i in range(8):
        for m in range(2):
            lgk(min(15 - (2 * i + m), 14))
            c = "0" if i == 0 else f"v[{32 + 4 * m}:{35 + 4 * m}]"
            a(f"v_mfma_f32_16x16x32_bf16 v[{32 + 4 * m}:{35 + 4 * m}], v[{128 + 4 * i}:{131 + 4 * i}], v[{64 + 8 * i + 4 * m}:{67 + 8 * i + 4 * m}], {c}")
    a("v_and_b32 v24, v24, v25\nv_and_b32 v26, v26, v27\nv_and_b32 v24, v24, v26\nv_readfirstlane_b32 s41, v24\ns_and_b32 s41, s41, 2")
    a("""v_permlane32_swap_b32 v32, v34
    v_permlane32_swap_b32 v33, v35
    v_permlane32_swap_b32 v36, v38
    v_permlane32_swap_b32 v37, v39
    v_add_f32_dpp v48, v34, v32 row_shl:8 row_mask:0xf bank_mask:0xf
    v_add_f32_dpp v52, v35, v33 row_shl:8 row_mask:0xf bank_mask:0xf
    v_add_f32_dpp v50, v38, v36 row_shl:8 row_mask:0xf bank_mask:0xf
    v_add_f32_dpp v54, v39, v37 row_shl:8 row_mask:0xf bank_mask:0xf
    s_mov_b32 exec_lo, 0x00ff00ff
    s_mov_b32 exec_hi, 0x00ff00ff""")
    st2([f"buffer_store_dwordx4 v[48:51], v9, {WS}, 0 offen", f"buffer_store_dwordx4 v[52:55], v9, {WS}, 0 offen offset:16"])
    a("s_mov_b64 exec, -1\nv_add_u32 v11, 4096, v10")
    stamp('a', 7)
    L = a.label("hb")
    a(f"s_mov_b32 s40, {SPIN}\n{L}:")
    for i in range(8): a(f"buffer_load_dwordx4 v[{64 + 4 * i}:{67 + 4 * i}], v{10 + (i >> 2)}, {WS}, 0 offen offset:{1024 * (i & 3)} sc1")
    a("s_sub_u32 s40, s40, 1\ns_cbranch_scc1 L_end")
    a("s_waitcnt vmcnt(0)")
    a("v_xor_b32 v20, s32, v65")
    for r in [67] + [x for i in range(1, 8) for x in (65 + 4 * i, 67 + 4 * i)]: a(f"v_bitop3_b32 v20, v20, v{r}, s32 bitop3:0xf6")
    a(f"v_cmp_ne_u32 vcc, 0, v20\ns_cbranch_vccnz {L}")
    stamp('a', 8)
    for step in (1, 2, 4):
        for i in range(0, 8, 2 * step):
            a(f"v_add_f32 v{64 + 4 * i}, v{64 + 4 * i}, v{64 + 4 * (i + step)}\nv_add_f32 v{66 + 4 * i}, v{66 + 4 * i}, v{66 + 4 * (i + step)}")
    a(f"""v_cvt_pk_bf16_f32 v64, 0, v64
    v_cvt_pk_bf16_f32 v66, 0, v66
    v_mul_f32 v20, {(LOG2E | 0x80000000):#x}, v64
    v_exp_f32 v20, v20
    v_add_f32 v20, 1.0, v20
    v_rcp_f32 v21, v20
    v_mul_f32 v22, v64, v21
    v_fma_f32 v23, -v22, v20, v64
    v_fma_f32 v23, v23, v21, v22
    v_cmp_class_f32 vcc, v23, 3
    v_cndmask_b32 v22, v23, v22, vcc
    v_cvt_pk_bf16_f32 v22, 0, v22
    v_mul_f32 v22, v22, v66
    v_cvt_pk_bf16_f32 v22, v22, v22
    v_mov_b32 v21, 1
    ds_write_b16 v8, v22
    ds_write_b32 v1, v21 offset:{F_H}""")
    a("L_adone:")
    stamp('a', 9)
    dump('a')
    a("s_endpgm")

    a("L_loader:")
    a("s_setprio 3")
    a("""v_and_b32 v2, 15, v0
    v_lshrrev_b32 v3, 4, v0
    v_xor_b32 v4, v2, v3
    v_lshlrev_b32 v4, 4, v4
    v_lshlrev_b32 v5, 8, v3""")
    for i in range(4): a(f"v_xor_b32 v{8 + i}, {64 * i}, v4\nv_add_u32 v{8 + i}, v{8 + i}, v5")
    a("""v_lshrrev_b32 v4, 2, v2
    v_xor_b32 v4, v4, v3
    v_lshl_add_u32 v12, v4, 6, v5
    v_and_b32 v4, 3, v0
    v_lshl_add_u32 v12, v4, 4, v12
    v_lshrrev_b32 v6, 3, v0
    v_and_b32 v7, 7, v0
    v_mul_u32_u24 v13, 28672, v6
    v_lshl_add_u32 v13, v7, 4, v13
    v_lshlrev_b32 v4, 1, v3
    v_xor_b32 v4, v4, v7
    v_lshlrev_b32 v4, 4, v4
    v_lshl_add_u32 v14, v6, 10, v4
    s_lshl_b32 s35, s4, 24
    s_lshl_b32 s36, s5, 15
    s_add_u32 s35, s35, s36
    s_add_u32 s35, s35, 15728640
    s_mul_i32 s41, s6, 229376
    s_lshl_b32 s37, s33, 7
    s_add_u32 s41, s41, s37
    s_lshl_b32 s42, s4, 19
    s_lshl_b32 s38, s7, 17
    s_add_u32 s42, s42, s38
    s_lshl_b32 s38, s6, 7
    s_add_u32 s42, s42, s38
    s_lshl_b32 s43, s33, 16
    s_add_u32 s43, s43, s38
    s_waitcnt lgkmcnt(0)
    s_add_u32 s10, s10, s35
    s_addc_u32 s11, s11, 0
    s_add_u32 s12, s12, s35
    s_addc_u32 s13, s13, 0""")
    srd(44, 10, 32768)
    nwarm = 0
    if warm:
        srd(48, 30, WSZ)
        per = 1024 // warm; sh = warm.bit_length() - 1
        a(f"s_lshl_b32 s36, s4, 7\ns_add_u32 s36, s36, s5\ns_lshl_b32 s37, s36, 10\ns_add_u32 s37, s37, {W_H2}")
        a(f"v_lshrrev_b32 v16, {per.bit_length() - 1}, v0\nv_lshlrev_b32 v16, 15, v16\nv_and_b32 v17, {per - 1}, v0\nv_lshl_add_u32 v16, v17, {sh}, v16\nv_add_u32 v16, s37, v16")
        a(f"s_lshl_b32 s37, s36, 4\ns_add_u32 s37, s37, {W_ML}\nv_and_b32 v17, 3, v0\nv_lshlrev_b32 v17, 9, v17\nv_add_u32 v17, s37, v17")
        a(f"s_lshl_b32 s36, s4, 2\ns_add_u32 s36, s36, s7\ns_lshl_b32 s36, s36, 3\ns_add_u32 s36, s36, s6\ns_lshl_b32 s36, s36, 10\ns_add_u32 s36, s36, {W_HB}")
        a(f"v_lshlrev_b32 v18, {sh}, v0\nv_add_u32 v18, s36, v18\nv_cmp_gt_u32 vcc, {per}, v0\nv_cndmask_b32 v17, v17, v18, vcc")
        nwarm = 2
    a("s_mov_b32 s40, 0\ns_barrier")
    stamp('l', 1)
    def seg_loads(name):
        r = []
        if name in ("K", "V"):
            base = L_K if name == "K" else L_V
            for i in range(32):
                v = f"v{8 + (i & 3)}" if name == "K" else "v12"
                r.append((base + 1024 * i if i % 4 == 0 else None, f"{v}, s[44:47], s40 offen offset:{1024 * (i & 3)}", "s_addk_i32 s40, 0x1000" if i % 4 == 3 else None))
        if name == "GU":
            for i in range(16): r.append((L_GU + 1024 * i, f"v13, s[{44 + 8 * (i & 1)}:{47 + 8 * (i & 1)}], s41 offen", "s_addk_i32 s41, 0xe00" if i & 1 else None))
        if name == "WO":
            for i in range(16): r.append((L_WO + 1024 * i, "v14, s[44:47], s42 offen", "s_addk_i32 s42, 0x2000"))
        if name == "WD":
            for i in range(8): r.append((L_WD + 1024 * i, "v14, s[44:47], s43 offen", "s_addk_i32 s43, 0x2000"))
        return r
    def seg_setup(name):
        if name == "K": srd(44, 10, 32768); a("s_mov_b32 s40, 0")
        if name == "V": srd(44, 12, 32768); a("s_mov_b32 s40, 0")
        if name == "GU": srd(44, 20, 1835008); srd(52, 22, 1835008)
        if name == "WO": srd(44, 16, 4194304)
        if name == "WD": srd(44, 24, 1835008)
    def emit(segs, n0, pend, final):
        n = n0
        for name in segs:
            if n or name != "K": seg_setup(name)
            for (m0, ad, inc) in seg_loads(name):
                if m0 is not None: a(f"s_mov_b32 m0, {m0}")
                if n >= TH:
                    a(f"s_waitcnt vmcnt({TH - 1})")
                    while pend and pend[0][0] <= n - (TH - 1):
                        signal(pend.pop(0)[1])
                a(f"buffer_load_dwordx4 {ad} nt lds")
                if inc: a(inc)
                n += 1
                if name == "K" and h1trig < 32 and n == h1trig: pend.append((n, seg_flag("Kpart")))
            pend.append((n, seg_flag(name)))
            if name == "V" and nwarm:
                per = 1024 // warm
                if 4 * per < 64: a(f"s_mov_b64 exec, {(1 << (4 * per)) - 1:#x}")
                a(f"buffer_load_dword v21, v16, {WS}, 0 offen sc1")
                a(f"s_mov_b64 exec, {(1 << (per + 4)) - 1:#x}\nbuffer_load_dword v22, v17, {WS}, 0 offen sc1\ns_mov_b64 exec, -1")
                n += 2
        if final:
            a(f"v_mov_b32 v20, 1\nds_write_b32 v1, v20 offset:{F_IS}")
            stamp('l', 8)
            while pend:
                e, f = pend.pop(0)
                a(f"s_waitcnt vmcnt({n - e})")
                signal(f)
        return n
    def signal(f):
        a(f"v_mov_b32 v20, {f}\nds_write_b32 v1, v20 offset:{F_LD}")
        if events[f - 1] != "Kpart": stamp('l', 2 + order.index(events[f - 1]))
    ffn = ("GU", "WD")
    k = min(order.index(x) for x in ffn)
    pend = []
    n = emit(order[:k], 0, pend, False)
    a("s_cmp_ge_u32 s33, 28\ns_cbranch_scc1 L_ldb")
    emit(order[k:], n, list(pend), True)
    a("s_branch L_lde\nL_ldb:")
    emit([x for x in order[k:] if x not in ffn], n, list(pend), True)
    a("L_lde:")
    stamp('l', 9)
    if stamps: srd(48, 30, WSZ)
    dump('l')
    a("L_end:\ns_endpgm")

    head = open(f"cdna_kernels/{NAME}.s.ref").read().split("; Override")[0]
    out = head + f"; Generated by gen/gen.py (hand-designed kernel; see that script for the layout notes)\n; @launch grid=(256,1,1) block=(384,1,1) lds={L_END}\n"
    out += f'.amdgcn_target "amdgcn-amd-amdhsa--gfx950"\n.text\n.globl {NAME}_kernel\n.p2align 8\n.type {NAME}_kernel,@function\n'
    out += a.text()
    out += f""".section .rodata,"a"
.p2align 6
.amdhsa_kernel {NAME}_kernel
  .amdhsa_next_free_vgpr 160
  .amdhsa_next_free_sgpr 102
  .amdhsa_accum_offset 160
  .amdhsa_group_segment_fixed_size 0
  .amdhsa_kernarg_size 96
  .amdhsa_user_sgpr_count 2
  .amdhsa_user_sgpr_kernarg_segment_ptr 1
  .amdhsa_system_sgpr_workgroup_id_x 1
  .amdhsa_float_denorm_mode_32 3
.end_amdhsa_kernel
"""
    return out

if __name__ == "__main__":
    kw = eval("dict(" + (sys.argv[2] if len(sys.argv) > 2 else "") + ")")
    open(sys.argv[1], "w").write(gen(**kw))
```

```python
import sys, argparse
from asmlib import Asm

NAME = "parallel_sum__sliding_block_cached__swiglu_ffn__decode"

L_K, L_V, L_GU, L_WO, L_WD = 0, 32768, 65536, 81920, 98304
L_XX = 106496
L_Q  = L_XX + 2048
L_OW = L_Q + 1280
L_ML = L_OW + 8192
L_O  = L_ML + 128
L_H  = L_O + 256
L_F  = L_H + 128
L_END = L_F + 64
F_LD, F_H, F_IS, F_Q, F_OW, F_O = 0, 4, 8, 16, 32, 48

W_EP  = 0
W_H1  = 0x1000
W_H1B = W_H1 + 256 * 512
W_HB  = W_H1B + 256 * 512
W_ML  = W_HB + 256 * 1024
W_H3  = W_ML + 32 * 512
W_H2  = W_H3 + 32 * 4096
W_END = W_H2 + 1024 * 1024
W_ST  = 0x400000

LOG2E = 0x3fb8aa3b
SCALE = 0x3db504f3
SPIN = 1 << 16

def gen(TH=22, stamps=False, order=("K", "V", "GU", "WO", "WD"), dbgtime=False, padto=0, warm=64, h2wait=True, NA=24, h3depth=4, forceslow=False, h1trig=32, probe=None):
    a = Asm()
    st_n = {}
    def stamp(role, idx):
        if probe and (idx == 0 or probe == (role, idx)):
            a(f"s_memrealtime s[{96 if idx == 0 else 98}:{97 if idx == 0 else 99}]")
            if idx == 0: a("s_waitcnt lgkmcnt(0)\ns_mov_b32 s98, s96")
        if stamps:
            a(f"s_memtime s[{64 + 2 * idx}:{65 + 2 * idx}]")
            if idx == 0: a("s_memrealtime s[94:95]")
            st_n[role] = max(st_n.get(role, 0), idx + 1)
    def dump(role):
        if probe and probe[0] == role:
            L = a.label("pad")
            a(f"s_waitcnt lgkmcnt(0)\ns_sub_u32 s98, s98, s96\ns_mul_i32 s98, s98, 3\ns_add_u32 s96, s96, s98\ns_add_u32 s96, s96, 1500")
            a(f"{L}:\ns_sleep 4\ns_memrealtime s[98:99]\ns_waitcnt lgkmcnt(0)\ns_sub_u32 s35, s98, s96\ns_cmp_lt_i32 s35, 0\ns_cbranch_scc1 {L}")
        if not stamps: return
        a("s_waitcnt lgkmcnt(0)")
        a(f"s_lshl_b32 s60, s2, 9\ns_lshl_b32 s61, s3, 6\ns_add_u32 s60, s60, s61\ns_add_u32 s60, s60, {W_ST}")
        a("s_mov_b64 exec, 1\nv_mov_b32 v126, s60")
        for i in range(16):
            a(f"v_mov_b32 v127, s{64 + 2 * i}\nbuffer_store_dword v127, v126, s[48:51], 0 offen offset:{4 * i}")
    def srd(d, p, size):
        a(f"s_mov_b32 s{d}, s{p}\ns_and_b32 s{d + 1}, s{p + 1}, 0xffff\ns_mov_b32 s{d + 2}, {size}\ns_mov_b32 s{d + 3}, 0x20000")
    WS = "s[48:51]"
    WSZ = W_ST + 256 * 512 if stamps else W_END
    events = []
    for nm in order:
        if nm == "K" and h1trig < 32: events.append("Kpart")
        events.append(nm)
    def seg_flag(name):
        return events.index(name) + 1
    def lgk(n):
        a(f"s_waitcnt lgkmcnt({0 if stamps or probe else n})")
    def st2(ops):
        L1 = a.label("slow"); L2 = a.label("st")
        a(f"s_cmp_eq_u32 s41, 0\ns_cbranch_scc1 {L1}")
        for o in ops: a(o)
        a(f"s_branch {L2}\n{L1}:")
        for o in ops: a(o + " sc1" if o.startswith("buffer_store") else o)
        a(f"{L2}:")

    def lds_spin(flag_off, want, reads, kind, tmp):
        L = a.label("spin"); D = a.label("spun")
        a(f"s_mov_b32 s40, {SPIN}")
        a(f"{L}:")
        if kind == 'ge':
            a(f"ds_read_b32 v{tmp}, v1 offset:{flag_off}")
        else:
            a(f"ds_read_b128 v[{tmp}:{tmp + 3}], v1 offset:{flag_off}")
        for r in reads: a(r)
        a("s_sub_u32 s40, s40, 1\ns_cbranch_scc1 L_end")
        a("s_waitcnt lgkmcnt(0)")
        if kind == 'ge':
            a(f"v_cmp_gt_u32 vcc, {want}, v{tmp}")
        else:
            a(f"v_and_b32 v{tmp}, v{tmp}, v{tmp + 1}\nv_and_b32 v{tmp + 2}, v{tmp + 2}, v{tmp + 3}\nv_and_b32 v{tmp}, v{tmp}, v{tmp + 2}")
            a(f"v_cmp_eq_u32 vcc, 0, v{tmp}")
        a(f"s_cbranch_vccnz {L}")

    a(f"{NAME}_kernel:")
    stamp('all', 0)
    if dbgtime or padto: a("s_memrealtime s[96:97]")
    a("""s_cmp_ge_u32 s2, 256
    s_cbranch_scc1 L_end
    s_load_dwordx16 s[8:23], s[0:1], 0
    s_load_dwordx8 s[24:31], s[0:1], 64
    v_lshrrev_b32 v2, 6, v0
    v_and_b32 v0, 63, v0
    v_readfirstlane_b32 s3, v2
    s_and_b32 s4, s2, 7
    s_lshr_b32 s5, s2, 3
    s_and_b32 s6, s5, 7
    s_lshr_b32 s7, s5, 3
    s_lshl_b32 s33, s7, 3
    s_add_u32 s33, s33, s4""")
    a(f"v_mov_b32 v1, {L_F}")
    a("s_cmp_eq_u32 s3, 0\ns_cbranch_scc1 L_aux\ns_cmp_eq_u32 s3, 1\ns_cbranch_scc1 L_loader")

    a("s_sub_u32 s34, s3, 2")
    a("s_cmp_eq_u32 s34, 0\ns_cbranch_scc0 L_nopf")
    a(f"s_getpc_b64 s[36:37]\nL_pc:\ns_sub_u32 s36, s36, L_pc-{NAME}_kernel\ns_subb_u32 s37, s37, 0")
    a(f"v_lshlrev_b32 v2, 7, v0\nv_min_u32 v2, L_end-{NAME}_kernel, v2\nglobal_load_dword v124, v2, s[36:37]")
    a(f"v_add_u32 v2, 8192, v2\nv_min_u32 v2, L_end-{NAME}_kernel, v2\nglobal_load_dword v124, v2, s[36:37]")
    a("v_mov_b32 v4, 0\nv_mov_b32 v5, 0\nv_mov_b32 v6, 0\nv_mov_b32 v7, 0")
    for i in range(4): a(f"ds_write_b128 v1, v[4:7] offset:{16 * i}")
    a("L_nopf:")
    a("""v_and_b32 v2, 15, v0
    v_lshrrev_b32 v3, 4, v0""")
    a("""v_xor_b32 v4, v2, v3
    v_lshlrev_b32 v4, 4, v4
    v_lshlrev_b32 v5, 8, v2
    s_lshl_b32 s35, s34, 13
    v_add_u32 v5, s35, v5""")
    for s in range(4):
        a(f"v_xor_b32 v{8 + s}, {64 * s}, v4\nv_add_u32 v{8 + s}, v{8 + s}, v5")
    a("""v_lshrrev_b32 v4, 2, v2
    v_lshrrev_b32 v5, 1, v3
    v_xor_b32 v5, v5, v4
    v_lshlrev_b32 v5, 6, v5
    v_lshl_add_u32 v5, v4, 8, v5
    v_and_b32 v6, 1, v3
    v_lshl_add_u32 v5, v6, 5, v5
    v_and_b32 v6, 3, v0
    v_lshl_add_u32 v5, v6, 3, v5""")
    a(f"s_add_u32 s35, s35, {L_V}\nv_add_u32 v12, s35, v5\nv_xor_b32 v13, 128, v12")
    a("""v_lshl_add_u32 v5, v3, 2, v4
    v_lshrrev_b32 v7, 1, v5
    v_and_b32 v7, 3, v7
    v_xor_b32 v7, s34, v7
    v_lshlrev_b32 v7, 5, v7
    v_lshl_add_u32 v7, v5, 7, v7
    v_lshl_add_u32 v14, v6, 3, v7""")
    a(f"v_add_u32 v14, {L_WO}, v14")
    a(f"v_mul_u32_u24 v15, 320, v6\nv_lshl_add_u32 v15, v3, 4, v15\nv_add_u32 v15, {L_Q}, v15")
    a("""v_lshrrev_b32 v4, 5, v0
    v_lshlrev_b32 v4, 11, v4
    v_and_b32 v5, 31, v0
    v_lshl_add_u32 v16, v5, 4, v4
    s_lshl_b32 s35, s4, 14
    s_lshl_b32 s36, s34, 12
    s_add_u32 s35, s35, s36""")
    a(f"s_add_u32 s35, s35, {W_H1}\nv_add_u32 v16, s35, v16")
    a("s_lshl_b32 s35, s34, 2\nv_add_u32 v18, s35, v1")
    a(f"s_mul_i32 s35, s34, 320\ns_add_u32 s35, s35, {L_Q}\nv_lshl_add_u32 v17, v0, 2, s35")
    a("s_waitcnt lgkmcnt(0)")
    a("s_load_dword s32, s[30:31], 0")
    srd(48, 30, WSZ)
    a("s_barrier")
    if warm:
        a("s_cmp_eq_u32 s34, 1\ns_cbranch_scc0 L_nowarm")
        a(f"s_lshl_b32 s35, s4, 5\ns_lshl_b32 s36, s6, 2\ns_add_u32 s35, s35, s36\ns_add_u32 s35, s35, s7\ns_lshl_b32 s35, s35, 9\ns_add_u32 s35, s35, {W_H1}")
        a(f"v_lshlrev_b32 v4, {warm.bit_length() - 1}, v0\ns_mov_b64 exec, {(1 << (512 // warm)) - 1}\nbuffer_load_dword v124, v4, {WS}, s35 offen sc1\ns_mov_b64 exec, -1\nL_nowarm:")
    a("s_waitcnt lgkmcnt(0)")
    a("s_add_u32 s32, s32, 0x9e3779b9")
    a("s_getreg_b32 s42, hwreg(HW_REG_XCC_ID, 0, 4)\ns_add_u32 s42, s42, s32\ns_add_u32 s42, s42, 1")
    kreads = [f"ds_read_b128 v[{32 + 16 * t + 4 * s}:{35 + 16 * t + 4 * s}], v{8 + s} offset:{L_K + 4096 * t}" for t in range(2) for s in range(4)]
    lds_spin(F_LD, seg_flag("Kpart" if h1trig < 32 else "K"), [], 'ge', 20)
    stamp('c', 1)
    L = a.label("h1"); L2 = a.label("h1k")
    a(f"s_mov_b32 s43, 0\ns_mov_b32 s41, 3\ns_mov_b32 s39, 0")
    if forceslow: a(f"s_mov_b32 s39, {NA}")
    a(f"{L}:\ns_cmp_lt_u32 s39, {NA}\ns_cbranch_scc1 {L2}")
    a(f"s_mov_b32 s43, {W_H1B - W_H1}\ns_mov_b32 s41, 1\ns_mov_b32 s42, s32\n{L2}:")
    for i in range(4): a(f"buffer_load_dwordx4 v[{96 + 4 * i}:{99 + 4 * i}], v16, {WS}, s43 offen offset:{512 * i} sc1")
    a(f"s_add_u32 s39, s39, 1\ns_cmp_gt_u32 s39, {SPIN}\ns_cbranch_scc1 L_end")
    if h1trig == 32:
        for r in kreads: a(r)
    a("s_waitcnt vmcnt(0)")
    a("v_xor_b32 v20, s42, v97")
    for r in (99, 101, 103, 105, 107, 109, 111): a(f"v_bitop3_b32 v20, v20, v{r}, s42 bitop3:0xf6")
    a("""v_add_f32 v96, v96, v100
    v_add_f32 v98, v98, v102
    v_add_f32 v104, v104, v108
    v_add_f32 v106, v106, v110""")
    a(f"v_cmp_ne_u32 vcc, 0, v20\nv_add_f32 v96, v96, v104\nv_add_f32 v98, v98, v106\ns_cbranch_vccnz {L}")
    stamp('c', 2)
    a("""v_cvt_pk_bf16_f32 v96, v96, v98
    v_mov_b32 v21, s41""")
    a(f"ds_write_b32 v17, v96\nds_write_b32 v18, v21 offset:{F_Q}")
    if h1trig < 32: lds_spin(F_LD, seg_flag("K"), kreads, 'ge', 20)
    lds_spin(F_Q, 0, [f"ds_read_b128 v[{96 + 4 * s}:{99 + 4 * s}], v15 offset:{64 * s}" for s in range(4)], 'all4', 20)
    stamp('c', 3)
    for s in range(4):
        for t in range(2):
            c = "0" if s == 0 else f"v[{24 + 4 * t}:{27 + 4 * t}]"
            a(f"v_mfma_f32_16x16x32_bf16 v[{24 + 4 * t}:{27 + 4 * t}], v[{32 + 16 * t + 4 * s}:{35 + 16 * t + 4 * s}], v[{96 + 4 * s}:{99 + 4 * s}], {c}")
    a("v_readfirstlane_b32 s41, v20\ns_and_b32 s41, s41, 2")
    a(f"s_mov_b32 s35, {SCALE:#x}\ns_mov_b32 s36, {LOG2E:#x}")
    for r in range(24, 32): a(f"v_cvt_pk_bf16_f32 v{r}, 0, v{r}")
    for r in range(24, 32): a(f"v_mul_f32 v{r}, s35, v{r}")
    for r in range(24, 32): a(f"v_cvt_pk_bf16_f32 v{r}, 0, v{r}")
    a("""v_max3_f32 v20, v24, v25, v26
    v_max3_f32 v21, v27, v28, v29
    v_max3_f32 v20, v20, v30, v31
    v_max_f32 v20, v20, v21
    v_mov_b32 v21, v20
    v_permlane16_swap_b32 v20, v21
    v_max_f32 v20, v20, v21
    v_mov_b32 v21, v20
    v_permlane32_swap_b32 v20, v21
    v_max_f32 v20, v20, v21
    v_mul_f32 v22, s36, v20""")
    for r in range(24, 32): a(f"v_fma_f32 v{r}, v{r}, s36, -v22")
    for r in range(24, 32): a(f"v_exp_f32 v{r}, v{r}")
    for k in range(4): a(f"v_cvt_pk_bf16_f32 v{32 + k}, v{24 + 2 * k}, v{25 + 2 * k}")
    stamp('c', 4)
    lds_spin(F_LD, seg_flag("V"), [f"ds_read_b64_tr_b16 v[{64 + 4 * tq + 2 * h}:{65 + 4 * tq + 2 * h}], v{12 + h} offset:{1024 * tq}" for tq in range(8) for h in range(2)], 'ge', 20)
    for tq in range(8):
        t, rg = tq >> 2, tq & 3
        for h in range(2):
            c = "0" if tq == 0 else f"v[{40 + 4 * h}:{43 + 4 * h}]"
            a(f"v_mfma_f32_4x4x4_16b_bf16 v[{40 + 4 * h}:{43 + 4 * h}], v[{32 + 2 * t}:{33 + 2 * t}], v[{64 + 4 * tq + 2 * h}:{65 + 4 * tq + 2 * h}], {c} cbsz:4 abid:{4 * rg}")
        if tq == 0:
            a("v_add_f32 v24, v24, v25\nv_add_f32 v26, v26, v27")
        if tq == 1:
            a("v_add_f32 v28, v28, v29\nv_add_f32 v30, v30, v31")
        if tq == 2:
            a("v_add_f32 v24, v24, v26\nv_add_f32 v28, v28, v30")
        if tq == 3:
            a("v_add_f32 v23, v24, v28\nv_mov_b32 v21, v23")
        if tq == 4:
            a("v_permlane16_swap_b32 v23, v21\nv_add_f32 v23, v23, v21")
        if tq == 5:
            a("v_mov_b32 v21, v23")
        if tq == 6:
            a("v_permlane32_swap_b32 v23, v21\nv_add_f32 v23, v23, v21")
    a(f"s_lshl_b32 s35, s34, 11\ns_add_u32 s35, s35, {L_OW}\nv_lshl_add_u32 v19, v0, 2, s35")
    a(f"s_lshl_b32 s35, s34, 5\ns_add_u32 s35, s35, {L_ML}\nv_lshl_add_u32 v20, v0, 3, s35\nv_mov_b32 v21, 1")
    for h in range(4): a(f"ds_write2st64_b32 v19, v{40 + h}, v{44 + h} offset0:{2 * h} offset1:{2 * h + 1}")
    a("s_mov_b64 exec, 15\nds_write_b64 v20, v[22:23]\ns_mov_b64 exec, -1")
    a(f"ds_write_b32 v18, v21 offset:{F_OW}")
    stamp('c', 5)
    a(f"s_lshl_b32 s35, s34, 9\ns_add_u32 s35, s35, {L_OW}\nv_lshl_add_u32 v19, v0, 3, s35")
    a(f"s_lshl_b32 s35, s34, 3\ns_add_u32 s35, s35, {L_ML}\nv_mov_b32 v24, s35")
    a(f"s_lshl_b32 s35, s4, 2\ns_add_u32 s35, s35, s34\ns_lshl_b32 s35, s35, 5\ns_add_u32 s35, s35, s5")
    a(f"s_lshl_b32 s36, s35, 10\ns_add_u32 s36, s36, {W_H2}\nv_lshl_add_u32 v25, v0, 4, s36")
    a(f"s_lshl_b32 s36, s35, 4\ns_add_u32 s36, s36, {W_ML}\nv_mov_b32 v26, s36")
    reads = [f"ds_read_b64 v[{32 + 2 * w}:{33 + 2 * w}], v24 offset:{32 * w}" for w in range(4)]
    reads += [f"ds_read_b64 v[{40 + 2 * w}:{41 + 2 * w}], v19 offset:{2048 * w}" for w in range(4)]
    lds_spin(F_OW, 0, reads, 'all4', 20)
    stamp('c', 6)
    a("""v_max3_f32 v48, v32, v34, v36
    v_max_f32 v48, v48, v38
    v_sub_f32 v32, v32, v48
    v_sub_f32 v34, v34, v48
    v_sub_f32 v36, v36, v48
    v_sub_f32 v38, v38, v48
    v_exp_f32 v32, v32
    v_exp_f32 v34, v34
    v_exp_f32 v36, v36
    v_exp_f32 v38, v38
    v_mov_b32 v53, s32
    v_mov_b32 v55, s32
    v_mul_f32 v52, v32, v40
    v_mul_f32 v54, v32, v41
    v_fmac_f32 v52, v34, v42
    v_fmac_f32 v54, v34, v43
    v_fmac_f32 v52, v36, v44
    v_fmac_f32 v54, v36, v45
    v_fmac_f32 v52, v38, v46
    v_fmac_f32 v54, v38, v47""")
    a("""v_mul_f32 v50, v32, v33
    v_mov_b32 v49, s32
    v_fmac_f32 v50, v34, v35
    v_mov_b32 v51, s32
    v_fmac_f32 v50, v36, v37
    v_fmac_f32 v50, v38, v39""")
    st2([f"buffer_store_dwordx4 v[52:55], v25, {WS}, 0 offen", "s_mov_b64 exec, 1", f"buffer_store_dwordx4 v[48:51], v26, {WS}, 0 offen"])
    a("s_mov_b64 exec, -1")
    stamp('c', 7)
    a(f"s_lshl_b32 s35, s4, 2\ns_add_u32 s35, s35, s7")
    a(f"s_lshl_b32 s36, s35, 15\ns_lshl_b32 s37, s34, 8\ns_add_u32 s36, s36, s37\ns_add_u32 s36, s36, {W_H2}")
    a("v_lshlrev_b32 v24, 10, v3\nv_lshl_add_u32 v24, v2, 4, v24\nv_add_u32 v24, s36, v24")
    a(f"s_lshl_b32 s36, s35, 9\ns_add_u32 s36, s36, {W_ML}\nv_lshl_add_u32 v25, v3, 4, s36")
    for i in range(1, 8): a(f"s_movk_i32 s{51 + i}, {4096 * i}")
    a("""v_bfe_u32 v29, v0, 1, 2
    v_lshlrev_b32 v29, 4, v29
    v_bfe_u32 v30, v0, 3, 1
    v_lshl_add_u32 v29, v30, 3, v29
    v_and_b32 v30, 1, v0
    v_lshl_add_u32 v29, v30, 2, v29""")
    a(f"s_lshl_b32 s35, s34, 6\ns_add_u32 s35, s35, {L_O}\nv_add_u32 v29, s35, v29")
    if h2wait: lds_spin(F_IS, 1, [], 'ge', 20)
    L = a.label("h2")
    a(f"s_mov_b32 s40, {SPIN}\n{L}:")
    for i in range(8): a(f"buffer_load_dwordx4 v[{32 + 4 * i}:{35 + 4 * i}], v25, {WS}, 0 offen offset:{64 * i} sc1")
    for i in range(8): a(f"buffer_load_dwordx4 v[{64 + 4 * i}:{67 + 4 * i}], v24, {WS}, {'s%d' % (51 + i) if i else 0} offen sc1")
    a("s_sub_u32 s40, s40, 1\ns_cbranch_scc1 L_end")
    a("s_waitcnt vmcnt(8)")
    a("v_xor_b32 v20, s32, v33")
    for r in [35] + [x for i in range(1, 8) for x in (33 + 4 * i, 35 + 4 * i)]: a(f"v_bitop3_b32 v20, v20, v{r}, s32 bitop3:0xf6")
    a("""v_max3_f32 v21, v32, v36, v40
    v_max3_f32 v22, v44, v48, v52
    v_max3_f32 v21, v21, v56, v60
    v_max_f32 v21, v21, v22
    v_mov_b32 v22, v21
    v_permlane16_swap_b32 v21, v22
    v_max_f32 v21, v21, v22
    v_mov_b32 v22, v21
    v_permlane32_swap_b32 v21, v22
    v_max_f32 v21, v21, v22""")
    for i in range(8): a(f"v_sub_f32 v{32 + 4 * i}, v{32 + 4 * i}, v21")
    for i in range(8): a(f"v_exp_f32 v{32 + 4 * i}, v{32 + 4 * i}")
    a("v_mul_f32 v22, v32, v34")
    for i in range(1, 8): a(f"v_fmac_f32 v22, v{32 + 4 * i}, v{34 + 4 * i}")
    a("""v_mov_b32 v23, v22
    v_permlane16_swap_b32 v22, v23
    v_add_f32 v22, v22, v23
    v_mov_b32 v23, v22
    v_permlane32_swap_b32 v22, v23
    v_add_f32 v22, v22, v23
    v_rcp_f32 v23, v22""")
    for i in range(8):
        a(f"s_waitcnt vmcnt({7 - i})")
        if i == 0: a("v_mul_f32 v30, v32, v64\nv_mul_f32 v31, v32, v66")
        else: a(f"v_fmac_f32 v30, v{32 + 4 * i}, v{64 + 4 * i}\nv_fmac_f32 v31, v{32 + 4 * i}, v{66 + 4 * i}")
        a(f"v_bitop3_b32 v20, v20, v{65 + 4 * i}, s32 bitop3:0xf6\nv_bitop3_b32 v20, v20, v{67 + 4 * i}, s32 bitop3:0xf6")
    a(f"v_cmp_ne_u32 vcc, 0, v20\ns_cbranch_vccnz {L}")
    stamp('c', 8)
    a("""v_permlane16_swap_b32 v30, v31
    v_add_f32 v30, v30, v31
    v_mov_b32 v31, v30
    v_permlane32_swap_b32 v30, v31
    v_add_f32 v30, v30, v31
    v_mul_f32 v30, v30, v23
    v_mov_b32 v31, v30
    v_permlane16_swap_b32 v30, v31
    v_cvt_pk_bf16_f32 v30, v30, v31
    v_mov_b32 v21, 1""")
    a(f"ds_write_b32 v29, v30\nds_write_b32 v18, v21 offset:{F_O}")
    lds_spin(F_LD, seg_flag("WO"), [], 'ge', 20)
    stamp('c', 9)
    for s in range(4):
        for x in range(2): a(f"ds_read_b64_tr_b16 v[{32 + 4 * s + 2 * x}:{33 + 4 * s + 2 * x}], v14 offset:{4096 * s + 2048 * x}")
    a(f"v_lshlrev_b32 v24, 4, v3\nv_add_u32 v24, {L_O}, v24")
    a("v_mov_b32 v96, 0\nv_mov_b32 v97, 0\nv_mov_b32 v98, 0\nv_mov_b32 v99, 0")
    a("s_cmp_ge_u32 s33, 28\ns_cbranch_scc1 L_noffn")
    lds_spin(F_LD, seg_flag("WD"), [], 'ge', 20)
    for s in range(2):
        for x in range(2): a(f"ds_read_b64_tr_b16 v[{48 + 4 * s + 2 * x}:{49 + 4 * s + 2 * x}], v14 offset:{L_WD - L_WO + 4096 * s + 2048 * x}")
    lds_spin(F_H, 1, [f"ds_read_b128 v[{56 + 4 * s}:{59 + 4 * s}], v24 offset:{L_H - L_O + 64 * s}" for s in range(2)], 'ge', 20)
    for s in range(2): a(f"v_mfma_f32_16x16x32_bf16 v[96:99], v[{56 + 4 * s}:{59 + 4 * s}], v[{48 + 4 * s}:{51 + 4 * s}], v[96:99]")
    a("L_noffn:")
    a(f"s_lshl_b32 s35, s6, 2\ns_add_u32 s35, s35, s34\ns_lshl_b32 s35, s35, 5\ns_lshl_b32 s36, s4, 2\ns_add_u32 s35, s35, s36\ns_add_u32 s35, s35, s7")
    a(f"s_lshl_b32 s35, s35, 7\ns_add_u32 s35, s35, {W_H3}\nv_lshl_add_u32 v25, v0, 3, s35")
    lds_spin(F_O, 0, [f"ds_read_b128 v[{64 + 4 * s}:{67 + 4 * s}], v24 offset:{64 * s}" for s in range(4)], 'all4', 20)
    stamp('c', 10)
    for s in range(4): a(f"v_mfma_f32_16x16x32_bf16 v[96:99], v[{64 + 4 * s}:{67 + 4 * s}], v[{32 + 4 * s}:{35 + 4 * s}], v[96:99]")
    a("v_mov_b32 v101, s32\nv_mov_b32 v103, s32")
    a("v_mov_b32 v100, v96\nv_mov_b32_dpp v102, v96 quad_perm:[1,1,3,3] row_mask:0xf bank_mask:0xf")
    a(f"s_mov_b64 exec, 0x5555\nbuffer_store_dwordx4 v[100:103], v25, {WS}, 0 offen sc1\ns_mov_b64 exec, -1")
    stamp('c', 11)
    a("s_cmp_lt_u32 s2, 32\ns_cbranch_scc0 L_cdone\ns_cmp_eq_u32 s34, 0\ns_cbranch_scc0 L_cdone")
    a(f"s_lshl_b32 s35, s2, 12\ns_add_u32 s35, s35, {W_H3}\nv_lshl_add_u32 v24, v0, 4, s35")
    a("v_and_b32 v25, 7, v0\ns_lshl_b32 s35, s2, 5\nv_lshl_add_u32 v25, v25, 2, s35")
    srd(44, 8, 1024)
    a("buffer_load_dword v26, v25, s[44:47], 0 offen")
    srd(52, 26, 1024)
    L = a.label("h3"); LD = a.label("h3d")
    def h3issue(k):
        for i in range(4): a(f"buffer_load_dwordx4 v[{32 + 16 * k + 4 * i}:{35 + 16 * k + 4 * i}], v24, {WS}, 0 offen offset:{1024 * i} sc1")
    a(f"s_mov_b32 s40, {SPIN}")
    for k in range(h3depth - 1): h3issue(k)
    a(f"{L}:")
    for k in range(h3depth):
        h3issue((k + h3depth - 1) % h3depth)
        a(f"s_waitcnt vmcnt({4 * (h3depth - 1)})")
        b = 32 + 16 * k
        a(f"v_xor_b32 v20, s32, v{b + 1}")
        for r in range(b + 3, b + 16, 2): a(f"v_bitop3_b32 v20, v20, v{r}, s32 bitop3:0xf6")
        a(f"v_add_f32 v22, v{b}, v{b + 4}\nv_add_f32 v23, v{b + 2}, v{b + 6}\nv_cmp_ne_u32 vcc, 0, v20")
        a(f"v_add_f32 v30, v{b + 8}, v{b + 12}\nv_add_f32 v31, v{b + 10}, v{b + 14}\ns_cbranch_vccz {LD}")
    a(f"s_sub_u32 s40, s40, 1\ns_cbranch_scc0 {L}\ns_branch L_end\n{LD}:")
    stamp('c', 12)
    a("""v_add_f32 v22, v22, v30
    v_add_f32 v23, v23, v31
    v_lshlrev_b32 v27, 16, v26
    v_and_b32 v28, 0xffff0000, v26
    v_permlane32_swap_b32 v22, v23
    v_add_f32 v22, v22, v23
    v_mov_b32 v23, v22
    v_permlane16_swap_b32 v22, v23
    v_add_f32 v22, v22, v23
    v_add_f32_dpp v22, v22, v22 row_ror:8 row_mask:0xf bank_mask:0xf
    v_mov_b32 v23, v22
    v_permlane32_swap_b32 v22, v23
    v_add_f32 v22, v22, v27
    v_add_f32 v23, v23, v28
    v_cvt_pk_bf16_f32 v22, v22, v23
    s_mov_b64 exec, 0xff
    buffer_store_dword v22, v25, s[52:55], 0 offen""")
    a("s_cmp_eq_u32 s2, 0\ns_cbranch_scc0 L_cdone\ns_mov_b64 exec, 1\nv_mov_b32 v25, s32\nbuffer_store_dword v25, off, s[48:51], 0")
    a("L_cdone:")
    stamp('c', 13)
    if padto:
        a(f"s_waitcnt lgkmcnt(0)\ns_add_u32 s96, s96, {padto}\nL_pad:\ns_sleep 8\ns_memrealtime s[98:99]\ns_waitcnt lgkmcnt(0)\ns_sub_u32 s35, s98, s96\ns_cmp_lt_i32 s35, 0\ns_cbranch_scc1 L_pad")
    if dbgtime:
        a("s_cmp_eq_u32 s34, 0\ns_cbranch_scc0 L_nodbg\ns_memrealtime s[98:99]")
        srd(44, 28, 256)
        a("s_waitcnt lgkmcnt(0)\ns_not_b32 s96, s96\ns_mov_b64 exec, 1\nv_mov_b32 v24, s96\nv_mov_b32 v25, s98\ns_lshl_b32 s35, s4, 2\nv_mov_b32 v26, s35")
        a("buffer_atomic_umax v24, off, s[44:47], 0\nbuffer_atomic_umax v25, off, s[44:47], 0 offset:4\nbuffer_atomic_umax v24, v26, s[44:47], 0 offen offset:8\nL_nodbg:")
    dump('c')
    a("s_endpgm")

    a("L_aux:")
    a("""v_lshlrev_b32 v2, 4, v0
    v_lshrrev_b32 v3, 3, v0
    v_and_b32 v4, 7, v0
    v_lshlrev_b32 v5, 17, v3
    v_lshl_add_u32 v5, v4, 4, v5
    s_lshl_b32 s35, s7, 20
    s_lshl_b32 s36, s4, 10
    s_add_u32 s35, s35, s36
    s_lshl_b32 s36, s6, 7
    s_add_u32 s35, s35, s36
    v_add_u32 v5, s35, v5
    s_mov_b32 s36, 0
    s_waitcnt lgkmcnt(0)""")
    srd(44, 8, 1024)
    a("buffer_load_dwordx4 v[8:11], v2, s[44:47], 0 offen")
    srd(44, 14, 4194304)
    for i in range(16):
        a(f"buffer_load_dwordx4 v[{64 + 4 * i}:{67 + 4 * i}], v5, s[44:47], s36 offen nt")
        if i < 15: a("s_addk_i32 s36, 0x2000")
    a("s_load_dword s32, s[30:31], 0")
    srd(48, 30, WSZ)
    a("s_barrier")
    stamp('a', 1)
    a("""v_and_b32 v6, 1, v0
    v_lshlrev_b32 v6, 4, v6
    v_mov_b32 v7, 0xffff
    v_lshlrev_b32 v6, v6, v7
    v_bfe_u32 v7, v0, 1, 2""")
    for d in range(4): a(f"v_cmp_eq_u32 vcc, {d}, v7\nv_cndmask_b32 v{12 + d}, 0, v6, vcc")
    a(f"v_lshlrev_b32 v6, 5, v0\nv_add_u32 v6, {L_XX}, v6")
    a(f"s_lshl_b32 s35, s7, 9\ns_add_u32 s35, s35, {L_XX}\nv_lshl_add_u32 v7, v3, 6, s35")
    a("s_waitcnt vmcnt(16)")
    stamp('a', 2)
    for k in range(4): a(f"v_lshlrev_b32 v{16 + 2 * k}, 16, v{8 + k}\nv_and_b32 v{17 + 2 * k}, 0xffff0000, v{8 + k}")
    def wave_sum(r, t):
        for n in (8, 4, 2, 1): a(f"v_add_f32_dpp v{r}, v{r}, v{r} row_ror:{n} row_mask:0xf bank_mask:0xf")
        a(f"v_mov_b32 v{t}, v{r}\nv_permlane16_swap_b32 v{r}, v{t}\nv_add_f32 v{r}, v{r}, v{t}")
        a(f"v_mov_b32 v{t}, v{r}\nv_permlane32_swap_b32 v{r}, v{t}\nv_add_f32 v{r}, v{r}, v{t}")
    a("""v_add_f32 v24, v16, v17
    v_add_f32 v25, v18, v19
    v_add_f32 v26, v20, v21
    v_add_f32 v27, v22, v23
    v_add_f32 v24, v24, v25
    v_add_f32 v26, v26, v27
    v_add_f32 v24, v24, v26""")
    wave_sum(24, 25)
    a("v_mul_f32 v24, 0x3b000000, v24")
    for k in range(8): a(f"v_sub_f32 v{32 + k}, v{16 + k}, v24")
    a("v_mul_f32 v26, v32, v32\nv_mul_f32 v27, v33, v33")
    for k in range(2, 8): a(f"v_fmac_f32 v{26 + (k & 1)}, v{32 + k}, v{32 + k}")
    a("v_add_f32 v26, v26, v27\nv_cvt_pk_bf16_f32 v24, 0, v24")
    wave_sum(26, 25)
    for k in range(8): a(f"v_sub_f32 v{16 + k}, v{16 + k}, v24")
    a("""v_mul_f32 v26, 0x3b000000, v26
    v_cvt_pk_bf16_f32 v26, 0, v26
    v_add_f32 v26, 0x3727c5ac, v26
    v_cvt_pk_bf16_f32 v26, 0, v26
    v_sqrt_f32 v26, v26""")
    for k in range(8): a(f"v_cvt_pk_bf16_f32 v{16 + k}, 0, v{16 + k}")
    a("v_cvt_pk_bf16_f32 v26, 0, v26\nv_rcp_f32 v27, v26")
    for k in range(8): a(f"v_mul_f32 v{32 + k}, v{16 + k}, v27")
    for k in range(8): a(f"v_fma_f32 v{16 + k}, -v{32 + k}, v26, v{16 + k}")
    for k in range(8): a(f"v_fmac_f32 v{32 + k}, v{16 + k}, v27")
    for k in range(8): a(f"v_cvt_pk_bf16_f32 v{32 + k}, v{32 + k}, v{32 + k}")
    a("ds_write_b128 v6, v[32:35]\nds_write_b128 v6, v[36:39] offset:16")
    for k in range(4): a(f"ds_read_b128 v[{16 + 4 * k}:{19 + 4 * k}], v7 offset:{16 * k}")
    a("""v_lshlrev_b32 v5, 6, v4
    v_bfe_u32 v6, v0, 4, 1
    v_lshl_add_u32 v5, v6, 5, v5
    v_lshrrev_b32 v6, 5, v0
    v_lshl_add_u32 v5, v6, 4, v5
    s_lshl_b32 s35, s4, 5
    s_lshl_b32 s36, s6, 2
    s_add_u32 s35, s35, s36
    s_add_u32 s35, s35, s7
    s_lshl_b32 s35, s35, 9""")
    a(f"s_add_u32 s35, s35, {W_H1}\nv_add_u32 v9, s35, v5")
    a("s_waitcnt lgkmcnt(0)")
    stamp('a', 3)
    a("s_add_u32 s32, s32, 0x9e3779b9")
    a("s_getreg_b32 s42, hwreg(HW_REG_XCC_ID, 0, 4)\ns_add_u32 s42, s42, s32\ns_add_u32 s42, s42, 1")
    a(f"v_mov_b32 v49, s42\nv_mov_b32 v51, s42\nv_mov_b32 v53, s32\nv_mov_b32 v55, s32\ns_mov_b32 s43, {W_H1B - W_H1}")
    for i in range(16):
        A = 40 + 4 * (i & 1)
        for d in range(4): a(f"v_and_b32 v{A + d}, v{16 + i}, v{12 + d}")
        a(f"s_waitcnt vmcnt({15 - i})")
        c = "0" if i == 0 else "v[32:35]"
        a(f"v_mfma_f32_16x16x32_bf16 v[32:35], v[{A}:{A + 3}], v[{64 + 4 * i}:{67 + 4 * i}], {c}")
    stamp('a', 4)
    a("""v_permlane32_swap_b32 v32, v34
    v_permlane32_swap_b32 v33, v35
    v_add_f32_dpp v48, v34, v32 row_shl:8 row_mask:0xf bank_mask:0xf
    v_add_f32_dpp v50, v35, v33 row_shl:8 row_mask:0xf bank_mask:0xf
    s_mov_b32 exec_lo, 0x00ff00ff
    s_mov_b32 exec_hi, 0x00ff00ff""")
    a(f"buffer_store_dwordx4 v[48:51], v9, {WS}, 0 offen")
    a(f"v_mov_b32 v52, v48\nv_mov_b32 v54, v50\nbuffer_store_dwordx4 v[52:55], v9, {WS}, s43 offen sc1")
    a("s_mov_b64 exec, -1")
    stamp('a', 5)
    a("s_cmp_ge_u32 s33, 28\ns_cbranch_scc1 L_adone")
    a(f"s_lshl_b32 s35, s6, 8\ns_add_u32 s35, s35, {L_XX}\nv_lshl_add_u32 v7, v3, 5, s35")
    a("ds_read_b128 v[16:19], v7\nds_read_b128 v[20:23], v7 offset:16")
    a(f"s_lshl_b32 s35, s4, 2\ns_add_u32 s35, s35, s7\ns_lshl_b32 s35, s35, 13\ns_add_u32 s35, s35, {W_HB}")
    a("v_add_u32 v10, s35, v2\ns_lshl_b32 s36, s6, 10\ns_add_u32 s35, s35, s36\nv_lshl_add_u32 v9, v5, 1, s35")
    a(f"v_add_u32 v11, {L_GU}, v2")
    a("""v_lshrrev_b32 v8, 5, v0
    v_lshlrev_b32 v8, 6, v8
    v_bfe_u32 v6, v0, 2, 2
    v_lshl_add_u32 v8, v6, 4, v8
    v_bfe_u32 v6, v0, 4, 1
    v_lshl_add_u32 v8, v6, 3, v8
    v_and_b32 v6, 3, v0
    v_lshl_add_u32 v8, v6, 1, v8""")
    a(f"v_add_u32 v8, {L_H}, v8")
    a("s_waitcnt lgkmcnt(0)\nv_mov_b32 v49, s32\nv_mov_b32 v51, s32")
    for i in range(8):
        for d in range(4): a(f"v_and_b32 v{128 + 4 * i + d}, v{16 + i}, v{12 + d}")
    lds_spin(F_LD, seg_flag("GU"), [], 'ge', 24)
    stamp('a', 6)
    a(f"ds_read_b128 v[24:27], v1 offset:{F_Q}")
    for i in range(16): a(f"ds_read_b128 v[{64 + 4 * i}:{67 + 4 * i}], v11 offset:{1024 * i}")
    for i in range(8):
        for m in range(2):
            lgk(min(15 - (2 * i + m), 14))
            c = "0" if i == 0 else f"v[{32 + 4 * m}:{35 + 4 * m}]"
            a(f"v_mfma_f32_16x16x32_bf16 v[{32 + 4 * m}:{35 + 4 * m}], v[{128 + 4 * i}:{131 + 4 * i}], v[{64 + 8 * i + 4 * m}:{67 + 8 * i + 4 * m}], {c}")
    a("v_and_b32 v24, v24, v25\nv_and_b32 v26, v26, v27\nv_and_b32 v24, v24, v26\nv_readfirstlane_b32 s41, v24\ns_and_b32 s41, s41, 2")
    a("""v_permlane32_swap_b32 v32, v34
    v_permlane32_swap_b32 v33, v35
    v_permlane32_swap_b32 v36, v38
    v_permlane32_swap_b32 v37, v39
    v_add_f32_dpp v48, v34, v32 row_shl:8 row_mask:0xf bank_mask:0xf
    v_add_f32_dpp v52, v35, v33 row_shl:8 row_mask:0xf bank_mask:0xf
    v_add_f32_dpp v50, v38, v36 row_shl:8 row_mask:0xf bank_mask:0xf
    v_add_f32_dpp v54, v39, v37 row_shl:8 row_mask:0xf bank_mask:0xf
    s_mov_b32 exec_lo, 0x00ff00ff
    s_mov_b32 exec_hi, 0x00ff00ff""")
    st2([f"buffer_store_dwordx4 v[48:51], v9, {WS}, 0 offen", f"buffer_store_dwordx4 v[52:55], v9, {WS}, 0 offen offset:16"])
    a("s_mov_b64 exec, -1\nv_add_u32 v11, 4096, v10")
    stamp('a', 7)
    L = a.label("hb")
    a(f"s_mov_b32 s40, {SPIN}\n{L}:")
    for i in range(8): a(f"buffer_load_dwordx4 v[{64 + 4 * i}:{67 + 4 * i}], v{10 + (i >> 2)}, {WS}, 0 offen offset:{1024 * (i & 3)} sc1")
    a("s_sub_u32 s40, s40, 1\ns_cbranch_scc1 L_end")
    a("s_waitcnt vmcnt(0)")
    a("v_xor_b32 v20, s32, v65")
    for r in [67] + [x for i in range(1, 8) for x in (65 + 4 * i, 67 + 4 * i)]: a(f"v_bitop3_b32 v20, v20, v{r}, s32 bitop3:0xf6")
    a(f"v_cmp_ne_u32 vcc, 0, v20\ns_cbranch_vccnz {L}")
    stamp('a', 8)
    for step in (1, 2, 4):
        for i in range(0, 8, 2 * step):
            a(f"v_add_f32 v{64 + 4 * i}, v{64 + 4 * i}, v{64 + 4 * (i + step)}\nv_add_f32 v{66 + 4 * i}, v{66 + 4 * i}, v{66 + 4 * (i + step)}")
    a(f"""v_cvt_pk_bf16_f32 v64, 0, v64
    v_cvt_pk_bf16_f32 v66, 0, v66
    v_mul_f32 v20, {(LOG2E | 0x80000000):#x}, v64
    v_exp_f32 v20, v20
    v_add_f32 v20, 1.0, v20
    v_rcp_f32 v21, v20
    v_mul_f32 v22, v64, v21
    v_fma_f32 v23, -v22, v20, v64
    v_fma_f32 v23, v23, v21, v22
    v_cmp_class_f32 vcc, v23, 3
    v_cndmask_b32 v22, v23, v22, vcc
    v_cvt_pk_bf16_f32 v22, 0, v22
    v_mul_f32 v22, v22, v66
    v_cvt_pk_bf16_f32 v22, v22, v22
    v_mov_b32 v21, 1
    ds_write_b16 v8, v22
    ds_write_b32 v1, v21 offset:{F_H}""")
    a("L_adone:")
    stamp('a', 9)
    dump('a')
    a("s_endpgm")

    a("L_loader:")
    a("s_setprio 3")
    a("""v_and_b32 v2, 15, v0
    v_lshrrev_b32 v3, 4, v0
    v_xor_b32 v4, v2, v3
    v_lshlrev_b32 v4, 4, v4
    v_lshlrev_b32 v5, 8, v3""")
    for i in range(4): a(f"v_xor_b32 v{8 + i}, {64 * i}, v4\nv_add_u32 v{8 + i}, v{8 + i}, v5")
    a("""v_lshrrev_b32 v4, 2, v2
    v_xor_b32 v4, v4, v3
    v_lshl_add_u32 v12, v4, 6, v5
    v_and_b32 v4, 3, v0
    v_lshl_add_u32 v12, v4, 4, v12
    v_lshrrev_b32 v6, 3, v0
    v_and_b32 v7, 7, v0
    v_mul_u32_u24 v13, 28672, v6
    v_lshl_add_u32 v13, v7, 4, v13
    v_lshlrev_b32 v4, 1, v3
    v_xor_b32 v4, v4, v7
    v_lshlrev_b32 v4, 4, v4
    v_lshl_add_u32 v14, v6, 10, v4
    s_lshl_b32 s35, s4, 24
    s_lshl_b32 s36, s5, 15
    s_add_u32 s35, s35, s36
    s_add_u32 s35, s35, 15728640
    s_mul_i32 s41, s6, 229376
    s_lshl_b32 s37, s33, 7
    s_add_u32 s41, s41, s37
    s_lshl_b32 s42, s4, 19
    s_lshl_b32 s38, s7, 17
    s_add_u32 s42, s42, s38
    s_lshl_b32 s38, s6, 7
    s_add_u32 s42, s42, s38
    s_lshl_b32 s43, s33, 16
    s_add_u32 s43, s43, s38
    s_waitcnt lgkmcnt(0)
    s_add_u32 s10, s10, s35
    s_addc_u32 s11, s11, 0
    s_add_u32 s12, s12, s35
    s_addc_u32 s13, s13, 0""")
    srd(44, 10, 32768)
    nwarm = 0
    if warm:
        srd(48, 30, WSZ)
        per = 1024 // warm; sh = warm.bit_length() - 1
        a(f"s_lshl_b32 s36, s4, 7\ns_add_u32 s36, s36, s5\ns_lshl_b32 s37, s36, 10\ns_add_u32 s37, s37, {W_H2}")
        a(f"v_lshrrev_b32 v16, {per.bit_length() - 1}, v0\nv_lshlrev_b32 v16, 15, v16\nv_and_b32 v17, {per - 1}, v0\nv_lshl_add_u32 v16, v17, {sh}, v16\nv_add_u32 v16, s37, v16")
        a(f"s_lshl_b32 s37, s36, 4\ns_add_u32 s37, s37, {W_ML}\nv_and_b32 v17, 3, v0\nv_lshlrev_b32 v17, 9, v17\nv_add_u32 v17, s37, v17")
        a(f"s_lshl_b32 s36, s4, 2\ns_add_u32 s36, s36, s7\ns_lshl_b32 s36, s36, 3\ns_add_u32 s36, s36, s6\ns_lshl_b32 s36, s36, 10\ns_add_u32 s36, s36, {W_HB}")
        a(f"v_lshlrev_b32 v18, {sh}, v0\nv_add_u32 v18, s36, v18\nv_cmp_gt_u32 vcc, {per}, v0\nv_cndmask_b32 v17, v17, v18, vcc")
        nwarm = 2
    a("s_mov_b32 s40, 0\ns_barrier")
    stamp('l', 1)
    def seg_loads(name):
        r = []
        if name in ("K", "V"):
            base = L_K if name == "K" else L_V
            for i in range(32):
                v = f"v{8 + (i & 3)}" if name == "K" else "v12"
                r.append((base + 1024 * i if i % 4 == 0 else None, f"{v}, s[44:47], s40 offen offset:{1024 * (i & 3)}", "s_addk_i32 s40, 0x1000" if i % 4 == 3 else None))
        if name == "GU":
            for i in range(16): r.append((L_GU + 1024 * i, f"v13, s[{44 + 8 * (i & 1)}:{47 + 8 * (i & 1)}], s41 offen", "s_addk_i32 s41, 0xe00" if i & 1 else None))
        if name == "WO":
            for i in range(16): r.append((L_WO + 1024 * i, "v14, s[44:47], s42 offen", "s_addk_i32 s42, 0x2000"))
        if name == "WD":
            for i in range(8): r.append((L_WD + 1024 * i, "v14, s[44:47], s43 offen", "s_addk_i32 s43, 0x2000"))
        return r
    def seg_setup(name):
        if name == "K": srd(44, 10, 32768); a("s_mov_b32 s40, 0")
        if name == "V": srd(44, 12, 32768); a("s_mov_b32 s40, 0")
        if name == "GU": srd(44, 20, 1835008); srd(52, 22, 1835008)
        if name == "WO": srd(44, 16, 4194304)
        if name == "WD": srd(44, 24, 1835008)
    def emit(segs, n0, pend, final):
        n = n0
        for name in segs:
            if n or name != "K": seg_setup(name)
            for (m0, ad, inc) in seg_loads(name):
                if m0 is not None: a(f"s_mov_b32 m0, {m0}")
                if n >= TH:
                    a(f"s_waitcnt vmcnt({TH - 1})")
                    while pend and pend[0][0] <= n - (TH - 1):
                        signal(pend.pop(0)[1])
                a(f"buffer_load_dwordx4 {ad} nt lds")
                if inc: a(inc)
                n += 1
                if name == "K" and h1trig < 32 and n == h1trig: pend.append((n, seg_flag("Kpart")))
            pend.append((n, seg_flag(name)))
            if name == "V" and nwarm:
                per = 1024 // warm
                if 4 * per < 64: a(f"s_mov_b64 exec, {(1 << (4 * per)) - 1:#x}")
                a(f"buffer_load_dword v21, v16, {WS}, 0 offen sc1")
                a(f"s_mov_b64 exec, {(1 << (per + 4)) - 1:#x}\nbuffer_load_dword v22, v17, {WS}, 0 offen sc1\ns_mov_b64 exec, -1")
                n += 2
        if final:
            a(f"v_mov_b32 v20, 1\nds_write_b32 v1, v20 offset:{F_IS}")
            stamp('l', 8)
            while pend:
                e, f = pend.pop(0)
                a(f"s_waitcnt vmcnt({n - e})")
                signal(f)
        return n
    def signal(f):
        a(f"v_mov_b32 v20, {f}\nds_write_b32 v1, v20 offset:{F_LD}")
        if events[f - 1] != "Kpart": stamp('l', 2 + order.index(events[f - 1]))
    ffn = ("GU", "WD")
    k = min(order.index(x) for x in ffn)
    pend = []
    n = emit(order[:k], 0, pend, False)
    a("s_cmp_ge_u32 s33, 28\ns_cbranch_scc1 L_ldb")
    emit(order[k:], n, list(pend), True)
    a("s_branch L_lde\nL_ldb:")
    emit([x for x in order[k:] if x not in ffn], n, list(pend), True)
    a("L_lde:")
    stamp('l', 9)
    if stamps: srd(48, 30, WSZ)
    dump('l')
    a("L_end:\ns_endpgm")

    head = open(f"cdna_kernels/{NAME}.s.ref").read().split("; Override")[0]
    out = head + f"; Generated by gen/gen.py (hand-designed kernel; see that script for the layout notes)\n; @launch grid=(256,1,1) block=(384,1,1) lds={L_END}\n"
    out += f'.amdgcn_target "amdgcn-amd-amdhsa--gfx950"\n.text\n.globl {NAME}_kernel\n.p2align 8\n.type {NAME}_kernel,@function\n'
    out += a.text()
    out += f""".section .rodata,"a"
.p2align 6
.amdhsa_kernel {NAME}_kernel
  .amdhsa_next_free_vgpr 160
  .amdhsa_next_free_sgpr 102
  .amdhsa_accum_offset 160
  .amdhsa_group_segment_fixed_size 0
  .amdhsa_kernarg_size 96
  .amdhsa_user_sgpr_count 2
  .amdhsa_user_sgpr_kernarg_segment_ptr 1
  .amdhsa_system_sgpr_workgroup_id_x 1
  .amdhsa_float_denorm_mode_32 3
.end_amdhsa_kernel
"""
    return out

if __name__ == "__main__":
    kw = eval("dict(" + (sys.argv[2] if len(sys.argv) > 2 else "") + ")")
    open(sys.argv[1], "w").write(gen(**kw))
```

```python
import sys
from asmlib import Asm

NAME = "parallel_sum__sliding_block_cached__swiglu_ffn__decode"

L_K, L_V, L_GU, L_WO, L_WD = 0, 32768, 65536, 81920, 98304
L_WQ = 106496
L_XX = L_WQ + 16384
L_Q  = L_XX + 2048
L_P  = L_Q + 1280
L_ML = L_P + 1024
L_O  = L_ML + 128
L_H  = L_O + 256
L_F  = L_H + 128
L_END = L_F + 64
F_LD, F_H, F_A, F_IE, F_Q, F_P, F_O = 0, 4, 8, 12, 16, 32, 48

W_EP  = 0
W_H1  = 0x1000
W_H1B = W_H1 + 256 * 256
W_HB  = W_H1B + 256 * 256
W_ML  = W_HB + 256 * 512
W_H3  = W_ML + 32 * 512
W_H2  = W_H3 + 32 * 4096
W_END = W_H2 + 1024 * 512
W_ST  = 0x400000

LOG2E = 0x3fb8aa3b
SCALE = 0x3db504f3
SPIN = 1 << 16
EPOCH_STEP = 0x9e3779b9

def gen(TH=22, stamps=False, order=("Q", "K", "V", "GU", "WO", "WD"), warm=64, warmpol="sc1 nt", NA=24, h3depth=4,
        forceslow=False, h1trig=32, probe=None, abl=(), rot=True, h3gap=0, TH2=None, mimic=True, pfpol='', h1own=True, h3warm='sc1', pre=True, spec=True, sleep=0, prio=3, h2sleep=0, hbsleep=0, boost=None, gate=None, first=True, hbfirst=True, fine=False, local=True, pollpol='sc1', h1wt=True, lazy=0, ntail=8, wt=(), warmat='K', consffn=True, THK=None):
    if not local: warm = 0
    a = Asm()
    WS = "s[48:51]"
    WSZ = W_ST + 256 * 512 if stamps else W_END
    diag = bool(stamps or probe)

    def stamp(role, idx, f=False):
        if fine and role == 'c' and 1 <= idx <= 6 and not f: return
        if f and not fine: return
        if probe and (idx == 0 or probe == (role, idx)):
            a(f"s_memrealtime s[{96 if idx == 0 else 98}:{97 if idx == 0 else 99}]")
            if idx == 0: a("s_waitcnt lgkmcnt(0)\ns_mov_b32 s98, s96")
        if stamps and (stamps is True or idx in (0, 13) or (stamps == 'l' and (role, idx) in (('l', 3), ('l', 9), ('c', 11)))):
            a(f"s_memtime s[{64 + 2 * idx}:{65 + 2 * idx}]")
            if idx == 0: a("s_memrealtime s[94:95]")
            if (role, idx) in (('l', 9), ('c', 13), ('a', 9)): a("s_memrealtime s[92:93]")
    def dump(role):
        if probe and probe[0] == role:
            L = a.label("pad")
            a("s_waitcnt lgkmcnt(0)\ns_sub_u32 s98, s98, s96\ns_mul_i32 s98, s98, 3\ns_add_u32 s96, s96, s98\ns_add_u32 s96, s96, 1500")
            a(f"{L}:\ns_sleep 4\ns_memrealtime s[98:99]\ns_waitcnt lgkmcnt(0)\ns_sub_u32 s35, s98, s96\ns_cmp_lt_i32 s35, 0\ns_cbranch_scc1 {L}")
        if not stamps or (stamps == 'min' and role != 'c') or (stamps == 'l' and role == 'a'): return
        a("s_waitcnt lgkmcnt(0)")
        a(f"s_lshl_b32 s60, s2, 9\ns_lshl_b32 s61, s3, 6\ns_add_u32 s60, s60, s61\ns_add_u32 s60, s60, {W_ST}")
        a("s_mov_b64 exec, 1\nv_mov_b32 v126, s60")
        for i in range(16):
            a(f"v_mov_b32 v127, s{64 + 2 * i}\nbuffer_store_dword v127, v126, {WS}, 0 offen offset:{4 * i}")
    def srd(d, p, size):
        a(f"s_mov_b32 s{d}, s{p}\ns_and_b32 s{d + 1}, s{p + 1}, 0xffff\ns_mov_b32 s{d + 2}, {size}\ns_mov_b32 s{d + 3}, 0x20000")
    events = []
    for nm in order:
        if nm == "K" and h1trig < 32: events.append("Kpart")
        if nm in ("V", "GU", "Q"): events += [nm + "0", nm + "1", nm + "2"]
        events.append(nm)
    events.insert(len(events) - 1 if ntail <= 8 else len(events) - 2, "T")
    def seg_flag(name):
        return events.index(name) + 1
    def lgk(n):
        a(f"s_waitcnt lgkmcnt({0 if diag else n})")
    def st2(ops, name=None):
        if not local or name in wt:
            for o in ops: a(o + " sc1" if o.startswith("buffer_store") else o)
            return
        L1 = a.label("slow"); L2 = a.label("st")
        a(f"s_cmp_eq_u32 s41, 0\ns_cbranch_scc1 {L1}")
        for o in ops: a(o)
        a(f"s_branch {L2}\n{L1}:")
        for o in ops: a(o + " sc1" if o.startswith("buffer_store") else o)
        a(f"{L2}:")
    def lds_spin(flag_off, want, reads, kind, tmp, nap=0):
        if not spec and len(reads) > 4 and kind == 'ge':
            lds_spin(flag_off, want, [], kind, tmp)
            for r in reads: a(r)
            a("s_waitcnt lgkmcnt(0)")
            return
        L = a.label("spin")
        a(f"s_mov_b32 s40, {SPIN}\n{L}:")
        if sleep and kind == 'ge': a(f"s_sleep {sleep}")
        elif nap: a(f"s_sleep {nap}")
        a(f"ds_read_b32 v{tmp}, v1 offset:{flag_off}" if kind == 'ge' else f"ds_read_b128 v[{tmp}:{tmp + 3}], v1 offset:{flag_off}")
        for r in reads: a(r)
        a("s_sub_u32 s40, s40, 1\ns_cbranch_scc1 L_end")
        a("s_waitcnt lgkmcnt(0)")
        if kind == 'ge':
            a(f"v_cmp_gt_u32 vcc, {want}, v{tmp}")
        else:
            a(f"v_and_b32 v{tmp + 2}, v{tmp + 2}, v{tmp + 3}\nv_bitop3_b32 v{tmp}, v{tmp}, v{tmp + 1}, v{tmp + 2} bitop3:0x80")
            a(f"v_cmp_eq_u32 vcc, 0, v{tmp}")
        a(f"s_cbranch_vccnz {L}")
    def wait_gate(tmp):
        if gate == 'IE': lds_spin(F_IE, 1, [], 'ge', tmp)
        elif gate == 'S': lds_spin(F_LD, "s38", [], 'ge', tmp)
        elif gate == 'T': lds_spin(F_LD, "s36", [], 'ge', tmp)
        elif gate: lds_spin(F_LD, seg_flag(gate), [], 'ge', tmp)
        a(f"s_mov_b32 s40, {SPIN}")
    def tagbytes(dst, src):
        a(f"s_and_b32 s{dst}, s{src}, 0xff\ns_bfe_u32 s{dst + 1}, s{src}, 0x80008\ns_bfe_u32 s{dst + 2}, s{src}, 0x80010\ns_lshr_b32 s{dst + 3}, s{src}, 24")
    def chk(acc, r, t, first=False):
        a(f"v_xor_b32 v{acc}, s{t}, v{r}" if first else f"v_bitop3_b32 v{acc}, v{acc}, v{r}, s{t} bitop3:0xf6")
    def strip(acc, regs, first=False):
        for k, r in enumerate(regs): a(f"v_xor_b32 v{r}, s{56 + (k & 3)}, v{r}")
        for k in range(0, len(regs), 2):
            a(f"v_or_b32 v{acc}, v{regs[k]}, v{regs[k + 1]}" if first and k == 0 else f"v_or3_b32 v{acc}, v{acc}, v{regs[k]}, v{regs[k + 1]}")
    def tags():
        if not local:
            a(f"s_add_u32 s32, s32, {EPOCH_STEP:#x}\ns_mov_b32 s42, s32")
            return
        a(f"s_add_u32 s32, s32, {EPOCH_STEP:#x}\ns_getreg_b32 s42, hwreg(HW_REG_XCC_ID, 0, 4)\ns_add_u32 s42, s42, 1\ns_mul_i32 s42, s42, 0x01010101\ns_xor_b32 s42, s42, s32")

    a(f"{NAME}_kernel:")
    stamp('all', 0)
    a("""s_cmp_ge_u32 s2, 256
    s_cbranch_scc1 L_end
    s_load_dwordx16 s[8:23], s[0:1], 0
    s_load_dwordx8 s[24:31], s[0:1], 64
    v_lshrrev_b32 v2, 6, v0
    v_lshlrev_b32 v3, 7, v0
    v_readfirstlane_b32 s3, v2
    v_and_b32 v0, 63, v0
    s_and_b32 s4, s2, 7
    s_lshr_b32 s5, s2, 3
    s_and_b32 s6, s5, 7
    s_lshr_b32 s7, s5, 3
    s_lshl_b32 s33, s7, 3
    s_add_u32 s33, s33, s4""")
    a(f"v_mov_b32 v1, {L_F}")
    a("s_cmp_lt_u32 s3, 2\ns_cbranch_scc1 L_al")
    a("v_mov_b32 v4, 0\nv_lshl_add_u32 v5, v0, 2, v1\ns_mov_b64 exec, 0xffff\nds_write_b32 v5, v4\ns_mov_b64 exec, -1")
    a("s_waitcnt lgkmcnt(0)\ns_barrier\ns_branch L_comp\nL_al:")
    if 'nopf' not in abl:
        a(f"s_getpc_b64 s[36:37]\nL_pc:\ns_sub_u32 s36, s36, L_pc-{NAME}_kernel\ns_subb_u32 s37, s37, 0")
        a(f"v_min_u32 v3, L_end-{NAME}_kernel, v3\nglobal_load_dword v180, v3, s[36:37] {pfpol}")
    a("s_cmp_eq_u32 s3, 1\ns_cbranch_scc1 L_loader")

    a("""v_lshlrev_b32 v2, 4, v0
    s_mov_b32 s46, 1024
    s_mov_b32 s47, 0x20000
    s_waitcnt lgkmcnt(0)
    s_mov_b32 s44, s8
    s_and_b32 s45, s9, 0xffff
    buffer_load_dwordx4 v[8:11], v2, s[44:47], 0 offen
    s_barrier
    s_branch L_aux""")

    a("L_loader:")
    a(f"s_setprio {prio}")
    a("""v_lshrrev_b32 v6, 3, v0
    v_and_b32 v7, 7, v0
    v_lshlrev_b32 v15, 17, v6
    v_lshl_add_u32 v15, v7, 4, v15
    s_lshl_b32 s35, s7, 20
    s_lshl_b32 s36, s4, 10
    s_add_u32 s35, s35, s36
    s_lshl_b32 s36, s6, 7
    s_add_u32 s39, s35, s36
    s_mov_b32 s46, 4194304
    s_mov_b32 s47, 0x20000""")
    if boost: a("s_cmp_eq_u32 s6, 3\ns_cselect_b64 vcc, -1, 0")
    a("""s_waitcnt lgkmcnt(0)
    s_mov_b32 s44, s14
    s_and_b32 s45, s15, 0xffff""")
    stamp('l', 1)
    def k_setup():
        a("""v_and_b32 v2, 15, v0
        v_lshrrev_b32 v3, 4, v0
        v_xor_b32 v4, v2, v3
        v_lshlrev_b32 v4, 4, v4
        v_lshlrev_b32 v5, 8, v3""")
        for i in range(4): a(f"v_xor_b32 v{8 + i}, {64 * i}, v4\nv_add_u32 v{8 + i}, v{8 + i}, v5")
        a("""s_lshl_b32 s35, s4, 24
        s_lshl_b32 s36, s5, 15
        s_add_u32 s35, s35, s36
        s_add_u32 s35, s35, 15728640""")
        a("s_lshl_b32 s40, s4, 12" if rot else "s_mov_b32 s40, 0")
        a("""s_add_u32 s44, s10, s35
        s_addc_u32 s45, s11, 0
        s_and_b32 s45, s45, 0xffff
        s_mov_b32 s46, 32768
        s_add_u32 s12, s12, s35
        s_addc_u32 s13, s13, 0""")
    nwarm = 1 if warm else 0
    def late_setup():
        a("""v_lshrrev_b32 v4, 2, v2
        v_xor_b32 v4, v4, v3
        v_lshl_add_u32 v12, v4, 6, v5
        v_and_b32 v4, 3, v0
        v_lshl_add_u32 v12, v4, 4, v12
        v_mul_u32_u24 v13, 28672, v6
        v_lshl_add_u32 v13, v7, 4, v13
        v_lshlrev_b32 v4, 1, v3
        v_xor_b32 v4, v4, v7
        v_lshlrev_b32 v4, 4, v4
        v_lshl_add_u32 v14, v6, 10, v4
        s_mul_i32 s41, s6, 229376
        s_lshl_b32 s37, s33, 7
        s_add_u32 s41, s41, s37
        s_lshl_b32 s42, s4, 19
        s_lshl_b32 s38, s7, 17
        s_add_u32 s42, s42, s38
        s_lshl_b32 s38, s6, 7
        s_add_u32 s42, s42, s38
        s_lshl_b32 s43, s33, 16
        s_add_u32 s43, s43, s38""")
        srd(48, 30, WSZ)
        if h3warm is not None:
            if consffn: a(f"s_sub_u32 s36, s4, 4\ns_lshl_b32 s36, s36, 3\ns_add_u32 s36, s36, s6\ns_lshl_b32 s36, s36, 12\ns_add_u32 s36, s36, {W_H3}\nv_lshl_add_u32 v19, v0, 6, s36")
            else: a(f"s_lshl_b32 s36, s2, 12\ns_add_u32 s36, s36, {W_H3}\ns_cmp_lt_u32 s2, 32\ns_cselect_b32 s36, s36, 0x7f000000\nv_lshl_add_u32 v19, v0, 6, s36")
        if warm:
            a(f"s_lshl_b32 s36, s4, 7\ns_add_u32 s36, s36, s5\ns_lshl_b32 s37, s36, 9\ns_add_u32 s37, s37, {W_H2}")
            a("v_lshrrev_b32 v16, 3, v0\nv_lshlrev_b32 v16, 14, v16\nv_lshl_add_u32 v16, v7, 6, v16\nv_add_u32 v16, s37, v16")
            a(f"s_lshl_b32 s37, s36, 4\ns_add_u32 s37, s37, {W_ML}\nv_and_b32 v17, 3, v0\nv_lshlrev_b32 v17, 9, v17\nv_add_u32 v17, s37, v17")
            a(f"s_lshl_b32 s36, s4, 2\ns_add_u32 s36, s36, s7\ns_lshl_b32 s36, s36, 3\ns_add_u32 s36, s36, s6\ns_lshl_b32 s36, s36, 9\ns_add_u32 s36, s36, {W_HB}")
            a("v_lshl_add_u32 v18, v7, 6, s36\nv_cmp_gt_u32 s[56:57], 40, v0\nv_cndmask_b32 v17, v17, v18, s[56:57]\nv_cmp_gt_u32 s[56:57], 32, v0\nv_cndmask_b32 v16, v17, v16, s[56:57]")
    def seg_loads(name):
        r = []
        if name in ("K", "V"):
            base = L_K if name == "K" else L_V
            for i in range(32):
                v = f"v{8 + ((i >> 1) & 3)}" if name == "K" else "v12"
                r.append((f"s_mov_b32 m0, {base + 1024 * i}" if i % 4 == 0 else None, f"{v}, s[44:47], s40 offen offset:{1024 * (i & 3)}",
                          "s_addk_i32 s40, 0x1000\ns_and_b32 s40, s40, 0x7fff" if i % 4 == 3 else None))
        if name == "Q":
            for i in range(16): r.append((f"s_mov_b32 m0, {L_WQ + 1024 * i}", "v15, s[44:47], s39 offen", "s_addk_i32 s39, 0x2000"))
        if name == "GU":
            for i in range(16): r.append((f"s_mov_b32 m0, {L_GU + 1024 * i}", f"v13, s[{44 + 8 * (i & 1)}:{47 + 8 * (i & 1)}], s41 offen", "s_addk_i32 s41, 0xe00" if i & 1 else None))
        if name == "WO":
            for i in range(16): r.append((f"s_mov_b32 m0, {L_WO + 1024 * i}", "v14, s[44:47], s42 offen", "s_addk_i32 s42, 0x2000"))
        if name == "WD":
            for i in range(8): r.append((f"s_mov_b32 m0, {L_WD + 1024 * i}", "v14, s[44:47], s43 offen", "s_addk_i32 s43, 0x2000"))
        return r
    def seg_setup(name):
        if name == "K": k_setup()
        if name == "V": srd(44, 12, 32768)
        if name == "GU": srd(44, 20, 1835008); srd(52, 22, 1835008)
        if name == "WO": srd(44, 16, 4194304)
        if name == "WD": srd(44, 24, 1835008)
    def signal(f):
        a(f"v_mov_b32 v20, {f}\nds_write_b32 v1, v20 offset:{F_LD}")
        if events[f - 1] in order: stamp('l', 1 + order.index(events[f - 1]) if events[f - 1] != 'Q' else 7)
    def emit(segs, n0, pend, final):
        n = n0
        for name in segs:
            seg_setup(name)
            th = TH if name in ("Q", "K", "V") or TH2 is None else TH2
            if name in ("Q", "K") and THK: th = THK
            lo = seg_loads(name)
            for idx, (m0, ad, inc) in enumerate(lo):
                if m0: a(m0)
                if n == (THK or TH):
                    a("s_barrier")
                    late_setup()
                if n >= th:
                    sig = pend and pend[0][0] <= n - (th - 1)
                    if boost and name in ("Q", "K", "V") and not sig:
                        L = a.label("bo")
                        a(f"s_cbranch_vccnz {L}\ns_waitcnt vmcnt({th - 1})\n{L}:\ns_waitcnt vmcnt({boost - 1})")
                    else:
                        a(f"s_waitcnt vmcnt({th - 1})")
                    while pend and pend[0][0] <= n - (th - 1):
                        signal(pend.pop(0)[1])
                a(f"buffer_load_dwordx4 {ad} nt lds")
                if inc: a(inc)
                n += 1
                if name in ("V", "GU", "Q") and (idx + 1) % (len(lo) // 4) == 0 and idx + 1 < len(lo):
                    pend.append((n, seg_flag(name + str((idx + 1) // (len(lo) // 4) - 1))))
                if name == "K" and h1trig < 32 and idx + 1 == h1trig: pend.append((n, seg_flag("Kpart")))
            pend.append((n, seg_flag(name)))
            if name == warmat:
                if nwarm:
                    a(f"s_mov_b32 exec_hi, 0xfff\nbuffer_load_dword v21, v16, {WS}, 0 offen {warmpol}\ns_mov_b32 exec_hi, -1")
                    n += 1
                if h3warm is not None and not consffn:
                    a(f"buffer_load_dword v22, v19, {WS}, 0 offen {h3warm}")
                    n += 1
        if final:
            pend.append((n - ntail, seg_flag("T"))); pend.sort()
            pend[:] = sorted(set((e, len(events) if e == n else max(f for (e2, f) in pend if e2 <= e)) for (e, f) in pend))
            if gate == 'IE': a(f"v_mov_b32 v20, 1\nds_write_b32 v1, v20 offset:{F_IE}")
            stamp('l', 8)
            while pend:
                e, f = pend.pop(0)
                a(f"s_waitcnt vmcnt({n - e})")
                signal(f)
                if events[f - 1] == "T": stamp('l', 5)
        return n
    assert order[0] == "Q" and 16 < TH < 48
    npre = 0 if 'nopf' in abl else 1
    ffn = ("GU", "WD")
    k = min(order.index(x) for x in ffn)
    pend = []
    n = emit(order[:k], npre, pend, False)
    a("s_cmp_ge_u32 s33, 28\ns_cbranch_scc1 L_ldb")
    emit(order[k:], n, list(pend), True)
    a("s_branch L_lde\nL_ldb:")
    emit([x for x in order[k:] if x not in ffn], n, list(pend), True)
    if h3warm is not None and consffn: a(f"buffer_load_dword v22, v19, {WS}, 0 offen {h3warm}")
    a("L_lde:")
    stamp('l', 9)
    dump('l')
    a("s_endpgm")

    a("L_aux:")
    stamp('a', 1)
    a("s_load_dword s32, s[30:31], 0")
    srd(48, 30, WSZ)
    a("v_lshrrev_b32 v3, 3, v0\nv_and_b32 v4, 7, v0")
    a("""v_and_b32 v6, 1, v0
    v_lshlrev_b32 v6, 4, v6
    v_mov_b32 v7, 0xffff
    v_lshlrev_b32 v6, v6, v7
    v_bfe_u32 v7, v0, 1, 2""")
    for d in range(4): a(f"v_cmp_eq_u32 vcc, {d}, v7\nv_cndmask_b32 v{12 + d}, 0, v6, vcc")
    a(f"v_lshlrev_b32 v6, 5, v0\nv_add_u32 v6, {L_XX}, v6")
    a(f"s_lshl_b32 s35, s7, 9\ns_add_u32 s35, s35, {L_XX}\nv_lshl_add_u32 v7, v3, 6, s35")
    a("s_waitcnt vmcnt(0)")
    stamp('a', 2)
    for k in range(4): a(f"v_lshlrev_b32 v{16 + 2 * k}, 16, v{8 + k}\nv_and_b32 v{17 + 2 * k}, 0xffff0000, v{8 + k}")
    def wave_sum(r, t):
        for n in (8, 4, 2, 1): a(f"v_add_f32_dpp v{r}, v{r}, v{r} row_ror:{n} row_mask:0xf bank_mask:0xf")
        a(f"v_mov_b32 v{t}, v{r}\nv_permlane16_swap_b32 v{r}, v{t}\nv_add_f32 v{r}, v{r}, v{t}")
        a(f"v_mov_b32 v{t}, v{r}\nv_permlane32_swap_b32 v{r}, v{t}\nv_add_f32 v{r}, v{r}, v{t}")
    a("""v_add_f32 v24, v16, v17
    v_add_f32 v25, v18, v19
    v_add_f32 v26, v20, v21
    v_add_f32 v27, v22, v23
    v_add_f32 v24, v24, v25
    v_add_f32 v26, v26, v27
    v_add_f32 v24, v24, v26""")
    wave_sum(24, 25)
    a("v_mul_f32 v24, 0x3b000000, v24")
    for k in range(8): a(f"v_sub_f32 v{32 + k}, v{16 + k}, v24")
    a("v_mul_f32 v26, v32, v32\nv_mul_f32 v27, v33, v33")
    for k in range(2, 8): a(f"v_fmac_f32 v{26 + (k & 1)}, v{32 + k}, v{32 + k}")
    a("v_add_f32 v26, v26, v27\nv_cvt_pk_bf16_f32 v24, 0, v24")
    wave_sum(26, 25)
    for k in range(8): a(f"v_sub_f32 v{16 + k}, v{16 + k}, v24")
    a("""v_mul_f32 v26, 0x3b000000, v26
    v_cvt_pk_bf16_f32 v26, 0, v26
    v_add_f32 v26, 0x3727c5ac, v26
    v_cvt_pk_bf16_f32 v26, 0, v26
    v_sqrt_f32 v26, v26""")
    for k in range(8): a(f"v_cvt_pk_bf16_f32 v{16 + k}, 0, v{16 + k}")
    a("v_cvt_pk_bf16_f32 v26, 0, v26\nv_rcp_f32 v27, v26")
    for k in range(8): a(f"v_mul_f32 v{32 + k}, v{16 + k}, v27")
    for k in range(8): a(f"v_fma_f32 v{16 + k}, -v{32 + k}, v26, v{16 + k}")
    for k in range(8): a(f"v_fmac_f32 v{32 + k}, v{16 + k}, v27")
    for k in range(8): a(f"v_cvt_pk_bf16_f32 v{32 + k}, v{32 + k}, v{32 + k}")
    a("ds_write_b128 v6, v[32:35]\nds_write_b128 v6, v[36:39] offset:16")
    for k in range(4): a(f"ds_read_b128 v[{16 + 4 * k}:{19 + 4 * k}], v7 offset:{16 * k}")
    a("""v_lshlrev_b32 v5, 5, v4
    v_bfe_u32 v6, v0, 4, 1
    v_lshl_add_u32 v5, v6, 4, v5
    v_mov_b32 v61, v5
    v_lshrrev_b32 v6, 5, v0
    v_lshl_add_u32 v5, v6, 3, v5
    s_lshl_b32 s35, s4, 5
    s_lshl_b32 s36, s6, 2
    s_add_u32 s35, s35, s36
    s_add_u32 s35, s35, s7
    s_lshl_b32 s35, s35, 8""")
    a(f"s_add_u32 s35, s35, {W_H1}\nv_add_u32 v9, s35, v61\nv_mov_b32 v56, 0xff\ns_mov_b32 s43, {W_H1B - W_H1}")
    a("s_waitcnt lgkmcnt(0)")
    stamp('a', 3)
    tags()
    a("v_mov_b32 v57, s42\nv_lshrrev_b32 v58, 8, v57\nv_lshrrev_b32 v59, 16, v57\nv_lshrrev_b32 v60, 24, v57")
    a(f"v_add_u32 v11, {L_WQ}, v2")
    for i in range(16):
        for d in range(4): a(f"v_and_b32 v{128 + 4 * (i & 7) + d}, v{16 + i}, v{12 + d}")
        if i == 7 or i == 11 or i == 15:
            for c in ((0, 1) if i == 7 else (2,) if i == 11 else (3,)):
                lds_spin(F_LD, seg_flag("Q" + (str(c) if c < 3 else "")), [f"ds_read_b128 v[{64 + 4 * k}:{67 + 4 * k}], v11 offset:{1024 * k}" for k in range(4 * c, 4 * c + 4)], 'ge', 62)
                for k in range(4 * c, 4 * c + 4):
                    a(f"v_mfma_f32_16x16x32_bf16 v[32:35], v[{128 + 4 * (k & 7)}:{131 + 4 * (k & 7)}], v[{64 + 4 * k}:{67 + 4 * k}], {'0' if k == 0 else 'v[32:35]'}")
    stamp('a', 4)
    a("""v_permlane32_swap_b32 v32, v34
    v_permlane32_swap_b32 v33, v35
    v_add_f32_dpp v48, v34, v32 row_shl:8 row_mask:0xf bank_mask:0xf
    v_add_f32_dpp v49, v35, v33 row_shl:8 row_mask:0xf bank_mask:0xf
    v_add_u32 v48, 0x80, v48
    v_add_u32 v49, 0x80, v49
    v_mov_b32 v50, v48
    v_mov_b32 v51, v49
    v_permlane32_swap_b32 v48, v50
    v_permlane32_swap_b32 v49, v51
    s_mov_b64 exec, 0x00ff00ff""")
    for k in range(4): a(f"v_bfi_b32 v{52 + k}, v56, v{57 + k}, v{48 + k}")
    a(f"buffer_store_dwordx4 v[52:55], v9, {WS}, 0 offen" + ("" if local and not h1wt else " sc1"))
    if 'noh1b' not in abl and local:
        a("v_mov_b32 v57, s32\nv_lshrrev_b32 v58, 8, v57\nv_lshrrev_b32 v59, 16, v57\nv_lshrrev_b32 v60, 24, v57")
        for k in range(4): a(f"v_bfi_b32 v{48 + k}, v56, v{57 + k}, v{48 + k}")
        a(f"buffer_store_dwordx4 v[48:51], v9, {WS}, s43 offen sc1")
    a(f"s_mov_b64 exec, -1\nv_mov_b32 v20, 1\nds_write_b32 v1, v20 offset:{F_A}")
    stamp('a', 5)
    a("s_cmp_ge_u32 s33, 28\ns_cbranch_scc1 L_adone")
    if 'noffn' in abl: a("s_branch L_adone")
    a(f"s_lshl_b32 s35, s6, 8\ns_add_u32 s35, s35, {L_XX}\nv_lshl_add_u32 v7, v3, 5, s35")
    a("ds_read_b128 v[16:19], v7\nds_read_b128 v[20:23], v7 offset:16")
    a(f"s_lshl_b32 s35, s4, 2\ns_add_u32 s35, s35, s7\ns_lshl_b32 s35, s35, 12\ns_add_u32 s35, s35, {W_HB}")
    a("v_add_u32 v10, s35, v2\ns_lshl_b32 s36, s6, 9\ns_add_u32 s35, s35, s36\nv_lshl_add_u32 v9, v5, 1, s35")
    a(f"v_add_u32 v11, {L_GU}, v2")
    a("""v_bfe_u32 v8, v0, 4, 1
    v_lshlrev_b32 v8, 6, v8
    v_bfe_u32 v6, v0, 1, 2
    v_lshl_add_u32 v8, v6, 4, v8
    v_bfe_u32 v6, v0, 3, 1
    v_lshl_add_u32 v8, v6, 3, v8
    v_and_b32 v6, 1, v0
    v_lshl_add_u32 v8, v6, 2, v8
    v_lshrrev_b32 v6, 5, v0
    v_lshl_add_u32 v8, v6, 1, v8""")
    a(f"v_add_u32 v8, {L_H}, v8")
    tagbytes(56, 32)
    for k in range(4): a(f"v_mov_b32 v{57 + k}, s{56 + k}")
    a("s_waitcnt lgkmcnt(0)")
    for i in range(8):
        for d in range(4): a(f"v_and_b32 v{128 + 4 * i + d}, v{16 + i}, v{12 + d}")
    for c in range(4):
        rd = [f"ds_read_b128 v[{64 + 4 * i}:{67 + 4 * i}], v11 offset:{1024 * i}" for i in range(4 * c, 4 * c + 4)]
        if c == 3: rd.append(f"ds_read_b128 v[24:27], v1 offset:{F_Q}")
        if c == 0 and lazy: lds_spin(F_LD, seg_flag("V"), [], 'ge', 28, nap=lazy)
        lds_spin(F_LD, seg_flag("GU" + (str(c) if c < 3 else "")), rd, 'ge', 28)
        if c == 3: stamp('a', 6)
        for i in range(2 * c, 2 * c + 2):
            for m in range(2):
                cc = "0" if i == 0 else f"v[{32 + 4 * m}:{35 + 4 * m}]"
                a(f"v_mfma_f32_16x16x32_bf16 v[{32 + 4 * m}:{35 + 4 * m}], v[{128 + 4 * i}:{131 + 4 * i}], v[{64 + 8 * i + 4 * m}:{67 + 8 * i + 4 * m}], {cc}")
    a("v_and_b32 v26, v26, v27\nv_bitop3_b32 v24, v24, v25, v26 bitop3:0x80\nv_readfirstlane_b32 s41, v24\ns_and_b32 s41, s41, 2")
    a("""v_permlane32_swap_b32 v32, v34
    v_permlane32_swap_b32 v33, v35
    v_permlane32_swap_b32 v36, v38
    v_permlane32_swap_b32 v37, v39
    v_add_f32_dpp v48, v34, v32 row_shl:8 row_mask:0xf bank_mask:0xf
    v_add_f32_dpp v50, v35, v33 row_shl:8 row_mask:0xf bank_mask:0xf
    v_add_f32_dpp v49, v38, v36 row_shl:8 row_mask:0xf bank_mask:0xf
    v_add_f32_dpp v51, v39, v37 row_shl:8 row_mask:0xf bank_mask:0xf
    s_mov_b32 exec_lo, 0x00ff00ff
    s_mov_b32 exec_hi, 0x00ff00ff""")
    for k in range(4): a(f"v_add_u32 v{48 + k}, 0x80, v{48 + k}")
    for k in range(4): a(f"v_bfi_b32 v{48 + k}, v56, v{57 + k}, v{48 + k}")
    st2([f"buffer_store_dwordx4 v[48:51], v9, {WS}, 0 offen"], 'hb')
    a("s_mov_b64 exec, -1")
    stamp('a', 7)
    L = a.label("hb")
    a(f"s_mov_b32 s38, {max(seg_flag('WO'), seg_flag('WD'))}\ns_mov_b32 s36, {seg_flag('T')}\ns_mov_b32 s39, {0 if hbfirst else 1}")
    a(f"s_mov_b32 s40, {SPIN}\n{L}:")
    if gate:
        a("s_cmp_eq_u32 s39, 1\ns_cbranch_scc0 L_hbg")
        wait_gate(28)
        a("L_hbg:\ns_add_u32 s39, s39, 1")
    for i in range(4): a(f"buffer_load_dwordx4 v[{64 + 4 * i}:{67 + 4 * i}], v10, {WS}, 0 offen offset:{1024 * i} {pollpol}")
    a("s_sub_u32 s40, s40, 1\ns_cbranch_scc1 L_end")
    for i in range(4):
        a(f"s_waitcnt vmcnt({3 - i})")
        strip(20, [64 + 4 * i + k for k in range(4)], first=(i == 0))
        if i:
            for k in range(4): a(f"v_add_f32 v{64 + k}, v{64 + k}, v{64 + 4 * i + k}")
    a(f"v_and_b32 v20, 0xff, v20\nv_cmp_ne_u32 vcc, 0, v20")
    if hbsleep: a(f"s_cbranch_vccz L_hbok\ns_sleep {hbsleep}\ns_branch {L}\nL_hbok:")
    else: a(f"s_cbranch_vccnz {L}")
    stamp('a', 8)
    a(f"""v_permlane32_swap_b32 v64, v66
    v_permlane32_swap_b32 v65, v67
    v_add_f32 v64, v64, v66
    v_add_f32 v66, v65, v67
    v_cvt_pk_bf16_f32 v64, 0, v64
    v_cvt_pk_bf16_f32 v66, 0, v66
    v_mul_f32 v20, {(LOG2E | 0x80000000):#x}, v64
    v_exp_f32 v20, v20
    v_add_f32 v20, 1.0, v20
    v_rcp_f32 v21, v20
    v_mul_f32 v22, v64, v21
    v_fma_f32 v23, -v22, v20, v64
    v_fma_f32 v23, v23, v21, v22
    v_cmp_class_f32 vcc, v23, 3
    v_cndmask_b32 v22, v23, v22, vcc
    v_cvt_pk_bf16_f32 v22, 0, v22
    v_mul_f32 v22, v22, v66
    v_cvt_pk_bf16_f32 v22, v22, v22
    v_mov_b32 v21, 1
    ds_write_b16 v8, v22
    ds_write_b32 v1, v21 offset:{F_H}""")
    a("L_adone:")
    stamp('a', 9)
    dump('a')
    a("s_endpgm")

    a("L_comp:\ns_sub_u32 s34, s3, 2")
    a("s_load_dword s32, s[30:31], 0")
    srd(48, 30, WSZ)
    if warm and not h1wt:
        a("s_cmp_eq_u32 s34, 1\ns_cbranch_scc0 L_nowarm")
        a(f"s_lshl_b32 s35, s4, 5\ns_lshl_b32 s36, s6, 2\ns_add_u32 s35, s35, s36\ns_add_u32 s35, s35, s7\ns_lshl_b32 s35, s35, 8\ns_add_u32 s35, s35, {W_H1}")
        a(f"v_lshlrev_b32 v4, 6, v0\ns_mov_b64 exec, 15\nbuffer_load_dword v124, v4, {WS}, s35 offen {warmpol}\ns_mov_b64 exec, -1\nL_nowarm:")
    a("""v_and_b32 v2, 15, v0
    v_lshrrev_b32 v3, 4, v0""")
    a("""v_xor_b32 v4, v2, v3
    v_lshlrev_b32 v4, 4, v4
    v_lshrrev_b32 v5, 2, v2
    v_lshlrev_b32 v5, 11, v5
    v_and_b32 v6, 3, v0
    v_lshl_add_u32 v5, v6, 8, v5
    s_lshr_b32 s35, s34, 1
    s_lshl_b32 s35, s35, 14
    s_and_b32 s36, s34, 1
    s_lshl_b32 s36, s36, 10
    s_add_u32 s35, s35, s36
    v_add_u32 v5, s35, v5""")
    for s_ in range(4):
        a(f"v_xor_b32 v{8 + s_}, {64 * s_}, v4\nv_add_u32 v{8 + s_}, v{8 + s_}, v5")
    a("""v_lshrrev_b32 v4, 2, v2
    v_xor_b32 v5, s34, v4
    v_lshlrev_b32 v5, 6, v5
    v_lshl_add_u32 v5, v4, 8, v5
    v_lshrrev_b32 v7, 1, v3
    v_lshl_add_u32 v5, v7, 10, v5
    v_and_b32 v7, 1, v3
    v_lshl_add_u32 v5, v7, 5, v5
    v_lshl_add_u32 v5, v6, 3, v5""")
    a(f"v_add_u32 v12, {L_V}, v5")
    a("""v_lshl_add_u32 v5, v3, 2, v4
    v_lshrrev_b32 v7, 1, v5
    v_and_b32 v7, 3, v7
    v_xor_b32 v7, s34, v7
    v_lshlrev_b32 v7, 5, v7
    v_lshl_add_u32 v7, v5, 7, v7
    v_lshl_add_u32 v14, v6, 3, v7""")
    a(f"v_add_u32 v14, {L_WO}, v14")
    a(f"v_mul_u32_u24 v15, 320, v6\nv_lshl_add_u32 v15, v3, 4, v15\nv_add_u32 v15, {L_Q}, v15")
    a("""v_lshrrev_b32 v4, 5, v0
    v_lshlrev_b32 v16, 8, v4
    v_and_b32 v5, 1, v3
    v_lshl_add_u32 v16, v5, 10, v16
    v_lshl_add_u32 v16, v2, 4, v16
    s_lshl_b32 s35, s4, 13
    s_lshl_b32 s36, s34, 11
    s_add_u32 s35, s35, s36""")
    a(f"s_add_u32 s35, s35, {W_H1}\nv_add_u32 v16, s35, v16")
    a(f"s_mul_i32 s35, s34, 320\ns_add_u32 s35, s35, {L_Q}\nv_and_b32 v5, 31, v0\nv_lshl_add_u32 v17, v5, 3, s35\nv_lshl_add_u32 v17, v4, 2, v17")
    a("s_lshl_b32 s35, s34, 2\nv_add_u32 v18, s35, v1")
    a(f"s_lshl_b32 s35, s34, 8\ns_add_u32 s35, s35, {L_P}\nv_lshl_add_u32 v19, v3, 5, s35\nv_lshl_add_u32 v19, v6, 3, v19")
    a(f"s_lshl_b32 s35, s34, 4\ns_add_u32 s35, s35, {L_ML}\nv_lshl_add_u32 v112, v0, 2, s35")
    a(f"v_lshlrev_b32 v113, 3, v0\nv_add_u32 v113, {L_P}, v113")
    a(f"v_lshlrev_b32 v114, 4, v4\nv_add_u32 v114, {L_ML}, v114")
    a(f"s_lshl_b32 s35, s34, 2\ns_add_u32 s35, s35, {L_ML}\nv_lshl_add_u32 v13, v6, 4, s35\nv_mov_b32 v144, {L_ML}")
    a("s_lshl_b32 s35, s4, 7\ns_add_u32 s35, s35, s5")
    a(f"s_lshl_b32 s36, s35, 9\ns_lshl_b32 s37, s34, 7\ns_add_u32 s36, s36, s37\ns_add_u32 s36, s36, {W_H2}\nv_lshl_add_u32 v115, v5, 2, s36\nv_lshl_add_u32 v115, v4, 14, v115")
    a(f"s_lshl_b32 s36, s34, 5\ns_add_u32 s36, s36, s35\ns_lshl_b32 s36, s36, 4\ns_add_u32 s36, s36, {W_ML}\nv_mov_b32 v116, s36")
    a("v_lshrrev_b32 v4, 3, v0\nv_and_b32 v5, 7, v0\ns_lshl_b32 s35, s4, 2\ns_add_u32 s35, s35, s7")
    a(f"s_lshl_b32 s36, s35, 14\ns_lshl_b32 s37, s34, 7\ns_add_u32 s36, s36, s37\ns_add_u32 s36, s36, {W_H2}")
    a("v_lshlrev_b32 v117, 9, v4\nv_lshl_add_u32 v117, v5, 4, v117\nv_add_u32 v117, s36, v117")
    a(f"s_lshl_b32 s36, s35, 9\ns_add_u32 s36, s36, {W_ML}\nv_and_b32 v118, 31, v0\nv_lshl_add_u32 v118, v118, 4, s36\nv_lshlrev_b32 v123, 2, v4")
    a("""v_and_b32 v119, 3, v0
    v_lshlrev_b32 v119, 4, v119
    v_bfe_u32 v4, v0, 2, 1
    v_lshl_add_u32 v119, v4, 3, v119
    v_bfe_u32 v4, v0, 4, 1
    v_lshl_add_u32 v119, v4, 2, v119
    v_lshrrev_b32 v4, 5, v0
    v_lshl_add_u32 v119, v4, 1, v119""")
    a(f"s_lshl_b32 s35, s34, 6\ns_add_u32 s35, s35, {L_O}\nv_add_u32 v119, s35, v119")
    a(f"v_lshlrev_b32 v120, 4, v3\nv_add_u32 v120, {L_O}, v120")
    a("s_lshl_b32 s35, s6, 2\ns_add_u32 s35, s35, s34\ns_lshl_b32 s35, s35, 5\ns_lshl_b32 s36, s4, 2\ns_add_u32 s35, s35, s36\ns_add_u32 s35, s35, s7")
    a(f"s_lshl_b32 s35, s35, 7\ns_add_u32 s35, s35, {W_H3}\nv_lshl_add_u32 v121, v0, 3, s35")
    a("s_movk_i32 s52, 0x1000\ns_movk_i32 s53, 0x2000\ns_movk_i32 s54, 0x3000\ns_mov_b32 s55, 0x8000\nv_mov_b32 v125, 0xff")
    a("s_waitcnt lgkmcnt(0)")
    tags()
    a("v_lshlrev_b32 v4, 3, v6\nv_lshrrev_b32 v122, v4, s32\nv_mov_b32 v147, s32\nv_mov_b32 v149, s32")
    tagbytes(56, 42)
    if 'noc' in abl: a("s_branch L_cdone")
    kreads = [f"ds_read_b128 v[{32 + 16 * t + 4 * s}:{35 + 16 * t + 4 * s}], v{8 + s} offset:{L_K + 8192 * t}" for t in range(2) for s in range(4)]
    a("s_mov_b32 s43, 0\ns_mov_b32 s41, 3\ns_mov_b32 s39, 0")
    if forceslow: a(f"s_mov_b32 s39, {NA}")
    if h1own: lds_spin(F_A, 1, [], 'ge', 20)
    else: lds_spin(F_LD, seg_flag("Kpart" if h1trig < 32 else "K"), [], 'ge', 20, nap=lazy)
    stamp('c', 1)
    L = a.label("h1"); L2 = a.label("h1k")
    a(f"{L}:")
    if local:
        a(f"s_cmp_lg_u32 s39, {NA}\ns_cbranch_scc1 {L2}")
        a(f"s_mov_b32 s43, {W_H1B - W_H1}\ns_mov_b32 s41, 1")
        tagbytes(56, 32)
        a(f"{L2}:")
    for i in range(2): a(f"buffer_load_dwordx4 v[{96 + 4 * i}:{99 + 4 * i}], v16, {WS}, s43 offen offset:{512 * i} {pollpol}")
    a(f"s_add_u32 s39, s39, 1\ns_cmp_gt_u32 s39, {SPIN}\ns_cbranch_scc1 L_end")
    if h1trig == 32 and not h1own:
        for r in kreads: a(r)
    a("s_waitcnt vmcnt(0)")
    strip(20, list(range(96, 104)), first=True)
    for k in range(4): a(f"v_add_f32 v{96 + k}, v{96 + k}, v{100 + k}")
    a(f"""v_and_b32 v20, 0xff, v20
    v_cmp_ne_u32 vcc, 0, v20
    v_permlane32_swap_b32 v96, v98
    v_permlane32_swap_b32 v97, v99
    s_cbranch_vccnz {L}""")
    stamp('c', 2)
    a("""v_add_f32 v96, v96, v98
    v_add_f32 v97, v97, v99
    v_mov_b32 v21, s41
    v_cvt_pk_bf16_f32 v96, v96, v97""")
    a(f"ds_write_b32 v17, v96\nds_write_b32 v18, v21 offset:{F_Q}")
    tagbytes(56, 32)
    if h1trig < 32 or h1own: lds_spin(F_LD, seg_flag("K"), kreads, 'ge', 20)
    lds_spin(F_Q, 0, [f"ds_read_b128 v[{96 + 4 * s}:{99 + 4 * s}], v15 offset:{64 * s}" for s in range(4)], 'all4', 20)
    stamp('c', 3)
    for s in range(4):
        for t in range(2):
            c = "0" if s == 0 else f"v[{24 + 4 * t}:{27 + 4 * t}]"
            a(f"v_mfma_f32_16x16x32_bf16 v[{24 + 4 * t}:{27 + 4 * t}], v[{32 + 16 * t + 4 * s}:{35 + 16 * t + 4 * s}], v[{96 + 4 * s}:{99 + 4 * s}], {c}")
    a("v_readfirstlane_b32 s41, v20\ns_and_b32 s41, s41, 2")
    vread = lambda u: f"ds_read_b64_tr_b16 v[{64 + 2 * u}:{65 + 2 * u}], v12 offset:{2048 * u}"
    a(f"ds_read_b32 v36, v1 offset:{F_LD}")
    for u in range(16): a(vread(u))
    a(f"s_mov_b32 s35, {SCALE:#x}\ns_mov_b32 s36, {LOG2E:#x}")
    if mimic:
        for r in range(24, 32): a(f"v_cvt_pk_bf16_f32 v{r}, 0, v{r}")
    for r in range(24, 32): a(f"v_mul_f32 v{r}, s35, v{r}")
    if mimic:
        for r in range(24, 32): a(f"v_cvt_pk_bf16_f32 v{r}, 0, v{r}")
    a("""v_max3_f32 v20, v24, v25, v26
    v_max3_f32 v21, v27, v28, v29
    v_max3_f32 v20, v20, v30, v31
    v_max_f32 v20, v20, v21
    v_mov_b32 v21, v20
    v_permlane16_swap_b32 v20, v21
    v_max_f32 v20, v20, v21
    v_mov_b32 v21, v20
    v_permlane32_swap_b32 v20, v21
    v_max_f32 v20, v20, v21
    v_mul_f32 v22, s36, v20""")
    for r in range(24, 32): a(f"v_fma_f32 v{r}, v{r}, s36, -v22")
    for r in range(24, 32): a(f"v_exp_f32 v{r}, v{r}")
    for k in range(4): a(f"v_cvt_pk_bf16_f32 v{32 + k}, v{24 + 2 * k}, v{25 + 2 * k}")
    a("""v_add_f32 v24, v24, v25
    v_add_f32 v26, v26, v27
    ds_write_b64 v19, v[32:33]
    v_add_f32 v28, v28, v29
    v_add_f32 v30, v30, v31
    ds_write_b64 v19, v[34:35] offset:128
    v_add_f32 v24, v24, v26
    v_add_f32 v28, v28, v30
    v_add_f32 v23, v24, v28
    v_mov_b32 v21, v23
    v_permlane16_swap_b32 v23, v21
    v_add_f32 v23, v23, v21
    v_mov_b32 v21, v23
    v_permlane32_swap_b32 v23, v21
    v_add_f32 v23, v23, v21
    v_mov_b32 v21, 1
    s_mov_b64 exec, 15
    ds_write2_b32 v112, v22, v23 offset0:0 offset1:16
    s_mov_b64 exec, -1""")
    a(f"ds_write_b32 v18, v21 offset:{F_P}")
    stamp('c', 4)
    reads = [f"ds_read_b64 v[{32 + 2 * r}:{33 + 2 * r}], v113 offset:{512 * r}" for r in range(2)]
    reads += ["ds_read2_b32 v[150:151], v13 offset0:0 offset1:16"]
    reads += [f"ds_read_b128 v[{96 + 4 * w}:{99 + 4 * w}], v144 offset:{16 * w}" for w in range(4)]
    reads += [f"ds_read_b128 v[{56 + 4 * r}:{59 + 4 * r}], v114 offset:{32 * r}" for r in range(2)]
    lds_spin(F_P, 0, reads, 'all4', 20)
    stamp('c', 5)
    fill = ["v_max_f32_dpp v146, v150, v150 quad_perm:[1,0,3,2] row_mask:0xf bank_mask:0xf"]
    fill += [f"v_max3_f32 v{96 + h}, v{96 + h}, v{100 + h}, v{104 + h}" for h in range(4)]
    fill += ["v_max_f32_dpp v146, v146, v146 quad_perm:[2,3,0,1] row_mask:0xf bank_mask:0xf"]
    fill += [f"v_max_f32 v{96 + h}, v{96 + h}, v{108 + h}" for h in range(4)]
    fill += ["v_sub_f32 v150, v150, v146"] + [f"v_sub_f32 v{56 + k}, v{56 + k}, v{96 + (k & 3)}" for k in range(8)]
    fill += ["v_exp_f32 v150, v150"] + [f"v_exp_f32 v{56 + k}, v{56 + k}" for k in range(4)] + ["v_mul_f32 v148, v150, v151"]
    fill += [f"v_exp_f32 v{60 + k}, v{60 + k}" for k in range(2)] + ["v_add_f32_dpp v148, v148, v148 quad_perm:[1,0,3,2] row_mask:0xf bank_mask:0xf"]
    fill += [f"v_exp_f32 v{62 + k}, v{62 + k}" for k in range(2)] + ["v_add_f32_dpp v148, v148, v148 quad_perm:[2,3,0,1] row_mask:0xf bank_mask:0xf"]
    def ml_pub():
        a("s_mov_b64 exec, 1")
        st2([f"buffer_store_dwordx4 v[146:149], v116, {WS}, 0 offen"], 'ml')
        a("s_mov_b64 exec, -1")
    def pv(u):
        r = u >> 3
        c = "0" if u % 8 < 2 else f"v[{40 + 8 * r + 4 * (u & 1)}:{43 + 8 * r + 4 * (u & 1)}]"
        a(f"v_mfma_f32_4x4x4_16b_bf16 v[{40 + 8 * r + 4 * (u & 1)}:{43 + 8 * r + 4 * (u & 1)}], v[{32 + 2 * r}:{33 + 2 * r}], v[{64 + 2 * u}:{65 + 2 * u}], {c} cbsz:3 abid:{u & 7}")
    LV = a.label("vall"); LW = a.label("vdone"); LV2 = a.label("vall2")
    a(f"v_cmp_gt_u32 vcc, {seg_flag('V')}, v36\ns_cbranch_vccz {LV}")
    a(f"ds_read_b32 v36, v1 offset:{F_LD}")
    for u in range(16): a(vread(u))
    for f_ in fill: a(f_)
    ml_pub()
    a("s_waitcnt lgkmcnt(0)")
    for c in range(4):
        LC = a.label("vc")
        a(f"v_cmp_gt_u32 vcc, {seg_flag('V' + (str(c) if c < 3 else ''))}, v36\ns_cbranch_vccz {LC}")
        lds_spin(F_LD, seg_flag("V" + (str(c) if c < 3 else "")), [vread(u) for u in range(4 * c, 4 * c + 4)], 'ge', 20)
        a(f"{LC}:")
        for u in range(4 * c, 4 * c + 4): pv(u)
    a(f"s_branch {LW}\n{LV}:")
    for u in range(16):
        pv(u)
        for f_ in fill[2 * u:2 * u + 2]: a(f_)
    assert len(fill) <= 32
    ml_pub()
    a(f"{LW}:")
    stamp('c', 6)
    a("s_nop 0")
    for h in range(4): a(f"v_add_f32 v{40 + h}, v{40 + h}, v{44 + h}")
    for h in range(4): a(f"v_mul_f32 v{40 + h}, v{40 + h}, v{56 + h}")
    for h in range(4): a(f"v_add_f32 v{48 + h}, v{48 + h}, v{52 + h}")
    for h in range(4): a(f"v_fmac_f32 v{40 + h}, v{48 + h}, v{60 + h}")
    a("""v_permlane32_swap_b32 v40, v41
    v_permlane32_swap_b32 v42, v43
    v_add_f32 v40, v40, v41
    v_add_f32 v42, v42, v43
    v_bfi_b32 v40, v125, v122, v40
    v_bfi_b32 v42, v125, v122, v42""")
    st2([f"buffer_store_dword v40, v115, {WS}, 0 offen", f"buffer_store_dword v42, v115, {WS}, s55 offen"], 'h2')
    stamp('c', 7)
    if fine:
        a("s_waitcnt vmcnt(0)"); stamp('c', 1, True)
    if 'noh2' in abl: a("s_branch L_cdone")
    LF = a.label("h2"); LG = a.label("h2g"); LD = a.label("h2d")
    woreads = [f"ds_read_b64_tr_b16 v[{80 + 4 * s + 2 * x}:{81 + 4 * s + 2 * x}], v14 offset:{4096 * s + 2048 * x}" for s in range(4) for x in range(2)]
    wdreads = [f"ds_read_b64_tr_b16 v[{48 + 4 * s + 2 * x}:{49 + 4 * s + 2 * x}], v14 offset:{L_WD - L_WO + 4096 * s + 2048 * x}" for s in range(2) for x in range(2)]
    hreads = [f"ds_read_b128 v[{56 + 4 * s}:{59 + 4 * s}], v120 offset:{L_H - L_O + 64 * s}" for s in range(2)]
    last = max(seg_flag("WO"), seg_flag("WD"))
    def payload_loads():
        for i in range(4): a(f"buffer_load_dwordx4 v[{64 + 4 * i}:{67 + 4 * i}], v117, {WS}, {'s%d' % (51 + i) if i else 0} offen {pollpol}")
    def payload_check(mul):
        for i in range(4):
            a(f"s_waitcnt vmcnt({3 - i})")
            strip(21, [64 + 4 * i + k for k in range(4)], first=(i == 0))
            if mul:
                for k in range(4): a(fm(i, k))
        a("v_and_b32 v21, 0xff, v21\nv_cmp_ne_u32 vcc, 0, v21\ns_and_b64 exec, vcc, vcc")
    LM = a.label("h2m"); LW = a.label("h2w"); LX = a.label("h2x")
    a(f"s_mov_b32 s38, {last}\ns_mov_b32 s36, {seg_flag('T')}\ns_mov_b32 s39, 0\ns_mov_b32 s37, {SPIN}")
    a("v_mov_b32 v101, s32\nv_mov_b32 v103, s32")
    def ml_loads():
        a(f"s_mov_b32 exec_hi, 0\nbuffer_load_dwordx4 v[32:35], v118, {WS}, 0 offen {pollpol}\ns_mov_b32 exec_hi, -1")
    def ml_check():
        a("s_mov_b32 exec_hi, 0")
        chk(20, 33, 32, first=True); chk(20, 35, 32)
        a("v_cmp_ne_u32 vcc, 0, v20\ns_mov_b32 exec_hi, -1")
    def red32(op, r, t):
        for n in (1, 2, 4, 8): a(f"{op}_dpp v{r}, v{r}, v{r} row_ror:{n} row_mask:0xf bank_mask:0xf")
        a(f"v_mov_b32 v{t}, v{r}\nv_permlane16_swap_b32 v{r}, v{t}\n{op} v{r}, v{r}, v{t}")
    def weights():
        a("v_mov_b32 v21, v32")
        red32("v_max_f32", 21, 22)
        a("v_sub_f32 v32, v32, v21\nv_exp_f32 v32, v32\nv_mul_f32 v22, v32, v34")
        for i in range(4): a(f"ds_bpermute_b32 v{36 + i}, v123, v32 offset:{32 * i}")
        red32("v_add_f32", 22, 23)
        a("v_rcp_f32 v22, v22\nv_readfirstlane_b32 s35, v22\ns_waitcnt lgkmcnt(0)")
    wait_gate(20)
    stamp('c', 2, True)
    ml_loads()
    payload_loads()
    lds_spin(F_LD, "s38", woreads + wdreads, 'ge', 20)
    a("s_waitcnt vmcnt(4)")
    ml_check()
    a(f"s_cbranch_vccz {LW}\n{LM}:")
    ml_loads()
    a("s_sub_u32 s37, s37, 1\ns_cbranch_scc1 L_end\ns_waitcnt vmcnt(0)")
    ml_check()
    a(f"s_cbranch_vccnz {LM}\n{LW}:")
    stamp('c', 3, True)
    weights()
    def fm(i, k): return f"v_mul_f32 v{24 + k}, v36, v{64 + k}" if i == 0 else f"v_fmac_f32 v{24 + k}, v{36 + i}, v{64 + 4 * i + k}"
    a(f"s_mov_b32 s40, {SPIN}")
    payload_check(True)
    stamp('c', 4, True)
    a(f"s_cbranch_scc0 {LD}\n{LG}:")
    if h2sleep: a(f"s_sleep {h2sleep}")
    payload_loads()
    a("s_sub_u32 s40, s40, 1\ns_cbranch_scc1 L_end")
    payload_check(False)
    a(f"s_cbranch_scc1 {LG}\ns_mov_b64 exec, -1")
    for i in range(4):
        for k in range(4): a(fm(i, k))
    a(f"{LD}:\ns_mov_b64 exec, -1")
    stamp('c', 8)
    if fine: a(f"s_waitcnt lgkmcnt(0)\ns_sub_u32 s74, {SPIN}, s40\ns_mul_i32 s74, s74, 2250\ns_add_u32 s74, s74, s64")
    a("""v_permlane32_swap_b32 v24, v25
    v_permlane32_swap_b32 v26, v27
    v_add_f32 v24, v24, v25
    v_add_f32 v26, v26, v27
    v_mov_b32 v21, 1
    v_permlane16_swap_b32 v24, v26
    v_add_f32 v24, v24, v26
    v_add_f32_dpp v24, v24, v24 row_ror:8 row_mask:0xf bank_mask:0xf
    v_mul_f32 v24, s35, v24
    v_cvt_pk_bf16_f32 v24, v24, v24""")
    a(f"ds_write_b16 v119, v24\nds_write_b32 v18, v21 offset:{F_O}")
    oreads = [f"ds_read_b128 v[{128 + 4 * s}:{131 + 4 * s}], v120 offset:{64 * s}" for s in range(4)]
    def mm_wo(first):
        for s in range(4): a(f"v_mfma_f32_16x16x32_bf16 v[96:99], v[{128 + 4 * s}:{131 + 4 * s}], v[{80 + 4 * s}:{83 + 4 * s}], {'0' if first and s == 0 else 'v[96:99]'}")
    lds_spin(F_O, 0, [f"ds_read_b32 v28, v1 offset:{F_H}"] + oreads + hreads, 'all4', 20)
    stamp('c', 9)
    mm_wo(True)
    a("s_cmp_ge_u32 s33, 28\ns_cbranch_scc1 L_noffn\nv_cmp_ne_u32 vcc, 0, v28\ns_cbranch_vccnz L_hok")
    lds_spin(F_H, 1, hreads, 'ge', 20)
    a("L_hok:")
    for s in range(2): a(f"v_mfma_f32_16x16x32_bf16 v[96:99], v[{56 + 4 * s}:{59 + 4 * s}], v[{48 + 4 * s}:{51 + 4 * s}], v[96:99]")
    a("L_noffn:")
    stamp('c', 10)
    a("s_nop 7" if True else "")
    a("v_mov_b32 v100, v96\nv_mov_b32_dpp v102, v96 quad_perm:[1,1,3,3] row_mask:0xf bank_mask:0xf")
    a(f"s_mov_b64 exec, 0x5555\nbuffer_store_dwordx4 v[100:103], v121, {WS}, 0 offen sc1\ns_mov_b64 exec, -1")
    stamp('c', 11)
    if consffn: a("s_cmp_ge_u32 s33, 28\ns_cbranch_scc0 L_cdone\ns_sub_u32 s38, s4, 4\ns_lshl_b32 s38, s38, 3\ns_add_u32 s38, s38, s6")
    else: a("s_cmp_lt_u32 s2, 32\ns_cbranch_scc0 L_cdone\ns_mov_b32 s38, s2")
    a("s_cmp_eq_u32 s34, 0\ns_cbranch_scc0 L_cdone")
    a(f"s_lshl_b32 s35, s38, 12\ns_add_u32 s35, s35, {W_H3}\nv_lshl_add_u32 v24, v0, 4, s35")
    a("v_and_b32 v25, 7, v0\ns_lshl_b32 s35, s38, 5\nv_lshl_add_u32 v25, v25, 2, s35")
    srd(44, 8, 1024)
    a("buffer_load_dword v26, v25, s[44:47], 0 offen")
    srd(52, 26, 1024)
    L = a.label("h3"); LD = a.label("h3d")
    def h3issue(k):
        for i in range(4): a(f"buffer_load_dwordx4 v[{32 + 16 * k + 4 * i}:{35 + 16 * k + 4 * i}], v24, {WS}, 0 offen offset:{1024 * i} sc1")
    a(f"s_mov_b32 s40, {SPIN}")
    for k in range(h3depth - 1):
        h3issue(k)
        if h3gap: a(f"s_sleep {h3gap}")
    a(f"{L}:")
    for k in range(h3depth):
        h3issue((k + h3depth - 1) % h3depth)
        a(f"s_waitcnt vmcnt({4 * (h3depth - 1)})")
        b = 32 + 16 * k
        for r in range(b + 1, b + 16, 2): chk(20, r, 32, first=(r == b + 1))
        a(f"v_add_f32 v22, v{b}, v{b + 4}\nv_add_f32 v23, v{b + 2}, v{b + 6}\nv_cmp_ne_u32 vcc, 0, v20")
        a(f"v_add_f32 v30, v{b + 8}, v{b + 12}\nv_add_f32 v31, v{b + 10}, v{b + 14}\ns_cbranch_vccz {LD}")
    a(f"s_sub_u32 s40, s40, 1\ns_cbranch_scc0 {L}\ns_branch L_end\n{LD}:")
    stamp('c', 12)
    a("""v_add_f32 v22, v22, v30
    v_add_f32 v23, v23, v31
    v_lshlrev_b32 v27, 16, v26
    v_and_b32 v28, 0xffff0000, v26
    v_permlane32_swap_b32 v22, v23
    v_add_f32 v22, v22, v23
    v_mov_b32 v23, v22
    v_permlane16_swap_b32 v22, v23
    v_add_f32 v22, v22, v23
    v_add_f32_dpp v22, v22, v22 row_ror:8 row_mask:0xf bank_mask:0xf
    v_mov_b32 v23, v22
    v_permlane32_swap_b32 v22, v23
    v_add_f32 v22, v22, v27
    v_add_f32 v23, v23, v28
    v_cvt_pk_bf16_f32 v22, v22, v23
    s_mov_b64 exec, 0xff
    buffer_store_dword v22, v25, s[52:55], 0 offen""")
    a(f"s_cmp_eq_u32 s38, 0\ns_cbranch_scc0 L_cdone\ns_mov_b64 exec, 1\nv_mov_b32 v25, s32\nbuffer_store_dword v25, off, {WS}, 0")
    a("L_cdone:")
    stamp('c', 13)
    dump('c')
    a("L_end:\ns_endpgm")

    head = open(f"cdna_kernels/{NAME}.s.ref").read().split("; Override")[0]
    out = head + f"; Generated by gen/gen.py (hand-designed kernel; see that script for the layout notes)\n; @launch grid=(256,1,1) block=(384,1,1) lds={L_END}\n"
    out += f'.amdgcn_target "amdgcn-amd-amdhsa--gfx950"\n.text\n.globl {NAME}_kernel\n.p2align 8\n.type {NAME}_kernel,@function\n'
    out += a.text()
    out += f""".section .rodata,"a"
.p2align 6
.amdhsa_kernel {NAME}_kernel
  .amdhsa_next_free_vgpr 184
  .amdhsa_next_free_sgpr 102
  .amdhsa_accum_offset 184
  .amdhsa_group_segment_fixed_size 0
  .amdhsa_kernarg_size 96
  .amdhsa_user_sgpr_count 2
  .amdhsa_user_sgpr_kernarg_segment_ptr 1
  .amdhsa_system_sgpr_workgroup_id_x 1
  .amdhsa_float_denorm_mode_32 3
.end_amdhsa_kernel
"""
    return out

if __name__ == "__main__":
    kw = eval("dict(" + (sys.argv[2] if len(sys.argv) > 2 else "") + ")")
    open(sys.argv[1], "w").write(gen(**kw))
```

```python
import sys
from asmlib import Asm

NAME = "parallel_sum__sliding_block_cached__swiglu_ffn__decode"

L_K, L_V, L_GU, L_WO, L_WD = 0, 32768, 65536, 81920, 98304
L_WQ = 106496
L_XX = L_WQ + 16384
L_Q  = L_XX + 2048
L_P  = L_Q + 1280
L_ML = L_P + 1024
L_O  = L_ML + 128
L_H  = L_O + 256
L_F  = L_H + 128
L_END = L_F + 64
F_LD, F_H, F_A, F_IE, F_Q, F_P, F_O = 0, 4, 8, 12, 16, 32, 48

W_EP  = 0
W_H1  = 0x1000
W_H1B = W_H1 + 256 * 256
W_HB  = W_H1B + 256 * 256
W_ML  = W_HB + 256 * 512
W_H3  = W_ML + 32 * 512
W_H2  = W_H3 + 32 * 4096
W_END = W_H2 + 1024 * 512
W_ST  = 0x400000

LOG2E = 0x3fb8aa3b
SCALE = 0x3db504f3
SPIN = 1 << 16
EPOCH_STEP = 0x9e3779b9

def gen(TH=22, stamps=False, order=("Q", "K", "V", "GU", "WO", "WD"), warm=64, warmpol="sc1 nt", NA=24, h3depth=4,
        forceslow=False, h1trig=32, probe=None, abl=(), rot=True, h3gap=0, TH2=None, mimic=True, pfpol='', h1own=True, h3warm='sc1', pre=True, spec=True, sleep=0, prio=3, h2sleep=0, hbsleep=0, boost=None, gate=None, first=True, hbfirst=True, fine=False, local=True, pollpol='sc1', h1wt=True, lazy=0, ntail=8, wt=(), warmat='K', consffn=True, THK=None, THG=None, h3mask=False, lateb=False, both=False, auxfirst=False, align=False, touch=False, hold=None, spf=False, pk=True, h1warm=None, dip=None, dip2=None, kearly=True, look2=True, nap0=0, nap1=0, hbwarm=None, refine=True):
    if not local: warm = 0
    a = Asm()
    WS = "s[48:51]"
    WSZ = W_ST + 256 * 512 if stamps else W_END
    diag = bool(stamps or probe)

    def stamp(role, idx, f=False):
        if fine and role == 'c' and 1 <= idx <= 6 and not f: return
        if f and not fine: return
        if probe and (idx == 0 or probe == (role, idx)):
            a(f"s_memrealtime s[{96 if idx == 0 else 98}:{97 if idx == 0 else 99}]")
            if idx == 0: a("s_waitcnt lgkmcnt(0)\ns_mov_b32 s98, s96")
        if stamps and (stamps is True or idx in (0, 13) or (stamps == 'l' and (role, idx) in (('l', 1), ('l', 7), ('l', 2), ('l', 3), ('l', 9), ('c', 11)))):
            a(f"s_memtime s[{64 + 2 * idx}:{65 + 2 * idx}]")
            if idx == 0: a("s_memrealtime s[94:95]")
            if (role, idx) in (('l', 9), ('c', 13), ('a', 9)): a("s_memrealtime s[92:93]")
    def dump(role):
        if probe and probe[0] == role:
            L = a.label("pad")
            a("s_waitcnt lgkmcnt(0)\ns_sub_u32 s98, s98, s96\ns_mul_i32 s98, s98, 3\ns_add_u32 s96, s96, s98\ns_add_u32 s96, s96, 1500")
            a(f"{L}:\ns_sleep 4\ns_memrealtime s[98:99]\ns_waitcnt lgkmcnt(0)\ns_sub_u32 s35, s98, s96\ns_cmp_lt_i32 s35, 0\ns_cbranch_scc1 {L}")
        if not stamps or (stamps == 'min' and role != 'c') or (stamps == 'l' and role == 'a'): return
        a("s_waitcnt lgkmcnt(0)")
        a(f"s_lshl_b32 s60, s2, 9\ns_lshl_b32 s61, s3, 6\ns_add_u32 s60, s60, s61\ns_add_u32 s60, s60, {W_ST}")
        a("s_mov_b64 exec, 1\nv_mov_b32 v126, s60")
        for i in range(16):
            a(f"v_mov_b32 v127, s{64 + 2 * i}\nbuffer_store_dword v127, v126, {WS}, 0 offen offset:{4 * i}")
    cold = []
    class outofline:
        def __enter__(self): self.keep = a.lines; a.lines = []
        def __exit__(self, *x): cold.extend(a.lines); a.lines = self.keep
    def srd(d, p, size):
        a(f"s_mov_b32 s{d}, s{p}\ns_and_b32 s{d + 1}, s{p + 1}, 0xffff\ns_mov_b32 s{d + 2}, {size}\ns_mov_b32 s{d + 3}, 0x20000")
    events = []
    for nm in order:
        if nm == "K" and h1trig < 32: events.append("Kpart")
        if nm in ("V", "GU", "Q"): events += [nm + "0", nm + "1", nm + "2"]
        events.append(nm)
    events.insert(len(events) - 1 if ntail <= 8 else len(events) - 2, "T")
    def seg_flag(name):
        return events.index(name) + 1
    def lgk(n):
        a(f"s_waitcnt lgkmcnt({0 if diag else n})")
    def st2(ops, name=None):
        if not local or name in wt:
            for o in ops: a(o + " sc1" if o.startswith("buffer_store") else o)
            return
        L1 = a.label("slow"); L2 = a.label("st")
        a(f"s_cmp_eq_u32 s41, 0\ns_cbranch_scc1 {L1}")
        for o in ops: a(o)
        a(f"{L2}:")
        with outofline():
            a(f"{L1}:\ns_nop 1")
            for o in ops: a(o + " sc1" if o.startswith("buffer_store") else o)
            a(f"s_nop 1\ns_branch {L2}")
    def lds_spin(flag_off, want, reads, kind, tmp, nap=0):
        if not spec and len(reads) > 4 and kind == 'ge':
            lds_spin(flag_off, want, [], kind, tmp)
            for r in reads: a(r)
            a("s_waitcnt lgkmcnt(0)")
            return
        L = a.label("spin")
        a(f"s_mov_b32 s40, {SPIN}\n{L}:")
        if sleep and kind == 'ge': a(f"s_sleep {sleep}")
        elif nap: a(f"s_sleep {nap}")
        a(f"ds_read_b32 v{tmp}, v1 offset:{flag_off}" if kind == 'ge' else f"ds_read_b128 v[{tmp}:{tmp + 3}], v1 offset:{flag_off}")
        for r in reads: a(r)
        a("s_sub_u32 s40, s40, 1\ns_cbranch_scc1 L_end")
        a("s_waitcnt lgkmcnt(0)")
        if kind == 'ge':
            a(f"v_cmp_gt_u32 vcc, {want}, v{tmp}")
        else:
            a(f"v_and_b32 v{tmp + 2}, v{tmp + 2}, v{tmp + 3}\nv_bitop3_b32 v{tmp}, v{tmp}, v{tmp + 1}, v{tmp + 2} bitop3:0x80")
            a(f"v_cmp_eq_u32 vcc, 0, v{tmp}")
        a(f"s_cbranch_vccnz {L}")
    def wait_gate(tmp):
        if gate == 'IE': lds_spin(F_IE, 1, [], 'ge', tmp)
        elif gate == 'S': lds_spin(F_LD, "s38", [], 'ge', tmp)
        elif gate == 'T': lds_spin(F_LD, "s36", [], 'ge', tmp)
        elif gate: lds_spin(F_LD, seg_flag(gate), [], 'ge', tmp)
        a(f"s_mov_b32 s40, {SPIN}")
    def tagbytes(dst, src):
        a(f"s_and_b32 s{dst}, s{src}, 0xff\ns_bfe_u32 s{dst + 1}, s{src}, 0x80008\ns_bfe_u32 s{dst + 2}, s{src}, 0x80010\ns_lshr_b32 s{dst + 3}, s{src}, 24")
    def chk(acc, r, t, first=False):
        a(f"v_xor_b32 v{acc}, s{t}, v{r}" if first else f"v_bitop3_b32 v{acc}, v{acc}, v{r}, s{t} bitop3:0xf6")
    def strip(acc, regs, first=False):
        for k, r in enumerate(regs): a(f"v_xor_b32 v{r}, s{56 + (k & 3)}, v{r}")
        for k in range(0, len(regs), 2):
            a(f"v_or_b32 v{acc}, v{regs[k]}, v{regs[k + 1]}" if first and k == 0 else f"v_or3_b32 v{acc}, v{acc}, v{regs[k]}, v{regs[k + 1]}")
    def tags():
        if not local:
            a(f"s_add_u32 s32, s32, {EPOCH_STEP:#x}\ns_mov_b32 s42, s32")
            return
        a(f"s_add_u32 s32, s32, {EPOCH_STEP:#x}\ns_getreg_b32 s42, hwreg(HW_REG_XCC_ID, 0, 4)\ns_add_u32 s42, s42, 1\ns_mul_i32 s42, s42, 0x01010101\ns_xor_b32 s42, s42, s32")

    a(f"{NAME}_kernel:")
    stamp('all', 0)
    a("""s_cmp_ge_u32 s2, 256
    s_cbranch_scc1 L_end
    s_load_dwordx16 s[8:23], s[0:1], 0
    s_load_dwordx8 s[24:31], s[0:1], 64
    v_lshrrev_b32 v2, 6, v0
    v_lshlrev_b32 v3, 7, v0
    v_readfirstlane_b32 s3, v2
    v_and_b32 v0, 63, v0
    s_and_b32 s4, s2, 7
    s_lshr_b32 s5, s2, 3
    s_and_b32 s6, s5, 7
    s_lshr_b32 s7, s5, 3
    s_lshl_b32 s33, s7, 3
    s_add_u32 s33, s33, s4""")
    a(f"v_mov_b32 v1, {L_F}")
    a("s_cmp_lt_u32 s3, 2\ns_cbranch_scc1 L_al")
    if spf:
        a(f"s_cmp_eq_u32 s3, 2\ns_cbranch_scc1 L_clr\ns_getpc_b64 s[36:37]\nL_pc2:\ns_sub_u32 s36, s36, L_pc2-{NAME}_kernel\ns_subb_u32 s37, s37, 0")
        a(f"s_sub_u32 s35, s3, 3\ns_lshl_b32 s35, s35, 5\ns_add_u32 s35, s35, s5\ns_lshl_b32 s35, s35, 7\ns_min_u32 s38, s35, L_end-{NAME}_kernel")
        a(f"s_load_dword s100, s[36:37], s38")
        if spf == 2: a(f"s_add_u32 s35, s35, 12288\ns_min_u32 s38, s35, L_end-{NAME}_kernel\ns_load_dword s101, s[36:37], s38")
        a("s_branch L_cb\nL_clr:")
    a("v_mov_b32 v4, 0\nv_lshl_add_u32 v5, v0, 2, v1\ns_mov_b64 exec, 0xffff\nds_write_b32 v5, v4\ns_mov_b64 exec, -1")
    a("s_waitcnt lgkmcnt(0)\nL_cb:\ns_barrier\ns_waitcnt lgkmcnt(0)")
    if nap0: a(f"s_sleep {nap0}")
    elif hold: lds_spin(F_LD, seg_flag(hold), [], 'ge', 20, nap=4)
    a("s_branch " + ("L_t1" if touch else "L_comp") + "\nL_al:")
    if spf: abl = tuple(abl) + ('nopf',)
    if 'nopf' not in abl:
        a(f"s_getpc_b64 s[36:37]\nL_pc:\ns_sub_u32 s36, s36, L_pc-{NAME}_kernel\ns_subb_u32 s37, s37, 0")
        a(f"v_min_u32 v3, L_end-{NAME}_kernel, v3\nglobal_load_dword v180, v3, s[36:37] {pfpol}")
    a("s_cmp_eq_u32 s3, 1\ns_cbranch_scc1 L_loader")

    a("""v_lshlrev_b32 v2, 4, v0
    s_mov_b32 s46, 1024
    s_mov_b32 s47, 0x20000
    s_waitcnt lgkmcnt(0)
    s_mov_b32 s44, s8
    s_and_b32 s45, s9, 0xffff
    buffer_load_dwordx4 v[8:11], v2, s[44:47], 0 offen
    s_barrier
    s_branch L_aux""")

    a("L_loader:")
    a(f"s_setprio {prio}")
    a("""v_lshrrev_b32 v6, 3, v0
    v_and_b32 v7, 7, v0
    v_lshlrev_b32 v15, 17, v6
    v_lshl_add_u32 v15, v7, 4, v15
    s_lshl_b32 s35, s7, 20
    s_lshl_b32 s36, s4, 10
    s_add_u32 s35, s35, s36
    s_lshl_b32 s36, s6, 7
    s_add_u32 s39, s35, s36
    s_mov_b32 s46, 4194304
    s_mov_b32 s47, 0x20000""")
    if boost: a("s_cmp_eq_u32 s6, 3\ns_cselect_b64 vcc, -1, 0")
    a("""s_waitcnt lgkmcnt(0)
    s_mov_b32 s44, s14
    s_and_b32 s45, s15, 0xffff""")
    stamp('l', 1)
    def k_setup():
        a("""v_and_b32 v2, 15, v0
        v_lshrrev_b32 v3, 4, v0
        v_xor_b32 v4, v2, v3
        v_lshlrev_b32 v4, 4, v4
        v_lshlrev_b32 v5, 8, v3""")
        for i in range(4): a(f"v_xor_b32 v{8 + i}, {64 * i}, v4\nv_add_u32 v{8 + i}, v{8 + i}, v5")
        a("""s_lshl_b32 s35, s4, 24
        s_lshl_b32 s36, s5, 15
        s_add_u32 s35, s35, s36
        s_add_u32 s35, s35, 15728640""")
        a("s_lshl_b32 s40, s4, 12" if rot else "s_mov_b32 s40, 0")
        a("""s_add_u32 s44, s10, s35
        s_addc_u32 s45, s11, 0
        s_and_b32 s45, s45, 0xffff
        s_mov_b32 s46, 32768
        s_add_u32 s12, s12, s35
        s_addc_u32 s13, s13, 0""")
    nwarm = 1 if warm else 0
    def late_setup():
        a("""v_lshrrev_b32 v4, 2, v2
        v_xor_b32 v4, v4, v3
        v_lshl_add_u32 v12, v4, 6, v5
        v_and_b32 v4, 3, v0
        v_lshl_add_u32 v12, v4, 4, v12
        v_mul_u32_u24 v13, 28672, v6
        v_lshl_add_u32 v13, v7, 4, v13
        v_lshlrev_b32 v4, 1, v3
        v_xor_b32 v4, v4, v7
        v_lshlrev_b32 v4, 4, v4
        v_lshl_add_u32 v14, v6, 10, v4
        s_mul_i32 s41, s6, 229376
        s_lshl_b32 s37, s33, 7
        s_add_u32 s41, s41, s37
        s_lshl_b32 s42, s4, 19
        s_lshl_b32 s38, s7, 17
        s_add_u32 s42, s42, s38
        s_lshl_b32 s38, s6, 7
        s_add_u32 s42, s42, s38
        s_lshl_b32 s43, s33, 16
        s_add_u32 s43, s43, s38""")
        srd(48, 30, WSZ)
        if h3warm is not None:
            if consffn: a(f"s_sub_u32 s36, s4, 4\ns_lshl_b32 s36, s36, 3\ns_add_u32 s36, s36, s6\ns_lshl_b32 s36, s36, 12\ns_add_u32 s36, s36, {W_H3}\nv_lshl_add_u32 v19, v0, 6, s36")
            else: a(f"s_lshl_b32 s36, s2, 12\ns_add_u32 s36, s36, {W_H3}\ns_cmp_lt_u32 s2, 32\ns_cselect_b32 s36, s36, 0x7f000000\nv_lshl_add_u32 v19, v0, 6, s36")
        if warm:
            a(f"s_lshl_b32 s36, s4, 7\ns_add_u32 s36, s36, s5\ns_lshl_b32 s37, s36, 9\ns_add_u32 s37, s37, {W_H2}")
            a("v_lshrrev_b32 v16, 3, v0\nv_lshlrev_b32 v16, 14, v16\nv_lshl_add_u32 v16, v7, 6, v16\nv_add_u32 v16, s37, v16")
            a(f"s_lshl_b32 s37, s36, 4\ns_add_u32 s37, s37, {W_ML}\nv_and_b32 v17, 3, v0\nv_lshlrev_b32 v17, 9, v17\nv_add_u32 v17, s37, v17")
            a(f"s_lshl_b32 s36, s4, 2\ns_add_u32 s36, s36, s7\ns_lshl_b32 s36, s36, 3\ns_add_u32 s36, s36, s6\ns_lshl_b32 s36, s36, 9\ns_add_u32 s36, s36, {W_HB}")
            a("v_lshl_add_u32 v18, v7, 6, s36\nv_cmp_gt_u32 s[56:57], 40, v0\nv_cndmask_b32 v17, v17, v18, s[56:57]\nv_cmp_gt_u32 s[56:57], 32, v0\nv_cndmask_b32 v16, v17, v16, s[56:57]")
    def seg_loads(name):
        r = []
        if name in ("K", "V"):
            base = L_K if name == "K" else L_V
            for i in range(32):
                v = f"v{8 + ((i >> 1) & 3)}" if name == "K" else "v12"
                r.append((f"s_mov_b32 m0, {base + 1024 * i}" if i % 4 == 0 else None, f"{v}, s[44:47], s40 offen offset:{1024 * (i & 3)}",
                          "s_addk_i32 s40, 0x1000\ns_and_b32 s40, s40, 0x7fff" if i % 4 == 3 else None))
        if name == "Q":
            for i in range(16): r.append((f"s_mov_b32 m0, {L_WQ + 1024 * i}", "v15, s[44:47], s39 offen", "s_addk_i32 s39, 0x2000"))
        if name == "GU":
            for i in range(16): r.append((f"s_mov_b32 m0, {L_GU + 1024 * i}", f"v13, s[{44 + 8 * (i & 1)}:{47 + 8 * (i & 1)}], s41 offen", "s_addk_i32 s41, 0xe00" if i & 1 else None))
        if name == "WO":
            for i in range(16): r.append((f"s_mov_b32 m0, {L_WO + 1024 * i}", "v14, s[44:47], s42 offen", "s_addk_i32 s42, 0x2000"))
        if name == "WD":
            for i in range(8): r.append((f"s_mov_b32 m0, {L_WD + 1024 * i}", "v14, s[44:47], s43 offen", "s_addk_i32 s43, 0x2000"))
        return r
    def seg_setup(name):
        if name == "K": k_setup()
        if name == "V": srd(44, 12, 32768)
        if name == "GU": srd(44, 20, 1835008); srd(52, 22, 1835008)
        if name == "WO": srd(44, 16, 4194304)
        if name == "WD": srd(44, 24, 1835008)
    def signal(f):
        a(f"v_mov_b32 v20, {f}\nds_write_b32 v1, v20 offset:{F_LD}")
        if events[f - 1] in order: stamp('l', 1 + order.index(events[f - 1]) if events[f - 1] != 'Q' else 7)
    def emit(segs, n0, pend, final):
        n = n0
        for name in segs:
            seg_setup(name)
            th = TH if name in ("Q", "K", "V") or TH2 is None else TH2
            if name in ("Q", "K") and THK: th = THK
            if name == "GU" and THG: th = THG
            lo = seg_loads(name)
            th0 = th
            for idx, (m0, ad, inc) in enumerate(lo):
                if m0: a(m0)
                th = th0
                for d_ in (dip, dip2):
                    if d_ and d_[0] <= n < d_[1]: th = d_[2]
                if n == (THK or TH):
                    a("s_barrier")
                    late_setup()
                if n >= th:
                    sig = pend and pend[0][0] <= n - (th - 1)
                    if boost and name in ("Q", "K", "V") and not sig and th == th0:
                        L = a.label("bo")
                        a(f"s_cbranch_vccnz {L}\ns_waitcnt vmcnt({th - 1})\n{L}:\ns_waitcnt vmcnt({boost - 1})")
                    else:
                        a(f"s_waitcnt vmcnt({th - 1})")
                    while pend and pend[0][0] <= n - (th - 1):
                        signal(pend.pop(0)[1])
                a(f"buffer_load_dwordx4 {ad} nt lds")
                if inc: a(inc)
                n += 1
                if name in ("V", "GU", "Q") and (idx + 1) % (len(lo) // 4) == 0 and idx + 1 < len(lo):
                    pend.append((n, seg_flag(name + str((idx + 1) // (len(lo) // 4) - 1))))
                if name == "K" and h1trig < 32 and idx + 1 == h1trig: pend.append((n, seg_flag("Kpart")))
            pend.append((n, seg_flag(name)))
            if name == "Q" and h1warm is not None:
                srd(52, 30, WSZ)
                a(f"s_lshl_b32 s35, s4, 5\ns_lshl_b32 s36, s6, 2\ns_add_u32 s35, s35, s36\ns_add_u32 s35, s35, s7\ns_lshl_b32 s35, s35, 8\ns_add_u32 s35, s35, {W_H1}")
                a(f"v_lshlrev_b32 v23, 6, v0\ns_mov_b64 exec, 15\nbuffer_load_dword v24, v23, s[52:55], s35 offen {h1warm}\ns_mov_b64 exec, -1")
                n += 1
            if name == warmat:
                if nwarm:
                    a(f"s_mov_b32 exec_hi, {0xfff if hbwarm is None else 0xf00}\nbuffer_load_dword v21, v16, {WS}, 0 offen {warmpol}\ns_mov_b32 exec_hi, -1")
                    n += 1
                    if hbwarm:
                        a(f"s_mov_b32 exec_lo, 0\ns_mov_b32 exec_hi, 0xff\nbuffer_load_dword v21, v16, {WS}, 0 offen {hbwarm}\ns_mov_b64 exec, -1")
                        n += 1
                if h3warm is not None and not consffn:
                    a(f"buffer_load_dword v22, v19, {WS}, 0 offen {h3warm}")
                    n += 1
        if final:
            pend.append((n - ntail, seg_flag("T"))); pend.sort()
            pend[:] = sorted(set((e, len(events) if e == n else max(f for (e2, f) in pend if e2 <= e)) for (e, f) in pend))
            if gate == 'IE': a(f"v_mov_b32 v20, 1\nds_write_b32 v1, v20 offset:{F_IE}")
            stamp('l', 8)
            while pend:
                e, f = pend.pop(0)
                a(f"s_waitcnt vmcnt({n - e})")
                signal(f)
                if events[f - 1] == "T": stamp('l', 5)
        return n
    assert order[0] == "Q" and 16 < TH < 48
    npre = 0 if 'nopf' in abl else 1
    ffn = ("GU", "WD")
    k = min(order.index(x) for x in ffn)
    pend = []
    n = emit(order[:k], npre, pend, False)
    a("s_cmp_ge_u32 s33, 28\ns_cbranch_scc1 L_ldb")
    emit(order[k:], n, list(pend), True)
    a("s_branch L_lde\nL_ldb:")
    emit([x for x in order[k:] if x not in ffn], n, list(pend), True)
    if h3warm is not None and consffn: a(f"buffer_load_dword v22, v19, {WS}, 0 offen {h3warm}")
    if touch: a("s_branch L_lde\nL_t1:\ns_branch L_t2")
    a("L_lde:")
    stamp('l', 9)
    dump('l')
    a("s_endpgm")

    a("L_aux:")
    stamp('a', 1)
    a("s_load_dword s32, s[30:31], 0")
    srd(48, 30, WSZ)
    a("v_lshrrev_b32 v3, 3, v0\nv_and_b32 v4, 7, v0")
    a("""v_and_b32 v6, 1, v0
    v_lshlrev_b32 v6, 4, v6
    v_mov_b32 v7, 0xffff
    v_lshlrev_b32 v6, v6, v7
    v_bfe_u32 v7, v0, 1, 2""")
    for d in range(4): a(f"v_cmp_eq_u32 vcc, {d}, v7\nv_cndmask_b32 v{12 + d}, 0, v6, vcc")
    a(f"v_lshlrev_b32 v6, 5, v0\nv_add_u32 v6, {L_XX}, v6")
    a(f"s_lshl_b32 s35, s7, 9\ns_add_u32 s35, s35, {L_XX}\nv_lshl_add_u32 v7, v3, 6, s35")
    a("s_waitcnt vmcnt(0)")
    stamp('a', 2)
    for k in range(4): a(f"v_lshlrev_b32 v{16 + 2 * k}, 16, v{8 + k}\nv_and_b32 v{17 + 2 * k}, 0xffff0000, v{8 + k}")
    def wave_sum(r, t):
        for n in (8, 4, 2, 1): a(f"v_add_f32_dpp v{r}, v{r}, v{r} row_ror:{n} row_mask:0xf bank_mask:0xf")
        a(f"v_mov_b32 v{t}, v{r}\nv_permlane16_swap_b32 v{r}, v{t}\nv_add_f32 v{r}, v{r}, v{t}")
        a(f"v_mov_b32 v{t}, v{r}\nv_permlane32_swap_b32 v{r}, v{t}\nv_add_f32 v{r}, v{r}, v{t}")
    a("""v_add_f32 v24, v16, v17
    v_add_f32 v25, v18, v19
    v_add_f32 v26, v20, v21
    v_add_f32 v27, v22, v23
    v_add_f32 v24, v24, v25
    v_add_f32 v26, v26, v27
    v_add_f32 v24, v24, v26""")
    wave_sum(24, 25)
    a("v_mul_f32 v24, 0x3b000000, v24")
    for k in range(8): a(f"v_sub_f32 v{32 + k}, v{16 + k}, v24")
    a("v_mul_f32 v26, v32, v32\nv_mul_f32 v27, v33, v33")
    for k in range(2, 8): a(f"v_fmac_f32 v{26 + (k & 1)}, v{32 + k}, v{32 + k}")
    a("v_add_f32 v26, v26, v27\nv_cvt_pk_bf16_f32 v24, 0, v24")
    wave_sum(26, 25)
    for k in range(8): a(f"v_sub_f32 v{16 + k}, v{16 + k}, v24")
    a("""v_mul_f32 v26, 0x3b000000, v26
    v_cvt_pk_bf16_f32 v26, 0, v26
    v_add_f32 v26, 0x3727c5ac, v26
    v_cvt_pk_bf16_f32 v26, 0, v26
    v_sqrt_f32 v26, v26""")
    for k in range(8): a(f"v_cvt_pk_bf16_f32 v{16 + k}, 0, v{16 + k}")
    a("v_cvt_pk_bf16_f32 v26, 0, v26\nv_rcp_f32 v27, v26")
    for k in range(8): a(f"v_mul_f32 v{32 + k}, v{16 + k}, v27")
    for k in range(8): a(f"v_fma_f32 v{16 + k}, -v{32 + k}, v26, v{16 + k}")
    for k in range(8): a(f"v_fmac_f32 v{32 + k}, v{16 + k}, v27")
    for k in range(8): a(f"v_cvt_pk_bf16_f32 v{32 + k}, v{32 + k}, v{32 + k}")
    a("ds_write_b128 v6, v[32:35]\nds_write_b128 v6, v[36:39] offset:16")
    for k in range(4): a(f"ds_read_b128 v[{16 + 4 * k}:{19 + 4 * k}], v7 offset:{16 * k}")
    a("""v_lshlrev_b32 v5, 5, v4
    v_bfe_u32 v6, v0, 4, 1
    v_lshl_add_u32 v5, v6, 4, v5
    v_mov_b32 v61, v5
    v_lshrrev_b32 v6, 5, v0
    v_lshl_add_u32 v5, v6, 3, v5
    s_lshl_b32 s35, s4, 5
    s_lshl_b32 s36, s6, 2
    s_add_u32 s35, s35, s36
    s_add_u32 s35, s35, s7
    s_lshl_b32 s35, s35, 8""")
    a(f"s_add_u32 s35, s35, {W_H1}\nv_add_u32 v9, s35, v61\nv_mov_b32 v56, 0xff\ns_mov_b32 s43, {W_H1B - W_H1}")
    a("s_waitcnt lgkmcnt(0)")
    stamp('a', 3)
    tags()
    a("v_mov_b32 v57, s42\nv_lshrrev_b32 v58, 8, v57\nv_lshrrev_b32 v59, 16, v57\nv_lshrrev_b32 v60, 24, v57")
    a(f"v_add_u32 v11, {L_WQ}, v2")
    for i in range(16):
        for d in range(4): a(f"v_and_b32 v{128 + 4 * (i & 7) + d}, v{16 + i}, v{12 + d}")
        if i == 7 or i == 11 or i == 15:
            for c in ((0, 1) if i == 7 else (2,) if i == 11 else (3,)):
                lds_spin(F_LD, seg_flag("Q" + (str(c) if c < 3 else "")), [f"ds_read_b128 v[{64 + 4 * k}:{67 + 4 * k}], v11 offset:{1024 * k}" for k in range(4 * c, 4 * c + 4)], 'ge', 62)
                for k in range(4 * c, 4 * c + 4):
                    a(f"v_mfma_f32_16x16x32_bf16 v[32:35], v[{128 + 4 * (k & 7)}:{131 + 4 * (k & 7)}], v[{64 + 4 * k}:{67 + 4 * k}], {'0' if k == 0 else 'v[32:35]'}")
    stamp('a', 4)
    a("""v_permlane32_swap_b32 v32, v34
    v_permlane32_swap_b32 v33, v35
    v_add_f32_dpp v48, v34, v32 row_shl:8 row_mask:0xf bank_mask:0xf
    v_add_f32_dpp v49, v35, v33 row_shl:8 row_mask:0xf bank_mask:0xf
    v_add_u32 v48, 0x80, v48
    v_add_u32 v49, 0x80, v49
    v_mov_b32 v50, v48
    v_mov_b32 v51, v49
    v_permlane32_swap_b32 v48, v50
    v_permlane32_swap_b32 v49, v51
    s_mov_b64 exec, 0x00ff00ff""")
    for k in range(4): a(f"v_bfi_b32 v{52 + k}, v56, v{57 + k}, v{48 + k}")
    a(f"buffer_store_dwordx4 v[52:55], v9, {WS}, 0 offen" + ("" if local and not h1wt else " sc1"))
    if 'noh1b' not in abl and local:
        a("v_mov_b32 v57, s32\nv_lshrrev_b32 v58, 8, v57\nv_lshrrev_b32 v59, 16, v57\nv_lshrrev_b32 v60, 24, v57")
        for k in range(4): a(f"v_bfi_b32 v{160 + k}, v56, v{57 + k}, v{48 + k}")
        if lateb: a("v_mov_b32 v164, v9")
        else: a(f"buffer_store_dwordx4 v[160:163], v9, {WS}, s43 offen sc1")
    a(f"s_mov_b64 exec, -1\nv_mov_b32 v20, 1\nds_write_b32 v1, v20 offset:{F_A}")
    stamp('a', 5)
    a("L_aux2:")
    a("s_cmp_ge_u32 s33, 28\ns_cbranch_scc1 L_adone")
    if 'noffn' in abl: a("s_branch L_adone")
    a(f"s_lshl_b32 s35, s6, 8\ns_add_u32 s35, s35, {L_XX}\nv_lshl_add_u32 v7, v3, 5, s35")
    a("ds_read_b128 v[16:19], v7\nds_read_b128 v[20:23], v7 offset:16")
    a(f"s_lshl_b32 s35, s4, 2\ns_add_u32 s35, s35, s7\ns_lshl_b32 s35, s35, 12\ns_add_u32 s35, s35, {W_HB}")
    a("v_add_u32 v10, s35, v2\ns_lshl_b32 s36, s6, 9\ns_add_u32 s35, s35, s36\nv_lshl_add_u32 v9, v5, 1, s35")
    a(f"v_add_u32 v11, {L_GU}, v2")
    a("""v_bfe_u32 v8, v0, 4, 1
    v_lshlrev_b32 v8, 6, v8
    v_bfe_u32 v6, v0, 1, 2
    v_lshl_add_u32 v8, v6, 4, v8
    v_bfe_u32 v6, v0, 3, 1
    v_lshl_add_u32 v8, v6, 3, v8
    v_and_b32 v6, 1, v0
    v_lshl_add_u32 v8, v6, 2, v8
    v_lshrrev_b32 v6, 5, v0
    v_lshl_add_u32 v8, v6, 1, v8""")
    a(f"v_add_u32 v8, {L_H}, v8")
    tagbytes(56, 32)
    for k in range(4): a(f"v_mov_b32 v{57 + k}, s{56 + k}")
    a("s_waitcnt lgkmcnt(0)")
    for i in range(8):
        for d in range(4): a(f"v_and_b32 v{128 + 4 * i + d}, v{16 + i}, v{12 + d}")
    for c in range(4):
        rd = [f"ds_read_b128 v[{64 + 4 * i}:{67 + 4 * i}], v11 offset:{1024 * i}" for i in range(4 * c, 4 * c + 4)]
        if c == 3: rd.append(f"ds_read_b128 v[24:27], v1 offset:{F_Q}")
        if c == 0 and lazy: lds_spin(F_LD, seg_flag("V"), [], 'ge', 28, nap=lazy)
        lds_spin(F_LD, seg_flag("GU" + (str(c) if c < 3 else "")), rd, 'ge', 28)
        if c == 3: stamp('a', 6)
        for i in range(2 * c, 2 * c + 2):
            for m in range(2):
                cc = "0" if i == 0 else f"v[{32 + 4 * m}:{35 + 4 * m}]"
                a(f"v_mfma_f32_16x16x32_bf16 v[{32 + 4 * m}:{35 + 4 * m}], v[{128 + 4 * i}:{131 + 4 * i}], v[{64 + 8 * i + 4 * m}:{67 + 8 * i + 4 * m}], {cc}")
    a("v_and_b32 v26, v26, v27\nv_bitop3_b32 v24, v24, v25, v26 bitop3:0x80\nv_readfirstlane_b32 s41, v24\ns_and_b32 s41, s41, 2")
    a("""v_permlane32_swap_b32 v32, v34
    v_permlane32_swap_b32 v33, v35
    v_permlane32_swap_b32 v36, v38
    v_permlane32_swap_b32 v37, v39
    v_add_f32_dpp v48, v34, v32 row_shl:8 row_mask:0xf bank_mask:0xf
    v_add_f32_dpp v50, v35, v33 row_shl:8 row_mask:0xf bank_mask:0xf
    v_add_f32_dpp v49, v38, v36 row_shl:8 row_mask:0xf bank_mask:0xf
    v_add_f32_dpp v51, v39, v37 row_shl:8 row_mask:0xf bank_mask:0xf
    s_mov_b32 exec_lo, 0x00ff00ff
    s_mov_b32 exec_hi, 0x00ff00ff""")
    for k in range(4): a(f"v_add_u32 v{48 + k}, 0x80, v{48 + k}")
    for k in range(4): a(f"v_bfi_b32 v{48 + k}, v56, v{57 + k}, v{48 + k}")
    st2([f"buffer_store_dwordx4 v[48:51], v9, {WS}, 0 offen"], 'hb')
    a("s_mov_b64 exec, -1")
    stamp('a', 7)
    L = a.label("hb")
    a(f"s_mov_b32 s38, {max(seg_flag('WO'), seg_flag('WD'))}\ns_mov_b32 s36, {seg_flag('T')}\ns_mov_b32 s39, {0 if hbfirst else 1}")
    a(f"s_mov_b32 s40, {SPIN}\n{L}:")
    if gate:
        a("s_cmp_eq_u32 s39, 1\ns_cbranch_scc0 L_hbg")
        wait_gate(28)
        a("L_hbg:\ns_add_u32 s39, s39, 1")
    for i in range(4): a(f"buffer_load_dwordx4 v[{64 + 4 * i}:{67 + 4 * i}], v10, {WS}, 0 offen offset:{1024 * i} {pollpol}")
    a("s_sub_u32 s40, s40, 1\ns_cbranch_scc1 L_end")
    for i in range(4):
        a(f"s_waitcnt vmcnt({3 - i})")
        strip(20, [64 + 4 * i + k for k in range(4)], first=(i == 0))
        if i:
            for k in range(4): a(f"v_add_f32 v{64 + k}, v{64 + k}, v{64 + 4 * i + k}")
    a(f"v_and_b32 v20, 0xff, v20\nv_cmp_ne_u32 vcc, 0, v20")
    if hbsleep: a(f"s_cbranch_vccz L_hbok\ns_sleep {hbsleep}\ns_branch {L}\nL_hbok:")
    else: a(f"s_cbranch_vccnz {L}")
    stamp('a', 8)
    a(f"""v_permlane32_swap_b32 v64, v66
    v_permlane32_swap_b32 v65, v67
    v_add_f32 v64, v64, v66
    v_add_f32 v66, v65, v67
    v_cvt_pk_bf16_f32 v64, 0, v64
    v_cvt_pk_bf16_f32 v66, 0, v66
    v_mul_f32 v20, {(LOG2E | 0x80000000):#x}, v64
    v_exp_f32 v20, v20
    v_add_f32 v20, 1.0, v20
    v_rcp_f32 v21, v20
    v_mul_f32 v22, v64, v21""")
    if refine: a("""v_fma_f32 v23, -v22, v20, v64
    v_fma_f32 v23, v23, v21, v22
    v_cmp_class_f32 vcc, v23, 3
    v_cndmask_b32 v22, v23, v22, vcc""")
    a(f"""v_cvt_pk_bf16_f32 v22, 0, v22
    v_mul_f32 v22, v22, v66
    v_cvt_pk_bf16_f32 v22, v22, v22
    v_mov_b32 v21, 1
    ds_write_b16 v8, v22
    ds_write_b32 v1, v21 offset:{F_H}""")
    a("L_adone:")
    if lateb and local:
        a(f"s_mov_b64 exec, 0x00ff00ff\nbuffer_store_dwordx4 v[160:163], v164, {WS}, s43 offen sc1")
    stamp('a', 9)
    dump('a')
    a("s_endpgm")

    a("L_comp:\ns_sub_u32 s34, s3, 2")
    a("s_load_dword s32, s[30:31], 0")
    srd(48, 30, WSZ)
    if warm and not h1wt:
        a("s_cmp_eq_u32 s34, 1\ns_cbranch_scc0 L_nowarm")
        a(f"s_lshl_b32 s35, s4, 5\ns_lshl_b32 s36, s6, 2\ns_add_u32 s35, s35, s36\ns_add_u32 s35, s35, s7\ns_lshl_b32 s35, s35, 8\ns_add_u32 s35, s35, {W_H1}")
        a(f"v_lshlrev_b32 v4, 6, v0\ns_mov_b64 exec, 15\nbuffer_load_dword v124, v4, {WS}, s35 offen {warmpol}\ns_mov_b64 exec, -1\nL_nowarm:")
    a("""v_and_b32 v2, 15, v0
    v_lshrrev_b32 v3, 4, v0""")
    a("""v_xor_b32 v4, v2, v3
    v_lshlrev_b32 v4, 4, v4
    v_lshrrev_b32 v5, 2, v2
    v_lshlrev_b32 v5, 11, v5
    v_and_b32 v6, 3, v0
    v_lshl_add_u32 v5, v6, 8, v5
    s_lshr_b32 s35, s34, 1
    s_lshl_b32 s35, s35, 14
    s_and_b32 s36, s34, 1
    s_lshl_b32 s36, s36, 10
    s_add_u32 s35, s35, s36
    v_add_u32 v5, s35, v5""")
    for s_ in range(4):
        a(f"v_xor_b32 v{8 + s_}, {64 * s_}, v4\nv_add_u32 v{8 + s_}, v{8 + s_}, v5")
    a("""v_lshrrev_b32 v4, 2, v2
    v_xor_b32 v5, s34, v4
    v_lshlrev_b32 v5, 6, v5
    v_lshl_add_u32 v5, v4, 8, v5
    v_lshrrev_b32 v7, 1, v3
    v_lshl_add_u32 v5, v7, 10, v5
    v_and_b32 v7, 1, v3
    v_lshl_add_u32 v5, v7, 5, v5
    v_lshl_add_u32 v5, v6, 3, v5""")
    a(f"v_add_u32 v12, {L_V}, v5")
    a("""v_lshl_add_u32 v5, v3, 2, v4
    v_lshrrev_b32 v7, 1, v5
    v_and_b32 v7, 3, v7
    v_xor_b32 v7, s34, v7
    v_lshlrev_b32 v7, 5, v7
    v_lshl_add_u32 v7, v5, 7, v7
    v_lshl_add_u32 v14, v6, 3, v7""")
    a(f"v_add_u32 v14, {L_WO}, v14")
    a(f"v_mul_u32_u24 v15, 320, v6\nv_lshl_add_u32 v15, v3, 4, v15\nv_add_u32 v15, {L_Q}, v15")
    a("""v_lshrrev_b32 v4, 5, v0
    v_lshlrev_b32 v16, 8, v4
    v_and_b32 v5, 1, v3
    v_lshl_add_u32 v16, v5, 10, v16
    v_lshl_add_u32 v16, v2, 4, v16
    s_lshl_b32 s35, s4, 13
    s_lshl_b32 s36, s34, 11
    s_add_u32 s35, s35, s36""")
    a(f"s_add_u32 s35, s35, {W_H1}\nv_add_u32 v16, s35, v16")
    a(f"s_mul_i32 s35, s34, 320\ns_add_u32 s35, s35, {L_Q}\nv_and_b32 v5, 31, v0\nv_lshl_add_u32 v17, v5, 3, s35\nv_lshl_add_u32 v17, v4, 2, v17")
    a("s_lshl_b32 s35, s34, 2\nv_add_u32 v18, s35, v1")
    a(f"s_lshl_b32 s35, s34, 8\ns_add_u32 s35, s35, {L_P}\nv_lshl_add_u32 v19, v3, 5, s35\nv_lshl_add_u32 v19, v6, 3, v19")
    a(f"s_lshl_b32 s35, s34, 4\ns_add_u32 s35, s35, {L_ML}\nv_lshl_add_u32 v112, v0, 2, s35")
    a(f"v_lshlrev_b32 v113, 3, v0\nv_add_u32 v113, {L_P}, v113")
    a(f"v_lshlrev_b32 v114, 4, v4\nv_add_u32 v114, {L_ML}, v114")
    a(f"s_lshl_b32 s35, s34, 2\ns_add_u32 s35, s35, {L_ML}\nv_lshl_add_u32 v13, v6, 4, s35\nv_mov_b32 v144, {L_ML}")
    a("s_lshl_b32 s35, s4, 7\ns_add_u32 s35, s35, s5")
    a(f"s_lshl_b32 s36, s35, 9\ns_lshl_b32 s37, s34, 7\ns_add_u32 s36, s36, s37\ns_add_u32 s36, s36, {W_H2}\nv_lshl_add_u32 v115, v5, 2, s36\nv_lshl_add_u32 v115, v4, 14, v115")
    a(f"s_lshl_b32 s36, s34, 5\ns_add_u32 s36, s36, s35\ns_lshl_b32 s36, s36, 4\ns_add_u32 s36, s36, {W_ML}\nv_mov_b32 v116, s36")
    a("v_lshrrev_b32 v4, 3, v0\nv_and_b32 v5, 7, v0\ns_lshl_b32 s35, s4, 2\ns_add_u32 s35, s35, s7")
    a(f"s_lshl_b32 s36, s35, 14\ns_lshl_b32 s37, s34, 7\ns_add_u32 s36, s36, s37\ns_add_u32 s36, s36, {W_H2}")
    a("v_lshlrev_b32 v117, 9, v4\nv_lshl_add_u32 v117, v5, 4, v117\nv_add_u32 v117, s36, v117")
    a(f"s_lshl_b32 s36, s35, 9\ns_add_u32 s36, s36, {W_ML}\nv_and_b32 v118, 31, v0\nv_lshl_add_u32 v118, v118, 4, s36\nv_lshlrev_b32 v123, 2, v4")
    a("""v_and_b32 v119, 3, v0
    v_lshlrev_b32 v119, 4, v119
    v_bfe_u32 v4, v0, 2, 1
    v_lshl_add_u32 v119, v4, 3, v119
    v_bfe_u32 v4, v0, 4, 1
    v_lshl_add_u32 v119, v4, 2, v119
    v_lshrrev_b32 v4, 5, v0
    v_lshl_add_u32 v119, v4, 1, v119""")
    a(f"s_lshl_b32 s35, s34, 6\ns_add_u32 s35, s35, {L_O}\nv_add_u32 v119, s35, v119")
    a(f"v_lshlrev_b32 v120, 4, v3\nv_add_u32 v120, {L_O}, v120")
    a("s_lshl_b32 s35, s6, 2\ns_add_u32 s35, s35, s34\ns_lshl_b32 s35, s35, 5\ns_lshl_b32 s36, s4, 2\ns_add_u32 s35, s35, s36\ns_add_u32 s35, s35, s7")
    a(f"s_lshl_b32 s35, s35, 7\ns_add_u32 s35, s35, {W_H3}\nv_lshl_add_u32 v121, v0, 3, s35")
    a("s_movk_i32 s52, 0x1000\ns_movk_i32 s53, 0x2000\ns_movk_i32 s54, 0x3000\ns_mov_b32 s55, 0x8000\nv_mov_b32 v125, 0xff")
    a("s_waitcnt lgkmcnt(0)")
    tags()
    a("v_lshlrev_b32 v4, 3, v6\nv_lshrrev_b32 v122, v4, s32\nv_mov_b32 v147, s32\nv_mov_b32 v149, s32")
    tagbytes(56, 42)
    if 'noc' in abl: a("s_branch L_cdone")
    kreads = [f"ds_read_b128 v[{32 + 16 * t + 4 * s}:{35 + 16 * t + 4 * s}], v{8 + s} offset:{L_K + 8192 * t}" for t in range(2) for s in range(4)]
    a("s_mov_b32 s43, 0\ns_mov_b32 s41, 3\ns_mov_b32 s39, 0")
    if forceslow: a(f"s_mov_b32 s39, {NA}")
    if h1own: lds_spin(F_A, 1, [], 'ge', 20)
    else:
        if nap1: a(f"s_sleep {nap1}")
        if both: lds_spin(F_A, 1, [], 'ge', 20, nap=lazy)
        lds_spin(F_LD, seg_flag("Kpart" if h1trig < 32 else "K"), [], 'ge', 20, nap=lazy)
    stamp('c', 1)
    L = a.label("h1"); L2 = a.label("h1k")
    a(f"{L}:")
    if local:
        a(f"s_cmp_eq_u32 s39, {NA}\ns_cbranch_scc1 L_h1sw\n{L2}:")
        with outofline():
            a(f"L_h1sw:\ns_mov_b32 s43, {W_H1B - W_H1}\ns_mov_b32 s41, 1")
            tagbytes(56, 32)
            a(f"s_branch {L2}")
    for i in range(2): a(f"buffer_load_dwordx4 v[{96 + 4 * i}:{99 + 4 * i}], v16, {WS}, s43 offen offset:{512 * i} {pollpol}")
    a(f"s_add_u32 s39, s39, 1\ns_cmp_gt_u32 s39, {SPIN}\ns_cbranch_scc1 L_end")
    if h1trig == 32 and not h1own:
        for r in kreads: a(r)
    elif kearly: lds_spin(F_LD, seg_flag("K"), kreads, 'ge', 20)
    a("s_waitcnt vmcnt(0)")
    strip(20, list(range(96, 104)), first=True)
    for k in range(4): a(f"v_add_f32 v{96 + k}, v{96 + k}, v{100 + k}")
    a(f"""v_and_b32 v20, 0xff, v20
    v_cmp_ne_u32 vcc, 0, v20
    v_permlane32_swap_b32 v96, v98
    v_permlane32_swap_b32 v97, v99
    s_cbranch_vccnz {L}""")
    stamp('c', 2)
    if stamps is True: a("s_mov_b32 s88, s39")
    a("""v_add_f32 v96, v96, v98
    v_add_f32 v97, v97, v99
    v_mov_b32 v21, s41
    v_cvt_pk_bf16_f32 v96, v96, v97""")
    a(f"ds_write_b32 v17, v96\nds_write_b32 v18, v21 offset:{F_Q}")
    tagbytes(56, 32)
    if (h1trig < 32 or h1own) and not kearly: lds_spin(F_LD, seg_flag("K"), kreads, 'ge', 20)
    lds_spin(F_Q, 0, [f"ds_read_b128 v[{96 + 4 * s}:{99 + 4 * s}], v15 offset:{64 * s}" for s in range(4)] + [f"ds_read_b32 v145, v1 offset:{F_LD}"], 'all4', 20)
    stamp('c', 3)
    for s in range(4):
        for t in range(2):
            c = "0" if s == 0 else f"v[{24 + 4 * t}:{27 + 4 * t}]"
            a(f"v_mfma_f32_16x16x32_bf16 v[{24 + 4 * t}:{27 + 4 * t}], v[{32 + 16 * t + 4 * s}:{35 + 16 * t + 4 * s}], v[{96 + 4 * s}:{99 + 4 * s}], {c}")
    a("v_readfirstlane_b32 s41, v20\ns_and_b32 s41, s41, 2")
    vread = lambda u: f"ds_read_b64_tr_b16 v[{64 + 2 * u}:{65 + 2 * u}], v12 offset:{2048 * u}"
    vflag = lambda c: seg_flag("V" + (str(c) if c < 3 else ""))
    a("v_readfirstlane_b32 s38, v145")
    for c in range(4):
        a(f"s_cmp_lt_u32 s38, {vflag(c)}\ns_cbranch_scc1 L_va")
        for u in range(4 * c, 4 * c + 4): a(vread(u))
    a("L_va:")
    a(f"s_mov_b32 s35, {SCALE:#x}\ns_mov_b32 s36, {LOG2E:#x}")
    if mimic:
        for r in range(24, 32): a(f"v_cvt_pk_bf16_f32 v{r}, 0, v{r}")
    for r in range(24, 32): a(f"v_mul_f32 v{r}, s35, v{r}")
    if mimic:
        for r in range(24, 32): a(f"v_cvt_pk_bf16_f32 v{r}, 0, v{r}")
    a("""v_max3_f32 v20, v24, v25, v26
    v_max3_f32 v21, v27, v28, v29
    v_max3_f32 v20, v20, v30, v31
    v_max_f32 v20, v20, v21
    v_mov_b32 v21, v20
    v_permlane16_swap_b32 v20, v21
    v_max_f32 v20, v20, v21
    v_mov_b32 v21, v20
    v_permlane32_swap_b32 v20, v21
    v_max_f32 v20, v20, v21
    v_mul_f32 v22, s36, v20""")
    for r in range(24, 32): a(f"v_fma_f32 v{r}, v{r}, s36, -v22")
    for r in range(24, 32): a(f"v_exp_f32 v{r}, v{r}")
    for k in range(4): a(f"v_cvt_pk_bf16_f32 v{32 + k}, v{24 + 2 * k}, v{25 + 2 * k}")
    if look2: a(f"ds_read_b32 v145, v1 offset:{F_LD}")
    a("""v_add_f32 v24, v24, v25
    v_add_f32 v26, v26, v27
    ds_write_b64 v19, v[32:33]
    v_add_f32 v28, v28, v29
    v_add_f32 v30, v30, v31
    ds_write_b64 v19, v[34:35] offset:128
    v_add_f32 v24, v24, v26
    v_add_f32 v28, v28, v30
    v_add_f32 v23, v24, v28
    v_mov_b32 v21, v23
    v_permlane16_swap_b32 v23, v21
    v_add_f32 v23, v23, v21
    v_mov_b32 v21, v23
    v_permlane32_swap_b32 v23, v21
    v_add_f32 v23, v23, v21
    v_mov_b32 v21, 1
    s_mov_b64 exec, 15
    ds_write2_b32 v112, v22, v23 offset0:0 offset1:16
    s_mov_b64 exec, -1""")
    a(f"ds_write_b32 v18, v21 offset:{F_P}")
    if look2:
        lgk(4)
        a("v_readfirstlane_b32 s37, v145")
        for c in range(4):
            a(f"s_cmp_ge_u32 s38, {vflag(c)}\ns_cbranch_scc1 L_vl{c}\ns_cmp_lt_u32 s37, {vflag(c)}\ns_cbranch_scc1 L_vld")
            for u in range(4 * c, 4 * c + 4): a(vread(u))
            a(f"L_vl{c}:")
        a("L_vld:\ns_mov_b32 s38, s37")
    stamp('c', 4)
    reads = [f"ds_read_b64 v[{32 + 2 * r}:{33 + 2 * r}], v113 offset:{512 * r}" for r in range(2)]
    reads += ["ds_read2_b32 v[150:151], v13 offset0:0 offset1:16"]
    reads += [f"ds_read_b128 v[{96 + 4 * w}:{99 + 4 * w}], v144 offset:{16 * w}" for w in range(4)]
    reads += [f"ds_read_b128 v[{56 + 4 * r}:{59 + 4 * r}], v114 offset:{32 * r}" for r in range(2)]
    lds_spin(F_P, 0, reads + [f"ds_read_b32 v145, v1 offset:{F_LD}"], 'all4', 20)
    stamp('c', 5)
    fill = ["v_max_f32_dpp v146, v150, v150 quad_perm:[1,0,3,2] row_mask:0xf bank_mask:0xf"]
    fill += [f"v_max3_f32 v{96 + h}, v{96 + h}, v{100 + h}, v{104 + h}" for h in range(4)]
    fill += ["v_max_f32_dpp v146, v146, v146 quad_perm:[2,3,0,1] row_mask:0xf bank_mask:0xf"]
    fill += [f"v_max_f32 v{96 + h}, v{96 + h}, v{108 + h}" for h in range(4)]
    fill += ["v_sub_f32 v150, v150, v146"] + [f"v_sub_f32 v{56 + k}, v{56 + k}, v{96 + (k & 3)}" for k in range(8)]
    fill += ["v_exp_f32 v150, v150"] + [f"v_exp_f32 v{56 + k}, v{56 + k}" for k in range(4)] + ["v_mul_f32 v148, v150, v151"]
    fill += [f"v_exp_f32 v{60 + k}, v{60 + k}" for k in range(2)] + ["v_add_f32_dpp v148, v148, v148 quad_perm:[1,0,3,2] row_mask:0xf bank_mask:0xf"]
    fill += [f"v_exp_f32 v{62 + k}, v{62 + k}" for k in range(2)] + ["v_add_f32_dpp v148, v148, v148 quad_perm:[2,3,0,1] row_mask:0xf bank_mask:0xf"]
    def ml_pub():
        a("s_mov_b64 exec, 1")
        st2([f"buffer_store_dwordx4 v[146:149], v116, {WS}, 0 offen"], 'ml')
        a("s_mov_b64 exec, -1")
    def pv(u):
        r = u >> 3
        c = "0" if u % 8 < 2 else f"v[{40 + 8 * r + 4 * (u & 1)}:{43 + 8 * r + 4 * (u & 1)}]"
        a(f"v_mfma_f32_4x4x4_16b_bf16 v[{40 + 8 * r + 4 * (u & 1)}:{43 + 8 * r + 4 * (u & 1)}], v[{32 + 2 * r}:{33 + 2 * r}], v[{64 + 2 * u}:{65 + 2 * u}], {c} cbsz:3 abid:{u & 7}")
    a("v_readfirstlane_b32 s37, v145")
    assert len(fill) <= 32
    a(f"s_cmp_lt_u32 s38, {vflag(3)}\ns_cbranch_scc1 L_vb\nL_vc:")
    with outofline():
        a("L_vb:")
        for c in range(4):
            a(f"s_cmp_ge_u32 s38, {vflag(c)}\ns_cbranch_scc1 L_vb{c}\ns_cmp_lt_u32 s37, {vflag(c)}\ns_cbranch_scc1 L_vbd")
            for u in range(4 * c, 4 * c + 4): a(vread(u))
            a(f"L_vb{c}:")
        a("L_vbd:\ns_waitcnt lgkmcnt(0)\ns_branch L_vc")
    for c in range(4):
        a(f"s_cmp_lt_u32 s37, {vflag(c)}\ns_cbranch_scc1 L_vw{c}\nL_vr{c}:")
        with outofline():
            a(f"L_vw{c}:")
            lds_spin(F_LD, vflag(c), [vread(u) for u in range(4 * c, 4 * c + 4)], 'ge', 20)
            a(f"s_branch L_vr{c}")
        for u in range(4 * c, 4 * c + 4):
            pv(u)
            for f_ in fill[4 * u:4 * u + 4]: a(f_)
        if c == 1: ml_pub()
    stamp('c', 6)
    a("s_nop 0")
    for h in range(4): a(f"v_add_f32 v{40 + h}, v{40 + h}, v{44 + h}")
    for h in range(4): a(f"v_mul_f32 v{40 + h}, v{40 + h}, v{56 + h}")
    for h in range(4): a(f"v_add_f32 v{48 + h}, v{48 + h}, v{52 + h}")
    for h in range(4): a(f"v_fmac_f32 v{40 + h}, v{48 + h}, v{60 + h}")
    a("""v_permlane32_swap_b32 v40, v41
    v_permlane32_swap_b32 v42, v43
    v_add_f32 v40, v40, v41
    v_add_f32 v42, v42, v43
    v_bfi_b32 v40, v125, v122, v40
    v_bfi_b32 v42, v125, v122, v42""")
    st2([f"buffer_store_dword v40, v115, {WS}, 0 offen", f"buffer_store_dword v42, v115, {WS}, s55 offen"], 'h2')
    stamp('c', 7)
    if fine:
        a("s_waitcnt vmcnt(0)"); stamp('c', 1, True)
    if 'noh2' in abl: a("s_branch L_cdone")
    LF = a.label("h2"); LG = a.label("h2g"); LD = a.label("h2d")
    woreads = [f"ds_read_b64_tr_b16 v[{80 + 4 * s + 2 * x}:{81 + 4 * s + 2 * x}], v14 offset:{4096 * s + 2048 * x}" for s in range(4) for x in range(2)]
    wdreads = [f"ds_read_b64_tr_b16 v[{48 + 4 * s + 2 * x}:{49 + 4 * s + 2 * x}], v14 offset:{L_WD - L_WO + 4096 * s + 2048 * x}" for s in range(2) for x in range(2)]
    hreads = [f"ds_read_b128 v[{56 + 4 * s}:{59 + 4 * s}], v120 offset:{L_H - L_O + 64 * s}" for s in range(2)]
    last = max(seg_flag("WO"), seg_flag("WD"))
    def payload_loads():
        for i in range(4): a(f"buffer_load_dwordx4 v[{64 + 4 * i}:{67 + 4 * i}], v117, {WS}, {'s%d' % (51 + i) if i else 0} offen {pollpol}")
    def payload_check(mul):
        for i in range(4):
            a(f"s_waitcnt vmcnt({3 - i})")
            strip(21, [64 + 4 * i + k for k in range(4)], first=(i == 0))
            if mul:
                for k in range(4): a(fm(i, k))
        a("v_and_b32 v21, 0xff, v21\nv_cmp_ne_u32 vcc, 0, v21\ns_and_b64 exec, vcc, vcc")
    LM = a.label("h2m"); LW = a.label("h2w"); LX = a.label("h2x")
    assert order[-2:] == ("WO", "WD") and ntail <= 8 and gate == 'T'
    a(f"s_cmp_ge_u32 s33, 28\ns_cselect_b32 s36, {last}, {seg_flag('T')}\ns_mov_b32 s37, {SPIN}")
    a("v_mov_b32 v101, s32\nv_mov_b32 v103, s32")
    def ml_loads():
        a(f"s_mov_b32 exec_hi, 0\nbuffer_load_dwordx4 v[32:35], v118, {WS}, 0 offen {pollpol}\ns_mov_b32 exec_hi, -1")
    def ml_check():
        a("s_mov_b32 exec_hi, 0")
        chk(20, 33, 32, first=True); chk(20, 35, 32)
        a("v_cmp_ne_u32 vcc, 0, v20\ns_mov_b32 exec_hi, -1")
    def fm(i, k):
        w = f"v[{36 + (i & 2)}:{37 + (i & 2)}]"; sel = f"op_sel:[0,{i & 1},0] op_sel_hi:[1,{i & 1},1]"
        if i == 0: return f"v_pk_mul_f32 v[{24 + k}:{25 + k}], v[{64 + k}:{65 + k}], {w} op_sel:[0,0] op_sel_hi:[1,0]"
        return f"v_pk_fma_f32 v[{24 + k}:{25 + k}], v[{64 + 4 * i + k}:{65 + 4 * i + k}], {w}, v[{24 + k}:{25 + k}] {sel}"
    def strip_ops(i):
        r = 64 + 4 * i
        return [f"s_waitcnt vmcnt({3 - i})\nv_xor_b32 v{r}, s56, v{r}"] + [f"v_xor_b32 v{r + k}, s{56 + k}, v{r + k}" for k in (1, 2, 3)] + \
               [f"v_or_b32 v28, v{r}, v{r + 1}" if i == 0 else f"v_or3_b32 v28, v28, v{r}, v{r + 1}", f"v_or3_b32 v28, v28, v{r + 2}, v{r + 3}"]
    wait_gate(20)
    stamp('c', 2, True)
    ml_loads()
    payload_loads()
    for r in woreads: a(r)
    a("s_waitcnt vmcnt(4)")
    ml_check()
    a(f"s_cbranch_vccnz {LM}\n{LW}:")
    with outofline():
        a(f"{LM}:")
        ml_loads()
        a("s_sub_u32 s37, s37, 1\ns_cbranch_scc1 L_end\ns_waitcnt vmcnt(0)")
        ml_check()
        a(f"s_cbranch_vccnz {LM}\ns_branch {LW}")
    stamp('c', 3, True)
    st = strip_ops(0) + strip_ops(1) + strip_ops(2) + strip_ops(3)
    def red32(op, r, t):
        for n in (1, 2, 4, 8):
            a(st.pop(0)); a(st.pop(0))
            a(f"{op}_dpp v{r}, v{r}, v{r} row_ror:{n} row_mask:0xf bank_mask:0xf")
        a(f"v_mov_b32 v{t}, v{r}")
        a(st.pop(0)); a(st.pop(0))
        a(f"v_permlane16_swap_b32 v{r}, v{t}\n{op} v{r}, v{r}, v{t}")
    a("v_mov_b32 v21, v32")
    red32("v_max_f32", 21, 22)
    a("v_sub_f32 v32, v32, v21\nv_exp_f32 v32, v32")
    a(st.pop(0))
    a("v_mul_f32 v22, v32, v34")
    for i in range(4): a(f"ds_bpermute_b32 v{36 + i}, v123, v32 offset:{32 * i}")
    red32("v_add_f32", 22, 23)
    a("v_rcp_f32 v22, v22")
    while st: a(st.pop(0))
    a("v_readfirstlane_b32 s35, v22\nv_and_b32 v28, 0xff, v28\ns_waitcnt lgkmcnt(0)")
    a(fm(0, 0)); a(fm(0, 2))
    a("v_cmp_ne_u32 vcc, 0, v28")
    for i in range(1, 4): a(fm(i, 0)); a(fm(i, 2))
    stamp('c', 4, True)
    a(f"s_cbranch_vccnz {LG}\n{LD}:")
    with outofline():
        a(f"{LG}:\ns_mov_b64 exec, vcc")
        if h2sleep: a(f"s_sleep {h2sleep}")
        payload_loads()
        a("s_sub_u32 s37, s37, 1\ns_cbranch_scc1 L_end")
        for i in range(4):
            for o in strip_ops(i): a(o)
        a(f"v_and_b32 v28, 0xff, v28\nv_cmp_ne_u32 vcc, 0, v28\ns_cbranch_vccnz {LG}\ns_mov_b64 exec, -1")
        for i in range(4): a(fm(i, 0)); a(fm(i, 2))
        a(f"s_nop 1\ns_branch {LD}")
    stamp('c', 8)
    ex = [f"ds_read_b64 v[28:29], v1 offset:{F_LD}"] + wdreads + hreads
    a(f"""v_permlane32_swap_b32 v24, v25
    v_permlane32_swap_b32 v26, v27
    {ex[0]}
    v_add_f32 v24, v24, v25
    v_add_f32 v26, v26, v27
    {ex[1]}
    {ex[2]}
    v_permlane16_swap_b32 v24, v26
    v_add_f32 v24, v24, v26
    {ex[3]}
    {ex[4]}
    v_add_f32_dpp v24, v24, v24 row_ror:8 row_mask:0xf bank_mask:0xf
    v_mov_b32 v21, 1
    v_mul_f32 v24, s35, v24
    {ex[5]}
    v_cvt_pk_bf16_f32 v24, v24, v24
    {ex[6]}""")
    a(f"ds_write_b16 v119, v24\nds_write_b32 v18, v21 offset:{F_O}")
    oreads = [f"ds_read_b128 v[{128 + 4 * s}:{131 + 4 * s}], v120 offset:{64 * s}" for s in range(4)]
    def mm_wd(first):
        for s in range(2): a(f"v_mfma_f32_16x16x32_bf16 v[96:99], v[{56 + 4 * s}:{59 + 4 * s}], v[{48 + 4 * s}:{51 + 4 * s}], {'0' if first and s == 0 else 'v[96:99]'}")
    def mm_wo(first):
        for s in range(4): a(f"v_mfma_f32_16x16x32_bf16 v[96:99], v[{128 + 4 * s}:{131 + 4 * s}], v[{80 + 4 * s}:{83 + 4 * s}], {'0' if first and s == 0 else 'v[96:99]'}")
    a(f"ds_read_b128 v[20:23], v1 offset:{F_O}")
    for r in oreads: a(r)
    a("s_cmp_ge_u32 s33, 28\ns_cbranch_scc1 L_noffn")
    lgk(7)
    a(f"v_cmp_gt_u32 vcc, {last}, v28\nv_cmp_eq_u32 s[62:63], 0, v29\ns_or_b64 vcc, vcc, s[62:63]\ns_cbranch_vccnz L_hw")
    mm_wd(True)
    a("s_waitcnt lgkmcnt(0)\nv_and_b32 v22, v22, v23\nv_bitop3_b32 v20, v20, v21, v22 bitop3:0x80\nv_cmp_eq_u32 vcc, 0, v20\ns_cbranch_vccnz L_ow\nL_or:")
    stamp('c', 9)
    mm_wo(False)
    a("L_mmd:")
    with outofline():
        a("L_ow:")
        lds_spin(F_O, 0, oreads, 'all4', 20)
        a("s_branch L_or\nL_noffn:")
        lds_spin(F_O, 0, oreads, 'all4', 20)
        stamp('c', 9)
        mm_wo(True)
        a("s_branch L_mmd\nL_hw:")
        lds_spin(F_O, 0, oreads, 'all4', 20)
        stamp('c', 9)
        mm_wo(True)
        a(f"s_mov_b32 s40, {SPIN}\nL_hw2:")
        for r in ex: a(r)
        a(f"s_sub_u32 s40, s40, 1\ns_cbranch_scc1 L_end\ns_waitcnt lgkmcnt(0)\nv_cmp_gt_u32 vcc, {last}, v28\nv_cmp_eq_u32 s[62:63], 0, v29\ns_or_b64 vcc, vcc, s[62:63]\ns_cbranch_vccnz L_hw2")
        mm_wd(False)
        a("s_branch L_mmd")
    stamp('c', 10)
    a("v_mov_b32 v100, v96\nv_mov_b32_dpp v102, v96 quad_perm:[1,1,3,3] row_mask:0xf bank_mask:0xf")
    a(f"s_mov_b64 exec, 0x5555\nbuffer_store_dwordx4 v[100:103], v121, {WS}, 0 offen sc1\ns_mov_b64 exec, -1")
    stamp('c', 11)
    if consffn: a("s_cmp_ge_u32 s33, 28\ns_cbranch_scc0 L_cdone\ns_sub_u32 s38, s4, 4\ns_lshl_b32 s38, s38, 3\ns_add_u32 s38, s38, s6")
    else: a("s_cmp_lt_u32 s2, 32\ns_cbranch_scc0 L_cdone\ns_mov_b32 s38, s2")
    a("s_cmp_eq_u32 s34, 0\ns_cbranch_scc0 L_cdone")
    a(f"s_lshl_b32 s35, s38, 12\ns_add_u32 s35, s35, {W_H3}\nv_lshl_add_u32 v24, v0, 4, s35")
    a("v_and_b32 v25, 7, v0\ns_lshl_b32 s35, s38, 5\nv_lshl_add_u32 v25, v25, 2, s35")
    srd(44, 8, 1024)
    a("buffer_load_dword v26, v25, s[44:47], 0 offen")
    srd(52, 26, 1024)
    L = a.label("h3"); LD = a.label("h3d")
    def h3issue(k):
        for i in range(4): a(f"buffer_load_dwordx4 v[{32 + 16 * k + 4 * i}:{35 + 16 * k + 4 * i}], v24, {WS}, 0 offen offset:{1024 * i} sc1")
    a(f"s_mov_b32 s40, {SPIN}")
    if h3mask:
        h3depth = 0
        a(f"{L}:")
        h3issue(0)
        a("s_sub_u32 s40, s40, 1\ns_cbranch_scc1 L_end")
        for i in range(4):
            a(f"s_waitcnt vmcnt({3 - i})")
            chk(20, 33 + 4 * i, 32, first=(i == 0)); chk(20, 35 + 4 * i, 32)
        a(f"v_cmp_ne_u32 vcc, 0, v20\ns_and_b64 exec, vcc, vcc\ns_cbranch_scc1 {L}\ns_mov_b64 exec, -1")
        a(f"v_add_f32 v22, v32, v36\nv_add_f32 v23, v34, v38\nv_add_f32 v30, v40, v44\nv_add_f32 v31, v42, v46\ns_branch {LD}")
        L = a.label("h3x")
    for k in range(h3depth - 1):
        h3issue(k)
        if h3gap: a(f"s_sleep {h3gap}")
    a(f"{L}:")
    for k in range(h3depth):
        h3issue((k + h3depth - 1) % h3depth)
        a(f"s_waitcnt vmcnt({4 * (h3depth - 1)})")
        b = 32 + 16 * k
        for r in range(b + 1, b + 16, 2): chk(20, r, 32, first=(r == b + 1))
        a(f"v_add_f32 v22, v{b}, v{b + 4}\nv_add_f32 v23, v{b + 2}, v{b + 6}\nv_cmp_ne_u32 vcc, 0, v20")
        a(f"v_add_f32 v30, v{b + 8}, v{b + 12}\nv_add_f32 v31, v{b + 10}, v{b + 14}\ns_cbranch_vccz {LD}")
    a(f"s_sub_u32 s40, s40, 1\ns_cbranch_scc0 {L}\ns_branch L_end\n{LD}:")
    stamp('c', 12)
    a("""v_add_f32 v22, v22, v30
    v_add_f32 v23, v23, v31
    v_lshlrev_b32 v27, 16, v26
    v_and_b32 v28, 0xffff0000, v26
    v_permlane32_swap_b32 v22, v23
    v_add_f32 v22, v22, v23
    v_mov_b32 v23, v22
    v_permlane16_swap_b32 v22, v23
    v_add_f32 v22, v22, v23
    v_add_f32_dpp v22, v22, v22 row_ror:8 row_mask:0xf bank_mask:0xf
    v_mov_b32 v23, v22
    v_permlane32_swap_b32 v22, v23
    v_add_f32 v22, v22, v27
    v_add_f32 v23, v23, v28
    v_cvt_pk_bf16_f32 v22, v22, v23
    s_mov_b64 exec, 0xff
    buffer_store_dword v22, v25, s[52:55], 0 offen""")
    a(f"s_cmp_eq_u32 s38, 0\ns_cbranch_scc0 L_cdone\ns_mov_b64 exec, 1\nv_mov_b32 v25, s32\nbuffer_store_dword v25, off, {WS}, 0")
    a("L_cdone:")
    stamp('c', 13)
    dump('c')
    a("s_endpgm")
    a.lines += cold
    a("L_end:\ns_endpgm")
    if touch: a("L_t2:\ns_branch L_comp")

    if auxfirst:
        L = a.lines
        ia = L.index("L_aux:"); ic = L.index("L_comp:"); il = L.index("L_loader:")
        ib = next(i for i in range(il, ia) if L[i].strip() == "s_barrier")
        if auxfirst == 2:
            i2 = L.index("L_aux2:")
            a.lines = L[:ib + 1] + ["  s_branch L_ld2"] + L[ia:i2] + ["  s_branch L_aux2", "L_ld2:"] + L[ib + 1:ia] + L[i2:]
        else:
            a.lines = L[:ib + 1] + ["  s_branch L_ld2"] + L[ia:ic] + ["L_ld2:"] + L[ib + 1:ia] + L[ic:]
    head = open(f"cdna_kernels/{NAME}.s.ref").read().split("; Override")[0]
    out = head + f"; Generated by gen/gen.py (hand-designed kernel; see that script for the layout notes)\n; @launch grid=(256,1,1) block=(384,1,1) lds={L_END}\n"
    out += f'.amdgcn_target "amdgcn-amd-amdhsa--gfx950"\n.text\n'
    if align: out += ".p2align 12\n.fill 0x340, 4, 0xbf800000\n"
    out += f'.globl {NAME}_kernel\n.p2align 8\n.type {NAME}_kernel,@function\n'
    out += a.text()
    out += f""".section .rodata,"a"
.p2align 6
.amdhsa_kernel {NAME}_kernel
  .amdhsa_next_free_vgpr 184
  .amdhsa_next_free_sgpr 102
  .amdhsa_accum_offset 184
  .amdhsa_group_segment_fixed_size 0
  .amdhsa_kernarg_size 96
  .amdhsa_user_sgpr_count 2
  .amdhsa_user_sgpr_kernarg_segment_ptr 1
  .amdhsa_system_sgpr_workgroup_id_x 1
  .amdhsa_float_denorm_mode_32 3
.end_amdhsa_kernel
"""
    return out

if __name__ == "__main__":
    kw = eval("dict(" + (sys.argv[2] if len(sys.argv) > 2 else "") + ")")
    open(sys.argv[1], "w").write(gen(**kw))
```

```python
import sys
from asmlib import Asm

NAME = "parallel_sum__sliding_block_cached__swiglu_ffn__decode"

L_K, L_V, L_GU, L_WO, L_WD = 0, 32768, 65536, 81920, 98304
L_WQ = 106496
L_X  = L_WQ + 16384
L_XX = L_X + 1024
L_Q  = L_XX + 2048
L_P  = L_Q + 1280
L_ML = L_P + 1024
L_O  = L_ML + 128
L_H  = L_O + 256
L_F  = L_H + 128
L_END = L_F + 80
F_LD, F_H, F_A, F_IE, F_Q, F_P, F_O, F_N = 0, 4, 8, 12, 16, 32, 48, 64

W_EP  = 0
W_DEC = 0x800
W_H1  = 0x1000
W_H1B = W_H1 + 256 * 256
W_HB  = W_H1B + 256 * 256
W_ML  = W_HB + 256 * 512
W_H3  = 0x48000
W_H2  = W_H3 + 64 * 4096
assert W_ML + 32 * 512 <= W_H3 and W_H3 % 16384 == 0
W_PR  = W_H2 + 1024 * 512
W_END = W_PR + 0x40000
W_ST  = 0x400000

LOG2E = 0x3fb8aa3b
SCALE = 0x3db504f3
SPIN = 1 << 16
EPOCH_STEP = 0x9e3779b9

def gen(TH=20, stamps=False, order=("Q", "K", "V", "GU", "WO", "WD"), warm=64, warmpol="sc1 nt", NA=24, h3depth=4,
        forceslow=False, h1trig=26, probe=None, abl=(), rot=True, h3gap=0, TH2=None, mimic=True, pfpol='', h1own=False, h3warm='sc1', pre=True, spec=True, sleep=0, prio=3, h2sleep=0, hbsleep=0, boost=26, gate='T', first=True, hbfirst=False, fine=False, local=True, pollpol='sc1', h1wt=True, lazy=4, ntail=8, wt=(), warmat='K', consffn=True, THK=None, THG=None, h3mask=False, lateb=False, both=False, auxfirst=False, align=False, touch=False, hold='Q0', spf=False, pk=True, h1warm=None, dip=None, dip2=None, kearly=True, look2=True, nap0=0, nap1=0, hbwarm=None, refine=True, h3pol='sc1', h3st='sc1', h3all=False, qloop=4, gx=0, light='hi', xboost=None, look1=False, pks=True, xfast=True, warmst=False, gnap=0, dual=False, dnap=2, dforce=None, probe_diag=0, h3x=0, near=True, gap=0, prpol='nt'):
    if not local: warm = 0
    a = Asm()
    WS = "s[48:51]"
    WSZ = W_ST + 256 * 512 if stamps else W_END
    diag = bool(stamps or probe)

    def stamp(role, idx, f=False):
        if fine and role == 'c' and 1 <= idx <= 6 and not f: return
        if f and not fine: return
        if probe and (idx == 0 or probe == (role, idx)):
            a(f"s_memrealtime s[{96 if idx == 0 else 98}:{97 if idx == 0 else 99}]")
            if idx == 0: a("s_waitcnt lgkmcnt(0)\ns_mov_b32 s98, s96")
        if stamps and (stamps is True or idx in (0, 13) or (stamps == 'l' and (role, idx) in (('l', 1), ('l', 7), ('l', 2), ('l', 3), ('l', 9), ('c', 11)))):
            a(f"s_memtime s[{64 + 2 * idx}:{65 + 2 * idx}]")
            if idx == 0: a("s_memrealtime s[94:95]")
            if (role, idx) in (('l', 9), ('c', 13), ('a', 9)): a("s_memrealtime s[92:93]")
    def dump(role):
        if probe and probe[0] == role:
            L = a.label("pad")
            a("s_waitcnt lgkmcnt(0)\ns_sub_u32 s98, s98, s96\ns_mul_i32 s98, s98, 3\ns_add_u32 s96, s96, s98\ns_add_u32 s96, s96, 1500")
            a(f"{L}:\ns_sleep 4\ns_memrealtime s[98:99]\ns_waitcnt lgkmcnt(0)\ns_sub_u32 s35, s98, s96\ns_cmp_lt_i32 s35, 0\ns_cbranch_scc1 {L}")
        if not stamps or (stamps == 'min' and role != 'c') or (stamps == 'l' and role == 'a'): return
        a("s_waitcnt lgkmcnt(0)")
        a(f"s_lshl_b32 s60, s2, 9\ns_lshl_b32 s61, s3, 6\ns_add_u32 s60, s60, s61\ns_add_u32 s60, s60, {W_ST}")
        a("s_mov_b64 exec, 1\nv_mov_b32 v126, s60")
        for i in range(16):
            a(f"v_mov_b32 v127, s{64 + 2 * i}\nbuffer_store_dword v127, v126, {WS}, 0 offen offset:{4 * i}")
    cold = []
    class outofline:
        def __enter__(self): self.keep = a.lines; a.lines = []
        def __exit__(self, *x): cold.extend(a.lines); a.lines = self.keep
    def srd(d, p, size):
        a(f"s_mov_b32 s{d}, s{p}\ns_and_b32 s{d + 1}, s{p + 1}, 0xffff\ns_mov_b32 s{d + 2}, {size}\ns_mov_b32 s{d + 3}, 0x20000")
    events = ["X"]
    for nm in order:
        if nm == "K" and h1trig < 32: events.append("Kpart")
        if nm in ("V", "GU", "Q"): events += [nm + "0", nm + "1", nm + "2"]
        events.append(nm)
    events.insert(len(events) - 1 if ntail <= 8 else len(events) - 2, "T")
    def seg_flag(name):
        return events.index(name) + 1
    def lgk(n):
        a(f"s_waitcnt lgkmcnt({0 if diag else n})")
    def st2(ops, name=None):
        if not local or name in wt:
            for o in ops: a(o + " sc1" if o.startswith("buffer_store") else o)
            return
        L1 = a.label("slow"); L2 = a.label("st")
        a(f"s_cmp_eq_u32 s41, 0\ns_cbranch_scc1 {L1}")
        for o in ops: a(o)
        a(f"{L2}:")
        with outofline():
            a(f"{L1}:\ns_nop 1")
            for o in ops: a(o + " sc1" if o.startswith("buffer_store") else o)
            a(f"s_nop 1\ns_branch {L2}")
    def lds_spin(flag_off, want, reads, kind, tmp, nap=0):
        if not spec and len(reads) > 4 and kind == 'ge':
            lds_spin(flag_off, want, [], kind, tmp)
            for r in reads: a(r)
            a("s_waitcnt lgkmcnt(0)")
            return
        L = a.label("spin")
        a(f"s_mov_b32 s40, {SPIN}\n{L}:")
        if sleep and kind == 'ge': a(f"s_sleep {sleep}")
        elif nap: a(f"s_sleep {nap}")
        a(f"ds_read_b32 v{tmp}, v1 offset:{flag_off}" if kind == 'ge' else f"ds_read_b128 v[{tmp}:{tmp + 3}], v1 offset:{flag_off}")
        for r in reads: a(r)
        a("s_sub_u32 s40, s40, 1\ns_cbranch_scc1 L_end")
        a("s_waitcnt lgkmcnt(0)")
        if kind == 'ge':
            a(f"v_cmp_gt_u32 vcc, {want}, v{tmp}")
        else:
            a(f"v_and_b32 v{tmp + 2}, v{tmp + 2}, v{tmp + 3}\nv_bitop3_b32 v{tmp}, v{tmp}, v{tmp + 1}, v{tmp + 2} bitop3:0x80")
            a(f"v_cmp_eq_u32 vcc, 0, v{tmp}")
        a(f"s_cbranch_vccnz {L}")
    def wait_gate(tmp):
        if gate == 'IE': lds_spin(F_IE, 1, [], 'ge', tmp)
        elif gate == 'S': lds_spin(F_LD, "s38", [], 'ge', tmp)
        elif gate == 'T': lds_spin(F_LD, "s36", [], 'ge', tmp, nap=gnap)
        elif gate: lds_spin(F_LD, seg_flag(gate), [], 'ge', tmp)
        a(f"s_mov_b32 s40, {SPIN}")
    def inbox(d, cc):
        a(f"s_and_b32 s{d}, s{cc}, 1\ns_andn2_b32 s{cc}, s{cc}, 1\ns_lshl1_add_u32 s{d}, s{cc}, s{d}\ns_lshl_b32 s{d}, s{d}, 12\ns_add_u32 s{d}, s{d}, {W_H3 + h3x}")
    def pick(r, t):
        a(f"s_bfe_u32 s{t}, s{r}, 0x80008\ns_and_b32 s{r}, s{r}, 0xff\ns_cmp_gt_u32 s{t}, s{r}\ns_cselect_b32 s{r}, 0x2000, 0")
    def tagbytes(dst, src):
        a(f"s_and_b32 s{dst}, s{src}, 0xff\ns_bfe_u32 s{dst + 1}, s{src}, 0x80008\ns_bfe_u32 s{dst + 2}, s{src}, 0x80010\ns_lshr_b32 s{dst + 3}, s{src}, 24")
    def chk(acc, r, t, first=False):
        a(f"v_xor_b32 v{acc}, s{t}, v{r}" if first else f"v_bitop3_b32 v{acc}, v{acc}, v{r}, s{t} bitop3:0xf6")
    def strip(acc, regs, first=False):
        for k, r in enumerate(regs): a(f"v_xor_b32 v{r}, s{56 + (k & 3)}, v{r}")
        for k in range(0, len(regs), 2):
            a(f"v_or_b32 v{acc}, v{regs[k]}, v{regs[k + 1]}" if first and k == 0 else f"v_or3_b32 v{acc}, v{acc}, v{regs[k]}, v{regs[k + 1]}")
    def tags():
        if not local:
            a(f"s_add_u32 s32, s32, {EPOCH_STEP:#x}\ns_mov_b32 s42, s32")
            return
        a(f"s_add_u32 s32, s32, {EPOCH_STEP:#x}\ns_getreg_b32 s42, hwreg(HW_REG_XCC_ID, 0, 4)\ns_add_u32 s42, s42, 1\ns_mul_i32 s42, s42, 0x01010101\ns_xor_b32 s42, s42, s32")

    ids = """s_and_b32 s6, s5, 7
    s_lshr_b32 s7, s5, 3"""
    if light == 'hi': pg = "s_mov_b32 s59, s4"
    else: pg = "s_lshr_b32 s59, s4, 1\ns_bitcmp" + ("0" if light == 'even' else "1") + "_b32 s4, 0\ns_cselect_b32 s33, 4, 0\ns_add_u32 s59, s59, s33"
    ids2 = pg + f"""
    s_lshl3_add_u32 s33, s7, s59
    v_mov_b32 v1, {L_F}"""
    a(f"{NAME}_kernel:")
    stamp('all', 0)
    a("""s_cmp_ge_u32 s2, 256
    s_cbranch_scc1 L_end
    s_load_dwordx16 s[8:23], s[0:1], 0
    s_load_dwordx8 s[24:31], s[0:1], 64
    v_readfirstlane_b32 s3, v0
    s_and_b32 s4, s2, 7
    s_lshr_b32 s5, s2, 3""")
    if gx: a(f"s_xor_b32 s4, s4, {gx}")
    a(ids)
    a("s_cmp_ge_u32 s3, 64\ns_cbranch_scc1 L_oth")
    a("L_loader:")
    a(f"s_getpc_b64 s[36:37]\nL_pc:\nv_lshlrev_b32 v3, 7, v0\nglobal_load_dword v30, v3, s[36:37] {pfpol}\nv_add_u32 v3, 0x2000, v3\nv_min_u32 v3, L_end-L_pc, v3\nglobal_load_dword v30, v3, s[36:37] {pfpol}")
    a("""v_lshlrev_b32 v2, 4, v0
    v_lshrrev_b32 v6, 3, v0
    v_and_b32 v7, 7, v0
    v_lshlrev_b32 v15, 17, v6
    v_lshl_add_u32 v15, v7, 4, v15
    s_lshl_b32 s35, s7, 13
    s_lshl3_add_u32 s35, s4, s35
    s_add_u32 s35, s35, s6
    s_lshl_b32 s39, s35, 7
    s_mov_b32 s46, 4194304
    s_mov_b32 s47, 0x20000""")
    a(f"s_movk_i32 s54, 0x400\ns_mov_b32 s55, s47\ns_mov_b32 m0, {L_X}\ns_setprio {prio}")
    if qloop: a(f"s_add_u32 s38, s39, 0x20000")
    a(f"""s_waitcnt lgkmcnt(0)
    s_mov_b32 s52, s8
    s_and_b32 s53, s9, 0xffff
    buffer_load_dwordx4 v2, s[52:55], 0 offen lds
    s_mov_b32 m0, {L_WQ}
    s_mov_b32 s44, s14
    s_and_b32 s45, s15, 0xffff""")
    stamp('l', 1)
    if qloop: a("L_ql:")
    for i in range(qloop or 16):
        a("buffer_load_dwordx4 v15, s[44:47], s39 offen nt lds\ns_addk_i32 m0, 0x400\ns_addk_i32 s39, 0x2000")
    if qloop: a("s_cmp_lt_u32 s39, s38\ns_cbranch_scc1 L_ql")
    a(ids2)
    if diag: a("s_mov_b32 s3, 1")
    if boost:
        a("s_cmp_eq_u32 s6, 3\ns_cselect_b64 vcc, -1, 0")
        if xboost is not None: a(f"s_and_b32 s35, s2, 7\ns_bitcmp1_b32 {xboost}, s35\ns_cselect_b64 vcc, -1, vcc")
    main_lines = a.lines; a.lines = []
    a("L_oth:\ns_lshr_b32 s3, s3, 6\nv_and_b32 v0, 63, v0")
    a(ids2)
    a("s_cmp_eq_u32 s3, 1\ns_cbranch_scc0 L_cw")
    if diag: a("s_mov_b32 s3, 0")
    a("v_lshlrev_b32 v2, 4, v0\ns_waitcnt lgkmcnt(0)\ns_load_dword s32, s[30:31], 0\ns_barrier\ns_branch L_aux")
    a("L_cw:\nv_mov_b32 v4, 0\nv_lshl_add_u32 v5, v0, 2, v1\ns_mov_b64 exec, 0xfffff\nds_write_b32 v5, v4\ns_mov_b64 exec, -1")
    a("s_waitcnt lgkmcnt(0)")
    if near:
        a(f"s_cmp_ge_u32 s33, 28\ns_cselect_b32 s35, s3, 0\ns_cmp_eq_u32 s35, 5\ns_cbranch_scc0 L_nprb")
        srd(48, 30, WSZ)
        a(f"s_and_b32 s35, s6, 1\ns_lshl3_add_u32 s36, s33, s6\ns_lshl_b32 s37, s35, 6\ns_add_u32 s36, s36, s37\ns_lshl_b32 s36, s36, 7\ns_add_u32 s36, s36, {W_PR - 224 * 128}\ns_xor_b32 s37, s36, 0x2000\ns_mov_b64 exec, 1")
        a(f"buffer_load_dword v20, off, {WS}, s36 {prpol}\nbuffer_load_dword v21, off, {WS}, s37 {prpol}\ns_lshl_b32 s35, s35, 3\ns_barrier\ns_waitcnt vmcnt(1)")
        if gap: a(f"s_sleep {gap}")
        a("s_getreg_b32 s36, hwreg(HW_REG_IB_STS, 0, 4)")
        a(f"s_lshl_b32 s36, s36, s35\ns_add_u32 s36, s36, 0x10000\nv_mov_b32 v22, s36\nds_write_b32 v1, v22 offset:{F_N}\ns_mov_b64 exec, -1\ns_waitcnt vmcnt(0)\ns_branch L_prd\nL_nprb:")
    a("s_barrier\nL_prd:")
    if nap0: a(f"s_sleep {nap0}")
    elif hold: lds_spin(F_LD, seg_flag(hold), [], 'ge', 20, nap=4)
    a("s_branch L_comp")
    oth_lines = a.lines; a.lines = main_lines
    def k_setup():
        a("""v_and_b32 v2, 15, v0
        v_lshrrev_b32 v3, 4, v0
        v_xor_b32 v4, v2, v3
        v_lshlrev_b32 v4, 4, v4
        v_lshlrev_b32 v5, 8, v3""")
        for i in range(4): a(f"v_xor_b32 v{8 + i}, {64 * i}, v4\nv_add_u32 v{8 + i}, v{8 + i}, v5")
        a("""s_lshl_b32 s35, s4, 24
        s_lshl_b32 s36, s5, 15
        s_add_u32 s35, s35, s36
        s_add_u32 s35, s35, 15728640""")
        a("s_lshl_b32 s40, s4, 12" if rot else "s_mov_b32 s40, 0")
        a("""s_add_u32 s44, s10, s35
        s_addc_u32 s45, s11, 0
        s_and_b32 s45, s45, 0xffff
        s_mov_b32 s46, 32768
        s_add_u32 s12, s12, s35
        s_addc_u32 s13, s13, 0""")
    nwarm = 1 if warm else 0
    def late_setup():
        a("""v_lshrrev_b32 v4, 2, v2
        v_xor_b32 v4, v4, v3
        v_lshl_add_u32 v12, v4, 6, v5
        v_and_b32 v4, 3, v0
        v_lshl_add_u32 v12, v4, 4, v12
        v_mul_u32_u24 v13, 28672, v6
        v_lshl_add_u32 v13, v7, 4, v13
        v_lshlrev_b32 v4, 1, v3
        v_xor_b32 v4, v4, v7
        v_lshlrev_b32 v4, 4, v4
        v_lshl_add_u32 v14, v6, 10, v4
        s_mul_i32 s41, s6, 229376
        s_lshl_b32 s37, s33, 7
        s_add_u32 s41, s41, s37
        s_lshl_b32 s42, s4, 19
        s_lshl_b32 s38, s7, 17
        s_add_u32 s42, s42, s38
        s_lshl_b32 s38, s6, 7
        s_add_u32 s42, s42, s38
        s_lshl_b32 s43, s33, 16
        s_add_u32 s43, s43, s38""")
        srd(48, 30, WSZ)
        if h3warm is not None:
            a("s_sub_u32 s37, s33, 28\ns_lshl3_add_u32 s37, s37, s6")
            inbox(36, 37)
            a("v_lshl_add_u32 v19, v0, 6, s36")
        if warm:
            a(f"s_lshl_b32 s36, s4, 7\ns_add_u32 s36, s36, s5\ns_lshl_b32 s37, s36, 9\ns_add_u32 s37, s37, {W_H2}")
            a("v_lshrrev_b32 v16, 3, v0\nv_lshlrev_b32 v16, 14, v16\nv_lshl_add_u32 v16, v7, 6, v16\nv_add_u32 v16, s37, v16")
            a(f"s_lshl_b32 s37, s36, 4\ns_add_u32 s37, s37, {W_ML}\nv_and_b32 v17, 3, v0\nv_lshlrev_b32 v17, 9, v17\nv_add_u32 v17, s37, v17")
            a(f"s_lshl_b32 s36, s4, 2\ns_add_u32 s36, s36, s7\ns_lshl_b32 s36, s36, 3\ns_add_u32 s36, s36, s6\ns_lshl_b32 s36, s36, 9\ns_add_u32 s36, s36, {W_HB}")
            a("v_lshl_add_u32 v18, v7, 6, s36\nv_cmp_gt_u32 s[56:57], 40, v0\nv_cndmask_b32 v17, v17, v18, s[56:57]\nv_cmp_gt_u32 s[56:57], 32, v0\nv_cndmask_b32 v16, v17, v16, s[56:57]")
    def seg_loads(name):
        r = []
        if name in ("K", "V"):
            base = L_K if name == "K" else L_V
            for i in range(32):
                v = f"v{8 + ((i >> 1) & 3)}" if name == "K" else "v12"
                r.append((f"s_mov_b32 m0, {base + 1024 * i}" if i % 4 == 0 else None, f"{v}, s[44:47], s40 offen offset:{1024 * (i & 3)}",
                          "s_addk_i32 s40, 0x1000\ns_and_b32 s40, s40, 0x7fff" if i % 4 == 3 else None))
        if name == "Q":
            for i in range(16): r.append((f"s_mov_b32 m0, {L_WQ + 1024 * i}", "v15, s[44:47], s39 offen", "s_addk_i32 s39, 0x2000"))
        if name == "GU":
            for i in range(16): r.append((f"s_mov_b32 m0, {L_GU + 1024 * i}", f"v13, s[{44 + 8 * (i & 1)}:{47 + 8 * (i & 1)}], s41 offen", "s_addk_i32 s41, 0xe00" if i & 1 else None))
        if name == "WO":
            for i in range(16): r.append((f"s_mov_b32 m0, {L_WO + 1024 * i}", "v14, s[44:47], s42 offen", "s_addk_i32 s42, 0x2000"))
        if name == "WD":
            for i in range(8): r.append((f"s_mov_b32 m0, {L_WD + 1024 * i}", "v14, s[44:47], s43 offen", "s_addk_i32 s43, 0x2000"))
        return r
    def seg_setup(name):
        if name == "K": k_setup()
        if name == "V": srd(44, 12, 32768)
        if name == "GU": srd(44, 20, 1835008); srd(52, 22, 1835008)
        if name == "WO": srd(44, 16, 4194304)
        if name == "WD": srd(44, 24, 1835008)
    def signal(f):
        a(f"v_mov_b32 v20, {f}\nds_write_b32 v1, v20 offset:{F_LD}")
        if events[f - 1] in order: stamp('l', 1 + order.index(events[f - 1]) if events[f - 1] != 'Q' else 7)
    def emit(segs, n0, pend, final):
        n = n0
        for name in segs:
            seg_setup(name)
            th = TH if name in ("Q", "K", "V") or TH2 is None else TH2
            if name in ("Q", "K") and THK: th = THK
            if name == "GU" and THG: th = THG
            lo = seg_loads(name)
            th0 = th
            if name == "Q":
                for c in range(4): pend.append((n + 4 * c + 4, seg_flag("Q" + (str(c) if c < 3 else ""))))
                n += 16
                continue
            for idx, (m0, ad, inc) in enumerate(lo):
                if m0: a(m0)
                th = th0
                for d_ in (dip, dip2):
                    if d_ and d_[0] <= n < d_[1]: th = d_[2]
                if n == (THK or TH) + npre:
                    a("s_barrier")
                    if xfast:
                        a(f"s_waitcnt vmcnt({n - npre})")
                        signal(pend.pop(0)[1])
                    else: late_setup()
                    a("L_split:")
                if xfast and n == (THK or TH) + npre + 4: late_setup()
                if n >= th and n >= (THK or TH) + npre:
                    sig = pend and pend[0][0] <= n - (th - 1)
                    if boost and name in ("Q", "K", "V") and not sig and th == th0:
                        L = a.label("bo")
                        a(f"s_cbranch_vccnz {L}\ns_waitcnt vmcnt({th - 1})\n{L}:\ns_waitcnt vmcnt({boost - 1})")
                    else:
                        a(f"s_waitcnt vmcnt({th - 1})")
                    while pend and pend[0][0] <= n - (th - 1):
                        signal(pend.pop(0)[1])
                a(f"buffer_load_dwordx4 {ad} nt lds")
                if inc: a(inc)
                n += 1
                if name in ("V", "GU", "Q") and (idx + 1) % (len(lo) // 4) == 0 and idx + 1 < len(lo):
                    pend.append((n, seg_flag(name + str((idx + 1) // (len(lo) // 4) - 1))))
                if name == "K" and h1trig < 32 and idx + 1 == h1trig: pend.append((n, seg_flag("Kpart")))
            pend.append((n, seg_flag(name)))
            if name == "Q" and h1warm is not None:
                srd(52, 30, WSZ)
                a(f"s_lshl_b32 s35, s4, 5\ns_lshl_b32 s36, s6, 2\ns_add_u32 s35, s35, s36\ns_add_u32 s35, s35, s7\ns_lshl_b32 s35, s35, 8\ns_add_u32 s35, s35, {W_H1}")
                a(f"v_lshlrev_b32 v23, 6, v0\ns_mov_b64 exec, 15\nbuffer_load_dword v24, v23, s[52:55], s35 offen {h1warm}\ns_mov_b64 exec, -1")
                n += 1
            if name == warmat:
                if nwarm:
                    a(f"s_mov_b32 exec_hi, {0xfff if hbwarm is None else 0xf00}\n" + (f"v_mov_b32 v21, 0\nbuffer_store_dword v21, v16, {WS}, 0 offen" if warmst else f"buffer_load_dword v21, v16, {WS}, 0 offen {warmpol}") + "\ns_mov_b32 exec_hi, -1")
                    n += 1
                    if hbwarm:
                        a(f"s_mov_b32 exec_lo, 0\ns_mov_b32 exec_hi, 0xff\nbuffer_load_dword v21, v16, {WS}, 0 offen {hbwarm}\ns_mov_b64 exec, -1")
                        n += 1
                if h3warm is not None and not consffn:
                    a(f"buffer_load_dword v22, v19, {WS}, 0 offen {h3warm}")
                    n += 1
        if final:
            pend.append((n - ntail, seg_flag("T"))); pend.sort()
            pend[:] = sorted(set((e, len(events) if e == n else max(f for (e2, f) in pend if e2 <= e)) for (e, f) in pend))
            if gate == 'IE': a(f"v_mov_b32 v20, 1\nds_write_b32 v1, v20 offset:{F_IE}")
            stamp('l', 8)
            while pend:
                e, f = pend.pop(0)
                a(f"s_waitcnt vmcnt({n - e})")
                signal(f)
                if events[f - 1] == "T": stamp('l', 5)
        return n
    assert order[0] == "Q" and 16 < TH < 48
    npre = 3
    ffn = ("GU", "WD")
    k = min(order.index(x) for x in ffn)
    pend = [(npre, seg_flag("X"))]
    n = emit(order[:k], npre, pend, False)
    a("s_cmp_ge_u32 s33, 28\ns_cbranch_scc1 L_ldb")
    emit(order[k:], n, list(pend), True)
    a("s_branch L_lde\nL_ldb:")
    emit([x for x in order[k:] if x not in ffn], n, list(pend), True)
    if h3warm is not None and near:
        srd(44, 28, 256)
        a("buffer_load_dword v22, off, s[44:47], 0 sc1\ns_waitcnt vmcnt(0)\nv_readfirstlane_b32 s36, v22\ns_cmp_lt_u32 s36, 0x200000\ns_cbranch_scc1 L_lde")
        pick(36, 37)
        a(f"buffer_load_dword v22, v19, {WS}, s36 offen {h3warm}")
    elif h3warm is not None and consffn: a(f"buffer_load_dword v22, v19, {WS}, 0 offen {h3warm}")
    if dual:
        a(f"s_movk_i32 s36, 0x2000\nbuffer_load_dword v23, v19, {WS}, s36 offen {h3warm}\ns_waitcnt vmcnt(1)\ns_sleep {dnap}\ns_getreg_b32 s36, hwreg(HW_REG_IB_STS, 0, 4)")
        a(f"s_cmp_eq_u32 s36, 0\ns_cselect_b32 s36, 2, 1")
        if dforce: a(f"s_mov_b32 s36, {dforce}")
        a(f"v_mov_b32 v20, s36\nds_write_b32 v1, v20 offset:{F_IE}")
    if touch: a("s_branch L_lde\nL_t1:\ns_branch L_t2")
    a("L_lde:")
    stamp('l', 9)
    dump('l')
    a("s_endpgm")

    a("L_aux:")
    stamp('a', 1)
    srd(48, 30, WSZ)
    a("v_lshrrev_b32 v3, 3, v0\nv_and_b32 v4, 7, v0")
    a("""v_and_b32 v6, 1, v0
    v_lshlrev_b32 v6, 4, v6
    v_mov_b32 v7, 0xffff
    v_lshlrev_b32 v6, v6, v7
    v_bfe_u32 v7, v0, 1, 2""")
    for d in range(4): a(f"v_cmp_eq_u32 vcc, {d}, v7\nv_cndmask_b32 v{12 + d}, 0, v6, vcc")
    a(f"v_lshlrev_b32 v6, 5, v0\nv_add_u32 v6, {L_XX}, v6")
    a(f"s_lshl_b32 s35, s7, 9\ns_add_u32 s35, s35, {L_XX}\nv_lshl_add_u32 v7, v3, 6, s35")
    a(f"v_add_u32 v25, {L_X}, v2")
    lds_spin(F_LD, seg_flag("X"), ["ds_read_b128 v[8:11], v25"], 'ge', 24)
    stamp('a', 2)
    for k in range(4): a(f"v_lshlrev_b32 v{16 + 2 * k}, 16, v{8 + k}\nv_and_b32 v{17 + 2 * k}, 0xffff0000, v{8 + k}")
    def wave_sum(r, t):
        for n in (8, 4, 2, 1): a(f"v_add_f32_dpp v{r}, v{r}, v{r} row_ror:{n} row_mask:0xf bank_mask:0xf")
        a(f"v_mov_b32 v{t}, v{r}\nv_permlane16_swap_b32 v{r}, v{t}\nv_add_f32 v{r}, v{r}, v{t}")
        a(f"v_mov_b32 v{t}, v{r}\nv_permlane32_swap_b32 v{r}, v{t}\nv_add_f32 v{r}, v{r}, v{t}")
    a("""v_add_f32 v24, v16, v17
    v_add_f32 v25, v18, v19
    v_add_f32 v26, v20, v21
    v_add_f32 v27, v22, v23
    v_add_f32 v24, v24, v25
    v_add_f32 v26, v26, v27
    v_add_f32 v24, v24, v26""")
    wave_sum(24, 25)
    a("v_mul_f32 v24, 0x3b000000, v24")
    for k in range(8): a(f"v_sub_f32 v{32 + k}, v{16 + k}, v24")
    a("v_mul_f32 v26, v32, v32\nv_mul_f32 v27, v33, v33")
    for k in range(2, 8): a(f"v_fmac_f32 v{26 + (k & 1)}, v{32 + k}, v{32 + k}")
    a("v_add_f32 v26, v26, v27\nv_cvt_pk_bf16_f32 v24, 0, v24")
    wave_sum(26, 25)
    for k in range(8): a(f"v_sub_f32 v{16 + k}, v{16 + k}, v24")
    a("""v_mul_f32 v26, 0x3b000000, v26
    v_cvt_pk_bf16_f32 v26, 0, v26
    v_add_f32 v26, 0x3727c5ac, v26
    v_cvt_pk_bf16_f32 v26, 0, v26
    v_sqrt_f32 v26, v26""")
    for k in range(8): a(f"v_cvt_pk_bf16_f32 v{16 + k}, 0, v{16 + k}")
    a("v_cvt_pk_bf16_f32 v26, 0, v26\nv_rcp_f32 v27, v26")
    for k in range(8): a(f"v_mul_f32 v{32 + k}, v{16 + k}, v27")
    for k in range(8): a(f"v_fma_f32 v{16 + k}, -v{32 + k}, v26, v{16 + k}")
    for k in range(8): a(f"v_fmac_f32 v{32 + k}, v{16 + k}, v27")
    for k in range(8): a(f"v_cvt_pk_bf16_f32 v{32 + k}, v{32 + k}, v{32 + k}")
    a("ds_write_b128 v6, v[32:35]\nds_write_b128 v6, v[36:39] offset:16")
    for k in range(4): a(f"ds_read_b128 v[{16 + 4 * k}:{19 + 4 * k}], v7 offset:{16 * k}")
    a("""v_lshlrev_b32 v5, 5, v4
    v_bfe_u32 v6, v0, 4, 1
    v_lshl_add_u32 v5, v6, 4, v5
    v_mov_b32 v61, v5
    v_lshrrev_b32 v6, 5, v0
    v_lshl_add_u32 v5, v6, 3, v5
    s_lshl_b32 s35, s4, 5
    s_lshl_b32 s36, s6, 2
    s_add_u32 s35, s35, s36
    s_add_u32 s35, s35, s7
    s_lshl_b32 s35, s35, 8""")
    a(f"s_add_u32 s35, s35, {W_H1}\nv_add_u32 v9, s35, v61\nv_mov_b32 v56, 0xff\ns_mov_b32 s43, {W_H1B - W_H1}")
    a("s_waitcnt lgkmcnt(0)")
    stamp('a', 3)
    tags()
    a("v_mov_b32 v57, s42\nv_lshrrev_b32 v58, 8, v57\nv_lshrrev_b32 v59, 16, v57\nv_lshrrev_b32 v60, 24, v57")
    a(f"v_add_u32 v11, {L_WQ}, v2")
    for i in range(16):
        for d in range(4): a(f"v_and_b32 v{128 + 4 * (i & 7) + d}, v{16 + i}, v{12 + d}")
        if i == 7 or i == 11 or i == 15:
            for c in ((0, 1) if i == 7 else (2,) if i == 11 else (3,)):
                lds_spin(F_LD, seg_flag("Q" + (str(c) if c < 3 else "")), [f"ds_read_b128 v[{64 + 4 * k}:{67 + 4 * k}], v11 offset:{1024 * k}" for k in range(4 * c, 4 * c + 4)], 'ge', 62)
                for k in range(4 * c, 4 * c + 4):
                    a(f"v_mfma_f32_16x16x32_bf16 v[32:35], v[{128 + 4 * (k & 7)}:{131 + 4 * (k & 7)}], v[{64 + 4 * k}:{67 + 4 * k}], {'0' if k == 0 else 'v[32:35]'}")
    stamp('a', 4)
    a("""v_permlane32_swap_b32 v32, v34
    v_permlane32_swap_b32 v33, v35
    v_add_f32_dpp v48, v34, v32 row_shl:8 row_mask:0xf bank_mask:0xf
    v_add_f32_dpp v49, v35, v33 row_shl:8 row_mask:0xf bank_mask:0xf
    v_add_u32 v48, 0x80, v48
    v_add_u32 v49, 0x80, v49
    v_mov_b32 v50, v48
    v_mov_b32 v51, v49
    v_permlane32_swap_b32 v48, v50
    v_permlane32_swap_b32 v49, v51
    s_mov_b64 exec, 0x00ff00ff""")
    for k in range(4): a(f"v_bfi_b32 v{52 + k}, v56, v{57 + k}, v{48 + k}")
    a(f"buffer_store_dwordx4 v[52:55], v9, {WS}, 0 offen" + ("" if local and not h1wt else " sc1"))
    if 'noh1b' not in abl and local:
        a("v_mov_b32 v57, s32\nv_lshrrev_b32 v58, 8, v57\nv_lshrrev_b32 v59, 16, v57\nv_lshrrev_b32 v60, 24, v57")
        for k in range(4): a(f"v_bfi_b32 v{160 + k}, v56, v{57 + k}, v{48 + k}")
        if lateb: a("v_mov_b32 v164, v9")
        else: a(f"buffer_store_dwordx4 v[160:163], v9, {WS}, s43 offen sc1")
    a(f"s_mov_b64 exec, -1\nv_mov_b32 v20, 1\nds_write_b32 v1, v20 offset:{F_A}")
    stamp('a', 5)
    a("L_aux2:")
    a("s_cmp_ge_u32 s33, 28\ns_cbranch_scc1 " + ("L_probe" if probe_diag else "L_dec" if near else "L_adone"))
    if near:
        with outofline():
            a("L_dec:")
            lds_spin(F_N, 1, [], 'ge', 20, nap=2)
            srd(44, 28, 256)
            if dforce is not None: a(f"v_mov_b32 v20, {0x10000 + (256 if dforce else 1)}")
            a("s_mov_b64 exec, 1\nbuffer_atomic_add v20, off, s[44:47], 0\ns_branch L_adone")
    if probe_diag:
        with outofline():
            a(f"L_probe:\ns_sub_u32 s35, s33, 28\ns_lshl3_add_u32 s35, s35, s6\ns_lshr_b32 s36, s35, 2\ns_lshl_b32 s36, s36, 14\ns_and_b32 s35, s35, 3\ns_lshl_b32 s35, s35, 10\ns_add_u32 s36, s36, s35\ns_add_u32 s36, s36, {W_PR}")
            if probe_diag == 3:
                lds_spin(F_LD, seg_flag("Kpart"), [], 'ge', 28, nap=2)
                a("s_mul_i32 s36, s6, 768\ns_add_u32 s36, s36, 0x14000")
            for t in range(12):
                a(f"s_memtime s[56:57]\ns_waitcnt lgkmcnt(0)\ns_load_dword s58, s[30:31], s36 offset:{(t >> 1) * 128 + (t & 1) * 8192}{' glc' if probe_diag == 2 else ''}\ns_waitcnt lgkmcnt(0)\ns_memtime s[60:61]\ns_waitcnt lgkmcnt(0)\ns_sub_u32 s{66 + 2 * t}, s60, s56")
            a("s_memtime s[90:91]\ns_branch L_adump")
    if 'noffn' in abl: a("s_branch L_adone")
    a(f"s_lshl_b32 s35, s6, 8\ns_add_u32 s35, s35, {L_XX}\nv_lshl_add_u32 v7, v3, 5, s35")
    a("ds_read_b128 v[16:19], v7\nds_read_b128 v[20:23], v7 offset:16")
    a(f"s_lshl_b32 s35, s4, 2\ns_add_u32 s35, s35, s7\ns_lshl_b32 s35, s35, 12\ns_add_u32 s35, s35, {W_HB}")
    a("v_add_u32 v10, s35, v2\ns_lshl_b32 s36, s6, 9\ns_add_u32 s35, s35, s36\nv_lshl_add_u32 v9, v5, 1, s35")
    a(f"v_add_u32 v11, {L_GU}, v2")
    a("""v_bfe_u32 v8, v0, 4, 1
    v_lshlrev_b32 v8, 6, v8
    v_bfe_u32 v6, v0, 1, 2
    v_lshl_add_u32 v8, v6, 4, v8
    v_bfe_u32 v6, v0, 3, 1
    v_lshl_add_u32 v8, v6, 3, v8
    v_and_b32 v6, 1, v0
    v_lshl_add_u32 v8, v6, 2, v8
    v_lshrrev_b32 v6, 5, v0
    v_lshl_add_u32 v8, v6, 1, v8""")
    a(f"v_add_u32 v8, {L_H}, v8")
    tagbytes(56, 32)
    for k in range(4): a(f"v_mov_b32 v{57 + k}, s{56 + k}")
    a("s_waitcnt lgkmcnt(0)")
    for i in range(8):
        for d in range(4): a(f"v_and_b32 v{128 + 4 * i + d}, v{16 + i}, v{12 + d}")
    for c in range(4):
        rd = [f"ds_read_b128 v[{64 + 4 * i}:{67 + 4 * i}], v11 offset:{1024 * i}" for i in range(4 * c, 4 * c + 4)]
        if c == 3: rd.append(f"ds_read_b128 v[24:27], v1 offset:{F_Q}")
        if c == 0 and lazy: lds_spin(F_LD, seg_flag("V"), [], 'ge', 28, nap=lazy)
        lds_spin(F_LD, seg_flag("GU" + (str(c) if c < 3 else "")), rd, 'ge', 28)
        if c == 3: stamp('a', 6)
        for i in range(2 * c, 2 * c + 2):
            for m in range(2):
                cc = "0" if i == 0 else f"v[{32 + 4 * m}:{35 + 4 * m}]"
                a(f"v_mfma_f32_16x16x32_bf16 v[{32 + 4 * m}:{35 + 4 * m}], v[{128 + 4 * i}:{131 + 4 * i}], v[{64 + 8 * i + 4 * m}:{67 + 8 * i + 4 * m}], {cc}")
    a("v_and_b32 v26, v26, v27\nv_bitop3_b32 v24, v24, v25, v26 bitop3:0x80\nv_readfirstlane_b32 s41, v24\ns_and_b32 s41, s41, 2")
    a("""v_permlane32_swap_b32 v32, v34
    v_permlane32_swap_b32 v33, v35
    v_permlane32_swap_b32 v36, v38
    v_permlane32_swap_b32 v37, v39
    v_add_f32_dpp v48, v34, v32 row_shl:8 row_mask:0xf bank_mask:0xf
    v_add_f32_dpp v50, v35, v33 row_shl:8 row_mask:0xf bank_mask:0xf
    v_add_f32_dpp v49, v38, v36 row_shl:8 row_mask:0xf bank_mask:0xf
    v_add_f32_dpp v51, v39, v37 row_shl:8 row_mask:0xf bank_mask:0xf
    s_mov_b32 exec_lo, 0x00ff00ff
    s_mov_b32 exec_hi, 0x00ff00ff""")
    for k in range(4): a(f"v_add_u32 v{48 + k}, 0x80, v{48 + k}")
    for k in range(4): a(f"v_bfi_b32 v{48 + k}, v56, v{57 + k}, v{48 + k}")
    st2([f"buffer_store_dwordx4 v[48:51], v9, {WS}, 0 offen"], 'hb')
    a("s_mov_b64 exec, -1")
    stamp('a', 7)
    L = a.label("hb")
    a(f"s_mov_b32 s38, {max(seg_flag('WO'), seg_flag('WD'))}\ns_mov_b32 s36, {seg_flag('T')}\ns_mov_b32 s39, {0 if hbfirst else 1}")
    a(f"s_mov_b32 s40, {SPIN}\n{L}:")
    if gate:
        a("s_cmp_eq_u32 s39, 1\ns_cbranch_scc0 L_hbg")
        wait_gate(28)
        a("L_hbg:\ns_add_u32 s39, s39, 1")
    for i in range(4): a(f"buffer_load_dwordx4 v[{64 + 4 * i}:{67 + 4 * i}], v10, {WS}, 0 offen offset:{1024 * i} {pollpol}")
    a("s_sub_u32 s40, s40, 1\ns_cbranch_scc1 L_end")
    for i in range(4):
        a(f"s_waitcnt vmcnt({3 - i})")
        strip(20, [64 + 4 * i + k for k in range(4)], first=(i == 0))
        if i:
            for k in range(4): a(f"v_add_f32 v{64 + k}, v{64 + k}, v{64 + 4 * i + k}")
    a(f"v_and_b32 v20, 0xff, v20\nv_cmp_ne_u32 vcc, 0, v20")
    if hbsleep: a(f"s_cbranch_vccz L_hbok\ns_sleep {hbsleep}\ns_branch {L}\nL_hbok:")
    else: a(f"s_cbranch_vccnz {L}")
    stamp('a', 8)
    a(f"""v_permlane32_swap_b32 v64, v66
    v_permlane32_swap_b32 v65, v67
    v_add_f32 v64, v64, v66
    v_add_f32 v66, v65, v67
    v_cvt_pk_bf16_f32 v64, 0, v64
    v_cvt_pk_bf16_f32 v66, 0, v66
    v_mul_f32 v20, {(LOG2E | 0x80000000):#x}, v64
    v_exp_f32 v20, v20
    v_add_f32 v20, 1.0, v20
    v_rcp_f32 v21, v20
    v_mul_f32 v22, v64, v21""")
    if refine: a("""v_fma_f32 v23, -v22, v20, v64
    v_fma_f32 v23, v23, v21, v22
    v_cmp_class_f32 vcc, v23, 3
    v_cndmask_b32 v22, v23, v22, vcc""")
    a(f"""v_cvt_pk_bf16_f32 v22, 0, v22
    v_mul_f32 v22, v22, v66
    v_cvt_pk_bf16_f32 v22, v22, v22
    v_mov_b32 v21, 1
    ds_write_b16 v8, v22
    ds_write_b32 v1, v21 offset:{F_H}""")
    a("L_adone:")
    if lateb and local:
        a(f"s_mov_b64 exec, 0x00ff00ff\nbuffer_store_dwordx4 v[160:163], v164, {WS}, s43 offen sc1")
    stamp('a', 9)
    a("L_adump:")
    dump('a')
    a("s_endpgm")

    a("L_comp:\ns_sub_u32 s34, s3, 2")
    a("s_load_dword s32, s[30:31], 0")
    srd(48, 30, WSZ)
    if warm and not h1wt:
        a("s_cmp_eq_u32 s34, 1\ns_cbranch_scc0 L_nowarm")
        a(f"s_lshl_b32 s35, s4, 5\ns_lshl_b32 s36, s6, 2\ns_add_u32 s35, s35, s36\ns_add_u32 s35, s35, s7\ns_lshl_b32 s35, s35, 8\ns_add_u32 s35, s35, {W_H1}")
        a(f"v_lshlrev_b32 v4, 6, v0\ns_mov_b64 exec, 15\nbuffer_load_dword v124, v4, {WS}, s35 offen {warmpol}\ns_mov_b64 exec, -1\nL_nowarm:")
    a("""v_and_b32 v2, 15, v0
    v_lshrrev_b32 v3, 4, v0""")
    a("""v_xor_b32 v4, v2, v3
    v_lshlrev_b32 v4, 4, v4
    v_lshrrev_b32 v5, 2, v2
    v_lshlrev_b32 v5, 11, v5
    v_and_b32 v6, 3, v0
    v_lshl_add_u32 v5, v6, 8, v5
    s_lshr_b32 s35, s34, 1
    s_lshl_b32 s35, s35, 14
    s_and_b32 s36, s34, 1
    s_lshl_b32 s36, s36, 10
    s_add_u32 s35, s35, s36
    v_add_u32 v5, s35, v5""")
    for s_ in range(4):
        a(f"v_xor_b32 v{8 + s_}, {64 * s_}, v4\nv_add_u32 v{8 + s_}, v{8 + s_}, v5")
    a("""v_lshrrev_b32 v4, 2, v2
    v_xor_b32 v5, s34, v4
    v_lshlrev_b32 v5, 6, v5
    v_lshl_add_u32 v5, v4, 8, v5
    v_lshrrev_b32 v7, 1, v3
    v_lshl_add_u32 v5, v7, 10, v5
    v_and_b32 v7, 1, v3
    v_lshl_add_u32 v5, v7, 5, v5
    v_lshl_add_u32 v5, v6, 3, v5""")
    a(f"v_add_u32 v12, {L_V}, v5")
    a("""v_lshl_add_u32 v5, v3, 2, v4
    v_lshrrev_b32 v7, 1, v5
    v_and_b32 v7, 3, v7
    v_xor_b32 v7, s34, v7
    v_lshlrev_b32 v7, 5, v7
    v_lshl_add_u32 v7, v5, 7, v7
    v_lshl_add_u32 v14, v6, 3, v7""")
    a(f"v_add_u32 v14, {L_WO}, v14")
    a(f"v_mul_u32_u24 v15, 320, v6\nv_lshl_add_u32 v15, v3, 4, v15\nv_add_u32 v15, {L_Q}, v15")
    a("""v_lshrrev_b32 v4, 5, v0
    v_lshlrev_b32 v16, 8, v4
    v_and_b32 v5, 1, v3
    v_lshl_add_u32 v16, v5, 10, v16
    v_lshl_add_u32 v16, v2, 4, v16
    s_lshl_b32 s35, s4, 13
    s_lshl_b32 s36, s34, 11
    s_add_u32 s35, s35, s36""")
    a(f"s_add_u32 s35, s35, {W_H1}\nv_add_u32 v16, s35, v16")
    a(f"s_mul_i32 s35, s34, 320\ns_add_u32 s35, s35, {L_Q}\nv_and_b32 v5, 31, v0\nv_lshl_add_u32 v17, v5, 3, s35\nv_lshl_add_u32 v17, v4, 2, v17")
    a("s_lshl_b32 s35, s34, 2\nv_add_u32 v18, s35, v1")
    a(f"s_lshl_b32 s35, s34, 8\ns_add_u32 s35, s35, {L_P}\nv_lshl_add_u32 v19, v3, 5, s35\nv_lshl_add_u32 v19, v6, 3, v19")
    a(f"s_lshl_b32 s35, s34, 4\ns_add_u32 s35, s35, {L_ML}\nv_lshl_add_u32 v112, v0, 2, s35")
    a(f"v_lshlrev_b32 v113, 3, v0\nv_add_u32 v113, {L_P}, v113")
    a(f"v_lshlrev_b32 v114, 4, v4\nv_add_u32 v114, {L_ML}, v114")
    a(f"s_lshl_b32 s35, s34, 2\ns_add_u32 s35, s35, {L_ML}\nv_lshl_add_u32 v13, v6, 4, s35\nv_mov_b32 v144, {L_ML}")
    a("s_lshl_b32 s35, s4, 7\ns_add_u32 s35, s35, s5")
    a(f"s_lshl_b32 s36, s35, 9\ns_lshl_b32 s37, s34, 7\ns_add_u32 s36, s36, s37\ns_add_u32 s36, s36, {W_H2}\nv_lshl_add_u32 v115, v5, 2, s36\nv_lshl_add_u32 v115, v4, 14, v115")
    a(f"s_lshl_b32 s36, s34, 5\ns_add_u32 s36, s36, s35\ns_lshl_b32 s36, s36, 4\ns_add_u32 s36, s36, {W_ML}\nv_mov_b32 v116, s36")
    a("v_lshrrev_b32 v4, 3, v0\nv_and_b32 v5, 7, v0\ns_lshl_b32 s35, s4, 2\ns_add_u32 s35, s35, s7")
    a(f"s_lshl_b32 s36, s35, 14\ns_lshl_b32 s37, s34, 7\ns_add_u32 s36, s36, s37\ns_add_u32 s36, s36, {W_H2}")
    a("v_lshlrev_b32 v117, 9, v4\nv_lshl_add_u32 v117, v5, 4, v117\nv_add_u32 v117, s36, v117")
    a(f"s_lshl_b32 s36, s35, 9\ns_add_u32 s36, s36, {W_ML}\nv_and_b32 v118, 31, v0\nv_lshl_add_u32 v118, v118, 4, s36\nv_lshlrev_b32 v123, 2, v4")
    a("""v_and_b32 v119, 3, v0
    v_lshlrev_b32 v119, 4, v119
    v_bfe_u32 v4, v0, 2, 1
    v_lshl_add_u32 v119, v4, 3, v119
    v_bfe_u32 v4, v0, 4, 1
    v_lshl_add_u32 v119, v4, 2, v119
    v_lshrrev_b32 v4, 5, v0
    v_lshl_add_u32 v119, v4, 1, v119""")
    a(f"s_lshl_b32 s35, s34, 6\ns_add_u32 s35, s35, {L_O}\nv_add_u32 v119, s35, v119")
    a(f"v_lshlrev_b32 v120, 4, v3\nv_add_u32 v120, {L_O}, v120")
    a("s_lshl2_add_u32 s37, s6, s34")
    inbox(35, 37)
    a("s_lshl2_add_u32 s36, s4, s7\ns_lshl_b32 s36, s36, 7\ns_add_u32 s35, s35, s36\nv_lshl_add_u32 v121, v0, 3, s35")
    a("s_movk_i32 s52, 0x1000\ns_movk_i32 s53, 0x2000\ns_movk_i32 s54, 0x3000\ns_mov_b32 s55, 0x8000\nv_mov_b32 v125, 0xff")
    a("s_waitcnt lgkmcnt(0)")
    tags()
    a("v_lshlrev_b32 v4, 3, v6\nv_lshrrev_b32 v122, v4, s32\nv_mov_b32 v147, s32\nv_mov_b32 v149, s32")
    tagbytes(56, 42)
    if near: srd(44, 28, 256)
    if 'noc' in abl: a("s_branch L_cdone")
    kreads = [f"ds_read_b128 v[{32 + 16 * t + 4 * s}:{35 + 16 * t + 4 * s}], v{8 + s} offset:{L_K + 8192 * t}" for t in range(2) for s in range(4)]
    a("s_mov_b32 s43, 0\ns_mov_b32 s41, 3\ns_mov_b32 s39, 0")
    if forceslow: a(f"s_mov_b32 s39, {NA}")
    if h1own: lds_spin(F_A, 1, [], 'ge', 20)
    else:
        if nap1: a(f"s_sleep {nap1}")
        if both: lds_spin(F_A, 1, [], 'ge', 20, nap=lazy)
        lds_spin(F_LD, seg_flag("Kpart" if h1trig < 32 else "K"), [], 'ge', 20, nap=lazy)
    stamp('c', 1)
    L = a.label("h1"); L2 = a.label("h1k")
    a(f"{L}:")
    if local:
        a(f"s_cmp_eq_u32 s39, {NA}\ns_cbranch_scc1 L_h1sw\n{L2}:")
        with outofline():
            a(f"L_h1sw:\ns_mov_b32 s43, {W_H1B - W_H1}\ns_mov_b32 s41, 1")
            tagbytes(56, 32)
            a(f"s_branch {L2}")
    for i in range(2): a(f"buffer_load_dwordx4 v[{96 + 4 * i}:{99 + 4 * i}], v16, {WS}, s43 offen offset:{512 * i} {pollpol}")
    a(f"s_add_u32 s39, s39, 1\ns_cmp_gt_u32 s39, {SPIN}\ns_cbranch_scc1 L_end")
    if h1trig == 32 and not h1own:
        for r in kreads: a(r)
    elif kearly: lds_spin(F_LD, seg_flag("K"), kreads, 'ge', 20)
    a("s_waitcnt vmcnt(0)")
    strip(20, list(range(96, 104)), first=True)
    for k in range(4): a(f"v_add_f32 v{96 + k}, v{96 + k}, v{100 + k}")
    a(f"""v_and_b32 v20, 0xff, v20
    v_cmp_ne_u32 vcc, 0, v20
    v_permlane32_swap_b32 v96, v98
    v_permlane32_swap_b32 v97, v99
    s_cbranch_vccnz {L}""")
    stamp('c', 2)
    if stamps is True: a("s_mov_b32 s88, s39")
    a("""v_add_f32 v96, v96, v98
    v_add_f32 v97, v97, v99
    v_mov_b32 v21, s41
    v_cvt_pk_bf16_f32 v96, v96, v97""")
    a(f"ds_write_b32 v17, v96\nds_write_b32 v18, v21 offset:{F_Q}")
    tagbytes(56, 32)
    if (h1trig < 32 or h1own) and not kearly: lds_spin(F_LD, seg_flag("K"), kreads, 'ge', 20)
    lds_spin(F_Q, 0, [f"ds_read_b128 v[{96 + 4 * s}:{99 + 4 * s}], v15 offset:{64 * s}" for s in range(4)] + ([f"ds_read_b32 v145, v1 offset:{F_LD}"] if look1 else []), 'all4', 20)
    stamp('c', 3)
    for s in range(4):
        for t in range(2):
            c = "0" if s == 0 else f"v[{24 + 4 * t}:{27 + 4 * t}]"
            a(f"v_mfma_f32_16x16x32_bf16 v[{24 + 4 * t}:{27 + 4 * t}], v[{32 + 16 * t + 4 * s}:{35 + 16 * t + 4 * s}], v[{96 + 4 * s}:{99 + 4 * s}], {c}")
    a("v_readfirstlane_b32 s41, v20\ns_and_b32 s41, s41, 2")
    vread = lambda u: f"ds_read_b64_tr_b16 v[{64 + 2 * u}:{65 + 2 * u}], v12 offset:{2048 * u}"
    vflag = lambda c: seg_flag("V" + (str(c) if c < 3 else ""))
    if look1:
        a("v_readfirstlane_b32 s38, v145")
        for c in range(4):
            a(f"s_cmp_lt_u32 s38, {vflag(c)}\ns_cbranch_scc1 L_va")
            for u in range(4 * c, 4 * c + 4): a(vread(u))
        a("L_va:")
    else: a("s_mov_b32 s38, 0")
    a(f"s_mov_b32 s35, {SCALE:#x}\ns_mov_b32 s36, {LOG2E:#x}")
    if pks: a("s_mov_b32 s60, s35\ns_mov_b32 s61, s35\ns_mov_b32 s62, s36\ns_mov_b32 s63, s36")
    if mimic:
        for r in range(24, 32): a(f"v_cvt_pk_bf16_f32 v{r}, 0, v{r}")
    if pks:
        for r in range(24, 32, 2): a(f"v_pk_mul_f32 v[{r}:{r + 1}], v[{r}:{r + 1}], s[60:61]")
    else:
        for r in range(24, 32): a(f"v_mul_f32 v{r}, s35, v{r}")
    if mimic:
        for r in range(24, 32): a(f"v_cvt_pk_bf16_f32 v{r}, 0, v{r}")
    a("""v_max3_f32 v20, v24, v25, v26
    v_max3_f32 v21, v27, v28, v29
    v_max3_f32 v20, v20, v30, v31
    v_max_f32 v20, v20, v21
    v_mov_b32 v21, v20
    v_permlane16_swap_b32 v20, v21
    v_max_f32 v20, v20, v21
    v_mov_b32 v21, v20
    v_permlane32_swap_b32 v20, v21
    v_max_f32 v20, v20, v21
    v_mul_f32 v22, s36, v20""")
    if pks:
        for r in range(24, 32, 2): a(f"v_pk_fma_f32 v[{r}:{r + 1}], v[{r}:{r + 1}], s[62:63], v[22:23] op_sel:[0,0,0] op_sel_hi:[1,1,0] neg_lo:[0,0,1] neg_hi:[0,0,1]")
    else:
        for r in range(24, 32): a(f"v_fma_f32 v{r}, v{r}, s36, -v22")
    for r in range(24, 32): a(f"v_exp_f32 v{r}, v{r}")
    for k in range(4): a(f"v_cvt_pk_bf16_f32 v{32 + k}, v{24 + 2 * k}, v{25 + 2 * k}")
    if look2: a(f"ds_read_b32 v145, v1 offset:{F_LD}")
    if pks: a("""v_pk_add_f32 v[24:25], v[24:25], v[26:27]
    v_pk_add_f32 v[28:29], v[28:29], v[30:31]
    ds_write_b64 v19, v[32:33]
    v_pk_add_f32 v[24:25], v[24:25], v[28:29]
    ds_write_b64 v19, v[34:35] offset:128
    v_add_f32 v23, v24, v25""")
    else: a("""v_add_f32 v24, v24, v25
    v_add_f32 v26, v26, v27
    ds_write_b64 v19, v[32:33]
    v_add_f32 v28, v28, v29
    v_add_f32 v30, v30, v31
    ds_write_b64 v19, v[34:35] offset:128
    v_add_f32 v24, v24, v26
    v_add_f32 v28, v28, v30
    v_add_f32 v23, v24, v28""")
    a("""v_mov_b32 v21, v23
    v_permlane16_swap_b32 v23, v21
    v_add_f32 v23, v23, v21
    v_mov_b32 v21, v23
    v_permlane32_swap_b32 v23, v21
    v_add_f32 v23, v23, v21
    v_mov_b32 v21, 1
    s_mov_b64 exec, 15
    ds_write2_b32 v112, v22, v23 offset0:0 offset1:16
    s_mov_b64 exec, -1""")
    a(f"ds_write_b32 v18, v21 offset:{F_P}")
    if look2:
        lgk(4)
        a("v_readfirstlane_b32 s37, v145")
        for c in range(4):
            a(f"s_cmp_ge_u32 s38, {vflag(c)}\ns_cbranch_scc1 L_vl{c}\ns_cmp_lt_u32 s37, {vflag(c)}\ns_cbranch_scc1 L_vld")
            for u in range(4 * c, 4 * c + 4): a(vread(u))
            a(f"L_vl{c}:")
        a("L_vld:\ns_mov_b32 s38, s37")
    stamp('c', 4)
    reads = [f"ds_read_b64 v[{32 + 2 * r}:{33 + 2 * r}], v113 offset:{512 * r}" for r in range(2)]
    reads += ["ds_read2_b32 v[150:151], v13 offset0:0 offset1:16"]
    reads += [f"ds_read_b128 v[{96 + 4 * w}:{99 + 4 * w}], v144 offset:{16 * w}" for w in range(4)]
    reads += [f"ds_read_b128 v[{56 + 4 * r}:{59 + 4 * r}], v114 offset:{32 * r}" for r in range(2)]
    lds_spin(F_P, 0, reads + [f"ds_read_b32 v145, v1 offset:{F_LD}"], 'all4', 20)
    stamp('c', 5)
    fill = ["v_max_f32_dpp v146, v150, v150 quad_perm:[1,0,3,2] row_mask:0xf bank_mask:0xf"]
    fill += [f"v_max3_f32 v{96 + h}, v{96 + h}, v{100 + h}, v{104 + h}" for h in range(4)]
    fill += ["v_max_f32_dpp v146, v146, v146 quad_perm:[2,3,0,1] row_mask:0xf bank_mask:0xf"]
    fill += [f"v_max_f32 v{96 + h}, v{96 + h}, v{108 + h}" for h in range(4)]
    fill += ["v_sub_f32 v150, v150, v146"] + [f"v_sub_f32 v{56 + k}, v{56 + k}, v{96 + (k & 3)}" for k in range(8)]
    fill += ["v_exp_f32 v150, v150"] + [f"v_exp_f32 v{56 + k}, v{56 + k}" for k in range(4)] + ["v_mul_f32 v148, v150, v151"]
    fill += [f"v_exp_f32 v{60 + k}, v{60 + k}" for k in range(2)] + ["v_add_f32_dpp v148, v148, v148 quad_perm:[1,0,3,2] row_mask:0xf bank_mask:0xf"]
    fill += [f"v_exp_f32 v{62 + k}, v{62 + k}" for k in range(2)] + ["v_add_f32_dpp v148, v148, v148 quad_perm:[2,3,0,1] row_mask:0xf bank_mask:0xf"]
    def ml_pub():
        a("s_mov_b64 exec, 1")
        st2([f"buffer_store_dwordx4 v[146:149], v116, {WS}, 0 offen"], 'ml')
        a("s_mov_b64 exec, -1")
    def pv(u):
        r = u >> 3
        c = "0" if u % 8 < 2 else f"v[{40 + 8 * r + 4 * (u & 1)}:{43 + 8 * r + 4 * (u & 1)}]"
        a(f"v_mfma_f32_4x4x4_16b_bf16 v[{40 + 8 * r + 4 * (u & 1)}:{43 + 8 * r + 4 * (u & 1)}], v[{32 + 2 * r}:{33 + 2 * r}], v[{64 + 2 * u}:{65 + 2 * u}], {c} cbsz:3 abid:{u & 7}")
    a("v_readfirstlane_b32 s37, v145")
    assert len(fill) <= 32
    a(f"s_cmp_lt_u32 s38, {vflag(3)}\ns_cbranch_scc1 L_vb\nL_vc:")
    with outofline():
        a("L_vb:")
        for c in range(4):
            a(f"s_cmp_ge_u32 s38, {vflag(c)}\ns_cbranch_scc1 L_vb{c}\ns_cmp_lt_u32 s37, {vflag(c)}\ns_cbranch_scc1 L_vbd")
            for u in range(4 * c, 4 * c + 4): a(vread(u))
            a(f"L_vb{c}:")
        a("L_vbd:\ns_waitcnt lgkmcnt(0)\ns_branch L_vc")
    for c in range(4):
        a(f"s_cmp_lt_u32 s37, {vflag(c)}\ns_cbranch_scc1 L_vw{c}\nL_vr{c}:")
        with outofline():
            a(f"L_vw{c}:")
            lds_spin(F_LD, vflag(c), [vread(u) for u in range(4 * c, 4 * c + 4)], 'ge', 20)
            a(f"s_branch L_vr{c}")
        for u in range(4 * c, 4 * c + 4):
            pv(u)
            for f_ in fill[4 * u:4 * u + 4]: a(f_)
        if c == 1: ml_pub()
    stamp('c', 6)
    a("s_nop 0")
    if pks:
        for h in (0, 2): a(f"v_pk_add_f32 v[{40 + h}:{41 + h}], v[{40 + h}:{41 + h}], v[{44 + h}:{45 + h}]")
        for h in (0, 2): a(f"v_pk_mul_f32 v[{40 + h}:{41 + h}], v[{40 + h}:{41 + h}], v[{56 + h}:{57 + h}]")
        for h in (0, 2): a(f"v_pk_add_f32 v[{48 + h}:{49 + h}], v[{48 + h}:{49 + h}], v[{52 + h}:{53 + h}]")
        for h in (0, 2): a(f"v_pk_fma_f32 v[{40 + h}:{41 + h}], v[{48 + h}:{49 + h}], v[{60 + h}:{61 + h}], v[{40 + h}:{41 + h}]")
    else:
        for h in range(4): a(f"v_add_f32 v{40 + h}, v{40 + h}, v{44 + h}")
        for h in range(4): a(f"v_mul_f32 v{40 + h}, v{40 + h}, v{56 + h}")
        for h in range(4): a(f"v_add_f32 v{48 + h}, v{48 + h}, v{52 + h}")
        for h in range(4): a(f"v_fmac_f32 v{40 + h}, v{48 + h}, v{60 + h}")
    a("""v_permlane32_swap_b32 v40, v41
    v_permlane32_swap_b32 v42, v43
    v_add_f32 v40, v40, v41
    v_add_f32 v42, v42, v43
    v_bfi_b32 v40, v125, v122, v40
    v_bfi_b32 v42, v125, v122, v42""")
    st2([f"buffer_store_dword v40, v115, {WS}, 0 offen", f"buffer_store_dword v42, v115, {WS}, s55 offen"], 'h2')
    stamp('c', 7)
    if fine:
        a("s_waitcnt vmcnt(0)"); stamp('c', 1, True)
    if 'noh2' in abl: a("s_branch L_cdone")
    LF = a.label("h2"); LG = a.label("h2g"); LD = a.label("h2d")
    woreads = [f"ds_read_b64_tr_b16 v[{80 + 4 * s + 2 * x}:{81 + 4 * s + 2 * x}], v14 offset:{4096 * s + 2048 * x}" for s in range(4) for x in range(2)]
    wdreads = [f"ds_read_b64_tr_b16 v[{48 + 4 * s + 2 * x}:{49 + 4 * s + 2 * x}], v14 offset:{L_WD - L_WO + 4096 * s + 2048 * x}" for s in range(2) for x in range(2)]
    hreads = [f"ds_read_b128 v[{56 + 4 * s}:{59 + 4 * s}], v120 offset:{L_H - L_O + 64 * s}" for s in range(2)]
    last = max(seg_flag("WO"), seg_flag("WD"))
    def payload_loads():
        for i in range(4): a(f"buffer_load_dwordx4 v[{64 + 4 * i}:{67 + 4 * i}], v117, {WS}, {'s%d' % (51 + i) if i else 0} offen {pollpol}")
    def payload_check(mul):
        for i in range(4):
            a(f"s_waitcnt vmcnt({3 - i})")
            strip(21, [64 + 4 * i + k for k in range(4)], first=(i == 0))
            if mul:
                for k in range(4): a(fm(i, k))
        a("v_and_b32 v21, 0xff, v21\nv_cmp_ne_u32 vcc, 0, v21\ns_and_b64 exec, vcc, vcc")
    LM = a.label("h2m"); LW = a.label("h2w"); LX = a.label("h2x")
    assert order[-2:] == ("WO", "WD") and ntail <= 8 and gate == 'T'
    a(f"s_cmp_ge_u32 s33, 28\ns_cselect_b32 s36, {last}, {seg_flag('T')}\ns_mov_b32 s37, {SPIN}")
    a("v_mov_b32 v101, s32\nv_mov_b32 v103, s32")
    def ml_loads():
        if near: a("buffer_load_dword v30, off, s[44:47], 0 sc1")
        a(f"s_mov_b32 exec_hi, 0\nbuffer_load_dwordx4 v[32:35], v118, {WS}, 0 offen {pollpol}\ns_mov_b32 exec_hi, -1")
    def ml_check():
        a("s_mov_b32 exec_hi, 0")
        chk(20, 33, 32, first=True); chk(20, 35, 32)
        if near: a("v_lshrrev_b32 v31, 16, v30\nv_readfirstlane_b32 s43, v30\nv_bitop3_b32 v20, v20, v31, 32 bitop3:0xf6")
        a("v_cmp_ne_u32 vcc, 0, v20\ns_mov_b32 exec_hi, -1")
    def fm(i, k):
        w = f"v[{36 + (i & 2)}:{37 + (i & 2)}]"; sel = f"op_sel:[0,{i & 1},0] op_sel_hi:[1,{i & 1},1]"
        if i == 0: return f"v_pk_mul_f32 v[{24 + k}:{25 + k}], v[{64 + k}:{65 + k}], {w} op_sel:[0,0] op_sel_hi:[1,0]"
        return f"v_pk_fma_f32 v[{24 + k}:{25 + k}], v[{64 + 4 * i + k}:{65 + 4 * i + k}], {w}, v[{24 + k}:{25 + k}] {sel}"
    def strip_ops(i):
        r = 64 + 4 * i
        return [f"s_waitcnt vmcnt({3 - i})\nv_xor_b32 v{r}, s56, v{r}"] + [f"v_xor_b32 v{r + k}, s{56 + k}, v{r + k}" for k in (1, 2, 3)] + \
               [f"v_or_b32 v28, v{r}, v{r + 1}" if i == 0 else f"v_or3_b32 v28, v28, v{r}, v{r + 1}", f"v_or3_b32 v28, v28, v{r + 2}, v{r + 3}"]
    wait_gate(20)
    stamp('c', 2, True)
    ml_loads()
    payload_loads()
    for r in woreads: a(r)
    a("s_waitcnt vmcnt(4)")
    ml_check()
    a(f"s_cbranch_vccnz {LM}\n{LW}:")
    with outofline():
        a(f"{LM}:")
        ml_loads()
        a("s_sub_u32 s37, s37, 1\ns_cbranch_scc1 L_end\ns_waitcnt vmcnt(0)")
        ml_check()
        a(f"s_cbranch_vccnz {LM}\ns_branch {LW}")
    stamp('c', 3, True)
    st = strip_ops(0) + strip_ops(1) + strip_ops(2) + strip_ops(3)
    def red32(op, r, t):
        for n in (1, 2, 4, 8):
            a(st.pop(0)); a(st.pop(0))
            a(f"{op}_dpp v{r}, v{r}, v{r} row_ror:{n} row_mask:0xf bank_mask:0xf")
        a(f"v_mov_b32 v{t}, v{r}")
        a(st.pop(0)); a(st.pop(0))
        a(f"v_permlane16_swap_b32 v{r}, v{t}\n{op} v{r}, v{r}, v{t}")
    a("v_mov_b32 v21, v32")
    if near: pick(43, 39)
    else: a("s_mov_b32 s43, 0")
    red32("v_max_f32", 21, 22)
    a("v_sub_f32 v32, v32, v21\nv_exp_f32 v32, v32")
    a(st.pop(0))
    a("v_mul_f32 v22, v32, v34")
    for i in range(4): a(f"ds_bpermute_b32 v{36 + i}, v123, v32 offset:{32 * i}")
    red32("v_add_f32", 22, 23)
    a("v_rcp_f32 v22, v22")
    while st: a(st.pop(0))
    a("v_readfirstlane_b32 s35, v22\nv_and_b32 v28, 0xff, v28\ns_waitcnt lgkmcnt(0)")
    a(fm(0, 0)); a(fm(0, 2))
    a("v_cmp_ne_u32 vcc, 0, v28")
    for i in range(1, 4): a(fm(i, 0)); a(fm(i, 2))
    stamp('c', 4, True)
    a(f"s_cbranch_vccnz {LG}\n{LD}:")
    with outofline():
        a(f"{LG}:\ns_mov_b64 exec, vcc")
        if h2sleep: a(f"s_sleep {h2sleep}")
        payload_loads()
        a("s_sub_u32 s37, s37, 1\ns_cbranch_scc1 L_end")
        for i in range(4):
            for o in strip_ops(i): a(o)
        a(f"v_and_b32 v28, 0xff, v28\nv_cmp_ne_u32 vcc, 0, v28\ns_cbranch_vccnz {LG}\ns_mov_b64 exec, -1")
        for i in range(4): a(fm(i, 0)); a(fm(i, 2))
        a(f"s_nop 1\ns_branch {LD}")
    stamp('c', 8)
    ex = [f"ds_read_b64 v[28:29], v1 offset:{F_LD}"] + wdreads + hreads
    a(f"""v_permlane32_swap_b32 v24, v25
    v_permlane32_swap_b32 v26, v27
    {ex[0]}
    v_add_f32 v24, v24, v25
    v_add_f32 v26, v26, v27
    {ex[1]}
    {ex[2]}
    v_permlane16_swap_b32 v24, v26
    v_add_f32 v24, v24, v26
    {ex[3]}
    {ex[4]}
    v_add_f32_dpp v24, v24, v24 row_ror:8 row_mask:0xf bank_mask:0xf
    v_mov_b32 v21, 1
    v_mul_f32 v24, s35, v24
    {ex[5]}
    v_cvt_pk_bf16_f32 v24, v24, v24
    {ex[6]}""")
    a(f"ds_write_b16 v119, v24\nds_write_b32 v18, v21 offset:{F_O}")
    oreads = [f"ds_read_b128 v[{128 + 4 * s}:{131 + 4 * s}], v120 offset:{64 * s}" for s in range(4)]
    def mm_wd(first):
        for s in range(2): a(f"v_mfma_f32_16x16x32_bf16 v[96:99], v[{56 + 4 * s}:{59 + 4 * s}], v[{48 + 4 * s}:{51 + 4 * s}], {'0' if first and s == 0 else 'v[96:99]'}")
    def mm_wo(first):
        for s in range(4): a(f"v_mfma_f32_16x16x32_bf16 v[96:99], v[{128 + 4 * s}:{131 + 4 * s}], v[{80 + 4 * s}:{83 + 4 * s}], {'0' if first and s == 0 else 'v[96:99]'}")
    a(f"ds_read_b128 v[20:23], v1 offset:{F_O}")
    for r in oreads: a(r)
    a("s_cmp_ge_u32 s33, 28\ns_cbranch_scc1 L_noffn")
    lgk(7)
    a(f"v_cmp_gt_u32 vcc, {last}, v28\nv_cmp_eq_u32 s[62:63], 0, v29\ns_or_b64 vcc, vcc, s[62:63]\ns_cbranch_vccnz L_hw")
    mm_wd(True)
    a("s_waitcnt lgkmcnt(0)\nv_and_b32 v22, v22, v23\nv_bitop3_b32 v20, v20, v21, v22 bitop3:0x80\nv_cmp_eq_u32 vcc, 0, v20\ns_cbranch_vccnz L_ow\nL_or:")
    stamp('c', 9)
    mm_wo(False)
    a("L_mmd:")
    with outofline():
        a("L_ow:")
        lds_spin(F_O, 0, oreads, 'all4', 20)
        a("s_branch L_or\nL_noffn:")
        lds_spin(F_O, 0, oreads, 'all4', 20)
        stamp('c', 9)
        mm_wo(True)
        a("s_branch L_mmd\nL_hw:")
        lds_spin(F_O, 0, oreads, 'all4', 20)
        stamp('c', 9)
        mm_wo(True)
        a(f"s_mov_b32 s40, {SPIN}\nL_hw2:")
        for r in ex: a(r)
        a(f"s_sub_u32 s40, s40, 1\ns_cbranch_scc1 L_end\ns_waitcnt lgkmcnt(0)\nv_cmp_gt_u32 vcc, {last}, v28\nv_cmp_eq_u32 s[62:63], 0, v29\ns_or_b64 vcc, vcc, s[62:63]\ns_cbranch_vccnz L_hw2")
        mm_wd(False)
        a("s_branch L_mmd")
    stamp('c', 10)
    a("v_mov_b32 v100, v96\nv_mov_b32_dpp v102, v96 quad_perm:[1,1,3,3] row_mask:0xf bank_mask:0xf")
    a(f"s_mov_b64 exec, 0x5555\nbuffer_store_dwordx4 v[100:103], v121, {WS}, s43 offen {h3st}")
    if dual: a(f"buffer_store_dwordx4 v[100:103], v121, {WS}, s53 offen {h3st}")
    a("s_mov_b64 exec, -1")
    stamp('c', 11)
    if consffn: a("s_cmp_ge_u32 s33, 28\ns_cbranch_scc0 L_cdone\ns_sub_u32 s38, s33, 28\ns_lshl_b32 s38, s38, 3\ns_add_u32 s38, s38, s6")
    else: a("s_cmp_lt_u32 s2, 32\ns_cbranch_scc0 L_cdone\ns_mov_b32 s38, s2")
    if not h3all: a("s_cmp_eq_u32 s34, 0\ns_cbranch_scc0 L_cdone")
    a("s_mov_b32 s37, s38")
    inbox(35, 37)
    a("v_lshl_add_u32 v24, v0, 4, s35")
    if dual:
        lds_spin(F_IE, 1, [], 'ge', 20)
        a("v_lshrrev_b32 v20, 1, v20\nv_lshl_add_u32 v24, v20, 13, v24")
        if stamps: a("v_readfirstlane_b32 s84, v20")
    a("v_and_b32 v25, 7, v0\ns_lshl_b32 s35, s38, 5\nv_lshl_add_u32 v25, v25, 2, s35")
    srd(44, 8, 1024)
    a("buffer_load_dword v26, v25, s[44:47], 0 offen")
    srd(52, 26, 1024)
    L = a.label("h3"); LD = a.label("h3d")
    def h3issue(k):
        for i in range(4): a(f"buffer_load_dwordx4 v[{32 + 16 * k + 4 * i}:{35 + 16 * k + 4 * i}], v24, {WS}, s43 offen offset:{1024 * i} {h3pol}")
    a(f"s_mov_b32 s40, {SPIN}")
    if h3mask:
        h3depth = 0
        a(f"{L}:")
        h3issue(0)
        a("s_sub_u32 s40, s40, 1\ns_cbranch_scc1 L_end")
        for i in range(4):
            a(f"s_waitcnt vmcnt({3 - i})")
            chk(20, 33 + 4 * i, 32, first=(i == 0)); chk(20, 35 + 4 * i, 32)
        a(f"v_cmp_ne_u32 vcc, 0, v20\ns_and_b64 exec, vcc, vcc\ns_cbranch_scc1 {L}\ns_mov_b64 exec, -1")
        a(f"v_add_f32 v22, v32, v36\nv_add_f32 v23, v34, v38\nv_add_f32 v30, v40, v44\nv_add_f32 v31, v42, v46\ns_branch {LD}")
        L = a.label("h3x")
    for k in range(h3depth - 1):
        h3issue(k)
        if h3gap: a(f"s_sleep {h3gap}")
    a(f"{L}:")
    for k in range(h3depth):
        h3issue((k + h3depth - 1) % h3depth)
        a(f"s_waitcnt vmcnt({4 * (h3depth - 1)})")
        b = 32 + 16 * k
        for r in range(b + 1, b + 16, 2): chk(20, r, 32, first=(r == b + 1))
        a(f"v_add_f32 v22, v{b}, v{b + 4}\nv_add_f32 v23, v{b + 2}, v{b + 6}\nv_cmp_ne_u32 vcc, 0, v20")
        a(f"v_add_f32 v30, v{b + 8}, v{b + 12}\nv_add_f32 v31, v{b + 10}, v{b + 14}\ns_cbranch_vccz {LD}")
    a(f"s_sub_u32 s40, s40, 1\ns_cbranch_scc0 {L}\ns_branch L_end\n{LD}:")
    stamp('c', 12)
    a("""v_add_f32 v22, v22, v30
    v_add_f32 v23, v23, v31
    v_lshlrev_b32 v27, 16, v26
    v_and_b32 v28, 0xffff0000, v26
    v_permlane32_swap_b32 v22, v23
    v_add_f32 v22, v22, v23
    v_mov_b32 v23, v22
    v_permlane16_swap_b32 v22, v23
    v_add_f32 v22, v22, v23
    v_add_f32_dpp v22, v22, v22 row_ror:8 row_mask:0xf bank_mask:0xf
    v_mov_b32 v23, v22
    v_permlane32_swap_b32 v22, v23
    v_add_f32 v22, v22, v27
    v_add_f32 v23, v23, v28
    v_cvt_pk_bf16_f32 v22, v22, v23
    s_mov_b64 exec, 0xff
    buffer_store_dword v22, v25, s[52:55], 0 offen""")
    a(f"s_cmp_eq_u32 s38, 0\ns_cbranch_scc0 L_cdone\ns_mov_b64 exec, 1\nv_mov_b32 v25, s32\nbuffer_store_dword v25, off, {WS}, 0")
    a("L_cdone:")
    stamp('c', 13)
    if stamps and near: a("v_readfirstlane_b32 s84, v30\ns_waitcnt lgkmcnt(0)")
    dump('c')
    a("s_endpgm")
    a.lines += cold
    a("L_end:\ns_endpgm")
    if touch: a("L_t2:\ns_branch L_comp")

    L = a.lines
    ia = L.index("L_aux:"); ic = L.index("L_comp:"); il = L.index("L_loader:")
    ib = next(i for i in range(il, ia) if L[i].strip() == ("L_split:" if xfast else "s_barrier"))
    assert oth_lines[-1].strip() == "s_branch L_comp"
    k = oth_lines.index("L_cw:")
    oth = oth_lines[:oth_lines.index("  s_cbranch_scc0 L_cw")] + ["  s_cbranch_scc1 L_aw"] + oth_lines[k + 1:] + ["L_aw:"] + oth_lines[oth_lines.index("  s_cbranch_scc0 L_cw") + 1:k - 1]
    a.lines = L[:ib + 1] + ["  s_branch L_ld2"] + oth + L[ia:ic] + ["L_ld2:"] + L[ib + 1:ia] + L[ic:]
    head = open(f"cdna_kernels/{NAME}.s.ref").read().split("; Override")[0]
    out = head + f"; Generated by gen/gen.py (hand-designed kernel; see that script for the layout notes)\n; @launch grid=(256,1,1) block=(384,1,1) lds={L_END}\n"
    out += f'.amdgcn_target "amdgcn-amd-amdhsa--gfx950"\n.text\n'
    if align: out += ".p2align 12\n.fill 0x340, 4, 0xbf800000\n"
    out += f'.globl {NAME}_kernel\n.p2align 8\n.type {NAME}_kernel,@function\n'
    out += a.text()
    out += f""".section .rodata,"a"
.p2align 6
.amdhsa_kernel {NAME}_kernel
  .amdhsa_next_free_vgpr 184
  .amdhsa_next_free_sgpr 102
  .amdhsa_accum_offset 184
  .amdhsa_group_segment_fixed_size 0
  .amdhsa_kernarg_size 96
  .amdhsa_user_sgpr_count 2
  .amdhsa_user_sgpr_kernarg_segment_ptr 1
  .amdhsa_system_sgpr_workgroup_id_x 1
  .amdhsa_float_denorm_mode_32 3
.end_amdhsa_kernel
"""
    return out

if __name__ == "__main__":
    kw = eval("dict(" + (sys.argv[2] if len(sys.argv) > 2 else "") + ")")
    open(sys.argv[1], "w").write(gen(**kw))
```

```python
import sys
from asmlib import Asm

NAME = "parallel_sum__sliding_block_cached__swiglu_ffn__decode"

L_K, L_V, L_GU, L_WO, L_WD = 0, 32768, 65536, 81920, 98304
L_WQ = 106496
L_X  = L_WQ + 16384
L_XX = L_X + 1024
L_Q  = L_XX + 2048
L_P  = L_Q + 1280
L_ML = L_P + 1024
L_O  = L_ML + 128
L_H  = L_O + 256
L_F  = L_H + 128
L_END = L_F + 80
F_LD, F_H, F_A, F_IE, F_Q, F_P, F_O, F_N = 0, 4, 8, 12, 16, 32, 48, 64

W_EP  = 0
W_VOT = 0x800
W_H1  = 0x1000
W_H1B = W_H1 + 256 * 256
W_HB  = W_H1B + 256 * 256
W_ML  = W_HB + 256 * 512
W_H3  = 0x48000
W_H2  = W_H3 + 64 * 4096
assert W_ML + 32 * 512 <= W_H3 and W_H3 % 16384 == 0
W_PR  = W_H2 + 1024 * 512
W_END = W_PR + 0x40000
W_ST  = 0x400000

LOG2E = 0x3fb8aa3b
SCALE = 0x3db504f3
SPIN = 1 << 16
EPOCH_STEP = 0x9e3779b9

def gen(TH=20, stamps=False, order=("Q", "K", "V", "GU", "WO", "WD"), warm=64, warmpol="sc1 nt", NA=24, h3depth=4,
        forceslow=False, h1trig=26, probe=None, abl=(), rot=True, h3gap=0, TH2=None, mimic=True, pfpol='', h1own=False, h3warm='sc1', pre=True, spec=True, sleep=0, prio=3, h2sleep=0, hbsleep=0, boost=26, gate='T', first=True, hbfirst=False, fine=False, local=True, pollpol='sc1', h1wt=True, lazy=4, ntail=8, wt=(), warmat='K', consffn=True, THK=None, THG=None, h3mask=False, lateb=False, both=False, auxfirst=False, align=False, touch=False, hold='Q0', spf=False, pk=True, h1warm=None, dip=None, dip2=None, kearly=True, look2=True, nap0=0, nap1=0, hbwarm=None, refine=True, h3pol='sc1', h3st='sc1', h3all=False, qloop=4, gx=0, light='hi', xboost=None, look1=False, pks=True, xfast=True, warmst=False, gnap=0, dual=False, dnap=2, dforce=None, probe_diag=0, h3x=0, near=True, gap=0, prpol='nt', voters='cons', evdbg=False, vat='K', vpol=''):
    if not local: warm = 0
    a = Asm()
    WS = "s[48:51]"
    WSZ = W_ST + 256 * 512 if stamps else W_END
    diag = bool(stamps or probe)

    def stamp(role, idx, f=False):
        if fine and role == 'c' and 1 <= idx <= 6 and not f: return
        if f and not fine: return
        if probe and (idx == 0 or probe == (role, idx)):
            a(f"s_memrealtime s[{96 if idx == 0 else 98}:{97 if idx == 0 else 99}]")
            if idx == 0: a("s_waitcnt lgkmcnt(0)\ns_mov_b32 s98, s96")
        if stamps and (stamps is True or idx in (0, 13) or (stamps == 'l' and (role, idx) in (('l', 1), ('l', 7), ('l', 2), ('l', 3), ('l', 9), ('c', 11)))):
            a(f"s_memtime s[{64 + 2 * idx}:{65 + 2 * idx}]")
            if idx == 0: a("s_memrealtime s[94:95]")
            if (role, idx) in (('l', 9), ('c', 13), ('a', 9)): a("s_memrealtime s[92:93]")
    def dump(role):
        if probe and probe[0] == role:
            L = a.label("pad")
            a("s_waitcnt lgkmcnt(0)\ns_sub_u32 s98, s98, s96\ns_mul_i32 s98, s98, 3\ns_add_u32 s96, s96, s98\ns_add_u32 s96, s96, 1500")
            a(f"{L}:\ns_sleep 4\ns_memrealtime s[98:99]\ns_waitcnt lgkmcnt(0)\ns_sub_u32 s35, s98, s96\ns_cmp_lt_i32 s35, 0\ns_cbranch_scc1 {L}")
        if not stamps or (stamps == 'min' and role != 'c') or (stamps == 'l' and role == 'a'): return
        a("s_waitcnt lgkmcnt(0)")
        a(f"s_lshl_b32 s60, s2, 9\ns_lshl_b32 s61, s3, 6\ns_add_u32 s60, s60, s61\ns_add_u32 s60, s60, {W_ST}")
        a("s_mov_b64 exec, 1\nv_mov_b32 v126, s60")
        for i in range(16):
            a(f"v_mov_b32 v127, s{64 + 2 * i}\nbuffer_store_dword v127, v126, {WS}, 0 offen offset:{4 * i}")
    cold = []
    class outofline:
        def __enter__(self): self.keep = a.lines; a.lines = []
        def __exit__(self, *x): cold.extend(a.lines); a.lines = self.keep
    def srd(d, p, size):
        a(f"s_mov_b32 s{d}, s{p}\ns_and_b32 s{d + 1}, s{p + 1}, 0xffff\ns_mov_b32 s{d + 2}, {size}\ns_mov_b32 s{d + 3}, 0x20000")
    events = ["X"]
    for nm in order:
        if nm == "K" and h1trig < 32: events.append("Kpart")
        if nm in ("V", "GU", "Q"): events += [nm + "0", nm + "1", nm + "2"]
        events.append(nm)
    events.insert(len(events) - 1 if ntail <= 8 else len(events) - 2, "T")
    def seg_flag(name):
        return events.index(name) + 1
    def lgk(n):
        a(f"s_waitcnt lgkmcnt({0 if diag else n})")
    def st2(ops, name=None):
        if not local or name in wt:
            for o in ops: a(o + " sc1" if o.startswith("buffer_store") else o)
            return
        L1 = a.label("slow"); L2 = a.label("st")
        a(f"s_cmp_eq_u32 s41, 0\ns_cbranch_scc1 {L1}")
        for o in ops: a(o)
        a(f"{L2}:")
        with outofline():
            a(f"{L1}:\ns_nop 1")
            for o in ops: a(o + " sc1" if o.startswith("buffer_store") else o)
            a(f"s_nop 1\ns_branch {L2}")
    def lds_spin(flag_off, want, reads, kind, tmp, nap=0):
        if not spec and len(reads) > 4 and kind == 'ge':
            lds_spin(flag_off, want, [], kind, tmp)
            for r in reads: a(r)
            a("s_waitcnt lgkmcnt(0)")
            return
        L = a.label("spin")
        a(f"s_mov_b32 s40, {SPIN}\n{L}:")
        if sleep and kind == 'ge': a(f"s_sleep {sleep}")
        elif nap: a(f"s_sleep {nap}")
        a(f"ds_read_b32 v{tmp}, v1 offset:{flag_off}" if kind == 'ge' else f"ds_read_b128 v[{tmp}:{tmp + 3}], v1 offset:{flag_off}")
        for r in reads: a(r)
        a("s_sub_u32 s40, s40, 1\ns_cbranch_scc1 L_end")
        a("s_waitcnt lgkmcnt(0)")
        if kind == 'ge':
            a(f"v_cmp_gt_u32 vcc, {want}, v{tmp}")
        else:
            a(f"v_and_b32 v{tmp + 2}, v{tmp + 2}, v{tmp + 3}\nv_bitop3_b32 v{tmp}, v{tmp}, v{tmp + 1}, v{tmp + 2} bitop3:0x80")
            a(f"v_cmp_eq_u32 vcc, 0, v{tmp}")
        a(f"s_cbranch_vccnz {L}")
    def wait_gate(tmp):
        if gate == 'IE': lds_spin(F_IE, 1, [], 'ge', tmp)
        elif gate == 'S': lds_spin(F_LD, "s38", [], 'ge', tmp)
        elif gate == 'T': lds_spin(F_LD, "s36", [], 'ge', tmp, nap=gnap)
        elif gate: lds_spin(F_LD, seg_flag(gate), [], 'ge', tmp)
        a(f"s_mov_b32 s40, {SPIN}")
    def inbox(d, cc):
        a(f"s_and_b32 s{d}, s{cc}, 1\ns_andn2_b32 s{cc}, s{cc}, 1\ns_lshl1_add_u32 s{d}, s{cc}, s{d}\ns_lshl_b32 s{d}, s{d}, 12\ns_add_u32 s{d}, s{d}, {W_H3 + h3x - (0x2000 if near else 0)}")
    def pick(r, t):
        a(f"s_bfe_u32 s{t}, s{r}, 0x80008\ns_and_b32 s{r}, s{r}, 0xff\ns_cmp_gt_u32 s{t}, s{r}\ns_cselect_b32 s{r}, 0x2000, 0")
    def tagbytes(dst, src):
        a(f"s_and_b32 s{dst}, s{src}, 0xff\ns_bfe_u32 s{dst + 1}, s{src}, 0x80008\ns_bfe_u32 s{dst + 2}, s{src}, 0x80010\ns_lshr_b32 s{dst + 3}, s{src}, 24")
    def chk(acc, r, t, first=False):
        a(f"v_xor_b32 v{acc}, s{t}, v{r}" if first else f"v_bitop3_b32 v{acc}, v{acc}, v{r}, s{t} bitop3:0xf6")
    def strip(acc, regs, first=False):
        for k, r in enumerate(regs): a(f"v_xor_b32 v{r}, s{56 + (k & 3)}, v{r}")
        for k in range(0, len(regs), 2):
            a(f"v_or_b32 v{acc}, v{regs[k]}, v{regs[k + 1]}" if first and k == 0 else f"v_or3_b32 v{acc}, v{acc}, v{regs[k]}, v{regs[k + 1]}")
    def tags():
        if not local:
            a(f"s_add_u32 s32, s32, {EPOCH_STEP:#x}\ns_mov_b32 s42, s32")
            return
        a(f"s_add_u32 s32, s32, {EPOCH_STEP:#x}\ns_getreg_b32 s42, hwreg(HW_REG_XCC_ID, 0, 4)\ns_add_u32 s42, s42, 1\ns_mul_i32 s42, s42, 0x01010101\ns_xor_b32 s42, s42, s32")

    ids = """s_and_b32 s6, s5, 7
    s_lshr_b32 s7, s5, 3"""
    if light == 'hi': pg = "s_mov_b32 s59, s4"
    else: pg = "s_lshr_b32 s59, s4, 1\ns_bitcmp" + ("0" if light == 'even' else "1") + "_b32 s4, 0\ns_cselect_b32 s33, 4, 0\ns_add_u32 s59, s59, s33"
    ids2 = pg + f"""
    s_lshl3_add_u32 s33, s7, s59
    v_mov_b32 v1, {L_F}"""
    a(f"{NAME}_kernel:")
    stamp('all', 0)
    a("""s_cmp_ge_u32 s2, 256
    s_cbranch_scc1 L_end
    s_load_dwordx16 s[8:23], s[0:1], 0
    s_load_dwordx8 s[24:31], s[0:1], 64
    v_readfirstlane_b32 s3, v0
    s_and_b32 s4, s2, 7
    s_lshr_b32 s5, s2, 3""")
    if gx: a(f"s_xor_b32 s4, s4, {gx}")
    a(ids)
    a("s_cmp_ge_u32 s3, 64\ns_cbranch_scc1 L_oth")
    a("L_loader:")
    a(f"s_getpc_b64 s[36:37]\nL_pc:\nv_lshlrev_b32 v3, 7, v0\nglobal_load_dword v30, v3, s[36:37] {pfpol}\nv_add_u32 v3, 0x2000, v3\nv_min_u32 v3, L_end-L_pc, v3\nglobal_load_dword v30, v3, s[36:37] {pfpol}")
    a("""v_lshlrev_b32 v2, 4, v0
    v_lshrrev_b32 v6, 3, v0
    v_and_b32 v7, 7, v0
    v_lshlrev_b32 v15, 17, v6
    v_lshl_add_u32 v15, v7, 4, v15
    s_lshl_b32 s35, s7, 13
    s_lshl3_add_u32 s35, s4, s35
    s_add_u32 s35, s35, s6
    s_lshl_b32 s39, s35, 7
    s_mov_b32 s46, 4194304
    s_mov_b32 s47, 0x20000""")
    a(f"s_movk_i32 s54, 0x400\ns_mov_b32 s55, s47\ns_mov_b32 m0, {L_X}\ns_setprio {prio}")
    if qloop: a(f"s_add_u32 s38, s39, 0x20000")
    a(f"""s_waitcnt lgkmcnt(0)
    s_mov_b32 s52, s8
    s_and_b32 s53, s9, 0xffff
    buffer_load_dwordx4 v2, s[52:55], 0 offen lds
    s_mov_b32 m0, {L_WQ}
    s_mov_b32 s44, s14
    s_and_b32 s45, s15, 0xffff""")
    stamp('l', 1)
    if qloop: a("L_ql:")
    for i in range(qloop or 16):
        a("buffer_load_dwordx4 v15, s[44:47], s39 offen nt lds\ns_addk_i32 m0, 0x400\ns_addk_i32 s39, 0x2000")
    if qloop: a("s_cmp_lt_u32 s39, s38\ns_cbranch_scc1 L_ql")
    a(ids2)
    if diag: a("s_mov_b32 s3, 1")
    if boost:
        a("s_cmp_eq_u32 s6, 3\ns_cselect_b64 vcc, -1, 0")
        if xboost is not None: a(f"s_and_b32 s35, s2, 7\ns_bitcmp1_b32 {xboost}, s35\ns_cselect_b64 vcc, -1, vcc")
    main_lines = a.lines; a.lines = []
    a("L_oth:\ns_lshr_b32 s3, s3, 6\nv_and_b32 v0, 63, v0")
    a(ids2)
    a("s_cmp_eq_u32 s3, 1\ns_cbranch_scc0 L_cw")
    if diag: a("s_mov_b32 s3, 0")
    a("v_lshlrev_b32 v2, 4, v0\ns_waitcnt lgkmcnt(0)\ns_load_dword s32, s[30:31], 0\ns_barrier\ns_branch L_aux")
    a("L_cw:\nv_mov_b32 v4, 0\nv_lshl_add_u32 v5, v0, 2, v1\ns_mov_b64 exec, 0xfffff\nds_write_b32 v5, v4\ns_mov_b64 exec, -1")
    a("s_waitcnt lgkmcnt(0)")
    if near:
        if voters == 'cons':
            a("s_cmp_ge_u32 s33, 28\ns_cselect_b32 s35, s3, 0\ns_cmp_eq_u32 s35, 5\ns_cbranch_scc0 L_nprb")
            a("s_load_dword s32, s[30:31], 0\ns_lshl3_add_u32 s38, s33, s6\ns_sub_u32 s38, s38, 224\ns_and_b32 s35, s6, 1\ns_lshl_b32 s36, s38, 7")
        else:
            a("s_cmp_eq_u32 s3, 5\ns_cbranch_scc0 L_nprb")
            a("s_load_dword s32, s[30:31], 0\ns_mov_b32 s38, s2\ns_and_b32 s35, s6, 1\ns_andn2_b32 s36, s2, 63\ns_add_u32 s36, s36, s2\ns_lshl_b32 s36, s36, 7")
        srd(48, 30, WSZ)
        a(f"s_lshl_b32 s37, s35, 13\ns_add_u32 s36, s36, s37\ns_add_u32 s36, s36, {W_PR}\ns_xor_b32 s37, s36, 0x2000\ns_mov_b64 exec, 1")
        a(f"buffer_load_dword v176, off, {WS}, s36 {prpol}\nbuffer_load_dword v177, off, {WS}, s37 {prpol}")
        if voters != 'cons': a("s_lshr_b32 s37, s4, 2\ns_xnor_b32 s35, s35, s37\ns_and_b32 s35, s35, 1")
        a("s_lshl_b32 s38, s38, 2\ns_barrier\ns_waitcnt vmcnt(1)")
        if gap: a(f"s_sleep {gap}")
        a("s_getreg_b32 s36, hwreg(HW_REG_IB_STS, 0, 4)")
        if dforce is not None: a(f"s_mov_b32 s36, 1\ns_mov_b32 s35, {dforce}")
        a(f"s_lshl_b32 s36, s36, s35\ns_waitcnt lgkmcnt(0)\ns_add_u32 s32, s32, {EPOCH_STEP:#x}\ns_xor_b32 s36, s36, s32\nv_mov_b32 v22, s36")
        a(f"buffer_store_dword v22, off, {WS}, s38 offset:{W_VOT} sc1\ns_mov_b64 exec, -1\ns_branch L_prd\nL_nprb:")
    a("s_barrier\nL_prd:")
    if nap0: a(f"s_sleep {nap0}")
    elif hold: lds_spin(F_LD, seg_flag(hold), [], 'ge', 20, nap=4)
    a("s_branch L_comp")
    oth_lines = a.lines; a.lines = main_lines
    def k_setup():
        a("""v_and_b32 v2, 15, v0
        v_lshrrev_b32 v3, 4, v0
        v_xor_b32 v4, v2, v3
        v_lshlrev_b32 v4, 4, v4
        v_lshlrev_b32 v5, 8, v3""")
        for i in range(4): a(f"v_xor_b32 v{8 + i}, {64 * i}, v4\nv_add_u32 v{8 + i}, v{8 + i}, v5")
        a("""s_lshl_b32 s35, s4, 24
        s_lshl_b32 s36, s5, 15
        s_add_u32 s35, s35, s36
        s_add_u32 s35, s35, 15728640""")
        a("s_lshl_b32 s40, s4, 12" if rot else "s_mov_b32 s40, 0")
        a("""s_add_u32 s44, s10, s35
        s_addc_u32 s45, s11, 0
        s_and_b32 s45, s45, 0xffff
        s_mov_b32 s46, 32768
        s_add_u32 s12, s12, s35
        s_addc_u32 s13, s13, 0""")
    nwarm = 1 if warm else 0
    def late_setup():
        a("""v_lshrrev_b32 v4, 2, v2
        v_xor_b32 v4, v4, v3
        v_lshl_add_u32 v12, v4, 6, v5
        v_and_b32 v4, 3, v0
        v_lshl_add_u32 v12, v4, 4, v12
        v_mul_u32_u24 v13, 28672, v6
        v_lshl_add_u32 v13, v7, 4, v13
        v_lshlrev_b32 v4, 1, v3
        v_xor_b32 v4, v4, v7
        v_lshlrev_b32 v4, 4, v4
        v_lshl_add_u32 v14, v6, 10, v4
        s_mul_i32 s41, s6, 229376
        s_lshl_b32 s37, s33, 7
        s_add_u32 s41, s41, s37
        s_lshl_b32 s42, s4, 19
        s_lshl_b32 s38, s7, 17
        s_add_u32 s42, s42, s38
        s_lshl_b32 s38, s6, 7
        s_add_u32 s42, s42, s38
        s_lshl_b32 s43, s33, 16
        s_add_u32 s43, s43, s38""")
        srd(48, 30, WSZ)
        if h3warm is not None:
            a("s_sub_u32 s37, s33, 28\ns_lshl3_add_u32 s37, s37, s6")
            inbox(36, 37)
            a("v_lshl_add_u32 v19, v0, 6, s36")
        if warm:
            a(f"s_lshl_b32 s36, s4, 7\ns_add_u32 s36, s36, s5\ns_lshl_b32 s37, s36, 9\ns_add_u32 s37, s37, {W_H2}")
            a("v_lshrrev_b32 v16, 3, v0\nv_lshlrev_b32 v16, 14, v16\nv_lshl_add_u32 v16, v7, 6, v16\nv_add_u32 v16, s37, v16")
            a(f"s_lshl_b32 s37, s36, 4\ns_add_u32 s37, s37, {W_ML}\nv_and_b32 v17, 3, v0\nv_lshlrev_b32 v17, 9, v17\nv_add_u32 v17, s37, v17")
            a(f"s_lshl_b32 s36, s4, 2\ns_add_u32 s36, s36, s7\ns_lshl_b32 s36, s36, 3\ns_add_u32 s36, s36, s6\ns_lshl_b32 s36, s36, 9\ns_add_u32 s36, s36, {W_HB}")
            a("v_lshl_add_u32 v18, v7, 6, s36\nv_cmp_gt_u32 s[56:57], 40, v0\nv_cndmask_b32 v17, v17, v18, s[56:57]\nv_cmp_gt_u32 s[56:57], 32, v0\nv_cndmask_b32 v16, v17, v16, s[56:57]")
    def seg_loads(name):
        r = []
        if name in ("K", "V"):
            base = L_K if name == "K" else L_V
            for i in range(32):
                v = f"v{8 + ((i >> 1) & 3)}" if name == "K" else "v12"
                r.append((f"s_mov_b32 m0, {base + 1024 * i}" if i % 4 == 0 else None, f"{v}, s[44:47], s40 offen offset:{1024 * (i & 3)}",
                          "s_addk_i32 s40, 0x1000\ns_and_b32 s40, s40, 0x7fff" if i % 4 == 3 else None))
        if name == "Q":
            for i in range(16): r.append((f"s_mov_b32 m0, {L_WQ + 1024 * i}", "v15, s[44:47], s39 offen", "s_addk_i32 s39, 0x2000"))
        if name == "GU":
            for i in range(16): r.append((f"s_mov_b32 m0, {L_GU + 1024 * i}", f"v13, s[{44 + 8 * (i & 1)}:{47 + 8 * (i & 1)}], s41 offen", "s_addk_i32 s41, 0xe00" if i & 1 else None))
        if name == "WO":
            for i in range(16): r.append((f"s_mov_b32 m0, {L_WO + 1024 * i}", "v14, s[44:47], s42 offen", "s_addk_i32 s42, 0x2000"))
        if name == "WD":
            for i in range(8): r.append((f"s_mov_b32 m0, {L_WD + 1024 * i}", "v14, s[44:47], s43 offen", "s_addk_i32 s43, 0x2000"))
        return r
    def seg_setup(name):
        if name == "K": k_setup()
        if name == "V": srd(44, 12, 32768)
        if name == "GU": srd(44, 20, 1835008); srd(52, 22, 1835008)
        if name == "WO": srd(44, 16, 4194304)
        if name == "WD": srd(44, 24, 1835008)
    def signal(f):
        a(f"v_mov_b32 v20, {f}\nds_write_b32 v1, v20 offset:{F_LD}")
        if events[f - 1] in order: stamp('l', 1 + order.index(events[f - 1]) if events[f - 1] != 'Q' else 7)
    def emit(segs, n0, pend, final):
        n = n0
        for name in segs:
            seg_setup(name)
            th = TH if name in ("Q", "K", "V") or TH2 is None else TH2
            if name in ("Q", "K") and THK: th = THK
            if name == "GU" and THG: th = THG
            lo = seg_loads(name)
            th0 = th
            if name == "Q":
                for c in range(4): pend.append((n + 4 * c + 4, seg_flag("Q" + (str(c) if c < 3 else ""))))
                n += 16
                continue
            for idx, (m0, ad, inc) in enumerate(lo):
                if m0: a(m0)
                th = th0
                for d_ in (dip, dip2):
                    if d_ and d_[0] <= n < d_[1]: th = d_[2]
                if n == (THK or TH) + npre:
                    a("s_barrier")
                    if xfast:
                        a(f"s_waitcnt vmcnt({n - npre})")
                        signal(pend.pop(0)[1])
                    else: late_setup()
                    a("L_split:")
                if xfast and n == (THK or TH) + npre + 4: late_setup()
                if n >= th and n >= (THK or TH) + npre:
                    sig = pend and pend[0][0] <= n - (th - 1)
                    if boost and name in ("Q", "K", "V") and not sig and th == th0:
                        L = a.label("bo")
                        a(f"s_cbranch_vccnz {L}\ns_waitcnt vmcnt({th - 1})\n{L}:\ns_waitcnt vmcnt({boost - 1})")
                    else:
                        a(f"s_waitcnt vmcnt({th - 1})")
                    while pend and pend[0][0] <= n - (th - 1):
                        signal(pend.pop(0)[1])
                a(f"buffer_load_dwordx4 {ad} nt lds")
                if inc: a(inc)
                n += 1
                if name in ("V", "GU", "Q") and (idx + 1) % (len(lo) // 4) == 0 and idx + 1 < len(lo):
                    pend.append((n, seg_flag(name + str((idx + 1) // (len(lo) // 4) - 1))))
                if name == "K" and h1trig < 32 and idx + 1 == h1trig: pend.append((n, seg_flag("Kpart")))
            pend.append((n, seg_flag(name)))
            if name == "Q" and h1warm is not None:
                srd(52, 30, WSZ)
                a(f"s_lshl_b32 s35, s4, 5\ns_lshl_b32 s36, s6, 2\ns_add_u32 s35, s35, s36\ns_add_u32 s35, s35, s7\ns_lshl_b32 s35, s35, 8\ns_add_u32 s35, s35, {W_H1}")
                a(f"v_lshlrev_b32 v23, 6, v0\ns_mov_b64 exec, 15\nbuffer_load_dword v24, v23, s[52:55], s35 offen {h1warm}\ns_mov_b64 exec, -1")
                n += 1
            if name == warmat:
                if nwarm:
                    a(f"s_mov_b32 exec_hi, {0xfff if hbwarm is None else 0xf00}\n" + (f"v_mov_b32 v21, 0\nbuffer_store_dword v21, v16, {WS}, 0 offen" if warmst else f"buffer_load_dword v21, v16, {WS}, 0 offen {warmpol}") + "\ns_mov_b32 exec_hi, -1")
                    n += 1
                    if hbwarm:
                        a(f"s_mov_b32 exec_lo, 0\ns_mov_b32 exec_hi, 0xff\nbuffer_load_dword v21, v16, {WS}, 0 offen {hbwarm}\ns_mov_b64 exec, -1")
                        n += 1
                if h3warm is not None and not consffn:
                    a(f"buffer_load_dword v22, v19, {WS}, 0 offen {h3warm}")
                    n += 1
        if final:
            pend.append((n - ntail, seg_flag("T"))); pend.sort()
            pend[:] = sorted(set((e, len(events) if e == n else max(f for (e2, f) in pend if e2 <= e)) for (e, f) in pend))
            if gate == 'IE': a(f"v_mov_b32 v20, 1\nds_write_b32 v1, v20 offset:{F_IE}")
            stamp('l', 8)
            while pend:
                e, f = pend.pop(0)
                a(f"s_waitcnt vmcnt({n - e})")
                signal(f)
                if events[f - 1] == "T": stamp('l', 5)
        return n
    assert order[0] == "Q" and 16 < TH < 48
    npre = 3
    ffn = ("GU", "WD")
    k = min(order.index(x) for x in ffn)
    pend = [(npre, seg_flag("X"))]
    n = emit(order[:k], npre, pend, False)
    a("s_cmp_ge_u32 s33, 28\ns_cbranch_scc1 L_ldb")
    emit(order[k:], n, list(pend), True)
    a("s_branch L_lde\nL_ldb:")
    emit([x for x in order[k:] if x not in ffn], n, list(pend), True)
    if h3warm is not None and near:
        a(f"ds_read_b32 v22, v1 offset:{F_IE}\ns_waitcnt lgkmcnt(0)\nv_readfirstlane_b32 s36, v22\ns_cmp_eq_u32 s36, 0\ns_cbranch_scc1 L_lde")
        a(f"buffer_load_dword v22, v19, {WS}, s36 offen {h3warm}")
    elif h3warm is not None and consffn: a(f"buffer_load_dword v22, v19, {WS}, 0 offen {h3warm}")
    if dual:
        a(f"s_movk_i32 s36, 0x2000\nbuffer_load_dword v23, v19, {WS}, s36 offen {h3warm}\ns_waitcnt vmcnt(1)\ns_sleep {dnap}\ns_getreg_b32 s36, hwreg(HW_REG_IB_STS, 0, 4)")
        a(f"s_cmp_eq_u32 s36, 0\ns_cselect_b32 s36, 2, 1")
        if dforce: a(f"s_mov_b32 s36, {dforce}")
        a(f"v_mov_b32 v20, s36\nds_write_b32 v1, v20 offset:{F_IE}")
    if touch: a("s_branch L_lde\nL_t1:\ns_branch L_t2")
    a("L_lde:")
    stamp('l', 9)
    dump('l')
    a("s_endpgm")

    a("L_aux:")
    stamp('a', 1)
    srd(48, 30, WSZ)
    a("v_lshrrev_b32 v3, 3, v0\nv_and_b32 v4, 7, v0")
    a("""v_and_b32 v6, 1, v0
    v_lshlrev_b32 v6, 4, v6
    v_mov_b32 v7, 0xffff
    v_lshlrev_b32 v6, v6, v7
    v_bfe_u32 v7, v0, 1, 2""")
    for d in range(4): a(f"v_cmp_eq_u32 vcc, {d}, v7\nv_cndmask_b32 v{12 + d}, 0, v6, vcc")
    a(f"v_lshlrev_b32 v6, 5, v0\nv_add_u32 v6, {L_XX}, v6")
    a(f"s_lshl_b32 s35, s7, 9\ns_add_u32 s35, s35, {L_XX}\nv_lshl_add_u32 v7, v3, 6, s35")
    a(f"v_add_u32 v25, {L_X}, v2")
    lds_spin(F_LD, seg_flag("X"), ["ds_read_b128 v[8:11], v25"], 'ge', 24)
    stamp('a', 2)
    for k in range(4): a(f"v_lshlrev_b32 v{16 + 2 * k}, 16, v{8 + k}\nv_and_b32 v{17 + 2 * k}, 0xffff0000, v{8 + k}")
    def wave_sum(r, t):
        for n in (8, 4, 2, 1): a(f"v_add_f32_dpp v{r}, v{r}, v{r} row_ror:{n} row_mask:0xf bank_mask:0xf")
        a(f"v_mov_b32 v{t}, v{r}\nv_permlane16_swap_b32 v{r}, v{t}\nv_add_f32 v{r}, v{r}, v{t}")
        a(f"v_mov_b32 v{t}, v{r}\nv_permlane32_swap_b32 v{r}, v{t}\nv_add_f32 v{r}, v{r}, v{t}")
    a("""v_add_f32 v24, v16, v17
    v_add_f32 v25, v18, v19
    v_add_f32 v26, v20, v21
    v_add_f32 v27, v22, v23
    v_add_f32 v24, v24, v25
    v_add_f32 v26, v26, v27
    v_add_f32 v24, v24, v26""")
    wave_sum(24, 25)
    a("v_mul_f32 v24, 0x3b000000, v24")
    for k in range(8): a(f"v_sub_f32 v{32 + k}, v{16 + k}, v24")
    a("v_mul_f32 v26, v32, v32\nv_mul_f32 v27, v33, v33")
    for k in range(2, 8): a(f"v_fmac_f32 v{26 + (k & 1)}, v{32 + k}, v{32 + k}")
    a("v_add_f32 v26, v26, v27\nv_cvt_pk_bf16_f32 v24, 0, v24")
    wave_sum(26, 25)
    for k in range(8): a(f"v_sub_f32 v{16 + k}, v{16 + k}, v24")
    a("""v_mul_f32 v26, 0x3b000000, v26
    v_cvt_pk_bf16_f32 v26, 0, v26
    v_add_f32 v26, 0x3727c5ac, v26
    v_cvt_pk_bf16_f32 v26, 0, v26
    v_sqrt_f32 v26, v26""")
    for k in range(8): a(f"v_cvt_pk_bf16_f32 v{16 + k}, 0, v{16 + k}")
    a("v_cvt_pk_bf16_f32 v26, 0, v26\nv_rcp_f32 v27, v26")
    for k in range(8): a(f"v_mul_f32 v{32 + k}, v{16 + k}, v27")
    for k in range(8): a(f"v_fma_f32 v{16 + k}, -v{32 + k}, v26, v{16 + k}")
    for k in range(8): a(f"v_fmac_f32 v{32 + k}, v{16 + k}, v27")
    for k in range(8): a(f"v_cvt_pk_bf16_f32 v{32 + k}, v{32 + k}, v{32 + k}")
    a("ds_write_b128 v6, v[32:35]\nds_write_b128 v6, v[36:39] offset:16")
    for k in range(4): a(f"ds_read_b128 v[{16 + 4 * k}:{19 + 4 * k}], v7 offset:{16 * k}")
    a("""v_lshlrev_b32 v5, 5, v4
    v_bfe_u32 v6, v0, 4, 1
    v_lshl_add_u32 v5, v6, 4, v5
    v_mov_b32 v61, v5
    v_lshrrev_b32 v6, 5, v0
    v_lshl_add_u32 v5, v6, 3, v5
    s_lshl_b32 s35, s4, 5
    s_lshl_b32 s36, s6, 2
    s_add_u32 s35, s35, s36
    s_add_u32 s35, s35, s7
    s_lshl_b32 s35, s35, 8""")
    a(f"s_add_u32 s35, s35, {W_H1}\nv_add_u32 v9, s35, v61\nv_mov_b32 v56, 0xff\ns_mov_b32 s43, {W_H1B - W_H1}")
    a("s_waitcnt lgkmcnt(0)")
    stamp('a', 3)
    tags()
    a("v_mov_b32 v57, s42\nv_lshrrev_b32 v58, 8, v57\nv_lshrrev_b32 v59, 16, v57\nv_lshrrev_b32 v60, 24, v57")
    a(f"v_add_u32 v11, {L_WQ}, v2")
    for i in range(16):
        for d in range(4): a(f"v_and_b32 v{128 + 4 * (i & 7) + d}, v{16 + i}, v{12 + d}")
        if i == 7 or i == 11 or i == 15:
            for c in ((0, 1) if i == 7 else (2,) if i == 11 else (3,)):
                lds_spin(F_LD, seg_flag("Q" + (str(c) if c < 3 else "")), [f"ds_read_b128 v[{64 + 4 * k}:{67 + 4 * k}], v11 offset:{1024 * k}" for k in range(4 * c, 4 * c + 4)], 'ge', 62)
                for k in range(4 * c, 4 * c + 4):
                    a(f"v_mfma_f32_16x16x32_bf16 v[32:35], v[{128 + 4 * (k & 7)}:{131 + 4 * (k & 7)}], v[{64 + 4 * k}:{67 + 4 * k}], {'0' if k == 0 else 'v[32:35]'}")
    stamp('a', 4)
    a("""v_permlane32_swap_b32 v32, v34
    v_permlane32_swap_b32 v33, v35
    v_add_f32_dpp v48, v34, v32 row_shl:8 row_mask:0xf bank_mask:0xf
    v_add_f32_dpp v49, v35, v33 row_shl:8 row_mask:0xf bank_mask:0xf
    v_add_u32 v48, 0x80, v48
    v_add_u32 v49, 0x80, v49
    v_mov_b32 v50, v48
    v_mov_b32 v51, v49
    v_permlane32_swap_b32 v48, v50
    v_permlane32_swap_b32 v49, v51
    s_mov_b64 exec, 0x00ff00ff""")
    for k in range(4): a(f"v_bfi_b32 v{52 + k}, v56, v{57 + k}, v{48 + k}")
    a(f"buffer_store_dwordx4 v[52:55], v9, {WS}, 0 offen" + ("" if local and not h1wt else " sc1"))
    if 'noh1b' not in abl and local:
        a("v_mov_b32 v57, s32\nv_lshrrev_b32 v58, 8, v57\nv_lshrrev_b32 v59, 16, v57\nv_lshrrev_b32 v60, 24, v57")
        for k in range(4): a(f"v_bfi_b32 v{160 + k}, v56, v{57 + k}, v{48 + k}")
        if lateb: a("v_mov_b32 v164, v9")
        else: a(f"buffer_store_dwordx4 v[160:163], v9, {WS}, s43 offen sc1")
    a(f"s_mov_b64 exec, -1\nv_mov_b32 v20, 1\nds_write_b32 v1, v20 offset:{F_A}")
    stamp('a', 5)
    a("L_aux2:")
    nv = 1 if voters == 'cons' else 4
    def vote_load(pol):
        if nv == 1: a(f"s_mov_b32 exec_hi, 0\nv_lshlrev_b32 v40, 2, v0\nbuffer_load_dword v44, v40, {WS}, 0 offen offset:{W_VOT} {pol}\ns_mov_b32 exec_hi, -1")
        else: a(f"buffer_load_dwordx4 v[44:47], v2, {WS}, 0 offen offset:{W_VOT} {pol}")
    def vote_first():
        if vat: lds_spin(F_LD, seg_flag(vat), [], 'ge', 28, nap=lazy)
        vote_load(vpol)
    def vote_count(tag):
        a(f"s_mov_b32 s40, {SPIN}\nL_vc0{tag}:\ns_waitcnt vmcnt(0)")
        if nv == 1: a("s_mov_b32 exec_hi, 0")
        for k in range(nv): a(f"v_xor_b32 v{44 + k}, s32, v{44 + k}")
        if nv == 1: a("v_cmp_lt_u32 vcc, 2, v44")
        else: a("v_or_b32 v41, v44, v45\nv_or3_b32 v41, v41, v46, v47\nv_cmp_lt_u32 vcc, 3, v41")
        a(f"s_cbranch_vccnz L_vc1{tag}")
        with outofline():
            a(f"L_vc1{tag}:\ns_mov_b64 exec, -1\ns_sleep 8")
            vote_load('sc1')
            a(f"s_sub_u32 s40, s40, 1\ns_cbranch_scc0 L_vc0{tag}\ns_branch L_end")
        for k in range(nv):
            for c in range(2):
                a(f"v_cmp_eq_u32 vcc, {c + 1}, v{44 + k}\ns_bcnt1_i32_b64 s{(36 if k == 0 else 38) + c}, vcc")
            if k: a("s_add_u32 s36, s36, s38\ns_add_u32 s37, s37, s39")
        a(f"s_cmp_gt_u32 s37, s36\ns_cselect_b32 s38, 2, 1\ns_lshl_b32 s38, s38, 13\ns_mov_b64 exec, -1\nv_mov_b32 v41, s38\nds_write_b32 v1, v41 offset:{F_IE}")
        if stamps or evdbg: a(f"s_lshl_b32 s37, s37, 8\ns_add_u32 s36, s36, s37\nv_mov_b32 v41, s36\nds_write_b32 v1, v41 offset:{F_N}")
        if evdbg:
            srd(44, 28, 256)
            a(f"s_getreg_b32 s37, hwreg(HW_REG_XCC_ID, 0, 4)\ns_lshl_b32 s37, s37, 16\ns_add_u32 s36, s36, s37\nv_mov_b32 v41, s36\ns_lshl_b32 s37, s2, 2\nv_mov_b32 v42, s37\nbuffer_store_dword v41, v42, s[44:47], 0 offen")
    if near and not vat: vote_first()
    a("s_cmp_ge_u32 s33, 28\ns_cbranch_scc1 " + ("L_probe" if probe_diag else "L_dec" if near else "L_adone"))
    if near:
        with outofline():
            a("L_dec:")
            if vat: vote_first()
            vote_count('a')
            a("s_branch L_adone")
    if probe_diag:
        with outofline():
            a(f"L_probe:\ns_sub_u32 s35, s33, 28\ns_lshl3_add_u32 s35, s35, s6\ns_lshr_b32 s36, s35, 2\ns_lshl_b32 s36, s36, 14\ns_and_b32 s35, s35, 3\ns_lshl_b32 s35, s35, 10\ns_add_u32 s36, s36, s35\ns_add_u32 s36, s36, {W_PR}")
            if probe_diag == 3:
                lds_spin(F_LD, seg_flag("Kpart"), [], 'ge', 28, nap=2)
                a("s_mul_i32 s36, s6, 768\ns_add_u32 s36, s36, 0x14000")
            for t in range(12):
                a(f"s_memtime s[56:57]\ns_waitcnt lgkmcnt(0)\ns_load_dword s58, s[30:31], s36 offset:{(t >> 1) * 128 + (t & 1) * 8192}{' glc' if probe_diag == 2 else ''}\ns_waitcnt lgkmcnt(0)\ns_memtime s[60:61]\ns_waitcnt lgkmcnt(0)\ns_sub_u32 s{66 + 2 * t}, s60, s56")
            a("s_memtime s[90:91]\ns_branch L_adump")
    if 'noffn' in abl: a("s_branch L_adone")
    a(f"s_lshl_b32 s35, s6, 8\ns_add_u32 s35, s35, {L_XX}\nv_lshl_add_u32 v7, v3, 5, s35")
    a("ds_read_b128 v[16:19], v7\nds_read_b128 v[20:23], v7 offset:16")
    a(f"s_lshl_b32 s35, s4, 2\ns_add_u32 s35, s35, s7\ns_lshl_b32 s35, s35, 12\ns_add_u32 s35, s35, {W_HB}")
    a("v_add_u32 v10, s35, v2\ns_lshl_b32 s36, s6, 9\ns_add_u32 s35, s35, s36\nv_lshl_add_u32 v9, v5, 1, s35")
    a(f"v_add_u32 v11, {L_GU}, v2")
    a("""v_bfe_u32 v8, v0, 4, 1
    v_lshlrev_b32 v8, 6, v8
    v_bfe_u32 v6, v0, 1, 2
    v_lshl_add_u32 v8, v6, 4, v8
    v_bfe_u32 v6, v0, 3, 1
    v_lshl_add_u32 v8, v6, 3, v8
    v_and_b32 v6, 1, v0
    v_lshl_add_u32 v8, v6, 2, v8
    v_lshrrev_b32 v6, 5, v0
    v_lshl_add_u32 v8, v6, 1, v8""")
    a(f"v_add_u32 v8, {L_H}, v8")
    tagbytes(56, 32)
    for k in range(4): a(f"v_mov_b32 v{57 + k}, s{56 + k}")
    a("s_waitcnt lgkmcnt(0)")
    for i in range(8):
        for d in range(4): a(f"v_and_b32 v{128 + 4 * i + d}, v{16 + i}, v{12 + d}")
    if near and vat: vote_first()
    elif near: vote_count('b')
    for c in range(4):
        rd = [f"ds_read_b128 v[{64 + 4 * i}:{67 + 4 * i}], v11 offset:{1024 * i}" for i in range(4 * c, 4 * c + 4)]
        if c == 3: rd.append(f"ds_read_b128 v[24:27], v1 offset:{F_Q}")
        if c == 0 and lazy: lds_spin(F_LD, seg_flag("V"), [], 'ge', 28, nap=lazy)
        if c == 0 and near and vat: vote_count('b')
        lds_spin(F_LD, seg_flag("GU" + (str(c) if c < 3 else "")), rd, 'ge', 28)
        if c == 3: stamp('a', 6)
        for i in range(2 * c, 2 * c + 2):
            for m in range(2):
                cc = "0" if i == 0 else f"v[{32 + 4 * m}:{35 + 4 * m}]"
                a(f"v_mfma_f32_16x16x32_bf16 v[{32 + 4 * m}:{35 + 4 * m}], v[{128 + 4 * i}:{131 + 4 * i}], v[{64 + 8 * i + 4 * m}:{67 + 8 * i + 4 * m}], {cc}")
    a("v_and_b32 v26, v26, v27\nv_bitop3_b32 v24, v24, v25, v26 bitop3:0x80\nv_readfirstlane_b32 s41, v24\ns_and_b32 s41, s41, 2")
    a("""v_permlane32_swap_b32 v32, v34
    v_permlane32_swap_b32 v33, v35
    v_permlane32_swap_b32 v36, v38
    v_permlane32_swap_b32 v37, v39
    v_add_f32_dpp v48, v34, v32 row_shl:8 row_mask:0xf bank_mask:0xf
    v_add_f32_dpp v50, v35, v33 row_shl:8 row_mask:0xf bank_mask:0xf
    v_add_f32_dpp v49, v38, v36 row_shl:8 row_mask:0xf bank_mask:0xf
    v_add_f32_dpp v51, v39, v37 row_shl:8 row_mask:0xf bank_mask:0xf
    s_mov_b32 exec_lo, 0x00ff00ff
    s_mov_b32 exec_hi, 0x00ff00ff""")
    for k in range(4): a(f"v_add_u32 v{48 + k}, 0x80, v{48 + k}")
    for k in range(4): a(f"v_bfi_b32 v{48 + k}, v56, v{57 + k}, v{48 + k}")
    st2([f"buffer_store_dwordx4 v[48:51], v9, {WS}, 0 offen"], 'hb')
    a("s_mov_b64 exec, -1")
    stamp('a', 7)
    L = a.label("hb")
    a(f"s_mov_b32 s38, {max(seg_flag('WO'), seg_flag('WD'))}\ns_mov_b32 s36, {seg_flag('T')}\ns_mov_b32 s39, {0 if hbfirst else 1}")
    a(f"s_mov_b32 s40, {SPIN}\n{L}:")
    if gate:
        a("s_cmp_eq_u32 s39, 1\ns_cbranch_scc0 L_hbg")
        wait_gate(28)
        a("L_hbg:\ns_add_u32 s39, s39, 1")
    for i in range(4): a(f"buffer_load_dwordx4 v[{64 + 4 * i}:{67 + 4 * i}], v10, {WS}, 0 offen offset:{1024 * i} {pollpol}")
    a("s_sub_u32 s40, s40, 1\ns_cbranch_scc1 L_end")
    for i in range(4):
        a(f"s_waitcnt vmcnt({3 - i})")
        strip(20, [64 + 4 * i + k for k in range(4)], first=(i == 0))
        if i:
            for k in range(4): a(f"v_add_f32 v{64 + k}, v{64 + k}, v{64 + 4 * i + k}")
    a(f"v_and_b32 v20, 0xff, v20\nv_cmp_ne_u32 vcc, 0, v20")
    if hbsleep: a(f"s_cbranch_vccz L_hbok\ns_sleep {hbsleep}\ns_branch {L}\nL_hbok:")
    else: a(f"s_cbranch_vccnz {L}")
    stamp('a', 8)
    a(f"""v_permlane32_swap_b32 v64, v66
    v_permlane32_swap_b32 v65, v67
    v_add_f32 v64, v64, v66
    v_add_f32 v66, v65, v67
    v_cvt_pk_bf16_f32 v64, 0, v64
    v_cvt_pk_bf16_f32 v66, 0, v66
    v_mul_f32 v20, {(LOG2E | 0x80000000):#x}, v64
    v_exp_f32 v20, v20
    v_add_f32 v20, 1.0, v20
    v_rcp_f32 v21, v20
    v_mul_f32 v22, v64, v21""")
    if refine: a("""v_fma_f32 v23, -v22, v20, v64
    v_fma_f32 v23, v23, v21, v22
    v_cmp_class_f32 vcc, v23, 3
    v_cndmask_b32 v22, v23, v22, vcc""")
    a(f"""v_cvt_pk_bf16_f32 v22, 0, v22
    v_mul_f32 v22, v22, v66
    v_cvt_pk_bf16_f32 v22, v22, v22
    v_mov_b32 v21, 1
    ds_write_b16 v8, v22
    ds_write_b32 v1, v21 offset:{F_H}""")
    a("L_adone:")
    if lateb and local:
        a(f"s_mov_b64 exec, 0x00ff00ff\nbuffer_store_dwordx4 v[160:163], v164, {WS}, s43 offen sc1")
    stamp('a', 9)
    a("L_adump:")
    dump('a')
    a("s_endpgm")

    a("L_comp:\ns_sub_u32 s34, s3, 2")
    a("s_load_dword s32, s[30:31], 0")
    srd(48, 30, WSZ)
    if warm and not h1wt:
        a("s_cmp_eq_u32 s34, 1\ns_cbranch_scc0 L_nowarm")
        a(f"s_lshl_b32 s35, s4, 5\ns_lshl_b32 s36, s6, 2\ns_add_u32 s35, s35, s36\ns_add_u32 s35, s35, s7\ns_lshl_b32 s35, s35, 8\ns_add_u32 s35, s35, {W_H1}")
        a(f"v_lshlrev_b32 v4, 6, v0\ns_mov_b64 exec, 15\nbuffer_load_dword v124, v4, {WS}, s35 offen {warmpol}\ns_mov_b64 exec, -1\nL_nowarm:")
    a("""v_and_b32 v2, 15, v0
    v_lshrrev_b32 v3, 4, v0""")
    a("""v_xor_b32 v4, v2, v3
    v_lshlrev_b32 v4, 4, v4
    v_lshrrev_b32 v5, 2, v2
    v_lshlrev_b32 v5, 11, v5
    v_and_b32 v6, 3, v0
    v_lshl_add_u32 v5, v6, 8, v5
    s_lshr_b32 s35, s34, 1
    s_lshl_b32 s35, s35, 14
    s_and_b32 s36, s34, 1
    s_lshl_b32 s36, s36, 10
    s_add_u32 s35, s35, s36
    v_add_u32 v5, s35, v5""")
    for s_ in range(4):
        a(f"v_xor_b32 v{8 + s_}, {64 * s_}, v4\nv_add_u32 v{8 + s_}, v{8 + s_}, v5")
    a("""v_lshrrev_b32 v4, 2, v2
    v_xor_b32 v5, s34, v4
    v_lshlrev_b32 v5, 6, v5
    v_lshl_add_u32 v5, v4, 8, v5
    v_lshrrev_b32 v7, 1, v3
    v_lshl_add_u32 v5, v7, 10, v5
    v_and_b32 v7, 1, v3
    v_lshl_add_u32 v5, v7, 5, v5
    v_lshl_add_u32 v5, v6, 3, v5""")
    a(f"v_add_u32 v12, {L_V}, v5")
    a("""v_lshl_add_u32 v5, v3, 2, v4
    v_lshrrev_b32 v7, 1, v5
    v_and_b32 v7, 3, v7
    v_xor_b32 v7, s34, v7
    v_lshlrev_b32 v7, 5, v7
    v_lshl_add_u32 v7, v5, 7, v7
    v_lshl_add_u32 v14, v6, 3, v7""")
    a(f"v_add_u32 v14, {L_WO}, v14")
    a(f"v_mul_u32_u24 v15, 320, v6\nv_lshl_add_u32 v15, v3, 4, v15\nv_add_u32 v15, {L_Q}, v15")
    a("""v_lshrrev_b32 v4, 5, v0
    v_lshlrev_b32 v16, 8, v4
    v_and_b32 v5, 1, v3
    v_lshl_add_u32 v16, v5, 10, v16
    v_lshl_add_u32 v16, v2, 4, v16
    s_lshl_b32 s35, s4, 13
    s_lshl_b32 s36, s34, 11
    s_add_u32 s35, s35, s36""")
    a(f"s_add_u32 s35, s35, {W_H1}\nv_add_u32 v16, s35, v16")
    a(f"s_mul_i32 s35, s34, 320\ns_add_u32 s35, s35, {L_Q}\nv_and_b32 v5, 31, v0\nv_lshl_add_u32 v17, v5, 3, s35\nv_lshl_add_u32 v17, v4, 2, v17")
    a("s_lshl_b32 s35, s34, 2\nv_add_u32 v18, s35, v1")
    a(f"s_lshl_b32 s35, s34, 8\ns_add_u32 s35, s35, {L_P}\nv_lshl_add_u32 v19, v3, 5, s35\nv_lshl_add_u32 v19, v6, 3, v19")
    a(f"s_lshl_b32 s35, s34, 4\ns_add_u32 s35, s35, {L_ML}\nv_lshl_add_u32 v112, v0, 2, s35")
    a(f"v_lshlrev_b32 v113, 3, v0\nv_add_u32 v113, {L_P}, v113")
    a(f"v_lshlrev_b32 v114, 4, v4\nv_add_u32 v114, {L_ML}, v114")
    a(f"s_lshl_b32 s35, s34, 2\ns_add_u32 s35, s35, {L_ML}\nv_lshl_add_u32 v13, v6, 4, s35\nv_mov_b32 v144, {L_ML}")
    a("s_lshl_b32 s35, s4, 7\ns_add_u32 s35, s35, s5")
    a(f"s_lshl_b32 s36, s35, 9\ns_lshl_b32 s37, s34, 7\ns_add_u32 s36, s36, s37\ns_add_u32 s36, s36, {W_H2}\nv_lshl_add_u32 v115, v5, 2, s36\nv_lshl_add_u32 v115, v4, 14, v115")
    a(f"s_lshl_b32 s36, s34, 5\ns_add_u32 s36, s36, s35\ns_lshl_b32 s36, s36, 4\ns_add_u32 s36, s36, {W_ML}\nv_mov_b32 v116, s36")
    a("v_lshrrev_b32 v4, 3, v0\nv_and_b32 v5, 7, v0\ns_lshl_b32 s35, s4, 2\ns_add_u32 s35, s35, s7")
    a(f"s_lshl_b32 s36, s35, 14\ns_lshl_b32 s37, s34, 7\ns_add_u32 s36, s36, s37\ns_add_u32 s36, s36, {W_H2}")
    a("v_lshlrev_b32 v117, 9, v4\nv_lshl_add_u32 v117, v5, 4, v117\nv_add_u32 v117, s36, v117")
    a(f"s_lshl_b32 s36, s35, 9\ns_add_u32 s36, s36, {W_ML}\nv_and_b32 v118, 31, v0\nv_lshl_add_u32 v118, v118, 4, s36\nv_lshlrev_b32 v123, 2, v4")
    a("""v_and_b32 v119, 3, v0
    v_lshlrev_b32 v119, 4, v119
    v_bfe_u32 v4, v0, 2, 1
    v_lshl_add_u32 v119, v4, 3, v119
    v_bfe_u32 v4, v0, 4, 1
    v_lshl_add_u32 v119, v4, 2, v119
    v_lshrrev_b32 v4, 5, v0
    v_lshl_add_u32 v119, v4, 1, v119""")
    a(f"s_lshl_b32 s35, s34, 6\ns_add_u32 s35, s35, {L_O}\nv_add_u32 v119, s35, v119")
    a(f"v_lshlrev_b32 v120, 4, v3\nv_add_u32 v120, {L_O}, v120")
    a("s_lshl2_add_u32 s37, s6, s34")
    inbox(35, 37)
    a("s_lshl2_add_u32 s36, s4, s7\ns_lshl_b32 s36, s36, 7\ns_add_u32 s35, s35, s36\nv_lshl_add_u32 v121, v0, 3, s35")
    a("s_movk_i32 s52, 0x1000\ns_movk_i32 s53, 0x2000\ns_movk_i32 s54, 0x3000\ns_mov_b32 s55, 0x8000\nv_mov_b32 v125, 0xff")
    a("s_waitcnt lgkmcnt(0)")
    tags()
    a("v_lshlrev_b32 v4, 3, v6\nv_lshrrev_b32 v122, v4, s32\nv_mov_b32 v147, s32\nv_mov_b32 v149, s32")
    tagbytes(56, 42)
    if 'noc' in abl: a("s_branch L_cdone")
    kreads = [f"ds_read_b128 v[{32 + 16 * t + 4 * s}:{35 + 16 * t + 4 * s}], v{8 + s} offset:{L_K + 8192 * t}" for t in range(2) for s in range(4)]
    a("s_mov_b32 s43, 0\ns_mov_b32 s41, 3\ns_mov_b32 s39, 0")
    if forceslow: a(f"s_mov_b32 s39, {NA}")
    if h1own: lds_spin(F_A, 1, [], 'ge', 20)
    else:
        if nap1: a(f"s_sleep {nap1}")
        if both: lds_spin(F_A, 1, [], 'ge', 20, nap=lazy)
        lds_spin(F_LD, seg_flag("Kpart" if h1trig < 32 else "K"), [], 'ge', 20, nap=lazy)
    stamp('c', 1)
    L = a.label("h1"); L2 = a.label("h1k")
    a(f"{L}:")
    if local:
        a(f"s_cmp_eq_u32 s39, {NA}\ns_cbranch_scc1 L_h1sw\n{L2}:")
        with outofline():
            a(f"L_h1sw:\ns_mov_b32 s43, {W_H1B - W_H1}\ns_mov_b32 s41, 1")
            tagbytes(56, 32)
            a(f"s_branch {L2}")
    for i in range(2): a(f"buffer_load_dwordx4 v[{96 + 4 * i}:{99 + 4 * i}], v16, {WS}, s43 offen offset:{512 * i} {pollpol}")
    a(f"s_add_u32 s39, s39, 1\ns_cmp_gt_u32 s39, {SPIN}\ns_cbranch_scc1 L_end")
    if h1trig == 32 and not h1own:
        for r in kreads: a(r)
    elif kearly: lds_spin(F_LD, seg_flag("K"), kreads, 'ge', 20)
    a("s_waitcnt vmcnt(0)")
    strip(20, list(range(96, 104)), first=True)
    for k in range(4): a(f"v_add_f32 v{96 + k}, v{96 + k}, v{100 + k}")
    a(f"""v_and_b32 v20, 0xff, v20
    v_cmp_ne_u32 vcc, 0, v20
    v_permlane32_swap_b32 v96, v98
    v_permlane32_swap_b32 v97, v99
    s_cbranch_vccnz {L}""")
    stamp('c', 2)
    if stamps is True: a("s_mov_b32 s88, s39")
    a("""v_add_f32 v96, v96, v98
    v_add_f32 v97, v97, v99
    v_mov_b32 v21, s41
    v_cvt_pk_bf16_f32 v96, v96, v97""")
    a(f"ds_write_b32 v17, v96\nds_write_b32 v18, v21 offset:{F_Q}")
    tagbytes(56, 32)
    if (h1trig < 32 or h1own) and not kearly: lds_spin(F_LD, seg_flag("K"), kreads, 'ge', 20)
    lds_spin(F_Q, 0, [f"ds_read_b128 v[{96 + 4 * s}:{99 + 4 * s}], v15 offset:{64 * s}" for s in range(4)] + ([f"ds_read_b32 v145, v1 offset:{F_LD}"] if look1 else []), 'all4', 20)
    stamp('c', 3)
    for s in range(4):
        for t in range(2):
            c = "0" if s == 0 else f"v[{24 + 4 * t}:{27 + 4 * t}]"
            a(f"v_mfma_f32_16x16x32_bf16 v[{24 + 4 * t}:{27 + 4 * t}], v[{32 + 16 * t + 4 * s}:{35 + 16 * t + 4 * s}], v[{96 + 4 * s}:{99 + 4 * s}], {c}")
    a("v_readfirstlane_b32 s41, v20\ns_and_b32 s41, s41, 2")
    vread = lambda u: f"ds_read_b64_tr_b16 v[{64 + 2 * u}:{65 + 2 * u}], v12 offset:{2048 * u}"
    vflag = lambda c: seg_flag("V" + (str(c) if c < 3 else ""))
    if look1:
        a("v_readfirstlane_b32 s38, v145")
        for c in range(4):
            a(f"s_cmp_lt_u32 s38, {vflag(c)}\ns_cbranch_scc1 L_va")
            for u in range(4 * c, 4 * c + 4): a(vread(u))
        a("L_va:")
    else: a("s_mov_b32 s38, 0")
    a(f"s_mov_b32 s35, {SCALE:#x}\ns_mov_b32 s36, {LOG2E:#x}")
    if pks: a("s_mov_b32 s60, s35\ns_mov_b32 s61, s35\ns_mov_b32 s62, s36\ns_mov_b32 s63, s36")
    if mimic:
        for r in range(24, 32): a(f"v_cvt_pk_bf16_f32 v{r}, 0, v{r}")
    if pks:
        for r in range(24, 32, 2): a(f"v_pk_mul_f32 v[{r}:{r + 1}], v[{r}:{r + 1}], s[60:61]")
    else:
        for r in range(24, 32): a(f"v_mul_f32 v{r}, s35, v{r}")
    if mimic:
        for r in range(24, 32): a(f"v_cvt_pk_bf16_f32 v{r}, 0, v{r}")
    a("""v_max3_f32 v20, v24, v25, v26
    v_max3_f32 v21, v27, v28, v29
    v_max3_f32 v20, v20, v30, v31
    v_max_f32 v20, v20, v21
    v_mov_b32 v21, v20
    v_permlane16_swap_b32 v20, v21
    v_max_f32 v20, v20, v21
    v_mov_b32 v21, v20
    v_permlane32_swap_b32 v20, v21
    v_max_f32 v20, v20, v21
    v_mul_f32 v22, s36, v20""")
    if pks:
        for r in range(24, 32, 2): a(f"v_pk_fma_f32 v[{r}:{r + 1}], v[{r}:{r + 1}], s[62:63], v[22:23] op_sel:[0,0,0] op_sel_hi:[1,1,0] neg_lo:[0,0,1] neg_hi:[0,0,1]")
    else:
        for r in range(24, 32): a(f"v_fma_f32 v{r}, v{r}, s36, -v22")
    for r in range(24, 32): a(f"v_exp_f32 v{r}, v{r}")
    for k in range(4): a(f"v_cvt_pk_bf16_f32 v{32 + k}, v{24 + 2 * k}, v{25 + 2 * k}")
    if look2: a(f"ds_read_b32 v145, v1 offset:{F_LD}")
    if pks: a("""v_pk_add_f32 v[24:25], v[24:25], v[26:27]
    v_pk_add_f32 v[28:29], v[28:29], v[30:31]
    ds_write_b64 v19, v[32:33]
    v_pk_add_f32 v[24:25], v[24:25], v[28:29]
    ds_write_b64 v19, v[34:35] offset:128
    v_add_f32 v23, v24, v25""")
    else: a("""v_add_f32 v24, v24, v25
    v_add_f32 v26, v26, v27
    ds_write_b64 v19, v[32:33]
    v_add_f32 v28, v28, v29
    v_add_f32 v30, v30, v31
    ds_write_b64 v19, v[34:35] offset:128
    v_add_f32 v24, v24, v26
    v_add_f32 v28, v28, v30
    v_add_f32 v23, v24, v28""")
    a("""v_mov_b32 v21, v23
    v_permlane16_swap_b32 v23, v21
    v_add_f32 v23, v23, v21
    v_mov_b32 v21, v23
    v_permlane32_swap_b32 v23, v21
    v_add_f32 v23, v23, v21
    v_mov_b32 v21, 1
    s_mov_b64 exec, 15
    ds_write2_b32 v112, v22, v23 offset0:0 offset1:16
    s_mov_b64 exec, -1""")
    a(f"ds_write_b32 v18, v21 offset:{F_P}")
    if look2:
        lgk(4)
        a("v_readfirstlane_b32 s37, v145")
        for c in range(4):
            a(f"s_cmp_ge_u32 s38, {vflag(c)}\ns_cbranch_scc1 L_vl{c}\ns_cmp_lt_u32 s37, {vflag(c)}\ns_cbranch_scc1 L_vld")
            for u in range(4 * c, 4 * c + 4): a(vread(u))
            a(f"L_vl{c}:")
        a("L_vld:\ns_mov_b32 s38, s37")
    stamp('c', 4)
    reads = [f"ds_read_b64 v[{32 + 2 * r}:{33 + 2 * r}], v113 offset:{512 * r}" for r in range(2)]
    reads += ["ds_read2_b32 v[150:151], v13 offset0:0 offset1:16"]
    reads += [f"ds_read_b128 v[{96 + 4 * w}:{99 + 4 * w}], v144 offset:{16 * w}" for w in range(4)]
    reads += [f"ds_read_b128 v[{56 + 4 * r}:{59 + 4 * r}], v114 offset:{32 * r}" for r in range(2)]
    lds_spin(F_P, 0, reads + [f"ds_read_b32 v145, v1 offset:{F_LD}"], 'all4', 20)
    stamp('c', 5)
    fill = ["v_max_f32_dpp v146, v150, v150 quad_perm:[1,0,3,2] row_mask:0xf bank_mask:0xf"]
    fill += [f"v_max3_f32 v{96 + h}, v{96 + h}, v{100 + h}, v{104 + h}" for h in range(4)]
    fill += ["v_max_f32_dpp v146, v146, v146 quad_perm:[2,3,0,1] row_mask:0xf bank_mask:0xf"]
    fill += [f"v_max_f32 v{96 + h}, v{96 + h}, v{108 + h}" for h in range(4)]
    fill += ["v_sub_f32 v150, v150, v146"] + [f"v_sub_f32 v{56 + k}, v{56 + k}, v{96 + (k & 3)}" for k in range(8)]
    fill += ["v_exp_f32 v150, v150"] + [f"v_exp_f32 v{56 + k}, v{56 + k}" for k in range(4)] + ["v_mul_f32 v148, v150, v151"]
    fill += [f"v_exp_f32 v{60 + k}, v{60 + k}" for k in range(2)] + ["v_add_f32_dpp v148, v148, v148 quad_perm:[1,0,3,2] row_mask:0xf bank_mask:0xf"]
    fill += [f"v_exp_f32 v{62 + k}, v{62 + k}" for k in range(2)] + ["v_add_f32_dpp v148, v148, v148 quad_perm:[2,3,0,1] row_mask:0xf bank_mask:0xf"]
    def ml_pub():
        a("s_mov_b64 exec, 1")
        st2([f"buffer_store_dwordx4 v[146:149], v116, {WS}, 0 offen"], 'ml')
        a("s_mov_b64 exec, -1")
    def pv(u):
        r = u >> 3
        c = "0" if u % 8 < 2 else f"v[{40 + 8 * r + 4 * (u & 1)}:{43 + 8 * r + 4 * (u & 1)}]"
        a(f"v_mfma_f32_4x4x4_16b_bf16 v[{40 + 8 * r + 4 * (u & 1)}:{43 + 8 * r + 4 * (u & 1)}], v[{32 + 2 * r}:{33 + 2 * r}], v[{64 + 2 * u}:{65 + 2 * u}], {c} cbsz:3 abid:{u & 7}")
    a("v_readfirstlane_b32 s37, v145")
    assert len(fill) <= 32
    a(f"s_cmp_lt_u32 s38, {vflag(3)}\ns_cbranch_scc1 L_vb\nL_vc:")
    with outofline():
        a("L_vb:")
        for c in range(4):
            a(f"s_cmp_ge_u32 s38, {vflag(c)}\ns_cbranch_scc1 L_vb{c}\ns_cmp_lt_u32 s37, {vflag(c)}\ns_cbranch_scc1 L_vbd")
            for u in range(4 * c, 4 * c + 4): a(vread(u))
            a(f"L_vb{c}:")
        a("L_vbd:\ns_waitcnt lgkmcnt(0)\ns_branch L_vc")
    for c in range(4):
        a(f"s_cmp_lt_u32 s37, {vflag(c)}\ns_cbranch_scc1 L_vw{c}\nL_vr{c}:")
        with outofline():
            a(f"L_vw{c}:")
            lds_spin(F_LD, vflag(c), [vread(u) for u in range(4 * c, 4 * c + 4)], 'ge', 20)
            a(f"s_branch L_vr{c}")
        for u in range(4 * c, 4 * c + 4):
            pv(u)
            for f_ in fill[4 * u:4 * u + 4]: a(f_)
        if c == 1: ml_pub()
    stamp('c', 6)
    a("s_nop 0")
    if pks:
        for h in (0, 2): a(f"v_pk_add_f32 v[{40 + h}:{41 + h}], v[{40 + h}:{41 + h}], v[{44 + h}:{45 + h}]")
        for h in (0, 2): a(f"v_pk_mul_f32 v[{40 + h}:{41 + h}], v[{40 + h}:{41 + h}], v[{56 + h}:{57 + h}]")
        for h in (0, 2): a(f"v_pk_add_f32 v[{48 + h}:{49 + h}], v[{48 + h}:{49 + h}], v[{52 + h}:{53 + h}]")
        for h in (0, 2): a(f"v_pk_fma_f32 v[{40 + h}:{41 + h}], v[{48 + h}:{49 + h}], v[{60 + h}:{61 + h}], v[{40 + h}:{41 + h}]")
    else:
        for h in range(4): a(f"v_add_f32 v{40 + h}, v{40 + h}, v{44 + h}")
        for h in range(4): a(f"v_mul_f32 v{40 + h}, v{40 + h}, v{56 + h}")
        for h in range(4): a(f"v_add_f32 v{48 + h}, v{48 + h}, v{52 + h}")
        for h in range(4): a(f"v_fmac_f32 v{40 + h}, v{48 + h}, v{60 + h}")
    a("""v_permlane32_swap_b32 v40, v41
    v_permlane32_swap_b32 v42, v43
    v_add_f32 v40, v40, v41
    v_add_f32 v42, v42, v43
    v_bfi_b32 v40, v125, v122, v40
    v_bfi_b32 v42, v125, v122, v42""")
    st2([f"buffer_store_dword v40, v115, {WS}, 0 offen", f"buffer_store_dword v42, v115, {WS}, s55 offen"], 'h2')
    stamp('c', 7)
    if fine:
        a("s_waitcnt vmcnt(0)"); stamp('c', 1, True)
    if 'noh2' in abl: a("s_branch L_cdone")
    LF = a.label("h2"); LG = a.label("h2g"); LD = a.label("h2d")
    woreads = [f"ds_read_b64_tr_b16 v[{80 + 4 * s + 2 * x}:{81 + 4 * s + 2 * x}], v14 offset:{4096 * s + 2048 * x}" for s in range(4) for x in range(2)]
    wdreads = [f"ds_read_b64_tr_b16 v[{48 + 4 * s + 2 * x}:{49 + 4 * s + 2 * x}], v14 offset:{L_WD - L_WO + 4096 * s + 2048 * x}" for s in range(2) for x in range(2)]
    hreads = [f"ds_read_b128 v[{56 + 4 * s}:{59 + 4 * s}], v120 offset:{L_H - L_O + 64 * s}" for s in range(2)]
    last = max(seg_flag("WO"), seg_flag("WD"))
    def payload_loads():
        for i in range(4): a(f"buffer_load_dwordx4 v[{64 + 4 * i}:{67 + 4 * i}], v117, {WS}, {'s%d' % (51 + i) if i else 0} offen {pollpol}")
    def payload_check(mul):
        for i in range(4):
            a(f"s_waitcnt vmcnt({3 - i})")
            strip(21, [64 + 4 * i + k for k in range(4)], first=(i == 0))
            if mul:
                for k in range(4): a(fm(i, k))
        a("v_and_b32 v21, 0xff, v21\nv_cmp_ne_u32 vcc, 0, v21\ns_and_b64 exec, vcc, vcc")
    LM = a.label("h2m"); LW = a.label("h2w"); LX = a.label("h2x")
    assert order[-2:] == ("WO", "WD") and ntail <= 8 and gate == 'T'
    a(f"s_cmp_ge_u32 s33, 28\ns_cselect_b32 s36, {last}, {seg_flag('T')}\ns_mov_b32 s37, {SPIN}")
    a("v_mov_b32 v101, s32\nv_mov_b32 v103, s32")
    def ml_loads():
        a(f"s_mov_b32 exec_hi, 0\nbuffer_load_dwordx4 v[32:35], v118, {WS}, 0 offen {pollpol}\ns_mov_b32 exec_hi, -1")
    def ml_check():
        a("s_mov_b32 exec_hi, 0")
        chk(20, 33, 32, first=True); chk(20, 35, 32)
        a("v_cmp_ne_u32 vcc, 0, v20\ns_mov_b32 exec_hi, -1")
    def fm(i, k):
        w = f"v[{36 + (i & 2)}:{37 + (i & 2)}]"; sel = f"op_sel:[0,{i & 1},0] op_sel_hi:[1,{i & 1},1]"
        if i == 0: return f"v_pk_mul_f32 v[{24 + k}:{25 + k}], v[{64 + k}:{65 + k}], {w} op_sel:[0,0] op_sel_hi:[1,0]"
        return f"v_pk_fma_f32 v[{24 + k}:{25 + k}], v[{64 + 4 * i + k}:{65 + 4 * i + k}], {w}, v[{24 + k}:{25 + k}] {sel}"
    def strip_ops(i):
        r = 64 + 4 * i
        return [f"s_waitcnt vmcnt({3 - i})\nv_xor_b32 v{r}, s56, v{r}"] + [f"v_xor_b32 v{r + k}, s{56 + k}, v{r + k}" for k in (1, 2, 3)] + \
               [f"v_or_b32 v28, v{r}, v{r + 1}" if i == 0 else f"v_or3_b32 v28, v28, v{r}, v{r + 1}", f"v_or3_b32 v28, v28, v{r + 2}, v{r + 3}"]
    wait_gate(20)
    stamp('c', 2, True)
    ml_loads()
    payload_loads()
    for r in woreads: a(r)
    a("s_waitcnt vmcnt(4)")
    ml_check()
    a(f"s_cbranch_vccnz {LM}\n{LW}:")
    with outofline():
        a(f"{LM}:")
        ml_loads()
        a("s_sub_u32 s37, s37, 1\ns_cbranch_scc1 L_end\ns_waitcnt vmcnt(0)")
        ml_check()
        a(f"s_cbranch_vccnz {LM}\ns_branch {LW}")
    stamp('c', 3, True)
    st = strip_ops(0) + strip_ops(1) + strip_ops(2) + strip_ops(3)
    def red32(op, r, t):
        for n in (1, 2, 4, 8):
            a(st.pop(0)); a(st.pop(0))
            a(f"{op}_dpp v{r}, v{r}, v{r} row_ror:{n} row_mask:0xf bank_mask:0xf")
        a(f"v_mov_b32 v{t}, v{r}")
        a(st.pop(0)); a(st.pop(0))
        a(f"v_permlane16_swap_b32 v{r}, v{t}\n{op} v{r}, v{r}, v{t}")
    a("v_mov_b32 v21, v32")
    if not near: a("s_mov_b32 s43, 0")
    red32("v_max_f32", 21, 22)
    a("v_sub_f32 v32, v32, v21\nv_exp_f32 v32, v32")
    a(st.pop(0))
    a("v_mul_f32 v22, v32, v34")
    for i in range(4): a(f"ds_bpermute_b32 v{36 + i}, v123, v32 offset:{32 * i}")
    red32("v_add_f32", 22, 23)
    a("v_rcp_f32 v22, v22")
    while st: a(st.pop(0))
    a("v_readfirstlane_b32 s35, v22\nv_and_b32 v28, 0xff, v28\ns_waitcnt lgkmcnt(0)")
    a(fm(0, 0)); a(fm(0, 2))
    a("v_cmp_ne_u32 vcc, 0, v28")
    for i in range(1, 4): a(fm(i, 0)); a(fm(i, 2))
    stamp('c', 4, True)
    a(f"s_cbranch_vccnz {LG}\n{LD}:")
    with outofline():
        a(f"{LG}:\ns_mov_b64 exec, vcc")
        if h2sleep: a(f"s_sleep {h2sleep}")
        payload_loads()
        a("s_sub_u32 s37, s37, 1\ns_cbranch_scc1 L_end")
        for i in range(4):
            for o in strip_ops(i): a(o)
        a(f"v_and_b32 v28, 0xff, v28\nv_cmp_ne_u32 vcc, 0, v28\ns_cbranch_vccnz {LG}\ns_mov_b64 exec, -1")
        for i in range(4): a(fm(i, 0)); a(fm(i, 2))
        a(f"s_nop 1\ns_branch {LD}")
    stamp('c', 8)
    ex = [f"ds_read_b128 v[28:31], v1 offset:{F_LD}" if near else f"ds_read_b64 v[28:29], v1 offset:{F_LD}"] + wdreads + hreads
    a(f"""v_permlane32_swap_b32 v24, v25
    v_permlane32_swap_b32 v26, v27
    {ex[0]}
    v_add_f32 v24, v24, v25
    v_add_f32 v26, v26, v27
    {ex[1]}
    {ex[2]}
    v_permlane16_swap_b32 v24, v26
    v_add_f32 v24, v24, v26
    {ex[3]}
    {ex[4]}
    v_add_f32_dpp v24, v24, v24 row_ror:8 row_mask:0xf bank_mask:0xf
    v_mov_b32 v21, 1
    v_mul_f32 v24, s35, v24
    {ex[5]}
    v_cvt_pk_bf16_f32 v24, v24, v24
    {ex[6]}""")
    a(f"ds_write_b16 v119, v24\nds_write_b32 v18, v21 offset:{F_O}")
    oreads = [f"ds_read_b128 v[{128 + 4 * s}:{131 + 4 * s}], v120 offset:{64 * s}" for s in range(4)]
    def mm_wd(first):
        for s in range(2): a(f"v_mfma_f32_16x16x32_bf16 v[96:99], v[{56 + 4 * s}:{59 + 4 * s}], v[{48 + 4 * s}:{51 + 4 * s}], {'0' if first and s == 0 else 'v[96:99]'}")
    def mm_wo(first):
        for s in range(4): a(f"v_mfma_f32_16x16x32_bf16 v[96:99], v[{128 + 4 * s}:{131 + 4 * s}], v[{80 + 4 * s}:{83 + 4 * s}], {'0' if first and s == 0 else 'v[96:99]'}")
    a(f"ds_read_b128 v[20:23], v1 offset:{F_O}")
    for r in oreads: a(r)
    a("s_cmp_ge_u32 s33, 28\ns_cbranch_scc1 L_noffn")
    lgk(7)
    a(f"v_cmp_gt_u32 vcc, {last}, v28\nv_cmp_eq_u32 s[62:63], 0, v29\ns_or_b64 vcc, vcc, s[62:63]\ns_cbranch_vccnz L_hw")
    mm_wd(True)
    a("s_waitcnt lgkmcnt(0)\nv_and_b32 v22, v22, v23\nv_bitop3_b32 v20, v20, v21, v22 bitop3:0x80\nv_cmp_eq_u32 vcc, 0, v20\ns_cbranch_vccnz L_ow\nL_or:")
    stamp('c', 9)
    mm_wo(False)
    a("L_mmd:")
    with outofline():
        a("L_ow:")
        lds_spin(F_O, 0, oreads, 'all4', 20)
        a("s_branch L_or\nL_noffn:")
        lds_spin(F_O, 0, oreads, 'all4', 20)
        stamp('c', 9)
        mm_wo(True)
        a("s_branch L_mmd\nL_hw:")
        lds_spin(F_O, 0, oreads, 'all4', 20)
        stamp('c', 9)
        mm_wo(True)
        a(f"s_mov_b32 s40, {SPIN}\nL_hw2:")
        for r in ex: a(r)
        a(f"s_sub_u32 s40, s40, 1\ns_cbranch_scc1 L_end\ns_waitcnt lgkmcnt(0)\nv_cmp_gt_u32 vcc, {last}, v28\nv_cmp_eq_u32 s[62:63], 0, v29\ns_or_b64 vcc, vcc, s[62:63]\ns_cbranch_vccnz L_hw2")
        mm_wd(False)
        a("s_branch L_mmd")
    if near:
        a("v_readfirstlane_b32 s43, v31\ns_cmp_eq_u32 s43, 0\ns_cbranch_scc1 L_dw\nL_dr:")
        with outofline():
            a("L_dw:")
            lds_spin(F_IE, 1, [], 'ge', 31)
            a("v_readfirstlane_b32 s43, v31\ns_branch L_dr")
    stamp('c', 10)
    a("v_mov_b32 v100, v96\nv_mov_b32_dpp v102, v96 quad_perm:[1,1,3,3] row_mask:0xf bank_mask:0xf")
    a(f"s_mov_b64 exec, 0x5555\nbuffer_store_dwordx4 v[100:103], v121, {WS}, s43 offen {h3st}")
    if dual: a(f"buffer_store_dwordx4 v[100:103], v121, {WS}, s53 offen {h3st}")
    a("s_mov_b64 exec, -1")
    stamp('c', 11)
    if consffn: a("s_cmp_ge_u32 s33, 28\ns_cbranch_scc0 L_cdone\ns_sub_u32 s38, s33, 28\ns_lshl_b32 s38, s38, 3\ns_add_u32 s38, s38, s6")
    else: a("s_cmp_lt_u32 s2, 32\ns_cbranch_scc0 L_cdone\ns_mov_b32 s38, s2")
    if not h3all: a("s_cmp_eq_u32 s34, 0\ns_cbranch_scc0 L_cdone")
    a("s_mov_b32 s37, s38")
    inbox(35, 37)
    a("v_lshl_add_u32 v24, v0, 4, s35")
    if dual:
        lds_spin(F_IE, 1, [], 'ge', 20)
        a("v_lshrrev_b32 v20, 1, v20\nv_lshl_add_u32 v24, v20, 13, v24")
        if stamps: a("v_readfirstlane_b32 s84, v20")
    a("v_and_b32 v25, 7, v0\ns_lshl_b32 s35, s38, 5\nv_lshl_add_u32 v25, v25, 2, s35")
    srd(44, 8, 1024)
    a("buffer_load_dword v26, v25, s[44:47], 0 offen")
    srd(52, 26, 1024)
    L = a.label("h3"); LD = a.label("h3d")
    def h3issue(k):
        for i in range(4): a(f"buffer_load_dwordx4 v[{32 + 16 * k + 4 * i}:{35 + 16 * k + 4 * i}], v24, {WS}, s43 offen offset:{1024 * i} {h3pol}")
    a(f"s_mov_b32 s40, {SPIN}")
    if h3mask:
        h3depth = 0
        a(f"{L}:")
        h3issue(0)
        a("s_sub_u32 s40, s40, 1\ns_cbranch_scc1 L_end")
        for i in range(4):
            a(f"s_waitcnt vmcnt({3 - i})")
            chk(20, 33 + 4 * i, 32, first=(i == 0)); chk(20, 35 + 4 * i, 32)
        a(f"v_cmp_ne_u32 vcc, 0, v20\ns_and_b64 exec, vcc, vcc\ns_cbranch_scc1 {L}\ns_mov_b64 exec, -1")
        a(f"v_add_f32 v22, v32, v36\nv_add_f32 v23, v34, v38\nv_add_f32 v30, v40, v44\nv_add_f32 v31, v42, v46\ns_branch {LD}")
        L = a.label("h3x")
    for k in range(h3depth - 1):
        h3issue(k)
        if h3gap: a(f"s_sleep {h3gap}")
    a(f"{L}:")
    for k in range(h3depth):
        h3issue((k + h3depth - 1) % h3depth)
        a(f"s_waitcnt vmcnt({4 * (h3depth - 1)})")
        b = 32 + 16 * k
        for r in range(b + 1, b + 16, 2): chk(20, r, 32, first=(r == b + 1))
        a(f"v_add_f32 v22, v{b}, v{b + 4}\nv_add_f32 v23, v{b + 2}, v{b + 6}\nv_cmp_ne_u32 vcc, 0, v20")
        a(f"v_add_f32 v30, v{b + 8}, v{b + 12}\nv_add_f32 v31, v{b + 10}, v{b + 14}\ns_cbranch_vccz {LD}")
    a(f"s_sub_u32 s40, s40, 1\ns_cbranch_scc0 {L}\ns_branch L_end\n{LD}:")
    stamp('c', 12)
    a("""v_add_f32 v22, v22, v30
    v_add_f32 v23, v23, v31
    v_lshlrev_b32 v27, 16, v26
    v_and_b32 v28, 0xffff0000, v26
    v_permlane32_swap_b32 v22, v23
    v_add_f32 v22, v22, v23
    v_mov_b32 v23, v22
    v_permlane16_swap_b32 v22, v23
    v_add_f32 v22, v22, v23
    v_add_f32_dpp v22, v22, v22 row_ror:8 row_mask:0xf bank_mask:0xf
    v_mov_b32 v23, v22
    v_permlane32_swap_b32 v22, v23
    v_add_f32 v22, v22, v27
    v_add_f32 v23, v23, v28
    v_cvt_pk_bf16_f32 v22, v22, v23
    s_mov_b64 exec, 0xff
    buffer_store_dword v22, v25, s[52:55], 0 offen""")
    a(f"s_cmp_eq_u32 s38, 0\ns_cbranch_scc0 L_cdone\ns_mov_b64 exec, 1\nv_mov_b32 v25, s32\nbuffer_store_dword v25, off, {WS}, 0")
    a("L_cdone:")
    stamp('c', 13)
    if stamps and near: a(f"s_mov_b64 exec, -1\nds_read_b32 v30, v1 offset:{F_N}\ns_waitcnt lgkmcnt(0)\nv_readfirstlane_b32 s84, v30")
    dump('c')
    a("s_endpgm")
    a.lines += cold
    a("L_end:\ns_endpgm")
    if touch: a("L_t2:\ns_branch L_comp")

    L = a.lines
    ia = L.index("L_aux:"); ic = L.index("L_comp:"); il = L.index("L_loader:")
    ib = next(i for i in range(il, ia) if L[i].strip() == ("L_split:" if xfast else "s_barrier"))
    assert oth_lines[-1].strip() == "s_branch L_comp"
    k = oth_lines.index("L_cw:")
    oth = oth_lines[:oth_lines.index("  s_cbranch_scc0 L_cw")] + ["  s_cbranch_scc1 L_aw"] + oth_lines[k + 1:] + ["L_aw:"] + oth_lines[oth_lines.index("  s_cbranch_scc0 L_cw") + 1:k - 1]
    a.lines = L[:ib + 1] + ["  s_branch L_ld2"] + oth + L[ia:ic] + ["L_ld2:"] + L[ib + 1:ia] + L[ic:]
    head = open(f"cdna_kernels/{NAME}.s.ref").read().split("; Override")[0]
    out = head + f"; Generated by gen/gen.py (hand-designed kernel; see that script for the layout notes)\n; @launch grid=(256,1,1) block=(384,1,1) lds={L_END}\n"
    out += f'.amdgcn_target "amdgcn-amd-amdhsa--gfx950"\n.text\n'
    if align: out += ".p2align 12\n.fill 0x340, 4, 0xbf800000\n"
    out += f'.globl {NAME}_kernel\n.p2align 8\n.type {NAME}_kernel,@function\n'
    out += a.text()
    out += f""".section .rodata,"a"
.p2align 6
.amdhsa_kernel {NAME}_kernel
  .amdhsa_next_free_vgpr 184
  .amdhsa_next_free_sgpr 102
  .amdhsa_accum_offset 184
  .amdhsa_group_segment_fixed_size 0
  .amdhsa_kernarg_size 96
  .amdhsa_user_sgpr_count 2
  .amdhsa_user_sgpr_kernarg_segment_ptr 1
  .amdhsa_system_sgpr_workgroup_id_x 1
  .amdhsa_float_denorm_mode_32 3
.end_amdhsa_kernel
"""
    return out

if __name__ == "__main__":
    kw = eval("dict(" + (sys.argv[2] if len(sys.argv) > 2 else "") + ")")
    open(sys.argv[1], "w").write(gen(**kw))
```

```python
import sys
from asmlib import Asm

NAME = "parallel_sum__sliding_block_cached__swiglu_ffn__decode"

L_K, L_V, L_GU, L_WO, L_WD = 0, 32768, 65536, 81920, 98304
L_WQ = 106496
L_X  = L_WQ + 16384
L_XX = L_X + 1024
L_Q  = L_XX + 2048
L_P  = L_Q + 1280
L_ML = L_P + 1024
L_O  = L_ML + 128
L_H  = L_O + 256
L_F  = L_H + 128
L_END = L_F + 96
F_LD, F_H, F_A, F_IE, F_Q, F_P, F_O, F_D, F_N = 0, 4, 8, 12, 16, 32, 48, 64, 80

W_EP  = 0
W_VOT = 0x800
W_DEC = 0xc00
W_H1  = 0x1000
W_H1B = W_H1 + 256 * 256
W_HB  = W_H1B + 256 * 256
W_ML  = W_HB + 256 * 512
W_H3  = 0x48000
W_H2  = W_H3 + 64 * 4096
assert W_ML + 32 * 512 <= W_H3 and W_H3 % 16384 == 0
W_PR  = W_H2 + 1024 * 512
W_END = W_PR + 0x40000
W_ST  = 0x400000

LOG2E = 0x3fb8aa3b
SCALE = 0x3db504f3
SPIN = 1 << 16
EPOCH_STEP = 0x9e3779b9

def gen(TH=20, stamps=False, order=("Q", "K", "V", "GU", "WO", "WD"), warm=64, warmpol="sc1 nt", NA=24, h3depth=4,
        forceslow=False, h1trig=26, probe=None, abl=(), rot=True, h3gap=0, TH2=None, mimic=True, pfpol='', h1own=False, h3warm='sc1', pre=True, spec=True, sleep=0, prio=3, h2sleep=0, hbsleep=0, boost=26, gate='T', first=True, hbfirst=False, fine=False, local=True, pollpol='sc1', h1wt=True, lazy=4, ntail=8, wt=(), warmat='K', consffn=True, THK=None, THG=None, h3mask=False, lateb=False, both=False, auxfirst=False, align=False, touch=False, hold='Q0', spf=False, pk=True, h1warm=None, dip=None, dip2=None, kearly=True, look2=True, nap0=0, nap1=0, hbwarm=None, refine=True, h3pol='sc1', h3st='sc1', h3all=False, qloop=4, gx=0, light='hi', xboost=None, look1=False, pks=True, xfast=True, warmst=False, gnap=0, dual=False, dnap=2, dforce=None, probe_diag=0, h3x=0, near=True, gap=0, prpol='nt', evdbg=False, vat=None, vpol='sc1', dat='V', dpol='sc1', vst='sc1', vset=1, vsh=2):
    if not local: warm = 0
    a = Asm()
    WS = "s[48:51]"
    WSZ = W_ST + 256 * 512 if stamps else W_END
    diag = bool(stamps or probe)

    def stamp(role, idx, f=False):
        if fine and role == 'c' and 1 <= idx <= 6 and not f: return
        if f and not fine: return
        if probe and (idx == 0 or probe == (role, idx)):
            a(f"s_memrealtime s[{96 if idx == 0 else 98}:{97 if idx == 0 else 99}]")
            if idx == 0: a("s_waitcnt lgkmcnt(0)\ns_mov_b32 s98, s96")
        if stamps and (stamps is True or idx in (0, 13) or (stamps == 'l' and (role, idx) in (('l', 1), ('l', 7), ('l', 2), ('l', 3), ('l', 9), ('c', 11)))):
            a(f"s_memtime s[{64 + 2 * idx}:{65 + 2 * idx}]")
            if idx == 0: a("s_memrealtime s[94:95]")
            if (role, idx) in (('l', 9), ('c', 13), ('a', 9)): a("s_memrealtime s[92:93]")
    def dump(role):
        if probe and probe[0] == role:
            L = a.label("pad")
            a("s_waitcnt lgkmcnt(0)\ns_sub_u32 s98, s98, s96\ns_mul_i32 s98, s98, 3\ns_add_u32 s96, s96, s98\ns_add_u32 s96, s96, 1500")
            a(f"{L}:\ns_sleep 4\ns_memrealtime s[98:99]\ns_waitcnt lgkmcnt(0)\ns_sub_u32 s35, s98, s96\ns_cmp_lt_i32 s35, 0\ns_cbranch_scc1 {L}")
        if not stamps or (stamps == 'min' and role != 'c') or (stamps == 'l' and role == 'a'): return
        a("s_waitcnt lgkmcnt(0)")
        a(f"s_lshl_b32 s60, s2, 9\ns_lshl_b32 s61, s3, 6\ns_add_u32 s60, s60, s61\ns_add_u32 s60, s60, {W_ST}")
        a("s_mov_b64 exec, 1\nv_mov_b32 v126, s60")
        for i in range(16):
            a(f"v_mov_b32 v127, s{64 + 2 * i}\nbuffer_store_dword v127, v126, {WS}, 0 offen offset:{4 * i}")
    cold = []
    class outofline:
        def __enter__(self): self.keep = a.lines; a.lines = []
        def __exit__(self, *x): cold.extend(a.lines); a.lines = self.keep
    def srd(d, p, size):
        a(f"s_mov_b32 s{d}, s{p}\ns_and_b32 s{d + 1}, s{p + 1}, 0xffff\ns_mov_b32 s{d + 2}, {size}\ns_mov_b32 s{d + 3}, 0x20000")
    events = ["X"]
    for nm in order:
        if nm == "K" and h1trig < 32: events.append("Kpart")
        if nm in ("V", "GU", "Q"): events += [nm + "0", nm + "1", nm + "2"]
        events.append(nm)
    events.insert(len(events) - 1 if ntail <= 8 else len(events) - 2, "T")
    def seg_flag(name):
        return events.index(name) + 1
    def lgk(n):
        a(f"s_waitcnt lgkmcnt({0 if diag else n})")
    def st2(ops, name=None):
        if not local or name in wt:
            for o in ops: a(o + " sc1" if o.startswith("buffer_store") else o)
            return
        L1 = a.label("slow"); L2 = a.label("st")
        a(f"s_cmp_eq_u32 s41, 0\ns_cbranch_scc1 {L1}")
        for o in ops: a(o)
        a(f"{L2}:")
        with outofline():
            a(f"{L1}:\ns_nop 1")
            for o in ops: a(o + " sc1" if o.startswith("buffer_store") else o)
            a(f"s_nop 1\ns_branch {L2}")
    def lds_spin(flag_off, want, reads, kind, tmp, nap=0):
        if not spec and len(reads) > 4 and kind == 'ge':
            lds_spin(flag_off, want, [], kind, tmp)
            for r in reads: a(r)
            a("s_waitcnt lgkmcnt(0)")
            return
        L = a.label("spin")
        a(f"s_mov_b32 s40, {SPIN}\n{L}:")
        if sleep and kind == 'ge': a(f"s_sleep {sleep}")
        elif nap: a(f"s_sleep {nap}")
        a(f"ds_read_b32 v{tmp}, v1 offset:{flag_off}" if kind == 'ge' else f"ds_read_b128 v[{tmp}:{tmp + 3}], v1 offset:{flag_off}")
        for r in reads: a(r)
        a("s_sub_u32 s40, s40, 1\ns_cbranch_scc1 L_end")
        a("s_waitcnt lgkmcnt(0)")
        if kind == 'ge':
            a(f"v_cmp_gt_u32 vcc, {want}, v{tmp}")
        else:
            a(f"v_and_b32 v{tmp + 2}, v{tmp + 2}, v{tmp + 3}\nv_bitop3_b32 v{tmp}, v{tmp}, v{tmp + 1}, v{tmp + 2} bitop3:0x80")
            a(f"v_cmp_eq_u32 vcc, 0, v{tmp}")
        a(f"s_cbranch_vccnz {L}")
    def wait_gate(tmp):
        if gate == 'IE': lds_spin(F_IE, 1, [], 'ge', tmp)
        elif gate == 'S': lds_spin(F_LD, "s38", [], 'ge', tmp)
        elif gate == 'T': lds_spin(F_LD, "s36", [], 'ge', tmp, nap=gnap)
        elif gate: lds_spin(F_LD, seg_flag(gate), [], 'ge', tmp)
        a(f"s_mov_b32 s40, {SPIN}")
    def inbox(d, cc):
        a(f"s_and_b32 s{d}, s{cc}, 1\ns_andn2_b32 s{cc}, s{cc}, 1\ns_lshl1_add_u32 s{d}, s{cc}, s{d}\ns_lshl_b32 s{d}, s{d}, 12\ns_add_u32 s{d}, s{d}, {W_H3 + h3x - (0x2000 if near else 0)}")
    def pick(r, t):
        a(f"s_bfe_u32 s{t}, s{r}, 0x80008\ns_and_b32 s{r}, s{r}, 0xff\ns_cmp_gt_u32 s{t}, s{r}\ns_cselect_b32 s{r}, 0x2000, 0")
    def tagbytes(dst, src):
        a(f"s_and_b32 s{dst}, s{src}, 0xff\ns_bfe_u32 s{dst + 1}, s{src}, 0x80008\ns_bfe_u32 s{dst + 2}, s{src}, 0x80010\ns_lshr_b32 s{dst + 3}, s{src}, 24")
    def chk(acc, r, t, first=False):
        a(f"v_xor_b32 v{acc}, s{t}, v{r}" if first else f"v_bitop3_b32 v{acc}, v{acc}, v{r}, s{t} bitop3:0xf6")
    def strip(acc, regs, first=False):
        for k, r in enumerate(regs): a(f"v_xor_b32 v{r}, s{56 + (k & 3)}, v{r}")
        for k in range(0, len(regs), 2):
            a(f"v_or_b32 v{acc}, v{regs[k]}, v{regs[k + 1]}" if first and k == 0 else f"v_or3_b32 v{acc}, v{acc}, v{regs[k]}, v{regs[k + 1]}")
    def tags():
        if not local:
            a(f"s_add_u32 s32, s32, {EPOCH_STEP:#x}\ns_mov_b32 s42, s32")
            return
        a(f"s_add_u32 s32, s32, {EPOCH_STEP:#x}\ns_getreg_b32 s42, hwreg(HW_REG_XCC_ID, 0, 4)\ns_add_u32 s42, s42, 1\ns_mul_i32 s42, s42, 0x01010101\ns_xor_b32 s42, s42, s32")

    ids = """s_and_b32 s6, s5, 7
    s_lshr_b32 s7, s5, 3"""
    if light == 'hi': pg = "s_mov_b32 s59, s4"
    else: pg = "s_lshr_b32 s59, s4, 1\ns_bitcmp" + ("0" if light == 'even' else "1") + "_b32 s4, 0\ns_cselect_b32 s33, 4, 0\ns_add_u32 s59, s59, s33"
    ids2 = pg + f"""
    s_lshl3_add_u32 s33, s7, s59
    v_mov_b32 v1, {L_F}"""
    a(f"{NAME}_kernel:")
    stamp('all', 0)
    a("""s_cmp_ge_u32 s2, 256
    s_cbranch_scc1 L_end
    s_load_dwordx16 s[8:23], s[0:1], 0
    s_load_dwordx8 s[24:31], s[0:1], 64
    v_readfirstlane_b32 s3, v0
    s_and_b32 s4, s2, 7
    s_lshr_b32 s5, s2, 3""")
    if gx: a(f"s_xor_b32 s4, s4, {gx}")
    a(ids)
    a("s_cmp_ge_u32 s3, 64\ns_cbranch_scc1 L_oth")
    a("L_loader:")
    a(f"s_getpc_b64 s[36:37]\nL_pc:\nv_lshlrev_b32 v3, 7, v0\nglobal_load_dword v30, v3, s[36:37] {pfpol}\nv_add_u32 v3, 0x2000, v3\nv_min_u32 v3, L_end-L_pc, v3\nglobal_load_dword v30, v3, s[36:37] {pfpol}")
    a("""v_lshlrev_b32 v2, 4, v0
    v_lshrrev_b32 v6, 3, v0
    v_and_b32 v7, 7, v0
    v_lshlrev_b32 v15, 17, v6
    v_lshl_add_u32 v15, v7, 4, v15
    s_lshl_b32 s35, s7, 13
    s_lshl3_add_u32 s35, s4, s35
    s_add_u32 s35, s35, s6
    s_lshl_b32 s39, s35, 7
    s_mov_b32 s46, 4194304
    s_mov_b32 s47, 0x20000""")
    a(f"s_movk_i32 s54, 0x400\ns_mov_b32 s55, s47\ns_mov_b32 m0, {L_X}\ns_setprio {prio}")
    if qloop: a(f"s_add_u32 s38, s39, 0x20000")
    a(f"""s_waitcnt lgkmcnt(0)
    s_mov_b32 s52, s8
    s_and_b32 s53, s9, 0xffff
    buffer_load_dwordx4 v2, s[52:55], 0 offen lds
    s_mov_b32 m0, {L_WQ}
    s_mov_b32 s44, s14
    s_and_b32 s45, s15, 0xffff""")
    stamp('l', 1)
    if qloop: a("L_ql:")
    for i in range(qloop or 16):
        a("buffer_load_dwordx4 v15, s[44:47], s39 offen nt lds\ns_addk_i32 m0, 0x400\ns_addk_i32 s39, 0x2000")
    if qloop: a("s_cmp_lt_u32 s39, s38\ns_cbranch_scc1 L_ql")
    a(ids2)
    if diag: a("s_mov_b32 s3, 1")
    if boost:
        a("s_cmp_eq_u32 s6, 3\ns_cselect_b64 vcc, -1, 0")
        if xboost is not None: a(f"s_and_b32 s35, s2, 7\ns_bitcmp1_b32 {xboost}, s35\ns_cselect_b64 vcc, -1, vcc")
    main_lines = a.lines; a.lines = []
    a("L_oth:\ns_lshr_b32 s3, s3, 6\nv_and_b32 v0, 63, v0")
    a(ids2)
    a("s_cmp_eq_u32 s3, 1\ns_cbranch_scc0 L_cw")
    if diag: a("s_mov_b32 s3, 0")
    a("v_lshlrev_b32 v2, 4, v0\ns_waitcnt lgkmcnt(0)\ns_load_dword s32, s[30:31], 0\ns_barrier\ns_branch L_aux")
    a("L_cw:\nv_mov_b32 v4, 0\nv_lshl_add_u32 v5, v0, 2, v1\ns_mov_b64 exec, 0xfffff\nds_write_b32 v5, v4\ns_mov_b64 exec, -1")
    a("s_waitcnt lgkmcnt(0)")
    if near:
        if vset < 4: a(f"s_cmp_lt_u32 s7, {vset}\ns_cselect_b32 s35, s3, 0\ns_cmp_eq_u32 s35, 5\ns_cbranch_scc0 L_nprb")
        else: a("s_cmp_eq_u32 s3, 5\ns_cbranch_scc0 L_nprb")
        a("s_load_dword s32, s[30:31], 0\ns_and_b32 s35, s6, 1\ns_andn2_b32 s36, s2, 63\ns_add_u32 s36, s36, s2\ns_lshl_b32 s36, s36, 7")
        srd(48, 30, WSZ)
        a(f"s_lshl_b32 s37, s35, 13\ns_add_u32 s36, s36, s37\ns_add_u32 s36, s36, {W_PR}\ns_xor_b32 s37, s36, 0x2000\ns_mov_b64 exec, 1")
        if 'nopr' in abl: a("s_cmp_ge_u32 s33, 28\ns_cbranch_scc0 L_npr2")
        a(f"buffer_load_dword v176, off, {WS}, s36 {prpol}\nbuffer_load_dword v177, off, {WS}, s37 {prpol}")
        if 'nopr' in abl: a("L_npr2:")
        a("s_getreg_b32 s37, hwreg(HW_REG_XCC_ID, 2, 1)\ns_xnor_b32 s35, s35, s37\ns_and_b32 s35, s35, 1")
        a(f"s_lshl3_add_u32 s38, s33, s6\ns_lshl_b32 s38, s38, {vsh}\ns_barrier\ns_waitcnt vmcnt(1)")
        if gap: a(f"s_sleep {gap}")
        a("s_getreg_b32 s36, hwreg(HW_REG_IB_STS, 0, 4)")
        if dforce is not None: a(f"s_mov_b32 s36, 1\ns_mov_b32 s35, {dforce}")
        a(f"s_lshl_b32 s36, s36, s35\ns_waitcnt lgkmcnt(0)\ns_add_u32 s32, s32, {EPOCH_STEP:#x}\ns_xor_b32 s36, s36, s32\nv_mov_b32 v22, s36")
        if 'nost' in abl: a("s_cmp_ge_u32 s33, 28\ns_cbranch_scc0 L_nst2")
        a(f"buffer_store_dword v22, off, {WS}, s38 offset:{W_VOT} {vst}")
        if 'nost' in abl: a("L_nst2:")
        a("s_mov_b64 exec, -1\ns_branch L_prd\nL_nprb:")
    a("s_barrier\nL_prd:")
    if nap0: a(f"s_sleep {nap0}")
    elif hold: lds_spin(F_LD, seg_flag(hold), [], 'ge', 20, nap=4)
    a("s_branch L_comp")
    oth_lines = a.lines; a.lines = main_lines
    def k_setup():
        a("""v_and_b32 v2, 15, v0
        v_lshrrev_b32 v3, 4, v0
        v_xor_b32 v4, v2, v3
        v_lshlrev_b32 v4, 4, v4
        v_lshlrev_b32 v5, 8, v3""")
        for i in range(4): a(f"v_xor_b32 v{8 + i}, {64 * i}, v4\nv_add_u32 v{8 + i}, v{8 + i}, v5")
        a("""s_lshl_b32 s35, s4, 24
        s_lshl_b32 s36, s5, 15
        s_add_u32 s35, s35, s36
        s_add_u32 s35, s35, 15728640""")
        a("s_lshl_b32 s40, s4, 12" if rot else "s_mov_b32 s40, 0")
        a("""s_add_u32 s44, s10, s35
        s_addc_u32 s45, s11, 0
        s_and_b32 s45, s45, 0xffff
        s_mov_b32 s46, 32768
        s_add_u32 s12, s12, s35
        s_addc_u32 s13, s13, 0""")
    nwarm = 1 if warm else 0
    def late_setup():
        a("""v_lshrrev_b32 v4, 2, v2
        v_xor_b32 v4, v4, v3
        v_lshl_add_u32 v12, v4, 6, v5
        v_and_b32 v4, 3, v0
        v_lshl_add_u32 v12, v4, 4, v12
        v_mul_u32_u24 v13, 28672, v6
        v_lshl_add_u32 v13, v7, 4, v13
        v_lshlrev_b32 v4, 1, v3
        v_xor_b32 v4, v4, v7
        v_lshlrev_b32 v4, 4, v4
        v_lshl_add_u32 v14, v6, 10, v4
        s_mul_i32 s41, s6, 229376
        s_lshl_b32 s37, s33, 7
        s_add_u32 s41, s41, s37
        s_lshl_b32 s42, s4, 19
        s_lshl_b32 s38, s7, 17
        s_add_u32 s42, s42, s38
        s_lshl_b32 s38, s6, 7
        s_add_u32 s42, s42, s38
        s_lshl_b32 s43, s33, 16
        s_add_u32 s43, s43, s38""")
        srd(48, 30, WSZ)
        if h3warm is not None:
            a("s_sub_u32 s37, s33, 28\ns_lshl3_add_u32 s37, s37, s6")
            inbox(36, 37)
            a("v_lshl_add_u32 v19, v0, 6, s36")
        if warm:
            a(f"s_lshl_b32 s36, s4, 7\ns_add_u32 s36, s36, s5\ns_lshl_b32 s37, s36, 9\ns_add_u32 s37, s37, {W_H2}")
            a("v_lshrrev_b32 v16, 3, v0\nv_lshlrev_b32 v16, 14, v16\nv_lshl_add_u32 v16, v7, 6, v16\nv_add_u32 v16, s37, v16")
            a(f"s_lshl_b32 s37, s36, 4\ns_add_u32 s37, s37, {W_ML}\nv_and_b32 v17, 3, v0\nv_lshlrev_b32 v17, 9, v17\nv_add_u32 v17, s37, v17")
            a(f"s_lshl_b32 s36, s4, 2\ns_add_u32 s36, s36, s7\ns_lshl_b32 s36, s36, 3\ns_add_u32 s36, s36, s6\ns_lshl_b32 s36, s36, 9\ns_add_u32 s36, s36, {W_HB}")
            a("v_lshl_add_u32 v18, v7, 6, s36\nv_cmp_gt_u32 s[56:57], 40, v0\nv_cndmask_b32 v17, v17, v18, s[56:57]\nv_cmp_gt_u32 s[56:57], 32, v0\nv_cndmask_b32 v16, v17, v16, s[56:57]")
    def seg_loads(name):
        r = []
        if name in ("K", "V"):
            base = L_K if name == "K" else L_V
            for i in range(32):
                v = f"v{8 + ((i >> 1) & 3)}" if name == "K" else "v12"
                r.append((f"s_mov_b32 m0, {base + 1024 * i}" if i % 4 == 0 else None, f"{v}, s[44:47], s40 offen offset:{1024 * (i & 3)}",
                          "s_addk_i32 s40, 0x1000\ns_and_b32 s40, s40, 0x7fff" if i % 4 == 3 else None))
        if name == "Q":
            for i in range(16): r.append((f"s_mov_b32 m0, {L_WQ + 1024 * i}", "v15, s[44:47], s39 offen", "s_addk_i32 s39, 0x2000"))
        if name == "GU":
            for i in range(16): r.append((f"s_mov_b32 m0, {L_GU + 1024 * i}", f"v13, s[{44 + 8 * (i & 1)}:{47 + 8 * (i & 1)}], s41 offen", "s_addk_i32 s41, 0xe00" if i & 1 else None))
        if name == "WO":
            for i in range(16): r.append((f"s_mov_b32 m0, {L_WO + 1024 * i}", "v14, s[44:47], s42 offen", "s_addk_i32 s42, 0x2000"))
        if name == "WD":
            for i in range(8): r.append((f"s_mov_b32 m0, {L_WD + 1024 * i}", "v14, s[44:47], s43 offen", "s_addk_i32 s43, 0x2000"))
        return r
    def seg_setup(name):
        if name == "K": k_setup()
        if name == "V": srd(44, 12, 32768)
        if name == "GU": srd(44, 20, 1835008); srd(52, 22, 1835008)
        if name == "WO": srd(44, 16, 4194304)
        if name == "WD": srd(44, 24, 1835008)
    def signal(f):
        a(f"v_mov_b32 v20, {f}\nds_write_b32 v1, v20 offset:{F_LD}")
        if events[f - 1] in order: stamp('l', 1 + order.index(events[f - 1]) if events[f - 1] != 'Q' else 7)
    def emit(segs, n0, pend, final):
        n = n0
        for name in segs:
            seg_setup(name)
            th = TH if name in ("Q", "K", "V") or TH2 is None else TH2
            if name in ("Q", "K") and THK: th = THK
            if name == "GU" and THG: th = THG
            lo = seg_loads(name)
            th0 = th
            if name == "Q":
                for c in range(4): pend.append((n + 4 * c + 4, seg_flag("Q" + (str(c) if c < 3 else ""))))
                n += 16
                continue
            for idx, (m0, ad, inc) in enumerate(lo):
                if m0: a(m0)
                th = th0
                for d_ in (dip, dip2):
                    if d_ and d_[0] <= n < d_[1]: th = d_[2]
                if n == (THK or TH) + npre:
                    a("s_barrier")
                    if xfast:
                        a(f"s_waitcnt vmcnt({n - npre})")
                        signal(pend.pop(0)[1])
                    else: late_setup()
                    a("L_split:")
                if xfast and n == (THK or TH) + npre + 4: late_setup()
                if n >= th and n >= (THK or TH) + npre:
                    sig = pend and pend[0][0] <= n - (th - 1)
                    if boost and name in ("Q", "K", "V") and not sig and th == th0:
                        L = a.label("bo")
                        a(f"s_cbranch_vccnz {L}\ns_waitcnt vmcnt({th - 1})\n{L}:\ns_waitcnt vmcnt({boost - 1})")
                    else:
                        a(f"s_waitcnt vmcnt({th - 1})")
                    while pend and pend[0][0] <= n - (th - 1):
                        signal(pend.pop(0)[1])
                a(f"buffer_load_dwordx4 {ad} nt lds")
                if inc: a(inc)
                n += 1
                if name in ("V", "GU", "Q") and (idx + 1) % (len(lo) // 4) == 0 and idx + 1 < len(lo):
                    pend.append((n, seg_flag(name + str((idx + 1) // (len(lo) // 4) - 1))))
                if name == "K" and h1trig < 32 and idx + 1 == h1trig: pend.append((n, seg_flag("Kpart")))
            pend.append((n, seg_flag(name)))
            if name == "Q" and h1warm is not None:
                srd(52, 30, WSZ)
                a(f"s_lshl_b32 s35, s4, 5\ns_lshl_b32 s36, s6, 2\ns_add_u32 s35, s35, s36\ns_add_u32 s35, s35, s7\ns_lshl_b32 s35, s35, 8\ns_add_u32 s35, s35, {W_H1}")
                a(f"v_lshlrev_b32 v23, 6, v0\ns_mov_b64 exec, 15\nbuffer_load_dword v24, v23, s[52:55], s35 offen {h1warm}\ns_mov_b64 exec, -1")
                n += 1
            if name == warmat:
                if nwarm:
                    a(f"s_mov_b32 exec_hi, {0xfff if hbwarm is None else 0xf00}\n" + (f"v_mov_b32 v21, 0\nbuffer_store_dword v21, v16, {WS}, 0 offen" if warmst else f"buffer_load_dword v21, v16, {WS}, 0 offen {warmpol}") + "\ns_mov_b32 exec_hi, -1")
                    n += 1
                    if hbwarm:
                        a(f"s_mov_b32 exec_lo, 0\ns_mov_b32 exec_hi, 0xff\nbuffer_load_dword v21, v16, {WS}, 0 offen {hbwarm}\ns_mov_b64 exec, -1")
                        n += 1
                if h3warm is not None and not consffn:
                    a(f"buffer_load_dword v22, v19, {WS}, 0 offen {h3warm}")
                    n += 1
        if final:
            pend.append((n - ntail, seg_flag("T"))); pend.sort()
            pend[:] = sorted(set((e, len(events) if e == n else max(f for (e2, f) in pend if e2 <= e)) for (e, f) in pend))
            if gate == 'IE': a(f"v_mov_b32 v20, 1\nds_write_b32 v1, v20 offset:{F_IE}")
            stamp('l', 8)
            while pend:
                e, f = pend.pop(0)
                a(f"s_waitcnt vmcnt({n - e})")
                signal(f)
                if events[f - 1] == "T": stamp('l', 5)
        return n
    assert order[0] == "Q" and 16 < TH < 48
    npre = 3
    ffn = ("GU", "WD")
    k = min(order.index(x) for x in ffn)
    pend = [(npre, seg_flag("X"))]
    n = emit(order[:k], npre, pend, False)
    a("s_cmp_ge_u32 s33, 28\ns_cbranch_scc1 L_ldb")
    emit(order[k:], n, list(pend), True)
    a("s_branch L_lde\nL_ldb:")
    emit([x for x in order[k:] if x not in ffn], n, list(pend), True)
    if h3warm is not None and near:
        a(f"ds_read_b32 v22, v1 offset:{F_IE}\ns_waitcnt lgkmcnt(0)\nv_readfirstlane_b32 s36, v22\ns_cmp_eq_u32 s36, 0\ns_cbranch_scc1 L_lde")
        a(f"buffer_load_dword v22, v19, {WS}, s36 offen {h3warm}")
    elif h3warm is not None and consffn: a(f"buffer_load_dword v22, v19, {WS}, 0 offen {h3warm}")
    if dual:
        a(f"s_movk_i32 s36, 0x2000\nbuffer_load_dword v23, v19, {WS}, s36 offen {h3warm}\ns_waitcnt vmcnt(1)\ns_sleep {dnap}\ns_getreg_b32 s36, hwreg(HW_REG_IB_STS, 0, 4)")
        a(f"s_cmp_eq_u32 s36, 0\ns_cselect_b32 s36, 2, 1")
        if dforce: a(f"s_mov_b32 s36, {dforce}")
        a(f"v_mov_b32 v20, s36\nds_write_b32 v1, v20 offset:{F_IE}")
    if touch: a("s_branch L_lde\nL_t1:\ns_branch L_t2")
    a("L_lde:")
    stamp('l', 9)
    dump('l')
    a("s_endpgm")

    a("L_aux:")
    stamp('a', 1)
    srd(48, 30, WSZ)
    a("v_lshrrev_b32 v3, 3, v0\nv_and_b32 v4, 7, v0")
    a("""v_and_b32 v6, 1, v0
    v_lshlrev_b32 v6, 4, v6
    v_mov_b32 v7, 0xffff
    v_lshlrev_b32 v6, v6, v7
    v_bfe_u32 v7, v0, 1, 2""")
    for d in range(4): a(f"v_cmp_eq_u32 vcc, {d}, v7\nv_cndmask_b32 v{12 + d}, 0, v6, vcc")
    a(f"v_lshlrev_b32 v6, 5, v0\nv_add_u32 v6, {L_XX}, v6")
    a(f"s_lshl_b32 s35, s7, 9\ns_add_u32 s35, s35, {L_XX}\nv_lshl_add_u32 v7, v3, 6, s35")
    a(f"v_add_u32 v25, {L_X}, v2")
    lds_spin(F_LD, seg_flag("X"), ["ds_read_b128 v[8:11], v25"], 'ge', 24)
    stamp('a', 2)
    for k in range(4): a(f"v_lshlrev_b32 v{16 + 2 * k}, 16, v{8 + k}\nv_and_b32 v{17 + 2 * k}, 0xffff0000, v{8 + k}")
    def wave_sum(r, t):
        for n in (8, 4, 2, 1): a(f"v_add_f32_dpp v{r}, v{r}, v{r} row_ror:{n} row_mask:0xf bank_mask:0xf")
        a(f"v_mov_b32 v{t}, v{r}\nv_permlane16_swap_b32 v{r}, v{t}\nv_add_f32 v{r}, v{r}, v{t}")
        a(f"v_mov_b32 v{t}, v{r}\nv_permlane32_swap_b32 v{r}, v{t}\nv_add_f32 v{r}, v{r}, v{t}")
    a("""v_add_f32 v24, v16, v17
    v_add_f32 v25, v18, v19
    v_add_f32 v26, v20, v21
    v_add_f32 v27, v22, v23
    v_add_f32 v24, v24, v25
    v_add_f32 v26, v26, v27
    v_add_f32 v24, v24, v26""")
    wave_sum(24, 25)
    a("v_mul_f32 v24, 0x3b000000, v24")
    for k in range(8): a(f"v_sub_f32 v{32 + k}, v{16 + k}, v24")
    a("v_mul_f32 v26, v32, v32\nv_mul_f32 v27, v33, v33")
    for k in range(2, 8): a(f"v_fmac_f32 v{26 + (k & 1)}, v{32 + k}, v{32 + k}")
    a("v_add_f32 v26, v26, v27\nv_cvt_pk_bf16_f32 v24, 0, v24")
    wave_sum(26, 25)
    for k in range(8): a(f"v_sub_f32 v{16 + k}, v{16 + k}, v24")
    a("""v_mul_f32 v26, 0x3b000000, v26
    v_cvt_pk_bf16_f32 v26, 0, v26
    v_add_f32 v26, 0x3727c5ac, v26
    v_cvt_pk_bf16_f32 v26, 0, v26
    v_sqrt_f32 v26, v26""")
    for k in range(8): a(f"v_cvt_pk_bf16_f32 v{16 + k}, 0, v{16 + k}")
    a("v_cvt_pk_bf16_f32 v26, 0, v26\nv_rcp_f32 v27, v26")
    for k in range(8): a(f"v_mul_f32 v{32 + k}, v{16 + k}, v27")
    for k in range(8): a(f"v_fma_f32 v{16 + k}, -v{32 + k}, v26, v{16 + k}")
    for k in range(8): a(f"v_fmac_f32 v{32 + k}, v{16 + k}, v27")
    for k in range(8): a(f"v_cvt_pk_bf16_f32 v{32 + k}, v{32 + k}, v{32 + k}")
    a("ds_write_b128 v6, v[32:35]\nds_write_b128 v6, v[36:39] offset:16")
    for k in range(4): a(f"ds_read_b128 v[{16 + 4 * k}:{19 + 4 * k}], v7 offset:{16 * k}")
    a("""v_lshlrev_b32 v5, 5, v4
    v_bfe_u32 v6, v0, 4, 1
    v_lshl_add_u32 v5, v6, 4, v5
    v_mov_b32 v61, v5
    v_lshrrev_b32 v6, 5, v0
    v_lshl_add_u32 v5, v6, 3, v5
    s_lshl_b32 s35, s4, 5
    s_lshl_b32 s36, s6, 2
    s_add_u32 s35, s35, s36
    s_add_u32 s35, s35, s7
    s_lshl_b32 s35, s35, 8""")
    a(f"s_add_u32 s35, s35, {W_H1}\nv_add_u32 v9, s35, v61\nv_mov_b32 v56, 0xff\ns_mov_b32 s43, {W_H1B - W_H1}")
    a("s_waitcnt lgkmcnt(0)")
    stamp('a', 3)
    tags()
    a("v_mov_b32 v57, s42\nv_lshrrev_b32 v58, 8, v57\nv_lshrrev_b32 v59, 16, v57\nv_lshrrev_b32 v60, 24, v57")
    a(f"v_add_u32 v11, {L_WQ}, v2")
    for i in range(16):
        for d in range(4): a(f"v_and_b32 v{128 + 4 * (i & 7) + d}, v{16 + i}, v{12 + d}")
        if i == 7 or i == 11 or i == 15:
            for c in ((0, 1) if i == 7 else (2,) if i == 11 else (3,)):
                lds_spin(F_LD, seg_flag("Q" + (str(c) if c < 3 else "")), [f"ds_read_b128 v[{64 + 4 * k}:{67 + 4 * k}], v11 offset:{1024 * k}" for k in range(4 * c, 4 * c + 4)], 'ge', 62)
                for k in range(4 * c, 4 * c + 4):
                    a(f"v_mfma_f32_16x16x32_bf16 v[32:35], v[{128 + 4 * (k & 7)}:{131 + 4 * (k & 7)}], v[{64 + 4 * k}:{67 + 4 * k}], {'0' if k == 0 else 'v[32:35]'}")
    stamp('a', 4)
    a("""v_permlane32_swap_b32 v32, v34
    v_permlane32_swap_b32 v33, v35
    v_add_f32_dpp v48, v34, v32 row_shl:8 row_mask:0xf bank_mask:0xf
    v_add_f32_dpp v49, v35, v33 row_shl:8 row_mask:0xf bank_mask:0xf
    v_add_u32 v48, 0x80, v48
    v_add_u32 v49, 0x80, v49
    v_mov_b32 v50, v48
    v_mov_b32 v51, v49
    v_permlane32_swap_b32 v48, v50
    v_permlane32_swap_b32 v49, v51
    s_mov_b64 exec, 0x00ff00ff""")
    for k in range(4): a(f"v_bfi_b32 v{52 + k}, v56, v{57 + k}, v{48 + k}")
    a(f"buffer_store_dwordx4 v[52:55], v9, {WS}, 0 offen" + ("" if local and not h1wt else " sc1"))
    if 'noh1b' not in abl and local:
        a("v_mov_b32 v57, s32\nv_lshrrev_b32 v58, 8, v57\nv_lshrrev_b32 v59, 16, v57\nv_lshrrev_b32 v60, 24, v57")
        for k in range(4): a(f"v_bfi_b32 v{160 + k}, v56, v{57 + k}, v{48 + k}")
        if lateb: a("v_mov_b32 v164, v9")
        else: a(f"buffer_store_dwordx4 v[160:163], v9, {WS}, s43 offen sc1")
    a(f"s_mov_b64 exec, -1\nv_mov_b32 v20, 1\nds_write_b32 v1, v20 offset:{F_A}")
    stamp('a', 5)
    a("L_aux2:")
    def dec_load(pol):
        a(f"s_mov_b64 exec, 1\nbuffer_load_dwordx4 v[44:47], off, {WS}, s33 offset:{W_DEC} {pol}\ns_mov_b64 exec, -1")
    def dec_first():
        a("s_not_b32 s37, s32\nv_mov_b32 v44, s37\ns_lshl_b32 s33, s6, 4")
        lds_spin(F_LD, seg_flag(dat), [], 'ge', 28, nap=lazy)
        dec_load(dpol)
    def dec_use(tag, cnt):
        a(f"s_mov_b32 s40, {SPIN}\ns_waitcnt vmcnt({cnt})\nL_vc0{tag}:\ns_mov_b64 exec, 1")
        for k in range(4): a(f"v_xor_b32 v{44 + k}, s32, v{44 + k}")
        a("s_movk_i32 s39, 0x2000\nv_or_b32 v41, v44, v45\nv_or3_b32 v41, v41, v46, v47\nv_cmp_lt_u32 vcc, 1, v41")
        for k in range(4): a(f"v_lshlrev_b32 v{44 + k}, v{44 + k}, s39")
        a(f"s_cbranch_vccnz L_vc1{tag}\nds_write_b128 v1, v[44:47] offset:{F_D}\ns_mov_b64 exec, -1")
        with outofline():
            a(f"L_vc1{tag}:\ns_waitcnt vmcnt(0)")
            dec_load('sc1')
            a(f"s_sub_u32 s40, s40, 1\ns_cbranch_scc1 L_end\ns_waitcnt vmcnt(0)\ns_branch L_vc0{tag}")
    a("s_cmp_ge_u32 s33, 28\ns_cbranch_scc1 " + ("L_probe" if probe_diag else "L_dec" if near else "L_adone"))
    if near:
        with outofline():
            a("L_dec:")
            if vat: lds_spin(F_LD, seg_flag(vat), [], 'ge', 28, nap=lazy)
            nvc = 1 if (vset, vsh) == (1, 2) else 4
            if nvc == 1: a(f"v_lshlrev_b32 v41, 2, v0\nbuffer_load_dword v44, v41, {WS}, 0 offen offset:{W_VOT} {vpol}")
            else: a(f"buffer_load_dwordx4 v[44:47], v2, {WS}, 0 offen offset:{W_VOT} {vpol}")
            a("s_lshl3_add_u32 s35, s33, s6\ns_lshl_b32 s35, s35, 2\ns_waitcnt vmcnt(0)")
            for k in range(nvc):
                a(f"v_xor_b32 v41, s32, v{44 + k}")
                for c in range(2):
                    a(f"v_cmp_eq_u32 vcc, {c + 1}, v41\ns_bcnt1_i32_b64 s{(36 if k == 0 else 38) + c}, vcc")
                if k: a("s_add_u32 s36, s36, s38\ns_add_u32 s37, s37, s39")
            a("s_cmp_gt_u32 s37, s36\ns_cselect_b32 s38, 0, 1\ns_getreg_b32 s39, hwreg(HW_REG_XCC_ID, 2, 1)\ns_xor_b32 s39, s39, s38")
            a(f"s_xor_b32 s38, s39, s32\ns_lshl_b32 s39, 0x2000, s39\nv_mov_b32 v41, s39\nv_mov_b32 v42, s38\nds_write_b32 v1, v41 offset:{F_IE}")
            a(f"s_mov_b64 exec, 1\nbuffer_store_dword v42, off, {WS}, s35 offset:{W_DEC - 896} sc1\ns_mov_b64 exec, -1")
            if stamps or evdbg: a(f"s_lshl_b32 s37, s37, 8\ns_add_u32 s36, s36, s37\nv_mov_b32 v41, s36\nds_write_b32 v1, v41 offset:{F_N}")
            if evdbg:
                srd(44, 28, 256)
                a(f"s_getreg_b32 s37, hwreg(HW_REG_XCC_ID, 0, 4)\ns_lshl_b32 s37, s37, 24\ns_add_u32 s36, s36, s37\nv_mov_b32 v41, s36\ns_sub_u32 s35, s35, 896\nv_mov_b32 v42, s35\nbuffer_store_dword v41, v42, s[44:47], 0 offen")
            dec_first()
            dec_use('a', 0)
            a("s_branch L_adone")
    if probe_diag:
        with outofline():
            a(f"L_probe:\ns_sub_u32 s35, s33, 28\ns_lshl3_add_u32 s35, s35, s6\ns_lshr_b32 s36, s35, 2\ns_lshl_b32 s36, s36, 14\ns_and_b32 s35, s35, 3\ns_lshl_b32 s35, s35, 10\ns_add_u32 s36, s36, s35\ns_add_u32 s36, s36, {W_PR}")
            if probe_diag == 3:
                lds_spin(F_LD, seg_flag("Kpart"), [], 'ge', 28, nap=2)
                a("s_mul_i32 s36, s6, 768\ns_add_u32 s36, s36, 0x14000")
            for t in range(12):
                a(f"s_memtime s[56:57]\ns_waitcnt lgkmcnt(0)\ns_load_dword s58, s[30:31], s36 offset:{(t >> 1) * 128 + (t & 1) * 8192}{' glc' if probe_diag == 2 else ''}\ns_waitcnt lgkmcnt(0)\ns_memtime s[60:61]\ns_waitcnt lgkmcnt(0)\ns_sub_u32 s{66 + 2 * t}, s60, s56")
            a("s_memtime s[90:91]\ns_branch L_adump")
    if 'noffn' in abl: a("s_branch L_adone")
    a(f"s_lshl_b32 s35, s6, 8\ns_add_u32 s35, s35, {L_XX}\nv_lshl_add_u32 v7, v3, 5, s35")
    a("ds_read_b128 v[16:19], v7\nds_read_b128 v[20:23], v7 offset:16")
    a(f"s_lshl_b32 s35, s4, 2\ns_add_u32 s35, s35, s7\ns_lshl_b32 s35, s35, 12\ns_add_u32 s35, s35, {W_HB}")
    a("v_add_u32 v10, s35, v2\ns_lshl_b32 s36, s6, 9\ns_add_u32 s35, s35, s36\nv_lshl_add_u32 v9, v5, 1, s35")
    a(f"v_add_u32 v11, {L_GU}, v2")
    a("""v_bfe_u32 v8, v0, 4, 1
    v_lshlrev_b32 v8, 6, v8
    v_bfe_u32 v6, v0, 1, 2
    v_lshl_add_u32 v8, v6, 4, v8
    v_bfe_u32 v6, v0, 3, 1
    v_lshl_add_u32 v8, v6, 3, v8
    v_and_b32 v6, 1, v0
    v_lshl_add_u32 v8, v6, 2, v8
    v_lshrrev_b32 v6, 5, v0
    v_lshl_add_u32 v8, v6, 1, v8""")
    a(f"v_add_u32 v8, {L_H}, v8")
    tagbytes(56, 32)
    for k in range(4): a(f"v_mov_b32 v{57 + k}, s{56 + k}")
    a("s_waitcnt lgkmcnt(0)")
    for i in range(8):
        for d in range(4): a(f"v_and_b32 v{128 + 4 * i + d}, v{16 + i}, v{12 + d}")
    if near: dec_first()
    for c in range(4):
        rd = [f"ds_read_b128 v[{64 + 4 * i}:{67 + 4 * i}], v11 offset:{1024 * i}" for i in range(4 * c, 4 * c + 4)]
        if c == 3: rd.append(f"ds_read_b128 v[24:27], v1 offset:{F_Q}")
        if c == 0 and lazy: lds_spin(F_LD, seg_flag("V"), [], 'ge', 28, nap=lazy)
        lds_spin(F_LD, seg_flag("GU" + (str(c) if c < 3 else "")), rd, 'ge', 28)
        if c == 3: stamp('a', 6)
        for i in range(2 * c, 2 * c + 2):
            for m in range(2):
                cc = "0" if i == 0 else f"v[{32 + 4 * m}:{35 + 4 * m}]"
                a(f"v_mfma_f32_16x16x32_bf16 v[{32 + 4 * m}:{35 + 4 * m}], v[{128 + 4 * i}:{131 + 4 * i}], v[{64 + 8 * i + 4 * m}:{67 + 8 * i + 4 * m}], {cc}")
    a("v_and_b32 v26, v26, v27\nv_bitop3_b32 v24, v24, v25, v26 bitop3:0x80\nv_readfirstlane_b32 s41, v24\ns_and_b32 s41, s41, 2")
    a("""v_permlane32_swap_b32 v32, v34
    v_permlane32_swap_b32 v33, v35
    v_permlane32_swap_b32 v36, v38
    v_permlane32_swap_b32 v37, v39
    v_add_f32_dpp v48, v34, v32 row_shl:8 row_mask:0xf bank_mask:0xf
    v_add_f32_dpp v50, v35, v33 row_shl:8 row_mask:0xf bank_mask:0xf
    v_add_f32_dpp v49, v38, v36 row_shl:8 row_mask:0xf bank_mask:0xf
    v_add_f32_dpp v51, v39, v37 row_shl:8 row_mask:0xf bank_mask:0xf
    s_mov_b32 exec_lo, 0x00ff00ff
    s_mov_b32 exec_hi, 0x00ff00ff""")
    for k in range(4): a(f"v_add_u32 v{48 + k}, 0x80, v{48 + k}")
    for k in range(4): a(f"v_bfi_b32 v{48 + k}, v56, v{57 + k}, v{48 + k}")
    st2([f"buffer_store_dwordx4 v[48:51], v9, {WS}, 0 offen"], 'hb')
    a("s_mov_b64 exec, -1")
    stamp('a', 7)
    if near: dec_use('b', 1)
    L = a.label("hb")
    a(f"s_mov_b32 s38, {max(seg_flag('WO'), seg_flag('WD'))}\ns_mov_b32 s36, {seg_flag('T')}\ns_mov_b32 s39, {0 if hbfirst else 1}")
    a(f"s_mov_b32 s40, {SPIN}\n{L}:")
    if gate:
        a("s_cmp_eq_u32 s39, 1\ns_cbranch_scc0 L_hbg")
        wait_gate(28)
        a("L_hbg:\ns_add_u32 s39, s39, 1")
    for i in range(4): a(f"buffer_load_dwordx4 v[{64 + 4 * i}:{67 + 4 * i}], v10, {WS}, 0 offen offset:{1024 * i} {pollpol}")
    a("s_sub_u32 s40, s40, 1\ns_cbranch_scc1 L_end")
    for i in range(4):
        a(f"s_waitcnt vmcnt({3 - i})")
        strip(20, [64 + 4 * i + k for k in range(4)], first=(i == 0))
        if i:
            for k in range(4): a(f"v_add_f32 v{64 + k}, v{64 + k}, v{64 + 4 * i + k}")
    a(f"v_and_b32 v20, 0xff, v20\nv_cmp_ne_u32 vcc, 0, v20")
    if hbsleep: a(f"s_cbranch_vccz L_hbok\ns_sleep {hbsleep}\ns_branch {L}\nL_hbok:")
    else: a(f"s_cbranch_vccnz {L}")
    stamp('a', 8)
    a(f"""v_permlane32_swap_b32 v64, v66
    v_permlane32_swap_b32 v65, v67
    v_add_f32 v64, v64, v66
    v_add_f32 v66, v65, v67
    v_cvt_pk_bf16_f32 v64, 0, v64
    v_cvt_pk_bf16_f32 v66, 0, v66
    v_mul_f32 v20, {(LOG2E | 0x80000000):#x}, v64
    v_exp_f32 v20, v20
    v_add_f32 v20, 1.0, v20
    v_rcp_f32 v21, v20
    v_mul_f32 v22, v64, v21""")
    if refine: a("""v_fma_f32 v23, -v22, v20, v64
    v_fma_f32 v23, v23, v21, v22
    v_cmp_class_f32 vcc, v23, 3
    v_cndmask_b32 v22, v23, v22, vcc""")
    a(f"""v_cvt_pk_bf16_f32 v22, 0, v22
    v_mul_f32 v22, v22, v66
    v_cvt_pk_bf16_f32 v22, v22, v22
    v_mov_b32 v21, 1
    ds_write_b16 v8, v22
    ds_write_b32 v1, v21 offset:{F_H}""")
    a("L_adone:")
    if lateb and local:
        a(f"s_mov_b64 exec, 0x00ff00ff\nbuffer_store_dwordx4 v[160:163], v164, {WS}, s43 offen sc1")
    stamp('a', 9)
    a("L_adump:")
    dump('a')
    a("s_endpgm")

    a("L_comp:\ns_sub_u32 s34, s3, 2")
    a("s_load_dword s32, s[30:31], 0")
    srd(48, 30, WSZ)
    if warm and not h1wt:
        a("s_cmp_eq_u32 s34, 1\ns_cbranch_scc0 L_nowarm")
        a(f"s_lshl_b32 s35, s4, 5\ns_lshl_b32 s36, s6, 2\ns_add_u32 s35, s35, s36\ns_add_u32 s35, s35, s7\ns_lshl_b32 s35, s35, 8\ns_add_u32 s35, s35, {W_H1}")
        a(f"v_lshlrev_b32 v4, 6, v0\ns_mov_b64 exec, 15\nbuffer_load_dword v124, v4, {WS}, s35 offen {warmpol}\ns_mov_b64 exec, -1\nL_nowarm:")
    a("""v_and_b32 v2, 15, v0
    v_lshrrev_b32 v3, 4, v0""")
    a("""v_xor_b32 v4, v2, v3
    v_lshlrev_b32 v4, 4, v4
    v_lshrrev_b32 v5, 2, v2
    v_lshlrev_b32 v5, 11, v5
    v_and_b32 v6, 3, v0
    v_lshl_add_u32 v5, v6, 8, v5
    s_lshr_b32 s35, s34, 1
    s_lshl_b32 s35, s35, 14
    s_and_b32 s36, s34, 1
    s_lshl_b32 s36, s36, 10
    s_add_u32 s35, s35, s36
    v_add_u32 v5, s35, v5""")
    for s_ in range(4):
        a(f"v_xor_b32 v{8 + s_}, {64 * s_}, v4\nv_add_u32 v{8 + s_}, v{8 + s_}, v5")
    a("""v_lshrrev_b32 v4, 2, v2
    v_xor_b32 v5, s34, v4
    v_lshlrev_b32 v5, 6, v5
    v_lshl_add_u32 v5, v4, 8, v5
    v_lshrrev_b32 v7, 1, v3
    v_lshl_add_u32 v5, v7, 10, v5
    v_and_b32 v7, 1, v3
    v_lshl_add_u32 v5, v7, 5, v5
    v_lshl_add_u32 v5, v6, 3, v5""")
    a(f"v_add_u32 v12, {L_V}, v5")
    a("""v_lshl_add_u32 v5, v3, 2, v4
    v_lshrrev_b32 v7, 1, v5
    v_and_b32 v7, 3, v7
    v_xor_b32 v7, s34, v7
    v_lshlrev_b32 v7, 5, v7
    v_lshl_add_u32 v7, v5, 7, v7
    v_lshl_add_u32 v14, v6, 3, v7""")
    a(f"v_add_u32 v14, {L_WO}, v14")
    a(f"v_mul_u32_u24 v15, 320, v6\nv_lshl_add_u32 v15, v3, 4, v15\nv_add_u32 v15, {L_Q}, v15")
    a("""v_lshrrev_b32 v4, 5, v0
    v_lshlrev_b32 v16, 8, v4
    v_and_b32 v5, 1, v3
    v_lshl_add_u32 v16, v5, 10, v16
    v_lshl_add_u32 v16, v2, 4, v16
    s_lshl_b32 s35, s4, 13
    s_lshl_b32 s36, s34, 11
    s_add_u32 s35, s35, s36""")
    a(f"s_add_u32 s35, s35, {W_H1}\nv_add_u32 v16, s35, v16")
    a(f"s_mul_i32 s35, s34, 320\ns_add_u32 s35, s35, {L_Q}\nv_and_b32 v5, 31, v0\nv_lshl_add_u32 v17, v5, 3, s35\nv_lshl_add_u32 v17, v4, 2, v17")
    a("s_lshl_b32 s35, s34, 2\nv_add_u32 v18, s35, v1")
    a(f"s_lshl_b32 s35, s34, 8\ns_add_u32 s35, s35, {L_P}\nv_lshl_add_u32 v19, v3, 5, s35\nv_lshl_add_u32 v19, v6, 3, v19")
    a(f"s_lshl_b32 s35, s34, 4\ns_add_u32 s35, s35, {L_ML}\nv_lshl_add_u32 v112, v0, 2, s35")
    a(f"v_lshlrev_b32 v113, 3, v0\nv_add_u32 v113, {L_P}, v113")
    a(f"v_lshlrev_b32 v114, 4, v4\nv_add_u32 v114, {L_ML}, v114")
    a(f"s_lshl_b32 s35, s34, 2\ns_add_u32 s35, s35, {L_ML}\nv_lshl_add_u32 v13, v6, 4, s35\nv_mov_b32 v144, {L_ML}")
    a("s_lshl_b32 s35, s4, 7\ns_add_u32 s35, s35, s5")
    a(f"s_lshl_b32 s36, s35, 9\ns_lshl_b32 s37, s34, 7\ns_add_u32 s36, s36, s37\ns_add_u32 s36, s36, {W_H2}\nv_lshl_add_u32 v115, v5, 2, s36\nv_lshl_add_u32 v115, v4, 14, v115")
    a(f"s_lshl_b32 s36, s34, 5\ns_add_u32 s36, s36, s35\ns_lshl_b32 s36, s36, 4\ns_add_u32 s36, s36, {W_ML}\nv_mov_b32 v116, s36")
    a("v_lshrrev_b32 v4, 3, v0\nv_and_b32 v5, 7, v0\ns_lshl_b32 s35, s4, 2\ns_add_u32 s35, s35, s7")
    a(f"s_lshl_b32 s36, s35, 14\ns_lshl_b32 s37, s34, 7\ns_add_u32 s36, s36, s37\ns_add_u32 s36, s36, {W_H2}")
    a("v_lshlrev_b32 v117, 9, v4\nv_lshl_add_u32 v117, v5, 4, v117\nv_add_u32 v117, s36, v117")
    a(f"s_lshl_b32 s36, s35, 9\ns_add_u32 s36, s36, {W_ML}\nv_and_b32 v118, 31, v0\nv_lshl_add_u32 v118, v118, 4, s36\nv_lshlrev_b32 v123, 2, v4")
    a("""v_and_b32 v119, 3, v0
    v_lshlrev_b32 v119, 4, v119
    v_bfe_u32 v4, v0, 2, 1
    v_lshl_add_u32 v119, v4, 3, v119
    v_bfe_u32 v4, v0, 4, 1
    v_lshl_add_u32 v119, v4, 2, v119
    v_lshrrev_b32 v4, 5, v0
    v_lshl_add_u32 v119, v4, 1, v119""")
    a(f"s_lshl_b32 s35, s34, 6\ns_add_u32 s35, s35, {L_O}\nv_add_u32 v119, s35, v119")
    a(f"v_lshlrev_b32 v120, 4, v3\nv_add_u32 v120, {L_O}, v120")
    a("s_lshl2_add_u32 s37, s6, s34")
    inbox(35, 37)
    a("s_lshl2_add_u32 s36, s4, s7\ns_lshl_b32 s36, s36, 7\ns_add_u32 s35, s35, s36\nv_lshl_add_u32 v121, v0, 3, s35")
    a("s_movk_i32 s52, 0x1000\ns_movk_i32 s53, 0x2000\ns_movk_i32 s54, 0x3000\ns_mov_b32 s55, 0x8000\nv_mov_b32 v125, 0xff")
    a("s_waitcnt lgkmcnt(0)")
    tags()
    a("v_lshlrev_b32 v4, 3, v6\nv_lshrrev_b32 v122, v4, s32\nv_mov_b32 v147, s32\nv_mov_b32 v149, s32")
    tagbytes(56, 42)
    if 'noc' in abl: a("s_branch L_cdone")
    kreads = [f"ds_read_b128 v[{32 + 16 * t + 4 * s}:{35 + 16 * t + 4 * s}], v{8 + s} offset:{L_K + 8192 * t}" for t in range(2) for s in range(4)]
    a("s_mov_b32 s43, 0\ns_mov_b32 s41, 3\ns_mov_b32 s39, 0")
    if forceslow: a(f"s_mov_b32 s39, {NA}")
    if h1own: lds_spin(F_A, 1, [], 'ge', 20)
    else:
        if nap1: a(f"s_sleep {nap1}")
        if both: lds_spin(F_A, 1, [], 'ge', 20, nap=lazy)
        lds_spin(F_LD, seg_flag("Kpart" if h1trig < 32 else "K"), [], 'ge', 20, nap=lazy)
    stamp('c', 1)
    L = a.label("h1"); L2 = a.label("h1k")
    a(f"{L}:")
    if local:
        a(f"s_cmp_eq_u32 s39, {NA}\ns_cbranch_scc1 L_h1sw\n{L2}:")
        with outofline():
            a(f"L_h1sw:\ns_mov_b32 s43, {W_H1B - W_H1}\ns_mov_b32 s41, 1")
            tagbytes(56, 32)
            a(f"s_branch {L2}")
    for i in range(2): a(f"buffer_load_dwordx4 v[{96 + 4 * i}:{99 + 4 * i}], v16, {WS}, s43 offen offset:{512 * i} {pollpol}")
    a(f"s_add_u32 s39, s39, 1\ns_cmp_gt_u32 s39, {SPIN}\ns_cbranch_scc1 L_end")
    if h1trig == 32 and not h1own:
        for r in kreads: a(r)
    elif kearly: lds_spin(F_LD, seg_flag("K"), kreads, 'ge', 20)
    a("s_waitcnt vmcnt(0)")
    strip(20, list(range(96, 104)), first=True)
    for k in range(4): a(f"v_add_f32 v{96 + k}, v{96 + k}, v{100 + k}")
    a(f"""v_and_b32 v20, 0xff, v20
    v_cmp_ne_u32 vcc, 0, v20
    v_permlane32_swap_b32 v96, v98
    v_permlane32_swap_b32 v97, v99
    s_cbranch_vccnz {L}""")
    stamp('c', 2)
    if stamps is True: a("s_mov_b32 s88, s39")
    a("""v_add_f32 v96, v96, v98
    v_add_f32 v97, v97, v99
    v_mov_b32 v21, s41
    v_cvt_pk_bf16_f32 v96, v96, v97""")
    a(f"ds_write_b32 v17, v96\nds_write_b32 v18, v21 offset:{F_Q}")
    tagbytes(56, 32)
    if (h1trig < 32 or h1own) and not kearly: lds_spin(F_LD, seg_flag("K"), kreads, 'ge', 20)
    lds_spin(F_Q, 0, [f"ds_read_b128 v[{96 + 4 * s}:{99 + 4 * s}], v15 offset:{64 * s}" for s in range(4)] + ([f"ds_read_b32 v145, v1 offset:{F_LD}"] if look1 else []), 'all4', 20)
    stamp('c', 3)
    for s in range(4):
        for t in range(2):
            c = "0" if s == 0 else f"v[{24 + 4 * t}:{27 + 4 * t}]"
            a(f"v_mfma_f32_16x16x32_bf16 v[{24 + 4 * t}:{27 + 4 * t}], v[{32 + 16 * t + 4 * s}:{35 + 16 * t + 4 * s}], v[{96 + 4 * s}:{99 + 4 * s}], {c}")
    a("v_readfirstlane_b32 s41, v20\ns_and_b32 s41, s41, 2")
    vread = lambda u: f"ds_read_b64_tr_b16 v[{64 + 2 * u}:{65 + 2 * u}], v12 offset:{2048 * u}"
    vflag = lambda c: seg_flag("V" + (str(c) if c < 3 else ""))
    if look1:
        a("v_readfirstlane_b32 s38, v145")
        for c in range(4):
            a(f"s_cmp_lt_u32 s38, {vflag(c)}\ns_cbranch_scc1 L_va")
            for u in range(4 * c, 4 * c + 4): a(vread(u))
        a("L_va:")
    else: a("s_mov_b32 s38, 0")
    a(f"s_mov_b32 s35, {SCALE:#x}\ns_mov_b32 s36, {LOG2E:#x}")
    if pks: a("s_mov_b32 s60, s35\ns_mov_b32 s61, s35\ns_mov_b32 s62, s36\ns_mov_b32 s63, s36")
    if mimic:
        for r in range(24, 32): a(f"v_cvt_pk_bf16_f32 v{r}, 0, v{r}")
    if pks:
        for r in range(24, 32, 2): a(f"v_pk_mul_f32 v[{r}:{r + 1}], v[{r}:{r + 1}], s[60:61]")
    else:
        for r in range(24, 32): a(f"v_mul_f32 v{r}, s35, v{r}")
    if mimic:
        for r in range(24, 32): a(f"v_cvt_pk_bf16_f32 v{r}, 0, v{r}")
    a("""v_max3_f32 v20, v24, v25, v26
    v_max3_f32 v21, v27, v28, v29
    v_max3_f32 v20, v20, v30, v31
    v_max_f32 v20, v20, v21
    v_mov_b32 v21, v20
    v_permlane16_swap_b32 v20, v21
    v_max_f32 v20, v20, v21
    v_mov_b32 v21, v20
    v_permlane32_swap_b32 v20, v21
    v_max_f32 v20, v20, v21
    v_mul_f32 v22, s36, v20""")
    if pks:
        for r in range(24, 32, 2): a(f"v_pk_fma_f32 v[{r}:{r + 1}], v[{r}:{r + 1}], s[62:63], v[22:23] op_sel:[0,0,0] op_sel_hi:[1,1,0] neg_lo:[0,0,1] neg_hi:[0,0,1]")
    else:
        for r in range(24, 32): a(f"v_fma_f32 v{r}, v{r}, s36, -v22")
    for r in range(24, 32): a(f"v_exp_f32 v{r}, v{r}")
    for k in range(4): a(f"v_cvt_pk_bf16_f32 v{32 + k}, v{24 + 2 * k}, v{25 + 2 * k}")
    if look2: a(f"ds_read_b32 v145, v1 offset:{F_LD}")
    if pks: a("""v_pk_add_f32 v[24:25], v[24:25], v[26:27]
    v_pk_add_f32 v[28:29], v[28:29], v[30:31]
    ds_write_b64 v19, v[32:33]
    v_pk_add_f32 v[24:25], v[24:25], v[28:29]
    ds_write_b64 v19, v[34:35] offset:128
    v_add_f32 v23, v24, v25""")
    else: a("""v_add_f32 v24, v24, v25
    v_add_f32 v26, v26, v27
    ds_write_b64 v19, v[32:33]
    v_add_f32 v28, v28, v29
    v_add_f32 v30, v30, v31
    ds_write_b64 v19, v[34:35] offset:128
    v_add_f32 v24, v24, v26
    v_add_f32 v28, v28, v30
    v_add_f32 v23, v24, v28""")
    a("""v_mov_b32 v21, v23
    v_permlane16_swap_b32 v23, v21
    v_add_f32 v23, v23, v21
    v_mov_b32 v21, v23
    v_permlane32_swap_b32 v23, v21
    v_add_f32 v23, v23, v21
    v_mov_b32 v21, 1
    s_mov_b64 exec, 15
    ds_write2_b32 v112, v22, v23 offset0:0 offset1:16
    s_mov_b64 exec, -1""")
    a(f"ds_write_b32 v18, v21 offset:{F_P}")
    if look2:
        lgk(4)
        a("v_readfirstlane_b32 s37, v145")
        for c in range(4):
            a(f"s_cmp_ge_u32 s38, {vflag(c)}\ns_cbranch_scc1 L_vl{c}\ns_cmp_lt_u32 s37, {vflag(c)}\ns_cbranch_scc1 L_vld")
            for u in range(4 * c, 4 * c + 4): a(vread(u))
            a(f"L_vl{c}:")
        a("L_vld:\ns_mov_b32 s38, s37")
    stamp('c', 4)
    reads = [f"ds_read_b64 v[{32 + 2 * r}:{33 + 2 * r}], v113 offset:{512 * r}" for r in range(2)]
    reads += ["ds_read2_b32 v[150:151], v13 offset0:0 offset1:16"]
    reads += [f"ds_read_b128 v[{96 + 4 * w}:{99 + 4 * w}], v144 offset:{16 * w}" for w in range(4)]
    reads += [f"ds_read_b128 v[{56 + 4 * r}:{59 + 4 * r}], v114 offset:{32 * r}" for r in range(2)]
    lds_spin(F_P, 0, reads + [f"ds_read_b32 v145, v1 offset:{F_LD}"], 'all4', 20)
    stamp('c', 5)
    fill = ["v_max_f32_dpp v146, v150, v150 quad_perm:[1,0,3,2] row_mask:0xf bank_mask:0xf"]
    fill += [f"v_max3_f32 v{96 + h}, v{96 + h}, v{100 + h}, v{104 + h}" for h in range(4)]
    fill += ["v_max_f32_dpp v146, v146, v146 quad_perm:[2,3,0,1] row_mask:0xf bank_mask:0xf"]
    fill += [f"v_max_f32 v{96 + h}, v{96 + h}, v{108 + h}" for h in range(4)]
    fill += ["v_sub_f32 v150, v150, v146"] + [f"v_sub_f32 v{56 + k}, v{56 + k}, v{96 + (k & 3)}" for k in range(8)]
    fill += ["v_exp_f32 v150, v150"] + [f"v_exp_f32 v{56 + k}, v{56 + k}" for k in range(4)] + ["v_mul_f32 v148, v150, v151"]
    fill += [f"v_exp_f32 v{60 + k}, v{60 + k}" for k in range(2)] + ["v_add_f32_dpp v148, v148, v148 quad_perm:[1,0,3,2] row_mask:0xf bank_mask:0xf"]
    fill += [f"v_exp_f32 v{62 + k}, v{62 + k}" for k in range(2)] + ["v_add_f32_dpp v148, v148, v148 quad_perm:[2,3,0,1] row_mask:0xf bank_mask:0xf"]
    def ml_pub():
        a("s_mov_b64 exec, 1")
        st2([f"buffer_store_dwordx4 v[146:149], v116, {WS}, 0 offen"], 'ml')
        a("s_mov_b64 exec, -1")
    def pv(u):
        r = u >> 3
        c = "0" if u % 8 < 2 else f"v[{40 + 8 * r + 4 * (u & 1)}:{43 + 8 * r + 4 * (u & 1)}]"
        a(f"v_mfma_f32_4x4x4_16b_bf16 v[{40 + 8 * r + 4 * (u & 1)}:{43 + 8 * r + 4 * (u & 1)}], v[{32 + 2 * r}:{33 + 2 * r}], v[{64 + 2 * u}:{65 + 2 * u}], {c} cbsz:3 abid:{u & 7}")
    a("v_readfirstlane_b32 s37, v145")
    assert len(fill) <= 32
    a(f"s_cmp_lt_u32 s38, {vflag(3)}\ns_cbranch_scc1 L_vb\nL_vc:")
    with outofline():
        a("L_vb:")
        for c in range(4):
            a(f"s_cmp_ge_u32 s38, {vflag(c)}\ns_cbranch_scc1 L_vb{c}\ns_cmp_lt_u32 s37, {vflag(c)}\ns_cbranch_scc1 L_vbd")
            for u in range(4 * c, 4 * c + 4): a(vread(u))
            a(f"L_vb{c}:")
        a("L_vbd:\ns_waitcnt lgkmcnt(0)\ns_branch L_vc")
    for c in range(4):
        a(f"s_cmp_lt_u32 s37, {vflag(c)}\ns_cbranch_scc1 L_vw{c}\nL_vr{c}:")
        with outofline():
            a(f"L_vw{c}:")
            lds_spin(F_LD, vflag(c), [vread(u) for u in range(4 * c, 4 * c + 4)], 'ge', 20)
            a(f"s_branch L_vr{c}")
        for u in range(4 * c, 4 * c + 4):
            pv(u)
            for f_ in fill[4 * u:4 * u + 4]: a(f_)
        if c == 1: ml_pub()
    stamp('c', 6)
    a("s_nop 0")
    if pks:
        for h in (0, 2): a(f"v_pk_add_f32 v[{40 + h}:{41 + h}], v[{40 + h}:{41 + h}], v[{44 + h}:{45 + h}]")
        for h in (0, 2): a(f"v_pk_mul_f32 v[{40 + h}:{41 + h}], v[{40 + h}:{41 + h}], v[{56 + h}:{57 + h}]")
        for h in (0, 2): a(f"v_pk_add_f32 v[{48 + h}:{49 + h}], v[{48 + h}:{49 + h}], v[{52 + h}:{53 + h}]")
        for h in (0, 2): a(f"v_pk_fma_f32 v[{40 + h}:{41 + h}], v[{48 + h}:{49 + h}], v[{60 + h}:{61 + h}], v[{40 + h}:{41 + h}]")
    else:
        for h in range(4): a(f"v_add_f32 v{40 + h}, v{40 + h}, v{44 + h}")
        for h in range(4): a(f"v_mul_f32 v{40 + h}, v{40 + h}, v{56 + h}")
        for h in range(4): a(f"v_add_f32 v{48 + h}, v{48 + h}, v{52 + h}")
        for h in range(4): a(f"v_fmac_f32 v{40 + h}, v{48 + h}, v{60 + h}")
    a("""v_permlane32_swap_b32 v40, v41
    v_permlane32_swap_b32 v42, v43
    v_add_f32 v40, v40, v41
    v_add_f32 v42, v42, v43
    v_bfi_b32 v40, v125, v122, v40
    v_bfi_b32 v42, v125, v122, v42""")
    st2([f"buffer_store_dword v40, v115, {WS}, 0 offen", f"buffer_store_dword v42, v115, {WS}, s55 offen"], 'h2')
    stamp('c', 7)
    if fine:
        a("s_waitcnt vmcnt(0)"); stamp('c', 1, True)
    if 'noh2' in abl: a("s_branch L_cdone")
    LF = a.label("h2"); LG = a.label("h2g"); LD = a.label("h2d")
    woreads = [f"ds_read_b64_tr_b16 v[{80 + 4 * s + 2 * x}:{81 + 4 * s + 2 * x}], v14 offset:{4096 * s + 2048 * x}" for s in range(4) for x in range(2)]
    wdreads = [f"ds_read_b64_tr_b16 v[{48 + 4 * s + 2 * x}:{49 + 4 * s + 2 * x}], v14 offset:{L_WD - L_WO + 4096 * s + 2048 * x}" for s in range(2) for x in range(2)]
    hreads = [f"ds_read_b128 v[{56 + 4 * s}:{59 + 4 * s}], v120 offset:{L_H - L_O + 64 * s}" for s in range(2)]
    last = max(seg_flag("WO"), seg_flag("WD"))
    def payload_loads():
        for i in range(4): a(f"buffer_load_dwordx4 v[{64 + 4 * i}:{67 + 4 * i}], v117, {WS}, {'s%d' % (51 + i) if i else 0} offen {pollpol}")
    def payload_check(mul):
        for i in range(4):
            a(f"s_waitcnt vmcnt({3 - i})")
            strip(21, [64 + 4 * i + k for k in range(4)], first=(i == 0))
            if mul:
                for k in range(4): a(fm(i, k))
        a("v_and_b32 v21, 0xff, v21\nv_cmp_ne_u32 vcc, 0, v21\ns_and_b64 exec, vcc, vcc")
    LM = a.label("h2m"); LW = a.label("h2w"); LX = a.label("h2x")
    assert order[-2:] == ("WO", "WD") and ntail <= 8 and gate == 'T'
    a(f"s_cmp_ge_u32 s33, 28\ns_cselect_b32 s36, {last}, {seg_flag('T')}\ns_mov_b32 s37, {SPIN}")
    a("v_mov_b32 v101, s32\nv_mov_b32 v103, s32")
    def ml_loads():
        a(f"s_mov_b32 exec_hi, 0\nbuffer_load_dwordx4 v[32:35], v118, {WS}, 0 offen {pollpol}\ns_mov_b32 exec_hi, -1")
    def ml_check():
        a("s_mov_b32 exec_hi, 0")
        chk(20, 33, 32, first=True); chk(20, 35, 32)
        a("v_cmp_ne_u32 vcc, 0, v20\ns_mov_b32 exec_hi, -1")
    def fm(i, k):
        w = f"v[{36 + (i & 2)}:{37 + (i & 2)}]"; sel = f"op_sel:[0,{i & 1},0] op_sel_hi:[1,{i & 1},1]"
        if i == 0: return f"v_pk_mul_f32 v[{24 + k}:{25 + k}], v[{64 + k}:{65 + k}], {w} op_sel:[0,0] op_sel_hi:[1,0]"
        return f"v_pk_fma_f32 v[{24 + k}:{25 + k}], v[{64 + 4 * i + k}:{65 + 4 * i + k}], {w}, v[{24 + k}:{25 + k}] {sel}"
    def strip_ops(i):
        r = 64 + 4 * i
        return [f"s_waitcnt vmcnt({3 - i})\nv_xor_b32 v{r}, s56, v{r}"] + [f"v_xor_b32 v{r + k}, s{56 + k}, v{r + k}" for k in (1, 2, 3)] + \
               [f"v_or_b32 v28, v{r}, v{r + 1}" if i == 0 else f"v_or3_b32 v28, v28, v{r}, v{r + 1}", f"v_or3_b32 v28, v28, v{r + 2}, v{r + 3}"]
    wait_gate(20)
    stamp('c', 2, True)
    ml_loads()
    payload_loads()
    for r in woreads: a(r)
    a("s_waitcnt vmcnt(4)")
    ml_check()
    a(f"s_cbranch_vccnz {LM}\n{LW}:")
    with outofline():
        a(f"{LM}:")
        ml_loads()
        a("s_sub_u32 s37, s37, 1\ns_cbranch_scc1 L_end\ns_waitcnt vmcnt(0)")
        ml_check()
        a(f"s_cbranch_vccnz {LM}\ns_branch {LW}")
    stamp('c', 3, True)
    st = strip_ops(0) + strip_ops(1) + strip_ops(2) + strip_ops(3)
    def red32(op, r, t):
        for n in (1, 2, 4, 8):
            a(st.pop(0)); a(st.pop(0))
            a(f"{op}_dpp v{r}, v{r}, v{r} row_ror:{n} row_mask:0xf bank_mask:0xf")
        a(f"v_mov_b32 v{t}, v{r}")
        a(st.pop(0)); a(st.pop(0))
        a(f"v_permlane16_swap_b32 v{r}, v{t}\n{op} v{r}, v{r}, v{t}")
    a("v_mov_b32 v21, v32")
    if not near: a("s_mov_b32 s43, 0")
    red32("v_max_f32", 21, 22)
    a("v_sub_f32 v32, v32, v21\nv_exp_f32 v32, v32")
    a(st.pop(0))
    a("v_mul_f32 v22, v32, v34")
    for i in range(4): a(f"ds_bpermute_b32 v{36 + i}, v123, v32 offset:{32 * i}")
    red32("v_add_f32", 22, 23)
    a("v_rcp_f32 v22, v22")
    while st: a(st.pop(0))
    a("v_readfirstlane_b32 s35, v22\nv_and_b32 v28, 0xff, v28\ns_waitcnt lgkmcnt(0)")
    a(fm(0, 0)); a(fm(0, 2))
    a("v_cmp_ne_u32 vcc, 0, v28")
    for i in range(1, 4): a(fm(i, 0)); a(fm(i, 2))
    stamp('c', 4, True)
    a(f"s_cbranch_vccnz {LG}\n{LD}:")
    with outofline():
        a(f"{LG}:\ns_mov_b64 exec, vcc")
        if h2sleep: a(f"s_sleep {h2sleep}")
        payload_loads()
        a("s_sub_u32 s37, s37, 1\ns_cbranch_scc1 L_end")
        for i in range(4):
            for o in strip_ops(i): a(o)
        a(f"v_and_b32 v28, 0xff, v28\nv_cmp_ne_u32 vcc, 0, v28\ns_cbranch_vccnz {LG}\ns_mov_b64 exec, -1")
        for i in range(4): a(fm(i, 0)); a(fm(i, 2))
        a(f"s_nop 1\ns_branch {LD}")
    stamp('c', 8)
    ex = [f"ds_read_b64 v[28:29], v1 offset:{F_LD}"] + wdreads + hreads
    a(f"""v_permlane32_swap_b32 v24, v25
    v_permlane32_swap_b32 v26, v27
    {ex[0]}
    v_add_f32 v24, v24, v25
    v_add_f32 v26, v26, v27
    {ex[1]}
    {ex[2]}
    v_permlane16_swap_b32 v24, v26
    v_add_f32 v24, v24, v26
    {ex[3]}
    {ex[4]}
    v_add_f32_dpp v24, v24, v24 row_ror:8 row_mask:0xf bank_mask:0xf
    v_mov_b32 v21, 1
    v_mul_f32 v24, s35, v24
    {ex[5]}
    v_cvt_pk_bf16_f32 v24, v24, v24
    {ex[6]}""")
    if near: a(f"ds_read_b32 v31, v18 offset:{F_D}")
    a(f"ds_write_b16 v119, v24\nds_write_b32 v18, v21 offset:{F_O}")
    oreads = [f"ds_read_b128 v[{128 + 4 * s}:{131 + 4 * s}], v120 offset:{64 * s}" for s in range(4)]
    def mm_wd(first):
        for s in range(2): a(f"v_mfma_f32_16x16x32_bf16 v[96:99], v[{56 + 4 * s}:{59 + 4 * s}], v[{48 + 4 * s}:{51 + 4 * s}], {'0' if first and s == 0 else 'v[96:99]'}")
    def mm_wo(first):
        for s in range(4): a(f"v_mfma_f32_16x16x32_bf16 v[96:99], v[{128 + 4 * s}:{131 + 4 * s}], v[{80 + 4 * s}:{83 + 4 * s}], {'0' if first and s == 0 else 'v[96:99]'}")
    a(f"ds_read_b128 v[20:23], v1 offset:{F_O}")
    for r in oreads: a(r)
    a("s_cmp_ge_u32 s33, 28\ns_cbranch_scc1 L_noffn")
    lgk(7)
    a(f"v_cmp_gt_u32 vcc, {last}, v28\nv_cmp_eq_u32 s[62:63], 0, v29\ns_or_b64 vcc, vcc, s[62:63]\ns_cbranch_vccnz L_hw")
    mm_wd(True)
    a("s_waitcnt lgkmcnt(0)\nv_and_b32 v22, v22, v23\nv_bitop3_b32 v20, v20, v21, v22 bitop3:0x80\nv_cmp_eq_u32 vcc, 0, v20\ns_cbranch_vccnz L_ow\nL_or:")
    stamp('c', 9)
    mm_wo(False)
    a("L_mmd:")
    with outofline():
        a("L_ow:")
        lds_spin(F_O, 0, oreads, 'all4', 20)
        a("s_branch L_or\nL_noffn:")
        lds_spin(F_O, 0, oreads, 'all4', 20)
        stamp('c', 9)
        mm_wo(True)
        a("s_branch L_mmd\nL_hw:")
        lds_spin(F_O, 0, oreads, 'all4', 20)
        stamp('c', 9)
        mm_wo(True)
        a(f"s_mov_b32 s40, {SPIN}\nL_hw2:")
        for r in ex: a(r)
        a(f"s_sub_u32 s40, s40, 1\ns_cbranch_scc1 L_end\ns_waitcnt lgkmcnt(0)\nv_cmp_gt_u32 vcc, {last}, v28\nv_cmp_eq_u32 s[62:63], 0, v29\ns_or_b64 vcc, vcc, s[62:63]\ns_cbranch_vccnz L_hw2")
        mm_wd(False)
        a("s_branch L_mmd")
    if near:
        a("v_readfirstlane_b32 s43, v31\ns_cmp_eq_u32 s43, 0\ns_cbranch_scc1 L_dw\nL_dr:")
        with outofline():
            a("L_dw:")
            a(f"s_mov_b32 s40, {SPIN}\nL_dw1:\nds_read_b32 v31, v18 offset:{F_D}\ns_sub_u32 s40, s40, 1\ns_cbranch_scc1 L_end\ns_waitcnt lgkmcnt(0)")
            a("v_readfirstlane_b32 s43, v31\ns_cmp_eq_u32 s43, 0\ns_cbranch_scc1 L_dw1\ns_branch L_dr")
    stamp('c', 10)
    a("v_mov_b32 v100, v96\nv_mov_b32_dpp v102, v96 quad_perm:[1,1,3,3] row_mask:0xf bank_mask:0xf")
    a(f"s_mov_b64 exec, 0x5555\nbuffer_store_dwordx4 v[100:103], v121, {WS}, s43 offen {h3st}")
    if dual: a(f"buffer_store_dwordx4 v[100:103], v121, {WS}, s53 offen {h3st}")
    a("s_mov_b64 exec, -1")
    stamp('c', 11)
    if consffn: a("s_cmp_ge_u32 s33, 28\ns_cbranch_scc0 L_cdone\ns_sub_u32 s38, s33, 28\ns_lshl_b32 s38, s38, 3\ns_add_u32 s38, s38, s6")
    else: a("s_cmp_lt_u32 s2, 32\ns_cbranch_scc0 L_cdone\ns_mov_b32 s38, s2")
    if not h3all: a("s_cmp_eq_u32 s34, 0\ns_cbranch_scc0 L_cdone")
    if near: a(f"ds_read_b32 v31, v1 offset:{F_IE}")
    a("s_mov_b32 s37, s38")
    inbox(35, 37)
    a("v_lshl_add_u32 v24, v0, 4, s35")
    if dual:
        lds_spin(F_IE, 1, [], 'ge', 20)
        a("v_lshrrev_b32 v20, 1, v20\nv_lshl_add_u32 v24, v20, 13, v24")
        if stamps: a("v_readfirstlane_b32 s84, v20")
    a("v_and_b32 v25, 7, v0\ns_lshl_b32 s35, s38, 5\nv_lshl_add_u32 v25, v25, 2, s35")
    srd(44, 8, 1024)
    a("buffer_load_dword v26, v25, s[44:47], 0 offen")
    srd(52, 26, 1024)
    if near: a("s_waitcnt lgkmcnt(0)\nv_readfirstlane_b32 s43, v31")
    L = a.label("h3"); LD = a.label("h3d")
    def h3issue(k):
        for i in range(4): a(f"buffer_load_dwordx4 v[{32 + 16 * k + 4 * i}:{35 + 16 * k + 4 * i}], v24, {WS}, s43 offen offset:{1024 * i} {h3pol}")
    a(f"s_mov_b32 s40, {SPIN}")
    if h3mask:
        h3depth = 0
        a(f"{L}:")
        h3issue(0)
        a("s_sub_u32 s40, s40, 1\ns_cbranch_scc1 L_end")
        for i in range(4):
            a(f"s_waitcnt vmcnt({3 - i})")
            chk(20, 33 + 4 * i, 32, first=(i == 0)); chk(20, 35 + 4 * i, 32)
        a(f"v_cmp_ne_u32 vcc, 0, v20\ns_and_b64 exec, vcc, vcc\ns_cbranch_scc1 {L}\ns_mov_b64 exec, -1")
        a(f"v_add_f32 v22, v32, v36\nv_add_f32 v23, v34, v38\nv_add_f32 v30, v40, v44\nv_add_f32 v31, v42, v46\ns_branch {LD}")
        L = a.label("h3x")
    for k in range(h3depth - 1):
        h3issue(k)
        if h3gap: a(f"s_sleep {h3gap}")
    a(f"{L}:")
    for k in range(h3depth):
        h3issue((k + h3depth - 1) % h3depth)
        a(f"s_waitcnt vmcnt({4 * (h3depth - 1)})")
        b = 32 + 16 * k
        for r in range(b + 1, b + 16, 2): chk(20, r, 32, first=(r == b + 1))
        a(f"v_add_f32 v22, v{b}, v{b + 4}\nv_add_f32 v23, v{b + 2}, v{b + 6}\nv_cmp_ne_u32 vcc, 0, v20")
        a(f"v_add_f32 v30, v{b + 8}, v{b + 12}\nv_add_f32 v31, v{b + 10}, v{b + 14}\ns_cbranch_vccz {LD}")
    a(f"s_sub_u32 s40, s40, 1\ns_cbranch_scc0 {L}\ns_branch L_end\n{LD}:")
    stamp('c', 12)
    a("""v_add_f32 v22, v22, v30
    v_add_f32 v23, v23, v31
    v_lshlrev_b32 v27, 16, v26
    v_and_b32 v28, 0xffff0000, v26
    v_permlane32_swap_b32 v22, v23
    v_add_f32 v22, v22, v23
    v_mov_b32 v23, v22
    v_permlane16_swap_b32 v22, v23
    v_add_f32 v22, v22, v23
    v_add_f32_dpp v22, v22, v22 row_ror:8 row_mask:0xf bank_mask:0xf
    v_mov_b32 v23, v22
    v_permlane32_swap_b32 v22, v23
    v_add_f32 v22, v22, v27
    v_add_f32 v23, v23, v28
    v_cvt_pk_bf16_f32 v22, v22, v23
    s_mov_b64 exec, 0xff
    buffer_store_dword v22, v25, s[52:55], 0 offen""")
    a(f"s_cmp_eq_u32 s38, 0\ns_cbranch_scc0 L_cdone\ns_mov_b64 exec, 1\nv_mov_b32 v25, s32\nbuffer_store_dword v25, off, {WS}, 0")
    a("L_cdone:")
    stamp('c', 13)
    if stamps and near: a(f"s_mov_b64 exec, -1\nds_read_b32 v30, v1 offset:{F_N}\ns_waitcnt lgkmcnt(0)\nv_readfirstlane_b32 s84, v30")
    dump('c')
    a("s_endpgm")
    a.lines += cold
    a("L_end:\ns_endpgm")
    if touch: a("L_t2:\ns_branch L_comp")

    L = a.lines
    ia = L.index("L_aux:"); ic = L.index("L_comp:"); il = L.index("L_loader:")
    ib = next(i for i in range(il, ia) if L[i].strip() == ("L_split:" if xfast else "s_barrier"))
    assert oth_lines[-1].strip() == "s_branch L_comp"
    k = oth_lines.index("L_cw:")
    oth = oth_lines[:oth_lines.index("  s_cbranch_scc0 L_cw")] + ["  s_cbranch_scc1 L_aw"] + oth_lines[k + 1:] + ["L_aw:"] + oth_lines[oth_lines.index("  s_cbranch_scc0 L_cw") + 1:k - 1]
    a.lines = L[:ib + 1] + ["  s_branch L_ld2"] + oth + L[ia:ic] + ["L_ld2:"] + L[ib + 1:ia] + L[ic:]
    head = open(f"cdna_kernels/{NAME}.s.ref").read().split("; Override")[0]
    out = head + f"; Generated by gen/gen.py (hand-designed kernel; see that script for the layout notes)\n; @launch grid=(256,1,1) block=(384,1,1) lds={L_END}\n"
    out += f'.amdgcn_target "amdgcn-amd-amdhsa--gfx950"\n.text\n'
    if align: out += ".p2align 12\n.fill 0x340, 4, 0xbf800000\n"
    out += f'.globl {NAME}_kernel\n.p2align 8\n.type {NAME}_kernel,@function\n'
    out += a.text()
    out += f""".section .rodata,"a"
.p2align 6
.amdhsa_kernel {NAME}_kernel
  .amdhsa_next_free_vgpr 184
  .amdhsa_next_free_sgpr 102
  .amdhsa_accum_offset 184
  .amdhsa_group_segment_fixed_size 0
  .amdhsa_kernarg_size 96
  .amdhsa_user_sgpr_count 2
  .amdhsa_user_sgpr_kernarg_segment_ptr 1
  .amdhsa_system_sgpr_workgroup_id_x 1
  .amdhsa_float_denorm_mode_32 3
.end_amdhsa_kernel
"""
    return out

if __name__ == "__main__":
    kw = eval("dict(" + (sys.argv[2] if len(sys.argv) > 2 else "") + ")")
    open(sys.argv[1], "w").write(gen(**kw))
```

```python
import sys
from asmlib import Asm

NAME = "parallel_sum__sliding_block_cached__swiglu_ffn__decode"

L_K, L_V, L_GU, L_WO, L_WD = 0, 32768, 65536, 81920, 98304
L_WQ = 106496
L_X  = L_WQ + 16384
L_XX = L_X + 1024
L_Q  = L_XX + 2048
L_P  = L_Q + 1280
L_ML = L_P + 1024
L_O  = L_ML + 128
L_H  = L_O + 256
L_F  = L_H + 128
L_END = L_F + 96
F_LD, F_H, F_A, F_IE, F_Q, F_P, F_O, F_D, F_N = 0, 4, 8, 12, 16, 32, 48, 64, 80

W_EP  = 0
W_VOT = 0x800
W_DEC = 0xc00
W_H1  = 0x1000
W_H1B = W_H1 + 256 * 256
W_HB  = W_H1B + 256 * 256
W_ML  = W_HB + 256 * 512
W_H3  = 0x48000
W_H2  = W_H3 + 64 * 4096
assert W_ML + 32 * 512 <= W_H3 and W_H3 % 16384 == 0
W_PR  = W_H2 + 1024 * 512
W_END = W_PR + 0x40000
W_ST  = 0x400000

LOG2E = 0x3fb8aa3b
SCALE = 0x3db504f3
SPIN = 1 << 16
EPOCH_STEP = 0x9e3779b9

def gen(TH=18, stamps=False, order=("Q", "K", "V", "GU", "WO", "WD"), warm=64, warmpol="sc1 nt", NA=24, h3depth=4,
        forceslow=False, h1trig=26, probe=None, abl=(), rot=True, h3gap=3, TH2=None, mimic=True, pfpol='', h1own=False, h3warm='sc1', pre=True, spec=True, sleep=0, prio=3, h2sleep=0, hbsleep=0, boost=24, gate='T', first=True, hbfirst=False, fine=False, local=True, pollpol='sc1', h1wt=True, lazy=4, ntail=8, wt=(), warmat='K', consffn=True, THK=None, THG=None, h3mask=False, lateb=False, both=False, auxfirst=False, align=False, touch=False, hold='Q0', spf=False, pk=True, h1warm=None, dip=None, dip2=None, kearly=True, look2=True, nap0=0, nap1=0, hbwarm=None, refine=True, h3pol='sc1', h3st='sc1', h3all=False, qloop=4, gx=0, light='hi', xboost=0x55, look1=False, pks=True, xfast=True, warmst=False, gnap=0, dual=False, dnap=2, dforce=None, probe_diag=0, h3x=0, near=True, gap=0, prpol='nt', evdbg=False, vat=None, vpol='sc1', dat='V', dpol='sc1', vst='sc1', vset=1, vsh=2, wbl=None, stpol='', prew=(), warmx=None, bseg=('Q', 'K', 'V', 'GU', 'WO', 'WD'), xb2=0x55, adapt=None, poll1=None, h3cf=True, outpol='', outwarm=None, joint=False, early=False, anap=0, pcdbg=False):
    if not local: warm = 0
    a = Asm()
    WS = "s[48:51]"
    WSZ = W_ST + 256 * 512 if stamps else W_END
    diag = bool(stamps or probe)

    def stamp(role, idx, f=False):
        if fine and role == 'c' and 1 <= idx <= 6 and not f: return
        if f and not fine: return
        if probe and (idx == 0 or probe == (role, idx)):
            a(f"s_memrealtime s[{96 if idx == 0 else 98}:{97 if idx == 0 else 99}]")
            if idx == 0: a("s_waitcnt lgkmcnt(0)\ns_mov_b32 s98, s96")
        if stamps and (stamps is True or idx in (0, 13) or (stamps == 'l' and (role, idx) in (('l', 1), ('l', 7), ('l', 2), ('l', 3), ('l', 9), ('c', 11)))):
            a(f"s_memtime s[{64 + 2 * idx}:{65 + 2 * idx}]")
            if idx == 0: a("s_memrealtime s[94:95]")
            if (role, idx) in (('l', 9), ('c', 13), ('a', 9)): a("s_memrealtime s[92:93]")
    def dump(role):
        if probe and probe[0] == role:
            L = a.label("pad")
            a("s_waitcnt lgkmcnt(0)\ns_sub_u32 s98, s98, s96\ns_mul_i32 s98, s98, 3\ns_add_u32 s96, s96, s98\ns_add_u32 s96, s96, 1500")
            a(f"{L}:\ns_sleep 4\ns_memrealtime s[98:99]\ns_waitcnt lgkmcnt(0)\ns_sub_u32 s35, s98, s96\ns_cmp_lt_i32 s35, 0\ns_cbranch_scc1 {L}")
        if not stamps or (stamps == 'min' and role != 'c') or (stamps == 'l' and role == 'a'): return
        a("s_waitcnt lgkmcnt(0)")
        a(f"s_lshl_b32 s60, s2, 9\ns_lshl_b32 s61, s3, 6\ns_add_u32 s60, s60, s61\ns_add_u32 s60, s60, {W_ST}")
        a("s_mov_b64 exec, 1\nv_mov_b32 v126, s60")
        for i in range(16):
            a(f"v_mov_b32 v127, s{64 + 2 * i}\nbuffer_store_dword v127, v126, {WS}, 0 offen offset:{4 * i}")
    cold = []
    class outofline:
        def __enter__(self): self.keep = a.lines; a.lines = []
        def __exit__(self, *x): cold.extend(a.lines); a.lines = self.keep
    def srd(d, p, size):
        a(f"s_mov_b32 s{d}, s{p}\ns_and_b32 s{d + 1}, s{p + 1}, 0xffff\ns_mov_b32 s{d + 2}, {size}\ns_mov_b32 s{d + 3}, 0x20000")
    events = ["X"]
    for nm in order:
        if nm == "K" and h1trig < 32: events.append("Kpart")
        if nm in ("V", "GU", "Q"): events += [nm + "0", nm + "1", nm + "2"]
        events.append(nm)
    events.insert(len(events) - 1 if ntail <= 8 else len(events) - 2, "T")
    def seg_flag(name):
        return events.index(name) + 1
    def lgk(n):
        a(f"s_waitcnt lgkmcnt({0 if diag else n})")
    def st2(ops, name=None):
        if not local or name in wt:
            for o in ops: a(o + " sc1" if o.startswith("buffer_store") else o)
            return
        L1 = a.label("slow"); L2 = a.label("st")
        a(f"s_cmp_eq_u32 s41, 0\ns_cbranch_scc1 {L1}")
        for o in ops: a(o + " " + stpol if o.startswith("buffer_store") else o)
        a(f"{L2}:")
        with outofline():
            a(f"{L1}:\ns_nop 1")
            for o in ops: a(o + " sc1" if o.startswith("buffer_store") else o)
            a(f"s_nop 1\ns_branch {L2}")
    def lds_spin(flag_off, want, reads, kind, tmp, nap=0):
        if not spec and len(reads) > 4 and kind == 'ge':
            lds_spin(flag_off, want, [], kind, tmp)
            for r in reads: a(r)
            a("s_waitcnt lgkmcnt(0)")
            return
        L = a.label("spin")
        a(f"s_mov_b32 s40, {SPIN}\n{L}:")
        if sleep and kind == 'ge': a(f"s_sleep {sleep}")
        elif nap: a(f"s_sleep {nap}")
        a(f"ds_read_b32 v{tmp}, v1 offset:{flag_off}" if kind == 'ge' else f"ds_read_b128 v[{tmp}:{tmp + 3}], v1 offset:{flag_off}")
        for r in reads: a(r)
        a("s_sub_u32 s40, s40, 1\ns_cbranch_scc1 L_end")
        a("s_waitcnt lgkmcnt(0)")
        if kind == 'ge':
            a(f"v_cmp_gt_u32 vcc, {want}, v{tmp}")
        else:
            a(f"v_and_b32 v{tmp + 2}, v{tmp + 2}, v{tmp + 3}\nv_bitop3_b32 v{tmp}, v{tmp}, v{tmp + 1}, v{tmp + 2} bitop3:0x80")
            a(f"v_cmp_eq_u32 vcc, 0, v{tmp}")
        a(f"s_cbranch_vccnz {L}")
    def wait_gate(tmp):
        if gate == 'IE': lds_spin(F_IE, 1, [], 'ge', tmp)
        elif gate == 'S': lds_spin(F_LD, "s38", [], 'ge', tmp)
        elif gate == 'T': lds_spin(F_LD, "s36", [], 'ge', tmp, nap=gnap)
        elif gate: lds_spin(F_LD, seg_flag(gate), [], 'ge', tmp)
        a(f"s_mov_b32 s40, {SPIN}")
    def inbox(d, cc):
        a(f"s_and_b32 s{d}, s{cc}, 1\ns_andn2_b32 s{cc}, s{cc}, 1\ns_lshl1_add_u32 s{d}, s{cc}, s{d}\ns_lshl_b32 s{d}, s{d}, 12\ns_add_u32 s{d}, s{d}, {W_H3 + h3x - (0x2000 if near else 0)}")
    def pick(r, t):
        a(f"s_bfe_u32 s{t}, s{r}, 0x80008\ns_and_b32 s{r}, s{r}, 0xff\ns_cmp_gt_u32 s{t}, s{r}\ns_cselect_b32 s{r}, 0x2000, 0")
    def tagbytes(dst, src):
        a(f"s_and_b32 s{dst}, s{src}, 0xff\ns_bfe_u32 s{dst + 1}, s{src}, 0x80008\ns_bfe_u32 s{dst + 2}, s{src}, 0x80010\ns_lshr_b32 s{dst + 3}, s{src}, 24")
    def chk(acc, r, t, first=False):
        a(f"v_xor_b32 v{acc}, s{t}, v{r}" if first else f"v_bitop3_b32 v{acc}, v{acc}, v{r}, s{t} bitop3:0xf6")
    def strip(acc, regs, first=False):
        for k, r in enumerate(regs): a(f"v_xor_b32 v{r}, s{56 + (k & 3)}, v{r}")
        for k in range(0, len(regs), 2):
            a(f"v_or_b32 v{acc}, v{regs[k]}, v{regs[k + 1]}" if first and k == 0 else f"v_or3_b32 v{acc}, v{acc}, v{regs[k]}, v{regs[k + 1]}")
    def tags():
        if not local:
            a(f"s_add_u32 s32, s32, {EPOCH_STEP:#x}\ns_mov_b32 s42, s32")
            return
        a(f"s_add_u32 s32, s32, {EPOCH_STEP:#x}\ns_getreg_b32 s42, hwreg(HW_REG_XCC_ID, 0, 4)\ns_add_u32 s42, s42, 1\ns_mul_i32 s42, s42, 0x01010101\ns_xor_b32 s42, s42, s32")

    ids = """s_and_b32 s6, s5, 7
    s_lshr_b32 s7, s5, 3"""
    if light == 'hi': pg = "s_mov_b32 s59, s4"
    else: pg = "s_lshr_b32 s59, s4, 1\ns_bitcmp" + ("0" if light == 'even' else "1") + "_b32 s4, 0\ns_cselect_b32 s33, 4, 0\ns_add_u32 s59, s59, s33"
    ids2 = pg + f"""
    s_lshl3_add_u32 s33, s7, s59
    v_mov_b32 v1, {L_F}"""
    a(f"{NAME}_kernel:")
    stamp('all', 0)
    a("""s_cmp_ge_u32 s2, 256
    s_cbranch_scc1 L_end
    s_load_dwordx16 s[8:23], s[0:1], 0
    s_load_dwordx8 s[24:31], s[0:1], 64
    v_readfirstlane_b32 s3, v0
    s_and_b32 s4, s2, 7
    s_lshr_b32 s5, s2, 3""")
    if gx: a(f"s_xor_b32 s4, s4, {gx}")
    a(ids)
    a("s_cmp_ge_u32 s3, 64\ns_cbranch_scc1 L_oth")
    a("L_loader:")
    if adapt: a("s_memtime s[60:61]")
    a(f"s_getpc_b64 s[36:37]\nL_pc:\nv_lshlrev_b32 v3, 7, v0\nglobal_load_dword v30, v3, s[36:37] {pfpol}\nv_add_u32 v3, 0x2000, v3\nv_min_u32 v3, L_end-L_pc, v3\nglobal_load_dword v30, v3, s[36:37] {pfpol}")
    a("""v_lshlrev_b32 v2, 4, v0
    v_lshrrev_b32 v6, 3, v0
    v_and_b32 v7, 7, v0
    v_lshlrev_b32 v15, 17, v6
    v_lshl_add_u32 v15, v7, 4, v15
    s_lshl_b32 s35, s7, 13
    s_lshl3_add_u32 s35, s4, s35
    s_add_u32 s35, s35, s6
    s_lshl_b32 s39, s35, 7
    s_mov_b32 s46, 4194304
    s_mov_b32 s47, 0x20000""")
    a(f"s_movk_i32 s54, 0x400\ns_mov_b32 s55, s47\ns_mov_b32 m0, {L_X}\ns_setprio {prio}")
    if qloop: a(f"s_add_u32 s38, s39, 0x20000")
    a(f"""s_waitcnt lgkmcnt(0)
    s_mov_b32 s52, s8
    s_and_b32 s53, s9, 0xffff
    buffer_load_dwordx4 v2, s[52:55], 0 offen lds
    s_mov_b32 m0, {L_WQ}
    s_mov_b32 s44, s14
    s_and_b32 s45, s15, 0xffff""")
    stamp('l', 1)
    if qloop: a("L_ql:")
    for i in range(qloop or 16):
        a("buffer_load_dwordx4 v15, s[44:47], s39 offen nt lds\ns_addk_i32 m0, 0x400\ns_addk_i32 s39, 0x2000")
    if qloop: a("s_cmp_lt_u32 s39, s38\ns_cbranch_scc1 L_ql")
    a(ids2)
    if diag: a("s_mov_b32 s3, 1")
    if boost:
        a("s_cmp_eq_u32 s6, 3\ns_cselect_b64 vcc, -1, 0")
        if xboost is not None: a(f"s_and_b32 s35, s2, 7\ns_bitcmp1_b32 {xboost}, s35\ns_cselect_b64 vcc, -1, vcc")
    if adapt: a("s_mov_b64 s[100:101], vcc")
    main_lines = a.lines; a.lines = []
    a("L_oth:\ns_lshr_b32 s3, s3, 6\nv_and_b32 v0, 63, v0")
    a(ids2)
    a("s_cmp_eq_u32 s3, 1\ns_cbranch_scc0 L_cw")
    if diag: a("s_mov_b32 s3, 0")
    a("v_lshlrev_b32 v2, 4, v0\ns_waitcnt lgkmcnt(0)\ns_load_dword s32, s[30:31], 0\ns_barrier\ns_branch L_aux")
    a("L_cw:\nv_mov_b32 v4, 0\nv_lshl_add_u32 v5, v0, 2, v1\ns_mov_b64 exec, 0xfffff\nds_write_b32 v5, v4\ns_mov_b64 exec, -1")
    a("s_waitcnt lgkmcnt(0)")
    if near:
        if vset < 4: a(f"s_cmp_lt_u32 s7, {vset}\ns_cselect_b32 s35, s3, 0\ns_cmp_eq_u32 s35, 5\ns_cbranch_scc0 L_nprb")
        else: a("s_cmp_eq_u32 s3, 5\ns_cbranch_scc0 L_nprb")
        a("s_load_dword s32, s[30:31], 0\ns_and_b32 s35, s6, 1\ns_andn2_b32 s36, s2, 63\ns_add_u32 s36, s36, s2\ns_lshl_b32 s36, s36, 7")
        srd(48, 30, WSZ)
        a(f"s_lshl_b32 s37, s35, 13\ns_add_u32 s36, s36, s37\ns_add_u32 s36, s36, {W_PR}\ns_xor_b32 s37, s36, 0x2000\ns_mov_b64 exec, 1")
        if 'nopr' in abl: a("s_cmp_ge_u32 s33, 28\ns_cbranch_scc0 L_npr2")
        a(f"buffer_load_dword v176, off, {WS}, s36 {prpol}\nbuffer_load_dword v177, off, {WS}, s37 {prpol}")
        if 'nopr' in abl: a("L_npr2:")
        a("s_getreg_b32 s37, hwreg(HW_REG_XCC_ID, 2, 1)\ns_xnor_b32 s35, s35, s37\ns_and_b32 s35, s35, 1")
        a(f"s_lshl3_add_u32 s38, s33, s6\ns_lshl_b32 s38, s38, {vsh}\ns_barrier\ns_waitcnt vmcnt(1)")
        if gap: a(f"s_sleep {gap}")
        a("s_getreg_b32 s36, hwreg(HW_REG_IB_STS, 0, 4)")
        if dforce is not None: a(f"s_mov_b32 s36, 1\ns_mov_b32 s35, {dforce}")
        a(f"s_lshl_b32 s36, s36, s35\ns_waitcnt lgkmcnt(0)\ns_add_u32 s32, s32, {EPOCH_STEP:#x}\ns_xor_b32 s36, s36, s32\nv_mov_b32 v22, s36")
        if 'nost' in abl: a("s_cmp_ge_u32 s33, 28\ns_cbranch_scc0 L_nst2")
        a(f"buffer_store_dword v22, off, {WS}, s38 offset:{W_VOT} {vst}")
        if 'nost' in abl: a("L_nst2:")
        a("s_mov_b64 exec, -1\ns_branch L_prd\nL_nprb:")
    a("s_barrier\nL_prd:")
    if nap0: a(f"s_sleep {nap0}")
    elif hold: lds_spin(F_LD, seg_flag(hold), [], 'ge', 20, nap=4)
    a("s_branch L_comp")
    oth_lines = a.lines; a.lines = main_lines
    def k_setup():
        a("""v_and_b32 v2, 15, v0
        v_lshrrev_b32 v3, 4, v0
        v_xor_b32 v4, v2, v3
        v_lshlrev_b32 v4, 4, v4
        v_lshlrev_b32 v5, 8, v3""")
        for i in range(4): a(f"v_xor_b32 v{8 + i}, {64 * i}, v4\nv_add_u32 v{8 + i}, v{8 + i}, v5")
        a("""s_lshl_b32 s35, s4, 24
        s_lshl_b32 s36, s5, 15
        s_add_u32 s35, s35, s36
        s_add_u32 s35, s35, 15728640""")
        a("s_lshl_b32 s40, s4, 12" if rot else "s_mov_b32 s40, 0")
        a("""s_add_u32 s44, s10, s35
        s_addc_u32 s45, s11, 0
        s_and_b32 s45, s45, 0xffff
        s_mov_b32 s46, 32768
        s_add_u32 s12, s12, s35
        s_addc_u32 s13, s13, 0""")
    nwarm = 1 if warm else 0
    def late_setup():
        a("""v_lshrrev_b32 v4, 2, v2
        v_xor_b32 v4, v4, v3
        v_lshl_add_u32 v12, v4, 6, v5
        v_and_b32 v4, 3, v0
        v_lshl_add_u32 v12, v4, 4, v12
        v_mul_u32_u24 v13, 28672, v6
        v_lshl_add_u32 v13, v7, 4, v13
        v_lshlrev_b32 v4, 1, v3
        v_xor_b32 v4, v4, v7
        v_lshlrev_b32 v4, 4, v4
        v_lshl_add_u32 v14, v6, 10, v4
        s_mul_i32 s41, s6, 229376
        s_lshl_b32 s37, s33, 7
        s_add_u32 s41, s41, s37
        s_lshl_b32 s42, s4, 19
        s_lshl_b32 s38, s7, 17
        s_add_u32 s42, s42, s38
        s_lshl_b32 s38, s6, 7
        s_add_u32 s42, s42, s38
        s_lshl_b32 s43, s33, 16
        s_add_u32 s43, s43, s38""")
        srd(48, 30, WSZ)
        if h3warm is not None:
            a("s_sub_u32 s37, s33, 28\ns_lshl3_add_u32 s37, s37, s6")
            inbox(36, 37)
            a("v_lshl_add_u32 v19, v0, 6, s36")
        if warm:
            a(f"s_lshl_b32 s36, s4, 7\ns_add_u32 s36, s36, s5\ns_lshl_b32 s37, s36, 9\ns_add_u32 s37, s37, {W_H2}")
            a("v_lshrrev_b32 v16, 3, v0\nv_lshlrev_b32 v16, 14, v16\nv_lshl_add_u32 v16, v7, 6, v16\nv_add_u32 v16, s37, v16")
            a(f"s_lshl_b32 s37, s36, 4\ns_add_u32 s37, s37, {W_ML}\nv_and_b32 v17, 3, v0\nv_lshlrev_b32 v17, 9, v17\nv_add_u32 v17, s37, v17")
            a(f"s_lshl_b32 s36, s4, 2\ns_add_u32 s36, s36, s7\ns_lshl_b32 s36, s36, 3\ns_add_u32 s36, s36, s6\ns_lshl_b32 s36, s36, 9\ns_add_u32 s36, s36, {W_HB}")
            a("v_lshl_add_u32 v18, v7, 6, s36\nv_cmp_gt_u32 s[56:57], 40, v0\nv_cndmask_b32 v17, v17, v18, s[56:57]\nv_cmp_gt_u32 s[56:57], 32, v0\nv_cndmask_b32 v16, v17, v16, s[56:57]")
    def seg_loads(name):
        r = []
        if name in ("K", "V"):
            base = L_K if name == "K" else L_V
            for i in range(32):
                v = f"v{8 + ((i >> 1) & 3)}" if name == "K" else "v12"
                r.append((f"s_mov_b32 m0, {base + 1024 * i}" if i % 4 == 0 else None, f"{v}, s[44:47], s40 offen offset:{1024 * (i & 3)}",
                          "s_addk_i32 s40, 0x1000\ns_and_b32 s40, s40, 0x7fff" if i % 4 == 3 else None))
        if name == "Q":
            for i in range(16): r.append((f"s_mov_b32 m0, {L_WQ + 1024 * i}", "v15, s[44:47], s39 offen", "s_addk_i32 s39, 0x2000"))
        if name == "GU":
            for i in range(16): r.append((f"s_mov_b32 m0, {L_GU + 1024 * i}", f"v13, s[{44 + 8 * (i & 1)}:{47 + 8 * (i & 1)}], s41 offen", "s_addk_i32 s41, 0xe00" if i & 1 else None))
        if name == "WO":
            for i in range(16): r.append((f"s_mov_b32 m0, {L_WO + 1024 * i}", "v14, s[44:47], s42 offen", "s_addk_i32 s42, 0x2000"))
        if name == "WD":
            for i in range(8): r.append((f"s_mov_b32 m0, {L_WD + 1024 * i}", "v14, s[44:47], s43 offen", "s_addk_i32 s43, 0x2000"))
        return r
    def seg_setup(name):
        if name == "K": k_setup()
        if name == "V": srd(44, 12, 32768)
        if name == "GU": srd(44, 20, 1835008); srd(52, 22, 1835008)
        if name == "GU" and xb2 is not None: a(f"s_and_b32 s35, s2, 7\ns_bitcmp1_b32 {xb2}, s35\ns_cselect_b64 {'s[100:101]' if adapt else 'vcc'}, -1, 0")
        if name == "WO": srd(44, 16, 4194304)
        if name == "WD": srd(44, 24, 1835008)
    def signal(f):
        a(f"v_mov_b32 v20, {f}\nds_write_b32 v1, v20 offset:{F_LD}")
        if events[f - 1] in order: stamp('l', 1 + order.index(events[f - 1]) if events[f - 1] != 'Q' else 7)
        if adapt and events[f - 1] in adapt:
            a(f"s_memtime s[62:63]\ns_waitcnt lgkmcnt(0)\ns_sub_u32 s62, s62, s60\ns_cmp_gt_u32 s62, {int(adapt[events[f - 1]] * 2.26)}\ns_cselect_b64 vcc, -1, s[100:101]")
    def emit(segs, n0, pend, final):
        n = n0
        for name in segs:
            seg_setup(name)
            th = TH if name in ("Q", "K", "V") or TH2 is None else TH2
            if name in ("Q", "K") and THK: th = THK
            if name == "GU" and THG: th = THG
            lo = seg_loads(name)
            th0 = th
            if name == "Q":
                for c in range(4): pend.append((n + 4 * c + 4, seg_flag("Q" + (str(c) if c < 3 else ""))))
                n += 16
                continue
            for idx, (m0, ad, inc) in enumerate(lo):
                if m0: a(m0)
                th = th0
                for d_ in (dip, dip2):
                    if d_ and d_[0] <= n < d_[1]: th = d_[2]
                if n == (THK or TH) + npre:
                    a("s_barrier")
                    if xfast:
                        a(f"s_waitcnt vmcnt({n - npre})")
                        signal(pend.pop(0)[1])
                    else: late_setup()
                    a("L_split:")
                if xfast and n == (THK or TH) + npre + 4: late_setup()
                if n >= th and n >= (THK or TH) + npre:
                    sig = pend and pend[0][0] <= n - (th - 1)
                    if boost and name in bseg and not sig and th == th0:
                        L = a.label("bo")
                        a(f"s_cbranch_vccnz {L}\ns_waitcnt vmcnt({th - 1})\n{L}:\ns_waitcnt vmcnt({boost - 1})")
                    else:
                        a(f"s_waitcnt vmcnt({th - 1})")
                    while pend and pend[0][0] <= n - (th - 1):
                        signal(pend.pop(0)[1])
                a(f"buffer_load_dwordx4 {ad} nt lds")
                if inc: a(inc)
                n += 1
                if name in ("V", "GU", "Q") and (idx + 1) % (len(lo) // 4) == 0 and idx + 1 < len(lo):
                    pend.append((n, seg_flag(name + str((idx + 1) // (len(lo) // 4) - 1))))
                if name == "K" and h1trig < 32 and idx + 1 == h1trig: pend.append((n, seg_flag("Kpart")))
            pend.append((n, seg_flag(name)))
            if name == "Q" and h1warm is not None:
                srd(52, 30, WSZ)
                a(f"s_lshl_b32 s35, s4, 5\ns_lshl_b32 s36, s6, 2\ns_add_u32 s35, s35, s36\ns_add_u32 s35, s35, s7\ns_lshl_b32 s35, s35, 8\ns_add_u32 s35, s35, {W_H1}")
                a(f"v_lshlrev_b32 v23, 6, v0\ns_mov_b64 exec, 15\nbuffer_load_dword v24, v23, s[52:55], s35 offen {h1warm}\ns_mov_b64 exec, -1")
                n += 1
            if name == warmat:
                if nwarm and warmx:
                    a(f"s_mov_b32 exec_lo, {warmx & 0xffffffff}\ns_mov_b32 exec_hi, {warmx >> 32}\nbuffer_load_dword v21, v16, {WS}, 0 offen {warmpol}\ns_mov_b64 exec, -1")
                    n += 1
                elif nwarm:
                    a(f"s_mov_b32 exec_hi, {0xfff if hbwarm is None else 0xf00}\n" + (f"v_mov_b32 v21, 0\nbuffer_store_dword v21, v16, {WS}, 0 offen" if warmst else f"buffer_load_dword v21, v16, {WS}, 0 offen {warmpol}") + "\ns_mov_b32 exec_hi, -1")
                    n += 1
                    if hbwarm:
                        a(f"s_mov_b32 exec_lo, 0\ns_mov_b32 exec_hi, 0xff\nbuffer_load_dword v21, v16, {WS}, 0 offen {hbwarm}\ns_mov_b64 exec, -1")
                        n += 1
                if h3warm is not None and not consffn:
                    a(f"buffer_load_dword v22, v19, {WS}, 0 offen {h3warm}")
                    n += 1
        if final:
            pend.append((n - ntail, seg_flag("T"))); pend.sort()
            pend[:] = sorted(set((e, len(events) if e == n else max(f for (e2, f) in pend if e2 <= e)) for (e, f) in pend))
            if gate == 'IE': a(f"v_mov_b32 v20, 1\nds_write_b32 v1, v20 offset:{F_IE}")
            stamp('l', 8)
            while pend:
                e, f = pend.pop(0)
                a(f"s_waitcnt vmcnt({n - e})")
                signal(f)
                if events[f - 1] == "T": stamp('l', 5)
        return n
    assert order[0] == "Q" and 16 < TH < 48
    npre = 3
    ffn = ("GU", "WD")
    k = min(order.index(x) for x in ffn)
    pend = [(npre, seg_flag("X"))]
    n = emit(order[:k], npre, pend, False)
    a("s_cmp_ge_u32 s33, 28\ns_cbranch_scc1 L_ldb")
    emit(order[k:], n, list(pend), True)
    a("s_branch L_lde\nL_ldb:")
    emit([x for x in order[k:] if x not in ffn], n, list(pend), True)
    if outwarm is not None:
        srd(52, 26, 1024)
        a(f"s_sub_u32 s37, s33, 28\ns_lshl3_add_u32 s37, s37, s6\ns_lshl_b32 s37, s37, 5\ns_mov_b64 exec, 1\nbuffer_load_dword v23, off, s[52:55], s37 {outwarm}\ns_mov_b64 exec, -1")
    if h3warm is not None and near:
        a(f"ds_read_b32 v22, v1 offset:{F_IE}\ns_waitcnt lgkmcnt(0)\nv_readfirstlane_b32 s36, v22\ns_cmp_eq_u32 s36, 0\ns_cbranch_scc1 L_lde")
        a(f"buffer_load_dword v22, v19, {WS}, s36 offen {h3warm}")
    elif h3warm is not None and consffn: a(f"buffer_load_dword v22, v19, {WS}, 0 offen {h3warm}")
    if dual:
        a(f"s_movk_i32 s36, 0x2000\nbuffer_load_dword v23, v19, {WS}, s36 offen {h3warm}\ns_waitcnt vmcnt(1)\ns_sleep {dnap}\ns_getreg_b32 s36, hwreg(HW_REG_IB_STS, 0, 4)")
        a(f"s_cmp_eq_u32 s36, 0\ns_cselect_b32 s36, 2, 1")
        if dforce: a(f"s_mov_b32 s36, {dforce}")
        a(f"v_mov_b32 v20, s36\nds_write_b32 v1, v20 offset:{F_IE}")
    if touch: a("s_branch L_lde\nL_t1:\ns_branch L_t2")
    a("L_lde:")
    stamp('l', 9)
    dump('l')
    a("s_endpgm")

    a("L_aux:")
    stamp('a', 1)
    srd(48, 30, WSZ)
    a("v_lshrrev_b32 v3, 3, v0\nv_and_b32 v4, 7, v0")
    a("""v_and_b32 v6, 1, v0
    v_lshlrev_b32 v6, 4, v6
    v_mov_b32 v7, 0xffff
    v_lshlrev_b32 v6, v6, v7
    v_bfe_u32 v7, v0, 1, 2""")
    for d in range(4): a(f"v_cmp_eq_u32 vcc, {d}, v7\nv_cndmask_b32 v{12 + d}, 0, v6, vcc")
    a(f"v_lshlrev_b32 v6, 5, v0\nv_add_u32 v6, {L_XX}, v6")
    a(f"s_lshl_b32 s35, s7, 9\ns_add_u32 s35, s35, {L_XX}\nv_lshl_add_u32 v7, v3, 6, s35")
    a(f"v_add_u32 v25, {L_X}, v2")
    lds_spin(F_LD, seg_flag("X"), ["ds_read_b128 v[8:11], v25"], 'ge', 24)
    stamp('a', 2)
    for k in range(4): a(f"v_lshlrev_b32 v{16 + 2 * k}, 16, v{8 + k}\nv_and_b32 v{17 + 2 * k}, 0xffff0000, v{8 + k}")
    def wave_sum(r, t):
        for n in (8, 4, 2, 1): a(f"v_add_f32_dpp v{r}, v{r}, v{r} row_ror:{n} row_mask:0xf bank_mask:0xf")
        a(f"v_mov_b32 v{t}, v{r}\nv_permlane16_swap_b32 v{r}, v{t}\nv_add_f32 v{r}, v{r}, v{t}")
        a(f"v_mov_b32 v{t}, v{r}\nv_permlane32_swap_b32 v{r}, v{t}\nv_add_f32 v{r}, v{r}, v{t}")
    a("""v_add_f32 v24, v16, v17
    v_add_f32 v25, v18, v19
    v_add_f32 v26, v20, v21
    v_add_f32 v27, v22, v23
    v_add_f32 v24, v24, v25
    v_add_f32 v26, v26, v27
    v_add_f32 v24, v24, v26""")
    wave_sum(24, 25)
    a("v_mul_f32 v24, 0x3b000000, v24")
    for k in range(8): a(f"v_sub_f32 v{32 + k}, v{16 + k}, v24")
    a("v_mul_f32 v26, v32, v32\nv_mul_f32 v27, v33, v33")
    for k in range(2, 8): a(f"v_fmac_f32 v{26 + (k & 1)}, v{32 + k}, v{32 + k}")
    a("v_add_f32 v26, v26, v27\nv_cvt_pk_bf16_f32 v24, 0, v24")
    wave_sum(26, 25)
    for k in range(8): a(f"v_sub_f32 v{16 + k}, v{16 + k}, v24")
    a("""v_mul_f32 v26, 0x3b000000, v26
    v_cvt_pk_bf16_f32 v26, 0, v26
    v_add_f32 v26, 0x3727c5ac, v26
    v_cvt_pk_bf16_f32 v26, 0, v26
    v_sqrt_f32 v26, v26""")
    for k in range(8): a(f"v_cvt_pk_bf16_f32 v{16 + k}, 0, v{16 + k}")
    a("v_cvt_pk_bf16_f32 v26, 0, v26\nv_rcp_f32 v27, v26")
    for k in range(8): a(f"v_mul_f32 v{32 + k}, v{16 + k}, v27")
    for k in range(8): a(f"v_fma_f32 v{16 + k}, -v{32 + k}, v26, v{16 + k}")
    for k in range(8): a(f"v_fmac_f32 v{32 + k}, v{16 + k}, v27")
    for k in range(8): a(f"v_cvt_pk_bf16_f32 v{32 + k}, v{32 + k}, v{32 + k}")
    a("ds_write_b128 v6, v[32:35]\nds_write_b128 v6, v[36:39] offset:16")
    for k in range(4): a(f"ds_read_b128 v[{16 + 4 * k}:{19 + 4 * k}], v7 offset:{16 * k}")
    a("""v_lshlrev_b32 v5, 5, v4
    v_bfe_u32 v6, v0, 4, 1
    v_lshl_add_u32 v5, v6, 4, v5
    v_mov_b32 v61, v5
    v_lshrrev_b32 v6, 5, v0
    v_lshl_add_u32 v5, v6, 3, v5
    s_lshl_b32 s35, s4, 5
    s_lshl_b32 s36, s6, 2
    s_add_u32 s35, s35, s36
    s_add_u32 s35, s35, s7
    s_lshl_b32 s35, s35, 8""")
    a(f"s_add_u32 s35, s35, {W_H1}\nv_add_u32 v9, s35, v61\nv_mov_b32 v56, 0xff\ns_mov_b32 s43, {W_H1B - W_H1}")
    a("s_waitcnt lgkmcnt(0)")
    stamp('a', 3)
    tags()
    a("v_mov_b32 v57, s42\nv_lshrrev_b32 v58, 8, v57\nv_lshrrev_b32 v59, 16, v57\nv_lshrrev_b32 v60, 24, v57")
    a(f"v_add_u32 v11, {L_WQ}, v2")
    for i in range(16):
        for d in range(4): a(f"v_and_b32 v{128 + 4 * (i & 7) + d}, v{16 + i}, v{12 + d}")
        if i == 7 or i == 11 or i == 15:
            for c in ((0, 1) if i == 7 else (2,) if i == 11 else (3,)):
                lds_spin(F_LD, seg_flag("Q" + (str(c) if c < 3 else "")), [f"ds_read_b128 v[{64 + 4 * k}:{67 + 4 * k}], v11 offset:{1024 * k}" for k in range(4 * c, 4 * c + 4)], 'ge', 62)
                for k in range(4 * c, 4 * c + 4):
                    a(f"v_mfma_f32_16x16x32_bf16 v[32:35], v[{128 + 4 * (k & 7)}:{131 + 4 * (k & 7)}], v[{64 + 4 * k}:{67 + 4 * k}], {'0' if k == 0 else 'v[32:35]'}")
    stamp('a', 4)
    a("""v_permlane32_swap_b32 v32, v34
    v_permlane32_swap_b32 v33, v35
    v_add_f32_dpp v48, v34, v32 row_shl:8 row_mask:0xf bank_mask:0xf
    v_add_f32_dpp v49, v35, v33 row_shl:8 row_mask:0xf bank_mask:0xf
    v_add_u32 v48, 0x80, v48
    v_add_u32 v49, 0x80, v49
    v_mov_b32 v50, v48
    v_mov_b32 v51, v49
    v_permlane32_swap_b32 v48, v50
    v_permlane32_swap_b32 v49, v51
    s_mov_b64 exec, 0x00ff00ff""")
    for k in range(4): a(f"v_bfi_b32 v{52 + k}, v56, v{57 + k}, v{48 + k}")
    a(f"buffer_store_dwordx4 v[52:55], v9, {WS}, 0 offen" + ("" if local and not h1wt else " sc1"))
    if 'noh1b' not in abl and local:
        a("v_mov_b32 v57, s32\nv_lshrrev_b32 v58, 8, v57\nv_lshrrev_b32 v59, 16, v57\nv_lshrrev_b32 v60, 24, v57")
        for k in range(4): a(f"v_bfi_b32 v{160 + k}, v56, v{57 + k}, v{48 + k}")
        if lateb: a("v_mov_b32 v164, v9")
        else: a(f"buffer_store_dwordx4 v[160:163], v9, {WS}, s43 offen sc1")
    a(f"s_mov_b64 exec, -1\nv_mov_b32 v20, 1\nds_write_b32 v1, v20 offset:{F_A}")
    stamp('a', 5)
    a("L_aux2:")
    def dec_load(pol):
        a(f"s_mov_b64 exec, 1\nbuffer_load_dwordx4 v[44:47], off, {WS}, s33 offset:{W_DEC} {pol}\ns_mov_b64 exec, -1")
    def dec_first():
        a("s_not_b32 s37, s32\nv_mov_b32 v44, s37\ns_lshl_b32 s33, s6, 4")
        lds_spin(F_LD, seg_flag(dat), [], 'ge', 28, nap=lazy)
        dec_load(dpol)
    def dec_use(tag, cnt):
        a(f"s_mov_b32 s40, {SPIN}\ns_waitcnt vmcnt({cnt})\nL_vc0{tag}:\ns_mov_b64 exec, 1")
        for k in range(4): a(f"v_xor_b32 v{44 + k}, s32, v{44 + k}")
        a("s_movk_i32 s39, 0x2000\nv_or_b32 v41, v44, v45\nv_or3_b32 v41, v41, v46, v47\nv_cmp_lt_u32 vcc, 1, v41")
        for k in range(4): a(f"v_lshlrev_b32 v{44 + k}, v{44 + k}, s39")
        a(f"s_cbranch_vccnz L_vc1{tag}\nds_write_b128 v1, v[44:47] offset:{F_D}\ns_mov_b64 exec, -1")
        with outofline():
            a(f"L_vc1{tag}:\ns_waitcnt vmcnt(0)")
            dec_load('sc1')
            a(f"s_sub_u32 s40, s40, 1\ns_cbranch_scc1 L_end\ns_waitcnt vmcnt(0)\ns_branch L_vc0{tag}")
    a("s_cmp_ge_u32 s33, 28\ns_cbranch_scc1 " + ("L_probe" if probe_diag else "L_dec" if near else "L_adone"))
    if near:
        with outofline():
            a("L_dec:")
            if vat: lds_spin(F_LD, seg_flag(vat), [], 'ge', 28, nap=lazy)
            nvc = 1 if (vset, vsh) == (1, 2) else 4
            if nvc == 1: a(f"v_lshlrev_b32 v41, 2, v0\nbuffer_load_dword v44, v41, {WS}, 0 offen offset:{W_VOT} {vpol}")
            else: a(f"buffer_load_dwordx4 v[44:47], v2, {WS}, 0 offen offset:{W_VOT} {vpol}")
            a("s_lshl3_add_u32 s35, s33, s6\ns_lshl_b32 s35, s35, 2\ns_waitcnt vmcnt(0)")
            for k in range(nvc):
                a(f"v_xor_b32 v41, s32, v{44 + k}")
                for c in range(2):
                    a(f"v_cmp_eq_u32 vcc, {c + 1}, v41\ns_bcnt1_i32_b64 s{(36 if k == 0 else 38) + c}, vcc")
                if k: a("s_add_u32 s36, s36, s38\ns_add_u32 s37, s37, s39")
            a("s_cmp_gt_u32 s37, s36\ns_cselect_b32 s38, 0, 1\ns_getreg_b32 s39, hwreg(HW_REG_XCC_ID, 2, 1)\ns_xor_b32 s39, s39, s38")
            a(f"s_xor_b32 s38, s39, s32\ns_lshl_b32 s39, 0x2000, s39\nv_mov_b32 v41, s39\nv_mov_b32 v42, s38\nds_write_b32 v1, v41 offset:{F_IE}")
            a(f"s_mov_b64 exec, 1\nbuffer_store_dword v42, off, {WS}, s35 offset:{W_DEC - 896} sc1\ns_mov_b64 exec, -1")
            if stamps or evdbg: a(f"s_lshl_b32 s37, s37, 8\ns_add_u32 s36, s36, s37\nv_mov_b32 v41, s36\nds_write_b32 v1, v41 offset:{F_N}")
            if evdbg:
                srd(44, 28, 256)
                a(f"s_getreg_b32 s37, hwreg(HW_REG_XCC_ID, 0, 4)\ns_lshl_b32 s37, s37, 24\ns_add_u32 s36, s36, s37\nv_mov_b32 v41, s36\ns_sub_u32 s35, s35, 896\nv_mov_b32 v42, s35\nbuffer_store_dword v41, v42, s[44:47], 0 offen")
            dec_first()
            dec_use('a', 0)
            a("s_branch L_adone")
    if probe_diag:
        with outofline():
            a(f"L_probe:\ns_sub_u32 s35, s33, 28\ns_lshl3_add_u32 s35, s35, s6\ns_lshr_b32 s36, s35, 2\ns_lshl_b32 s36, s36, 14\ns_and_b32 s35, s35, 3\ns_lshl_b32 s35, s35, 10\ns_add_u32 s36, s36, s35\ns_add_u32 s36, s36, {W_PR}")
            if probe_diag == 3:
                lds_spin(F_LD, seg_flag("Kpart"), [], 'ge', 28, nap=2)
                a("s_mul_i32 s36, s6, 768\ns_add_u32 s36, s36, 0x14000")
            for t in range(12):
                a(f"s_memtime s[56:57]\ns_waitcnt lgkmcnt(0)\ns_load_dword s58, s[30:31], s36 offset:{(t >> 1) * 128 + (t & 1) * 8192}{' glc' if probe_diag == 2 else ''}\ns_waitcnt lgkmcnt(0)\ns_memtime s[60:61]\ns_waitcnt lgkmcnt(0)\ns_sub_u32 s{66 + 2 * t}, s60, s56")
            a("s_memtime s[90:91]\ns_branch L_adump")
    if 'noffn' in abl: a("s_branch L_adone")
    a(f"s_lshl_b32 s35, s6, 8\ns_add_u32 s35, s35, {L_XX}\nv_lshl_add_u32 v7, v3, 5, s35")
    a("ds_read_b128 v[16:19], v7\nds_read_b128 v[20:23], v7 offset:16")
    a(f"s_lshl_b32 s35, s4, 2\ns_add_u32 s35, s35, s7\ns_lshl_b32 s35, s35, 12\ns_add_u32 s35, s35, {W_HB}")
    a("v_add_u32 v10, s35, v2\ns_lshl_b32 s36, s6, 9\ns_add_u32 s35, s35, s36\nv_lshl_add_u32 v9, v5, 1, s35")
    a(f"v_add_u32 v11, {L_GU}, v2")
    a("""v_bfe_u32 v8, v0, 4, 1
    v_lshlrev_b32 v8, 6, v8
    v_bfe_u32 v6, v0, 1, 2
    v_lshl_add_u32 v8, v6, 4, v8
    v_bfe_u32 v6, v0, 3, 1
    v_lshl_add_u32 v8, v6, 3, v8
    v_and_b32 v6, 1, v0
    v_lshl_add_u32 v8, v6, 2, v8
    v_lshrrev_b32 v6, 5, v0
    v_lshl_add_u32 v8, v6, 1, v8""")
    a(f"v_add_u32 v8, {L_H}, v8")
    tagbytes(56, 32)
    for k in range(4): a(f"v_mov_b32 v{57 + k}, s{56 + k}")
    a("s_waitcnt lgkmcnt(0)")
    for i in range(8):
        for d in range(4): a(f"v_and_b32 v{128 + 4 * i + d}, v{16 + i}, v{12 + d}")
    if 'hb' in prew:
        for k in range(4): a(f"v_not_b32 v{48 + k}, v{57 + k}")
        a(f"s_mov_b32 exec_lo, 0x00ff00ff\ns_mov_b32 exec_hi, 0x00ff00ff\nbuffer_store_dwordx4 v[48:51], v9, {WS}, 0 offen\ns_mov_b64 exec, -1")
    if near: dec_first()
    for c in range(4):
        rd = [f"ds_read_b128 v[{64 + 4 * i}:{67 + 4 * i}], v11 offset:{1024 * i}" for i in range(4 * c, 4 * c + 4)]
        if c == 3: rd.append(f"ds_read_b128 v[24:27], v1 offset:{F_Q}")
        if c == 0 and lazy: lds_spin(F_LD, seg_flag("V"), [], 'ge', 28, nap=lazy)
        lds_spin(F_LD, seg_flag("GU" + (str(c) if c < 3 else "")), rd, 'ge', 28)
        if c == 3: stamp('a', 6)
        for i in range(2 * c, 2 * c + 2):
            for m in range(2):
                cc = "0" if i == 0 else f"v[{32 + 4 * m}:{35 + 4 * m}]"
                a(f"v_mfma_f32_16x16x32_bf16 v[{32 + 4 * m}:{35 + 4 * m}], v[{128 + 4 * i}:{131 + 4 * i}], v[{64 + 8 * i + 4 * m}:{67 + 8 * i + 4 * m}], {cc}")
    a("v_and_b32 v26, v26, v27\nv_bitop3_b32 v24, v24, v25, v26 bitop3:0x80\nv_readfirstlane_b32 s41, v24\ns_and_b32 s41, s41, 2")
    a("""v_permlane32_swap_b32 v32, v34
    v_permlane32_swap_b32 v33, v35
    v_permlane32_swap_b32 v36, v38
    v_permlane32_swap_b32 v37, v39
    v_add_f32_dpp v48, v34, v32 row_shl:8 row_mask:0xf bank_mask:0xf
    v_add_f32_dpp v50, v35, v33 row_shl:8 row_mask:0xf bank_mask:0xf
    v_add_f32_dpp v49, v38, v36 row_shl:8 row_mask:0xf bank_mask:0xf
    v_add_f32_dpp v51, v39, v37 row_shl:8 row_mask:0xf bank_mask:0xf
    s_mov_b32 exec_lo, 0x00ff00ff
    s_mov_b32 exec_hi, 0x00ff00ff""")
    for k in range(4): a(f"v_add_u32 v{48 + k}, 0x80, v{48 + k}")
    for k in range(4): a(f"v_bfi_b32 v{48 + k}, v56, v{57 + k}, v{48 + k}")
    st2([f"buffer_store_dwordx4 v[48:51], v9, {WS}, 0 offen"], 'hb')
    a("s_mov_b64 exec, -1")
    stamp('a', 7)
    if near: dec_use('b', 1)
    L = a.label("hb")
    a(f"s_mov_b32 s38, {max(seg_flag('WO'), seg_flag('WD'))}\ns_mov_b32 s36, {seg_flag('T')}\ns_mov_b32 s39, {0 if hbfirst else 1}")
    a(f"s_mov_b32 s40, {SPIN}\n{L}:")
    if gate:
        a("s_cmp_eq_u32 s39, 1\ns_cbranch_scc0 L_hbg")
        wait_gate(28)
        if anap: a(f"s_sleep {anap}")
        a("L_hbg:\ns_add_u32 s39, s39, 1")
    for i in range(4): a(f"buffer_load_dwordx4 v[{64 + 4 * i}:{67 + 4 * i}], v10, {WS}, 0 offen offset:{1024 * i} {pollpol}")
    a("s_sub_u32 s40, s40, 1\ns_cbranch_scc1 L_end")
    for i in range(4):
        a(f"s_waitcnt vmcnt({3 - i})")
        strip(20, [64 + 4 * i + k for k in range(4)], first=(i == 0))
        if i:
            for k in range(4): a(f"v_add_f32 v{64 + k}, v{64 + k}, v{64 + 4 * i + k}")
    a(f"v_and_b32 v20, 0xff, v20\nv_cmp_ne_u32 vcc, 0, v20")
    if hbsleep: a(f"s_cbranch_vccz L_hbok\ns_sleep {hbsleep}\ns_branch {L}\nL_hbok:")
    else: a(f"s_cbranch_vccnz {L}")
    stamp('a', 8)
    a(f"""v_permlane32_swap_b32 v64, v66
    v_permlane32_swap_b32 v65, v67
    v_add_f32 v64, v64, v66
    v_add_f32 v66, v65, v67
    v_cvt_pk_bf16_f32 v64, 0, v64
    v_cvt_pk_bf16_f32 v66, 0, v66
    v_mul_f32 v20, {(LOG2E | 0x80000000):#x}, v64
    v_exp_f32 v20, v20
    v_add_f32 v20, 1.0, v20
    v_rcp_f32 v21, v20
    v_mul_f32 v22, v64, v21""")
    if refine: a("""v_fma_f32 v23, -v22, v20, v64
    v_fma_f32 v23, v23, v21, v22
    v_cmp_class_f32 vcc, v23, 3
    v_cndmask_b32 v22, v23, v22, vcc""")
    a(f"""v_cvt_pk_bf16_f32 v22, 0, v22
    v_mul_f32 v22, v22, v66
    v_cvt_pk_bf16_f32 v22, v22, v22
    v_mov_b32 v21, 1
    ds_write_b16 v8, v22
    ds_write_b32 v1, v21 offset:{F_H}""")
    a("L_adone:")
    if lateb and local:
        a(f"s_mov_b64 exec, 0x00ff00ff\nbuffer_store_dwordx4 v[160:163], v164, {WS}, s43 offen sc1")
    stamp('a', 9)
    a("L_adump:")
    dump('a')
    a("s_endpgm")

    a("L_comp:\ns_sub_u32 s34, s3, 2")
    a("s_load_dword s32, s[30:31], 0")
    srd(48, 30, WSZ)
    if warm and not h1wt:
        a("s_cmp_eq_u32 s34, 1\ns_cbranch_scc0 L_nowarm")
        a(f"s_lshl_b32 s35, s4, 5\ns_lshl_b32 s36, s6, 2\ns_add_u32 s35, s35, s36\ns_add_u32 s35, s35, s7\ns_lshl_b32 s35, s35, 8\ns_add_u32 s35, s35, {W_H1}")
        a(f"v_lshlrev_b32 v4, 6, v0\ns_mov_b64 exec, 15\nbuffer_load_dword v124, v4, {WS}, s35 offen {warmpol}\ns_mov_b64 exec, -1\nL_nowarm:")
    a("""v_and_b32 v2, 15, v0
    v_lshrrev_b32 v3, 4, v0""")
    a("""v_xor_b32 v4, v2, v3
    v_lshlrev_b32 v4, 4, v4
    v_lshrrev_b32 v5, 2, v2
    v_lshlrev_b32 v5, 11, v5
    v_and_b32 v6, 3, v0
    v_lshl_add_u32 v5, v6, 8, v5
    s_lshr_b32 s35, s34, 1
    s_lshl_b32 s35, s35, 14
    s_and_b32 s36, s34, 1
    s_lshl_b32 s36, s36, 10
    s_add_u32 s35, s35, s36
    v_add_u32 v5, s35, v5""")
    for s_ in range(4):
        a(f"v_xor_b32 v{8 + s_}, {64 * s_}, v4\nv_add_u32 v{8 + s_}, v{8 + s_}, v5")
    a("""v_lshrrev_b32 v4, 2, v2
    v_xor_b32 v5, s34, v4
    v_lshlrev_b32 v5, 6, v5
    v_lshl_add_u32 v5, v4, 8, v5
    v_lshrrev_b32 v7, 1, v3
    v_lshl_add_u32 v5, v7, 10, v5
    v_and_b32 v7, 1, v3
    v_lshl_add_u32 v5, v7, 5, v5
    v_lshl_add_u32 v5, v6, 3, v5""")
    a(f"v_add_u32 v12, {L_V}, v5")
    a("""v_lshl_add_u32 v5, v3, 2, v4
    v_lshrrev_b32 v7, 1, v5
    v_and_b32 v7, 3, v7
    v_xor_b32 v7, s34, v7
    v_lshlrev_b32 v7, 5, v7
    v_lshl_add_u32 v7, v5, 7, v7
    v_lshl_add_u32 v14, v6, 3, v7""")
    a(f"v_add_u32 v14, {L_WO}, v14")
    a(f"v_mul_u32_u24 v15, 320, v6\nv_lshl_add_u32 v15, v3, 4, v15\nv_add_u32 v15, {L_Q}, v15")
    a("""v_lshrrev_b32 v4, 5, v0
    v_lshlrev_b32 v16, 8, v4
    v_and_b32 v5, 1, v3
    v_lshl_add_u32 v16, v5, 10, v16
    v_lshl_add_u32 v16, v2, 4, v16
    s_lshl_b32 s35, s4, 13
    s_lshl_b32 s36, s34, 11
    s_add_u32 s35, s35, s36""")
    a(f"s_add_u32 s35, s35, {W_H1}\nv_add_u32 v16, s35, v16")
    a(f"s_mul_i32 s35, s34, 320\ns_add_u32 s35, s35, {L_Q}\nv_and_b32 v5, 31, v0\nv_lshl_add_u32 v17, v5, 3, s35\nv_lshl_add_u32 v17, v4, 2, v17")
    a("s_lshl_b32 s35, s34, 2\nv_add_u32 v18, s35, v1")
    a(f"s_lshl_b32 s35, s34, 8\ns_add_u32 s35, s35, {L_P}\nv_lshl_add_u32 v19, v3, 5, s35\nv_lshl_add_u32 v19, v6, 3, v19")
    a(f"s_lshl_b32 s35, s34, 4\ns_add_u32 s35, s35, {L_ML}\nv_lshl_add_u32 v112, v0, 2, s35")
    a(f"v_lshlrev_b32 v113, 3, v0\nv_add_u32 v113, {L_P}, v113")
    a(f"v_lshlrev_b32 v114, 4, v4\nv_add_u32 v114, {L_ML}, v114")
    a(f"s_lshl_b32 s35, s34, 2\ns_add_u32 s35, s35, {L_ML}\nv_lshl_add_u32 v13, v6, 4, s35\nv_mov_b32 v144, {L_ML}")
    a("s_lshl_b32 s35, s4, 7\ns_add_u32 s35, s35, s5")
    a(f"s_lshl_b32 s36, s35, 9\ns_lshl_b32 s37, s34, 7\ns_add_u32 s36, s36, s37\ns_add_u32 s36, s36, {W_H2}\nv_lshl_add_u32 v115, v5, 2, s36\nv_lshl_add_u32 v115, v4, 14, v115")
    a(f"s_lshl_b32 s36, s34, 5\ns_add_u32 s36, s36, s35\ns_lshl_b32 s36, s36, 4\ns_add_u32 s36, s36, {W_ML}\nv_mov_b32 v116, s36")
    a("v_lshrrev_b32 v4, 3, v0\nv_and_b32 v5, 7, v0\ns_lshl_b32 s35, s4, 2\ns_add_u32 s35, s35, s7")
    a(f"s_lshl_b32 s36, s35, 14\ns_lshl_b32 s37, s34, 7\ns_add_u32 s36, s36, s37\ns_add_u32 s36, s36, {W_H2}")
    a("v_lshlrev_b32 v117, 9, v4\nv_lshl_add_u32 v117, v5, 4, v117\nv_add_u32 v117, s36, v117")
    a(f"s_lshl_b32 s36, s35, 9\ns_add_u32 s36, s36, {W_ML}\nv_and_b32 v118, 31, v0\nv_lshl_add_u32 v118, v118, 4, s36\nv_lshlrev_b32 v123, 2, v4")
    a("""v_and_b32 v119, 3, v0
    v_lshlrev_b32 v119, 4, v119
    v_bfe_u32 v4, v0, 2, 1
    v_lshl_add_u32 v119, v4, 3, v119
    v_bfe_u32 v4, v0, 4, 1
    v_lshl_add_u32 v119, v4, 2, v119
    v_lshrrev_b32 v4, 5, v0
    v_lshl_add_u32 v119, v4, 1, v119""")
    a(f"s_lshl_b32 s35, s34, 6\ns_add_u32 s35, s35, {L_O}\nv_add_u32 v119, s35, v119")
    a(f"v_lshlrev_b32 v120, 4, v3\nv_add_u32 v120, {L_O}, v120")
    a("s_lshl2_add_u32 s37, s6, s34")
    inbox(35, 37)
    a("s_lshl2_add_u32 s36, s4, s7\ns_lshl_b32 s36, s36, 7\ns_add_u32 s35, s35, s36\nv_lshl_add_u32 v121, v0, 3, s35")
    a("s_movk_i32 s52, 0x1000\ns_movk_i32 s53, 0x2000\ns_movk_i32 s54, 0x3000\ns_mov_b32 s55, 0x8000\nv_mov_b32 v125, 0xff")
    a("s_waitcnt lgkmcnt(0)")
    tags()
    a("v_lshlrev_b32 v4, 3, v6\nv_lshrrev_b32 v122, v4, s32\nv_mov_b32 v147, s32\nv_mov_b32 v149, s32")
    tagbytes(56, 42)
    if 'noc' in abl: a("s_branch L_cdone")
    if 'h2' in prew:
        a(f"v_not_b32 v20, v122\nbuffer_store_dword v20, v115, {WS}, 0 offen\nbuffer_store_dword v20, v115, {WS}, s55 offen")
    kreads = [f"ds_read_b128 v[{32 + 16 * t + 4 * s}:{35 + 16 * t + 4 * s}], v{8 + s} offset:{L_K + 8192 * t}" for t in range(2) for s in range(4)]
    a("s_mov_b32 s43, 0\ns_mov_b32 s41, 3\ns_mov_b32 s39, 0")
    if forceslow: a(f"s_mov_b32 s39, {NA}")
    if h1own: lds_spin(F_A, 1, [], 'ge', 20)
    else:
        if nap1: a(f"s_sleep {nap1}")
        if both: lds_spin(F_A, 1, [], 'ge', 20, nap=lazy)
        lds_spin(F_LD, seg_flag("Kpart" if h1trig < 32 else "K"), [], 'ge', 20, nap=lazy)
    stamp('c', 1)
    L = a.label("h1"); L2 = a.label("h1k")
    a(f"{L}:")
    if local:
        a(f"s_cmp_eq_u32 s39, {NA}\ns_cbranch_scc1 L_h1sw\n{L2}:")
        with outofline():
            a(f"L_h1sw:\ns_mov_b32 s43, {W_H1B - W_H1}\ns_mov_b32 s41, 1")
            tagbytes(56, 32)
            a(f"s_branch {L2}")
    for i in range(2): a(f"buffer_load_dwordx4 v[{96 + 4 * i}:{99 + 4 * i}], v16, {WS}, s43 offen offset:{512 * i} {pollpol}")
    a(f"s_add_u32 s39, s39, 1\ns_cmp_gt_u32 s39, {SPIN}\ns_cbranch_scc1 L_end")
    if h1trig == 32 and not h1own:
        for r in kreads: a(r)
    elif kearly: lds_spin(F_LD, seg_flag("K"), kreads, 'ge', 20)
    a("s_waitcnt vmcnt(0)")
    strip(20, list(range(96, 104)), first=True)
    for k in range(4): a(f"v_add_f32 v{96 + k}, v{96 + k}, v{100 + k}")
    a(f"""v_and_b32 v20, 0xff, v20
    v_cmp_ne_u32 vcc, 0, v20
    v_permlane32_swap_b32 v96, v98
    v_permlane32_swap_b32 v97, v99
    s_cbranch_vccnz {L}""")
    stamp('c', 2)
    if stamps is True: a("s_mov_b32 s88, s39")
    a("""v_add_f32 v96, v96, v98
    v_add_f32 v97, v97, v99
    v_mov_b32 v21, s41
    v_cvt_pk_bf16_f32 v96, v96, v97""")
    a(f"ds_write_b32 v17, v96\nds_write_b32 v18, v21 offset:{F_Q}")
    tagbytes(56, 32)
    if (h1trig < 32 or h1own) and not kearly: lds_spin(F_LD, seg_flag("K"), kreads, 'ge', 20)
    lds_spin(F_Q, 0, [f"ds_read_b128 v[{96 + 4 * s}:{99 + 4 * s}], v15 offset:{64 * s}" for s in range(4)] + ([f"ds_read_b32 v145, v1 offset:{F_LD}"] if look1 else []), 'all4', 20)
    stamp('c', 3)
    for s in range(4):
        for t in range(2):
            c = "0" if s == 0 else f"v[{24 + 4 * t}:{27 + 4 * t}]"
            a(f"v_mfma_f32_16x16x32_bf16 v[{24 + 4 * t}:{27 + 4 * t}], v[{32 + 16 * t + 4 * s}:{35 + 16 * t + 4 * s}], v[{96 + 4 * s}:{99 + 4 * s}], {c}")
    a("v_readfirstlane_b32 s41, v20\ns_and_b32 s41, s41, 2")
    if 'ml' in prew:
        a(f"s_cselect_b64 exec, 1, 0\nv_not_b32 v153, v147\nv_not_b32 v155, v147\nbuffer_store_dwordx4 v[152:155], v116, {WS}, 0 offen\ns_mov_b64 exec, -1")
    vread = lambda u: f"ds_read_b64_tr_b16 v[{64 + 2 * u}:{65 + 2 * u}], v12 offset:{2048 * u}"
    vflag = lambda c: seg_flag("V" + (str(c) if c < 3 else ""))
    if look1:
        a("v_readfirstlane_b32 s38, v145")
        for c in range(4):
            a(f"s_cmp_lt_u32 s38, {vflag(c)}\ns_cbranch_scc1 L_va")
            for u in range(4 * c, 4 * c + 4): a(vread(u))
        a("L_va:")
    else: a("s_mov_b32 s38, 0")
    a(f"s_mov_b32 s35, {SCALE:#x}\ns_mov_b32 s36, {LOG2E:#x}")
    if pks: a("s_mov_b32 s60, s35\ns_mov_b32 s61, s35\ns_mov_b32 s62, s36\ns_mov_b32 s63, s36")
    if mimic:
        for r in range(24, 32): a(f"v_cvt_pk_bf16_f32 v{r}, 0, v{r}")
    if pks:
        for r in range(24, 32, 2): a(f"v_pk_mul_f32 v[{r}:{r + 1}], v[{r}:{r + 1}], s[60:61]")
    else:
        for r in range(24, 32): a(f"v_mul_f32 v{r}, s35, v{r}")
    if mimic:
        for r in range(24, 32): a(f"v_cvt_pk_bf16_f32 v{r}, 0, v{r}")
    a("""v_max3_f32 v20, v24, v25, v26
    v_max3_f32 v21, v27, v28, v29
    v_max3_f32 v20, v20, v30, v31
    v_max_f32 v20, v20, v21
    v_mov_b32 v21, v20
    v_permlane16_swap_b32 v20, v21
    v_max_f32 v20, v20, v21
    v_mov_b32 v21, v20
    v_permlane32_swap_b32 v20, v21
    v_max_f32 v20, v20, v21
    v_mul_f32 v22, s36, v20""")
    if pks:
        for r in range(24, 32, 2): a(f"v_pk_fma_f32 v[{r}:{r + 1}], v[{r}:{r + 1}], s[62:63], v[22:23] op_sel:[0,0,0] op_sel_hi:[1,1,0] neg_lo:[0,0,1] neg_hi:[0,0,1]")
    else:
        for r in range(24, 32): a(f"v_fma_f32 v{r}, v{r}, s36, -v22")
    for r in range(24, 32): a(f"v_exp_f32 v{r}, v{r}")
    for k in range(4): a(f"v_cvt_pk_bf16_f32 v{32 + k}, v{24 + 2 * k}, v{25 + 2 * k}")
    if look2: a(f"ds_read_b32 v145, v1 offset:{F_LD}")
    if pks: a("""v_pk_add_f32 v[24:25], v[24:25], v[26:27]
    v_pk_add_f32 v[28:29], v[28:29], v[30:31]
    ds_write_b64 v19, v[32:33]
    v_pk_add_f32 v[24:25], v[24:25], v[28:29]
    ds_write_b64 v19, v[34:35] offset:128
    v_add_f32 v23, v24, v25""")
    else: a("""v_add_f32 v24, v24, v25
    v_add_f32 v26, v26, v27
    ds_write_b64 v19, v[32:33]
    v_add_f32 v28, v28, v29
    v_add_f32 v30, v30, v31
    ds_write_b64 v19, v[34:35] offset:128
    v_add_f32 v24, v24, v26
    v_add_f32 v28, v28, v30
    v_add_f32 v23, v24, v28""")
    a("""v_mov_b32 v21, v23
    v_permlane16_swap_b32 v23, v21
    v_add_f32 v23, v23, v21
    v_mov_b32 v21, v23
    v_permlane32_swap_b32 v23, v21
    v_add_f32 v23, v23, v21
    v_mov_b32 v21, 1
    s_mov_b64 exec, 15
    ds_write2_b32 v112, v22, v23 offset0:0 offset1:16
    s_mov_b64 exec, -1""")
    a(f"ds_write_b32 v18, v21 offset:{F_P}")
    if look2:
        lgk(4)
        a("v_readfirstlane_b32 s37, v145")
        for c in range(4):
            a(f"s_cmp_ge_u32 s38, {vflag(c)}\ns_cbranch_scc1 L_vl{c}\ns_cmp_lt_u32 s37, {vflag(c)}\ns_cbranch_scc1 L_vld")
            for u in range(4 * c, 4 * c + 4): a(vread(u))
            a(f"L_vl{c}:")
        a("L_vld:\ns_mov_b32 s38, s37")
    stamp('c', 4)
    reads = [f"ds_read_b64 v[{32 + 2 * r}:{33 + 2 * r}], v113 offset:{512 * r}" for r in range(2)]
    reads += ["ds_read2_b32 v[150:151], v13 offset0:0 offset1:16"]
    reads += [f"ds_read_b128 v[{96 + 4 * w}:{99 + 4 * w}], v144 offset:{16 * w}" for w in range(4)]
    reads += [f"ds_read_b128 v[{56 + 4 * r}:{59 + 4 * r}], v114 offset:{32 * r}" for r in range(2)]
    lds_spin(F_P, 0, reads + [f"ds_read_b32 v145, v1 offset:{F_LD}"], 'all4', 20)
    stamp('c', 5)
    fill = ["v_max_f32_dpp v146, v150, v150 quad_perm:[1,0,3,2] row_mask:0xf bank_mask:0xf"]
    fill += [f"v_max3_f32 v{96 + h}, v{96 + h}, v{100 + h}, v{104 + h}" for h in range(4)]
    fill += ["v_max_f32_dpp v146, v146, v146 quad_perm:[2,3,0,1] row_mask:0xf bank_mask:0xf"]
    fill += [f"v_max_f32 v{96 + h}, v{96 + h}, v{108 + h}" for h in range(4)]
    fill += ["v_sub_f32 v150, v150, v146"] + [f"v_sub_f32 v{56 + k}, v{56 + k}, v{96 + (k & 3)}" for k in range(8)]
    fill += ["v_exp_f32 v150, v150"] + [f"v_exp_f32 v{56 + k}, v{56 + k}" for k in range(4)] + ["v_mul_f32 v148, v150, v151"]
    fill += [f"v_exp_f32 v{60 + k}, v{60 + k}" for k in range(2)] + ["v_add_f32_dpp v148, v148, v148 quad_perm:[1,0,3,2] row_mask:0xf bank_mask:0xf"]
    fill += [f"v_exp_f32 v{62 + k}, v{62 + k}" for k in range(2)] + ["v_add_f32_dpp v148, v148, v148 quad_perm:[2,3,0,1] row_mask:0xf bank_mask:0xf"]
    def ml_pub():
        a("s_mov_b64 exec, 1")
        st2([f"buffer_store_dwordx4 v[146:149], v116, {WS}, 0 offen"], 'ml')
        a("s_mov_b64 exec, -1")
    def pv(u):
        r = u >> 3
        c = "0" if u % 8 < 2 else f"v[{40 + 8 * r + 4 * (u & 1)}:{43 + 8 * r + 4 * (u & 1)}]"
        a(f"v_mfma_f32_4x4x4_16b_bf16 v[{40 + 8 * r + 4 * (u & 1)}:{43 + 8 * r + 4 * (u & 1)}], v[{32 + 2 * r}:{33 + 2 * r}], v[{64 + 2 * u}:{65 + 2 * u}], {c} cbsz:3 abid:{u & 7}")
    a("v_readfirstlane_b32 s37, v145")
    assert len(fill) <= 32
    a(f"s_cmp_lt_u32 s38, {vflag(3)}\ns_cbranch_scc1 L_vb\nL_vc:")
    with outofline():
        a("L_vb:")
        for c in range(4):
            a(f"s_cmp_ge_u32 s38, {vflag(c)}\ns_cbranch_scc1 L_vb{c}\ns_cmp_lt_u32 s37, {vflag(c)}\ns_cbranch_scc1 L_vbd")
            for u in range(4 * c, 4 * c + 4): a(vread(u))
            a(f"L_vb{c}:")
        a("L_vbd:\ns_waitcnt lgkmcnt(0)\ns_branch L_vc")
    for c in range(4):
        a(f"s_cmp_lt_u32 s37, {vflag(c)}\ns_cbranch_scc1 L_vw{c}\nL_vr{c}:")
        with outofline():
            a(f"L_vw{c}:")
            lds_spin(F_LD, vflag(c), [vread(u) for u in range(4 * c, 4 * c + 4)], 'ge', 20)
            a(f"s_branch L_vr{c}")
        for u in range(4 * c, 4 * c + 4):
            pv(u)
            for f_ in fill[4 * u:4 * u + 4]: a(f_)
        if c == 1: ml_pub()
    stamp('c', 6)
    a("s_nop 0")
    if pks:
        for h in (0, 2): a(f"v_pk_add_f32 v[{40 + h}:{41 + h}], v[{40 + h}:{41 + h}], v[{44 + h}:{45 + h}]")
        for h in (0, 2): a(f"v_pk_mul_f32 v[{40 + h}:{41 + h}], v[{40 + h}:{41 + h}], v[{56 + h}:{57 + h}]")
        for h in (0, 2): a(f"v_pk_add_f32 v[{48 + h}:{49 + h}], v[{48 + h}:{49 + h}], v[{52 + h}:{53 + h}]")
        for h in (0, 2): a(f"v_pk_fma_f32 v[{40 + h}:{41 + h}], v[{48 + h}:{49 + h}], v[{60 + h}:{61 + h}], v[{40 + h}:{41 + h}]")
    else:
        for h in range(4): a(f"v_add_f32 v{40 + h}, v{40 + h}, v{44 + h}")
        for h in range(4): a(f"v_mul_f32 v{40 + h}, v{40 + h}, v{56 + h}")
        for h in range(4): a(f"v_add_f32 v{48 + h}, v{48 + h}, v{52 + h}")
        for h in range(4): a(f"v_fmac_f32 v{40 + h}, v{48 + h}, v{60 + h}")
    a("""v_permlane32_swap_b32 v40, v41
    v_permlane32_swap_b32 v42, v43
    v_add_f32 v40, v40, v41
    v_add_f32 v42, v42, v43
    v_bfi_b32 v40, v125, v122, v40
    v_bfi_b32 v42, v125, v122, v42""")
    st2([f"buffer_store_dword v40, v115, {WS}, 0 offen", f"buffer_store_dword v42, v115, {WS}, s55 offen"], 'h2')
    stamp('c', 7)
    if fine:
        a("s_waitcnt vmcnt(0)"); stamp('c', 1, True)
    if 'noh2' in abl: a("s_branch L_cdone")
    LF = a.label("h2"); LG = a.label("h2g"); LD = a.label("h2d")
    woreads = [f"ds_read_b64_tr_b16 v[{80 + 4 * s + 2 * x}:{81 + 4 * s + 2 * x}], v14 offset:{4096 * s + 2048 * x}" for s in range(4) for x in range(2)]
    wdreads = [f"ds_read_b64_tr_b16 v[{48 + 4 * s + 2 * x}:{49 + 4 * s + 2 * x}], v14 offset:{L_WD - L_WO + 4096 * s + 2048 * x}" for s in range(2) for x in range(2)]
    hreads = [f"ds_read_b128 v[{56 + 4 * s}:{59 + 4 * s}], v120 offset:{L_H - L_O + 64 * s}" for s in range(2)]
    last = max(seg_flag("WO"), seg_flag("WD"))
    def payload_loads(pol=pollpol):
        for i in range(4): a(f"buffer_load_dwordx4 v[{64 + 4 * i}:{67 + 4 * i}], v117, {WS}, {'s%d' % (51 + i) if i else 0} offen {pol}")
    def payload_check(mul):
        for i in range(4):
            a(f"s_waitcnt vmcnt({3 - i})")
            strip(21, [64 + 4 * i + k for k in range(4)], first=(i == 0))
            if mul:
                for k in range(4): a(fm(i, k))
        a("v_and_b32 v21, 0xff, v21\nv_cmp_ne_u32 vcc, 0, v21\ns_and_b64 exec, vcc, vcc")
    LM = a.label("h2m"); LW = a.label("h2w"); LX = a.label("h2x")
    assert order[-2:] == ("WO", "WD") and ntail <= 8 and gate == 'T'
    a(f"s_cmp_ge_u32 s33, 28\ns_cselect_b32 s36, {last}, {seg_flag('T')}\ns_mov_b32 s37, {SPIN}")
    a("v_mov_b32 v101, s32\nv_mov_b32 v103, s32")
    def ml_loads():
        a(f"s_mov_b32 exec_hi, 0\nbuffer_load_dwordx4 v[32:35], v118, {WS}, 0 offen {pollpol}\ns_mov_b32 exec_hi, -1")
    def ml_check():
        a("s_mov_b32 exec_hi, 0")
        chk(20, 33, 32, first=True); chk(20, 35, 32)
        a("v_cmp_ne_u32 vcc, 0, v20\ns_mov_b32 exec_hi, -1")
    def fm(i, k):
        w = f"v[{36 + (i & 2)}:{37 + (i & 2)}]"; sel = f"op_sel:[0,{i & 1},0] op_sel_hi:[1,{i & 1},1]"
        if i == 0: return f"v_pk_mul_f32 v[{24 + k}:{25 + k}], v[{64 + k}:{65 + k}], {w} op_sel:[0,0] op_sel_hi:[1,0]"
        return f"v_pk_fma_f32 v[{24 + k}:{25 + k}], v[{64 + 4 * i + k}:{65 + 4 * i + k}], {w}, v[{24 + k}:{25 + k}] {sel}"
    def strip_ops(i):
        r = 64 + 4 * i
        return [f"s_waitcnt vmcnt({3 - i})\nv_xor_b32 v{r}, s56, v{r}"] + [f"v_xor_b32 v{r + k}, s{56 + k}, v{r + k}" for k in (1, 2, 3)] + \
               [f"v_or_b32 v28, v{r}, v{r + 1}" if i == 0 else f"v_or3_b32 v28, v28, v{r}, v{r + 1}", f"v_or3_b32 v28, v28, v{r + 2}, v{r + 3}"]
    wait_gate(20)
    stamp('c', 2, True)
    ml_loads()
    payload_loads(pollpol if poll1 is None else poll1)
    for r in woreads: a(r)
    a("s_waitcnt vmcnt(4)")
    ml_check()
    a(f"s_cbranch_vccnz {LM}\n{LW}:")
    with outofline():
        a(f"{LM}:")
        if joint:
            def pchk():
                for r in range(64, 80): chk(28, r, 56 + (r & 3), first=(r == 64))
                a("v_and_b32 v28, 0xff, v28\nv_cmp_ne_u32 s[60:61], 0, v28")
            a("s_waitcnt vmcnt(0)")
            pchk()
            a(f"{LX}:")
            ml_loads()
            a("s_mov_b64 exec, s[60:61]")
            payload_loads()
            a("s_sub_u32 s37, s37, 1\ns_cbranch_scc1 L_end\ns_waitcnt vmcnt(0)")
            pchk()
            a("s_mov_b32 exec_lo, -1")
            ml_check()
            a(f"s_or_b64 vcc, vcc, s[60:61]\ns_cbranch_scc1 {LX}\ns_branch {LW}")
        else:
            ml_loads()
            a("s_sub_u32 s37, s37, 1\ns_cbranch_scc1 L_end\ns_waitcnt vmcnt(0)")
            ml_check()
            a(f"s_cbranch_vccnz {LM}\ns_branch {LW}")
    stamp('c', 3, True)
    st = strip_ops(0) + strip_ops(1) + strip_ops(2) + strip_ops(3)
    def red32(op, r, t):
        for n in (1, 2, 4, 8):
            a(st.pop(0)); a(st.pop(0))
            a(f"{op}_dpp v{r}, v{r}, v{r} row_ror:{n} row_mask:0xf bank_mask:0xf")
        a(f"v_mov_b32 v{t}, v{r}")
        a(st.pop(0)); a(st.pop(0))
        a(f"v_permlane16_swap_b32 v{r}, v{t}\n{op} v{r}, v{r}, v{t}")
    if not early: a("v_mov_b32 v21, v32")
    if not near: a("s_mov_b32 s43, 0")
    if early:
        for n in (1, 2, 4, 8): a(f"v_max_f32_dpp v21, v{32 if n == 1 else 21}, v{32 if n == 1 else 21} row_ror:{n} row_mask:0xf bank_mask:0xf")
        a("v_mov_b32 v22, v21\nv_permlane16_swap_b32 v21, v22\nv_max_f32 v21, v21, v22\nv_sub_f32 v32, v32, v21\nv_exp_f32 v32, v32")
        a("v_mul_f32 v22, v32, v34")
        for i in range(4): a(f"ds_bpermute_b32 v{36 + i}, v123, v32 offset:{32 * i}")
        red32("v_add_f32", 22, 23)
        a("v_rcp_f32 v22, v22")
        a(st.pop(0)); a(st.pop(0))
        a("s_waitcnt lgkmcnt(0)")
        for i in range(2): a(fm(i, 0)); a(fm(i, 2))
        a("v_readfirstlane_b32 s35, v22")
        for i in range(6): a(st.pop(0))
        a(fm(2, 0)); a(fm(2, 2))
        while st: a(st.pop(0))
        a("v_and_b32 v28, 0xff, v28")
        a(fm(3, 0))
        a("v_cmp_ne_u32 vcc, 0, v28")
        a(fm(3, 2))
    else:
        red32("v_max_f32", 21, 22)
        a("v_sub_f32 v32, v32, v21\nv_exp_f32 v32, v32")
        a(st.pop(0))
        a("v_mul_f32 v22, v32, v34")
        for i in range(4): a(f"ds_bpermute_b32 v{36 + i}, v123, v32 offset:{32 * i}")
        red32("v_add_f32", 22, 23)
        a("v_rcp_f32 v22, v22")
        while st: a(st.pop(0))
        a("v_readfirstlane_b32 s35, v22\nv_and_b32 v28, 0xff, v28\ns_waitcnt lgkmcnt(0)")
        a(fm(0, 0)); a(fm(0, 2))
        a("v_cmp_ne_u32 vcc, 0, v28")
        for i in range(1, 4): a(fm(i, 0)); a(fm(i, 2))
    stamp('c', 4, True)
    a(f"s_cbranch_vccnz {LG}\n{LD}:")
    with outofline():
        a(f"{LG}:\ns_mov_b64 exec, vcc")
        if h2sleep: a(f"s_sleep {h2sleep}")
        payload_loads()
        a("s_sub_u32 s37, s37, 1\ns_cbranch_scc1 L_end")
        for i in range(4):
            for o in strip_ops(i): a(o)
        a(f"v_and_b32 v28, 0xff, v28\nv_cmp_ne_u32 vcc, 0, v28\ns_cbranch_vccnz {LG}\ns_mov_b64 exec, -1")
        for i in range(4): a(fm(i, 0)); a(fm(i, 2))
        a(f"s_nop 1\ns_branch {LD}")
    stamp('c', 8)
    if wbl == 'h2': a("s_or_b32 s39, s5, s34\ns_cbranch_scc1 L_nwb\nbuffer_wbl2 sc1\nL_nwb:")
    ex = [f"ds_read_b64 v[28:29], v1 offset:{F_LD}"] + wdreads + hreads
    a(f"""v_permlane32_swap_b32 v24, v25
    v_permlane32_swap_b32 v26, v27
    {ex[0]}
    v_add_f32 v24, v24, v25
    v_add_f32 v26, v26, v27
    {ex[1]}
    {ex[2]}
    v_permlane16_swap_b32 v24, v26
    v_add_f32 v24, v24, v26
    {ex[3]}
    {ex[4]}
    v_add_f32_dpp v24, v24, v24 row_ror:8 row_mask:0xf bank_mask:0xf
    v_mov_b32 v21, 1
    v_mul_f32 v24, s35, v24
    {ex[5]}
    v_cvt_pk_bf16_f32 v24, v24, v24
    {ex[6]}""")
    if near: a(f"ds_read_b32 v31, v18 offset:{F_D}")
    a(f"ds_write_b16 v119, v24\nds_write_b32 v18, v21 offset:{F_O}")
    oreads = [f"ds_read_b128 v[{128 + 4 * s}:{131 + 4 * s}], v120 offset:{64 * s}" for s in range(4)]
    def mm_wd(first):
        for s in range(2): a(f"v_mfma_f32_16x16x32_bf16 v[96:99], v[{56 + 4 * s}:{59 + 4 * s}], v[{48 + 4 * s}:{51 + 4 * s}], {'0' if first and s == 0 else 'v[96:99]'}")
    def mm_wo(first):
        for s in range(4): a(f"v_mfma_f32_16x16x32_bf16 v[96:99], v[{128 + 4 * s}:{131 + 4 * s}], v[{80 + 4 * s}:{83 + 4 * s}], {'0' if first and s == 0 else 'v[96:99]'}")
    a(f"ds_read_b128 v[20:23], v1 offset:{F_O}")
    for r in oreads: a(r)
    a("s_cmp_ge_u32 s33, 28\ns_cbranch_scc1 L_noffn")
    lgk(7)
    a(f"v_cmp_gt_u32 vcc, {last}, v28\nv_cmp_eq_u32 s[62:63], 0, v29\ns_or_b64 vcc, vcc, s[62:63]\ns_cbranch_vccnz L_hw")
    mm_wd(True)
    a("s_waitcnt lgkmcnt(0)\nv_and_b32 v22, v22, v23\nv_bitop3_b32 v20, v20, v21, v22 bitop3:0x80\nv_cmp_eq_u32 vcc, 0, v20\ns_cbranch_vccnz L_ow\nL_or:")
    stamp('c', 9)
    mm_wo(False)
    a("L_mmd:")
    with outofline():
        a("L_ow:")
        lds_spin(F_O, 0, oreads, 'all4', 20)
        a("s_branch L_or\nL_noffn:")
        lds_spin(F_O, 0, oreads, 'all4', 20)
        stamp('c', 9)
        mm_wo(True)
        a("s_branch L_mmd\nL_hw:")
        lds_spin(F_O, 0, oreads, 'all4', 20)
        stamp('c', 9)
        mm_wo(True)
        a(f"s_mov_b32 s40, {SPIN}\nL_hw2:")
        for r in ex: a(r)
        a(f"s_sub_u32 s40, s40, 1\ns_cbranch_scc1 L_end\ns_waitcnt lgkmcnt(0)\nv_cmp_gt_u32 vcc, {last}, v28\nv_cmp_eq_u32 s[62:63], 0, v29\ns_or_b64 vcc, vcc, s[62:63]\ns_cbranch_vccnz L_hw2")
        mm_wd(False)
        a("s_branch L_mmd")
    if near:
        a("v_readfirstlane_b32 s43, v31\ns_cmp_eq_u32 s43, 0\ns_cbranch_scc1 L_dw\nL_dr:")
        with outofline():
            a("L_dw:")
            a(f"s_mov_b32 s40, {SPIN}\nL_dw1:\nds_read_b32 v31, v18 offset:{F_D}\ns_sub_u32 s40, s40, 1\ns_cbranch_scc1 L_end\ns_waitcnt lgkmcnt(0)")
            a("v_readfirstlane_b32 s43, v31\ns_cmp_eq_u32 s43, 0\ns_cbranch_scc1 L_dw1\ns_branch L_dr")
    stamp('c', 10)
    a("v_mov_b32 v100, v96\nv_mov_b32_dpp v102, v96 quad_perm:[1,1,3,3] row_mask:0xf bank_mask:0xf")
    a(f"s_mov_b64 exec, 0x5555\nbuffer_store_dwordx4 v[100:103], v121, {WS}, s43 offen {h3st}")
    if dual: a(f"buffer_store_dwordx4 v[100:103], v121, {WS}, s53 offen {h3st}")
    a("s_mov_b64 exec, -1")
    stamp('c', 11)
    if wbl == 'h3': a("s_or_b32 s39, s5, s34\ns_cbranch_scc1 L_nwb\nbuffer_wbl2 sc1\nL_nwb:")
    if consffn: a("s_cmp_ge_u32 s33, 28\ns_cbranch_scc0 L_cdone\ns_sub_u32 s38, s33, 28\ns_lshl_b32 s38, s38, 3\ns_add_u32 s38, s38, s6")
    else: a("s_cmp_lt_u32 s2, 32\ns_cbranch_scc0 L_cdone\ns_mov_b32 s38, s2")
    if not h3all: a("s_cmp_eq_u32 s34, 0\ns_cbranch_scc0 L_cdone")
    if near: a(f"ds_read_b32 v31, v1 offset:{F_IE}")
    a("s_mov_b32 s37, s38")
    inbox(35, 37)
    a("v_lshl_add_u32 v24, v0, 4, s35")
    if dual:
        lds_spin(F_IE, 1, [], 'ge', 20)
        a("v_lshrrev_b32 v20, 1, v20\nv_lshl_add_u32 v24, v20, 13, v24")
        if stamps: a("v_readfirstlane_b32 s84, v20")
    a("v_and_b32 v25, 7, v0\ns_lshl_b32 s35, s38, 5\nv_lshl_add_u32 v25, v25, 2, s35")
    srd(44, 8, 1024)
    a("buffer_load_dword v26, v25, s[44:47], 0 offen")
    srd(52, 26, 1024)
    if near: a("s_waitcnt lgkmcnt(0)\nv_readfirstlane_b32 s43, v31")
    L = a.label("h3"); LD = a.label("h3d")
    def h3issue(k):
        for i in range(4): a(f"buffer_load_dwordx4 v[{32 + 16 * k + 4 * i}:{35 + 16 * k + 4 * i}], v24, {WS}, s43 offen offset:{1024 * i} {h3pol}")
    a(f"s_mov_b32 s40, {SPIN}")
    if h3mask:
        h3depth = 0
        a(f"{L}:")
        h3issue(0)
        a("s_sub_u32 s40, s40, 1\ns_cbranch_scc1 L_end")
        for i in range(4):
            a(f"s_waitcnt vmcnt({3 - i})")
            chk(20, 33 + 4 * i, 32, first=(i == 0)); chk(20, 35 + 4 * i, 32)
        a(f"v_cmp_ne_u32 vcc, 0, v20\ns_and_b64 exec, vcc, vcc\ns_cbranch_scc1 {L}\ns_mov_b64 exec, -1")
        a(f"v_add_f32 v22, v32, v36\nv_add_f32 v23, v34, v38\nv_add_f32 v30, v40, v44\nv_add_f32 v31, v42, v46\ns_branch {LD}")
        L = a.label("h3x")
    for k in range(h3depth - (0 if h3cf else 1)):
        h3issue(k)
        if h3gap and k < h3depth - 1: a(f"s_sleep {h3gap}")
    a(f"{L}:")
    for k in range(h3depth):
        if not h3cf: h3issue((k + h3depth - 1) % h3depth)
        a(f"s_waitcnt vmcnt({4 * (h3depth - 1)})")
        b = 32 + 16 * k
        for r in range(b + 1, b + 16, 2): chk(20, r, 32, first=(r == b + 1))
        a(f"v_add_f32 v22, v{b}, v{b + 4}\nv_add_f32 v23, v{b + 2}, v{b + 6}\nv_cmp_ne_u32 vcc, 0, v20")
        a(f"v_add_f32 v30, v{b + 8}, v{b + 12}\nv_add_f32 v31, v{b + 10}, v{b + 14}\ns_cbranch_vccz {LD}")
        if h3cf: h3issue(k)
    a(f"s_sub_u32 s40, s40, 1\ns_cbranch_scc0 {L}\ns_branch L_end\n{LD}:")
    stamp('c', 12)
    a("""v_add_f32 v22, v22, v30
    v_add_f32 v23, v23, v31
    v_lshlrev_b32 v27, 16, v26
    v_and_b32 v28, 0xffff0000, v26
    v_permlane32_swap_b32 v22, v23
    v_add_f32 v22, v22, v23
    v_mov_b32 v23, v22
    v_permlane16_swap_b32 v22, v23
    v_add_f32 v22, v22, v23
    v_add_f32_dpp v22, v22, v22 row_ror:8 row_mask:0xf bank_mask:0xf
    v_mov_b32 v23, v22
    v_permlane32_swap_b32 v22, v23
    v_add_f32 v22, v22, v27
    v_add_f32 v23, v23, v28
    v_cvt_pk_bf16_f32 v22, v22, v23
    s_mov_b64 exec, 0xff
    buffer_store_dword v22, v25, s[52:55], 0 offen """ + outpol)
    a(f"s_cmp_eq_u32 s38, 0\ns_cbranch_scc0 L_cdone\ns_mov_b64 exec, 1\nv_mov_b32 v25, s32\nbuffer_store_dword v25, off, {WS}, 0")
    if pcdbg:
        srd(44, 28, 256)
        a("s_getpc_b64 s[36:37]\nL_pc2:\ns_sub_u32 s36, s36, L_pc2-" + NAME + "_kernel\nv_mov_b32 v25, s36\nbuffer_store_dword v25, off, s[44:47], 0 offset:4")
        if pcdbg == 2:
            a("s_load_dwordx16 s[8:23], s[0:1], 0\ns_waitcnt lgkmcnt(0)")
            for k_, r_ in enumerate((30, 31, 26, 28, 8, 10, 12, 14, 16, 20, 22, 24, 0)): a(f"v_mov_b32 v25, s{r_}\nbuffer_store_dword v25, off, s[44:47], 0 offset:{8 + 4 * k_}")
    a("L_cdone:")
    stamp('c', 13)
    if stamps and near: a(f"s_mov_b64 exec, -1\nds_read_b32 v30, v1 offset:{F_N}\ns_waitcnt lgkmcnt(0)\nv_readfirstlane_b32 s84, v30")
    dump('c')
    a("s_endpgm")
    a.lines += cold
    a("L_end:\ns_endpgm")
    if touch: a("L_t2:\ns_branch L_comp")

    L = a.lines
    ia = L.index("L_aux:"); ic = L.index("L_comp:"); il = L.index("L_loader:")
    ib = next(i for i in range(il, ia) if L[i].strip() == ("L_split:" if xfast else "s_barrier"))
    assert oth_lines[-1].strip() == "s_branch L_comp"
    k = oth_lines.index("L_cw:")
    oth = oth_lines[:oth_lines.index("  s_cbranch_scc0 L_cw")] + ["  s_cbranch_scc1 L_aw"] + oth_lines[k + 1:] + ["L_aw:"] + oth_lines[oth_lines.index("  s_cbranch_scc0 L_cw") + 1:k - 1]
    a.lines = L[:ib + 1] + ["  s_branch L_ld2"] + oth + L[ia:ic] + ["L_ld2:"] + L[ib + 1:ia] + L[ic:]
    head = open(f"cdna_kernels/{NAME}.s.ref").read().split("; Override")[0]
    out = head + f"; Generated by gen/gen.py (hand-designed kernel; see that script for the layout notes)\n; @launch grid=(256,1,1) block=(384,1,1) lds={L_END}\n"
    out += f'.amdgcn_target "amdgcn-amd-amdhsa--gfx950"\n.text\n'
    if align: out += ".p2align 12\n.fill 0x340, 4, 0xbf800000\n"
    out += f'.globl {NAME}_kernel\n.p2align 8\n.type {NAME}_kernel,@function\n'
    out += a.text()
    out += f""".section .rodata,"a"
.p2align 6
.amdhsa_kernel {NAME}_kernel
  .amdhsa_next_free_vgpr 184
  .amdhsa_next_free_sgpr 102
  .amdhsa_accum_offset 184
  .amdhsa_group_segment_fixed_size 0
  .amdhsa_kernarg_size 96
  .amdhsa_user_sgpr_count 2
  .amdhsa_user_sgpr_kernarg_segment_ptr 1
  .amdhsa_system_sgpr_workgroup_id_x 1
  .amdhsa_float_denorm_mode_32 3
.end_amdhsa_kernel
"""
    return out

if __name__ == "__main__":
    kw = eval("dict(" + (sys.argv[2] if len(sys.argv) > 2 else "") + ")")
    open(sys.argv[1], "w").write(gen(**kw))
```

```python
import sys
from asmlib import Asm

NAME = "parallel_sum__sliding_block_cached__swiglu_ffn__decode"

L_K, L_V, L_GU, L_WO, L_WD = 0, 32768, 65536, 81920, 98304
L_WQ = 106496
L_X  = L_WQ + 16384
L_XX = L_X + 1024
L_Q  = L_XX + 2048
L_P  = L_Q + 1280
L_ML = L_P + 1024
L_O  = L_ML + 128
L_H  = L_O + 256
L_F  = L_H + 128
L_END = L_F + 96
F_LD, F_H, F_A, F_IE, F_Q, F_P, F_O, F_D, F_N = 0, 4, 8, 12, 16, 32, 48, 64, 80

W_EP  = 0
W_VOT = 0x800
W_DEC = 0xc00
W_H1  = 0x1000
W_H1B = W_H1 + 256 * 256
W_HB  = W_H1B + 256 * 256
W_ML  = W_HB + 256 * 512
W_H3  = 0x48000
W_H2  = W_H3 + 64 * 4096
assert W_ML + 32 * 512 <= W_H3 and W_H3 % 16384 == 0
W_PR  = W_H2 + 1024 * 512
W_END = W_PR + 0x40000
W_ST  = 0x400000

LOG2E = 0x3fb8aa3b
SCALE = 0x3db504f3
SPIN = 1 << 16
EPOCH_STEP = 0x9e3779b9

def gen(TH=18, stamps=False, order=("Q", "K", "V", "GU", "WO", "WD"), warm=64, warmpol="sc1 nt", NA=24, h3depth=4,
        forceslow=False, h1trig=26, probe=None, abl=(), rot=True, h3gap=3, TH2=None, mimic=True, pfpol='', h1own=False, h3warm='sc1', pre=True, spec=True, sleep=0, prio=3, h2sleep=0, hbsleep=0, boost=24, gate='T', first=True, hbfirst=False, fine=False, local=True, pollpol='sc1', h1wt=True, lazy=4, ntail=8, wt=(), warmat='K', consffn=True, THK=None, THG=None, h3mask=False, lateb=False, both=False, auxfirst=False, align=False, touch=False, hold='Q0', spf=False, pk=True, h1warm=None, dip=None, dip2=None, kearly=True, look2=True, nap0=0, nap1=0, hbwarm=None, refine=True, h3pol='sc1', h3st='sc1', h3all=False, qloop=4, gx=0, light='hi', xboost=0x55, look1=False, pks=True, xfast=True, warmst=False, gnap=0, dual=False, dnap=2, dforce=None, probe_diag=0, h3x=0, near=True, gap=0, prpol='nt', evdbg=False, vat=None, vpol='sc1', dat='V', dpol='sc1', vst='sc1', vset=1, vsh=2, wbl=None, stpol='', prew=(), warmx=None, bseg=('Q', 'K', 'V', 'GU', 'WO', 'WD'), xb2=0x55, adapt=None, poll1=None, h3cf=True, outpol='', outwarm=None, joint=False, early=False, anap=0, pcdbg=False, evpad=None):
    if not local: warm = 0
    a = Asm()
    WS = "s[48:51]"
    WSZ = W_ST + 256 * 512 if stamps else W_END
    diag = bool(stamps or probe)

    def stamp(role, idx, f=False):
        if fine and role == 'c' and 1 <= idx <= 6 and not f: return
        if f and not fine: return
        if probe and (idx == 0 or probe == (role, idx)):
            a(f"s_memrealtime s[{96 if idx == 0 else 98}:{97 if idx == 0 else 99}]")
            if idx == 0: a("s_waitcnt lgkmcnt(0)\ns_mov_b32 s98, s96")
        if stamps and (stamps is True or idx in (0, 13) or (stamps == 'l' and (role, idx) in (('l', 1), ('l', 7), ('l', 2), ('l', 3), ('l', 9), ('c', 11)))):
            a(f"s_memtime s[{64 + 2 * idx}:{65 + 2 * idx}]")
            if idx == 0: a("s_memrealtime s[94:95]")
            if (role, idx) in (('l', 9), ('c', 13), ('a', 9)): a("s_memrealtime s[92:93]")
    def dump(role):
        if probe and probe[0] == role:
            L = a.label("pad")
            a("s_waitcnt lgkmcnt(0)\ns_sub_u32 s98, s98, s96\ns_mul_i32 s98, s98, 3\ns_add_u32 s96, s96, s98\ns_add_u32 s96, s96, 1500")
            a(f"{L}:\ns_sleep 4\ns_memrealtime s[98:99]\ns_waitcnt lgkmcnt(0)\ns_sub_u32 s35, s98, s96\ns_cmp_lt_i32 s35, 0\ns_cbranch_scc1 {L}")
        if not stamps or (stamps == 'min' and role != 'c') or (stamps == 'l' and role == 'a'): return
        a("s_waitcnt lgkmcnt(0)")
        a(f"s_lshl_b32 s60, s2, 9\ns_lshl_b32 s61, s3, 6\ns_add_u32 s60, s60, s61\ns_add_u32 s60, s60, {W_ST}")
        a("s_mov_b64 exec, 1\nv_mov_b32 v126, s60")
        for i in range(16):
            a(f"v_mov_b32 v127, s{64 + 2 * i}\nbuffer_store_dword v127, v126, {WS}, 0 offen offset:{4 * i}")
    cold = []
    class outofline:
        def __enter__(self): self.keep = a.lines; a.lines = []
        def __exit__(self, *x): cold.extend(a.lines); a.lines = self.keep
    def srd(d, p, size):
        a(f"s_mov_b32 s{d}, s{p}\ns_and_b32 s{d + 1}, s{p + 1}, 0xffff\ns_mov_b32 s{d + 2}, {size}\ns_mov_b32 s{d + 3}, 0x20000")
    events = ["X"]
    for nm in order:
        if nm == "K" and h1trig < 32: events.append("Kpart")
        if nm in ("V", "GU", "Q"): events += [nm + "0", nm + "1", nm + "2"]
        events.append(nm)
    events.insert(len(events) - 1 if ntail <= 8 else len(events) - 2, "T")
    def seg_flag(name):
        return events.index(name) + 1
    def lgk(n):
        a(f"s_waitcnt lgkmcnt({0 if diag else n})")
    def st2(ops, name=None):
        if not local or name in wt:
            for o in ops: a(o + " sc1" if o.startswith("buffer_store") else o)
            return
        L1 = a.label("slow"); L2 = a.label("st")
        a(f"s_cmp_eq_u32 s41, 0\ns_cbranch_scc1 {L1}")
        for o in ops: a(o + " " + stpol if o.startswith("buffer_store") else o)
        a(f"{L2}:")
        with outofline():
            a(f"{L1}:\ns_nop 1")
            for o in ops: a(o + " sc1" if o.startswith("buffer_store") else o)
            a(f"s_nop 1\ns_branch {L2}")
    def lds_spin(flag_off, want, reads, kind, tmp, nap=0):
        if not spec and len(reads) > 4 and kind == 'ge':
            lds_spin(flag_off, want, [], kind, tmp)
            for r in reads: a(r)
            a("s_waitcnt lgkmcnt(0)")
            return
        L = a.label("spin")
        a(f"s_mov_b32 s40, {SPIN}\n{L}:")
        if sleep and kind == 'ge': a(f"s_sleep {sleep}")
        elif nap: a(f"s_sleep {nap}")
        a(f"ds_read_b32 v{tmp}, v1 offset:{flag_off}" if kind == 'ge' else f"ds_read_b128 v[{tmp}:{tmp + 3}], v1 offset:{flag_off}")
        for r in reads: a(r)
        a("s_sub_u32 s40, s40, 1\ns_cbranch_scc1 L_end")
        a("s_waitcnt lgkmcnt(0)")
        if kind == 'ge':
            a(f"v_cmp_gt_u32 vcc, {want}, v{tmp}")
        else:
            a(f"v_and_b32 v{tmp + 2}, v{tmp + 2}, v{tmp + 3}\nv_bitop3_b32 v{tmp}, v{tmp}, v{tmp + 1}, v{tmp + 2} bitop3:0x80")
            a(f"v_cmp_eq_u32 vcc, 0, v{tmp}")
        a(f"s_cbranch_vccnz {L}")
    def wait_gate(tmp):
        if gate == 'IE': lds_spin(F_IE, 1, [], 'ge', tmp)
        elif gate == 'S': lds_spin(F_LD, "s38", [], 'ge', tmp)
        elif gate == 'T': lds_spin(F_LD, "s36", [], 'ge', tmp, nap=gnap)
        elif gate: lds_spin(F_LD, seg_flag(gate), [], 'ge', tmp)
        a(f"s_mov_b32 s40, {SPIN}")
    def inbox(d, cc):
        a(f"s_and_b32 s{d}, s{cc}, 1\ns_andn2_b32 s{cc}, s{cc}, 1\ns_lshl1_add_u32 s{d}, s{cc}, s{d}\ns_lshl_b32 s{d}, s{d}, 12\ns_add_u32 s{d}, s{d}, {W_H3 + h3x - (0x2000 if near else 0)}")
    def pick(r, t):
        a(f"s_bfe_u32 s{t}, s{r}, 0x80008\ns_and_b32 s{r}, s{r}, 0xff\ns_cmp_gt_u32 s{t}, s{r}\ns_cselect_b32 s{r}, 0x2000, 0")
    def tagbytes(dst, src):
        a(f"s_and_b32 s{dst}, s{src}, 0xff\ns_bfe_u32 s{dst + 1}, s{src}, 0x80008\ns_bfe_u32 s{dst + 2}, s{src}, 0x80010\ns_lshr_b32 s{dst + 3}, s{src}, 24")
    def chk(acc, r, t, first=False):
        a(f"v_xor_b32 v{acc}, s{t}, v{r}" if first else f"v_bitop3_b32 v{acc}, v{acc}, v{r}, s{t} bitop3:0xf6")
    def strip(acc, regs, first=False):
        for k, r in enumerate(regs): a(f"v_xor_b32 v{r}, s{56 + (k & 3)}, v{r}")
        for k in range(0, len(regs), 2):
            a(f"v_or_b32 v{acc}, v{regs[k]}, v{regs[k + 1]}" if first and k == 0 else f"v_or3_b32 v{acc}, v{acc}, v{regs[k]}, v{regs[k + 1]}")
    def tags():
        if not local:
            a(f"s_add_u32 s32, s32, {EPOCH_STEP:#x}\ns_mov_b32 s42, s32")
            return
        a(f"s_add_u32 s32, s32, {EPOCH_STEP:#x}\ns_getreg_b32 s42, hwreg(HW_REG_XCC_ID, 0, 4)\ns_add_u32 s42, s42, 1\ns_mul_i32 s42, s42, 0x01010101\ns_xor_b32 s42, s42, s32")

    ids = """s_and_b32 s6, s5, 7
    s_lshr_b32 s7, s5, 3"""
    if light == 'hi': pg = "s_mov_b32 s59, s4"
    else: pg = "s_lshr_b32 s59, s4, 1\ns_bitcmp" + ("0" if light == 'even' else "1") + "_b32 s4, 0\ns_cselect_b32 s33, 4, 0\ns_add_u32 s59, s59, s33"
    ids2 = pg + f"""
    s_lshl3_add_u32 s33, s7, s59
    v_mov_b32 v1, {L_F}"""
    a(f"{NAME}_kernel:")
    stamp('all', 0)
    a("""s_cmp_ge_u32 s2, 256
    s_cbranch_scc1 L_end
    s_load_dwordx16 s[8:23], s[0:1], 0
    s_load_dwordx8 s[24:31], s[0:1], 64
    v_readfirstlane_b32 s3, v0
    s_and_b32 s4, s2, 7
    s_lshr_b32 s5, s2, 3""")
    if gx: a(f"s_xor_b32 s4, s4, {gx}")
    a(ids)
    a("s_cmp_ge_u32 s3, 64\ns_cbranch_scc1 L_oth")
    a("L_loader:")
    if adapt: a("s_memtime s[60:61]")
    a(f"s_getpc_b64 s[36:37]\nL_pc:\nv_lshlrev_b32 v3, 7, v0\nglobal_load_dword v30, v3, s[36:37] {pfpol}\nv_add_u32 v3, 0x2000, v3\nv_min_u32 v3, L_end-L_pc, v3\nglobal_load_dword v30, v3, s[36:37] {pfpol}")
    a("""v_lshlrev_b32 v2, 4, v0
    v_lshrrev_b32 v6, 3, v0
    v_and_b32 v7, 7, v0
    v_lshlrev_b32 v15, 17, v6
    v_lshl_add_u32 v15, v7, 4, v15
    s_lshl_b32 s35, s7, 13
    s_lshl3_add_u32 s35, s4, s35
    s_add_u32 s35, s35, s6
    s_lshl_b32 s39, s35, 7
    s_mov_b32 s46, 4194304
    s_mov_b32 s47, 0x20000""")
    a(f"s_movk_i32 s54, 0x400\ns_mov_b32 s55, s47\ns_mov_b32 m0, {L_X}\ns_setprio {prio}")
    if qloop: a(f"s_add_u32 s38, s39, 0x20000")
    a(f"""s_waitcnt lgkmcnt(0)
    s_mov_b32 s52, s8
    s_and_b32 s53, s9, 0xffff
    buffer_load_dwordx4 v2, s[52:55], 0 offen lds
    s_mov_b32 m0, {L_WQ}
    s_mov_b32 s44, s14
    s_and_b32 s45, s15, 0xffff""")
    stamp('l', 1)
    if qloop: a("L_ql:")
    for i in range(qloop or 16):
        a("buffer_load_dwordx4 v15, s[44:47], s39 offen nt lds\ns_addk_i32 m0, 0x400\ns_addk_i32 s39, 0x2000")
    if qloop: a("s_cmp_lt_u32 s39, s38\ns_cbranch_scc1 L_ql")
    a(ids2)
    if diag: a("s_mov_b32 s3, 1")
    if boost:
        a("s_cmp_eq_u32 s6, 3\ns_cselect_b64 vcc, -1, 0")
        if xboost is not None: a(f"s_and_b32 s35, s2, 7\ns_bitcmp1_b32 {xboost}, s35\ns_cselect_b64 vcc, -1, vcc")
    if adapt: a("s_mov_b64 s[100:101], vcc")
    main_lines = a.lines; a.lines = []
    a("L_oth:\ns_lshr_b32 s3, s3, 6\nv_and_b32 v0, 63, v0")
    a(ids2)
    a("s_cmp_eq_u32 s3, 1\ns_cbranch_scc0 L_cw")
    if diag: a("s_mov_b32 s3, 0")
    a("v_lshlrev_b32 v2, 4, v0\ns_waitcnt lgkmcnt(0)\ns_load_dword s32, s[30:31], 0\ns_barrier\ns_branch L_aux")
    a("L_cw:\nv_mov_b32 v4, 0\nv_lshl_add_u32 v5, v0, 2, v1\ns_mov_b64 exec, 0xfffff\nds_write_b32 v5, v4\ns_mov_b64 exec, -1")
    a("s_waitcnt lgkmcnt(0)")
    if near:
        if vset < 4: a(f"s_cmp_lt_u32 s7, {vset}\ns_cselect_b32 s35, s3, 0\ns_cmp_eq_u32 s35, 5\ns_cbranch_scc0 L_nprb")
        else: a("s_cmp_eq_u32 s3, 5\ns_cbranch_scc0 L_nprb")
        a("s_load_dword s32, s[30:31], 0\ns_and_b32 s35, s6, 1\ns_andn2_b32 s36, s2, 63\ns_add_u32 s36, s36, s2\ns_lshl_b32 s36, s36, 7")
        srd(48, 30, WSZ)
        a(f"s_lshl_b32 s37, s35, 13\ns_add_u32 s36, s36, s37\ns_add_u32 s36, s36, {W_PR}\ns_xor_b32 s37, s36, 0x2000\ns_mov_b64 exec, 1")
        if 'nopr' in abl: a("s_cmp_ge_u32 s33, 28\ns_cbranch_scc0 L_npr2")
        a(f"buffer_load_dword v176, off, {WS}, s36 {prpol}\nbuffer_load_dword v177, off, {WS}, s37 {prpol}")
        if 'nopr' in abl: a("L_npr2:")
        a("s_getreg_b32 s37, hwreg(HW_REG_XCC_ID, 2, 1)\ns_xnor_b32 s35, s35, s37\ns_and_b32 s35, s35, 1")
        a(f"s_lshl3_add_u32 s38, s33, s6\ns_lshl_b32 s38, s38, {vsh}\ns_barrier\ns_waitcnt vmcnt(1)")
        if gap: a(f"s_sleep {gap}")
        a("s_getreg_b32 s36, hwreg(HW_REG_IB_STS, 0, 4)")
        if dforce is not None: a(f"s_mov_b32 s36, 1\ns_mov_b32 s35, {dforce}")
        a(f"s_lshl_b32 s36, s36, s35\ns_waitcnt lgkmcnt(0)\ns_add_u32 s32, s32, {EPOCH_STEP:#x}\ns_xor_b32 s36, s36, s32\nv_mov_b32 v22, s36")
        if 'nost' in abl: a("s_cmp_ge_u32 s33, 28\ns_cbranch_scc0 L_nst2")
        a(f"buffer_store_dword v22, off, {WS}, s38 offset:{W_VOT} {vst}")
        if 'nost' in abl: a("L_nst2:")
        a("s_mov_b64 exec, -1\ns_branch L_prd\nL_nprb:")
    a("s_barrier\nL_prd:")
    if nap0: a(f"s_sleep {nap0}")
    elif hold: lds_spin(F_LD, seg_flag(hold), [], 'ge', 20, nap=4)
    a("s_branch L_comp")
    oth_lines = a.lines; a.lines = main_lines
    def k_setup():
        a("""v_and_b32 v2, 15, v0
        v_lshrrev_b32 v3, 4, v0
        v_xor_b32 v4, v2, v3
        v_lshlrev_b32 v4, 4, v4
        v_lshlrev_b32 v5, 8, v3""")
        for i in range(4): a(f"v_xor_b32 v{8 + i}, {64 * i}, v4\nv_add_u32 v{8 + i}, v{8 + i}, v5")
        a("""s_lshl_b32 s35, s4, 24
        s_lshl_b32 s36, s5, 15
        s_add_u32 s35, s35, s36
        s_add_u32 s35, s35, 15728640""")
        a("s_lshl_b32 s40, s4, 12" if rot else "s_mov_b32 s40, 0")
        a("""s_add_u32 s44, s10, s35
        s_addc_u32 s45, s11, 0
        s_and_b32 s45, s45, 0xffff
        s_mov_b32 s46, 32768
        s_add_u32 s12, s12, s35
        s_addc_u32 s13, s13, 0""")
    nwarm = 1 if warm else 0
    def late_setup():
        a("""v_lshrrev_b32 v4, 2, v2
        v_xor_b32 v4, v4, v3
        v_lshl_add_u32 v12, v4, 6, v5
        v_and_b32 v4, 3, v0
        v_lshl_add_u32 v12, v4, 4, v12
        v_mul_u32_u24 v13, 28672, v6
        v_lshl_add_u32 v13, v7, 4, v13
        v_lshlrev_b32 v4, 1, v3
        v_xor_b32 v4, v4, v7
        v_lshlrev_b32 v4, 4, v4
        v_lshl_add_u32 v14, v6, 10, v4
        s_mul_i32 s41, s6, 229376
        s_lshl_b32 s37, s33, 7
        s_add_u32 s41, s41, s37
        s_lshl_b32 s42, s4, 19
        s_lshl_b32 s38, s7, 17
        s_add_u32 s42, s42, s38
        s_lshl_b32 s38, s6, 7
        s_add_u32 s42, s42, s38
        s_lshl_b32 s43, s33, 16
        s_add_u32 s43, s43, s38""")
        srd(48, 30, WSZ)
        if h3warm is not None:
            a("s_sub_u32 s37, s33, 28\ns_lshl3_add_u32 s37, s37, s6")
            inbox(36, 37)
            a("v_lshl_add_u32 v19, v0, 6, s36")
        if warm:
            a(f"s_lshl_b32 s36, s4, 7\ns_add_u32 s36, s36, s5\ns_lshl_b32 s37, s36, 9\ns_add_u32 s37, s37, {W_H2}")
            a("v_lshrrev_b32 v16, 3, v0\nv_lshlrev_b32 v16, 14, v16\nv_lshl_add_u32 v16, v7, 6, v16\nv_add_u32 v16, s37, v16")
            a(f"s_lshl_b32 s37, s36, 4\ns_add_u32 s37, s37, {W_ML}\nv_and_b32 v17, 3, v0\nv_lshlrev_b32 v17, 9, v17\nv_add_u32 v17, s37, v17")
            a(f"s_lshl_b32 s36, s4, 2\ns_add_u32 s36, s36, s7\ns_lshl_b32 s36, s36, 3\ns_add_u32 s36, s36, s6\ns_lshl_b32 s36, s36, 9\ns_add_u32 s36, s36, {W_HB}")
            a("v_lshl_add_u32 v18, v7, 6, s36\nv_cmp_gt_u32 s[56:57], 40, v0\nv_cndmask_b32 v17, v17, v18, s[56:57]\nv_cmp_gt_u32 s[56:57], 32, v0\nv_cndmask_b32 v16, v17, v16, s[56:57]")
    def seg_loads(name):
        r = []
        if name in ("K", "V"):
            base = L_K if name == "K" else L_V
            for i in range(32):
                v = f"v{8 + ((i >> 1) & 3)}" if name == "K" else "v12"
                r.append((f"s_mov_b32 m0, {base + 1024 * i}" if i % 4 == 0 else None, f"{v}, s[44:47], s40 offen offset:{1024 * (i & 3)}",
                          "s_addk_i32 s40, 0x1000\ns_and_b32 s40, s40, 0x7fff" if i % 4 == 3 else None))
        if name == "Q":
            for i in range(16): r.append((f"s_mov_b32 m0, {L_WQ + 1024 * i}", "v15, s[44:47], s39 offen", "s_addk_i32 s39, 0x2000"))
        if name == "GU":
            for i in range(16): r.append((f"s_mov_b32 m0, {L_GU + 1024 * i}", f"v13, s[{44 + 8 * (i & 1)}:{47 + 8 * (i & 1)}], s41 offen", "s_addk_i32 s41, 0xe00" if i & 1 else None))
        if name == "WO":
            for i in range(16): r.append((f"s_mov_b32 m0, {L_WO + 1024 * i}", "v14, s[44:47], s42 offen", "s_addk_i32 s42, 0x2000"))
        if name == "WD":
            for i in range(8): r.append((f"s_mov_b32 m0, {L_WD + 1024 * i}", "v14, s[44:47], s43 offen", "s_addk_i32 s43, 0x2000"))
        return r
    def seg_setup(name):
        if name == "K": k_setup()
        if name == "V": srd(44, 12, 32768)
        if name == "GU": srd(44, 20, 1835008); srd(52, 22, 1835008)
        if name == "GU" and xb2 is not None: a(f"s_and_b32 s35, s2, 7\ns_bitcmp1_b32 {xb2}, s35\ns_cselect_b64 {'s[100:101]' if adapt else 'vcc'}, -1, 0")
        if name == "WO": srd(44, 16, 4194304)
        if name == "WD": srd(44, 24, 1835008)
    def signal(f):
        a(f"v_mov_b32 v20, {f}\nds_write_b32 v1, v20 offset:{F_LD}")
        if events[f - 1] in order: stamp('l', 1 + order.index(events[f - 1]) if events[f - 1] != 'Q' else 7)
        if adapt and events[f - 1] in adapt:
            a(f"s_memtime s[62:63]\ns_waitcnt lgkmcnt(0)\ns_sub_u32 s62, s62, s60\ns_cmp_gt_u32 s62, {int(adapt[events[f - 1]] * 2.26)}\ns_cselect_b64 vcc, -1, s[100:101]")
    def emit(segs, n0, pend, final):
        n = n0
        for name in segs:
            seg_setup(name)
            th = TH if name in ("Q", "K", "V") or TH2 is None else TH2
            if name in ("Q", "K") and THK: th = THK
            if name == "GU" and THG: th = THG
            lo = seg_loads(name)
            th0 = th
            if name == "Q":
                for c in range(4): pend.append((n + 4 * c + 4, seg_flag("Q" + (str(c) if c < 3 else ""))))
                n += 16
                continue
            for idx, (m0, ad, inc) in enumerate(lo):
                if m0: a(m0)
                th = th0
                for d_ in (dip, dip2):
                    if d_ and d_[0] <= n < d_[1]: th = d_[2]
                if n == (THK or TH) + npre:
                    a("s_barrier")
                    if xfast:
                        a(f"s_waitcnt vmcnt({n - npre})")
                        signal(pend.pop(0)[1])
                    else: late_setup()
                    a("L_split:")
                if xfast and n == (THK or TH) + npre + 4: late_setup()
                if n >= th and n >= (THK or TH) + npre:
                    sig = pend and pend[0][0] <= n - (th - 1)
                    if boost and name in bseg and not sig and th == th0:
                        L = a.label("bo")
                        a(f"s_cbranch_vccnz {L}\ns_waitcnt vmcnt({th - 1})\n{L}:\ns_waitcnt vmcnt({boost - 1})")
                    else:
                        a(f"s_waitcnt vmcnt({th - 1})")
                    while pend and pend[0][0] <= n - (th - 1):
                        signal(pend.pop(0)[1])
                a(f"buffer_load_dwordx4 {ad} nt lds")
                if inc: a(inc)
                n += 1
                if name in ("V", "GU", "Q") and (idx + 1) % (len(lo) // 4) == 0 and idx + 1 < len(lo):
                    pend.append((n, seg_flag(name + str((idx + 1) // (len(lo) // 4) - 1))))
                if name == "K" and h1trig < 32 and idx + 1 == h1trig: pend.append((n, seg_flag("Kpart")))
            pend.append((n, seg_flag(name)))
            if name == "Q" and h1warm is not None:
                srd(52, 30, WSZ)
                a(f"s_lshl_b32 s35, s4, 5\ns_lshl_b32 s36, s6, 2\ns_add_u32 s35, s35, s36\ns_add_u32 s35, s35, s7\ns_lshl_b32 s35, s35, 8\ns_add_u32 s35, s35, {W_H1}")
                a(f"v_lshlrev_b32 v23, 6, v0\ns_mov_b64 exec, 15\nbuffer_load_dword v24, v23, s[52:55], s35 offen {h1warm}\ns_mov_b64 exec, -1")
                n += 1
            if name == warmat:
                if nwarm and warmx:
                    a(f"s_mov_b32 exec_lo, {warmx & 0xffffffff}\ns_mov_b32 exec_hi, {warmx >> 32}\nbuffer_load_dword v21, v16, {WS}, 0 offen {warmpol}\ns_mov_b64 exec, -1")
                    n += 1
                elif nwarm:
                    a(f"s_mov_b32 exec_hi, {0xfff if hbwarm is None else 0xf00}\n" + (f"v_mov_b32 v21, 0\nbuffer_store_dword v21, v16, {WS}, 0 offen" if warmst else f"buffer_load_dword v21, v16, {WS}, 0 offen {warmpol}") + "\ns_mov_b32 exec_hi, -1")
                    n += 1
                    if hbwarm:
                        a(f"s_mov_b32 exec_lo, 0\ns_mov_b32 exec_hi, 0xff\nbuffer_load_dword v21, v16, {WS}, 0 offen {hbwarm}\ns_mov_b64 exec, -1")
                        n += 1
                if h3warm is not None and not consffn:
                    a(f"buffer_load_dword v22, v19, {WS}, 0 offen {h3warm}")
                    n += 1
        if final:
            pend.append((n - ntail, seg_flag("T"))); pend.sort()
            pend[:] = sorted(set((e, len(events) if e == n else max(f for (e2, f) in pend if e2 <= e)) for (e, f) in pend))
            if gate == 'IE': a(f"v_mov_b32 v20, 1\nds_write_b32 v1, v20 offset:{F_IE}")
            stamp('l', 8)
            while pend:
                e, f = pend.pop(0)
                a(f"s_waitcnt vmcnt({n - e})")
                signal(f)
                if events[f - 1] == "T": stamp('l', 5)
        return n
    assert order[0] == "Q" and 16 < TH < 48
    npre = 3
    ffn = ("GU", "WD")
    k = min(order.index(x) for x in ffn)
    pend = [(npre, seg_flag("X"))]
    n = emit(order[:k], npre, pend, False)
    a("s_cmp_ge_u32 s33, 28\ns_cbranch_scc1 L_ldb")
    emit(order[k:], n, list(pend), True)
    a("s_branch L_lde\nL_ldb:")
    emit([x for x in order[k:] if x not in ffn], n, list(pend), True)
    if outwarm is not None:
        srd(52, 26, 1024)
        a(f"s_sub_u32 s37, s33, 28\ns_lshl3_add_u32 s37, s37, s6\ns_lshl_b32 s37, s37, 5\ns_mov_b64 exec, 1\nbuffer_load_dword v23, off, s[52:55], s37 {outwarm}\ns_mov_b64 exec, -1")
    if h3warm is not None and near:
        a(f"ds_read_b32 v22, v1 offset:{F_IE}\ns_waitcnt lgkmcnt(0)\nv_readfirstlane_b32 s36, v22\ns_cmp_eq_u32 s36, 0\ns_cbranch_scc1 L_lde")
        a(f"buffer_load_dword v22, v19, {WS}, s36 offen {h3warm}")
    elif h3warm is not None and consffn: a(f"buffer_load_dword v22, v19, {WS}, 0 offen {h3warm}")
    if dual:
        a(f"s_movk_i32 s36, 0x2000\nbuffer_load_dword v23, v19, {WS}, s36 offen {h3warm}\ns_waitcnt vmcnt(1)\ns_sleep {dnap}\ns_getreg_b32 s36, hwreg(HW_REG_IB_STS, 0, 4)")
        a(f"s_cmp_eq_u32 s36, 0\ns_cselect_b32 s36, 2, 1")
        if dforce: a(f"s_mov_b32 s36, {dforce}")
        a(f"v_mov_b32 v20, s36\nds_write_b32 v1, v20 offset:{F_IE}")
    if touch: a("s_branch L_lde\nL_t1:\ns_branch L_t2")
    a("L_lde:")
    stamp('l', 9)
    dump('l')
    a("s_endpgm")

    a("L_aux:")
    stamp('a', 1)
    srd(48, 30, WSZ)
    a("v_lshrrev_b32 v3, 3, v0\nv_and_b32 v4, 7, v0")
    a("""v_and_b32 v6, 1, v0
    v_lshlrev_b32 v6, 4, v6
    v_mov_b32 v7, 0xffff
    v_lshlrev_b32 v6, v6, v7
    v_bfe_u32 v7, v0, 1, 2""")
    for d in range(4): a(f"v_cmp_eq_u32 vcc, {d}, v7\nv_cndmask_b32 v{12 + d}, 0, v6, vcc")
    a(f"v_lshlrev_b32 v6, 5, v0\nv_add_u32 v6, {L_XX}, v6")
    a(f"s_lshl_b32 s35, s7, 9\ns_add_u32 s35, s35, {L_XX}\nv_lshl_add_u32 v7, v3, 6, s35")
    a(f"v_add_u32 v25, {L_X}, v2")
    lds_spin(F_LD, seg_flag("X"), ["ds_read_b128 v[8:11], v25"], 'ge', 24)
    stamp('a', 2)
    for k in range(4): a(f"v_lshlrev_b32 v{16 + 2 * k}, 16, v{8 + k}\nv_and_b32 v{17 + 2 * k}, 0xffff0000, v{8 + k}")
    def wave_sum(r, t):
        for n in (8, 4, 2, 1): a(f"v_add_f32_dpp v{r}, v{r}, v{r} row_ror:{n} row_mask:0xf bank_mask:0xf")
        a(f"v_mov_b32 v{t}, v{r}\nv_permlane16_swap_b32 v{r}, v{t}\nv_add_f32 v{r}, v{r}, v{t}")
        a(f"v_mov_b32 v{t}, v{r}\nv_permlane32_swap_b32 v{r}, v{t}\nv_add_f32 v{r}, v{r}, v{t}")
    a("""v_add_f32 v24, v16, v17
    v_add_f32 v25, v18, v19
    v_add_f32 v26, v20, v21
    v_add_f32 v27, v22, v23
    v_add_f32 v24, v24, v25
    v_add_f32 v26, v26, v27
    v_add_f32 v24, v24, v26""")
    wave_sum(24, 25)
    a("v_mul_f32 v24, 0x3b000000, v24")
    for k in range(8): a(f"v_sub_f32 v{32 + k}, v{16 + k}, v24")
    a("v_mul_f32 v26, v32, v32\nv_mul_f32 v27, v33, v33")
    for k in range(2, 8): a(f"v_fmac_f32 v{26 + (k & 1)}, v{32 + k}, v{32 + k}")
    a("v_add_f32 v26, v26, v27\nv_cvt_pk_bf16_f32 v24, 0, v24")
    wave_sum(26, 25)
    for k in range(8): a(f"v_sub_f32 v{16 + k}, v{16 + k}, v24")
    a("""v_mul_f32 v26, 0x3b000000, v26
    v_cvt_pk_bf16_f32 v26, 0, v26
    v_add_f32 v26, 0x3727c5ac, v26
    v_cvt_pk_bf16_f32 v26, 0, v26
    v_sqrt_f32 v26, v26""")
    for k in range(8): a(f"v_cvt_pk_bf16_f32 v{16 + k}, 0, v{16 + k}")
    a("v_cvt_pk_bf16_f32 v26, 0, v26\nv_rcp_f32 v27, v26")
    for k in range(8): a(f"v_mul_f32 v{32 + k}, v{16 + k}, v27")
    for k in range(8): a(f"v_fma_f32 v{16 + k}, -v{32 + k}, v26, v{16 + k}")
    for k in range(8): a(f"v_fmac_f32 v{32 + k}, v{16 + k}, v27")
    for k in range(8): a(f"v_cvt_pk_bf16_f32 v{32 + k}, v{32 + k}, v{32 + k}")
    a("ds_write_b128 v6, v[32:35]\nds_write_b128 v6, v[36:39] offset:16")
    for k in range(4): a(f"ds_read_b128 v[{16 + 4 * k}:{19 + 4 * k}], v7 offset:{16 * k}")
    a("""v_lshlrev_b32 v5, 5, v4
    v_bfe_u32 v6, v0, 4, 1
    v_lshl_add_u32 v5, v6, 4, v5
    v_mov_b32 v61, v5
    v_lshrrev_b32 v6, 5, v0
    v_lshl_add_u32 v5, v6, 3, v5
    s_lshl_b32 s35, s4, 5
    s_lshl_b32 s36, s6, 2
    s_add_u32 s35, s35, s36
    s_add_u32 s35, s35, s7
    s_lshl_b32 s35, s35, 8""")
    a(f"s_add_u32 s35, s35, {W_H1}\nv_add_u32 v9, s35, v61\nv_mov_b32 v56, 0xff\ns_mov_b32 s43, {W_H1B - W_H1}")
    a("s_waitcnt lgkmcnt(0)")
    stamp('a', 3)
    tags()
    a("v_mov_b32 v57, s42\nv_lshrrev_b32 v58, 8, v57\nv_lshrrev_b32 v59, 16, v57\nv_lshrrev_b32 v60, 24, v57")
    a(f"v_add_u32 v11, {L_WQ}, v2")
    for i in range(16):
        for d in range(4): a(f"v_and_b32 v{128 + 4 * (i & 7) + d}, v{16 + i}, v{12 + d}")
        if i == 7 or i == 11 or i == 15:
            for c in ((0, 1) if i == 7 else (2,) if i == 11 else (3,)):
                lds_spin(F_LD, seg_flag("Q" + (str(c) if c < 3 else "")), [f"ds_read_b128 v[{64 + 4 * k}:{67 + 4 * k}], v11 offset:{1024 * k}" for k in range(4 * c, 4 * c + 4)], 'ge', 62)
                for k in range(4 * c, 4 * c + 4):
                    a(f"v_mfma_f32_16x16x32_bf16 v[32:35], v[{128 + 4 * (k & 7)}:{131 + 4 * (k & 7)}], v[{64 + 4 * k}:{67 + 4 * k}], {'0' if k == 0 else 'v[32:35]'}")
    stamp('a', 4)
    a("""v_permlane32_swap_b32 v32, v34
    v_permlane32_swap_b32 v33, v35
    v_add_f32_dpp v48, v34, v32 row_shl:8 row_mask:0xf bank_mask:0xf
    v_add_f32_dpp v49, v35, v33 row_shl:8 row_mask:0xf bank_mask:0xf
    v_add_u32 v48, 0x80, v48
    v_add_u32 v49, 0x80, v49
    v_mov_b32 v50, v48
    v_mov_b32 v51, v49
    v_permlane32_swap_b32 v48, v50
    v_permlane32_swap_b32 v49, v51
    s_mov_b64 exec, 0x00ff00ff""")
    for k in range(4): a(f"v_bfi_b32 v{52 + k}, v56, v{57 + k}, v{48 + k}")
    a(f"buffer_store_dwordx4 v[52:55], v9, {WS}, 0 offen" + ("" if local and not h1wt else " sc1"))
    if 'noh1b' not in abl and local:
        a("v_mov_b32 v57, s32\nv_lshrrev_b32 v58, 8, v57\nv_lshrrev_b32 v59, 16, v57\nv_lshrrev_b32 v60, 24, v57")
        for k in range(4): a(f"v_bfi_b32 v{160 + k}, v56, v{57 + k}, v{48 + k}")
        if lateb: a("v_mov_b32 v164, v9")
        else: a(f"buffer_store_dwordx4 v[160:163], v9, {WS}, s43 offen sc1")
    a(f"s_mov_b64 exec, -1\nv_mov_b32 v20, 1\nds_write_b32 v1, v20 offset:{F_A}")
    stamp('a', 5)
    a("L_aux2:")
    def dec_load(pol):
        a(f"s_mov_b64 exec, 1\nbuffer_load_dwordx4 v[44:47], off, {WS}, s33 offset:{W_DEC} {pol}\ns_mov_b64 exec, -1")
    def dec_first():
        a("s_not_b32 s37, s32\nv_mov_b32 v44, s37\ns_lshl_b32 s33, s6, 4")
        lds_spin(F_LD, seg_flag(dat), [], 'ge', 28, nap=lazy)
        dec_load(dpol)
    def dec_use(tag, cnt):
        a(f"s_mov_b32 s40, {SPIN}\ns_waitcnt vmcnt({cnt})\nL_vc0{tag}:\ns_mov_b64 exec, 1")
        for k in range(4): a(f"v_xor_b32 v{44 + k}, s32, v{44 + k}")
        a("s_movk_i32 s39, 0x2000\nv_or_b32 v41, v44, v45\nv_or3_b32 v41, v41, v46, v47\nv_cmp_lt_u32 vcc, 1, v41")
        for k in range(4): a(f"v_lshlrev_b32 v{44 + k}, v{44 + k}, s39")
        a(f"s_cbranch_vccnz L_vc1{tag}\nds_write_b128 v1, v[44:47] offset:{F_D}\ns_mov_b64 exec, -1")
        with outofline():
            a(f"L_vc1{tag}:\ns_waitcnt vmcnt(0)")
            dec_load('sc1')
            a(f"s_sub_u32 s40, s40, 1\ns_cbranch_scc1 L_end\ns_waitcnt vmcnt(0)\ns_branch L_vc0{tag}")
    a("s_cmp_ge_u32 s33, 28\ns_cbranch_scc1 " + ("L_probe" if probe_diag else "L_dec" if near else "L_adone"))
    if near:
        with outofline():
            a("L_dec:")
            if vat: lds_spin(F_LD, seg_flag(vat), [], 'ge', 28, nap=lazy)
            nvc = 1 if (vset, vsh) == (1, 2) else 4
            if nvc == 1: a(f"v_lshlrev_b32 v41, 2, v0\nbuffer_load_dword v44, v41, {WS}, 0 offen offset:{W_VOT} {vpol}")
            else: a(f"buffer_load_dwordx4 v[44:47], v2, {WS}, 0 offen offset:{W_VOT} {vpol}")
            a("s_lshl3_add_u32 s35, s33, s6\ns_lshl_b32 s35, s35, 2\ns_waitcnt vmcnt(0)")
            for k in range(nvc):
                a(f"v_xor_b32 v41, s32, v{44 + k}")
                for c in range(2):
                    a(f"v_cmp_eq_u32 vcc, {c + 1}, v41\ns_bcnt1_i32_b64 s{(36 if k == 0 else 38) + c}, vcc")
                if k: a("s_add_u32 s36, s36, s38\ns_add_u32 s37, s37, s39")
            a("s_cmp_gt_u32 s37, s36\ns_cselect_b32 s38, 0, 1\ns_getreg_b32 s39, hwreg(HW_REG_XCC_ID, 2, 1)\ns_xor_b32 s39, s39, s38")
            a(f"s_xor_b32 s38, s39, s32\ns_lshl_b32 s39, 0x2000, s39\nv_mov_b32 v41, s39\nv_mov_b32 v42, s38\nds_write_b32 v1, v41 offset:{F_IE}")
            a(f"s_mov_b64 exec, 1\nbuffer_store_dword v42, off, {WS}, s35 offset:{W_DEC - 896} sc1\ns_mov_b64 exec, -1")
            if stamps or evdbg: a(f"s_lshl_b32 s37, s37, 8\ns_add_u32 s36, s36, s37\nv_mov_b32 v41, s36\nds_write_b32 v1, v41 offset:{F_N}")
            if evdbg:
                srd(44, 28, 256)
                a(f"s_getreg_b32 s37, hwreg(HW_REG_XCC_ID, 0, 4)\ns_lshl_b32 s37, s37, 24\ns_add_u32 s36, s36, s37\nv_mov_b32 v41, s36\ns_sub_u32 s35, s35, 896\nv_mov_b32 v42, s35\nbuffer_store_dword v41, v42, s[44:47], 0 offen")
            if evpad:
                a({'max': "s_max_u32 s60, s36, s37", 'min': "s_min_u32 s60, s36, s37", 'ev0': "s_mov_b32 s60, s36", 'ev1': "s_mov_b32 s60, s37"}[evpad])
            dec_first()
            dec_use('a', 0)
            if evpad:
                a("s_memrealtime s[62:63]\ns_waitcnt lgkmcnt(0)\ns_mul_i32 s60, s60, 200\ns_add_u32 s60, s60, s62\ns_add_u32 s60, s60, 2000")
                a("L_evp:\ns_sleep 4\ns_memrealtime s[62:63]\ns_waitcnt lgkmcnt(0)\ns_sub_u32 s35, s62, s60\ns_cmp_lt_i32 s35, 0\ns_cbranch_scc1 L_evp")
            a("s_branch L_adone")
    if probe_diag:
        with outofline():
            a(f"L_probe:\ns_sub_u32 s35, s33, 28\ns_lshl3_add_u32 s35, s35, s6\ns_lshr_b32 s36, s35, 2\ns_lshl_b32 s36, s36, 14\ns_and_b32 s35, s35, 3\ns_lshl_b32 s35, s35, 10\ns_add_u32 s36, s36, s35\ns_add_u32 s36, s36, {W_PR}")
            if probe_diag == 3:
                lds_spin(F_LD, seg_flag("Kpart"), [], 'ge', 28, nap=2)
                a("s_mul_i32 s36, s6, 768\ns_add_u32 s36, s36, 0x14000")
            for t in range(12):
                a(f"s_memtime s[56:57]\ns_waitcnt lgkmcnt(0)\ns_load_dword s58, s[30:31], s36 offset:{(t >> 1) * 128 + (t & 1) * 8192}{' glc' if probe_diag == 2 else ''}\ns_waitcnt lgkmcnt(0)\ns_memtime s[60:61]\ns_waitcnt lgkmcnt(0)\ns_sub_u32 s{66 + 2 * t}, s60, s56")
            a("s_memtime s[90:91]\ns_branch L_adump")
    if 'noffn' in abl: a("s_branch L_adone")
    a(f"s_lshl_b32 s35, s6, 8\ns_add_u32 s35, s35, {L_XX}\nv_lshl_add_u32 v7, v3, 5, s35")
    a("ds_read_b128 v[16:19], v7\nds_read_b128 v[20:23], v7 offset:16")
    a(f"s_lshl_b32 s35, s4, 2\ns_add_u32 s35, s35, s7\ns_lshl_b32 s35, s35, 12\ns_add_u32 s35, s35, {W_HB}")
    a("v_add_u32 v10, s35, v2\ns_lshl_b32 s36, s6, 9\ns_add_u32 s35, s35, s36\nv_lshl_add_u32 v9, v5, 1, s35")
    a(f"v_add_u32 v11, {L_GU}, v2")
    a("""v_bfe_u32 v8, v0, 4, 1
    v_lshlrev_b32 v8, 6, v8
    v_bfe_u32 v6, v0, 1, 2
    v_lshl_add_u32 v8, v6, 4, v8
    v_bfe_u32 v6, v0, 3, 1
    v_lshl_add_u32 v8, v6, 3, v8
    v_and_b32 v6, 1, v0
    v_lshl_add_u32 v8, v6, 2, v8
    v_lshrrev_b32 v6, 5, v0
    v_lshl_add_u32 v8, v6, 1, v8""")
    a(f"v_add_u32 v8, {L_H}, v8")
    tagbytes(56, 32)
    for k in range(4): a(f"v_mov_b32 v{57 + k}, s{56 + k}")
    a("s_waitcnt lgkmcnt(0)")
    for i in range(8):
        for d in range(4): a(f"v_and_b32 v{128 + 4 * i + d}, v{16 + i}, v{12 + d}")
    if 'hb' in prew:
        for k in range(4): a(f"v_not_b32 v{48 + k}, v{57 + k}")
        a(f"s_mov_b32 exec_lo, 0x00ff00ff\ns_mov_b32 exec_hi, 0x00ff00ff\nbuffer_store_dwordx4 v[48:51], v9, {WS}, 0 offen\ns_mov_b64 exec, -1")
    if near: dec_first()
    for c in range(4):
        rd = [f"ds_read_b128 v[{64 + 4 * i}:{67 + 4 * i}], v11 offset:{1024 * i}" for i in range(4 * c, 4 * c + 4)]
        if c == 3: rd.append(f"ds_read_b128 v[24:27], v1 offset:{F_Q}")
        if c == 0 and lazy: lds_spin(F_LD, seg_flag("V"), [], 'ge', 28, nap=lazy)
        lds_spin(F_LD, seg_flag("GU" + (str(c) if c < 3 else "")), rd, 'ge', 28)
        if c == 3: stamp('a', 6)
        for i in range(2 * c, 2 * c + 2):
            for m in range(2):
                cc = "0" if i == 0 else f"v[{32 + 4 * m}:{35 + 4 * m}]"
                a(f"v_mfma_f32_16x16x32_bf16 v[{32 + 4 * m}:{35 + 4 * m}], v[{128 + 4 * i}:{131 + 4 * i}], v[{64 + 8 * i + 4 * m}:{67 + 8 * i + 4 * m}], {cc}")
    a("v_and_b32 v26, v26, v27\nv_bitop3_b32 v24, v24, v25, v26 bitop3:0x80\nv_readfirstlane_b32 s41, v24\ns_and_b32 s41, s41, 2")
    a("""v_permlane32_swap_b32 v32, v34
    v_permlane32_swap_b32 v33, v35
    v_permlane32_swap_b32 v36, v38
    v_permlane32_swap_b32 v37, v39
    v_add_f32_dpp v48, v34, v32 row_shl:8 row_mask:0xf bank_mask:0xf
    v_add_f32_dpp v50, v35, v33 row_shl:8 row_mask:0xf bank_mask:0xf
    v_add_f32_dpp v49, v38, v36 row_shl:8 row_mask:0xf bank_mask:0xf
    v_add_f32_dpp v51, v39, v37 row_shl:8 row_mask:0xf bank_mask:0xf
    s_mov_b32 exec_lo, 0x00ff00ff
    s_mov_b32 exec_hi, 0x00ff00ff""")
    for k in range(4): a(f"v_add_u32 v{48 + k}, 0x80, v{48 + k}")
    for k in range(4): a(f"v_bfi_b32 v{48 + k}, v56, v{57 + k}, v{48 + k}")
    st2([f"buffer_store_dwordx4 v[48:51], v9, {WS}, 0 offen"], 'hb')
    a("s_mov_b64 exec, -1")
    stamp('a', 7)
    if near: dec_use('b', 1)
    L = a.label("hb")
    a(f"s_mov_b32 s38, {max(seg_flag('WO'), seg_flag('WD'))}\ns_mov_b32 s36, {seg_flag('T')}\ns_mov_b32 s39, {0 if hbfirst else 1}")
    a(f"s_mov_b32 s40, {SPIN}\n{L}:")
    if gate:
        a("s_cmp_eq_u32 s39, 1\ns_cbranch_scc0 L_hbg")
        wait_gate(28)
        if anap: a(f"s_sleep {anap}")
        a("L_hbg:\ns_add_u32 s39, s39, 1")
    for i in range(4): a(f"buffer_load_dwordx4 v[{64 + 4 * i}:{67 + 4 * i}], v10, {WS}, 0 offen offset:{1024 * i} {pollpol}")
    a("s_sub_u32 s40, s40, 1\ns_cbranch_scc1 L_end")
    for i in range(4):
        a(f"s_waitcnt vmcnt({3 - i})")
        strip(20, [64 + 4 * i + k for k in range(4)], first=(i == 0))
        if i:
            for k in range(4): a(f"v_add_f32 v{64 + k}, v{64 + k}, v{64 + 4 * i + k}")
    a(f"v_and_b32 v20, 0xff, v20\nv_cmp_ne_u32 vcc, 0, v20")
    if hbsleep: a(f"s_cbranch_vccz L_hbok\ns_sleep {hbsleep}\ns_branch {L}\nL_hbok:")
    else: a(f"s_cbranch_vccnz {L}")
    stamp('a', 8)
    a(f"""v_permlane32_swap_b32 v64, v66
    v_permlane32_swap_b32 v65, v67
    v_add_f32 v64, v64, v66
    v_add_f32 v66, v65, v67
    v_cvt_pk_bf16_f32 v64, 0, v64
    v_cvt_pk_bf16_f32 v66, 0, v66
    v_mul_f32 v20, {(LOG2E | 0x80000000):#x}, v64
    v_exp_f32 v20, v20
    v_add_f32 v20, 1.0, v20
    v_rcp_f32 v21, v20
    v_mul_f32 v22, v64, v21""")
    if refine: a("""v_fma_f32 v23, -v22, v20, v64
    v_fma_f32 v23, v23, v21, v22
    v_cmp_class_f32 vcc, v23, 3
    v_cndmask_b32 v22, v23, v22, vcc""")
    a(f"""v_cvt_pk_bf16_f32 v22, 0, v22
    v_mul_f32 v22, v22, v66
    v_cvt_pk_bf16_f32 v22, v22, v22
    v_mov_b32 v21, 1
    ds_write_b16 v8, v22
    ds_write_b32 v1, v21 offset:{F_H}""")
    a("L_adone:")
    if lateb and local:
        a(f"s_mov_b64 exec, 0x00ff00ff\nbuffer_store_dwordx4 v[160:163], v164, {WS}, s43 offen sc1")
    stamp('a', 9)
    a("L_adump:")
    dump('a')
    a("s_endpgm")

    a("L_comp:\ns_sub_u32 s34, s3, 2")
    a("s_load_dword s32, s[30:31], 0")
    srd(48, 30, WSZ)
    if warm and not h1wt:
        a("s_cmp_eq_u32 s34, 1\ns_cbranch_scc0 L_nowarm")
        a(f"s_lshl_b32 s35, s4, 5\ns_lshl_b32 s36, s6, 2\ns_add_u32 s35, s35, s36\ns_add_u32 s35, s35, s7\ns_lshl_b32 s35, s35, 8\ns_add_u32 s35, s35, {W_H1}")
        a(f"v_lshlrev_b32 v4, 6, v0\ns_mov_b64 exec, 15\nbuffer_load_dword v124, v4, {WS}, s35 offen {warmpol}\ns_mov_b64 exec, -1\nL_nowarm:")
    a("""v_and_b32 v2, 15, v0
    v_lshrrev_b32 v3, 4, v0""")
    a("""v_xor_b32 v4, v2, v3
    v_lshlrev_b32 v4, 4, v4
    v_lshrrev_b32 v5, 2, v2
    v_lshlrev_b32 v5, 11, v5
    v_and_b32 v6, 3, v0
    v_lshl_add_u32 v5, v6, 8, v5
    s_lshr_b32 s35, s34, 1
    s_lshl_b32 s35, s35, 14
    s_and_b32 s36, s34, 1
    s_lshl_b32 s36, s36, 10
    s_add_u32 s35, s35, s36
    v_add_u32 v5, s35, v5""")
    for s_ in range(4):
        a(f"v_xor_b32 v{8 + s_}, {64 * s_}, v4\nv_add_u32 v{8 + s_}, v{8 + s_}, v5")
    a("""v_lshrrev_b32 v4, 2, v2
    v_xor_b32 v5, s34, v4
    v_lshlrev_b32 v5, 6, v5
    v_lshl_add_u32 v5, v4, 8, v5
    v_lshrrev_b32 v7, 1, v3
    v_lshl_add_u32 v5, v7, 10, v5
    v_and_b32 v7, 1, v3
    v_lshl_add_u32 v5, v7, 5, v5
    v_lshl_add_u32 v5, v6, 3, v5""")
    a(f"v_add_u32 v12, {L_V}, v5")
    a("""v_lshl_add_u32 v5, v3, 2, v4
    v_lshrrev_b32 v7, 1, v5
    v_and_b32 v7, 3, v7
    v_xor_b32 v7, s34, v7
    v_lshlrev_b32 v7, 5, v7
    v_lshl_add_u32 v7, v5, 7, v7
    v_lshl_add_u32 v14, v6, 3, v7""")
    a(f"v_add_u32 v14, {L_WO}, v14")
    a(f"v_mul_u32_u24 v15, 320, v6\nv_lshl_add_u32 v15, v3, 4, v15\nv_add_u32 v15, {L_Q}, v15")
    a("""v_lshrrev_b32 v4, 5, v0
    v_lshlrev_b32 v16, 8, v4
    v_and_b32 v5, 1, v3
    v_lshl_add_u32 v16, v5, 10, v16
    v_lshl_add_u32 v16, v2, 4, v16
    s_lshl_b32 s35, s4, 13
    s_lshl_b32 s36, s34, 11
    s_add_u32 s35, s35, s36""")
    a(f"s_add_u32 s35, s35, {W_H1}\nv_add_u32 v16, s35, v16")
    a(f"s_mul_i32 s35, s34, 320\ns_add_u32 s35, s35, {L_Q}\nv_and_b32 v5, 31, v0\nv_lshl_add_u32 v17, v5, 3, s35\nv_lshl_add_u32 v17, v4, 2, v17")
    a("s_lshl_b32 s35, s34, 2\nv_add_u32 v18, s35, v1")
    a(f"s_lshl_b32 s35, s34, 8\ns_add_u32 s35, s35, {L_P}\nv_lshl_add_u32 v19, v3, 5, s35\nv_lshl_add_u32 v19, v6, 3, v19")
    a(f"s_lshl_b32 s35, s34, 4\ns_add_u32 s35, s35, {L_ML}\nv_lshl_add_u32 v112, v0, 2, s35")
    a(f"v_lshlrev_b32 v113, 3, v0\nv_add_u32 v113, {L_P}, v113")
    a(f"v_lshlrev_b32 v114, 4, v4\nv_add_u32 v114, {L_ML}, v114")
    a(f"s_lshl_b32 s35, s34, 2\ns_add_u32 s35, s35, {L_ML}\nv_lshl_add_u32 v13, v6, 4, s35\nv_mov_b32 v144, {L_ML}")
    a("s_lshl_b32 s35, s4, 7\ns_add_u32 s35, s35, s5")
    a(f"s_lshl_b32 s36, s35, 9\ns_lshl_b32 s37, s34, 7\ns_add_u32 s36, s36, s37\ns_add_u32 s36, s36, {W_H2}\nv_lshl_add_u32 v115, v5, 2, s36\nv_lshl_add_u32 v115, v4, 14, v115")
    a(f"s_lshl_b32 s36, s34, 5\ns_add_u32 s36, s36, s35\ns_lshl_b32 s36, s36, 4\ns_add_u32 s36, s36, {W_ML}\nv_mov_b32 v116, s36")
    a("v_lshrrev_b32 v4, 3, v0\nv_and_b32 v5, 7, v0\ns_lshl_b32 s35, s4, 2\ns_add_u32 s35, s35, s7")
    a(f"s_lshl_b32 s36, s35, 14\ns_lshl_b32 s37, s34, 7\ns_add_u32 s36, s36, s37\ns_add_u32 s36, s36, {W_H2}")
    a("v_lshlrev_b32 v117, 9, v4\nv_lshl_add_u32 v117, v5, 4, v117\nv_add_u32 v117, s36, v117")
    a(f"s_lshl_b32 s36, s35, 9\ns_add_u32 s36, s36, {W_ML}\nv_and_b32 v118, 31, v0\nv_lshl_add_u32 v118, v118, 4, s36\nv_lshlrev_b32 v123, 2, v4")
    a("""v_and_b32 v119, 3, v0
    v_lshlrev_b32 v119, 4, v119
    v_bfe_u32 v4, v0, 2, 1
    v_lshl_add_u32 v119, v4, 3, v119
    v_bfe_u32 v4, v0, 4, 1
    v_lshl_add_u32 v119, v4, 2, v119
    v_lshrrev_b32 v4, 5, v0
    v_lshl_add_u32 v119, v4, 1, v119""")
    a(f"s_lshl_b32 s35, s34, 6\ns_add_u32 s35, s35, {L_O}\nv_add_u32 v119, s35, v119")
    a(f"v_lshlrev_b32 v120, 4, v3\nv_add_u32 v120, {L_O}, v120")
    a("s_lshl2_add_u32 s37, s6, s34")
    inbox(35, 37)
    a("s_lshl2_add_u32 s36, s4, s7\ns_lshl_b32 s36, s36, 7\ns_add_u32 s35, s35, s36\nv_lshl_add_u32 v121, v0, 3, s35")
    a("s_movk_i32 s52, 0x1000\ns_movk_i32 s53, 0x2000\ns_movk_i32 s54, 0x3000\ns_mov_b32 s55, 0x8000\nv_mov_b32 v125, 0xff")
    a("s_waitcnt lgkmcnt(0)")
    tags()
    a("v_lshlrev_b32 v4, 3, v6\nv_lshrrev_b32 v122, v4, s32\nv_mov_b32 v147, s32\nv_mov_b32 v149, s32")
    tagbytes(56, 42)
    if 'noc' in abl: a("s_branch L_cdone")
    if 'h2' in prew:
        a(f"v_not_b32 v20, v122\nbuffer_store_dword v20, v115, {WS}, 0 offen\nbuffer_store_dword v20, v115, {WS}, s55 offen")
    kreads = [f"ds_read_b128 v[{32 + 16 * t + 4 * s}:{35 + 16 * t + 4 * s}], v{8 + s} offset:{L_K + 8192 * t}" for t in range(2) for s in range(4)]
    a("s_mov_b32 s43, 0\ns_mov_b32 s41, 3\ns_mov_b32 s39, 0")
    if forceslow: a(f"s_mov_b32 s39, {NA}")
    if h1own: lds_spin(F_A, 1, [], 'ge', 20)
    else:
        if nap1: a(f"s_sleep {nap1}")
        if both: lds_spin(F_A, 1, [], 'ge', 20, nap=lazy)
        lds_spin(F_LD, seg_flag("Kpart" if h1trig < 32 else "K"), [], 'ge', 20, nap=lazy)
    stamp('c', 1)
    L = a.label("h1"); L2 = a.label("h1k")
    a(f"{L}:")
    if local:
        a(f"s_cmp_eq_u32 s39, {NA}\ns_cbranch_scc1 L_h1sw\n{L2}:")
        with outofline():
            a(f"L_h1sw:\ns_mov_b32 s43, {W_H1B - W_H1}\ns_mov_b32 s41, 1")
            tagbytes(56, 32)
            a(f"s_branch {L2}")
    for i in range(2): a(f"buffer_load_dwordx4 v[{96 + 4 * i}:{99 + 4 * i}], v16, {WS}, s43 offen offset:{512 * i} {pollpol}")
    a(f"s_add_u32 s39, s39, 1\ns_cmp_gt_u32 s39, {SPIN}\ns_cbranch_scc1 L_end")
    if h1trig == 32 and not h1own:
        for r in kreads: a(r)
    elif kearly: lds_spin(F_LD, seg_flag("K"), kreads, 'ge', 20)
    a("s_waitcnt vmcnt(0)")
    strip(20, list(range(96, 104)), first=True)
    for k in range(4): a(f"v_add_f32 v{96 + k}, v{96 + k}, v{100 + k}")
    a(f"""v_and_b32 v20, 0xff, v20
    v_cmp_ne_u32 vcc, 0, v20
    v_permlane32_swap_b32 v96, v98
    v_permlane32_swap_b32 v97, v99
    s_cbranch_vccnz {L}""")
    stamp('c', 2)
    if stamps is True: a("s_mov_b32 s88, s39")
    a("""v_add_f32 v96, v96, v98
    v_add_f32 v97, v97, v99
    v_mov_b32 v21, s41
    v_cvt_pk_bf16_f32 v96, v96, v97""")
    a(f"ds_write_b32 v17, v96\nds_write_b32 v18, v21 offset:{F_Q}")
    tagbytes(56, 32)
    if (h1trig < 32 or h1own) and not kearly: lds_spin(F_LD, seg_flag("K"), kreads, 'ge', 20)
    lds_spin(F_Q, 0, [f"ds_read_b128 v[{96 + 4 * s}:{99 + 4 * s}], v15 offset:{64 * s}" for s in range(4)] + ([f"ds_read_b32 v145, v1 offset:{F_LD}"] if look1 else []), 'all4', 20)
    stamp('c', 3)
    for s in range(4):
        for t in range(2):
            c = "0" if s == 0 else f"v[{24 + 4 * t}:{27 + 4 * t}]"
            a(f"v_mfma_f32_16x16x32_bf16 v[{24 + 4 * t}:{27 + 4 * t}], v[{32 + 16 * t + 4 * s}:{35 + 16 * t + 4 * s}], v[{96 + 4 * s}:{99 + 4 * s}], {c}")
    a("v_readfirstlane_b32 s41, v20\ns_and_b32 s41, s41, 2")
    if 'ml' in prew:
        a(f"s_cselect_b64 exec, 1, 0\nv_not_b32 v153, v147\nv_not_b32 v155, v147\nbuffer_store_dwordx4 v[152:155], v116, {WS}, 0 offen\ns_mov_b64 exec, -1")
    vread = lambda u: f"ds_read_b64_tr_b16 v[{64 + 2 * u}:{65 + 2 * u}], v12 offset:{2048 * u}"
    vflag = lambda c: seg_flag("V" + (str(c) if c < 3 else ""))
    if look1:
        a("v_readfirstlane_b32 s38, v145")
        for c in range(4):
            a(f"s_cmp_lt_u32 s38, {vflag(c)}\ns_cbranch_scc1 L_va")
            for u in range(4 * c, 4 * c + 4): a(vread(u))
        a("L_va:")
    else: a("s_mov_b32 s38, 0")
    a(f"s_mov_b32 s35, {SCALE:#x}\ns_mov_b32 s36, {LOG2E:#x}")
    if pks: a("s_mov_b32 s60, s35\ns_mov_b32 s61, s35\ns_mov_b32 s62, s36\ns_mov_b32 s63, s36")
    if mimic:
        for r in range(24, 32): a(f"v_cvt_pk_bf16_f32 v{r}, 0, v{r}")
    if pks:
        for r in range(24, 32, 2): a(f"v_pk_mul_f32 v[{r}:{r + 1}], v[{r}:{r + 1}], s[60:61]")
    else:
        for r in range(24, 32): a(f"v_mul_f32 v{r}, s35, v{r}")
    if mimic:
        for r in range(24, 32): a(f"v_cvt_pk_bf16_f32 v{r}, 0, v{r}")
    a("""v_max3_f32 v20, v24, v25, v26
    v_max3_f32 v21, v27, v28, v29
    v_max3_f32 v20, v20, v30, v31
    v_max_f32 v20, v20, v21
    v_mov_b32 v21, v20
    v_permlane16_swap_b32 v20, v21
    v_max_f32 v20, v20, v21
    v_mov_b32 v21, v20
    v_permlane32_swap_b32 v20, v21
    v_max_f32 v20, v20, v21
    v_mul_f32 v22, s36, v20""")
    if pks:
        for r in range(24, 32, 2): a(f"v_pk_fma_f32 v[{r}:{r + 1}], v[{r}:{r + 1}], s[62:63], v[22:23] op_sel:[0,0,0] op_sel_hi:[1,1,0] neg_lo:[0,0,1] neg_hi:[0,0,1]")
    else:
        for r in range(24, 32): a(f"v_fma_f32 v{r}, v{r}, s36, -v22")
    for r in range(24, 32): a(f"v_exp_f32 v{r}, v{r}")
    for k in range(4): a(f"v_cvt_pk_bf16_f32 v{32 + k}, v{24 + 2 * k}, v{25 + 2 * k}")
    if look2: a(f"ds_read_b32 v145, v1 offset:{F_LD}")
    if pks: a("""v_pk_add_f32 v[24:25], v[24:25], v[26:27]
    v_pk_add_f32 v[28:29], v[28:29], v[30:31]
    ds_write_b64 v19, v[32:33]
    v_pk_add_f32 v[24:25], v[24:25], v[28:29]
    ds_write_b64 v19, v[34:35] offset:128
    v_add_f32 v23, v24, v25""")
    else: a("""v_add_f32 v24, v24, v25
    v_add_f32 v26, v26, v27
    ds_write_b64 v19, v[32:33]
    v_add_f32 v28, v28, v29
    v_add_f32 v30, v30, v31
    ds_write_b64 v19, v[34:35] offset:128
    v_add_f32 v24, v24, v26
    v_add_f32 v28, v28, v30
    v_add_f32 v23, v24, v28""")
    a("""v_mov_b32 v21, v23
    v_permlane16_swap_b32 v23, v21
    v_add_f32 v23, v23, v21
    v_mov_b32 v21, v23
    v_permlane32_swap_b32 v23, v21
    v_add_f32 v23, v23, v21
    v_mov_b32 v21, 1
    s_mov_b64 exec, 15
    ds_write2_b32 v112, v22, v23 offset0:0 offset1:16
    s_mov_b64 exec, -1""")
    a(f"ds_write_b32 v18, v21 offset:{F_P}")
    if look2:
        lgk(4)
        a("v_readfirstlane_b32 s37, v145")
        for c in range(4):
            a(f"s_cmp_ge_u32 s38, {vflag(c)}\ns_cbranch_scc1 L_vl{c}\ns_cmp_lt_u32 s37, {vflag(c)}\ns_cbranch_scc1 L_vld")
            for u in range(4 * c, 4 * c + 4): a(vread(u))
            a(f"L_vl{c}:")
        a("L_vld:\ns_mov_b32 s38, s37")
    stamp('c', 4)
    reads = [f"ds_read_b64 v[{32 + 2 * r}:{33 + 2 * r}], v113 offset:{512 * r}" for r in range(2)]
    reads += ["ds_read2_b32 v[150:151], v13 offset0:0 offset1:16"]
    reads += [f"ds_read_b128 v[{96 + 4 * w}:{99 + 4 * w}], v144 offset:{16 * w}" for w in range(4)]
    reads += [f"ds_read_b128 v[{56 + 4 * r}:{59 + 4 * r}], v114 offset:{32 * r}" for r in range(2)]
    lds_spin(F_P, 0, reads + [f"ds_read_b32 v145, v1 offset:{F_LD}"], 'all4', 20)
    stamp('c', 5)
    fill = ["v_max_f32_dpp v146, v150, v150 quad_perm:[1,0,3,2] row_mask:0xf bank_mask:0xf"]
    fill += [f"v_max3_f32 v{96 + h}, v{96 + h}, v{100 + h}, v{104 + h}" for h in range(4)]
    fill += ["v_max_f32_dpp v146, v146, v146 quad_perm:[2,3,0,1] row_mask:0xf bank_mask:0xf"]
    fill += [f"v_max_f32 v{96 + h}, v{96 + h}, v{108 + h}" for h in range(4)]
    fill += ["v_sub_f32 v150, v150, v146"] + [f"v_sub_f32 v{56 + k}, v{56 + k}, v{96 + (k & 3)}" for k in range(8)]
    fill += ["v_exp_f32 v150, v150"] + [f"v_exp_f32 v{56 + k}, v{56 + k}" for k in range(4)] + ["v_mul_f32 v148, v150, v151"]
    fill += [f"v_exp_f32 v{60 + k}, v{60 + k}" for k in range(2)] + ["v_add_f32_dpp v148, v148, v148 quad_perm:[1,0,3,2] row_mask:0xf bank_mask:0xf"]
    fill += [f"v_exp_f32 v{62 + k}, v{62 + k}" for k in range(2)] + ["v_add_f32_dpp v148, v148, v148 quad_perm:[2,3,0,1] row_mask:0xf bank_mask:0xf"]
    def ml_pub():
        a("s_mov_b64 exec, 1")
        st2([f"buffer_store_dwordx4 v[146:149], v116, {WS}, 0 offen"], 'ml')
        a("s_mov_b64 exec, -1")
    def pv(u):
        r = u >> 3
        c = "0" if u % 8 < 2 else f"v[{40 + 8 * r + 4 * (u & 1)}:{43 + 8 * r + 4 * (u & 1)}]"
        a(f"v_mfma_f32_4x4x4_16b_bf16 v[{40 + 8 * r + 4 * (u & 1)}:{43 + 8 * r + 4 * (u & 1)}], v[{32 + 2 * r}:{33 + 2 * r}], v[{64 + 2 * u}:{65 + 2 * u}], {c} cbsz:3 abid:{u & 7}")
    a("v_readfirstlane_b32 s37, v145")
    assert len(fill) <= 32
    a(f"s_cmp_lt_u32 s38, {vflag(3)}\ns_cbranch_scc1 L_vb\nL_vc:")
    with outofline():
        a("L_vb:")
        for c in range(4):
            a(f"s_cmp_ge_u32 s38, {vflag(c)}\ns_cbranch_scc1 L_vb{c}\ns_cmp_lt_u32 s37, {vflag(c)}\ns_cbranch_scc1 L_vbd")
            for u in range(4 * c, 4 * c + 4): a(vread(u))
            a(f"L_vb{c}:")
        a("L_vbd:\ns_waitcnt lgkmcnt(0)\ns_branch L_vc")
    for c in range(4):
        a(f"s_cmp_lt_u32 s37, {vflag(c)}\ns_cbranch_scc1 L_vw{c}\nL_vr{c}:")
        with outofline():
            a(f"L_vw{c}:")
            lds_spin(F_LD, vflag(c), [vread(u) for u in range(4 * c, 4 * c + 4)], 'ge', 20)
            a(f"s_branch L_vr{c}")
        for u in range(4 * c, 4 * c + 4):
            pv(u)
            for f_ in fill[4 * u:4 * u + 4]: a(f_)
        if c == 1: ml_pub()
    stamp('c', 6)
    a("s_nop 0")
    if pks:
        for h in (0, 2): a(f"v_pk_add_f32 v[{40 + h}:{41 + h}], v[{40 + h}:{41 + h}], v[{44 + h}:{45 + h}]")
        for h in (0, 2): a(f"v_pk_mul_f32 v[{40 + h}:{41 + h}], v[{40 + h}:{41 + h}], v[{56 + h}:{57 + h}]")
        for h in (0, 2): a(f"v_pk_add_f32 v[{48 + h}:{49 + h}], v[{48 + h}:{49 + h}], v[{52 + h}:{53 + h}]")
        for h in (0, 2): a(f"v_pk_fma_f32 v[{40 + h}:{41 + h}], v[{48 + h}:{49 + h}], v[{60 + h}:{61 + h}], v[{40 + h}:{41 + h}]")
    else:
        for h in range(4): a(f"v_add_f32 v{40 + h}, v{40 + h}, v{44 + h}")
        for h in range(4): a(f"v_mul_f32 v{40 + h}, v{40 + h}, v{56 + h}")
        for h in range(4): a(f"v_add_f32 v{48 + h}, v{48 + h}, v{52 + h}")
        for h in range(4): a(f"v_fmac_f32 v{40 + h}, v{48 + h}, v{60 + h}")
    a("""v_permlane32_swap_b32 v40, v41
    v_permlane32_swap_b32 v42, v43
    v_add_f32 v40, v40, v41
    v_add_f32 v42, v42, v43
    v_bfi_b32 v40, v125, v122, v40
    v_bfi_b32 v42, v125, v122, v42""")
    st2([f"buffer_store_dword v40, v115, {WS}, 0 offen", f"buffer_store_dword v42, v115, {WS}, s55 offen"], 'h2')
    stamp('c', 7)
    if fine:
        a("s_waitcnt vmcnt(0)"); stamp('c', 1, True)
    if 'noh2' in abl: a("s_branch L_cdone")
    LF = a.label("h2"); LG = a.label("h2g"); LD = a.label("h2d")
    woreads = [f"ds_read_b64_tr_b16 v[{80 + 4 * s + 2 * x}:{81 + 4 * s + 2 * x}], v14 offset:{4096 * s + 2048 * x}" for s in range(4) for x in range(2)]
    wdreads = [f"ds_read_b64_tr_b16 v[{48 + 4 * s + 2 * x}:{49 + 4 * s + 2 * x}], v14 offset:{L_WD - L_WO + 4096 * s + 2048 * x}" for s in range(2) for x in range(2)]
    hreads = [f"ds_read_b128 v[{56 + 4 * s}:{59 + 4 * s}], v120 offset:{L_H - L_O + 64 * s}" for s in range(2)]
    last = max(seg_flag("WO"), seg_flag("WD"))
    def payload_loads(pol=pollpol):
        for i in range(4): a(f"buffer_load_dwordx4 v[{64 + 4 * i}:{67 + 4 * i}], v117, {WS}, {'s%d' % (51 + i) if i else 0} offen {pol}")
    def payload_check(mul):
        for i in range(4):
            a(f"s_waitcnt vmcnt({3 - i})")
            strip(21, [64 + 4 * i + k for k in range(4)], first=(i == 0))
            if mul:
                for k in range(4): a(fm(i, k))
        a("v_and_b32 v21, 0xff, v21\nv_cmp_ne_u32 vcc, 0, v21\ns_and_b64 exec, vcc, vcc")
    LM = a.label("h2m"); LW = a.label("h2w"); LX = a.label("h2x")
    assert order[-2:] == ("WO", "WD") and ntail <= 8 and gate == 'T'
    a(f"s_cmp_ge_u32 s33, 28\ns_cselect_b32 s36, {last}, {seg_flag('T')}\ns_mov_b32 s37, {SPIN}")
    a("v_mov_b32 v101, s32\nv_mov_b32 v103, s32")
    def ml_loads():
        a(f"s_mov_b32 exec_hi, 0\nbuffer_load_dwordx4 v[32:35], v118, {WS}, 0 offen {pollpol}\ns_mov_b32 exec_hi, -1")
    def ml_check():
        a("s_mov_b32 exec_hi, 0")
        chk(20, 33, 32, first=True); chk(20, 35, 32)
        a("v_cmp_ne_u32 vcc, 0, v20\ns_mov_b32 exec_hi, -1")
    def fm(i, k):
        w = f"v[{36 + (i & 2)}:{37 + (i & 2)}]"; sel = f"op_sel:[0,{i & 1},0] op_sel_hi:[1,{i & 1},1]"
        if i == 0: return f"v_pk_mul_f32 v[{24 + k}:{25 + k}], v[{64 + k}:{65 + k}], {w} op_sel:[0,0] op_sel_hi:[1,0]"
        return f"v_pk_fma_f32 v[{24 + k}:{25 + k}], v[{64 + 4 * i + k}:{65 + 4 * i + k}], {w}, v[{24 + k}:{25 + k}] {sel}"
    def strip_ops(i):
        r = 64 + 4 * i
        return [f"s_waitcnt vmcnt({3 - i})\nv_xor_b32 v{r}, s56, v{r}"] + [f"v_xor_b32 v{r + k}, s{56 + k}, v{r + k}" for k in (1, 2, 3)] + \
               [f"v_or_b32 v28, v{r}, v{r + 1}" if i == 0 else f"v_or3_b32 v28, v28, v{r}, v{r + 1}", f"v_or3_b32 v28, v28, v{r + 2}, v{r + 3}"]
    wait_gate(20)
    stamp('c', 2, True)
    ml_loads()
    payload_loads(pollpol if poll1 is None else poll1)
    for r in woreads: a(r)
    a("s_waitcnt vmcnt(4)")
    ml_check()
    a(f"s_cbranch_vccnz {LM}\n{LW}:")
    with outofline():
        a(f"{LM}:")
        if joint:
            def pchk():
                for r in range(64, 80): chk(28, r, 56 + (r & 3), first=(r == 64))
                a("v_and_b32 v28, 0xff, v28\nv_cmp_ne_u32 s[60:61], 0, v28")
            a("s_waitcnt vmcnt(0)")
            pchk()
            a(f"{LX}:")
            ml_loads()
            a("s_mov_b64 exec, s[60:61]")
            payload_loads()
            a("s_sub_u32 s37, s37, 1\ns_cbranch_scc1 L_end\ns_waitcnt vmcnt(0)")
            pchk()
            a("s_mov_b32 exec_lo, -1")
            ml_check()
            a(f"s_or_b64 vcc, vcc, s[60:61]\ns_cbranch_scc1 {LX}\ns_branch {LW}")
        else:
            ml_loads()
            a("s_sub_u32 s37, s37, 1\ns_cbranch_scc1 L_end\ns_waitcnt vmcnt(0)")
            ml_check()
            a(f"s_cbranch_vccnz {LM}\ns_branch {LW}")
    stamp('c', 3, True)
    st = strip_ops(0) + strip_ops(1) + strip_ops(2) + strip_ops(3)
    def red32(op, r, t):
        for n in (1, 2, 4, 8):
            a(st.pop(0)); a(st.pop(0))
            a(f"{op}_dpp v{r}, v{r}, v{r} row_ror:{n} row_mask:0xf bank_mask:0xf")
        a(f"v_mov_b32 v{t}, v{r}")
        a(st.pop(0)); a(st.pop(0))
        a(f"v_permlane16_swap_b32 v{r}, v{t}\n{op} v{r}, v{r}, v{t}")
    if not early: a("v_mov_b32 v21, v32")
    if not near: a("s_mov_b32 s43, 0")
    if early:
        for n in (1, 2, 4, 8): a(f"v_max_f32_dpp v21, v{32 if n == 1 else 21}, v{32 if n == 1 else 21} row_ror:{n} row_mask:0xf bank_mask:0xf")
        a("v_mov_b32 v22, v21\nv_permlane16_swap_b32 v21, v22\nv_max_f32 v21, v21, v22\nv_sub_f32 v32, v32, v21\nv_exp_f32 v32, v32")
        a("v_mul_f32 v22, v32, v34")
        for i in range(4): a(f"ds_bpermute_b32 v{36 + i}, v123, v32 offset:{32 * i}")
        red32("v_add_f32", 22, 23)
        a("v_rcp_f32 v22, v22")
        a(st.pop(0)); a(st.pop(0))
        a("s_waitcnt lgkmcnt(0)")
        for i in range(2): a(fm(i, 0)); a(fm(i, 2))
        a("v_readfirstlane_b32 s35, v22")
        for i in range(6): a(st.pop(0))
        a(fm(2, 0)); a(fm(2, 2))
        while st: a(st.pop(0))
        a("v_and_b32 v28, 0xff, v28")
        a(fm(3, 0))
        a("v_cmp_ne_u32 vcc, 0, v28")
        a(fm(3, 2))
    else:
        red32("v_max_f32", 21, 22)
        a("v_sub_f32 v32, v32, v21\nv_exp_f32 v32, v32")
        a(st.pop(0))
        a("v_mul_f32 v22, v32, v34")
        for i in range(4): a(f"ds_bpermute_b32 v{36 + i}, v123, v32 offset:{32 * i}")
        red32("v_add_f32", 22, 23)
        a("v_rcp_f32 v22, v22")
        while st: a(st.pop(0))
        a("v_readfirstlane_b32 s35, v22\nv_and_b32 v28, 0xff, v28\ns_waitcnt lgkmcnt(0)")
        a(fm(0, 0)); a(fm(0, 2))
        a("v_cmp_ne_u32 vcc, 0, v28")
        for i in range(1, 4): a(fm(i, 0)); a(fm(i, 2))
    stamp('c', 4, True)
    a(f"s_cbranch_vccnz {LG}\n{LD}:")
    with outofline():
        a(f"{LG}:\ns_mov_b64 exec, vcc")
        if h2sleep: a(f"s_sleep {h2sleep}")
        payload_loads()
        a("s_sub_u32 s37, s37, 1\ns_cbranch_scc1 L_end")
        for i in range(4):
            for o in strip_ops(i): a(o)
        a(f"v_and_b32 v28, 0xff, v28\nv_cmp_ne_u32 vcc, 0, v28\ns_cbranch_vccnz {LG}\ns_mov_b64 exec, -1")
        for i in range(4): a(fm(i, 0)); a(fm(i, 2))
        a(f"s_nop 1\ns_branch {LD}")
    stamp('c', 8)
    if wbl == 'h2': a("s_or_b32 s39, s5, s34\ns_cbranch_scc1 L_nwb\nbuffer_wbl2 sc1\nL_nwb:")
    ex = [f"ds_read_b64 v[28:29], v1 offset:{F_LD}"] + wdreads + hreads
    a(f"""v_permlane32_swap_b32 v24, v25
    v_permlane32_swap_b32 v26, v27
    {ex[0]}
    v_add_f32 v24, v24, v25
    v_add_f32 v26, v26, v27
    {ex[1]}
    {ex[2]}
    v_permlane16_swap_b32 v24, v26
    v_add_f32 v24, v24, v26
    {ex[3]}
    {ex[4]}
    v_add_f32_dpp v24, v24, v24 row_ror:8 row_mask:0xf bank_mask:0xf
    v_mov_b32 v21, 1
    v_mul_f32 v24, s35, v24
    {ex[5]}
    v_cvt_pk_bf16_f32 v24, v24, v24
    {ex[6]}""")
    if near: a(f"ds_read_b32 v31, v18 offset:{F_D}")
    a(f"ds_write_b16 v119, v24\nds_write_b32 v18, v21 offset:{F_O}")
    oreads = [f"ds_read_b128 v[{128 + 4 * s}:{131 + 4 * s}], v120 offset:{64 * s}" for s in range(4)]
    def mm_wd(first):
        for s in range(2): a(f"v_mfma_f32_16x16x32_bf16 v[96:99], v[{56 + 4 * s}:{59 + 4 * s}], v[{48 + 4 * s}:{51 + 4 * s}], {'0' if first and s == 0 else 'v[96:99]'}")
    def mm_wo(first):
        for s in range(4): a(f"v_mfma_f32_16x16x32_bf16 v[96:99], v[{128 + 4 * s}:{131 + 4 * s}], v[{80 + 4 * s}:{83 + 4 * s}], {'0' if first and s == 0 else 'v[96:99]'}")
    a(f"ds_read_b128 v[20:23], v1 offset:{F_O}")
    for r in oreads: a(r)
    a("s_cmp_ge_u32 s33, 28\ns_cbranch_scc1 L_noffn")
    lgk(7)
    a(f"v_cmp_gt_u32 vcc, {last}, v28\nv_cmp_eq_u32 s[62:63], 0, v29\ns_or_b64 vcc, vcc, s[62:63]\ns_cbranch_vccnz L_hw")
    mm_wd(True)
    a("s_waitcnt lgkmcnt(0)\nv_and_b32 v22, v22, v23\nv_bitop3_b32 v20, v20, v21, v22 bitop3:0x80\nv_cmp_eq_u32 vcc, 0, v20\ns_cbranch_vccnz L_ow\nL_or:")
    stamp('c', 9)
    mm_wo(False)
    a("L_mmd:")
    with outofline():
        a("L_ow:")
        lds_spin(F_O, 0, oreads, 'all4', 20)
        a("s_branch L_or\nL_noffn:")
        lds_spin(F_O, 0, oreads, 'all4', 20)
        stamp('c', 9)
        mm_wo(True)
        a("s_branch L_mmd\nL_hw:")
        lds_spin(F_O, 0, oreads, 'all4', 20)
        stamp('c', 9)
        mm_wo(True)
        a(f"s_mov_b32 s40, {SPIN}\nL_hw2:")
        for r in ex: a(r)
        a(f"s_sub_u32 s40, s40, 1\ns_cbranch_scc1 L_end\ns_waitcnt lgkmcnt(0)\nv_cmp_gt_u32 vcc, {last}, v28\nv_cmp_eq_u32 s[62:63], 0, v29\ns_or_b64 vcc, vcc, s[62:63]\ns_cbranch_vccnz L_hw2")
        mm_wd(False)
        a("s_branch L_mmd")
    if near:
        a("v_readfirstlane_b32 s43, v31\ns_cmp_eq_u32 s43, 0\ns_cbranch_scc1 L_dw\nL_dr:")
        with outofline():
            a("L_dw:")
            a(f"s_mov_b32 s40, {SPIN}\nL_dw1:\nds_read_b32 v31, v18 offset:{F_D}\ns_sub_u32 s40, s40, 1\ns_cbranch_scc1 L_end\ns_waitcnt lgkmcnt(0)")
            a("v_readfirstlane_b32 s43, v31\ns_cmp_eq_u32 s43, 0\ns_cbranch_scc1 L_dw1\ns_branch L_dr")
    stamp('c', 10)
    a("v_mov_b32 v100, v96\nv_mov_b32_dpp v102, v96 quad_perm:[1,1,3,3] row_mask:0xf bank_mask:0xf")
    a(f"s_mov_b64 exec, 0x5555\nbuffer_store_dwordx4 v[100:103], v121, {WS}, s43 offen {h3st}")
    if dual: a(f"buffer_store_dwordx4 v[100:103], v121, {WS}, s53 offen {h3st}")
    a("s_mov_b64 exec, -1")
    stamp('c', 11)
    if wbl == 'h3': a("s_or_b32 s39, s5, s34\ns_cbranch_scc1 L_nwb\nbuffer_wbl2 sc1\nL_nwb:")
    if consffn: a("s_cmp_ge_u32 s33, 28\ns_cbranch_scc0 L_cdone\ns_sub_u32 s38, s33, 28\ns_lshl_b32 s38, s38, 3\ns_add_u32 s38, s38, s6")
    else: a("s_cmp_lt_u32 s2, 32\ns_cbranch_scc0 L_cdone\ns_mov_b32 s38, s2")
    if not h3all: a("s_cmp_eq_u32 s34, 0\ns_cbranch_scc0 L_cdone")
    if near: a(f"ds_read_b32 v31, v1 offset:{F_IE}")
    a("s_mov_b32 s37, s38")
    inbox(35, 37)
    a("v_lshl_add_u32 v24, v0, 4, s35")
    if dual:
        lds_spin(F_IE, 1, [], 'ge', 20)
        a("v_lshrrev_b32 v20, 1, v20\nv_lshl_add_u32 v24, v20, 13, v24")
        if stamps: a("v_readfirstlane_b32 s84, v20")
    a("v_and_b32 v25, 7, v0\ns_lshl_b32 s35, s38, 5\nv_lshl_add_u32 v25, v25, 2, s35")
    srd(44, 8, 1024)
    a("buffer_load_dword v26, v25, s[44:47], 0 offen")
    srd(52, 26, 1024)
    if near: a("s_waitcnt lgkmcnt(0)\nv_readfirstlane_b32 s43, v31")
    L = a.label("h3"); LD = a.label("h3d")
    def h3issue(k):
        for i in range(4): a(f"buffer_load_dwordx4 v[{32 + 16 * k + 4 * i}:{35 + 16 * k + 4 * i}], v24, {WS}, s43 offen offset:{1024 * i} {h3pol}")
    a(f"s_mov_b32 s40, {SPIN}")
    if h3mask:
        h3depth = 0
        a(f"{L}:")
        h3issue(0)
        a("s_sub_u32 s40, s40, 1\ns_cbranch_scc1 L_end")
        for i in range(4):
            a(f"s_waitcnt vmcnt({3 - i})")
            chk(20, 33 + 4 * i, 32, first=(i == 0)); chk(20, 35 + 4 * i, 32)
        a(f"v_cmp_ne_u32 vcc, 0, v20\ns_and_b64 exec, vcc, vcc\ns_cbranch_scc1 {L}\ns_mov_b64 exec, -1")
        a(f"v_add_f32 v22, v32, v36\nv_add_f32 v23, v34, v38\nv_add_f32 v30, v40, v44\nv_add_f32 v31, v42, v46\ns_branch {LD}")
        L = a.label("h3x")
    for k in range(h3depth - (0 if h3cf else 1)):
        h3issue(k)
        if h3gap and k < h3depth - 1: a(f"s_sleep {h3gap}")
    a(f"{L}:")
    for k in range(h3depth):
        if not h3cf: h3issue((k + h3depth - 1) % h3depth)
        a(f"s_waitcnt vmcnt({4 * (h3depth - 1)})")
        b = 32 + 16 * k
        for r in range(b + 1, b + 16, 2): chk(20, r, 32, first=(r == b + 1))
        a(f"v_add_f32 v22, v{b}, v{b + 4}\nv_add_f32 v23, v{b + 2}, v{b + 6}\nv_cmp_ne_u32 vcc, 0, v20")
        a(f"v_add_f32 v30, v{b + 8}, v{b + 12}\nv_add_f32 v31, v{b + 10}, v{b + 14}\ns_cbranch_vccz {LD}")
        if h3cf: h3issue(k)
    a(f"s_sub_u32 s40, s40, 1\ns_cbranch_scc0 {L}\ns_branch L_end\n{LD}:")
    stamp('c', 12)
    a("""v_add_f32 v22, v22, v30
    v_add_f32 v23, v23, v31
    v_lshlrev_b32 v27, 16, v26
    v_and_b32 v28, 0xffff0000, v26
    v_permlane32_swap_b32 v22, v23
    v_add_f32 v22, v22, v23
    v_mov_b32 v23, v22
    v_permlane16_swap_b32 v22, v23
    v_add_f32 v22, v22, v23
    v_add_f32_dpp v22, v22, v22 row_ror:8 row_mask:0xf bank_mask:0xf
    v_mov_b32 v23, v22
    v_permlane32_swap_b32 v22, v23
    v_add_f32 v22, v22, v27
    v_add_f32 v23, v23, v28
    v_cvt_pk_bf16_f32 v22, v22, v23
    s_mov_b64 exec, 0xff
    buffer_store_dword v22, v25, s[52:55], 0 offen """ + outpol)
    a(f"s_cmp_eq_u32 s38, 0\ns_cbranch_scc0 L_cdone\ns_mov_b64 exec, 1\nv_mov_b32 v25, s32\nbuffer_store_dword v25, off, {WS}, 0")
    if pcdbg:
        srd(44, 28, 256)
        a("s_getpc_b64 s[36:37]\nL_pc2:\ns_sub_u32 s36, s36, L_pc2-" + NAME + "_kernel\nv_mov_b32 v25, s36\nbuffer_store_dword v25, off, s[44:47], 0 offset:4")
        if pcdbg == 2:
            a("s_load_dwordx16 s[8:23], s[0:1], 0\ns_waitcnt lgkmcnt(0)")
            for k_, r_ in enumerate((30, 31, 26, 28, 8, 10, 12, 14, 16, 20, 22, 24, 0)): a(f"v_mov_b32 v25, s{r_}\nbuffer_store_dword v25, off, s[44:47], 0 offset:{8 + 4 * k_}")
    a("L_cdone:")
    stamp('c', 13)
    if stamps and near: a(f"s_mov_b64 exec, -1\nds_read_b32 v30, v1 offset:{F_N}\ns_waitcnt lgkmcnt(0)\nv_readfirstlane_b32 s84, v30")
    dump('c')
    a("s_endpgm")
    a.lines += cold
    a("L_end:\ns_endpgm")
    if touch: a("L_t2:\ns_branch L_comp")

    L = a.lines
    ia = L.index("L_aux:"); ic = L.index("L_comp:"); il = L.index("L_loader:")
    ib = next(i for i in range(il, ia) if L[i].strip() == ("L_split:" if xfast else "s_barrier"))
    assert oth_lines[-1].strip() == "s_branch L_comp"
    k = oth_lines.index("L_cw:")
    oth = oth_lines[:oth_lines.index("  s_cbranch_scc0 L_cw")] + ["  s_cbranch_scc1 L_aw"] + oth_lines[k + 1:] + ["L_aw:"] + oth_lines[oth_lines.index("  s_cbranch_scc0 L_cw") + 1:k - 1]
    a.lines = L[:ib + 1] + ["  s_branch L_ld2"] + oth + L[ia:ic] + ["L_ld2:"] + L[ib + 1:ia] + L[ic:]
    head = open(f"cdna_kernels/{NAME}.s.ref").read().split("; Override")[0]
    out = head + f"; Generated by gen/gen.py (hand-designed kernel; see that script for the layout notes)\n; @launch grid=(256,1,1) block=(384,1,1) lds={L_END}\n"
    out += f'.amdgcn_target "amdgcn-amd-amdhsa--gfx950"\n.text\n'
    if align: out += ".p2align 12\n.fill 0x340, 4, 0xbf800000\n"
    out += f'.globl {NAME}_kernel\n.p2align 8\n.type {NAME}_kernel,@function\n'
    out += a.text()
    out += f""".section .rodata,"a"
.p2align 6
.amdhsa_kernel {NAME}_kernel
  .amdhsa_next_free_vgpr 184
  .amdhsa_next_free_sgpr 102
  .amdhsa_accum_offset 184
  .amdhsa_group_segment_fixed_size 0
  .amdhsa_kernarg_size 96
  .amdhsa_user_sgpr_count 2
  .amdhsa_user_sgpr_kernarg_segment_ptr 1
  .amdhsa_system_sgpr_workgroup_id_x 1
  .amdhsa_float_denorm_mode_32 3
.end_amdhsa_kernel
"""
    return out

if __name__ == "__main__":
    kw = eval("dict(" + (sys.argv[2] if len(sys.argv) > 2 else "") + ")")
    open(sys.argv[1], "w").write(gen(**kw))
```

```python
import sys
from asmlib import Asm

NAME = "parallel_sum__sliding_block_cached__swiglu_ffn__decode"

L_K, L_V, L_GU, L_WO, L_WD = 0, 32768, 65536, 81920, 98304
L_WQ = 106496
L_X  = L_WQ + 16384
L_XX = L_X + 1024
L_Q  = L_XX + 2048
L_P  = L_Q + 1280
L_ML = L_P + 1024
L_O  = L_ML + 128
L_H  = L_O + 256
L_B  = L_H + 128
L_F  = L_B + 256
L_END = L_F + 96
F_LD, F_H, F_A, F_IE, F_Q, F_P, F_O, F_D, F_N = 0, 4, 8, 12, 16, 32, 48, 64, 80

W_EP  = 0
W_VOT = 0x800
W_DEC = 0xc00
W_H1  = 0x1000
W_H1B = W_H1 + 256 * 256
W_HB  = W_H1B + 256 * 256
W_ML  = W_HB + 256 * 512
W_H3  = 0x48000
W_H2  = W_H3 + 64 * 4096
assert W_ML + 32 * 512 <= W_H3 and W_H3 % 16384 == 0
W_PR  = W_H2 + 1024 * 512
W_END = W_PR + 0x40000
W_ST  = 0x400000

LOG2E = 0x3fb8aa3b
SCALE = 0x3db504f3
SPIN = 1 << 16
EPOCH_STEP = 0x9e3779b9

def gen(TH=18, stamps=False, order=("Q", "K", "V", "GU", "WO", "WD"), warm=64, warmpol="sc1 nt", NA=8, h3depth=4,
        forceslow=False, h1trig=26, probe=None, abl=(), rot=True, h3gap=2, TH2=None, mimic=True, pfpol='', h1own=False, h3warm='sc1', pre=True, spec=True, sleep=0, prio=3, h2sleep=0, hbsleep=0, boost=24, gate='T', first=True, hbfirst=False, fine=False, local=True, pollpol='sc1', h1wt=False, lazy=4, ntail=8, wt=(), warmat='V', consffn=True, THK=None, THG=None, h3mask=False, lateb=False, both=False, auxfirst=False, align=False, touch=False, hold='Q0', spf=False, pk=True, h1warm=None, dip=None, dip2=None, kearly=True, look2=True, nap0=0, nap1=0, hbwarm=None, refine=True, h3pol='sc1', h3st='sc1', h3all=False, qloop=4, gx=0, light='hi', xboost=0x55, look1=False, pks=True, xfast=True, warmst=False, gnap=0, dual=False, dnap=2, dforce=None, probe_diag=0, h3x=0, near=True, gap=0, prpol='nt', evdbg=False, vat=None, vpol='sc1', dat='V', dpol='sc1', vst='sc1', vset=1, vsh=2, wbl=None, stpol='', prew=(), warmx=None, bseg=('Q', 'K', 'V', 'GU', 'WO', 'WD'), xb2=0x55, adapt=None, poll1=None, h3cf=True, outpol='', outwarm=None, joint=False, early=False, anap=0, pcdbg=False, evpad=None, ldpol='nt', perm=None, rmul=1, woord=None, wdord=None, pace=None, h1w=True, bdem=True, h3pk=True, two=False, npf=2, m0k=False, h3at='end'):
    if not local: warm = 0
    a = Asm()
    WS = "s[48:51]"
    WSZ = W_ST + 256 * 512 if stamps else W_END
    diag = bool(stamps or probe)

    def stamp(role, idx, f=False):
        if fine and role == 'c' and 1 <= idx <= 6 and not f: return
        if f and not fine: return
        if probe and (idx == 0 or probe == (role, idx)):
            a(f"s_memrealtime s[{96 if idx == 0 else 98}:{97 if idx == 0 else 99}]")
            if idx == 0: a("s_waitcnt lgkmcnt(0)\ns_mov_b32 s98, s96")
        if stamps and (stamps is True or idx in (0, 13) or (stamps == 'l' and (role, idx) in (('l', 1), ('l', 7), ('l', 2), ('l', 3), ('l', 9), ('c', 11)))):
            a(f"s_memtime s[{64 + 2 * idx}:{65 + 2 * idx}]")
            if idx == 0: a("s_memrealtime s[94:95]")
            if (role, idx) in (('l', 9), ('c', 13), ('a', 9)): a("s_memrealtime s[92:93]")
    def dump(role):
        if probe and probe[0] == role:
            L = a.label("pad")
            a("s_waitcnt lgkmcnt(0)\ns_sub_u32 s98, s98, s96\ns_mul_i32 s98, s98, 3\ns_add_u32 s96, s96, s98\ns_add_u32 s96, s96, 1500")
            a(f"{L}:\ns_sleep 4\ns_memrealtime s[98:99]\ns_waitcnt lgkmcnt(0)\ns_sub_u32 s35, s98, s96\ns_cmp_lt_i32 s35, 0\ns_cbranch_scc1 {L}")
        if not stamps or (stamps == 'min' and role != 'c') or (stamps == 'l' and role == 'a'): return
        a("s_waitcnt lgkmcnt(0)")
        a(f"s_lshl_b32 s60, s2, 9\ns_lshl_b32 s61, s3, 6\ns_add_u32 s60, s60, s61\ns_add_u32 s60, s60, {W_ST}")
        a("s_mov_b64 exec, 1\nv_mov_b32 v126, s60")
        for i in range(16):
            a(f"v_mov_b32 v127, s{64 + 2 * i}\nbuffer_store_dword v127, v126, {WS}, 0 offen offset:{4 * i}")
    cold = []
    class outofline:
        def __enter__(self): self.keep = a.lines; a.lines = []
        def __exit__(self, *x): cold.extend(a.lines); a.lines = self.keep
    def srd(d, p, size):
        a(f"s_mov_b32 s{d}, s{p}\ns_and_b32 s{d + 1}, s{p + 1}, 0xffff\ns_mov_b32 s{d + 2}, {size}\ns_mov_b32 s{d + 3}, 0x20000")
    events = ["X"]
    for nm in order:
        if nm == "K" and h1trig < 32: events.append("Kpart")
        if nm in ("V", "GU", "Q"): events += [nm + "0", nm + "1", nm + "2"]
        events.append(nm)
    events.insert(len(events) - 1 if ntail <= 8 else len(events) - 2, "T")
    def seg_flag(name):
        return events.index(name) + 1
    def lgk(n):
        a(f"s_waitcnt lgkmcnt({0 if diag else n})")
    def st2(ops, name=None):
        if not local or name in wt:
            for o in ops: a(o + " sc1" if o.startswith("buffer_store") else o)
            return
        L1 = a.label("slow"); L2 = a.label("st")
        a(f"s_cmp_eq_u32 s41, 0\ns_cbranch_scc1 {L1}")
        for o in ops: a(o + " " + stpol if o.startswith("buffer_store") else o)
        a(f"{L2}:")
        with outofline():
            a(f"{L1}:\ns_nop 1")
            for o in ops: a(o + " sc1" if o.startswith("buffer_store") else o)
            a(f"s_nop 1\ns_branch {L2}")
    def lds_spin(flag_off, want, reads, kind, tmp, nap=0):
        if not spec and len(reads) > 4 and kind == 'ge':
            lds_spin(flag_off, want, [], kind, tmp)
            for r in reads: a(r)
            a("s_waitcnt lgkmcnt(0)")
            return
        L = a.label("spin")
        a(f"s_mov_b32 s40, {SPIN}\n{L}:")
        if sleep and kind == 'ge': a(f"s_sleep {sleep}")
        elif nap: a(f"s_sleep {nap}")
        a(f"ds_read_b32 v{tmp}, v1 offset:{flag_off}" if kind == 'ge' else f"ds_read_b128 v[{tmp}:{tmp + 3}], v1 offset:{flag_off}")
        for r in reads: a(r)
        a("s_sub_u32 s40, s40, 1\ns_cbranch_scc1 L_end")
        a("s_waitcnt lgkmcnt(0)")
        if kind == 'ge':
            a(f"v_cmp_gt_u32 vcc, {want}, v{tmp}")
        else:
            a(f"v_and_b32 v{tmp + 2}, v{tmp + 2}, v{tmp + 3}\nv_bitop3_b32 v{tmp}, v{tmp}, v{tmp + 1}, v{tmp + 2} bitop3:0x80")
            a(f"v_cmp_eq_u32 vcc, 0, v{tmp}")
        a(f"s_cbranch_vccnz {L}")
    def wait_gate(tmp):
        if gate == 'IE': lds_spin(F_IE, 1, [], 'ge', tmp)
        elif gate == 'S': lds_spin(F_LD, "s38", [], 'ge', tmp)
        elif gate == 'T': lds_spin(F_LD, "s36", [], 'ge', tmp, nap=gnap)
        elif gate: lds_spin(F_LD, seg_flag(gate), [], 'ge', tmp)
        a(f"s_mov_b32 s40, {SPIN}")
    def inbox(d, cc):
        m, sh = (3, 11) if h3pk else (1, 12)
        a(f"s_and_b32 s{d}, s{cc}, {m}\ns_andn2_b32 s{cc}, s{cc}, {m}\ns_lshl1_add_u32 s{d}, s{cc}, s{d}\ns_lshl_b32 s{d}, s{d}, {sh}\ns_add_u32 s{d}, s{d}, {W_H3 + h3x - (0x2000 if near else 0)}")
    def pick(r, t):
        a(f"s_bfe_u32 s{t}, s{r}, 0x80008\ns_and_b32 s{r}, s{r}, 0xff\ns_cmp_gt_u32 s{t}, s{r}\ns_cselect_b32 s{r}, 0x2000, 0")
    def tagbytes(dst, src):
        a(f"s_and_b32 s{dst}, s{src}, 0xff\ns_bfe_u32 s{dst + 1}, s{src}, 0x80008\ns_bfe_u32 s{dst + 2}, s{src}, 0x80010\ns_lshr_b32 s{dst + 3}, s{src}, 24")
    def chk(acc, r, t, first=False):
        a(f"v_xor_b32 v{acc}, s{t}, v{r}" if first else f"v_bitop3_b32 v{acc}, v{acc}, v{r}, s{t} bitop3:0xf6")
    def strip(acc, regs, first=False):
        for k, r in enumerate(regs): a(f"v_xor_b32 v{r}, s{56 + (k & 3)}, v{r}")
        for k in range(0, len(regs), 2):
            a(f"v_or_b32 v{acc}, v{regs[k]}, v{regs[k + 1]}" if first and k == 0 else f"v_or3_b32 v{acc}, v{acc}, v{regs[k]}, v{regs[k + 1]}")
    def tags():
        if not local:
            a(f"s_add_u32 s32, s32, {EPOCH_STEP:#x}\ns_mov_b32 s42, s32")
            return
        a(f"s_add_u32 s32, s32, {EPOCH_STEP:#x}\ns_getreg_b32 s42, hwreg(HW_REG_XCC_ID, 0, 4)\ns_add_u32 s42, s42, 1\ns_mul_i32 s42, s42, 0x01010101\ns_xor_b32 s42, s42, s32")

    ids = """s_and_b32 s6, s5, 7
    s_lshr_b32 s7, s5, 3"""
    if light == 'hi': pg = "s_mov_b32 s59, s4"
    else: pg = "s_lshr_b32 s59, s4, 1\ns_bitcmp" + ("0" if light == 'even' else "1") + "_b32 s4, 0\ns_cselect_b32 s33, 4, 0\ns_add_u32 s59, s59, s33"
    ids2 = pg + f"""
    s_lshl3_add_u32 s33, s7, s59
    v_mov_b32 v1, {L_F}"""
    a(f"{NAME}_kernel:")
    stamp('all', 0)
    a("""s_cmp_ge_u32 s2, 256
    s_cbranch_scc1 L_end
    s_load_dwordx16 s[8:23], s[0:1], 0
    s_load_dwordx8 s[24:31], s[0:1], 64
    v_readfirstlane_b32 s3, v0
    s_and_b32 s4, s2, 7
    s_lshr_b32 s5, s2, 3""")
    if gx: a(f"s_xor_b32 s4, s4, {gx}")
    a(ids)
    a("s_cmp_ge_u32 s3, 64\ns_cbranch_scc1 L_oth")
    a("L_loader:")
    if adapt: a("s_memtime s[60:61]")
    a(f"s_getpc_b64 s[36:37]\nL_pc:\nv_lshlrev_b32 v3, 7, v0\nglobal_load_dword v30, v3, s[36:37] {pfpol}")
    for _ in range(npf - 1): a(f"v_add_u32 v3, 0x2000, v3\nv_min_u32 v3, L_end-L_pc, v3\nglobal_load_dword v30, v3, s[36:37] {pfpol}")
    a("""v_lshlrev_b32 v2, 4, v0
    v_lshrrev_b32 v6, 3, v0
    v_and_b32 v7, 7, v0
    v_lshlrev_b32 v15, 17, v6
    v_lshl_add_u32 v15, v7, 4, v15
    s_lshl_b32 s35, s7, 13
    s_lshl3_add_u32 s35, s4, s35
    s_add_u32 s35, s35, s6
    s_lshl_b32 s39, s35, 7
    s_mov_b32 s46, 4194304
    s_mov_b32 s47, 0x20000""")
    a(f"s_movk_i32 s54, 0x400\ns_mov_b32 s55, s47\ns_mov_b32 m0, {L_X}\ns_setprio {prio}")
    if qloop: a(f"s_add_u32 s38, s39, 0x20000")
    a(f"""s_waitcnt lgkmcnt(0)
    s_mov_b32 s52, s8
    s_and_b32 s53, s9, 0xffff
    buffer_load_dwordx4 v2, s[52:55], 0 offen lds
    s_mov_b32 m0, {L_WQ}
    s_mov_b32 s44, s14
    s_and_b32 s45, s15, 0xffff""")
    stamp('l', 1)
    if qloop: a("L_ql:")
    for i in range(qloop or 16):
        a(f"buffer_load_dwordx4 v15, s[44:47], s39 offen {ldpol} lds\ns_addk_i32 m0, 0x400\ns_addk_i32 s39, 0x2000")
    if qloop: a("s_cmp_lt_u32 s39, s38\ns_cbranch_scc1 L_ql")
    a(ids2)
    if diag: a("s_mov_b32 s3, 1")
    if boost:
        a("s_cmp_eq_u32 s6, 3\ns_cselect_b64 vcc, -1, 0")
        if xboost is not None: a(f"s_and_b32 s35, s2, 7\ns_bitcmp1_b32 {xboost}, s35\ns_cselect_b64 vcc, -1, vcc")
    if adapt: a("s_mov_b64 s[100:101], vcc")
    main_lines = a.lines; a.lines = []
    a("L_oth:\ns_lshr_b32 s3, s3, 6\nv_and_b32 v0, 63, v0")
    a(ids2)
    a("s_cmp_eq_u32 s3, 1\ns_cbranch_scc0 L_cw")
    if diag: a("s_mov_b32 s3, 0")
    a("v_lshlrev_b32 v2, 4, v0\ns_waitcnt lgkmcnt(0)\ns_load_dword s32, s[30:31], 0\ns_barrier\ns_branch L_aux")
    a("L_cw:\nv_mov_b32 v4, 0\nv_lshl_add_u32 v5, v0, 2, v1\ns_mov_b64 exec, 0xfffff\nds_write_b32 v5, v4\ns_mov_b64 exec, -1")
    a("s_waitcnt lgkmcnt(0)")
    if near:
        if vset < 4: a(f"s_cmp_lt_u32 s7, {vset}\ns_cselect_b32 s35, s3, 0\ns_cmp_eq_u32 s35, 5\ns_cbranch_scc0 L_nprb")
        else: a("s_cmp_eq_u32 s3, 5\ns_cbranch_scc0 L_nprb")
        a("s_load_dword s32, s[30:31], 0\ns_and_b32 s35, s6, 1\ns_andn2_b32 s36, s2, 63\ns_add_u32 s36, s36, s2\ns_lshl_b32 s36, s36, 7")
        srd(48, 30, WSZ)
        a(f"s_lshl_b32 s37, s35, 13\ns_add_u32 s36, s36, s37\ns_add_u32 s36, s36, {W_PR}\ns_xor_b32 s37, s36, 0x2000\ns_mov_b64 exec, 1")
        if 'nopr' in abl: a("s_cmp_ge_u32 s33, 28\ns_cbranch_scc0 L_npr2")
        a(f"buffer_load_dword v176, off, {WS}, s36 {prpol}\nbuffer_load_dword v177, off, {WS}, s37 {prpol}")
        if 'nopr' in abl: a("L_npr2:")
        a("s_getreg_b32 s37, hwreg(HW_REG_XCC_ID, 2, 1)\ns_xnor_b32 s35, s35, s37\ns_and_b32 s35, s35, 1")
        a(f"s_lshl3_add_u32 s38, s33, s6\ns_lshl_b32 s38, s38, {vsh}\ns_barrier\ns_waitcnt vmcnt(1)")
        if gap: a(f"s_sleep {gap}")
        a("s_getreg_b32 s36, hwreg(HW_REG_IB_STS, 0, 4)")
        if dforce is not None: a(f"s_mov_b32 s36, 1\ns_mov_b32 s35, {dforce}")
        a(f"s_lshl_b32 s36, s36, s35\ns_waitcnt lgkmcnt(0)\ns_add_u32 s32, s32, {EPOCH_STEP:#x}\ns_xor_b32 s36, s36, s32\nv_mov_b32 v22, s36")
        if 'nost' in abl: a("s_cmp_ge_u32 s33, 28\ns_cbranch_scc0 L_nst2")
        a(f"buffer_store_dword v22, off, {WS}, s38 offset:{W_VOT} {vst}")
        if 'nost' in abl: a("L_nst2:")
        a("s_mov_b64 exec, -1\ns_branch L_prd\nL_nprb:")
    a("s_barrier\nL_prd:")
    if nap0: a(f"s_sleep {nap0}")
    elif hold: lds_spin(F_LD, seg_flag(hold), [], 'ge', 20, nap=4)
    a("s_branch L_comp")
    oth_lines = a.lines; a.lines = main_lines
    TOPS = (8, 9, 14, 15, 18, 19, 28, 29)
    def k_setup_perm():
        pos = {n: 8 + b for b, n in enumerate(perm)}
        a("""v_and_b32 v2, 15, v0
        v_lshrrev_b32 v3, 4, v0
        v_xor_b32 v4, v2, v3
        v_lshlrev_b32 v4, 4, v4""")
        a(f"v_and_b32 v5, 1, v3\nv_lshlrev_b32 v5, {pos['k0']}, v5\nv_lshrrev_b32 v8, 1, v3\nv_lshl_add_u32 v5, v8, {pos['k1']}, v5")
        lo = lambda i: ((i & 1) << pos['i0']) | (((i >> 1) & 1) << pos['i1'])
        for q in range(4): a(f"v_xor_b32 v{8 + q}, {64 * q}, v4\nv_add_u32 v{8 + q}, v{8 + q}, v5")
        for i in range(8): a(f"v_add_u32 v{32 + i}, {lo(i)}, v{8 + ((i >> 1) & 3)}")
        a("s_lshl_b32 s35, s4, 24\ns_add_u32 s35, s35, 15728640")
        a("""s_add_u32 s44, s10, s35
        s_addc_u32 s45, s11, 0
        s_and_b32 s45, s45, 0xffff
        s_mov_b32 s46, 1048576
        s_add_u32 s12, s12, s35
        s_addc_u32 s13, s13, 0
        s_mov_b32 s40, 0""")
        for grp, r in ((('c0', 'c1', 'c2'), 6), (('r0', 'r1'), 7)):
            if all(pos[n] == pos[grp[0]] + b for b, n in enumerate(grp)): a(f"s_lshl_b32 s35, s{r}, {pos[grp[0]]}\ns_or_b32 s40, s40, s35")
            else:
                for b, n in enumerate(grp): a(f"s_bfe_u32 s35, s{r}, {0x10000 + b}\ns_lshl_b32 s35, s35, {pos[n]}\ns_or_b32 s40, s40, s35")
        a(f"s_mul_i32 s60, s4, {rmul}")
        a(top(0))
    def top(t):
        pos = {n: 8 + b for b, n in enumerate(perm)}
        d = TOPS[t]
        if pos['i3'] == pos['i2'] + 1 and pos['i4'] == pos['i2'] + 2:
            return f"s_and_b32 s61, s60, 7\ns_lshl_b32 s61, s61, {pos['i2']}\ns_or_b32 s{d}, s40, s61\ns_add_u32 s60, s60, 1"
        return "\n".join(f"s_bfe_u32 s61, s60, {0x10000 + b}\ns_lshl_b32 s61, s61, {pos[n]}\ns_or_b32 s{d}, s{40 if b == 0 else d}, s61" for n, b in (('i2', 0), ('i3', 1), ('i4', 2))) + "\ns_add_u32 s60, s60, 1"
    def k_setup():
        if perm: return k_setup_perm()
        a("""v_and_b32 v2, 15, v0
        v_lshrrev_b32 v3, 4, v0
        v_xor_b32 v4, v2, v3
        v_lshlrev_b32 v4, 4, v4
        v_lshlrev_b32 v5, 8, v3""")
        for i in range(4): a(f"v_xor_b32 v{8 + i}, {64 * i}, v4\nv_add_u32 v{8 + i}, v{8 + i}, v5")
        a("""s_lshl_b32 s35, s4, 24
        s_lshl_b32 s36, s5, 15
        s_add_u32 s35, s35, s36
        s_add_u32 s35, s35, 15728640""")
        if isinstance(rot, tuple): a(f"s_mul_i32 s40, s4, {rot[0]}\ns_mul_i32 s36, s6, {rot[1]}\ns_add_u32 s40, s40, s36\ns_mul_i32 s36, s7, {rot[2]}\ns_add_u32 s40, s40, s36\ns_and_b32 s40, s40, 7\ns_lshl_b32 s40, s40, 12")
        else: a({True: "s_lshl_b32 s40, s4, 12", False: "s_mov_b32 s40, 0", 'gc': "s_add_u32 s40, s4, s6\ns_and_b32 s40, s40, 7\ns_lshl_b32 s40, s40, 12",
           'gr': "s_lshl1_add_u32 s40, s7, s4\ns_and_b32 s40, s40, 7\ns_lshl_b32 s40, s40, 12", 'c': "s_lshl_b32 s40, s6, 12",
           'x': "s_xor_b32 s40, s4, s6\ns_lshl_b32 s40, s40, 12", 'g3': "s_mul_i32 s40, s4, 3\ns_and_b32 s40, s40, 7\ns_lshl_b32 s40, s40, 12",
           'g2': "s_lshr_b32 s40, s4, 2\ns_lshl1_add_u32 s40, s4, s40\ns_and_b32 s40, s40, 7\ns_lshl_b32 s40, s40, 12",
           'h': "s_and_b32 s40, s4, 6\ns_lshl_b32 s40, s40, 12"}[rot])
        a("""s_add_u32 s44, s10, s35
        s_addc_u32 s45, s11, 0
        s_and_b32 s45, s45, 0xffff
        s_mov_b32 s46, 32768
        s_add_u32 s12, s12, s35
        s_addc_u32 s13, s13, 0""")
    nwarm = 1 if warm else 0
    def late_setup():
        a("""v_lshrrev_b32 v4, 2, v2
        v_xor_b32 v4, v4, v3
        v_lshl_add_u32 v12, v4, 6, v5
        v_and_b32 v4, 3, v0
        v_lshl_add_u32 v12, v4, 4, v12
        v_mul_u32_u24 v13, 28672, v6
        v_lshl_add_u32 v13, v7, 4, v13
        v_lshlrev_b32 v4, 1, v3
        v_xor_b32 v4, v4, v7
        v_lshlrev_b32 v4, 4, v4
        v_lshl_add_u32 v14, v6, 10, v4
        s_mul_i32 s41, s6, 229376
        s_lshl_b32 s37, s33, 7
        s_add_u32 s41, s41, s37
        s_lshl_b32 s42, s4, 19
        s_lshl_b32 s38, s7, 17
        s_add_u32 s42, s42, s38
        s_lshl_b32 s38, s6, 7
        s_add_u32 s42, s42, s38
        s_lshl_b32 s43, s33, 16
        s_add_u32 s43, s43, s38""")
        if perm:
            pos = {n: 8 + b for b, n in enumerate(perm)}
            for i in range(4): a(f"v_add_u32 v{40 + i}, {((i & 1) << pos['i0']) | ((i >> 1) << pos['i1'])}, v12")
        srd(48, 30, WSZ)
        if h3warm is not None:
            a("s_sub_u32 s37, s33, 28\ns_lshl3_add_u32 s37, s37, s6")
            inbox(36, 37)
            a("v_lshl_add_u32 v19, v0, 6, s36")
        if warm:
            a(f"s_lshl_b32 s36, s4, 7\ns_add_u32 s36, s36, s5\ns_lshl_b32 s37, s36, 9\ns_add_u32 s37, s37, {W_H2}")
            a("v_lshrrev_b32 v16, 3, v0\nv_lshlrev_b32 v16, 14, v16\nv_lshl_add_u32 v16, v7, 6, v16\nv_add_u32 v16, s37, v16")
            a(f"s_lshl_b32 s37, s36, 4\ns_add_u32 s37, s37, {W_ML}\nv_and_b32 v17, 3, v0\nv_lshlrev_b32 v17, 9, v17\nv_add_u32 v17, s37, v17")
            a(f"s_lshl_b32 s36, s4, 2\ns_add_u32 s36, s36, s7\ns_lshl_b32 s36, s36, 3\ns_add_u32 s36, s36, s6\ns_lshl_b32 s36, s36, 9\ns_add_u32 s36, s36, {W_HB}")
            a("v_lshl_add_u32 v18, v7, 6, s36\nv_cmp_gt_u32 s[56:57], 40, v0\nv_cndmask_b32 v17, v17, v18, s[56:57]\nv_cmp_gt_u32 s[56:57], 32, v0\nv_cndmask_b32 v16, v17, v16, s[56:57]")
    def addk(r, d): return f"s_addk_i32 s{r}, {d}" if -32768 <= d < 32768 else f"s_add_u32 s{r}, s{r}, {d & 0xffffffff}"
    def seg_loads(name):
        r = []
        if name in ("K", "V"):
            base = L_K if name == "K" else L_V
            for i in range(32):
                if perm:
                    r.append((f"s_mov_b32 m0, {base + 1024 * i}", f"v{32 + (i & 7) if name == 'K' else 40 + (i & 3)}, s[44:47], s{TOPS[i >> 2]} offen", top((i >> 2) + 1) if name == 'K' and i % 4 == 1 and i < 28 else None))
                    continue
                v = f"v{8 + ((i >> 1) & 3)}" if name == "K" else "v12"
                r.append((f"s_mov_b32 m0, {base + 1024 * i}" if i % 4 == 0 else None, f"{v}, s[44:47], s40 offen offset:{1024 * (i & 3)}",
                          "s_addk_i32 s40, 0x1000\ns_and_b32 s40, s40, 0x7fff" if i % 4 == 3 else None))
        if name == "Q":
            for i in range(16): r.append((f"s_mov_b32 m0, {L_WQ + 1024 * i}", "v15, s[44:47], s39 offen", "s_addk_i32 s39, 0x2000"))
        if name == "GU":
            for i in range(16): r.append((f"s_mov_b32 m0, {L_GU + 1024 * i}", f"v13, s[{44 + 8 * (i & 1)}:{47 + 8 * (i & 1)}], s41 offen", "s_addk_i32 s41, 0xe00" if i & 1 else None))
        if name == "WO":
            o_ = list(woord or range(16))
            for n_, i in enumerate(o_): r.append((f"s_mov_b32 m0, {L_WO + 1024 * i}", "v14, s[44:47], s42 offen", addk(42, 0x2000 * (o_[n_ + 1] - i)) if n_ < 15 else None))
        if name == "WD":
            o_ = list(wdord or range(8))
            for n_, i in enumerate(o_): r.append((f"s_mov_b32 m0, {L_WD + 1024 * i}", "v14, s[44:47], s43 offen", addk(43, 0x2000 * (o_[n_ + 1] - i)) if n_ < 7 else None))
        return r
    def seg_setup(name):
        if name == "K": k_setup()
        if name == "V": srd(44, 12, 1048576 if perm else 32768)
        if name == "GU": srd(44, 20, 1835008); srd(52, 22, 1835008)
        if name == "GU" and xb2 is not None: a(f"s_and_b32 s35, s2, 7\ns_bitcmp1_b32 {xb2}, s35\ns_cselect_b64 {'s[100:101]' if adapt else 'vcc'}, -1, 0")
        if name == "WO": srd(44, 16, 4194304)
        if name == "WD": srd(44, 24, 1835008)
    def signal(f):
        a(f"v_mov_b32 v20, {f}\nds_write_b32 v1, v20 offset:{F_LD}")
        if events[f - 1] in order: stamp('l', 1 + order.index(events[f - 1]) if events[f - 1] != 'Q' else 7)
        if adapt and events[f - 1] in adapt:
            a(f"s_memtime s[62:63]\ns_waitcnt lgkmcnt(0)\ns_sub_u32 s62, s62, s60\ns_cmp_gt_u32 s62, {int(adapt[events[f - 1]] * 2.26)}\ns_cselect_b64 vcc, -1, s[100:101]")
    def emit(segs, n0, pend, final, THX=None):
        n = n0
        for name in segs:
            seg_setup(name)
            th = TH if name in ("Q", "K", "V") or TH2 is None else TH2
            if name in ("Q", "K") and THK: th = THK
            if name == "GU" and THG: th = THG
            lo = seg_loads(name)
            if THX: th = THX
            th0 = th
            if name == "Q":
                for c in range(4): pend.append((n + 4 * c + 4, seg_flag("Q" + (str(c) if c < 3 else ""))))
                n += 16
                continue
            if m0k:
                ms = [(i_, int(x[0].split(",")[1])) for i_, x in enumerate(lo) if x[0]]
                for (i0, v0_), (i1, v1_) in zip(ms, ms[1:]):
                    p_ = lo[i1 - 1]
                    lo[i1 - 1] = (p_[0], p_[1], (p_[2] + "\n" if p_[2] else "") + f"s_addk_i32 m0, {v1_ - v0_}")
                    lo[i1] = (None,) + lo[i1][1:]
            for idx, (m0, ad, inc) in enumerate(lo):
                if m0: a(m0)
                th = th0
                for d_ in (dip, dip2):
                    if d_ and d_[0] <= n < d_[1]: th = d_[2]
                if n == (THK or TH) + npre:
                    a("s_barrier")
                    if xfast:
                        a(f"s_waitcnt vmcnt({n - npre})")
                        signal(pend.pop(0)[1])
                    else: late_setup()
                    a("L_split:")
                    if two and not THX:
                        late_setup()
                        a("s_cbranch_vccnz L_wide")
                if xfast and n == (THK or TH) + npre + 4 and not two: late_setup()
                if n >= th and n >= (THK or TH) + npre:
                    sig = pend and pend[0][0] <= n - (th - 1)
                    if boost and not two and name in bseg and not sig and th == th0:
                        L = a.label("bo")
                        a(f"s_cbranch_vccnz {L}\ns_waitcnt vmcnt({th - 1})\n{L}:\ns_waitcnt vmcnt({boost - 1})")
                    else:
                        a(f"s_waitcnt vmcnt({th - 1})")
                    while pend and pend[0][0] <= n - (th - 1):
                        signal(pend.pop(0)[1])
                if pace and n >= th: a(pace)
                a(f"buffer_load_dwordx4 {ad} {ldpol} lds")
                if inc: a(inc)
                n += 1
                if name in ("V", "GU", "Q") and (idx + 1) % (len(lo) // 4) == 0 and idx + 1 < len(lo):
                    pend.append((n, seg_flag(name + str((idx + 1) // (len(lo) // 4) - 1))))
                if name == "K" and h1trig < 32 and idx + 1 == h1trig: pend.append((n, seg_flag("Kpart")))
            pend.append((n, seg_flag(name)))
            if name == "Q" and h1warm is not None:
                srd(52, 30, WSZ)
                a(f"s_lshl_b32 s35, s4, 5\ns_lshl_b32 s36, s6, 2\ns_add_u32 s35, s35, s36\ns_add_u32 s35, s35, s7\ns_lshl_b32 s35, s35, 8\ns_add_u32 s35, s35, {W_H1}")
                a(f"v_lshlrev_b32 v23, 6, v0\ns_mov_b64 exec, 15\nbuffer_load_dword v24, v23, s[52:55], s35 offen {h1warm}\ns_mov_b64 exec, -1")
                n += 1
            if name == warmat:
                if nwarm and warmx:
                    a(f"s_mov_b32 exec_lo, {warmx & 0xffffffff}\ns_mov_b32 exec_hi, {warmx >> 32}\nbuffer_load_dword v21, v16, {WS}, 0 offen {warmpol}\ns_mov_b64 exec, -1")
                    n += 1
                elif nwarm:
                    a(f"s_mov_b32 exec_hi, {0xfff if hbwarm is None else 0xf00}\n" + (f"v_mov_b32 v21, 0\nbuffer_store_dword v21, v16, {WS}, 0 offen" if warmst else f"buffer_load_dword v21, v16, {WS}, 0 offen {warmpol}") + "\ns_mov_b32 exec_hi, -1")
                    n += 1
                    if hbwarm:
                        a(f"s_mov_b32 exec_lo, 0\ns_mov_b32 exec_hi, 0xff\nbuffer_load_dword v21, v16, {WS}, 0 offen {hbwarm}\ns_mov_b64 exec, -1")
                        n += 1
                if h3warm is not None and not consffn:
                    a(f"buffer_load_dword v22, v19, {WS}, 0 offen {h3warm}")
                    n += 1
        if final:
            pend.append((n - ntail, seg_flag("T"))); pend.sort()
            pend[:] = sorted(set((e, len(events) if e == n else max(f for (e2, f) in pend if e2 <= e)) for (e, f) in pend))
            if gate == 'IE': a(f"v_mov_b32 v20, 1\nds_write_b32 v1, v20 offset:{F_IE}")
            stamp('l', 8)
            while pend:
                e, f = pend.pop(0)
                a(f"s_waitcnt vmcnt({n - e})")
                signal(f)
                if events[f - 1] == "T": stamp('l', 5)
        return n
    assert order[0] == "Q" and 16 < TH < 48
    npre = npf + 1
    ffn = ("GU", "WD")
    k = min(order.index(x) for x in ffn)
    if two:
        keep = a.lines; a.lines = []
        pend = [(npre, seg_flag("X"))]
        n = emit(order[:k], npre, pend, False, boost)
        a.lines = a.lines[a.lines.index("L_split:") + 1:]
        a("s_cmp_ge_u32 s33, 28\ns_cbranch_scc1 L_ldb2")
        emit(order[k:], n, list(pend), True, boost)
        a("s_branch L_lde\nL_ldb2:")
        emit([x for x in order[k:] if x not in ffn], n, list(pend), True, boost)
        a("s_branch L_ldw")
        wide = a.lines; a.lines = keep
    pend = [(npre, seg_flag("X"))]
    n = emit(order[:k], npre, pend, False)
    a("s_cmp_ge_u32 s33, 28\ns_cbranch_scc1 L_ldb")
    emit(order[k:], n, list(pend), True)
    a("s_branch L_lde\nL_ldb:")
    emit([x for x in order[k:] if x not in ffn], n, list(pend), True)
    a("L_ldw:")
    if outwarm is not None:
        srd(52, 26, 1024)
        a(f"s_sub_u32 s37, s33, 28\ns_lshl3_add_u32 s37, s37, s6\ns_lshl_b32 s37, s37, 5\ns_mov_b64 exec, 1\nbuffer_load_dword v23, off, s[52:55], s37 {outwarm}\ns_mov_b64 exec, -1")
    if h3warm is not None and near and h3at != 'end': pass
    elif h3warm is not None and near:
        a(f"ds_read_b32 v22, v1 offset:{F_IE}\ns_waitcnt lgkmcnt(0)\nv_readfirstlane_b32 s36, v22\ns_cmp_eq_u32 s36, 0\ns_cbranch_scc1 L_lde")
        if h3pk: a("s_mov_b32 exec_hi, 0")
        a(f"buffer_load_dword v22, v19, {WS}, s36 offen {h3warm}")
    elif h3warm is not None and consffn: a(f"buffer_load_dword v22, v19, {WS}, 0 offen {h3warm}")
    if dual:
        a(f"s_movk_i32 s36, 0x2000\nbuffer_load_dword v23, v19, {WS}, s36 offen {h3warm}\ns_waitcnt vmcnt(1)\ns_sleep {dnap}\ns_getreg_b32 s36, hwreg(HW_REG_IB_STS, 0, 4)")
        a(f"s_cmp_eq_u32 s36, 0\ns_cselect_b32 s36, 2, 1")
        if dforce: a(f"s_mov_b32 s36, {dforce}")
        a(f"v_mov_b32 v20, s36\nds_write_b32 v1, v20 offset:{F_IE}")
    if touch: a("s_branch L_lde\nL_t1:\ns_branch L_t2")
    a("L_lde:")
    stamp('l', 9)
    dump('l')
    a("s_endpgm")
    if two:
        a("L_wide:")
        a.lines += wide

    a("L_aux:")
    if 'noa' in abl: a("s_branch L_adone")
    stamp('a', 1)
    srd(48, 30, WSZ)
    a("v_lshrrev_b32 v3, 3, v0\nv_and_b32 v4, 7, v0")
    a("""v_and_b32 v6, 1, v0
    v_lshlrev_b32 v6, 4, v6
    v_mov_b32 v7, 0xffff
    v_lshlrev_b32 v6, v6, v7
    v_bfe_u32 v7, v0, 1, 2""")
    for d in range(4): a(f"v_cmp_eq_u32 vcc, {d}, v7\nv_cndmask_b32 v{12 + d}, 0, v6, vcc")
    a(f"v_lshlrev_b32 v6, 5, v0\nv_add_u32 v6, {L_XX}, v6")
    a(f"s_lshl_b32 s35, s7, 9\ns_add_u32 s35, s35, {L_XX}\nv_lshl_add_u32 v7, v3, 6, s35")
    a(f"v_add_u32 v25, {L_X}, v2")
    lds_spin(F_LD, seg_flag("X"), ["ds_read_b128 v[8:11], v25"], 'ge', 24)
    stamp('a', 2)
    for k in range(4): a(f"v_lshlrev_b32 v{16 + 2 * k}, 16, v{8 + k}\nv_and_b32 v{17 + 2 * k}, 0xffff0000, v{8 + k}")
    def wave_sum(r, t):
        for n in (8, 4, 2, 1): a(f"v_add_f32_dpp v{r}, v{r}, v{r} row_ror:{n} row_mask:0xf bank_mask:0xf")
        a(f"v_mov_b32 v{t}, v{r}\nv_permlane16_swap_b32 v{r}, v{t}\nv_add_f32 v{r}, v{r}, v{t}")
        a(f"v_mov_b32 v{t}, v{r}\nv_permlane32_swap_b32 v{r}, v{t}\nv_add_f32 v{r}, v{r}, v{t}")
    a("""v_add_f32 v24, v16, v17
    v_add_f32 v25, v18, v19
    v_add_f32 v26, v20, v21
    v_add_f32 v27, v22, v23
    v_add_f32 v24, v24, v25
    v_add_f32 v26, v26, v27
    v_add_f32 v24, v24, v26""")
    wave_sum(24, 25)
    a("v_mul_f32 v24, 0x3b000000, v24")
    for k in range(8): a(f"v_sub_f32 v{32 + k}, v{16 + k}, v24")
    a("v_mul_f32 v26, v32, v32\nv_mul_f32 v27, v33, v33")
    for k in range(2, 8): a(f"v_fmac_f32 v{26 + (k & 1)}, v{32 + k}, v{32 + k}")
    a("v_add_f32 v26, v26, v27\nv_cvt_pk_bf16_f32 v24, 0, v24")
    wave_sum(26, 25)
    for k in range(8): a(f"v_sub_f32 v{16 + k}, v{16 + k}, v24")
    a("""v_mul_f32 v26, 0x3b000000, v26
    v_cvt_pk_bf16_f32 v26, 0, v26
    v_add_f32 v26, 0x3727c5ac, v26
    v_cvt_pk_bf16_f32 v26, 0, v26
    v_sqrt_f32 v26, v26""")
    for k in range(8): a(f"v_cvt_pk_bf16_f32 v{16 + k}, 0, v{16 + k}")
    a("v_cvt_pk_bf16_f32 v26, 0, v26\nv_rcp_f32 v27, v26")
    for k in range(8): a(f"v_mul_f32 v{32 + k}, v{16 + k}, v27")
    for k in range(8): a(f"v_fma_f32 v{16 + k}, -v{32 + k}, v26, v{16 + k}")
    for k in range(8): a(f"v_fmac_f32 v{32 + k}, v{16 + k}, v27")
    for k in range(8): a(f"v_cvt_pk_bf16_f32 v{32 + k}, v{32 + k}, v{32 + k}")
    a("ds_write_b128 v6, v[32:35]\nds_write_b128 v6, v[36:39] offset:16")
    for k in range(4): a(f"ds_read_b128 v[{16 + 4 * k}:{19 + 4 * k}], v7 offset:{16 * k}")
    a("""v_lshlrev_b32 v5, 5, v4
    v_bfe_u32 v6, v0, 4, 1
    v_lshl_add_u32 v5, v6, 4, v5
    v_mov_b32 v61, v5
    v_lshrrev_b32 v6, 5, v0
    v_lshl_add_u32 v5, v6, 3, v5
    s_lshl_b32 s35, s4, 5
    s_lshl_b32 s36, s6, 2
    s_add_u32 s35, s35, s36
    s_add_u32 s35, s35, s7
    s_lshl_b32 s35, s35, 8""")
    a(f"s_add_u32 s35, s35, {W_H1}\nv_add_u32 v9, s35, v61\nv_mov_b32 v56, 0xff\ns_mov_b32 s43, {W_H1B - W_H1}")
    a("s_waitcnt lgkmcnt(0)")
    stamp('a', 3)
    tags()
    a("v_mov_b32 v57, s42\nv_lshrrev_b32 v58, 8, v57\nv_lshrrev_b32 v59, 16, v57\nv_lshrrev_b32 v60, 24, v57")
    a(f"v_add_u32 v11, {L_WQ}, v2")
    for i in range(16):
        for d in range(4): a(f"v_and_b32 v{128 + 4 * (i & 7) + d}, v{16 + i}, v{12 + d}")
        if i == 7 or i == 11 or i == 15:
            for c in ((0, 1) if i == 7 else (2,) if i == 11 else (3,)):
                lds_spin(F_LD, seg_flag("Q" + (str(c) if c < 3 else "")), [f"ds_read_b128 v[{64 + 4 * k}:{67 + 4 * k}], v11 offset:{1024 * k}" for k in range(4 * c, 4 * c + 4)], 'ge', 62)
                for k in range(4 * c, 4 * c + 4):
                    a(f"v_mfma_f32_16x16x32_bf16 v[32:35], v[{128 + 4 * (k & 7)}:{131 + 4 * (k & 7)}], v[{64 + 4 * k}:{67 + 4 * k}], {'0' if k == 0 else 'v[32:35]'}")
    stamp('a', 4)
    a("""v_permlane32_swap_b32 v32, v34
    v_permlane32_swap_b32 v33, v35
    v_add_f32_dpp v48, v34, v32 row_shl:8 row_mask:0xf bank_mask:0xf
    v_add_f32_dpp v49, v35, v33 row_shl:8 row_mask:0xf bank_mask:0xf
    v_add_u32 v48, 0x80, v48
    v_add_u32 v49, 0x80, v49
    v_mov_b32 v50, v48
    v_mov_b32 v51, v49
    v_permlane32_swap_b32 v48, v50
    v_permlane32_swap_b32 v49, v51
    s_mov_b64 exec, 0x00ff00ff""")
    for k in range(4): a(f"v_bfi_b32 v{52 + k}, v56, v{57 + k}, v{48 + k}")
    a(f"buffer_store_dwordx4 v[52:55], v9, {WS}, 0 offen" + ("" if local and not h1wt else " sc1"))
    if bdem and local: a(f"ds_write_b128 v61, v[48:51] offset:0\n".replace("v61,", "v62,").replace("ds_write", f"v_add_u32 v62, {L_B}, v61\nds_write"))
    elif 'noh1b' not in abl and local:
        a("v_mov_b32 v57, s32\nv_lshrrev_b32 v58, 8, v57\nv_lshrrev_b32 v59, 16, v57\nv_lshrrev_b32 v60, 24, v57")
        for k in range(4): a(f"v_bfi_b32 v{160 + k}, v56, v{57 + k}, v{48 + k}")
        if lateb: a("v_mov_b32 v164, v9")
        else: a(f"buffer_store_dwordx4 v[160:163], v9, {WS}, s43 offen sc1")
    a(f"s_mov_b64 exec, -1\nv_mov_b32 v20, 1\nds_write_b32 v1, v20 offset:{F_A}")
    stamp('a', 5)
    a("L_aux2:")
    def dec_load(pol):
        a(f"s_mov_b64 exec, 1\nbuffer_load_dwordx4 v[44:47], off, {WS}, s33 offset:{W_DEC} {pol}\ns_mov_b64 exec, -1")
    def dec_first():
        a("s_not_b32 s37, s32\nv_mov_b32 v44, s37\ns_lshl_b32 s33, s6, 4")
        lds_spin(F_LD, seg_flag(dat), [], 'ge', 28, nap=lazy)
        dec_load(dpol)
    def dec_use(tag, cnt):
        a(f"s_mov_b32 s40, {SPIN}\ns_waitcnt vmcnt({cnt})\nL_vc0{tag}:\ns_mov_b64 exec, 1")
        for k in range(4): a(f"v_xor_b32 v{44 + k}, s32, v{44 + k}")
        a("s_movk_i32 s39, 0x2000\nv_or_b32 v41, v44, v45\nv_or3_b32 v41, v41, v46, v47\nv_cmp_lt_u32 vcc, 1, v41")
        for k in range(4): a(f"v_lshlrev_b32 v{44 + k}, v{44 + k}, s39")
        a(f"s_cbranch_vccnz L_vc1{tag}\nds_write_b128 v1, v[44:47] offset:{F_D}\ns_mov_b64 exec, -1")
        with outofline():
            a(f"L_vc1{tag}:\ns_waitcnt vmcnt(0)")
            dec_load('sc1')
            a(f"s_sub_u32 s40, s40, 1\ns_cbranch_scc1 L_end\ns_waitcnt vmcnt(0)\ns_branch L_vc0{tag}")
    a("s_cmp_ge_u32 s33, 28\ns_cbranch_scc1 " + ("L_probe" if probe_diag else "L_dec" if near else "L_adone"))
    if near:
        with outofline():
            a("L_dec:")
            if vat: lds_spin(F_LD, seg_flag(vat), [], 'ge', 28, nap=lazy)
            nvc = 1 if (vset, vsh) == (1, 2) else 4
            if nvc == 1: a(f"v_lshlrev_b32 v41, 2, v0\nbuffer_load_dword v44, v41, {WS}, 0 offen offset:{W_VOT} {vpol}")
            else: a(f"buffer_load_dwordx4 v[44:47], v2, {WS}, 0 offen offset:{W_VOT} {vpol}")
            a("s_lshl3_add_u32 s35, s33, s6\ns_lshl_b32 s35, s35, 2\ns_waitcnt vmcnt(0)")
            for k in range(nvc):
                a(f"v_xor_b32 v41, s32, v{44 + k}")
                for c in range(2):
                    a(f"v_cmp_eq_u32 vcc, {c + 1}, v41\ns_bcnt1_i32_b64 s{(36 if k == 0 else 38) + c}, vcc")
                if k: a("s_add_u32 s36, s36, s38\ns_add_u32 s37, s37, s39")
            a("s_cmp_gt_u32 s37, s36\ns_cselect_b32 s38, 0, 1\ns_getreg_b32 s39, hwreg(HW_REG_XCC_ID, 2, 1)\ns_xor_b32 s39, s39, s38")
            a(f"s_xor_b32 s38, s39, s32\ns_lshl_b32 s39, 0x2000, s39\nv_mov_b32 v41, s39\nv_mov_b32 v42, s38\nds_write_b32 v1, v41 offset:{F_IE}")
            a(f"s_mov_b64 exec, 1\nbuffer_store_dword v42, off, {WS}, s35 offset:{W_DEC - 896} sc1\ns_mov_b64 exec, -1")
            if stamps or evdbg: a(f"s_lshl_b32 s37, s37, 8\ns_add_u32 s36, s36, s37\nv_mov_b32 v41, s36\nds_write_b32 v1, v41 offset:{F_N}")
            if evdbg:
                srd(44, 28, 256)
                a(f"s_getreg_b32 s37, hwreg(HW_REG_XCC_ID, 0, 4)\ns_lshl_b32 s37, s37, 24\ns_add_u32 s36, s36, s37\nv_mov_b32 v41, s36\ns_sub_u32 s35, s35, 896\nv_mov_b32 v42, s35\nbuffer_store_dword v41, v42, s[44:47], 0 offen")
            if h3at != 'end':
                if h3at != 'dec': lds_spin(F_LD, seg_flag(h3at), [], 'ge', 28, nap=lazy)
                a("s_lshr_b32 s37, s35, 2\ns_sub_u32 s37, s37, 224")
                inbox(38, 37)
                a(f"v_lshl_add_u32 v42, v0, 6, s38\n" + ("s_mov_b32 exec_hi, 0\n" if h3pk else "") + f"buffer_load_dword v43, v42, {WS}, s39 offen {h3warm}\ns_mov_b64 exec, -1")
            if evpad:
                a({'max': "s_max_u32 s60, s36, s37", 'min': "s_min_u32 s60, s36, s37", 'ev0': "s_mov_b32 s60, s36", 'ev1': "s_mov_b32 s60, s37"}[evpad])
            dec_first()
            dec_use('a', 0)
            if evpad:
                a("s_memrealtime s[62:63]\ns_waitcnt lgkmcnt(0)\ns_mul_i32 s60, s60, 200\ns_add_u32 s60, s60, s62\ns_add_u32 s60, s60, 2000")
                a("L_evp:\ns_sleep 4\ns_memrealtime s[62:63]\ns_waitcnt lgkmcnt(0)\ns_sub_u32 s35, s62, s60\ns_cmp_lt_i32 s35, 0\ns_cbranch_scc1 L_evp")
            a("s_branch L_adone")
    if probe_diag:
        with outofline():
            a(f"L_probe:\ns_sub_u32 s35, s33, 28\ns_lshl3_add_u32 s35, s35, s6\ns_lshr_b32 s36, s35, 2\ns_lshl_b32 s36, s36, 14\ns_and_b32 s35, s35, 3\ns_lshl_b32 s35, s35, 10\ns_add_u32 s36, s36, s35\ns_add_u32 s36, s36, {W_PR}")
            if probe_diag == 3:
                lds_spin(F_LD, seg_flag("Kpart"), [], 'ge', 28, nap=2)
                a("s_mul_i32 s36, s6, 768\ns_add_u32 s36, s36, 0x14000")
            for t in range(12):
                a(f"s_memtime s[56:57]\ns_waitcnt lgkmcnt(0)\ns_load_dword s58, s[30:31], s36 offset:{(t >> 1) * 128 + (t & 1) * 8192}{' glc' if probe_diag == 2 else ''}\ns_waitcnt lgkmcnt(0)\ns_memtime s[60:61]\ns_waitcnt lgkmcnt(0)\ns_sub_u32 s{66 + 2 * t}, s60, s56")
            a("s_memtime s[90:91]\ns_branch L_adump")
    if 'noffn' in abl: a("s_branch L_adone")
    a(f"s_lshl_b32 s35, s6, 8\ns_add_u32 s35, s35, {L_XX}\nv_lshl_add_u32 v7, v3, 5, s35")
    a("ds_read_b128 v[16:19], v7\nds_read_b128 v[20:23], v7 offset:16")
    a(f"s_lshl_b32 s35, s4, 2\ns_add_u32 s35, s35, s7\ns_lshl_b32 s35, s35, 12\ns_add_u32 s35, s35, {W_HB}")
    a("v_add_u32 v10, s35, v2\ns_lshl_b32 s36, s6, 9\ns_add_u32 s35, s35, s36\nv_lshl_add_u32 v9, v5, 1, s35")
    a(f"v_add_u32 v11, {L_GU}, v2")
    a("""v_bfe_u32 v8, v0, 4, 1
    v_lshlrev_b32 v8, 6, v8
    v_bfe_u32 v6, v0, 1, 2
    v_lshl_add_u32 v8, v6, 4, v8
    v_bfe_u32 v6, v0, 3, 1
    v_lshl_add_u32 v8, v6, 3, v8
    v_and_b32 v6, 1, v0
    v_lshl_add_u32 v8, v6, 2, v8
    v_lshrrev_b32 v6, 5, v0
    v_lshl_add_u32 v8, v6, 1, v8""")
    a(f"v_add_u32 v8, {L_H}, v8")
    tagbytes(56, 32)
    for k in range(4): a(f"v_mov_b32 v{57 + k}, s{56 + k}")
    a("s_waitcnt lgkmcnt(0)")
    for i in range(8):
        for d in range(4): a(f"v_and_b32 v{128 + 4 * i + d}, v{16 + i}, v{12 + d}")
    if 'hb' in prew:
        for k in range(4): a(f"v_not_b32 v{48 + k}, v{57 + k}")
        a(f"s_mov_b32 exec_lo, 0x00ff00ff\ns_mov_b32 exec_hi, 0x00ff00ff\nbuffer_store_dwordx4 v[48:51], v9, {WS}, 0 offen\ns_mov_b64 exec, -1")
    if near: dec_first()
    for c in range(4):
        rd = [f"ds_read_b128 v[{64 + 4 * i}:{67 + 4 * i}], v11 offset:{1024 * i}" for i in range(4 * c, 4 * c + 4)]
        if c == 3: rd.append(f"ds_read_b128 v[24:27], v1 offset:{F_Q}")
        if c == 0 and lazy: lds_spin(F_LD, seg_flag("V"), [], 'ge', 28, nap=lazy)
        lds_spin(F_LD, seg_flag("GU" + (str(c) if c < 3 else "")), rd, 'ge', 28)
        if c == 3: stamp('a', 6)
        for i in range(2 * c, 2 * c + 2):
            for m in range(2):
                cc = "0" if i == 0 else f"v[{32 + 4 * m}:{35 + 4 * m}]"
                a(f"v_mfma_f32_16x16x32_bf16 v[{32 + 4 * m}:{35 + 4 * m}], v[{128 + 4 * i}:{131 + 4 * i}], v[{64 + 8 * i + 4 * m}:{67 + 8 * i + 4 * m}], {cc}")
    a("v_and_b32 v26, v26, v27\nv_bitop3_b32 v24, v24, v25, v26 bitop3:0x80\nv_readfirstlane_b32 s41, v24\ns_and_b32 s41, s41, 2")
    a("""v_permlane32_swap_b32 v32, v34
    v_permlane32_swap_b32 v33, v35
    v_permlane32_swap_b32 v36, v38
    v_permlane32_swap_b32 v37, v39
    v_add_f32_dpp v48, v34, v32 row_shl:8 row_mask:0xf bank_mask:0xf
    v_add_f32_dpp v50, v35, v33 row_shl:8 row_mask:0xf bank_mask:0xf
    v_add_f32_dpp v49, v38, v36 row_shl:8 row_mask:0xf bank_mask:0xf
    v_add_f32_dpp v51, v39, v37 row_shl:8 row_mask:0xf bank_mask:0xf
    s_mov_b32 exec_lo, 0x00ff00ff
    s_mov_b32 exec_hi, 0x00ff00ff""")
    for k in range(4): a(f"v_add_u32 v{48 + k}, 0x80, v{48 + k}")
    for k in range(4): a(f"v_bfi_b32 v{48 + k}, v56, v{57 + k}, v{48 + k}")
    st2([f"buffer_store_dwordx4 v[48:51], v9, {WS}, 0 offen"], 'hb')
    a("s_mov_b64 exec, -1")
    stamp('a', 7)
    if near: dec_use('b', 1)
    L = a.label("hb")
    a(f"s_mov_b32 s38, {max(seg_flag('WO'), seg_flag('WD'))}\ns_mov_b32 s36, {seg_flag('T')}\ns_mov_b32 s39, {0 if hbfirst else 1}")
    a(f"s_mov_b32 s40, {SPIN}\n{L}:")
    if gate:
        a("s_cmp_eq_u32 s39, 1\ns_cbranch_scc0 L_hbg")
        wait_gate(28)
        if anap: a(f"s_sleep {anap}")
        a("L_hbg:\ns_add_u32 s39, s39, 1")
    for i in range(4): a(f"buffer_load_dwordx4 v[{64 + 4 * i}:{67 + 4 * i}], v10, {WS}, 0 offen offset:{1024 * i} {pollpol}")
    a("s_sub_u32 s40, s40, 1\ns_cbranch_scc1 L_end")
    for i in range(4):
        a(f"s_waitcnt vmcnt({3 - i})")
        strip(20, [64 + 4 * i + k for k in range(4)], first=(i == 0))
        if i:
            for k in range(4): a(f"v_add_f32 v{64 + k}, v{64 + k}, v{64 + 4 * i + k}")
    a(f"v_and_b32 v20, 0xff, v20\nv_cmp_ne_u32 vcc, 0, v20")
    if hbsleep: a(f"s_cbranch_vccz L_hbok\ns_sleep {hbsleep}\ns_branch {L}\nL_hbok:")
    else: a(f"s_cbranch_vccnz {L}")
    stamp('a', 8)
    a(f"""v_permlane32_swap_b32 v64, v66
    v_permlane32_swap_b32 v65, v67
    v_add_f32 v64, v64, v66
    v_add_f32 v66, v65, v67
    v_cvt_pk_bf16_f32 v64, 0, v64
    v_cvt_pk_bf16_f32 v66, 0, v66
    v_mul_f32 v20, {(LOG2E | 0x80000000):#x}, v64
    v_exp_f32 v20, v20
    v_add_f32 v20, 1.0, v20
    v_rcp_f32 v21, v20
    v_mul_f32 v22, v64, v21""")
    if refine: a("""v_fma_f32 v23, -v22, v20, v64
    v_fma_f32 v23, v23, v21, v22
    v_cmp_class_f32 vcc, v23, 3
    v_cndmask_b32 v22, v23, v22, vcc""")
    a(f"""v_cvt_pk_bf16_f32 v22, 0, v22
    v_mul_f32 v22, v22, v66
    v_cvt_pk_bf16_f32 v22, v22, v22
    v_mov_b32 v21, 1
    ds_write_b16 v8, v22
    ds_write_b32 v1, v21 offset:{F_H}""")
    a("L_adone:")
    if lateb and local:
        a(f"s_mov_b64 exec, 0x00ff00ff\nbuffer_store_dwordx4 v[160:163], v164, {WS}, s43 offen sc1")
    stamp('a', 9)
    a("L_adump:")
    dump('a')
    a("s_endpgm")

    a("L_comp:\ns_sub_u32 s34, s3, 2")
    a("s_load_dword s32, s[30:31], 0")
    srd(48, 30, WSZ)
    if warm and not h1wt and h1w:
        a("s_cmp_eq_u32 s34, 1\ns_cbranch_scc0 L_nowarm")
        a(f"s_lshl_b32 s35, s4, 5\ns_lshl_b32 s36, s6, 2\ns_add_u32 s35, s35, s36\ns_add_u32 s35, s35, s7\ns_lshl_b32 s35, s35, 8\ns_add_u32 s35, s35, {W_H1}")
        a(f"v_lshlrev_b32 v4, 6, v0\ns_mov_b64 exec, 15\nbuffer_load_dword v124, v4, {WS}, s35 offen {warmpol}\ns_mov_b64 exec, -1\nL_nowarm:")
    a("""v_and_b32 v2, 15, v0
    v_lshrrev_b32 v3, 4, v0""")
    a("""v_xor_b32 v4, v2, v3
    v_lshlrev_b32 v4, 4, v4
    v_lshrrev_b32 v5, 2, v2
    v_lshlrev_b32 v5, 11, v5
    v_and_b32 v6, 3, v0
    v_lshl_add_u32 v5, v6, 8, v5
    s_lshr_b32 s35, s34, 1
    s_lshl_b32 s35, s35, 14
    s_and_b32 s36, s34, 1
    s_lshl_b32 s36, s36, 10
    s_add_u32 s35, s35, s36
    v_add_u32 v5, s35, v5""")
    for s_ in range(4):
        a(f"v_xor_b32 v{8 + s_}, {64 * s_}, v4\nv_add_u32 v{8 + s_}, v{8 + s_}, v5")
    a("""v_lshrrev_b32 v4, 2, v2
    v_xor_b32 v5, s34, v4
    v_lshlrev_b32 v5, 6, v5
    v_lshl_add_u32 v5, v4, 8, v5
    v_lshrrev_b32 v7, 1, v3
    v_lshl_add_u32 v5, v7, 10, v5
    v_and_b32 v7, 1, v3
    v_lshl_add_u32 v5, v7, 5, v5
    v_lshl_add_u32 v5, v6, 3, v5""")
    a(f"v_add_u32 v12, {L_V}, v5")
    a("""v_lshl_add_u32 v5, v3, 2, v4
    v_lshrrev_b32 v7, 1, v5
    v_and_b32 v7, 3, v7
    v_xor_b32 v7, s34, v7
    v_lshlrev_b32 v7, 5, v7
    v_lshl_add_u32 v7, v5, 7, v7
    v_lshl_add_u32 v14, v6, 3, v7""")
    a(f"v_add_u32 v14, {L_WO}, v14")
    a(f"v_mul_u32_u24 v15, 320, v6\nv_lshl_add_u32 v15, v3, 4, v15\nv_add_u32 v15, {L_Q}, v15")
    a("""v_lshrrev_b32 v4, 5, v0
    v_lshlrev_b32 v16, 8, v4
    v_and_b32 v5, 1, v3
    v_lshl_add_u32 v16, v5, 10, v16
    v_lshl_add_u32 v16, v2, 4, v16
    s_lshl_b32 s35, s4, 13
    s_lshl_b32 s36, s34, 11
    s_add_u32 s35, s35, s36""")
    a(f"s_add_u32 s35, s35, {W_H1}\nv_add_u32 v16, s35, v16")
    a(f"s_mul_i32 s35, s34, 320\ns_add_u32 s35, s35, {L_Q}\nv_and_b32 v5, 31, v0\nv_lshl_add_u32 v17, v5, 3, s35\nv_lshl_add_u32 v17, v4, 2, v17")
    a("s_lshl_b32 s35, s34, 2\nv_add_u32 v18, s35, v1")
    a(f"s_lshl_b32 s35, s34, 8\ns_add_u32 s35, s35, {L_P}\nv_lshl_add_u32 v19, v3, 5, s35\nv_lshl_add_u32 v19, v6, 3, v19")
    a(f"s_lshl_b32 s35, s34, 4\ns_add_u32 s35, s35, {L_ML}\nv_lshl_add_u32 v112, v0, 2, s35")
    a(f"v_lshlrev_b32 v113, 3, v0\nv_add_u32 v113, {L_P}, v113")
    a(f"v_lshlrev_b32 v114, 4, v4\nv_add_u32 v114, {L_ML}, v114")
    a(f"s_lshl_b32 s35, s34, 2\ns_add_u32 s35, s35, {L_ML}\nv_lshl_add_u32 v13, v6, 4, s35\nv_mov_b32 v144, {L_ML}")
    a("s_lshl_b32 s35, s4, 7\ns_add_u32 s35, s35, s5")
    a(f"s_lshl_b32 s36, s35, 9\ns_lshl_b32 s37, s34, 7\ns_add_u32 s36, s36, s37\ns_add_u32 s36, s36, {W_H2}\nv_lshl_add_u32 v115, v5, 2, s36\nv_lshl_add_u32 v115, v4, 14, v115")
    a(f"s_lshl_b32 s36, s34, 5\ns_add_u32 s36, s36, s35\ns_lshl_b32 s36, s36, 4\ns_add_u32 s36, s36, {W_ML}\nv_mov_b32 v116, s36")
    a("v_lshrrev_b32 v4, 3, v0\nv_and_b32 v5, 7, v0\ns_lshl_b32 s35, s4, 2\ns_add_u32 s35, s35, s7")
    a(f"s_lshl_b32 s36, s35, 14\ns_lshl_b32 s37, s34, 7\ns_add_u32 s36, s36, s37\ns_add_u32 s36, s36, {W_H2}")
    a("v_lshlrev_b32 v117, 9, v4\nv_lshl_add_u32 v117, v5, 4, v117\nv_add_u32 v117, s36, v117")
    a(f"s_lshl_b32 s36, s35, 9\ns_add_u32 s36, s36, {W_ML}\nv_and_b32 v118, 31, v0\nv_lshl_add_u32 v118, v118, 4, s36\nv_lshlrev_b32 v123, 2, v4")
    a("""v_and_b32 v119, 3, v0
    v_lshlrev_b32 v119, 4, v119
    v_bfe_u32 v4, v0, 2, 1
    v_lshl_add_u32 v119, v4, 3, v119
    v_bfe_u32 v4, v0, 4, 1
    v_lshl_add_u32 v119, v4, 2, v119
    v_lshrrev_b32 v4, 5, v0
    v_lshl_add_u32 v119, v4, 1, v119""")
    a(f"s_lshl_b32 s35, s34, 6\ns_add_u32 s35, s35, {L_O}\nv_add_u32 v119, s35, v119")
    a(f"v_lshlrev_b32 v120, 4, v3\nv_add_u32 v120, {L_O}, v120")
    a("s_lshl2_add_u32 s37, s6, s34")
    inbox(35, 37)
    a(f"s_lshl2_add_u32 s36, s4, s7\ns_lshl_b32 s36, s36, {6 if h3pk else 7}\ns_add_u32 s35, s35, s36\nv_lshl_add_u32 v121, v0, {2 if h3pk else 3}, s35")
    a("s_movk_i32 s52, 0x1000\ns_movk_i32 s53, 0x2000\ns_movk_i32 s54, 0x3000\ns_mov_b32 s55, 0x8000\nv_mov_b32 v125, 0xff")
    a("s_waitcnt lgkmcnt(0)")
    tags()
    a("v_lshlrev_b32 v4, 3, v6\nv_lshrrev_b32 v122, v4, s32\nv_mov_b32 v147, s32\nv_mov_b32 v149, s32")
    tagbytes(56, 42)
    if 'noc' in abl: a("s_branch L_cdone")
    if 'h2' in prew:
        a(f"v_not_b32 v20, v122\nbuffer_store_dword v20, v115, {WS}, 0 offen\nbuffer_store_dword v20, v115, {WS}, s55 offen")
    kreads = [f"ds_read_b128 v[{32 + 16 * t + 4 * s}:{35 + 16 * t + 4 * s}], v{8 + s} offset:{L_K + 8192 * t}" for t in range(2) for s in range(4)]
    a("s_mov_b32 s43, 0\ns_mov_b32 s41, 3\ns_mov_b32 s39, 0")
    if forceslow and bdem:
        a("s_xor_b32 s42, s42, 0x80808080")
        tagbytes(56, 42)
    elif forceslow: a(f"s_mov_b32 s39, {NA}")
    if h1own: lds_spin(F_A, 1, [], 'ge', 20)
    else:
        if nap1: a(f"s_sleep {nap1}")
        if both: lds_spin(F_A, 1, [], 'ge', 20, nap=lazy)
        lds_spin(F_LD, seg_flag("Kpart" if h1trig < 32 else "K"), [], 'ge', 20, nap=lazy)
    stamp('c', 1)
    L = a.label("h1"); L2 = a.label("h1k")
    a(f"{L}:")
    if local:
        a(f"s_cmp_{'ge' if bdem else 'eq'}_u32 s39, {NA}\ns_cbranch_scc1 L_h1sw\n{L2}:")
        with outofline():
            a("L_h1sw:")
            if bdem:
                a(f"s_cmp_eq_u32 s39, {NA}\ns_cbranch_scc0 L_h1t")
                lds_spin(F_A, 1, [], 'ge', 20)
                a(f"v_lshlrev_b32 v20, 4, v0\nv_add_u32 v21, {L_B}, v20\ns_mov_b64 exec, 0xffff\nds_read_b128 v[96:99], v21")
                a(f"s_lshl_b32 s35, s4, 5\ns_lshl2_add_u32 s35, s6, s35\ns_add_u32 s35, s35, s7\ns_lshl_b32 s35, s35, 8\ns_add_u32 s35, s35, {W_H1B}")
                tagbytes(56, 32)
                a("s_waitcnt lgkmcnt(0)")
                for k in range(4): a(f"v_bfi_b32 v{96 + k}, v125, s{56 + k}, v{96 + k}")
                a(f"buffer_store_dwordx4 v[96:99], v20, {WS}, s35 offen sc1\ns_waitcnt vmcnt(0)\ns_mov_b64 exec, -1")
                a(f"L_h1t:\ns_xor_b32 s43, s43, {W_H1B - W_H1}\ns_cselect_b32 s35, s32, s42\ns_cselect_b32 s41, 1, 3")
                tagbytes(56, 35)
            else:
                a(f"s_mov_b32 s43, {W_H1B - W_H1}\ns_mov_b32 s41, 1")
                tagbytes(56, 32)
            a(f"s_branch {L2}")
    for i in range(2): a(f"buffer_load_dwordx4 v[{96 + 4 * i}:{99 + 4 * i}], v16, {WS}, s43 offen offset:{512 * i} {pollpol}")
    a(f"s_add_u32 s39, s39, 1\ns_cmp_gt_u32 s39, {SPIN}\ns_cbranch_scc1 L_end")
    if h1trig == 32 and not h1own:
        for r in kreads: a(r)
    elif kearly: lds_spin(F_LD, seg_flag("K"), kreads, 'ge', 20)
    a("s_waitcnt vmcnt(0)")
    strip(20, list(range(96, 104)), first=True)
    for k in range(4): a(f"v_add_f32 v{96 + k}, v{96 + k}, v{100 + k}")
    a(f"""v_and_b32 v20, 0xff, v20
    v_cmp_ne_u32 vcc, 0, v20
    v_permlane32_swap_b32 v96, v98
    v_permlane32_swap_b32 v97, v99
    s_cbranch_vccnz {L}""")
    stamp('c', 2)
    if stamps is True: a("s_mov_b32 s88, s39")
    a("""v_add_f32 v96, v96, v98
    v_add_f32 v97, v97, v99
    v_mov_b32 v21, s41
    v_cvt_pk_bf16_f32 v96, v96, v97""")
    a(f"ds_write_b32 v17, v96\nds_write_b32 v18, v21 offset:{F_Q}")
    tagbytes(56, 32)
    if (h1trig < 32 or h1own) and not kearly: lds_spin(F_LD, seg_flag("K"), kreads, 'ge', 20)
    lds_spin(F_Q, 0, [f"ds_read_b128 v[{96 + 4 * s}:{99 + 4 * s}], v15 offset:{64 * s}" for s in range(4)] + ([f"ds_read_b32 v145, v1 offset:{F_LD}"] if look1 else []), 'all4', 20)
    stamp('c', 3)
    for s in range(4):
        for t in range(2):
            c = "0" if s == 0 else f"v[{24 + 4 * t}:{27 + 4 * t}]"
            a(f"v_mfma_f32_16x16x32_bf16 v[{24 + 4 * t}:{27 + 4 * t}], v[{32 + 16 * t + 4 * s}:{35 + 16 * t + 4 * s}], v[{96 + 4 * s}:{99 + 4 * s}], {c}")
    a("v_readfirstlane_b32 s41, v20\ns_and_b32 s41, s41, 2")
    if 'ml' in prew:
        a(f"s_cselect_b64 exec, 1, 0\nv_not_b32 v153, v147\nv_not_b32 v155, v147\nbuffer_store_dwordx4 v[152:155], v116, {WS}, 0 offen\ns_mov_b64 exec, -1")
    vread = lambda u: f"ds_read_b64_tr_b16 v[{64 + 2 * u}:{65 + 2 * u}], v12 offset:{2048 * u}"
    vflag = lambda c: seg_flag("V" + (str(c) if c < 3 else ""))
    if look1:
        a("v_readfirstlane_b32 s38, v145")
        for c in range(4):
            a(f"s_cmp_lt_u32 s38, {vflag(c)}\ns_cbranch_scc1 L_va")
            for u in range(4 * c, 4 * c + 4): a(vread(u))
        a("L_va:")
    else: a("s_mov_b32 s38, 0")
    a(f"s_mov_b32 s35, {SCALE:#x}\ns_mov_b32 s36, {LOG2E:#x}")
    if pks: a("s_mov_b32 s60, s35\ns_mov_b32 s61, s35\ns_mov_b32 s62, s36\ns_mov_b32 s63, s36")
    if mimic:
        for r in range(24, 32): a(f"v_cvt_pk_bf16_f32 v{r}, 0, v{r}")
    if pks:
        for r in range(24, 32, 2): a(f"v_pk_mul_f32 v[{r}:{r + 1}], v[{r}:{r + 1}], s[60:61]")
    else:
        for r in range(24, 32): a(f"v_mul_f32 v{r}, s35, v{r}")
    if mimic:
        for r in range(24, 32): a(f"v_cvt_pk_bf16_f32 v{r}, 0, v{r}")
    a("""v_max3_f32 v20, v24, v25, v26
    v_max3_f32 v21, v27, v28, v29
    v_max3_f32 v20, v20, v30, v31
    v_max_f32 v20, v20, v21
    v_mov_b32 v21, v20
    v_permlane16_swap_b32 v20, v21
    v_max_f32 v20, v20, v21
    v_mov_b32 v21, v20
    v_permlane32_swap_b32 v20, v21
    v_max_f32 v20, v20, v21
    v_mul_f32 v22, s36, v20""")
    if pks:
        for r in range(24, 32, 2): a(f"v_pk_fma_f32 v[{r}:{r + 1}], v[{r}:{r + 1}], s[62:63], v[22:23] op_sel:[0,0,0] op_sel_hi:[1,1,0] neg_lo:[0,0,1] neg_hi:[0,0,1]")
    else:
        for r in range(24, 32): a(f"v_fma_f32 v{r}, v{r}, s36, -v22")
    for r in range(24, 32): a(f"v_exp_f32 v{r}, v{r}")
    for k in range(4): a(f"v_cvt_pk_bf16_f32 v{32 + k}, v{24 + 2 * k}, v{25 + 2 * k}")
    if look2: a(f"ds_read_b32 v145, v1 offset:{F_LD}")
    if pks: a("""v_pk_add_f32 v[24:25], v[24:25], v[26:27]
    v_pk_add_f32 v[28:29], v[28:29], v[30:31]
    ds_write_b64 v19, v[32:33]
    v_pk_add_f32 v[24:25], v[24:25], v[28:29]
    ds_write_b64 v19, v[34:35] offset:128
    v_add_f32 v23, v24, v25""")
    else: a("""v_add_f32 v24, v24, v25
    v_add_f32 v26, v26, v27
    ds_write_b64 v19, v[32:33]
    v_add_f32 v28, v28, v29
    v_add_f32 v30, v30, v31
    ds_write_b64 v19, v[34:35] offset:128
    v_add_f32 v24, v24, v26
    v_add_f32 v28, v28, v30
    v_add_f32 v23, v24, v28""")
    a("""v_mov_b32 v21, v23
    v_permlane16_swap_b32 v23, v21
    v_add_f32 v23, v23, v21
    v_mov_b32 v21, v23
    v_permlane32_swap_b32 v23, v21
    v_add_f32 v23, v23, v21
    v_mov_b32 v21, 1
    s_mov_b64 exec, 15
    ds_write2_b32 v112, v22, v23 offset0:0 offset1:16
    s_mov_b64 exec, -1""")
    a(f"ds_write_b32 v18, v21 offset:{F_P}")
    if look2:
        lgk(4)
        a("v_readfirstlane_b32 s37, v145")
        for c in range(4):
            a(f"s_cmp_ge_u32 s38, {vflag(c)}\ns_cbranch_scc1 L_vl{c}\ns_cmp_lt_u32 s37, {vflag(c)}\ns_cbranch_scc1 L_vld")
            for u in range(4 * c, 4 * c + 4): a(vread(u))
            a(f"L_vl{c}:")
        a("L_vld:\ns_mov_b32 s38, s37")
    stamp('c', 4)
    reads = [f"ds_read_b64 v[{32 + 2 * r}:{33 + 2 * r}], v113 offset:{512 * r}" for r in range(2)]
    reads += ["ds_read2_b32 v[150:151], v13 offset0:0 offset1:16"]
    reads += [f"ds_read_b128 v[{96 + 4 * w}:{99 + 4 * w}], v144 offset:{16 * w}" for w in range(4)]
    reads += [f"ds_read_b128 v[{56 + 4 * r}:{59 + 4 * r}], v114 offset:{32 * r}" for r in range(2)]
    lds_spin(F_P, 0, reads + [f"ds_read_b32 v145, v1 offset:{F_LD}"], 'all4', 20)
    stamp('c', 5)
    fill = ["v_max_f32_dpp v146, v150, v150 quad_perm:[1,0,3,2] row_mask:0xf bank_mask:0xf"]
    fill += [f"v_max3_f32 v{96 + h}, v{96 + h}, v{100 + h}, v{104 + h}" for h in range(4)]
    fill += ["v_max_f32_dpp v146, v146, v146 quad_perm:[2,3,0,1] row_mask:0xf bank_mask:0xf"]
    fill += [f"v_max_f32 v{96 + h}, v{96 + h}, v{108 + h}" for h in range(4)]
    fill += ["v_sub_f32 v150, v150, v146"] + [f"v_sub_f32 v{56 + k}, v{56 + k}, v{96 + (k & 3)}" for k in range(8)]
    fill += ["v_exp_f32 v150, v150"] + [f"v_exp_f32 v{56 + k}, v{56 + k}" for k in range(4)] + ["v_mul_f32 v148, v150, v151"]
    fill += [f"v_exp_f32 v{60 + k}, v{60 + k}" for k in range(2)] + ["v_add_f32_dpp v148, v148, v148 quad_perm:[1,0,3,2] row_mask:0xf bank_mask:0xf"]
    fill += [f"v_exp_f32 v{62 + k}, v{62 + k}" for k in range(2)] + ["v_add_f32_dpp v148, v148, v148 quad_perm:[2,3,0,1] row_mask:0xf bank_mask:0xf"]
    def ml_pub():
        a("s_mov_b64 exec, 1")
        st2([f"buffer_store_dwordx4 v[146:149], v116, {WS}, 0 offen"], 'ml')
        a("s_mov_b64 exec, -1")
    def pv(u):
        r = u >> 3
        c = "0" if u % 8 < 2 else f"v[{40 + 8 * r + 4 * (u & 1)}:{43 + 8 * r + 4 * (u & 1)}]"
        a(f"v_mfma_f32_4x4x4_16b_bf16 v[{40 + 8 * r + 4 * (u & 1)}:{43 + 8 * r + 4 * (u & 1)}], v[{32 + 2 * r}:{33 + 2 * r}], v[{64 + 2 * u}:{65 + 2 * u}], {c} cbsz:3 abid:{u & 7}")
    a("v_readfirstlane_b32 s37, v145")
    assert len(fill) <= 32
    a(f"s_cmp_lt_u32 s38, {vflag(3)}\ns_cbranch_scc1 L_vb\nL_vc:")
    with outofline():
        a("L_vb:")
        for c in range(4):
            a(f"s_cmp_ge_u32 s38, {vflag(c)}\ns_cbranch_scc1 L_vb{c}\ns_cmp_lt_u32 s37, {vflag(c)}\ns_cbranch_scc1 L_vbd")
            for u in range(4 * c, 4 * c + 4): a(vread(u))
            a(f"L_vb{c}:")
        a("L_vbd:\ns_waitcnt lgkmcnt(0)\ns_branch L_vc")
    for c in range(4):
        a(f"s_cmp_lt_u32 s37, {vflag(c)}\ns_cbranch_scc1 L_vw{c}\nL_vr{c}:")
        with outofline():
            a(f"L_vw{c}:")
            lds_spin(F_LD, vflag(c), [vread(u) for u in range(4 * c, 4 * c + 4)], 'ge', 20)
            a(f"s_branch L_vr{c}")
        for u in range(4 * c, 4 * c + 4):
            pv(u)
            for f_ in fill[4 * u:4 * u + 4]: a(f_)
        if c == 1: ml_pub()
    stamp('c', 6)
    a("s_nop 0")
    if pks:
        for h in (0, 2): a(f"v_pk_add_f32 v[{40 + h}:{41 + h}], v[{40 + h}:{41 + h}], v[{44 + h}:{45 + h}]")
        for h in (0, 2): a(f"v_pk_mul_f32 v[{40 + h}:{41 + h}], v[{40 + h}:{41 + h}], v[{56 + h}:{57 + h}]")
        for h in (0, 2): a(f"v_pk_add_f32 v[{48 + h}:{49 + h}], v[{48 + h}:{49 + h}], v[{52 + h}:{53 + h}]")
        for h in (0, 2): a(f"v_pk_fma_f32 v[{40 + h}:{41 + h}], v[{48 + h}:{49 + h}], v[{60 + h}:{61 + h}], v[{40 + h}:{41 + h}]")
    else:
        for h in range(4): a(f"v_add_f32 v{40 + h}, v{40 + h}, v{44 + h}")
        for h in range(4): a(f"v_mul_f32 v{40 + h}, v{40 + h}, v{56 + h}")
        for h in range(4): a(f"v_add_f32 v{48 + h}, v{48 + h}, v{52 + h}")
        for h in range(4): a(f"v_fmac_f32 v{40 + h}, v{48 + h}, v{60 + h}")
    a("""v_permlane32_swap_b32 v40, v41
    v_permlane32_swap_b32 v42, v43
    v_add_f32 v40, v40, v41
    v_add_f32 v42, v42, v43
    v_bfi_b32 v40, v125, v122, v40
    v_bfi_b32 v42, v125, v122, v42""")
    st2([f"buffer_store_dword v40, v115, {WS}, 0 offen", f"buffer_store_dword v42, v115, {WS}, s55 offen"], 'h2')
    stamp('c', 7)
    if fine:
        a("s_waitcnt vmcnt(0)"); stamp('c', 1, True)
    if 'noh2' in abl: a("s_branch L_cdone")
    LF = a.label("h2"); LG = a.label("h2g"); LD = a.label("h2d")
    woreads = [f"ds_read_b64_tr_b16 v[{80 + 4 * s + 2 * x}:{81 + 4 * s + 2 * x}], v14 offset:{4096 * s + 2048 * x}" for s in range(4) for x in range(2)]
    wdreads = [f"ds_read_b64_tr_b16 v[{48 + 4 * s + 2 * x}:{49 + 4 * s + 2 * x}], v14 offset:{L_WD - L_WO + 4096 * s + 2048 * x}" for s in range(2) for x in range(2)]
    hreads = [f"ds_read_b128 v[{56 + 4 * s}:{59 + 4 * s}], v120 offset:{L_H - L_O + 64 * s}" for s in range(2)]
    last = max(seg_flag("WO"), seg_flag("WD"))
    def payload_loads(pol=pollpol):
        for i in range(4): a(f"buffer_load_dwordx4 v[{64 + 4 * i}:{67 + 4 * i}], v117, {WS}, {'s%d' % (51 + i) if i else 0} offen {pol}")
    def payload_check(mul):
        for i in range(4):
            a(f"s_waitcnt vmcnt({3 - i})")
            strip(21, [64 + 4 * i + k for k in range(4)], first=(i == 0))
            if mul:
                for k in range(4): a(fm(i, k))
        a("v_and_b32 v21, 0xff, v21\nv_cmp_ne_u32 vcc, 0, v21\ns_and_b64 exec, vcc, vcc")
    LM = a.label("h2m"); LW = a.label("h2w"); LX = a.label("h2x")
    assert order[-2:] == ("WO", "WD") and ntail <= 8 and gate == 'T'
    a(f"s_cmp_ge_u32 s33, 28\ns_cselect_b32 s36, {last}, {seg_flag('T')}\ns_mov_b32 s37, {SPIN}")
    a("v_mov_b32 v101, s32\nv_mov_b32 v103, s32")
    def ml_loads():
        a(f"s_mov_b32 exec_hi, 0\nbuffer_load_dwordx4 v[32:35], v118, {WS}, 0 offen {pollpol}\ns_mov_b32 exec_hi, -1")
    def ml_check():
        a("s_mov_b32 exec_hi, 0")
        chk(20, 33, 32, first=True); chk(20, 35, 32)
        a("v_cmp_ne_u32 vcc, 0, v20\ns_mov_b32 exec_hi, -1")
    def fm(i, k):
        w = f"v[{36 + (i & 2)}:{37 + (i & 2)}]"; sel = f"op_sel:[0,{i & 1},0] op_sel_hi:[1,{i & 1},1]"
        if i == 0: return f"v_pk_mul_f32 v[{24 + k}:{25 + k}], v[{64 + k}:{65 + k}], {w} op_sel:[0,0] op_sel_hi:[1,0]"
        return f"v_pk_fma_f32 v[{24 + k}:{25 + k}], v[{64 + 4 * i + k}:{65 + 4 * i + k}], {w}, v[{24 + k}:{25 + k}] {sel}"
    def strip_ops(i):
        r = 64 + 4 * i
        return [f"s_waitcnt vmcnt({3 - i})\nv_xor_b32 v{r}, s56, v{r}"] + [f"v_xor_b32 v{r + k}, s{56 + k}, v{r + k}" for k in (1, 2, 3)] + \
               [f"v_or_b32 v28, v{r}, v{r + 1}" if i == 0 else f"v_or3_b32 v28, v28, v{r}, v{r + 1}", f"v_or3_b32 v28, v28, v{r + 2}, v{r + 3}"]
    wait_gate(20)
    stamp('c', 2, True)
    ml_loads()
    payload_loads(pollpol if poll1 is None else poll1)
    for r in woreads: a(r)
    a("s_waitcnt vmcnt(4)")
    ml_check()
    a(f"s_cbranch_vccnz {LM}\n{LW}:")
    with outofline():
        a(f"{LM}:")
        if joint:
            def pchk():
                for r in range(64, 80): chk(28, r, 56 + (r & 3), first=(r == 64))
                a("v_and_b32 v28, 0xff, v28\nv_cmp_ne_u32 s[60:61], 0, v28")
            a("s_waitcnt vmcnt(0)")
            pchk()
            a(f"{LX}:")
            ml_loads()
            a("s_mov_b64 exec, s[60:61]")
            payload_loads()
            a("s_sub_u32 s37, s37, 1\ns_cbranch_scc1 L_end\ns_waitcnt vmcnt(0)")
            pchk()
            a("s_mov_b32 exec_lo, -1")
            ml_check()
            a(f"s_or_b64 vcc, vcc, s[60:61]\ns_cbranch_scc1 {LX}\ns_branch {LW}")
        else:
            ml_loads()
            a("s_sub_u32 s37, s37, 1\ns_cbranch_scc1 L_end\ns_waitcnt vmcnt(0)")
            ml_check()
            a(f"s_cbranch_vccnz {LM}\ns_branch {LW}")
    stamp('c', 3, True)
    st = strip_ops(0) + strip_ops(1) + strip_ops(2) + strip_ops(3)
    def red32(op, r, t):
        for n in (1, 2, 4, 8):
            a(st.pop(0)); a(st.pop(0))
            a(f"{op}_dpp v{r}, v{r}, v{r} row_ror:{n} row_mask:0xf bank_mask:0xf")
        a(f"v_mov_b32 v{t}, v{r}")
        a(st.pop(0)); a(st.pop(0))
        a(f"v_permlane16_swap_b32 v{r}, v{t}\n{op} v{r}, v{r}, v{t}")
    if not early: a("v_mov_b32 v21, v32")
    if not near: a("s_mov_b32 s43, 0")
    if early:
        for n in (1, 2, 4, 8): a(f"v_max_f32_dpp v21, v{32 if n == 1 else 21}, v{32 if n == 1 else 21} row_ror:{n} row_mask:0xf bank_mask:0xf")
        a("v_mov_b32 v22, v21\nv_permlane16_swap_b32 v21, v22\nv_max_f32 v21, v21, v22\nv_sub_f32 v32, v32, v21\nv_exp_f32 v32, v32")
        a("v_mul_f32 v22, v32, v34")
        for i in range(4): a(f"ds_bpermute_b32 v{36 + i}, v123, v32 offset:{32 * i}")
        red32("v_add_f32", 22, 23)
        a("v_rcp_f32 v22, v22")
        a(st.pop(0)); a(st.pop(0))
        a("s_waitcnt lgkmcnt(0)")
        for i in range(2): a(fm(i, 0)); a(fm(i, 2))
        a("v_readfirstlane_b32 s35, v22")
        for i in range(6): a(st.pop(0))
        a(fm(2, 0)); a(fm(2, 2))
        while st: a(st.pop(0))
        a("v_and_b32 v28, 0xff, v28")
        a(fm(3, 0))
        a("v_cmp_ne_u32 vcc, 0, v28")
        a(fm(3, 2))
    else:
        red32("v_max_f32", 21, 22)
        a("v_sub_f32 v32, v32, v21\nv_exp_f32 v32, v32")
        a(st.pop(0))
        a("v_mul_f32 v22, v32, v34")
        for i in range(4): a(f"ds_bpermute_b32 v{36 + i}, v123, v32 offset:{32 * i}")
        red32("v_add_f32", 22, 23)
        a("v_rcp_f32 v22, v22")
        while st: a(st.pop(0))
        a("v_readfirstlane_b32 s35, v22\nv_and_b32 v28, 0xff, v28\ns_waitcnt lgkmcnt(0)")
        a(fm(0, 0)); a(fm(0, 2))
        a("v_cmp_ne_u32 vcc, 0, v28")
        for i in range(1, 4): a(fm(i, 0)); a(fm(i, 2))
    stamp('c', 4, True)
    a(f"s_cbranch_vccnz {LG}\n{LD}:")
    with outofline():
        a(f"{LG}:\ns_mov_b64 exec, vcc")
        if h2sleep: a(f"s_sleep {h2sleep}")
        payload_loads()
        a("s_sub_u32 s37, s37, 1\ns_cbranch_scc1 L_end")
        for i in range(4):
            for o in strip_ops(i): a(o)
        a(f"v_and_b32 v28, 0xff, v28\nv_cmp_ne_u32 vcc, 0, v28\ns_cbranch_vccnz {LG}\ns_mov_b64 exec, -1")
        for i in range(4): a(fm(i, 0)); a(fm(i, 2))
        a(f"s_nop 1\ns_branch {LD}")
    stamp('c', 8)
    if wbl == 'h2': a("s_or_b32 s39, s5, s34\ns_cbranch_scc1 L_nwb\nbuffer_wbl2 sc1\nL_nwb:")
    ex = [f"ds_read_b64 v[28:29], v1 offset:{F_LD}"] + wdreads + hreads
    a(f"""v_permlane32_swap_b32 v24, v25
    v_permlane32_swap_b32 v26, v27
    {ex[0]}
    v_add_f32 v24, v24, v25
    v_add_f32 v26, v26, v27
    {ex[1]}
    {ex[2]}
    v_permlane16_swap_b32 v24, v26
    v_add_f32 v24, v24, v26
    {ex[3]}
    {ex[4]}
    v_add_f32_dpp v24, v24, v24 row_ror:8 row_mask:0xf bank_mask:0xf
    v_mov_b32 v21, 1
    v_mul_f32 v24, s35, v24
    {ex[5]}
    v_cvt_pk_bf16_f32 v24, v24, v24
    {ex[6]}""")
    if near: a(f"ds_read_b32 v31, v18 offset:{F_D}")
    a(f"ds_write_b16 v119, v24\nds_write_b32 v18, v21 offset:{F_O}")
    oreads = [f"ds_read_b128 v[{128 + 4 * s}:{131 + 4 * s}], v120 offset:{64 * s}" for s in range(4)]
    def mm_wd(first):
        for s in range(2): a(f"v_mfma_f32_16x16x32_bf16 v[96:99], v[{56 + 4 * s}:{59 + 4 * s}], v[{48 + 4 * s}:{51 + 4 * s}], {'0' if first and s == 0 else 'v[96:99]'}")
    def mm_wo(first):
        for s in range(4): a(f"v_mfma_f32_16x16x32_bf16 v[96:99], v[{128 + 4 * s}:{131 + 4 * s}], v[{80 + 4 * s}:{83 + 4 * s}], {'0' if first and s == 0 else 'v[96:99]'}")
    a(f"ds_read_b128 v[20:23], v1 offset:{F_O}")
    for r in oreads: a(r)
    a("s_cmp_ge_u32 s33, 28\ns_cbranch_scc1 L_noffn")
    lgk(7)
    a(f"v_cmp_gt_u32 vcc, {last}, v28\nv_cmp_eq_u32 s[62:63], 0, v29\ns_or_b64 vcc, vcc, s[62:63]\ns_cbranch_vccnz L_hw")
    mm_wd(True)
    a("s_waitcnt lgkmcnt(0)\nv_and_b32 v22, v22, v23\nv_bitop3_b32 v20, v20, v21, v22 bitop3:0x80\nv_cmp_eq_u32 vcc, 0, v20\ns_cbranch_vccnz L_ow\nL_or:")
    stamp('c', 9)
    mm_wo(False)
    a("L_mmd:")
    with outofline():
        a("L_ow:")
        lds_spin(F_O, 0, oreads, 'all4', 20)
        a("s_branch L_or\nL_noffn:")
        lds_spin(F_O, 0, oreads, 'all4', 20)
        stamp('c', 9)
        mm_wo(True)
        a("s_branch L_mmd\nL_hw:")
        lds_spin(F_O, 0, oreads, 'all4', 20)
        stamp('c', 9)
        mm_wo(True)
        a(f"s_mov_b32 s40, {SPIN}\nL_hw2:")
        for r in ex: a(r)
        a(f"s_sub_u32 s40, s40, 1\ns_cbranch_scc1 L_end\ns_waitcnt lgkmcnt(0)\nv_cmp_gt_u32 vcc, {last}, v28\nv_cmp_eq_u32 s[62:63], 0, v29\ns_or_b64 vcc, vcc, s[62:63]\ns_cbranch_vccnz L_hw2")
        mm_wd(False)
        a("s_branch L_mmd")
    if near:
        a("v_readfirstlane_b32 s43, v31\ns_cmp_eq_u32 s43, 0\ns_cbranch_scc1 L_dw\nL_dr:")
        with outofline():
            a("L_dw:")
            a(f"s_mov_b32 s40, {SPIN}\nL_dw1:\nds_read_b32 v31, v18 offset:{F_D}\ns_sub_u32 s40, s40, 1\ns_cbranch_scc1 L_end\ns_waitcnt lgkmcnt(0)")
            a("v_readfirstlane_b32 s43, v31\ns_cmp_eq_u32 s43, 0\ns_cbranch_scc1 L_dw1\ns_branch L_dr")
    stamp('c', 10)
    if h3pk: a(f"s_mov_b64 exec, 0xffff\nv_add_u32 v96, 0x80, v96\nv_bfi_b32 v96, v125, v122, v96\nbuffer_store_dword v96, v121, {WS}, s43 offen {h3st}")
    else:
        a("v_mov_b32 v100, v96\nv_mov_b32_dpp v102, v96 quad_perm:[1,1,3,3] row_mask:0xf bank_mask:0xf")
        a(f"s_mov_b64 exec, 0x5555\nbuffer_store_dwordx4 v[100:103], v121, {WS}, s43 offen {h3st}")
    if dual: a(f"buffer_store_dwordx4 v[100:103], v121, {WS}, s53 offen {h3st}")
    a("s_mov_b64 exec, -1")
    stamp('c', 11)
    if wbl == 'h3': a("s_or_b32 s39, s5, s34\ns_cbranch_scc1 L_nwb\nbuffer_wbl2 sc1\nL_nwb:")
    if consffn: a("s_cmp_ge_u32 s33, 28\ns_cbranch_scc0 L_cdone\ns_sub_u32 s38, s33, 28\ns_lshl_b32 s38, s38, 3\ns_add_u32 s38, s38, s6")
    else: a("s_cmp_lt_u32 s2, 32\ns_cbranch_scc0 L_cdone\ns_mov_b32 s38, s2")
    if not h3all: a("s_cmp_eq_u32 s34, 0\ns_cbranch_scc0 L_cdone")
    if near: a(f"ds_read_b32 v31, v1 offset:{F_IE}")
    a("s_mov_b32 s37, s38")
    inbox(35, 37)
    a("v_lshl_add_u32 v24, v0, 4, s35")
    if dual:
        lds_spin(F_IE, 1, [], 'ge', 20)
        a("v_lshrrev_b32 v20, 1, v20\nv_lshl_add_u32 v24, v20, 13, v24")
        if stamps: a("v_readfirstlane_b32 s84, v20")
    if h3pk:
        a("v_and_b32 v25, 3, v0\nv_bfe_u32 v26, v0, 4, 1\nv_lshl_add_u32 v25, v25, 1, v26\nv_lshrrev_b32 v26, 5, v0\nv_lshl_add_u32 v25, v25, 1, v26\ns_lshl_b32 s35, s38, 5\nv_lshl_add_u32 v25, v25, 1, s35")
    else: a("v_and_b32 v25, 7, v0\ns_lshl_b32 s35, s38, 5\nv_lshl_add_u32 v25, v25, 2, s35")
    srd(44, 8, 1024)
    a(f"buffer_load_{'ushort' if h3pk else 'dword'} v26, v25, s[44:47], 0 offen")
    srd(52, 26, 1024)
    if near: a("s_waitcnt lgkmcnt(0)\nv_readfirstlane_b32 s43, v31")
    L = a.label("h3"); LD = a.label("h3d")
    nh3 = 2 if h3pk else 4
    def h3issue(k):
        for i in range(nh3): a(f"buffer_load_dwordx4 v[{32 + 16 * k + 4 * i}:{35 + 16 * k + 4 * i}], v24, {WS}, s43 offen offset:{1024 * i} {h3pol}")
    a(f"s_mov_b32 s40, {SPIN}")
    if h3mask:
        h3depth = 0
        a(f"{L}:")
        h3issue(0)
        a("s_sub_u32 s40, s40, 1\ns_cbranch_scc1 L_end")
        for i in range(4):
            a(f"s_waitcnt vmcnt({3 - i})")
            chk(20, 33 + 4 * i, 32, first=(i == 0)); chk(20, 35 + 4 * i, 32)
        a(f"v_cmp_ne_u32 vcc, 0, v20\ns_and_b64 exec, vcc, vcc\ns_cbranch_scc1 {L}\ns_mov_b64 exec, -1")
        a(f"v_add_f32 v22, v32, v36\nv_add_f32 v23, v34, v38\nv_add_f32 v30, v40, v44\nv_add_f32 v31, v42, v46\ns_branch {LD}")
        L = a.label("h3x")
    for k in range(h3depth - (0 if h3cf else 1)):
        h3issue(k)
        if h3gap and k < h3depth - 1: a(f"s_sleep {h3gap}")
    a(f"{L}:")
    for k in range(h3depth):
        if not h3cf: h3issue((k + h3depth - 1) % h3depth)
        a(f"s_waitcnt vmcnt({nh3 * (h3depth - 1)})")
        b = 32 + 16 * k
        if h3pk:
            strip(20, list(range(b, b + 8)), first=True)
            a(f"v_pk_add_f32 v[28:29], v[{b}:{b + 1}], v[{b + 4}:{b + 5}]\nv_and_b32 v20, 0xff, v20\nv_pk_add_f32 v[30:31], v[{b + 2}:{b + 3}], v[{b + 6}:{b + 7}]\nv_cmp_ne_u32 vcc, 0, v20\ns_cbranch_vccz {LD}")
            if h3cf: h3issue(k)
            continue
        for r in range(b + 1, b + 16, 2): chk(20, r, 32, first=(r == b + 1))
        a(f"v_add_f32 v22, v{b}, v{b + 4}\nv_add_f32 v23, v{b + 2}, v{b + 6}\nv_cmp_ne_u32 vcc, 0, v20")
        a(f"v_add_f32 v30, v{b + 8}, v{b + 12}\nv_add_f32 v31, v{b + 10}, v{b + 14}\ns_cbranch_vccz {LD}")
        if h3cf: h3issue(k)
    a(f"s_sub_u32 s40, s40, 1\ns_cbranch_scc0 {L}\ns_branch L_end\n{LD}:")
    stamp('c', 12)
    if h3pk: a("""v_permlane32_swap_b32 v28, v29
    v_permlane32_swap_b32 v30, v31
    v_lshlrev_b32 v27, 16, v26
    v_add_f32 v28, v28, v29
    v_add_f32 v30, v30, v31
    v_permlane16_swap_b32 v28, v30
    v_add_f32 v28, v28, v30
    v_add_f32_dpp v28, v28, v28 row_ror:4 row_mask:0xf bank_mask:0xf
    s_mov_b32 s36, 0x000f000f
    v_add_f32_dpp v28, v28, v28 row_ror:8 row_mask:0xf bank_mask:0xf
    s_mov_b32 exec_lo, s36
    s_mov_b32 exec_hi, s36
    v_add_f32 v28, v28, v27
    v_cvt_pk_bf16_f32 v28, v28, v28
    buffer_store_short v28, v25, s[52:55], 0 offen """ + outpol)
    else: a("""v_add_f32 v22, v22, v30
    v_add_f32 v23, v23, v31
    v_lshlrev_b32 v27, 16, v26
    v_and_b32 v28, 0xffff0000, v26
    v_permlane32_swap_b32 v22, v23
    v_add_f32 v22, v22, v23
    v_mov_b32 v23, v22
    v_permlane16_swap_b32 v22, v23
    v_add_f32 v22, v22, v23
    v_add_f32_dpp v22, v22, v22 row_ror:8 row_mask:0xf bank_mask:0xf
    v_mov_b32 v23, v22
    v_permlane32_swap_b32 v22, v23
    v_add_f32 v22, v22, v27
    v_add_f32 v23, v23, v28
    v_cvt_pk_bf16_f32 v22, v22, v23
    s_mov_b64 exec, 0xff
    buffer_store_dword v22, v25, s[52:55], 0 offen """ + outpol)
    a(f"s_cmp_eq_u32 s38, 0\ns_cbranch_scc0 L_cdone\ns_mov_b64 exec, 1\nv_mov_b32 v25, s32\nbuffer_store_dword v25, off, {WS}, 0")
    if pcdbg:
        srd(44, 28, 256)
        a("s_getpc_b64 s[36:37]\nL_pc2:\ns_sub_u32 s36, s36, L_pc2-" + NAME + "_kernel\nv_mov_b32 v25, s36\nbuffer_store_dword v25, off, s[44:47], 0 offset:4")
        if pcdbg == 2:
            a("s_load_dwordx16 s[8:23], s[0:1], 0\ns_waitcnt lgkmcnt(0)")
            for k_, r_ in enumerate((30, 31, 26, 28, 8, 10, 12, 14, 16, 20, 22, 24, 0)): a(f"v_mov_b32 v25, s{r_}\nbuffer_store_dword v25, off, s[44:47], 0 offset:{8 + 4 * k_}")
    a("L_cdone:")
    stamp('c', 13)
    if stamps and near: a(f"s_mov_b64 exec, -1\nds_read_b32 v30, v1 offset:{F_N}\ns_waitcnt lgkmcnt(0)\nv_readfirstlane_b32 s84, v30")
    dump('c')
    a("s_endpgm")
    a.lines += cold
    a("L_end:\ns_endpgm")
    if touch: a("L_t2:\ns_branch L_comp")

    L = a.lines
    ia = L.index("L_aux:"); ic = L.index("L_comp:"); il = L.index("L_loader:")
    ib = next(i for i in range(il, ia) if L[i].strip() == ("L_split:" if xfast else "s_barrier"))
    assert oth_lines[-1].strip() == "s_branch L_comp"
    k = oth_lines.index("L_cw:")
    oth = oth_lines[:oth_lines.index("  s_cbranch_scc0 L_cw")] + ["  s_cbranch_scc1 L_aw"] + oth_lines[k + 1:] + ["L_aw:"] + oth_lines[oth_lines.index("  s_cbranch_scc0 L_cw") + 1:k - 1]
    a.lines = L[:ib + 1] + ["  s_branch L_ld2"] + oth + L[ia:ic] + ["L_ld2:"] + L[ib + 1:ia] + L[ic:]
    head = open(f"cdna_kernels/{NAME}.s.ref").read().split("; Override")[0]
    out = head + f"; Generated by gen/gen.py (hand-designed kernel; see that script for the layout notes)\n; @launch grid=(256,1,1) block=(384,1,1) lds={L_END}\n"
    out += f'.amdgcn_target "amdgcn-amd-amdhsa--gfx950"\n.text\n'
    if align: out += ".p2align 12\n.fill 0x340, 4, 0xbf800000\n"
    out += f'.globl {NAME}_kernel\n.p2align 8\n.type {NAME}_kernel,@function\n'
    out += a.text()
    out += f""".section .rodata,"a"
.p2align 6
.amdhsa_kernel {NAME}_kernel
  .amdhsa_next_free_vgpr 184
  .amdhsa_next_free_sgpr 102
  .amdhsa_accum_offset 184
  .amdhsa_group_segment_fixed_size 0
  .amdhsa_kernarg_size 96
  .amdhsa_user_sgpr_count 2
  .amdhsa_user_sgpr_kernarg_segment_ptr 1
  .amdhsa_system_sgpr_workgroup_id_x 1
  .amdhsa_float_denorm_mode_32 3
.end_amdhsa_kernel
"""
    return out

if __name__ == "__main__":
    kw = eval("dict(" + (sys.argv[2] if len(sys.argv) > 2 else "") + ")")
    open(sys.argv[1], "w").write(gen(**kw))
```

```python
import sys
from asmlib import Asm

NAME = "parallel_sum__sliding_block_cached__swiglu_ffn__decode"

L_K, L_V, L_GU, L_WO, L_WD = 0, 32768, 65536, 81920, 98304
L_WQ = 106496
L_X  = L_WQ + 16384
L_XX = L_X + 1024
L_Q  = L_XX + 2048
L_P  = L_Q + 1280
L_ML = L_P + 1024
L_O  = L_ML + 128
L_H  = L_O + 256
L_B  = L_H + 128
L_F  = L_B + 256
L_END = L_F + 96
F_LD, F_H, F_A, F_IE, F_Q, F_P, F_O, F_D, F_N = 0, 4, 8, 12, 16, 32, 48, 64, 80

W_EP  = 0
W_VOT = 0x800
W_DEC = 0xc00
W_H1  = 0x1000
W_H1B = W_H1 + 256 * 256
W_HB  = W_H1B + 256 * 256
W_ML  = W_HB + 256 * 512
W_H3  = 0x48000
W_H2  = W_H3 + 64 * 4096
assert W_ML + 32 * 512 <= W_H3 and W_H3 % 16384 == 0
W_PR  = W_H2 + 1024 * 512
W_END = W_PR + 0x40000
W_ST  = 0x400000

LOG2E = 0x3fb8aa3b
SCALE = 0x3db504f3
SPIN = 1 << 16
EPOCH_STEP = 0x9e3779b9

def gen(TH=18, stamps=False, order=("Q", "K", "V", "GU", "WO", "WD"), warm=64, warmpol="sc1 nt", NA=8, h3depth=4,
        forceslow=False, h1trig=26, probe=None, abl=(), rot=True, h3gap=2, TH2=None, mimic=True, pfpol='', h1own=False, h3warm='sc1', pre=True, spec=True, sleep=0, prio=3, h2sleep=0, hbsleep=0, boost=24, gate='T', first=True, hbfirst=False, fine=False, local=True, pollpol='sc1', h1wt=False, lazy=4, ntail=8, wt=(), warmat='V', consffn=True, THK=None, THG=None, h3mask=False, lateb=False, both=False, auxfirst=False, align=False, touch=False, hold='Q0', spf=False, pk=True, h1warm=None, dip=None, dip2=None, kearly=True, look2=False, nap0=0, nap1=0, hbwarm=None, refine=False, h3pol='sc1', h3st='sc1', h3all=False, qloop=4, gx=4, light='hi', xboost=0x55, look1=False, pks=True, xfast=True, warmst=False, gnap=0, dual=False, dnap=2, dforce=None, probe_diag=0, h3x=0, near=True, gap=0, prpol='nt', evdbg=False, vat=None, vpol='sc1', dat='V', dpol='sc1', vst='sc1', vset=1, vsh=2, wbl=None, stpol='', prew=(), warmx=None, bseg=('Q', 'K', 'V', 'GU', 'WO', 'WD'), xb2=0x55, adapt=None, poll1=None, h3cf=True, outpol='', outwarm=None, joint=False, early=True, anap=0, pcdbg=False, evpad=None, ldpol='nt', perm=None, rmul=1, woord=None, wdord=None, pace=None, h1w=True, bdem=True, h3pk=True, two=False, npf=2, m0k=False, h3at='end', remap=0, p1=(), xpol='', sweep=(4, 8), dly=None, mlfirst=True, warm0=None, ncw=4):
    if not local: warm = 0
    a = Asm()
    WS = "s[48:51]"
    WSZ = W_ST + 256 * 512 if stamps else W_END
    diag = bool(stamps or probe)

    def stamp(role, idx, f=False):
        if dly and dly[:2] == (role, idx) and not f: a(f"s_sleep {dly[2]}")
        if fine and role == 'c' and 1 <= idx <= 6 and not f: return
        if f and not fine: return
        if probe and (idx == 0 or probe == (role, idx)):
            a(f"s_memrealtime s[{96 if idx == 0 else 98}:{97 if idx == 0 else 99}]")
            if idx == 0: a("s_waitcnt lgkmcnt(0)\ns_mov_b32 s98, s96")
        if stamps and (stamps is True or idx in (0, 13) or (stamps == 'l' and (role, idx) in (('l', 1), ('l', 7), ('l', 2), ('l', 3), ('l', 9), ('c', 11)))):
            a(f"s_memtime s[{64 + 2 * idx}:{65 + 2 * idx}]")
            if idx == 0: a("s_memrealtime s[94:95]")
            if (role, idx) in (('l', 9), ('c', 13), ('a', 9)): a("s_memrealtime s[92:93]")
    def dump(role):
        if probe and probe[0] == role:
            L = a.label("pad")
            a("s_waitcnt lgkmcnt(0)\ns_sub_u32 s98, s98, s96\ns_mul_i32 s98, s98, 3\ns_add_u32 s96, s96, s98\ns_add_u32 s96, s96, 1500")
            a(f"{L}:\ns_sleep 4\ns_memrealtime s[98:99]\ns_waitcnt lgkmcnt(0)\ns_sub_u32 s35, s98, s96\ns_cmp_lt_i32 s35, 0\ns_cbranch_scc1 {L}")
        if not stamps or (stamps == 'min' and role != 'c') or (stamps == 'l' and role == 'a'): return
        a("s_waitcnt lgkmcnt(0)")
        a(f"s_lshl_b32 s60, s2, 9\ns_lshl_b32 s61, s3, 6\ns_add_u32 s60, s60, s61\ns_add_u32 s60, s60, {W_ST}")
        a("s_mov_b64 exec, 1\nv_mov_b32 v126, s60")
        for i in range(16):
            a(f"v_mov_b32 v127, s{64 + 2 * i}\nbuffer_store_dword v127, v126, {WS}, 0 offen offset:{4 * i}")
    cold = []
    class outofline:
        def __enter__(self): self.keep = a.lines; a.lines = []
        def __exit__(self, *x): cold.extend(a.lines); a.lines = self.keep
    def srd(d, p, size):
        a(f"s_mov_b32 s{d}, s{p}\ns_and_b32 s{d + 1}, s{p + 1}, 0xffff\ns_mov_b32 s{d + 2}, {size}\ns_mov_b32 s{d + 3}, 0x20000")
    events = ["X"]
    for nm in order:
        if nm == "K" and h1trig < 32: events.append("Kpart")
        if nm in ("V", "GU", "Q"): events += [nm + "0", nm + "1", nm + "2"]
        events.append(nm)
    events.insert(len(events) - 1 if ntail <= 8 else len(events) - 2, "T")
    def seg_flag(name):
        return events.index(name) + 1
    def lgk(n):
        a(f"s_waitcnt lgkmcnt({0 if diag else n})")
    def st2(ops, name=None):
        if not local or name in wt:
            for o in ops: a(o + " sc1" if o.startswith("buffer_store") else o)
            return
        L1 = a.label("slow"); L2 = a.label("st")
        a(f"s_cmp_eq_u32 s41, 0\ns_cbranch_scc1 {L1}")
        for o in ops: a(o + " " + stpol if o.startswith("buffer_store") else o)
        a(f"{L2}:")
        with outofline():
            a(f"{L1}:\ns_nop 1")
            for o in ops: a(o + " sc1" if o.startswith("buffer_store") else o)
            a(f"s_nop 1\ns_branch {L2}")
    def lds_spin(flag_off, want, reads, kind, tmp, nap=0):
        if not spec and len(reads) > 4 and kind == 'ge':
            lds_spin(flag_off, want, [], kind, tmp)
            for r in reads: a(r)
            a("s_waitcnt lgkmcnt(0)")
            return
        L = a.label("spin")
        a(f"s_mov_b32 s40, {SPIN}\n{L}:")
        if sleep and kind == 'ge': a(f"s_sleep {sleep}")
        elif nap: a(f"s_sleep {nap}")
        a(f"ds_read_b32 v{tmp}, v1 offset:{flag_off}" if kind == 'ge' else f"ds_read_b128 v[{tmp}:{tmp + 3}], v1 offset:{flag_off}")
        for r in reads: a(r)
        a("s_sub_u32 s40, s40, 1\ns_cbranch_scc1 L_end")
        a("s_waitcnt lgkmcnt(0)")
        if kind == 'ge':
            a(f"v_cmp_gt_u32 vcc, {want}, v{tmp}")
        else:
            a(f"v_and_b32 v{tmp + 2}, v{tmp + 2}, v{tmp + 3}\nv_bitop3_b32 v{tmp}, v{tmp}, v{tmp + 1}, v{tmp + 2} bitop3:0x80")
            a(f"v_cmp_eq_u32 vcc, 0, v{tmp}")
        a(f"s_cbranch_vccnz {L}")
    def wait_gate(tmp):
        if gate == 'IE': lds_spin(F_IE, 1, [], 'ge', tmp)
        elif gate == 'S': lds_spin(F_LD, "s38", [], 'ge', tmp)
        elif gate == 'T': lds_spin(F_LD, "s36", [], 'ge', tmp, nap=gnap)
        elif gate: lds_spin(F_LD, seg_flag(gate), [], 'ge', tmp)
        a(f"s_mov_b32 s40, {SPIN}")
    def inbox(d, cc):
        m, sh = (3, 11) if h3pk else (1, 12)
        a(f"s_and_b32 s{d}, s{cc}, {m}\ns_andn2_b32 s{cc}, s{cc}, {m}\ns_lshl1_add_u32 s{d}, s{cc}, s{d}\ns_lshl_b32 s{d}, s{d}, {sh}\ns_add_u32 s{d}, s{d}, {W_H3 + h3x - (0x2000 if near else 0)}")
    def cc0(d):
        if ncw == 1: a(f"s_sub_u32 s{d}, s33, 28\ns_lshl3_add_u32 s{d}, s{d}, s6")
        else: a(f"s_sub_u32 s{d}, s33, 28\ns_mul_i32 s{d}, s{d}, {ncw}\ns_lshl2_add_u32 s{d}, s6, s{d}")
    NCONS = 28 + 4 // ncw
    def pick(r, t):
        a(f"s_bfe_u32 s{t}, s{r}, 0x80008\ns_and_b32 s{r}, s{r}, 0xff\ns_cmp_gt_u32 s{t}, s{r}\ns_cselect_b32 s{r}, 0x2000, 0")
    def tagbytes(dst, src):
        a(f"s_and_b32 s{dst}, s{src}, 0xff\ns_bfe_u32 s{dst + 1}, s{src}, 0x80008\ns_bfe_u32 s{dst + 2}, s{src}, 0x80010\ns_lshr_b32 s{dst + 3}, s{src}, 24")
    def chk(acc, r, t, first=False):
        a(f"v_xor_b32 v{acc}, s{t}, v{r}" if first else f"v_bitop3_b32 v{acc}, v{acc}, v{r}, s{t} bitop3:0xf6")
    def strip(acc, regs, first=False):
        for k, r in enumerate(regs): a(f"v_xor_b32 v{r}, s{56 + (k & 3)}, v{r}")
        for k in range(0, len(regs), 2):
            a(f"v_or_b32 v{acc}, v{regs[k]}, v{regs[k + 1]}" if first and k == 0 else f"v_or3_b32 v{acc}, v{acc}, v{regs[k]}, v{regs[k + 1]}")
    def tags():
        if not local:
            a(f"s_add_u32 s32, s32, {EPOCH_STEP:#x}\ns_mov_b32 s42, s32")
            return
        a(f"s_add_u32 s32, s32, {EPOCH_STEP:#x}\ns_getreg_b32 s42, hwreg(HW_REG_XCC_ID, 0, 4)\ns_add_u32 s42, s42, 1\ns_mul_i32 s42, s42, 0x01010101\ns_xor_b32 s42, s42, s32")

    def warm_addr():
        a(f"s_lshl_b32 s36, s4, 7\ns_add_u32 s36, s36, s5\ns_lshl_b32 s37, s36, 9\ns_add_u32 s37, s37, {W_H2}")
        a("v_lshrrev_b32 v16, 3, v0\nv_lshlrev_b32 v16, 14, v16\nv_lshl_add_u32 v16, v7, 6, v16\nv_add_u32 v16, s37, v16")
        a(f"s_lshl_b32 s37, s36, 4\ns_add_u32 s37, s37, {W_ML}\nv_and_b32 v17, 3, v0\nv_lshlrev_b32 v17, 9, v17\nv_add_u32 v17, s37, v17")
        a(f"s_lshl_b32 s36, s4, 2\ns_add_u32 s36, s36, s7\ns_lshl_b32 s36, s36, 3\ns_add_u32 s36, s36, s6\ns_lshl_b32 s36, s36, 9\ns_add_u32 s36, s36, {W_HB}")
        a("v_lshl_add_u32 v18, v7, 6, s36\nv_cmp_gt_u32 s[56:57], 40, v0\nv_cndmask_b32 v17, v17, v18, s[56:57]\nv_cmp_gt_u32 s[56:57], 32, v0\nv_cndmask_b32 v16, v17, v16, s[56:57]")
    ids = """s_and_b32 s6, s5, 7
    s_lshr_b32 s7, s5, 3"""
    if light == 'hi': pg = "s_mov_b32 s59, s4"
    else: pg = "s_lshr_b32 s59, s4, 1\ns_bitcmp" + ("0" if light == 'even' else "1") + "_b32 s4, 0\ns_cselect_b32 s33, 4, 0\ns_add_u32 s59, s59, s33"
    ids2 = pg + f"""
    s_lshl3_add_u32 s33, s7, s59
    v_mov_b32 v1, {L_F}"""
    a(f"{NAME}_kernel:")
    stamp('all', 0)
    a("s_cmp_ge_u32 s2, 256\ns_cbranch_scc1 L_end")
    if remap == 1: a("s_and_b32 s4, s2, 7\ns_lshl_b32 s4, s4, 5\ns_lshr_b32 s2, s2, 3\ns_or_b32 s2, s2, s4")
    if remap == 2: a("s_cmp_lt_u32 s2, 2\ns_cselect_b32 s4, 1, 0\ns_xor_b32 s2, s2, s4")
    a("""    s_load_dwordx16 s[8:23], s[0:1], 0
    s_load_dwordx8 s[24:31], s[0:1], 64
    v_readfirstlane_b32 s3, v0
    s_and_b32 s4, s2, 7
    s_lshr_b32 s5, s2, 3""")
    if gx: a(f"s_xor_b32 s4, s4, {gx}")
    a(ids)
    a("s_cmp_ge_u32 s3, 64\ns_cbranch_scc1 L_oth")
    a("L_loader:")
    if adapt: a("s_memtime s[60:61]")
    a(f"s_getpc_b64 s[36:37]\nL_pc:\nv_lshlrev_b32 v3, 7, v0\nglobal_load_dword v30, v3, s[36:37] {pfpol}")
    for _ in range(npf - 1): a(f"v_add_u32 v3, 0x2000, v3\nv_min_u32 v3, L_end-L_pc, v3\nglobal_load_dword v30, v3, s[36:37] {pfpol}")
    a("""v_lshlrev_b32 v2, 4, v0
    v_lshrrev_b32 v6, 3, v0
    v_and_b32 v7, 7, v0
    v_lshlrev_b32 v15, 17, v6
    v_lshl_add_u32 v15, v7, 4, v15
    s_lshl_b32 s35, s7, 13
    s_lshl3_add_u32 s35, s4, s35
    s_add_u32 s35, s35, s6
    s_lshl_b32 s39, s35, 7
    s_mov_b32 s46, 4194304
    s_mov_b32 s47, 0x20000""")
    a(f"s_movk_i32 s54, 0x400\ns_mov_b32 s55, s47\ns_mov_b32 m0, {L_X}\ns_setprio {prio}")
    if qloop: a(f"s_add_u32 s38, s39, 0x20000")
    a(f"""s_waitcnt lgkmcnt(0)
    s_mov_b32 s52, s8
    s_and_b32 s53, s9, 0xffff
    buffer_load_dwordx4 v2, s[52:55], 0 offen {xpol} lds
    s_mov_b32 m0, {L_WQ}
    s_mov_b32 s44, s14
    s_and_b32 s45, s15, 0xffff""")
    stamp('l', 1)
    if qloop: a("L_ql:")
    for i in range(qloop or 16):
        a(f"buffer_load_dwordx4 v15, s[44:47], s39 offen {ldpol} lds\ns_addk_i32 m0, 0x400\ns_addk_i32 s39, 0x2000")
    if qloop: a("s_cmp_lt_u32 s39, s38\ns_cbranch_scc1 L_ql")
    a(ids2)
    if diag: a("s_mov_b32 s3, 1")
    if boost:
        a("s_cmp_eq_u32 s6, 3\ns_cselect_b64 vcc, -1, 0")
        if xboost is not None: a(f"s_and_b32 s35, s2, 7\ns_bitcmp1_b32 {xboost}, s35\ns_cselect_b64 vcc, -1, vcc")
    if adapt: a("s_mov_b64 s[100:101], vcc")
    main_lines = a.lines; a.lines = []
    a("L_oth:\ns_lshr_b32 s3, s3, 6\nv_and_b32 v0, 63, v0")
    a(ids2)
    a("s_cmp_eq_u32 s3, 1\ns_cbranch_scc0 L_cw")
    if diag: a("s_mov_b32 s3, 0")
    a("v_lshlrev_b32 v2, 4, v0\ns_waitcnt lgkmcnt(0)\ns_load_dword s32, s[30:31], 0\ns_barrier\ns_branch L_aux")
    a("L_cw:\nv_mov_b32 v4, 0\nv_lshl_add_u32 v5, v0, 2, v1\ns_mov_b64 exec, 0xfffff\nds_write_b32 v5, v4\ns_mov_b64 exec, -1")
    a("s_waitcnt lgkmcnt(0)")
    if near:
        if vset < 4: a(f"s_cmp_lt_u32 s7, {vset}\ns_cselect_b32 s35, s3, 0\ns_cmp_eq_u32 s35, 5\ns_cbranch_scc0 L_nprb")
        else: a("s_cmp_eq_u32 s3, 5\ns_cbranch_scc0 L_nprb")
        a("s_load_dword s32, s[30:31], 0\ns_and_b32 s35, s6, 1\ns_andn2_b32 s36, s2, 63\ns_add_u32 s36, s36, s2\ns_lshl_b32 s36, s36, 7")
        srd(48, 30, WSZ)
        a(f"s_lshl_b32 s37, s35, 13\ns_add_u32 s36, s36, s37\ns_add_u32 s36, s36, {W_PR}\ns_xor_b32 s37, s36, 0x2000\ns_mov_b64 exec, 1")
        if 'nopr' in abl: a("s_cmp_ge_u32 s33, 28\ns_cbranch_scc0 L_npr2")
        a(f"buffer_load_dword v176, off, {WS}, s36 {prpol}\nbuffer_load_dword v177, off, {WS}, s37 {prpol}")
        if 'nopr' in abl: a("L_npr2:")
        a("s_getreg_b32 s37, hwreg(HW_REG_XCC_ID, 2, 1)\ns_xnor_b32 s35, s35, s37\ns_and_b32 s35, s35, 1")
        a(f"s_lshl3_add_u32 s38, s33, s6\ns_lshl_b32 s38, s38, {vsh}\ns_barrier\ns_waitcnt vmcnt(1)")
        if gap: a(f"s_sleep {gap}")
        a("s_getreg_b32 s36, hwreg(HW_REG_IB_STS, 0, 4)")
        if dforce is not None: a(f"s_mov_b32 s36, 1\ns_mov_b32 s35, {dforce}")
        a(f"s_lshl_b32 s36, s36, s35\ns_waitcnt lgkmcnt(0)\ns_add_u32 s32, s32, {EPOCH_STEP:#x}\ns_xor_b32 s36, s36, s32\nv_mov_b32 v22, s36")
        if 'nost' in abl: a("s_cmp_ge_u32 s33, 28\ns_cbranch_scc0 L_nst2")
        a(f"buffer_store_dword v22, off, {WS}, s38 offset:{W_VOT} {vst}")
        if 'nost' in abl: a("L_nst2:")
        a("s_mov_b64 exec, -1\ns_branch L_prd\nL_nprb:")
    if warm0 is not None:
        a("s_cmp_eq_u32 s3, 4\ns_cbranch_scc0 L_nw0\nv_and_b32 v7, 7, v0")
        srd(48, 30, WSZ)
        warm_addr()
        a(f"s_lshl_b32 s35, s4, 5\ns_lshl2_add_u32 s35, s6, s35\ns_add_u32 s35, s35, s7\ns_lshl_b32 s35, s35, 8\ns_add_u32 s35, s35, {W_H1}\nv_and_b32 v17, 3, v0\nv_lshl_add_u32 v17, v17, 6, s35")
        a(f"v_cmp_gt_u32 vcc, 44, v0\nv_cndmask_b32 v16, v17, v16, vcc\ns_mov_b32 exec_hi, 0xffff\nbuffer_load_dword v178, v16, {WS}, 0 offen {warm0}\ns_mov_b32 exec_hi, -1\nL_nw0:")
    a("s_barrier\nL_prd:")
    if nap0: a(f"s_sleep {nap0}")
    elif hold: lds_spin(F_LD, seg_flag(hold), [], 'ge', 20, nap=4)
    a("s_branch L_comp")
    oth_lines = a.lines; a.lines = main_lines
    TOPS = (8, 9, 14, 15, 18, 19, 28, 29)
    def k_setup_perm():
        pos = {n: 8 + b for b, n in enumerate(perm)}
        a("""v_and_b32 v2, 15, v0
        v_lshrrev_b32 v3, 4, v0
        v_xor_b32 v4, v2, v3
        v_lshlrev_b32 v4, 4, v4""")
        a(f"v_and_b32 v5, 1, v3\nv_lshlrev_b32 v5, {pos['k0']}, v5\nv_lshrrev_b32 v8, 1, v3\nv_lshl_add_u32 v5, v8, {pos['k1']}, v5")
        lo = lambda i: ((i & 1) << pos['i0']) | (((i >> 1) & 1) << pos['i1'])
        for q in range(4): a(f"v_xor_b32 v{8 + q}, {64 * q}, v4\nv_add_u32 v{8 + q}, v{8 + q}, v5")
        for i in range(8): a(f"v_add_u32 v{32 + i}, {lo(i)}, v{8 + ((i >> 1) & 3)}")
        a("s_lshl_b32 s35, s4, 24\ns_add_u32 s35, s35, 15728640")
        a("""s_add_u32 s44, s10, s35
        s_addc_u32 s45, s11, 0
        s_and_b32 s45, s45, 0xffff
        s_mov_b32 s46, 1048576
        s_add_u32 s12, s12, s35
        s_addc_u32 s13, s13, 0
        s_mov_b32 s40, 0""")
        for grp, r in ((('c0', 'c1', 'c2'), 6), (('r0', 'r1'), 7)):
            if all(pos[n] == pos[grp[0]] + b for b, n in enumerate(grp)): a(f"s_lshl_b32 s35, s{r}, {pos[grp[0]]}\ns_or_b32 s40, s40, s35")
            else:
                for b, n in enumerate(grp): a(f"s_bfe_u32 s35, s{r}, {0x10000 + b}\ns_lshl_b32 s35, s35, {pos[n]}\ns_or_b32 s40, s40, s35")
        a(f"s_mul_i32 s60, s4, {rmul}")
        a(top(0))
    def top(t):
        pos = {n: 8 + b for b, n in enumerate(perm)}
        d = TOPS[t]
        if pos['i3'] == pos['i2'] + 1 and pos['i4'] == pos['i2'] + 2:
            return f"s_and_b32 s61, s60, 7\ns_lshl_b32 s61, s61, {pos['i2']}\ns_or_b32 s{d}, s40, s61\ns_add_u32 s60, s60, 1"
        return "\n".join(f"s_bfe_u32 s61, s60, {0x10000 + b}\ns_lshl_b32 s61, s61, {pos[n]}\ns_or_b32 s{d}, s{40 if b == 0 else d}, s61" for n, b in (('i2', 0), ('i3', 1), ('i4', 2))) + "\ns_add_u32 s60, s60, 1"
    def k_setup():
        if perm: return k_setup_perm()
        a("""v_and_b32 v2, 15, v0
        v_lshrrev_b32 v3, 4, v0
        v_xor_b32 v4, v2, v3
        v_lshlrev_b32 v4, 4, v4
        v_lshlrev_b32 v5, 8, v3""")
        for i in range(4): a(f"v_xor_b32 v{8 + i}, {64 * i}, v4\nv_add_u32 v{8 + i}, v{8 + i}, v5")
        if sweep:
            a(f"s_lshl_b32 s35, s4, 24\ns_add_u32 s35, s35, 15728640\ns_mul_i32 s60, s4, {sweep[0]}\ns_add_u32 s60, s60, s5\ns_and_b32 s60, s60, 31\ns_lshl_b32 s60, s60, 10\ns_mov_b32 s40, s60\ns_mov_b32 s61, s60")
            a("s_add_u32 s44, s10, s35\ns_addc_u32 s45, s11, 0\ns_and_b32 s45, s45, 0xffff\ns_mov_b32 s46, 1048576\ns_add_u32 s12, s12, s35\ns_addc_u32 s13, s13, 0")
            return
        a("""s_lshl_b32 s35, s4, 24
        s_lshl_b32 s36, s5, 15
        s_add_u32 s35, s35, s36
        s_add_u32 s35, s35, 15728640""")
        if isinstance(rot, tuple): a(f"s_mul_i32 s40, s4, {rot[0]}\ns_mul_i32 s36, s6, {rot[1]}\ns_add_u32 s40, s40, s36\ns_mul_i32 s36, s7, {rot[2]}\ns_add_u32 s40, s40, s36\ns_and_b32 s40, s40, 7\ns_lshl_b32 s40, s40, 12")
        else: a({True: "s_lshl_b32 s40, s4, 12", False: "s_mov_b32 s40, 0", 'gc': "s_add_u32 s40, s4, s6\ns_and_b32 s40, s40, 7\ns_lshl_b32 s40, s40, 12",
           'gr': "s_lshl1_add_u32 s40, s7, s4\ns_and_b32 s40, s40, 7\ns_lshl_b32 s40, s40, 12", 'c': "s_lshl_b32 s40, s6, 12",
           'x': "s_xor_b32 s40, s4, s6\ns_lshl_b32 s40, s40, 12", 'g3': "s_mul_i32 s40, s4, 3\ns_and_b32 s40, s40, 7\ns_lshl_b32 s40, s40, 12",
           'g2': "s_lshr_b32 s40, s4, 2\ns_lshl1_add_u32 s40, s4, s40\ns_and_b32 s40, s40, 7\ns_lshl_b32 s40, s40, 12",
           'h': "s_and_b32 s40, s4, 6\ns_lshl_b32 s40, s40, 12"}[rot])
        a("""s_add_u32 s44, s10, s35
        s_addc_u32 s45, s11, 0
        s_and_b32 s45, s45, 0xffff
        s_mov_b32 s46, 32768
        s_add_u32 s12, s12, s35
        s_addc_u32 s13, s13, 0""")
    nwarm = 1 if warm and warm0 is None else 0
    def late_setup():
        a("""v_lshrrev_b32 v4, 2, v2
        v_xor_b32 v4, v4, v3
        v_lshl_add_u32 v12, v4, 6, v5
        v_and_b32 v4, 3, v0
        v_lshl_add_u32 v12, v4, 4, v12
        v_mul_u32_u24 v13, 28672, v6
        v_lshl_add_u32 v13, v7, 4, v13
        v_lshlrev_b32 v4, 1, v3
        v_xor_b32 v4, v4, v7
        v_lshlrev_b32 v4, 4, v4
        v_lshl_add_u32 v14, v6, 10, v4
        s_mul_i32 s41, s6, 229376
        s_lshl_b32 s37, s33, 7
        s_add_u32 s41, s41, s37
        s_lshl_b32 s42, s4, 19
        s_lshl_b32 s38, s7, 17
        s_add_u32 s42, s42, s38
        s_lshl_b32 s38, s6, 7
        s_add_u32 s42, s42, s38
        s_lshl_b32 s43, s33, 16
        s_add_u32 s43, s43, s38""")
        if perm:
            pos = {n: 8 + b for b, n in enumerate(perm)}
            for i in range(4): a(f"v_add_u32 v{40 + i}, {((i & 1) << pos['i0']) | ((i >> 1) << pos['i1'])}, v12")
        srd(48, 30, WSZ)
        if h3warm is not None:
            cc0(37)
            inbox(36, 37)
            a("v_lshl_add_u32 v19, v0, 6, s36")
        if warm and warm0 is None:
            warm_addr()
    def addk(r, d): return f"s_addk_i32 s{r}, {d}" if -32768 <= d < 32768 else f"s_add_u32 s{r}, s{r}, {d & 0xffffffff}"
    def seg_loads(name):
        r = []
        if name in ("K", "V"):
            base = L_K if name == "K" else L_V
            for i in range(32):
                if perm:
                    r.append((f"s_mov_b32 m0, {base + 1024 * i}", f"v{32 + (i & 7) if name == 'K' else 40 + (i & 3)}, s[44:47], s{TOPS[i >> 2]} offen", top((i >> 2) + 1) if name == 'K' and i % 4 == 1 and i < 28 else None))
                    continue
                v = f"v{8 + ((i >> 1) & 3)}" if name == "K" else "v12"
                if sweep:
                    r.append((f"s_mov_b32 m0, {base + 1024 * i}" if i % 4 == 0 else None, f"{v}, s[44:47], s40 offen offset:{1024 * (i & 3)}",
                              "s_addk_i32 s40, 0x7c00" if i % 4 < 3 else "s_mov_b32 s60, s61\ns_mov_b32 s40, s61" if i == 31 else
                              f"s_addk_i32 s60, {sweep[1] * 1024}\ns_and_b32 s60, s60, 0x7fff\ns_add_u32 s40, s60, {((i >> 2) + 1) * 131072}"))
                    continue
                r.append((f"s_mov_b32 m0, {base + 1024 * i}" if i % 4 == 0 else None, f"{v}, s[44:47], s40 offen offset:{1024 * (i & 3)}",
                          "s_addk_i32 s40, 0x1000\ns_and_b32 s40, s40, 0x7fff" if i % 4 == 3 else None))
        if name == "Q":
            for i in range(16): r.append((f"s_mov_b32 m0, {L_WQ + 1024 * i}", "v15, s[44:47], s39 offen", "s_addk_i32 s39, 0x2000"))
        if name == "GU":
            for i in range(16): r.append((f"s_mov_b32 m0, {L_GU + 1024 * i}", f"v13, s[{44 + 8 * (i & 1)}:{47 + 8 * (i & 1)}], s41 offen", "s_addk_i32 s41, 0xe00" if i & 1 else None))
        if name == "WO":
            o_ = list(woord or range(16))
            for n_, i in enumerate(o_): r.append((f"s_mov_b32 m0, {L_WO + 1024 * i}", "v14, s[44:47], s42 offen", addk(42, 0x2000 * (o_[n_ + 1] - i)) if n_ < 15 else None))
        if name == "WD":
            o_ = list(wdord or range(8))
            for n_, i in enumerate(o_): r.append((f"s_mov_b32 m0, {L_WD + 1024 * i}", "v14, s[44:47], s43 offen", addk(43, 0x2000 * (o_[n_ + 1] - i)) if n_ < 7 else None))
        return r
    def seg_setup(name):
        if name == "K": k_setup()
        if name == "V": srd(44, 12, 1048576 if perm or sweep else 32768)
        if name == "GU": srd(44, 20, 1835008); srd(52, 22, 1835008)
        if name == "GU" and xb2 is not None: a(f"s_and_b32 s35, s2, 7\ns_bitcmp1_b32 {xb2}, s35\ns_cselect_b64 {'s[100:101]' if adapt else 'vcc'}, -1, 0")
        if name == "WO": srd(44, 16, 4194304)
        if name == "WD": srd(44, 24, 1835008)
    def signal(f):
        a(f"v_mov_b32 v20, {f}\nds_write_b32 v1, v20 offset:{F_LD}")
        if events[f - 1] in order: stamp('l', 1 + order.index(events[f - 1]) if events[f - 1] != 'Q' else 7)
        if adapt and events[f - 1] in adapt:
            a(f"s_memtime s[62:63]\ns_waitcnt lgkmcnt(0)\ns_sub_u32 s62, s62, s60\ns_cmp_gt_u32 s62, {int(adapt[events[f - 1]] * 2.26)}\ns_cselect_b64 vcc, -1, s[100:101]")
    def emit(segs, n0, pend, final, THX=None):
        n = n0
        for name in segs:
            seg_setup(name)
            th = TH if name in ("Q", "K", "V") or TH2 is None else TH2
            if name in ("Q", "K") and THK: th = THK
            if name == "GU" and THG: th = THG
            lo = seg_loads(name)
            if THX: th = THX
            th0 = th
            if name == "Q":
                for c in range(4): pend.append((n + 4 * c + 4, seg_flag("Q" + (str(c) if c < 3 else ""))))
                n += 16
                continue
            if m0k:
                ms = [(i_, int(x[0].split(",")[1])) for i_, x in enumerate(lo) if x[0]]
                for (i0, v0_), (i1, v1_) in zip(ms, ms[1:]):
                    p_ = lo[i1 - 1]
                    lo[i1 - 1] = (p_[0], p_[1], (p_[2] + "\n" if p_[2] else "") + f"s_addk_i32 m0, {v1_ - v0_}")
                    lo[i1] = (None,) + lo[i1][1:]
            for idx, (m0, ad, inc) in enumerate(lo):
                if m0: a(m0)
                th = th0
                for d_ in (dip, dip2):
                    if d_ and d_[0] <= n < d_[1]: th = d_[2]
                if n == (THK or TH) + npre:
                    a("s_barrier")
                    if xfast:
                        a(f"s_waitcnt vmcnt({n - npre})")
                        signal(pend.pop(0)[1])
                    else: late_setup()
                    a("L_split:")
                    if two and not THX:
                        late_setup()
                        a("s_cbranch_vccnz L_wide")
                if xfast and n == (THK or TH) + npre + 4 and not two: late_setup()
                if n >= th and n >= (THK or TH) + npre:
                    sig = pend and pend[0][0] <= n - (th - 1)
                    if boost and not two and name in bseg and not sig and th == th0:
                        L = a.label("bo")
                        a(f"s_cbranch_vccnz {L}\ns_waitcnt vmcnt({th - 1})\n{L}:\ns_waitcnt vmcnt({boost - 1})")
                    else:
                        a(f"s_waitcnt vmcnt({th - 1})")
                    while pend and pend[0][0] <= n - (th - 1):
                        signal(pend.pop(0)[1])
                if pace and n >= th: a(pace)
                a(f"buffer_load_dwordx4 {ad} {ldpol} lds")
                if inc: a(inc)
                n += 1
                if name in ("V", "GU", "Q") and (idx + 1) % (len(lo) // 4) == 0 and idx + 1 < len(lo):
                    pend.append((n, seg_flag(name + str((idx + 1) // (len(lo) // 4) - 1))))
                if name == "K" and h1trig < 32 and idx + 1 == h1trig: pend.append((n, seg_flag("Kpart")))
            pend.append((n, seg_flag(name)))
            if name == "Q" and h1warm is not None:
                srd(52, 30, WSZ)
                a(f"s_lshl_b32 s35, s4, 5\ns_lshl_b32 s36, s6, 2\ns_add_u32 s35, s35, s36\ns_add_u32 s35, s35, s7\ns_lshl_b32 s35, s35, 8\ns_add_u32 s35, s35, {W_H1}")
                a(f"v_lshlrev_b32 v23, 6, v0\ns_mov_b64 exec, 15\nbuffer_load_dword v24, v23, s[52:55], s35 offen {h1warm}\ns_mov_b64 exec, -1")
                n += 1
            if name == warmat:
                if nwarm and warmx:
                    a(f"s_mov_b32 exec_lo, {warmx & 0xffffffff}\ns_mov_b32 exec_hi, {warmx >> 32}\nbuffer_load_dword v21, v16, {WS}, 0 offen {warmpol}\ns_mov_b64 exec, -1")
                    n += 1
                elif nwarm:
                    a(f"s_mov_b32 exec_hi, {0xfff if hbwarm is None else 0xf00}\n" + (f"v_mov_b32 v21, 0\nbuffer_store_dword v21, v16, {WS}, 0 offen" if warmst else f"buffer_load_dword v21, v16, {WS}, 0 offen {warmpol}") + "\ns_mov_b32 exec_hi, -1")
                    n += 1
                    if hbwarm:
                        a(f"s_mov_b32 exec_lo, 0\ns_mov_b32 exec_hi, 0xff\nbuffer_load_dword v21, v16, {WS}, 0 offen {hbwarm}\ns_mov_b64 exec, -1")
                        n += 1
                if h3warm is not None and not consffn:
                    a(f"buffer_load_dword v22, v19, {WS}, 0 offen {h3warm}")
                    n += 1
        if final:
            pend.append((n - ntail, seg_flag("T"))); pend.sort()
            pend[:] = sorted(set((e, len(events) if e == n else max(f for (e2, f) in pend if e2 <= e)) for (e, f) in pend))
            if gate == 'IE': a(f"v_mov_b32 v20, 1\nds_write_b32 v1, v20 offset:{F_IE}")
            stamp('l', 8)
            while pend:
                e, f = pend.pop(0)
                a(f"s_waitcnt vmcnt({n - e})")
                signal(f)
                if events[f - 1] == "T": stamp('l', 5)
        return n
    assert order[0] == "Q" and 16 < TH < 48
    npre = npf + 1
    ffn = ("GU", "WD")
    k = min(order.index(x) for x in ffn)
    if two:
        keep = a.lines; a.lines = []
        pend = [(npre, seg_flag("X"))]
        n = emit(order[:k], npre, pend, False, boost)
        a.lines = a.lines[a.lines.index("L_split:") + 1:]
        a("s_cmp_ge_u32 s33, 28\ns_cbranch_scc1 L_ldb2")
        emit(order[k:], n, list(pend), True, boost)
        a("s_branch L_lde\nL_ldb2:")
        emit([x for x in order[k:] if x not in ffn], n, list(pend), True, boost)
        a("s_branch L_ldw")
        wide = a.lines; a.lines = keep
    pend = [(npre, seg_flag("X"))]
    n = emit(order[:k], npre, pend, False)
    a("s_cmp_ge_u32 s33, 28\ns_cbranch_scc1 L_ldb")
    emit(order[k:], n, list(pend), True)
    a("s_branch L_lde\nL_ldb:")
    emit([x for x in order[k:] if x not in ffn], n, list(pend), True)
    a("L_ldw:")
    if outwarm is not None:
        srd(52, 26, 1024)
        a(f"s_sub_u32 s37, s33, 28\ns_lshl3_add_u32 s37, s37, s6\ns_lshl_b32 s37, s37, 5\ns_mov_b64 exec, 1\nbuffer_load_dword v23, off, s[52:55], s37 {outwarm}\ns_mov_b64 exec, -1")
    if h3warm is not None and near and h3at != 'end': pass
    elif h3warm is not None and near:
        a(f"ds_read_b32 v22, v1 offset:{F_IE}\ns_waitcnt lgkmcnt(0)\nv_readfirstlane_b32 s36, v22\ns_cmp_eq_u32 s36, 0\ns_cbranch_scc1 L_lde")
        if h3pk and ncw == 1: a("s_mov_b32 exec_hi, 0")
        a(f"buffer_load_dword v22, v19, {WS}, s36 offen {h3warm}")
        if ncw == 4: a(f"s_addk_i32 s36, 0x1000\nbuffer_load_dword v22, v19, {WS}, s36 offen {h3warm}")
    elif h3warm is not None and consffn: a(f"buffer_load_dword v22, v19, {WS}, 0 offen {h3warm}")
    if dual:
        a(f"s_movk_i32 s36, 0x2000\nbuffer_load_dword v23, v19, {WS}, s36 offen {h3warm}\ns_waitcnt vmcnt(1)\ns_sleep {dnap}\ns_getreg_b32 s36, hwreg(HW_REG_IB_STS, 0, 4)")
        a(f"s_cmp_eq_u32 s36, 0\ns_cselect_b32 s36, 2, 1")
        if dforce: a(f"s_mov_b32 s36, {dforce}")
        a(f"v_mov_b32 v20, s36\nds_write_b32 v1, v20 offset:{F_IE}")
    if touch: a("s_branch L_lde\nL_t1:\ns_branch L_t2")
    a("L_lde:")
    stamp('l', 9)
    dump('l')
    a("s_endpgm")
    if two:
        a("L_wide:")
        a.lines += wide

    a("L_aux:")
    if 'noa' in abl: a("s_branch L_adone")
    stamp('a', 1)
    srd(48, 30, WSZ)
    a("v_lshrrev_b32 v3, 3, v0\nv_and_b32 v4, 7, v0")
    a("""v_and_b32 v6, 1, v0
    v_lshlrev_b32 v6, 4, v6
    v_mov_b32 v7, 0xffff
    v_lshlrev_b32 v6, v6, v7
    v_bfe_u32 v7, v0, 1, 2""")
    for d in range(4): a(f"v_cmp_eq_u32 vcc, {d}, v7\nv_cndmask_b32 v{12 + d}, 0, v6, vcc")
    a(f"v_lshlrev_b32 v6, 5, v0\nv_add_u32 v6, {L_XX}, v6")
    a(f"s_lshl_b32 s35, s7, 9\ns_add_u32 s35, s35, {L_XX}\nv_lshl_add_u32 v7, v3, 6, s35")
    a(f"v_add_u32 v25, {L_X}, v2")
    lds_spin(F_LD, seg_flag("X"), ["ds_read_b128 v[8:11], v25"], 'ge', 24)
    stamp('a', 2)
    for k in range(4): a(f"v_lshlrev_b32 v{16 + 2 * k}, 16, v{8 + k}\nv_and_b32 v{17 + 2 * k}, 0xffff0000, v{8 + k}")
    def wave_sum(r, t):
        for n in (8, 4, 2, 1): a(f"v_add_f32_dpp v{r}, v{r}, v{r} row_ror:{n} row_mask:0xf bank_mask:0xf")
        a(f"v_mov_b32 v{t}, v{r}\nv_permlane16_swap_b32 v{r}, v{t}\nv_add_f32 v{r}, v{r}, v{t}")
        a(f"v_mov_b32 v{t}, v{r}\nv_permlane32_swap_b32 v{r}, v{t}\nv_add_f32 v{r}, v{r}, v{t}")
    a("""v_add_f32 v24, v16, v17
    v_add_f32 v25, v18, v19
    v_add_f32 v26, v20, v21
    v_add_f32 v27, v22, v23
    v_add_f32 v24, v24, v25
    v_add_f32 v26, v26, v27
    v_add_f32 v24, v24, v26""")
    wave_sum(24, 25)
    a("v_mul_f32 v24, 0x3b000000, v24")
    for k in range(8): a(f"v_sub_f32 v{32 + k}, v{16 + k}, v24")
    a("v_mul_f32 v26, v32, v32\nv_mul_f32 v27, v33, v33")
    for k in range(2, 8): a(f"v_fmac_f32 v{26 + (k & 1)}, v{32 + k}, v{32 + k}")
    a("v_add_f32 v26, v26, v27\nv_cvt_pk_bf16_f32 v24, 0, v24")
    wave_sum(26, 25)
    for k in range(8): a(f"v_sub_f32 v{16 + k}, v{16 + k}, v24")
    a("""v_mul_f32 v26, 0x3b000000, v26
    v_cvt_pk_bf16_f32 v26, 0, v26
    v_add_f32 v26, 0x3727c5ac, v26
    v_cvt_pk_bf16_f32 v26, 0, v26
    v_sqrt_f32 v26, v26""")
    for k in range(8): a(f"v_cvt_pk_bf16_f32 v{16 + k}, 0, v{16 + k}")
    a("v_cvt_pk_bf16_f32 v26, 0, v26\nv_rcp_f32 v27, v26")
    for k in range(8): a(f"v_mul_f32 v{32 + k}, v{16 + k}, v27")
    for k in range(8): a(f"v_fma_f32 v{16 + k}, -v{32 + k}, v26, v{16 + k}")
    for k in range(8): a(f"v_fmac_f32 v{32 + k}, v{16 + k}, v27")
    for k in range(8): a(f"v_cvt_pk_bf16_f32 v{32 + k}, v{32 + k}, v{32 + k}")
    a("ds_write_b128 v6, v[32:35]\nds_write_b128 v6, v[36:39] offset:16")
    for k in range(4): a(f"ds_read_b128 v[{16 + 4 * k}:{19 + 4 * k}], v7 offset:{16 * k}")
    a("""v_lshlrev_b32 v5, 5, v4
    v_bfe_u32 v6, v0, 4, 1
    v_lshl_add_u32 v5, v6, 4, v5
    v_mov_b32 v61, v5
    v_lshrrev_b32 v6, 5, v0
    v_lshl_add_u32 v5, v6, 3, v5
    s_lshl_b32 s35, s4, 5
    s_lshl_b32 s36, s6, 2
    s_add_u32 s35, s35, s36
    s_add_u32 s35, s35, s7
    s_lshl_b32 s35, s35, 8""")
    a(f"s_add_u32 s35, s35, {W_H1}\nv_add_u32 v9, s35, v61\nv_mov_b32 v56, 0xff\ns_mov_b32 s43, {W_H1B - W_H1}")
    a("s_waitcnt lgkmcnt(0)")
    stamp('a', 3)
    tags()
    a("v_mov_b32 v57, s42\nv_lshrrev_b32 v58, 8, v57\nv_lshrrev_b32 v59, 16, v57\nv_lshrrev_b32 v60, 24, v57")
    a(f"v_add_u32 v11, {L_WQ}, v2")
    for i in range(16):
        for d in range(4): a(f"v_and_b32 v{128 + 4 * (i & 7) + d}, v{16 + i}, v{12 + d}")
        if i == 7 or i == 11 or i == 15:
            for c in ((0, 1) if i == 7 else (2,) if i == 11 else (3,)):
                lds_spin(F_LD, seg_flag("Q" + (str(c) if c < 3 else "")), [f"ds_read_b128 v[{64 + 4 * k}:{67 + 4 * k}], v11 offset:{1024 * k}" for k in range(4 * c, 4 * c + 4)], 'ge', 62)
                for k in range(4 * c, 4 * c + 4):
                    a(f"v_mfma_f32_16x16x32_bf16 v[32:35], v[{128 + 4 * (k & 7)}:{131 + 4 * (k & 7)}], v[{64 + 4 * k}:{67 + 4 * k}], {'0' if k == 0 else 'v[32:35]'}")
    stamp('a', 4)
    a("""v_permlane32_swap_b32 v32, v34
    v_permlane32_swap_b32 v33, v35
    v_add_f32_dpp v48, v34, v32 row_shl:8 row_mask:0xf bank_mask:0xf
    v_add_f32_dpp v49, v35, v33 row_shl:8 row_mask:0xf bank_mask:0xf
    v_add_u32 v48, 0x80, v48
    v_add_u32 v49, 0x80, v49
    v_mov_b32 v50, v48
    v_mov_b32 v51, v49
    v_permlane32_swap_b32 v48, v50
    v_permlane32_swap_b32 v49, v51
    s_mov_b64 exec, 0x00ff00ff""")
    for k in range(4): a(f"v_bfi_b32 v{52 + k}, v56, v{57 + k}, v{48 + k}")
    a(f"buffer_store_dwordx4 v[52:55], v9, {WS}, 0 offen" + ("" if local and not h1wt else " sc1"))
    if bdem and local: a(f"ds_write_b128 v61, v[48:51] offset:0\n".replace("v61,", "v62,").replace("ds_write", f"v_add_u32 v62, {L_B}, v61\nds_write"))
    elif 'noh1b' not in abl and local:
        a("v_mov_b32 v57, s32\nv_lshrrev_b32 v58, 8, v57\nv_lshrrev_b32 v59, 16, v57\nv_lshrrev_b32 v60, 24, v57")
        for k in range(4): a(f"v_bfi_b32 v{160 + k}, v56, v{57 + k}, v{48 + k}")
        if lateb: a("v_mov_b32 v164, v9")
        else: a(f"buffer_store_dwordx4 v[160:163], v9, {WS}, s43 offen sc1")
    a(f"s_mov_b64 exec, -1\nv_mov_b32 v20, 1\nds_write_b32 v1, v20 offset:{F_A}")
    stamp('a', 5)
    a("L_aux2:")
    def dec_load(pol):
        a(f"s_mov_b64 exec, 1\nbuffer_load_dwordx4 v[44:47], off, {WS}, s33 offset:{W_DEC} {pol}\ns_mov_b64 exec, -1")
    def dec_first():
        a("s_not_b32 s37, s32\nv_mov_b32 v44, s37\ns_lshl_b32 s33, s6, 4")
        lds_spin(F_LD, seg_flag(dat), [], 'ge', 28, nap=lazy)
        dec_load(dpol)
    def dec_use(tag, cnt):
        a(f"s_mov_b32 s40, {SPIN}\ns_waitcnt vmcnt({cnt})\nL_vc0{tag}:\ns_mov_b64 exec, 1")
        for k in range(4): a(f"v_xor_b32 v{44 + k}, s32, v{44 + k}")
        a("s_movk_i32 s39, 0x2000\nv_or_b32 v41, v44, v45\nv_or3_b32 v41, v41, v46, v47\nv_cmp_lt_u32 vcc, 1, v41")
        for k in range(4): a(f"v_lshlrev_b32 v{44 + k}, v{44 + k}, s39")
        a(f"s_cbranch_vccnz L_vc1{tag}\nds_write_b128 v1, v[44:47] offset:{F_D}\ns_mov_b64 exec, -1")
        with outofline():
            a(f"L_vc1{tag}:\ns_waitcnt vmcnt(0)")
            dec_load('sc1')
            a(f"s_sub_u32 s40, s40, 1\ns_cbranch_scc1 L_end\ns_waitcnt vmcnt(0)\ns_branch L_vc0{tag}")
    a("s_cmp_ge_u32 s33, 28\ns_cbranch_scc1 " + ("L_probe" if probe_diag else "L_dec" if near else "L_adone"))
    if near:
        with outofline():
            a("L_dec:")
            if ncw > 1: a(f"s_cmp_ge_u32 s33, {NCONS}\ns_cbranch_scc1 L_dec2")
            if vat: lds_spin(F_LD, seg_flag(vat), [], 'ge', 28, nap=lazy)
            nvc = 1 if (vset, vsh) == (1, 2) else 4
            if nvc == 1: a(f"v_lshlrev_b32 v41, 2, v0\nbuffer_load_dword v44, v41, {WS}, 0 offen offset:{W_VOT} {vpol}")
            else: a(f"buffer_load_dwordx4 v[44:47], v2, {WS}, 0 offen offset:{W_VOT} {vpol}")
            cc0(35)
            a("s_lshl_b32 s35, s35, 2\ns_waitcnt vmcnt(0)")
            for k in range(nvc):
                a(f"v_xor_b32 v41, s32, v{44 + k}")
                for c in range(2):
                    a(f"v_cmp_eq_u32 vcc, {c + 1}, v41\ns_bcnt1_i32_b64 s{(36 if k == 0 else 38) + c}, vcc")
                if k: a("s_add_u32 s36, s36, s38\ns_add_u32 s37, s37, s39")
            a("s_cmp_gt_u32 s37, s36\ns_cselect_b32 s38, 0, 1\ns_getreg_b32 s39, hwreg(HW_REG_XCC_ID, 2, 1)\ns_xor_b32 s39, s39, s38")
            a(f"s_xor_b32 s38, s39, s32\ns_lshl_b32 s39, 0x2000, s39\nv_mov_b32 v41, s39\nv_mov_b32 v42, s38\nds_write_b32 v1, v41 offset:{F_IE}")
            a(f"v_lshlrev_b32 v43, 2, v0\ns_mov_b64 exec, {(1 << ncw) - 1}\nbuffer_store_dword v42, v43, {WS}, s35 offen offset:{W_DEC} sc1\ns_mov_b64 exec, -1")
            if stamps or evdbg: a(f"s_lshl_b32 s37, s37, 8\ns_add_u32 s36, s36, s37\nv_mov_b32 v41, s36\nds_write_b32 v1, v41 offset:{F_N}")
            if evdbg:
                srd(44, 28, 256)
                a(f"s_getreg_b32 s37, hwreg(HW_REG_XCC_ID, 0, 4)\ns_lshl_b32 s37, s37, 24\ns_add_u32 s36, s36, s37\nv_mov_b32 v41, s36\nv_mov_b32 v42, s35\nbuffer_store_dword v41, v42, s[44:47], 0 offen")
            if h3at != 'end':
                if h3at != 'dec': lds_spin(F_LD, seg_flag(h3at), [], 'ge', 28, nap=lazy)
                a("s_lshr_b32 s37, s35, 2")
                inbox(38, 37)
                a(f"v_lshl_add_u32 v42, v0, 6, s38\n" + ("s_mov_b32 exec_hi, 0\n" if h3pk else "") + f"buffer_load_dword v43, v42, {WS}, s39 offen {h3warm}\ns_mov_b64 exec, -1")
            if evpad:
                a({'max': "s_max_u32 s60, s36, s37", 'min': "s_min_u32 s60, s36, s37", 'ev0': "s_mov_b32 s60, s36", 'ev1': "s_mov_b32 s60, s37"}[evpad])
            a("L_dec2:")
            dec_first()
            dec_use('a', 0)
            if evpad:
                a("s_memrealtime s[62:63]\ns_waitcnt lgkmcnt(0)\ns_mul_i32 s60, s60, 200\ns_add_u32 s60, s60, s62\ns_add_u32 s60, s60, 2000")
                a("L_evp:\ns_sleep 4\ns_memrealtime s[62:63]\ns_waitcnt lgkmcnt(0)\ns_sub_u32 s35, s62, s60\ns_cmp_lt_i32 s35, 0\ns_cbranch_scc1 L_evp")
            a("s_branch L_adone")
    if probe_diag:
        with outofline():
            a(f"L_probe:\ns_sub_u32 s35, s33, 28\ns_lshl3_add_u32 s35, s35, s6\ns_lshr_b32 s36, s35, 2\ns_lshl_b32 s36, s36, 14\ns_and_b32 s35, s35, 3\ns_lshl_b32 s35, s35, 10\ns_add_u32 s36, s36, s35\ns_add_u32 s36, s36, {W_PR}")
            if probe_diag == 3:
                lds_spin(F_LD, seg_flag("Kpart"), [], 'ge', 28, nap=2)
                a("s_mul_i32 s36, s6, 768\ns_add_u32 s36, s36, 0x14000")
            for t in range(12):
                a(f"s_memtime s[56:57]\ns_waitcnt lgkmcnt(0)\ns_load_dword s58, s[30:31], s36 offset:{(t >> 1) * 128 + (t & 1) * 8192}{' glc' if probe_diag == 2 else ''}\ns_waitcnt lgkmcnt(0)\ns_memtime s[60:61]\ns_waitcnt lgkmcnt(0)\ns_sub_u32 s{66 + 2 * t}, s60, s56")
            a("s_memtime s[90:91]\ns_branch L_adump")
    if 'noffn' in abl: a("s_branch L_adone")
    a(f"s_lshl_b32 s35, s6, 8\ns_add_u32 s35, s35, {L_XX}\nv_lshl_add_u32 v7, v3, 5, s35")
    a("ds_read_b128 v[16:19], v7\nds_read_b128 v[20:23], v7 offset:16")
    a(f"s_lshl_b32 s35, s4, 2\ns_add_u32 s35, s35, s7\ns_lshl_b32 s35, s35, 12\ns_add_u32 s35, s35, {W_HB}")
    a("v_add_u32 v10, s35, v2\ns_lshl_b32 s36, s6, 9\ns_add_u32 s35, s35, s36\nv_lshl_add_u32 v9, v5, 1, s35")
    a(f"v_add_u32 v11, {L_GU}, v2")
    a("""v_bfe_u32 v8, v0, 4, 1
    v_lshlrev_b32 v8, 6, v8
    v_bfe_u32 v6, v0, 1, 2
    v_lshl_add_u32 v8, v6, 4, v8
    v_bfe_u32 v6, v0, 3, 1
    v_lshl_add_u32 v8, v6, 3, v8
    v_and_b32 v6, 1, v0
    v_lshl_add_u32 v8, v6, 2, v8
    v_lshrrev_b32 v6, 5, v0
    v_lshl_add_u32 v8, v6, 1, v8""")
    a(f"v_add_u32 v8, {L_H}, v8")
    tagbytes(56, 32)
    for k in range(4): a(f"v_mov_b32 v{57 + k}, s{56 + k}")
    a("s_waitcnt lgkmcnt(0)")
    for i in range(8):
        for d in range(4): a(f"v_and_b32 v{128 + 4 * i + d}, v{16 + i}, v{12 + d}")
    if 'hb' in prew:
        for k in range(4): a(f"v_not_b32 v{48 + k}, v{57 + k}")
        a(f"s_mov_b32 exec_lo, 0x00ff00ff\ns_mov_b32 exec_hi, 0x00ff00ff\nbuffer_store_dwordx4 v[48:51], v9, {WS}, 0 offen\ns_mov_b64 exec, -1")
    if near: dec_first()
    for c in range(4):
        rd = [f"ds_read_b128 v[{64 + 4 * i}:{67 + 4 * i}], v11 offset:{1024 * i}" for i in range(4 * c, 4 * c + 4)]
        if c == 3: rd.append(f"ds_read_b128 v[24:27], v1 offset:{F_Q}")
        if c == 0 and lazy: lds_spin(F_LD, seg_flag("V"), [], 'ge', 28, nap=lazy)
        lds_spin(F_LD, seg_flag("GU" + (str(c) if c < 3 else "")), rd, 'ge', 28)
        if c == 3: stamp('a', 6)
        for i in range(2 * c, 2 * c + 2):
            for m in range(2):
                cc = "0" if i == 0 else f"v[{32 + 4 * m}:{35 + 4 * m}]"
                a(f"v_mfma_f32_16x16x32_bf16 v[{32 + 4 * m}:{35 + 4 * m}], v[{128 + 4 * i}:{131 + 4 * i}], v[{64 + 8 * i + 4 * m}:{67 + 8 * i + 4 * m}], {cc}")
    a("v_and_b32 v26, v26, v27\nv_bitop3_b32 v24, v24, v25, v26 bitop3:0x80\nv_readfirstlane_b32 s41, v24\ns_and_b32 s41, s41, 2")
    a("""v_permlane32_swap_b32 v32, v34
    v_permlane32_swap_b32 v33, v35
    v_permlane32_swap_b32 v36, v38
    v_permlane32_swap_b32 v37, v39
    v_add_f32_dpp v48, v34, v32 row_shl:8 row_mask:0xf bank_mask:0xf
    v_add_f32_dpp v50, v35, v33 row_shl:8 row_mask:0xf bank_mask:0xf
    v_add_f32_dpp v49, v38, v36 row_shl:8 row_mask:0xf bank_mask:0xf
    v_add_f32_dpp v51, v39, v37 row_shl:8 row_mask:0xf bank_mask:0xf
    s_mov_b32 exec_lo, 0x00ff00ff
    s_mov_b32 exec_hi, 0x00ff00ff""")
    for k in range(4): a(f"v_add_u32 v{48 + k}, 0x80, v{48 + k}")
    for k in range(4): a(f"v_bfi_b32 v{48 + k}, v56, v{57 + k}, v{48 + k}")
    st2([f"buffer_store_dwordx4 v[48:51], v9, {WS}, 0 offen"], 'hb')
    a("s_mov_b64 exec, -1")
    stamp('a', 7)
    if near: dec_use('b', 1)
    L = a.label("hb")
    a(f"s_mov_b32 s38, {max(seg_flag('WO'), seg_flag('WD'))}\ns_mov_b32 s36, {seg_flag('T')}\ns_mov_b32 s39, {0 if hbfirst else 1}")
    if 'hb' in p1:
        wait_gate(28)
        for i in range(4): a(f"buffer_load_dwordx4 v[{64 + 4 * i}:{67 + 4 * i}], v10, {WS}, 0 offen offset:{1024 * i}")
        a("L_hbin:")
        with outofline():
            a(f"{L}:")
            for i in range(4): a(f"buffer_load_dwordx4 v[{64 + 4 * i}:{67 + 4 * i}], v10, {WS}, 0 offen offset:{1024 * i} {pollpol}")
            a("s_sub_u32 s40, s40, 1\ns_cbranch_scc0 L_hbin\ns_branch L_end")
    else:
        a(f"s_mov_b32 s40, {SPIN}\n{L}:")
        if gate:
            a("s_cmp_eq_u32 s39, 1\ns_cbranch_scc0 L_hbg")
            wait_gate(28)
            if anap: a(f"s_sleep {anap}")
            a("L_hbg:\ns_add_u32 s39, s39, 1")
        for i in range(4): a(f"buffer_load_dwordx4 v[{64 + 4 * i}:{67 + 4 * i}], v10, {WS}, 0 offen offset:{1024 * i} {pollpol}")
        a("s_sub_u32 s40, s40, 1\ns_cbranch_scc1 L_end")
    for i in range(4):
        a(f"s_waitcnt vmcnt({3 - i})")
        strip(20, [64 + 4 * i + k for k in range(4)], first=(i == 0))
        if i:
            for k in range(4): a(f"v_add_f32 v{64 + k}, v{64 + k}, v{64 + 4 * i + k}")
    a(f"v_and_b32 v20, 0xff, v20\nv_cmp_ne_u32 vcc, 0, v20")
    if hbsleep: a(f"s_cbranch_vccz L_hbok\ns_sleep {hbsleep}\ns_branch {L}\nL_hbok:")
    else: a(f"s_cbranch_vccnz {L}")
    stamp('a', 8)
    a(f"""v_permlane32_swap_b32 v64, v66
    v_permlane32_swap_b32 v65, v67
    v_add_f32 v64, v64, v66
    v_add_f32 v66, v65, v67
    v_cvt_pk_bf16_f32 v64, 0, v64
    v_cvt_pk_bf16_f32 v66, 0, v66
    v_mul_f32 v20, {(LOG2E | 0x80000000):#x}, v64
    v_exp_f32 v20, v20
    v_add_f32 v20, 1.0, v20
    v_rcp_f32 v21, v20
    v_mul_f32 v22, v64, v21""")
    if refine: a("""v_fma_f32 v23, -v22, v20, v64
    v_fma_f32 v23, v23, v21, v22
    v_cmp_class_f32 vcc, v23, 3
    v_cndmask_b32 v22, v23, v22, vcc""")
    a(f"""v_cvt_pk_bf16_f32 v22, 0, v22
    v_mul_f32 v22, v22, v66
    v_cvt_pk_bf16_f32 v22, v22, v22
    v_mov_b32 v21, 1
    ds_write_b16 v8, v22
    ds_write_b32 v1, v21 offset:{F_H}""")
    a("L_adone:")
    if lateb and local:
        a(f"s_mov_b64 exec, 0x00ff00ff\nbuffer_store_dwordx4 v[160:163], v164, {WS}, s43 offen sc1")
    stamp('a', 9)
    a("L_adump:")
    dump('a')
    a("s_endpgm")

    a("L_comp:\ns_sub_u32 s34, s3, 2")
    a("s_load_dword s32, s[30:31], 0")
    srd(48, 30, WSZ)
    if warm and not h1wt and h1w and warm0 is None:
        a("s_cmp_eq_u32 s34, 1\ns_cbranch_scc0 L_nowarm")
        a(f"s_lshl_b32 s35, s4, 5\ns_lshl_b32 s36, s6, 2\ns_add_u32 s35, s35, s36\ns_add_u32 s35, s35, s7\ns_lshl_b32 s35, s35, 8\ns_add_u32 s35, s35, {W_H1}")
        a(f"v_lshlrev_b32 v4, 6, v0\ns_mov_b64 exec, 15\nbuffer_load_dword v124, v4, {WS}, s35 offen {warmpol}\ns_mov_b64 exec, -1\nL_nowarm:")
    a("""v_and_b32 v2, 15, v0
    v_lshrrev_b32 v3, 4, v0""")
    a("""v_xor_b32 v4, v2, v3
    v_lshlrev_b32 v4, 4, v4
    v_lshrrev_b32 v5, 2, v2
    v_lshlrev_b32 v5, 11, v5
    v_and_b32 v6, 3, v0
    v_lshl_add_u32 v5, v6, 8, v5
    s_lshr_b32 s35, s34, 1
    s_lshl_b32 s35, s35, 14
    s_and_b32 s36, s34, 1
    s_lshl_b32 s36, s36, 10
    s_add_u32 s35, s35, s36
    v_add_u32 v5, s35, v5""")
    for s_ in range(4):
        a(f"v_xor_b32 v{8 + s_}, {64 * s_}, v4\nv_add_u32 v{8 + s_}, v{8 + s_}, v5")
    a("""v_lshrrev_b32 v4, 2, v2
    v_xor_b32 v5, s34, v4
    v_lshlrev_b32 v5, 6, v5
    v_lshl_add_u32 v5, v4, 8, v5
    v_lshrrev_b32 v7, 1, v3
    v_lshl_add_u32 v5, v7, 10, v5
    v_and_b32 v7, 1, v3
    v_lshl_add_u32 v5, v7, 5, v5
    v_lshl_add_u32 v5, v6, 3, v5""")
    a(f"v_add_u32 v12, {L_V}, v5")
    a("""v_lshl_add_u32 v5, v3, 2, v4
    v_lshrrev_b32 v7, 1, v5
    v_and_b32 v7, 3, v7
    v_xor_b32 v7, s34, v7
    v_lshlrev_b32 v7, 5, v7
    v_lshl_add_u32 v7, v5, 7, v7
    v_lshl_add_u32 v14, v6, 3, v7""")
    a(f"v_add_u32 v14, {L_WO}, v14")
    a(f"v_mul_u32_u24 v15, 320, v6\nv_lshl_add_u32 v15, v3, 4, v15\nv_add_u32 v15, {L_Q}, v15")
    a("""v_lshrrev_b32 v4, 5, v0
    v_lshlrev_b32 v16, 8, v4
    v_and_b32 v5, 1, v3
    v_lshl_add_u32 v16, v5, 10, v16
    v_lshl_add_u32 v16, v2, 4, v16
    s_lshl_b32 s35, s4, 13
    s_lshl_b32 s36, s34, 11
    s_add_u32 s35, s35, s36""")
    a(f"s_add_u32 s35, s35, {W_H1}\nv_add_u32 v16, s35, v16")
    a(f"s_mul_i32 s35, s34, 320\ns_add_u32 s35, s35, {L_Q}\nv_and_b32 v5, 31, v0\nv_lshl_add_u32 v17, v5, 3, s35\nv_lshl_add_u32 v17, v4, 2, v17")
    a("s_lshl_b32 s35, s34, 2\nv_add_u32 v18, s35, v1")
    a(f"s_lshl_b32 s35, s34, 8\ns_add_u32 s35, s35, {L_P}\nv_lshl_add_u32 v19, v3, 5, s35\nv_lshl_add_u32 v19, v6, 3, v19")
    a(f"s_lshl_b32 s35, s34, 4\ns_add_u32 s35, s35, {L_ML}\nv_lshl_add_u32 v112, v0, 2, s35")
    a(f"v_lshlrev_b32 v113, 3, v0\nv_add_u32 v113, {L_P}, v113")
    a(f"v_lshlrev_b32 v114, 4, v4\nv_add_u32 v114, {L_ML}, v114")
    a(f"s_lshl_b32 s35, s34, 2\ns_add_u32 s35, s35, {L_ML}\nv_lshl_add_u32 v13, v6, 4, s35\nv_mov_b32 v144, {L_ML}")
    a("s_lshl_b32 s35, s4, 7\ns_add_u32 s35, s35, s5")
    a(f"s_lshl_b32 s36, s35, 9\ns_lshl_b32 s37, s34, 7\ns_add_u32 s36, s36, s37\ns_add_u32 s36, s36, {W_H2}\nv_lshl_add_u32 v115, v5, 2, s36\nv_lshl_add_u32 v115, v4, 14, v115")
    a(f"s_lshl_b32 s36, s34, 5\ns_add_u32 s36, s36, s35\ns_lshl_b32 s36, s36, 4\ns_add_u32 s36, s36, {W_ML}\nv_mov_b32 v116, s36")
    a("v_lshrrev_b32 v4, 3, v0\nv_and_b32 v5, 7, v0\ns_lshl_b32 s35, s4, 2\ns_add_u32 s35, s35, s7")
    a(f"s_lshl_b32 s36, s35, 14\ns_lshl_b32 s37, s34, 7\ns_add_u32 s36, s36, s37\ns_add_u32 s36, s36, {W_H2}")
    a("v_lshlrev_b32 v117, 9, v4\nv_lshl_add_u32 v117, v5, 4, v117\nv_add_u32 v117, s36, v117")
    a(f"s_lshl_b32 s36, s35, 9\ns_add_u32 s36, s36, {W_ML}\nv_and_b32 v118, 31, v0\nv_lshl_add_u32 v118, v118, 4, s36\nv_lshlrev_b32 v123, 2, v4")
    a("""v_and_b32 v119, 3, v0
    v_lshlrev_b32 v119, 4, v119
    v_bfe_u32 v4, v0, 2, 1
    v_lshl_add_u32 v119, v4, 3, v119
    v_bfe_u32 v4, v0, 4, 1
    v_lshl_add_u32 v119, v4, 2, v119
    v_lshrrev_b32 v4, 5, v0
    v_lshl_add_u32 v119, v4, 1, v119""")
    a(f"s_lshl_b32 s35, s34, 6\ns_add_u32 s35, s35, {L_O}\nv_add_u32 v119, s35, v119")
    a(f"v_lshlrev_b32 v120, 4, v3\nv_add_u32 v120, {L_O}, v120")
    a("s_lshl2_add_u32 s37, s6, s34")
    inbox(35, 37)
    a(f"s_lshl2_add_u32 s36, s4, s7\ns_lshl_b32 s36, s36, {6 if h3pk else 7}\ns_add_u32 s35, s35, s36\nv_lshl_add_u32 v121, v0, {2 if h3pk else 3}, s35")
    a("s_movk_i32 s52, 0x1000\ns_movk_i32 s53, 0x2000\ns_movk_i32 s54, 0x3000\ns_mov_b32 s55, 0x8000\nv_mov_b32 v125, 0xff")
    a("s_waitcnt lgkmcnt(0)")
    tags()
    a("v_lshlrev_b32 v4, 3, v6\nv_lshrrev_b32 v122, v4, s32\nv_mov_b32 v147, s32\nv_mov_b32 v149, s32")
    tagbytes(56, 42)
    if 'noc' in abl: a("s_branch L_cdone")
    if 'h2' in prew:
        a(f"v_not_b32 v20, v122\nbuffer_store_dword v20, v115, {WS}, 0 offen\nbuffer_store_dword v20, v115, {WS}, s55 offen")
    kreads = [f"ds_read_b128 v[{32 + 16 * t + 4 * s}:{35 + 16 * t + 4 * s}], v{8 + s} offset:{L_K + 8192 * t}" for t in range(2) for s in range(4)]
    a("s_mov_b32 s43, 0\ns_mov_b32 s41, 3\ns_mov_b32 s39, 0")
    if forceslow and bdem:
        a("s_xor_b32 s42, s42, 0x80808080")
        tagbytes(56, 42)
    elif forceslow: a(f"s_mov_b32 s39, {NA}")
    if h1own: lds_spin(F_A, 1, [], 'ge', 20)
    else:
        if nap1: a(f"s_sleep {nap1}")
        if both: lds_spin(F_A, 1, [], 'ge', 20, nap=lazy)
        lds_spin(F_LD, seg_flag("Kpart" if h1trig < 32 else "K"), [], 'ge', 20, nap=lazy)
    stamp('c', 1)
    L = a.label("h1"); L2 = a.label("h1k")
    peel = 'h1' in p1
    if peel:
        for i in range(2): a(f"buffer_load_dwordx4 v[{96 + 4 * i}:{99 + 4 * i}], v16, {WS}, 0 offen offset:{512 * i}")
        a("L_h1in:")
        keep1 = a.lines; a.lines = []
    a(f"{L}:")
    if local:
        a(f"s_cmp_{'ge' if bdem else 'eq'}_u32 s39, {NA}\ns_cbranch_scc1 L_h1sw\n{L2}:")
        with outofline():
            a("L_h1sw:")
            if bdem:
                a(f"s_cmp_eq_u32 s39, {NA}\ns_cbranch_scc0 L_h1t")
                lds_spin(F_A, 1, [], 'ge', 20)
                a(f"v_lshlrev_b32 v20, 4, v0\nv_add_u32 v21, {L_B}, v20\ns_mov_b64 exec, 0xffff\nds_read_b128 v[96:99], v21")
                a(f"s_lshl_b32 s35, s4, 5\ns_lshl2_add_u32 s35, s6, s35\ns_add_u32 s35, s35, s7\ns_lshl_b32 s35, s35, 8\ns_add_u32 s35, s35, {W_H1B}")
                tagbytes(56, 32)
                a("s_waitcnt lgkmcnt(0)")
                for k in range(4): a(f"v_bfi_b32 v{96 + k}, v125, s{56 + k}, v{96 + k}")
                a(f"buffer_store_dwordx4 v[96:99], v20, {WS}, s35 offen sc1\ns_waitcnt vmcnt(0)\ns_mov_b64 exec, -1")
                a(f"L_h1t:\ns_xor_b32 s43, s43, {W_H1B - W_H1}\ns_cselect_b32 s35, s32, s42\ns_cselect_b32 s41, 1, 3")
                tagbytes(56, 35)
            else:
                a(f"s_mov_b32 s43, {W_H1B - W_H1}\ns_mov_b32 s41, 1")
                tagbytes(56, 32)
            a(f"s_branch {L2}")
    for i in range(2): a(f"buffer_load_dwordx4 v[{96 + 4 * i}:{99 + 4 * i}], v16, {WS}, s43 offen offset:{512 * i} {pollpol}")
    a(f"s_add_u32 s39, s39, 1\ns_cmp_gt_u32 s39, {SPIN}\ns_cbranch_scc1 L_end")
    if peel:
        a("s_branch L_h1in")
        cold.extend(a.lines); a.lines = keep1
    if h1trig == 32 and not h1own:
        for r in kreads: a(r)
    elif kearly: lds_spin(F_LD, seg_flag("K"), kreads, 'ge', 20)
    a("s_waitcnt vmcnt(0)")
    strip(20, list(range(96, 104)), first=True)
    for k in range(4): a(f"v_add_f32 v{96 + k}, v{96 + k}, v{100 + k}")
    a(f"""v_and_b32 v20, 0xff, v20
    v_cmp_ne_u32 vcc, 0, v20
    v_permlane32_swap_b32 v96, v98
    v_permlane32_swap_b32 v97, v99
    s_cbranch_vccnz {L}""")
    stamp('c', 2)
    if stamps is True: a("s_mov_b32 s88, s39")
    a("""v_add_f32 v96, v96, v98
    v_add_f32 v97, v97, v99
    v_mov_b32 v21, s41
    v_cvt_pk_bf16_f32 v96, v96, v97""")
    a(f"ds_write_b32 v17, v96\nds_write_b32 v18, v21 offset:{F_Q}")
    tagbytes(56, 32)
    if (h1trig < 32 or h1own) and not kearly: lds_spin(F_LD, seg_flag("K"), kreads, 'ge', 20)
    lds_spin(F_Q, 0, [f"ds_read_b128 v[{96 + 4 * s}:{99 + 4 * s}], v15 offset:{64 * s}" for s in range(4)] + ([f"ds_read_b32 v145, v1 offset:{F_LD}"] if look1 else []), 'all4', 20)
    stamp('c', 3)
    for s in range(4):
        for t in range(2):
            c = "0" if s == 0 else f"v[{24 + 4 * t}:{27 + 4 * t}]"
            a(f"v_mfma_f32_16x16x32_bf16 v[{24 + 4 * t}:{27 + 4 * t}], v[{32 + 16 * t + 4 * s}:{35 + 16 * t + 4 * s}], v[{96 + 4 * s}:{99 + 4 * s}], {c}")
    a("v_readfirstlane_b32 s41, v20\ns_and_b32 s41, s41, 2")
    if 'ml' in prew:
        a(f"s_cselect_b64 exec, 1, 0\nv_not_b32 v153, v147\nv_not_b32 v155, v147\nbuffer_store_dwordx4 v[152:155], v116, {WS}, 0 offen\ns_mov_b64 exec, -1")
    vread = lambda u: f"ds_read_b64_tr_b16 v[{64 + 2 * u}:{65 + 2 * u}], v12 offset:{2048 * u}"
    vflag = lambda c: seg_flag("V" + (str(c) if c < 3 else ""))
    if look1:
        a("v_readfirstlane_b32 s38, v145")
        for c in range(4):
            a(f"s_cmp_lt_u32 s38, {vflag(c)}\ns_cbranch_scc1 L_va")
            for u in range(4 * c, 4 * c + 4): a(vread(u))
        a("L_va:")
    else: a("s_mov_b32 s38, 0")
    a(f"s_mov_b32 s35, {SCALE:#x}\ns_mov_b32 s36, {LOG2E:#x}")
    if pks: a("s_mov_b32 s60, s35\ns_mov_b32 s61, s35\ns_mov_b32 s62, s36\ns_mov_b32 s63, s36")
    if mimic:
        for r in range(24, 32): a(f"v_cvt_pk_bf16_f32 v{r}, 0, v{r}")
    if pks:
        for r in range(24, 32, 2): a(f"v_pk_mul_f32 v[{r}:{r + 1}], v[{r}:{r + 1}], s[60:61]")
    else:
        for r in range(24, 32): a(f"v_mul_f32 v{r}, s35, v{r}")
    if mimic:
        for r in range(24, 32): a(f"v_cvt_pk_bf16_f32 v{r}, 0, v{r}")
    a("""v_max3_f32 v20, v24, v25, v26
    v_max3_f32 v21, v27, v28, v29
    v_max3_f32 v20, v20, v30, v31
    v_max_f32 v20, v20, v21
    v_mov_b32 v21, v20
    v_permlane16_swap_b32 v20, v21
    v_max_f32 v20, v20, v21
    v_mov_b32 v21, v20
    v_permlane32_swap_b32 v20, v21
    v_max_f32 v20, v20, v21
    v_mul_f32 v22, s36, v20""")
    if pks:
        for r in range(24, 32, 2): a(f"v_pk_fma_f32 v[{r}:{r + 1}], v[{r}:{r + 1}], s[62:63], v[22:23] op_sel:[0,0,0] op_sel_hi:[1,1,0] neg_lo:[0,0,1] neg_hi:[0,0,1]")
    else:
        for r in range(24, 32): a(f"v_fma_f32 v{r}, v{r}, s36, -v22")
    for r in range(24, 32): a(f"v_exp_f32 v{r}, v{r}")
    for k in range(4): a(f"v_cvt_pk_bf16_f32 v{32 + k}, v{24 + 2 * k}, v{25 + 2 * k}")
    if look2: a(f"ds_read_b32 v145, v1 offset:{F_LD}")
    if pks: a("""v_pk_add_f32 v[24:25], v[24:25], v[26:27]
    v_pk_add_f32 v[28:29], v[28:29], v[30:31]
    ds_write_b64 v19, v[32:33]
    v_pk_add_f32 v[24:25], v[24:25], v[28:29]
    ds_write_b64 v19, v[34:35] offset:128
    v_add_f32 v23, v24, v25""")
    else: a("""v_add_f32 v24, v24, v25
    v_add_f32 v26, v26, v27
    ds_write_b64 v19, v[32:33]
    v_add_f32 v28, v28, v29
    v_add_f32 v30, v30, v31
    ds_write_b64 v19, v[34:35] offset:128
    v_add_f32 v24, v24, v26
    v_add_f32 v28, v28, v30
    v_add_f32 v23, v24, v28""")
    a("""v_mov_b32 v21, v23
    v_permlane16_swap_b32 v23, v21
    v_add_f32 v23, v23, v21
    v_mov_b32 v21, v23
    v_permlane32_swap_b32 v23, v21
    v_add_f32 v23, v23, v21
    v_mov_b32 v21, 1
    s_mov_b64 exec, 15
    ds_write2_b32 v112, v22, v23 offset0:0 offset1:16
    s_mov_b64 exec, -1""")
    a(f"ds_write_b32 v18, v21 offset:{F_P}")
    if look2:
        lgk(4)
        a("v_readfirstlane_b32 s37, v145")
        for c in range(4):
            a(f"s_cmp_ge_u32 s38, {vflag(c)}\ns_cbranch_scc1 L_vl{c}\ns_cmp_lt_u32 s37, {vflag(c)}\ns_cbranch_scc1 L_vld")
            for u in range(4 * c, 4 * c + 4): a(vread(u))
            a(f"L_vl{c}:")
        a("L_vld:\ns_mov_b32 s38, s37")
    stamp('c', 4)
    reads = [f"ds_read_b64 v[{32 + 2 * r}:{33 + 2 * r}], v113 offset:{512 * r}" for r in range(2)]
    reads += ["ds_read2_b32 v[150:151], v13 offset0:0 offset1:16"]
    reads += [f"ds_read_b128 v[{96 + 4 * w}:{99 + 4 * w}], v144 offset:{16 * w}" for w in range(4)]
    reads += [f"ds_read_b128 v[{56 + 4 * r}:{59 + 4 * r}], v114 offset:{32 * r}" for r in range(2)]
    lds_spin(F_P, 0, reads + [f"ds_read_b32 v145, v1 offset:{F_LD}"], 'all4', 20)
    stamp('c', 5)
    fill = ["v_max_f32_dpp v146, v150, v150 quad_perm:[1,0,3,2] row_mask:0xf bank_mask:0xf"]
    fill += [f"v_max3_f32 v{96 + h}, v{96 + h}, v{100 + h}, v{104 + h}" for h in range(4)]
    fill += ["v_max_f32_dpp v146, v146, v146 quad_perm:[2,3,0,1] row_mask:0xf bank_mask:0xf"]
    fill += [f"v_max_f32 v{96 + h}, v{96 + h}, v{108 + h}" for h in range(4)]
    fill += ["v_sub_f32 v150, v150, v146"] + [f"v_sub_f32 v{56 + k}, v{56 + k}, v{96 + (k & 3)}" for k in range(8)]
    fill += ["v_exp_f32 v150, v150"] + [f"v_exp_f32 v{56 + k}, v{56 + k}" for k in range(4)] + ["v_mul_f32 v148, v150, v151"]
    fill += [f"v_exp_f32 v{60 + k}, v{60 + k}" for k in range(2)] + ["v_add_f32_dpp v148, v148, v148 quad_perm:[1,0,3,2] row_mask:0xf bank_mask:0xf"]
    fill += [f"v_exp_f32 v{62 + k}, v{62 + k}" for k in range(2)] + ["v_add_f32_dpp v148, v148, v148 quad_perm:[2,3,0,1] row_mask:0xf bank_mask:0xf"]
    def ml_pub():
        a("s_mov_b64 exec, 1")
        st2([f"buffer_store_dwordx4 v[146:149], v116, {WS}, 0 offen"], 'ml')
        a("s_mov_b64 exec, -1")
    def pv(u):
        r = u >> 3
        c = "0" if u % 8 < 2 else f"v[{40 + 8 * r + 4 * (u & 1)}:{43 + 8 * r + 4 * (u & 1)}]"
        a(f"v_mfma_f32_4x4x4_16b_bf16 v[{40 + 8 * r + 4 * (u & 1)}:{43 + 8 * r + 4 * (u & 1)}], v[{32 + 2 * r}:{33 + 2 * r}], v[{64 + 2 * u}:{65 + 2 * u}], {c} cbsz:3 abid:{u & 7}")
    a("v_readfirstlane_b32 s37, v145")
    assert len(fill) <= 32
    if mlfirst:
        chain = [f_ for f_ in fill if any(f" v{r}," in f_ for r in (146, 148)) or f_.startswith(("v_sub_f32 v150", "v_exp_f32 v150"))]
        fill = [f_ for f_ in fill if f_ not in chain]
        assert len(chain) == 7
        for f_, nf in zip(chain, (2, 0, 0, 1, 2, 2, 0)):
            a(f_)
            for _ in range(nf): a(fill.pop(0))
        ml_pub()
    a(f"s_cmp_lt_u32 s38, {vflag(3)}\ns_cbranch_scc1 L_vb\nL_vc:")
    with outofline():
        a("L_vb:")
        for c in range(4):
            a(f"s_cmp_ge_u32 s38, {vflag(c)}\ns_cbranch_scc1 L_vb{c}\ns_cmp_lt_u32 s37, {vflag(c)}\ns_cbranch_scc1 L_vbd")
            for u in range(4 * c, 4 * c + 4): a(vread(u))
            a(f"L_vb{c}:")
        a("L_vbd:\ns_waitcnt lgkmcnt(0)\ns_branch L_vc")
    for c in range(4):
        a(f"s_cmp_lt_u32 s37, {vflag(c)}\ns_cbranch_scc1 L_vw{c}\nL_vr{c}:")
        with outofline():
            a(f"L_vw{c}:")
            lds_spin(F_LD, vflag(c), [vread(u) for u in range(4 * c, 4 * c + 4)], 'ge', 20)
            a(f"s_branch L_vr{c}")
        for u in range(4 * c, 4 * c + 4):
            pv(u)
            for f_ in fill[4 * u:4 * u + 4]: a(f_)
        if c == 1 and not mlfirst: ml_pub()
    stamp('c', 6)
    a("s_nop 0")
    if pks:
        for h in (0, 2): a(f"v_pk_add_f32 v[{40 + h}:{41 + h}], v[{40 + h}:{41 + h}], v[{44 + h}:{45 + h}]")
        for h in (0, 2): a(f"v_pk_mul_f32 v[{40 + h}:{41 + h}], v[{40 + h}:{41 + h}], v[{56 + h}:{57 + h}]")
        for h in (0, 2): a(f"v_pk_add_f32 v[{48 + h}:{49 + h}], v[{48 + h}:{49 + h}], v[{52 + h}:{53 + h}]")
        for h in (0, 2): a(f"v_pk_fma_f32 v[{40 + h}:{41 + h}], v[{48 + h}:{49 + h}], v[{60 + h}:{61 + h}], v[{40 + h}:{41 + h}]")
    else:
        for h in range(4): a(f"v_add_f32 v{40 + h}, v{40 + h}, v{44 + h}")
        for h in range(4): a(f"v_mul_f32 v{40 + h}, v{40 + h}, v{56 + h}")
        for h in range(4): a(f"v_add_f32 v{48 + h}, v{48 + h}, v{52 + h}")
        for h in range(4): a(f"v_fmac_f32 v{40 + h}, v{48 + h}, v{60 + h}")
    a("""v_permlane32_swap_b32 v40, v41
    v_permlane32_swap_b32 v42, v43
    v_add_f32 v40, v40, v41
    v_add_f32 v42, v42, v43
    v_bfi_b32 v40, v125, v122, v40
    v_bfi_b32 v42, v125, v122, v42""")
    st2([f"buffer_store_dword v40, v115, {WS}, 0 offen", f"buffer_store_dword v42, v115, {WS}, s55 offen"], 'h2')
    stamp('c', 7)
    if fine:
        a("s_waitcnt vmcnt(0)"); stamp('c', 1, True)
    if 'noh2' in abl: a("s_branch L_cdone")
    LF = a.label("h2"); LG = a.label("h2g"); LD = a.label("h2d")
    woreads = [f"ds_read_b64_tr_b16 v[{80 + 4 * s + 2 * x}:{81 + 4 * s + 2 * x}], v14 offset:{4096 * s + 2048 * x}" for s in range(4) for x in range(2)]
    wdreads = [f"ds_read_b64_tr_b16 v[{48 + 4 * s + 2 * x}:{49 + 4 * s + 2 * x}], v14 offset:{L_WD - L_WO + 4096 * s + 2048 * x}" for s in range(2) for x in range(2)]
    hreads = [f"ds_read_b128 v[{56 + 4 * s}:{59 + 4 * s}], v120 offset:{L_H - L_O + 64 * s}" for s in range(2)]
    last = max(seg_flag("WO"), seg_flag("WD"))
    def payload_loads(pol=pollpol):
        for i in range(4): a(f"buffer_load_dwordx4 v[{64 + 4 * i}:{67 + 4 * i}], v117, {WS}, {'s%d' % (51 + i) if i else 0} offen {pol}")
    def payload_check(mul):
        for i in range(4):
            a(f"s_waitcnt vmcnt({3 - i})")
            strip(21, [64 + 4 * i + k for k in range(4)], first=(i == 0))
            if mul:
                for k in range(4): a(fm(i, k))
        a("v_and_b32 v21, 0xff, v21\nv_cmp_ne_u32 vcc, 0, v21\ns_and_b64 exec, vcc, vcc")
    LM = a.label("h2m"); LW = a.label("h2w"); LX = a.label("h2x")
    assert order[-2:] == ("WO", "WD") and ntail <= 8 and gate == 'T'
    a(f"s_cmp_ge_u32 s33, 28\ns_cselect_b32 s36, {last}, {seg_flag('T')}\ns_mov_b32 s37, {SPIN}")
    a("v_mov_b32 v101, s32\nv_mov_b32 v103, s32")
    def ml_loads(pol=pollpol):
        a(f"s_mov_b32 exec_hi, 0\nbuffer_load_dwordx4 v[32:35], v118, {WS}, 0 offen {pol}\ns_mov_b32 exec_hi, -1")
    def ml_check():
        a("s_mov_b32 exec_hi, 0")
        chk(20, 33, 32, first=True); chk(20, 35, 32)
        a("v_cmp_ne_u32 vcc, 0, v20\ns_mov_b32 exec_hi, -1")
    def fm(i, k):
        w = f"v[{36 + (i & 2)}:{37 + (i & 2)}]"; sel = f"op_sel:[0,{i & 1},0] op_sel_hi:[1,{i & 1},1]"
        if i == 0: return f"v_pk_mul_f32 v[{24 + k}:{25 + k}], v[{64 + k}:{65 + k}], {w} op_sel:[0,0] op_sel_hi:[1,0]"
        return f"v_pk_fma_f32 v[{24 + k}:{25 + k}], v[{64 + 4 * i + k}:{65 + 4 * i + k}], {w}, v[{24 + k}:{25 + k}] {sel}"
    def strip_ops(i):
        r = 64 + 4 * i
        return [f"s_waitcnt vmcnt({3 - i})\nv_xor_b32 v{r}, s56, v{r}"] + [f"v_xor_b32 v{r + k}, s{56 + k}, v{r + k}" for k in (1, 2, 3)] + \
               [f"v_or_b32 v28, v{r}, v{r + 1}" if i == 0 else f"v_or3_b32 v28, v28, v{r}, v{r + 1}", f"v_or3_b32 v28, v28, v{r + 2}, v{r + 3}"]
    wait_gate(20)
    stamp('c', 2, True)
    ml_loads('' if 'ml' in p1 else pollpol)
    payload_loads('' if 'h2' in p1 else pollpol if poll1 is None else poll1)
    for r in woreads: a(r)
    a("s_waitcnt vmcnt(4)")
    ml_check()
    a(f"s_cbranch_vccnz {LM}\n{LW}:")
    with outofline():
        a(f"{LM}:")
        if joint:
            def pchk():
                for r in range(64, 80): chk(28, r, 56 + (r & 3), first=(r == 64))
                a("v_and_b32 v28, 0xff, v28\nv_cmp_ne_u32 s[60:61], 0, v28")
            a("s_waitcnt vmcnt(0)")
            pchk()
            a(f"{LX}:")
            ml_loads()
            a("s_mov_b64 exec, s[60:61]")
            payload_loads()
            a("s_sub_u32 s37, s37, 1\ns_cbranch_scc1 L_end\ns_waitcnt vmcnt(0)")
            pchk()
            a("s_mov_b32 exec_lo, -1")
            ml_check()
            a(f"s_or_b64 vcc, vcc, s[60:61]\ns_cbranch_scc1 {LX}\ns_branch {LW}")
        else:
            ml_loads()
            a("s_sub_u32 s37, s37, 1\ns_cbranch_scc1 L_end\ns_waitcnt vmcnt(0)")
            ml_check()
            a(f"s_cbranch_vccnz {LM}\ns_branch {LW}")
    stamp('c', 3, True)
    st = strip_ops(0) + strip_ops(1) + strip_ops(2) + strip_ops(3)
    def red32(op, r, t):
        for n in (1, 2, 4, 8):
            a(st.pop(0)); a(st.pop(0))
            a(f"{op}_dpp v{r}, v{r}, v{r} row_ror:{n} row_mask:0xf bank_mask:0xf")
        a(f"v_mov_b32 v{t}, v{r}")
        a(st.pop(0)); a(st.pop(0))
        a(f"v_permlane16_swap_b32 v{r}, v{t}\n{op} v{r}, v{r}, v{t}")
    if not early: a("v_mov_b32 v21, v32")
    if not near: a("s_mov_b32 s43, 0")
    if early:
        for n in (1, 2, 4, 8): a(f"v_max_f32_dpp v21, v{32 if n == 1 else 21}, v{32 if n == 1 else 21} row_ror:{n} row_mask:0xf bank_mask:0xf")
        a("v_mov_b32 v22, v21\nv_permlane16_swap_b32 v21, v22\nv_max_f32 v21, v21, v22\nv_sub_f32 v32, v32, v21\nv_exp_f32 v32, v32")
        a("v_mul_f32 v22, v32, v34")
        for i in range(4): a(f"ds_bpermute_b32 v{36 + i}, v123, v32 offset:{32 * i}")
        red32("v_add_f32", 22, 23)
        a("v_rcp_f32 v22, v22")
        a(st.pop(0)); a(st.pop(0))
        a("s_waitcnt lgkmcnt(0)")
        for i in range(2): a(fm(i, 0)); a(fm(i, 2))
        a("v_readfirstlane_b32 s35, v22")
        for i in range(6): a(st.pop(0))
        a(fm(2, 0)); a(fm(2, 2))
        while st: a(st.pop(0))
        a("v_and_b32 v28, 0xff, v28")
        a(fm(3, 0))
        a("v_cmp_ne_u32 vcc, 0, v28")
        a(fm(3, 2))
    else:
        red32("v_max_f32", 21, 22)
        a("v_sub_f32 v32, v32, v21\nv_exp_f32 v32, v32")
        a(st.pop(0))
        a("v_mul_f32 v22, v32, v34")
        for i in range(4): a(f"ds_bpermute_b32 v{36 + i}, v123, v32 offset:{32 * i}")
        red32("v_add_f32", 22, 23)
        a("v_rcp_f32 v22, v22")
        while st: a(st.pop(0))
        a("v_readfirstlane_b32 s35, v22\nv_and_b32 v28, 0xff, v28\ns_waitcnt lgkmcnt(0)")
        a(fm(0, 0)); a(fm(0, 2))
        a("v_cmp_ne_u32 vcc, 0, v28")
        for i in range(1, 4): a(fm(i, 0)); a(fm(i, 2))
    stamp('c', 4, True)
    a(f"s_cbranch_vccnz {LG}\n{LD}:")
    with outofline():
        a(f"{LG}:\ns_mov_b64 exec, vcc")
        if h2sleep: a(f"s_sleep {h2sleep}")
        payload_loads()
        a("s_sub_u32 s37, s37, 1\ns_cbranch_scc1 L_end")
        for i in range(4):
            for o in strip_ops(i): a(o)
        a(f"v_and_b32 v28, 0xff, v28\nv_cmp_ne_u32 vcc, 0, v28\ns_cbranch_vccnz {LG}\ns_mov_b64 exec, -1")
        for i in range(4): a(fm(i, 0)); a(fm(i, 2))
        a(f"s_nop 1\ns_branch {LD}")
    stamp('c', 8)
    if wbl == 'h2': a("s_or_b32 s39, s5, s34\ns_cbranch_scc1 L_nwb\nbuffer_wbl2 sc1\nL_nwb:")
    ex = [f"ds_read_b64 v[28:29], v1 offset:{F_LD}"] + wdreads + hreads
    a(f"""v_permlane32_swap_b32 v24, v25
    v_permlane32_swap_b32 v26, v27
    {ex[0]}
    v_add_f32 v24, v24, v25
    v_add_f32 v26, v26, v27
    {ex[1]}
    {ex[2]}
    v_permlane16_swap_b32 v24, v26
    v_add_f32 v24, v24, v26
    {ex[3]}
    {ex[4]}
    v_add_f32_dpp v24, v24, v24 row_ror:8 row_mask:0xf bank_mask:0xf
    v_mov_b32 v21, 1
    v_mul_f32 v24, s35, v24
    {ex[5]}
    v_cvt_pk_bf16_f32 v24, v24, v24
    {ex[6]}""")
    if near: a(f"ds_read_b32 v31, v18 offset:{F_D}")
    a(f"ds_write_b16 v119, v24\nds_write_b32 v18, v21 offset:{F_O}")
    oreads = [f"ds_read_b128 v[{128 + 4 * s}:{131 + 4 * s}], v120 offset:{64 * s}" for s in range(4)]
    def mm_wd(first):
        for s in range(2): a(f"v_mfma_f32_16x16x32_bf16 v[96:99], v[{56 + 4 * s}:{59 + 4 * s}], v[{48 + 4 * s}:{51 + 4 * s}], {'0' if first and s == 0 else 'v[96:99]'}")
    def mm_wo(first):
        for s in range(4): a(f"v_mfma_f32_16x16x32_bf16 v[96:99], v[{128 + 4 * s}:{131 + 4 * s}], v[{80 + 4 * s}:{83 + 4 * s}], {'0' if first and s == 0 else 'v[96:99]'}")
    a(f"ds_read_b128 v[20:23], v1 offset:{F_O}")
    for r in oreads: a(r)
    a("s_cmp_ge_u32 s33, 28\ns_cbranch_scc1 L_noffn")
    lgk(7)
    a(f"v_cmp_gt_u32 vcc, {last}, v28\nv_cmp_eq_u32 s[62:63], 0, v29\ns_or_b64 vcc, vcc, s[62:63]\ns_cbranch_vccnz L_hw")
    mm_wd(True)
    a("s_waitcnt lgkmcnt(0)\nv_and_b32 v22, v22, v23\nv_bitop3_b32 v20, v20, v21, v22 bitop3:0x80\nv_cmp_eq_u32 vcc, 0, v20\ns_cbranch_vccnz L_ow\nL_or:")
    stamp('c', 9)
    mm_wo(False)
    a("L_mmd:")
    with outofline():
        a("L_ow:")
        lds_spin(F_O, 0, oreads, 'all4', 20)
        a("s_branch L_or\nL_noffn:")
        lds_spin(F_O, 0, oreads, 'all4', 20)
        stamp('c', 9)
        mm_wo(True)
        a("s_branch L_mmd\nL_hw:")
        lds_spin(F_O, 0, oreads, 'all4', 20)
        stamp('c', 9)
        mm_wo(True)
        a(f"s_mov_b32 s40, {SPIN}\nL_hw2:")
        for r in ex: a(r)
        a(f"s_sub_u32 s40, s40, 1\ns_cbranch_scc1 L_end\ns_waitcnt lgkmcnt(0)\nv_cmp_gt_u32 vcc, {last}, v28\nv_cmp_eq_u32 s[62:63], 0, v29\ns_or_b64 vcc, vcc, s[62:63]\ns_cbranch_vccnz L_hw2")
        mm_wd(False)
        a("s_branch L_mmd")
    if near:
        a("v_readfirstlane_b32 s43, v31\ns_cmp_eq_u32 s43, 0\ns_cbranch_scc1 L_dw\nL_dr:")
        with outofline():
            a("L_dw:")
            a(f"s_mov_b32 s40, {SPIN}\nL_dw1:\nds_read_b32 v31, v18 offset:{F_D}\ns_sub_u32 s40, s40, 1\ns_cbranch_scc1 L_end\ns_waitcnt lgkmcnt(0)")
            a("v_readfirstlane_b32 s43, v31\ns_cmp_eq_u32 s43, 0\ns_cbranch_scc1 L_dw1\ns_branch L_dr")
    stamp('c', 10)
    if h3pk: a(f"s_mov_b64 exec, 0xffff\nv_add_u32 v96, 0x80, v96\nv_bfi_b32 v96, v125, v122, v96\nbuffer_store_dword v96, v121, {WS}, s43 offen {h3st}")
    else:
        a("v_mov_b32 v100, v96\nv_mov_b32_dpp v102, v96 quad_perm:[1,1,3,3] row_mask:0xf bank_mask:0xf")
        a(f"s_mov_b64 exec, 0x5555\nbuffer_store_dwordx4 v[100:103], v121, {WS}, s43 offen {h3st}")
    if dual: a(f"buffer_store_dwordx4 v[100:103], v121, {WS}, s53 offen {h3st}")
    a("s_mov_b64 exec, -1")
    stamp('c', 11)
    if wbl == 'x0': a("s_or_b32 s39, s2, s34\ns_cbranch_scc1 L_nwb\nbuffer_wbl2 sc1\nL_nwb:")
    if wbl == 'h3': a("s_or_b32 s39, s5, s34\ns_cbranch_scc1 L_nwb\nbuffer_wbl2 sc1\nL_nwb:")
    a("s_cmp_ge_u32 s33, 28\ns_cbranch_scc0 L_cdone")
    if ncw > 1: a(f"s_cmp_ge_u32 s33, {NCONS}\ns_cbranch_scc1 L_cdone")
    if ncw < 4: a(f"s_cmp_lt_u32 s34, {ncw}\ns_cbranch_scc0 L_cdone")
    cc0(38)
    if ncw > 1: a("s_add_u32 s38, s38, s34")
    if near: a(f"ds_read_b32 v31, v1 offset:{F_IE}")
    a("s_mov_b32 s37, s38")
    inbox(35, 37)
    a("v_lshl_add_u32 v24, v0, 4, s35")
    if dual:
        lds_spin(F_IE, 1, [], 'ge', 20)
        a("v_lshrrev_b32 v20, 1, v20\nv_lshl_add_u32 v24, v20, 13, v24")
        if stamps: a("v_readfirstlane_b32 s84, v20")
    if h3pk:
        a("v_and_b32 v25, 3, v0\nv_bfe_u32 v26, v0, 4, 1\nv_lshl_add_u32 v25, v25, 1, v26\nv_lshrrev_b32 v26, 5, v0\nv_lshl_add_u32 v25, v25, 1, v26\ns_lshl_b32 s35, s38, 5\nv_lshl_add_u32 v25, v25, 1, s35")
    else: a("v_and_b32 v25, 7, v0\ns_lshl_b32 s35, s38, 5\nv_lshl_add_u32 v25, v25, 2, s35")
    srd(44, 8, 1024)
    a(f"buffer_load_{'ushort' if h3pk else 'dword'} v26, v25, s[44:47], 0 offen")
    srd(52, 26, 1024)
    if near: a("s_waitcnt lgkmcnt(0)\nv_readfirstlane_b32 s43, v31")
    L = a.label("h3"); LD = a.label("h3d")
    nh3 = 2 if h3pk else 4
    def h3issue(k):
        for i in range(nh3): a(f"buffer_load_dwordx4 v[{32 + 16 * k + 4 * i}:{35 + 16 * k + 4 * i}], v24, {WS}, s43 offen offset:{1024 * i} {h3pol}")
    a(f"s_mov_b32 s40, {SPIN}")
    if h3mask:
        h3depth = 0
        a(f"{L}:")
        h3issue(0)
        a("s_sub_u32 s40, s40, 1\ns_cbranch_scc1 L_end")
        for i in range(4):
            a(f"s_waitcnt vmcnt({3 - i})")
            chk(20, 33 + 4 * i, 32, first=(i == 0)); chk(20, 35 + 4 * i, 32)
        a(f"v_cmp_ne_u32 vcc, 0, v20\ns_and_b64 exec, vcc, vcc\ns_cbranch_scc1 {L}\ns_mov_b64 exec, -1")
        a(f"v_add_f32 v22, v32, v36\nv_add_f32 v23, v34, v38\nv_add_f32 v30, v40, v44\nv_add_f32 v31, v42, v46\ns_branch {LD}")
        L = a.label("h3x")
    for k in range(h3depth - (0 if h3cf else 1)):
        h3issue(k)
        if h3gap and k < h3depth - 1: a(f"s_sleep {h3gap}")
    a(f"{L}:")
    for k in range(h3depth):
        if not h3cf: h3issue((k + h3depth - 1) % h3depth)
        a(f"s_waitcnt vmcnt({nh3 * (h3depth - 1)})")
        b = 32 + 16 * k
        if h3pk:
            strip(20, list(range(b, b + 8)), first=True)
            a(f"v_pk_add_f32 v[28:29], v[{b}:{b + 1}], v[{b + 4}:{b + 5}]\nv_and_b32 v20, 0xff, v20\nv_pk_add_f32 v[30:31], v[{b + 2}:{b + 3}], v[{b + 6}:{b + 7}]\nv_cmp_ne_u32 vcc, 0, v20\ns_cbranch_vccz {LD}")
            if h3cf: h3issue(k)
            continue
        for r in range(b + 1, b + 16, 2): chk(20, r, 32, first=(r == b + 1))
        a(f"v_add_f32 v22, v{b}, v{b + 4}\nv_add_f32 v23, v{b + 2}, v{b + 6}\nv_cmp_ne_u32 vcc, 0, v20")
        a(f"v_add_f32 v30, v{b + 8}, v{b + 12}\nv_add_f32 v31, v{b + 10}, v{b + 14}\ns_cbranch_vccz {LD}")
        if h3cf: h3issue(k)
    a(f"s_sub_u32 s40, s40, 1\ns_cbranch_scc0 {L}\ns_branch L_end\n{LD}:")
    stamp('c', 12)
    if h3pk: a("""v_permlane32_swap_b32 v28, v29
    v_permlane32_swap_b32 v30, v31
    v_lshlrev_b32 v27, 16, v26
    v_add_f32 v28, v28, v29
    v_add_f32 v30, v30, v31
    v_permlane16_swap_b32 v28, v30
    v_add_f32 v28, v28, v30
    v_add_f32_dpp v28, v28, v28 row_ror:4 row_mask:0xf bank_mask:0xf
    s_mov_b32 s36, 0x000f000f
    v_add_f32_dpp v28, v28, v28 row_ror:8 row_mask:0xf bank_mask:0xf
    s_mov_b32 exec_lo, s36
    s_mov_b32 exec_hi, s36
    v_add_f32 v28, v28, v27
    v_cvt_pk_bf16_f32 v28, v28, v28
    buffer_store_short v28, v25, s[52:55], 0 offen """ + outpol)
    else: a("""v_add_f32 v22, v22, v30
    v_add_f32 v23, v23, v31
    v_lshlrev_b32 v27, 16, v26
    v_and_b32 v28, 0xffff0000, v26
    v_permlane32_swap_b32 v22, v23
    v_add_f32 v22, v22, v23
    v_mov_b32 v23, v22
    v_permlane16_swap_b32 v22, v23
    v_add_f32 v22, v22, v23
    v_add_f32_dpp v22, v22, v22 row_ror:8 row_mask:0xf bank_mask:0xf
    v_mov_b32 v23, v22
    v_permlane32_swap_b32 v22, v23
    v_add_f32 v22, v22, v27
    v_add_f32 v23, v23, v28
    v_cvt_pk_bf16_f32 v22, v22, v23
    s_mov_b64 exec, 0xff
    buffer_store_dword v22, v25, s[52:55], 0 offen """ + outpol)
    a(f"s_cmp_eq_u32 s38, 0\ns_cbranch_scc0 L_cdone\ns_mov_b64 exec, 1\nv_mov_b32 v25, s32\nbuffer_store_dword v25, off, {WS}, 0")
    if pcdbg:
        srd(44, 28, 256)
        a("s_getpc_b64 s[36:37]\nL_pc2:\ns_sub_u32 s36, s36, L_pc2-" + NAME + "_kernel\nv_mov_b32 v25, s36\nbuffer_store_dword v25, off, s[44:47], 0 offset:4")
        if pcdbg == 2:
            a("s_load_dwordx16 s[8:23], s[0:1], 0\ns_waitcnt lgkmcnt(0)")
            for k_, r_ in enumerate((30, 31, 26, 28, 8, 10, 12, 14, 16, 20, 22, 24, 0)): a(f"v_mov_b32 v25, s{r_}\nbuffer_store_dword v25, off, s[44:47], 0 offset:{8 + 4 * k_}")
    a("L_cdone:")
    stamp('c', 13)
    if stamps and near: a(f"s_mov_b64 exec, -1\nds_read_b32 v30, v1 offset:{F_N}\ns_waitcnt lgkmcnt(0)\nv_readfirstlane_b32 s84, v30")
    dump('c')
    a("s_endpgm")
    a.lines += cold
    a("L_end:\ns_endpgm")
    if touch: a("L_t2:\ns_branch L_comp")

    L = a.lines
    ia = L.index("L_aux:"); ic = L.index("L_comp:"); il = L.index("L_loader:")
    ib = next(i for i in range(il, ia) if L[i].strip() == ("L_split:" if xfast else "s_barrier"))
    assert oth_lines[-1].strip() == "s_branch L_comp"
    k = oth_lines.index("L_cw:")
    oth = oth_lines[:oth_lines.index("  s_cbranch_scc0 L_cw")] + ["  s_cbranch_scc1 L_aw"] + oth_lines[k + 1:] + ["L_aw:"] + oth_lines[oth_lines.index("  s_cbranch_scc0 L_cw") + 1:k - 1]
    a.lines = L[:ib + 1] + ["  s_branch L_ld2"] + oth + L[ia:ic] + ["L_ld2:"] + L[ib + 1:ia] + L[ic:]
    head = open(f"cdna_kernels/{NAME}.s.ref").read().split("; Override")[0]
    out = head + f"; Generated by gen/gen.py (hand-designed kernel; see that script for the layout notes)\n; @launch grid=(256,1,1) block=(384,1,1) lds={L_END}\n"
    out += f'.amdgcn_target "amdgcn-amd-amdhsa--gfx950"\n.text\n'
    if align: out += ".p2align 12\n.fill 0x340, 4, 0xbf800000\n"
    out += f'.globl {NAME}_kernel\n.p2align 8\n.type {NAME}_kernel,@function\n'
    out += a.text()
    out += f""".section .rodata,"a"
.p2align 6
.amdhsa_kernel {NAME}_kernel
  .amdhsa_next_free_vgpr 184
  .amdhsa_next_free_sgpr 102
  .amdhsa_accum_offset 184
  .amdhsa_group_segment_fixed_size 0
  .amdhsa_kernarg_size 96
  .amdhsa_user_sgpr_count 2
  .amdhsa_user_sgpr_kernarg_segment_ptr 1
  .amdhsa_system_sgpr_workgroup_id_x 1
  .amdhsa_float_denorm_mode_32 3
.end_amdhsa_kernel
"""
    return out

if __name__ == "__main__":
    kw = eval("dict(" + (sys.argv[2] if len(sys.argv) > 2 else "") + ")")
    open(sys.argv[1], "w").write(gen(**kw))
```

```python
import sys
from asmlib import Asm

NAME = "parallel_sum__sliding_block_cached__swiglu_ffn__decode"

L_K, L_V, L_GU, L_WO, L_WD = 0, 32768, 65536, 81920, 98304
L_WQ = 106496
L_X  = L_WQ + 16384
L_XX = L_X + 1024
L_Q  = L_XX + 2048
L_P  = L_Q + 1280
L_ML = L_P + 1024
L_O  = L_ML + 128
L_H  = L_O + 256
L_B  = L_H + 128
L_F  = L_B + 256
L_END = L_F + 96
F_LD, F_H, F_A, F_IE, F_Q, F_P, F_O, F_D, F_N = 0, 4, 8, 12, 16, 32, 48, 64, 80

W_EP  = 0
W_VOT = 0x800
W_DEC = 0xc00
W_H1  = 0x1000
W_H1B = W_H1 + 256 * 256
W_HB  = W_H1B + 256 * 256
W_ML  = W_HB + 256 * 512
W_H3  = 0x48000
W_H2  = W_H3 + 64 * 4096
assert W_ML + 32 * 512 <= W_H3 and W_H3 % 16384 == 0
W_PR  = W_H2 + 1024 * 512
W_END = W_PR + 0x40000
W_ST  = 0x400000

LOG2E = 0x3fb8aa3b
SCALE = 0x3db504f3
SPIN = 1 << 16
EPOCH_STEP = 0x9e3779b9

def gen(TH=18, stamps=False, order=("Q", "K", "V", "GU", "WO", "WD"), warm=64, warmpol="sc1 nt", NA=8, h3depth=4,
        forceslow=False, h1trig=26, probe=None, abl=(), rot=True, h3gap=2, TH2=None, mimic=True, pfpol='', h1own=False, h3warm='sc1', pre=True, spec=True, sleep=0, prio=3, h2sleep=0, hbsleep=0, boost=24, gate='T', first=True, hbfirst=False, fine=False, local=True, pollpol='sc1', h1wt=False, lazy=4, ntail=8, wt=(), warmat='V', consffn=True, THK=None, THG=None, h3mask=False, lateb=False, both=False, auxfirst=False, align=False, touch=False, hold='Q0', spf=False, pk=True, h1warm=None, dip=None, dip2=None, kearly=True, look2=False, nap0=0, nap1=0, hbwarm=None, refine=False, h3pol='sc1', h3st='sc1', h3all=False, qloop=4, gx=4, light='hi', xboost=0x55, look1=False, pks=True, xfast=True, warmst=False, gnap=0, dual=False, dnap=2, dforce=None, probe_diag=0, h3x=0, near=True, gap=0, prpol='nt', evdbg=False, vat=None, vpol='sc1', dat='V', dpol='sc1', vst='sc1', vset=1, vsh=2, wbl=None, stpol='', prew=(), warmx=None, bseg=('Q', 'K', 'V', 'GU', 'WO', 'WD'), xb2=0x55, adapt=None, poll1=None, h3cf=True, outpol='', outwarm=None, joint=False, early=True, anap=0, pcdbg=False, evpad=None, ldpol='nt', perm=None, rmul=1, woord=None, wdord=None, pace=None, h1w=True, bdem=True, h3pk=True, two=False, npf=2, m0k=False, h3at='end', remap=0, p1=(), xpol='', sweep=None, dly=None, mlfirst=True, warm0=None, ncw=1, pwpol='', h1pol=''):
    if not local: warm = 0
    a = Asm()
    WS = "s[48:51]"
    WSZ = W_ST + 256 * 512 if stamps else W_END
    diag = bool(stamps or probe)

    def stamp(role, idx, f=False):
        if dly and dly[:2] == (role, idx) and not f: a(f"s_sleep {dly[2]}")
        if fine and role == 'c' and 1 <= idx <= 6 and not f: return
        if f and not fine: return
        if probe and (idx == 0 or probe == (role, idx)):
            a(f"s_memrealtime s[{96 if idx == 0 else 98}:{97 if idx == 0 else 99}]")
            if idx == 0: a("s_waitcnt lgkmcnt(0)\ns_mov_b32 s98, s96")
        if stamps and (stamps is True or idx in (0, 13) or (stamps == 'l' and (role, idx) in (('l', 1), ('l', 7), ('l', 2), ('l', 3), ('l', 9), ('c', 11)))):
            a(f"s_memtime s[{64 + 2 * idx}:{65 + 2 * idx}]")
            if idx == 0: a("s_memrealtime s[94:95]")
            if (role, idx) in (('l', 9), ('c', 13), ('a', 9)): a("s_memrealtime s[92:93]")
    def dump(role):
        if probe and probe[0] == role:
            L = a.label("pad")
            a("s_waitcnt lgkmcnt(0)\ns_sub_u32 s98, s98, s96\ns_mul_i32 s98, s98, 3\ns_add_u32 s96, s96, s98\ns_add_u32 s96, s96, 1500")
            a(f"{L}:\ns_sleep 4\ns_memrealtime s[98:99]\ns_waitcnt lgkmcnt(0)\ns_sub_u32 s35, s98, s96\ns_cmp_lt_i32 s35, 0\ns_cbranch_scc1 {L}")
        if not stamps or (stamps == 'min' and role != 'c') or (stamps == 'l' and role == 'a'): return
        a("s_waitcnt lgkmcnt(0)")
        a(f"s_lshl_b32 s60, s2, 9\ns_lshl_b32 s61, s3, 6\ns_add_u32 s60, s60, s61\ns_add_u32 s60, s60, {W_ST}")
        a("s_mov_b64 exec, 1\nv_mov_b32 v126, s60")
        for i in range(16):
            a(f"v_mov_b32 v127, s{64 + 2 * i}\nbuffer_store_dword v127, v126, {WS}, 0 offen offset:{4 * i}")
    cold = []
    class outofline:
        def __enter__(self): self.keep = a.lines; a.lines = []
        def __exit__(self, *x): cold.extend(a.lines); a.lines = self.keep
    def srd(d, p, size):
        a(f"s_mov_b32 s{d}, s{p}\ns_and_b32 s{d + 1}, s{p + 1}, 0xffff\ns_mov_b32 s{d + 2}, {size}\ns_mov_b32 s{d + 3}, 0x20000")
    events = ["X"]
    for nm in order:
        if nm == "K" and h1trig < 32: events.append("Kpart")
        if nm in ("V", "GU", "Q"): events += [nm + "0", nm + "1", nm + "2"]
        events.append(nm)
    events.insert(len(events) - 1 if ntail <= 8 else len(events) - 2, "T")
    def seg_flag(name):
        return events.index(name) + 1
    def lgk(n):
        a(f"s_waitcnt lgkmcnt({0 if diag else n})")
    def st2(ops, name=None):
        if not local or name in wt:
            for o in ops: a(o + " sc1" if o.startswith("buffer_store") else o)
            return
        L1 = a.label("slow"); L2 = a.label("st")
        a(f"s_cmp_eq_u32 s41, 0\ns_cbranch_scc1 {L1}")
        for o in ops: a(o + " " + stpol if o.startswith("buffer_store") else o)
        a(f"{L2}:")
        with outofline():
            a(f"{L1}:\ns_nop 1")
            for o in ops: a(o + " sc1" if o.startswith("buffer_store") else o)
            a(f"s_nop 1\ns_branch {L2}")
    def lds_spin(flag_off, want, reads, kind, tmp, nap=0):
        if not spec and len(reads) > 4 and kind == 'ge':
            lds_spin(flag_off, want, [], kind, tmp)
            for r in reads: a(r)
            a("s_waitcnt lgkmcnt(0)")
            return
        L = a.label("spin")
        a(f"s_mov_b32 s40, {SPIN}\n{L}:")
        if sleep and kind == 'ge': a(f"s_sleep {sleep}")
        elif nap: a(f"s_sleep {nap}")
        a(f"ds_read_b32 v{tmp}, v1 offset:{flag_off}" if kind == 'ge' else f"ds_read_b128 v[{tmp}:{tmp + 3}], v1 offset:{flag_off}")
        for r in reads: a(r)
        a("s_sub_u32 s40, s40, 1\ns_cbranch_scc1 L_end")
        a("s_waitcnt lgkmcnt(0)")
        if kind == 'ge':
            a(f"v_cmp_gt_u32 vcc, {want}, v{tmp}")
        else:
            a(f"v_and_b32 v{tmp + 2}, v{tmp + 2}, v{tmp + 3}\nv_bitop3_b32 v{tmp}, v{tmp}, v{tmp + 1}, v{tmp + 2} bitop3:0x80")
            a(f"v_cmp_eq_u32 vcc, 0, v{tmp}")
        a(f"s_cbranch_vccnz {L}")
    def wait_gate(tmp):
        if gate == 'IE': lds_spin(F_IE, 1, [], 'ge', tmp)
        elif gate == 'S': lds_spin(F_LD, "s38", [], 'ge', tmp)
        elif gate == 'T': lds_spin(F_LD, "s36", [], 'ge', tmp, nap=gnap)
        elif gate: lds_spin(F_LD, seg_flag(gate), [], 'ge', tmp)
        a(f"s_mov_b32 s40, {SPIN}")
    def inbox(d, cc):
        m, sh = (3, 11) if h3pk else (1, 12)
        a(f"s_and_b32 s{d}, s{cc}, {m}\ns_andn2_b32 s{cc}, s{cc}, {m}\ns_lshl1_add_u32 s{d}, s{cc}, s{d}\ns_lshl_b32 s{d}, s{d}, {sh}\ns_add_u32 s{d}, s{d}, {W_H3 + h3x - (0x2000 if near else 0)}")
    def cc0(d):
        if ncw == 1: a(f"s_sub_u32 s{d}, s33, 28\ns_lshl3_add_u32 s{d}, s{d}, s6")
        else: a(f"s_sub_u32 s{d}, s33, 28\ns_mul_i32 s{d}, s{d}, {ncw}\ns_lshl2_add_u32 s{d}, s6, s{d}")
    NCONS = 28 + 4 // ncw
    def pick(r, t):
        a(f"s_bfe_u32 s{t}, s{r}, 0x80008\ns_and_b32 s{r}, s{r}, 0xff\ns_cmp_gt_u32 s{t}, s{r}\ns_cselect_b32 s{r}, 0x2000, 0")
    def tagbytes(dst, src):
        a(f"s_and_b32 s{dst}, s{src}, 0xff\ns_bfe_u32 s{dst + 1}, s{src}, 0x80008\ns_bfe_u32 s{dst + 2}, s{src}, 0x80010\ns_lshr_b32 s{dst + 3}, s{src}, 24")
    def chk(acc, r, t, first=False):
        a(f"v_xor_b32 v{acc}, s{t}, v{r}" if first else f"v_bitop3_b32 v{acc}, v{acc}, v{r}, s{t} bitop3:0xf6")
    def strip(acc, regs, first=False):
        for k, r in enumerate(regs): a(f"v_xor_b32 v{r}, s{56 + (k & 3)}, v{r}")
        for k in range(0, len(regs), 2):
            a(f"v_or_b32 v{acc}, v{regs[k]}, v{regs[k + 1]}" if first and k == 0 else f"v_or3_b32 v{acc}, v{acc}, v{regs[k]}, v{regs[k + 1]}")
    def tags():
        if not local:
            a(f"s_add_u32 s32, s32, {EPOCH_STEP:#x}\ns_mov_b32 s42, s32")
            return
        a(f"s_add_u32 s32, s32, {EPOCH_STEP:#x}\ns_getreg_b32 s42, hwreg(HW_REG_XCC_ID, 0, 4)\ns_add_u32 s42, s42, 1\ns_mul_i32 s42, s42, 0x01010101\ns_xor_b32 s42, s42, s32")

    def warm_addr():
        a(f"s_lshl_b32 s36, s4, 7\ns_add_u32 s36, s36, s5\ns_lshl_b32 s37, s36, 9\ns_add_u32 s37, s37, {W_H2}")
        a("v_lshrrev_b32 v16, 3, v0\nv_lshlrev_b32 v16, 14, v16\nv_lshl_add_u32 v16, v7, 6, v16\nv_add_u32 v16, s37, v16")
        a(f"s_lshl_b32 s37, s36, 4\ns_add_u32 s37, s37, {W_ML}\nv_and_b32 v17, 3, v0\nv_lshlrev_b32 v17, 9, v17\nv_add_u32 v17, s37, v17")
        a(f"s_lshl_b32 s36, s4, 2\ns_add_u32 s36, s36, s7\ns_lshl_b32 s36, s36, 3\ns_add_u32 s36, s36, s6\ns_lshl_b32 s36, s36, 9\ns_add_u32 s36, s36, {W_HB}")
        a("v_lshl_add_u32 v18, v7, 6, s36\nv_cmp_gt_u32 s[56:57], 40, v0\nv_cndmask_b32 v17, v17, v18, s[56:57]\nv_cmp_gt_u32 s[56:57], 32, v0\nv_cndmask_b32 v16, v17, v16, s[56:57]")
    ids = """s_and_b32 s6, s5, 7
    s_lshr_b32 s7, s5, 3"""
    if light == 'hi': pg = "s_mov_b32 s59, s4"
    else: pg = "s_lshr_b32 s59, s4, 1\ns_bitcmp" + ("0" if light == 'even' else "1") + "_b32 s4, 0\ns_cselect_b32 s33, 4, 0\ns_add_u32 s59, s59, s33"
    ids2 = pg + f"""
    s_lshl3_add_u32 s33, s7, s59
    v_mov_b32 v1, {L_F}"""
    a(f"{NAME}_kernel:")
    stamp('all', 0)
    a("s_cmp_ge_u32 s2, 256\ns_cbranch_scc1 L_end")
    if remap == 1: a("s_and_b32 s4, s2, 7\ns_lshl_b32 s4, s4, 5\ns_lshr_b32 s2, s2, 3\ns_or_b32 s2, s2, s4")
    if remap == 2: a("s_cmp_lt_u32 s2, 2\ns_cselect_b32 s4, 1, 0\ns_xor_b32 s2, s2, s4")
    a("""    s_load_dwordx16 s[8:23], s[0:1], 0
    s_load_dwordx8 s[24:31], s[0:1], 64
    v_readfirstlane_b32 s3, v0
    s_and_b32 s4, s2, 7
    s_lshr_b32 s5, s2, 3""")
    if gx: a(f"s_xor_b32 s4, s4, {gx}")
    a(ids)
    a("s_cmp_ge_u32 s3, 64\ns_cbranch_scc1 L_oth")
    a("L_loader:")
    if adapt: a("s_memtime s[60:61]")
    a(f"s_getpc_b64 s[36:37]\nL_pc:\nv_lshlrev_b32 v3, 7, v0\nglobal_load_dword v30, v3, s[36:37] {pfpol}")
    for _ in range(npf - 1): a(f"v_add_u32 v3, 0x2000, v3\nv_min_u32 v3, L_end-L_pc, v3\nglobal_load_dword v30, v3, s[36:37] {pfpol}")
    a("""v_lshlrev_b32 v2, 4, v0
    v_lshrrev_b32 v6, 3, v0
    v_and_b32 v7, 7, v0
    v_lshlrev_b32 v15, 17, v6
    v_lshl_add_u32 v15, v7, 4, v15
    s_lshl_b32 s35, s7, 13
    s_lshl3_add_u32 s35, s4, s35
    s_add_u32 s35, s35, s6
    s_lshl_b32 s39, s35, 7
    s_mov_b32 s46, 4194304
    s_mov_b32 s47, 0x20000""")
    a(f"s_movk_i32 s54, 0x400\ns_mov_b32 s55, s47\ns_mov_b32 m0, {L_X}\ns_setprio {prio}")
    if qloop: a(f"s_add_u32 s38, s39, 0x20000")
    a(f"""s_waitcnt lgkmcnt(0)
    s_mov_b32 s52, s8
    s_and_b32 s53, s9, 0xffff
    buffer_load_dwordx4 v2, s[52:55], 0 offen {xpol} lds
    s_mov_b32 m0, {L_WQ}
    s_mov_b32 s44, s14
    s_and_b32 s45, s15, 0xffff""")
    stamp('l', 1)
    if qloop: a("L_ql:")
    for i in range(qloop or 16):
        a(f"buffer_load_dwordx4 v15, s[44:47], s39 offen {ldpol} lds\ns_addk_i32 m0, 0x400\ns_addk_i32 s39, 0x2000")
    if qloop: a("s_cmp_lt_u32 s39, s38\ns_cbranch_scc1 L_ql")
    a(ids2)
    if diag: a("s_mov_b32 s3, 1")
    if boost:
        a("s_cmp_eq_u32 s6, 3\ns_cselect_b64 vcc, -1, 0")
        if xboost is not None: a(f"s_and_b32 s35, s2, 7\ns_bitcmp1_b32 {xboost}, s35\ns_cselect_b64 vcc, -1, vcc")
    if adapt: a("s_mov_b64 s[100:101], vcc")
    main_lines = a.lines; a.lines = []
    a("L_oth:\ns_lshr_b32 s3, s3, 6\nv_and_b32 v0, 63, v0")
    a(ids2)
    a("s_cmp_eq_u32 s3, 1\ns_cbranch_scc0 L_cw")
    if diag: a("s_mov_b32 s3, 0")
    a("v_lshlrev_b32 v2, 4, v0\ns_waitcnt lgkmcnt(0)\ns_load_dword s32, s[30:31], 0\ns_barrier\ns_branch L_aux")
    a("L_cw:\nv_mov_b32 v4, 0\nv_lshl_add_u32 v5, v0, 2, v1\ns_mov_b64 exec, 0xfffff\nds_write_b32 v5, v4\ns_mov_b64 exec, -1")
    a("s_waitcnt lgkmcnt(0)")
    if near:
        if vset < 4: a(f"s_cmp_lt_u32 s7, {vset}\ns_cselect_b32 s35, s3, 0\ns_cmp_eq_u32 s35, 5\ns_cbranch_scc0 L_nprb")
        else: a("s_cmp_eq_u32 s3, 5\ns_cbranch_scc0 L_nprb")
        a("s_load_dword s32, s[30:31], 0\ns_and_b32 s35, s6, 1\ns_andn2_b32 s36, s2, 63\ns_add_u32 s36, s36, s2\ns_lshl_b32 s36, s36, 7")
        srd(48, 30, WSZ)
        a(f"s_lshl_b32 s37, s35, 13\ns_add_u32 s36, s36, s37\ns_add_u32 s36, s36, {W_PR}\ns_xor_b32 s37, s36, 0x2000\ns_mov_b64 exec, 1")
        if 'nopr' in abl: a("s_cmp_ge_u32 s33, 28\ns_cbranch_scc0 L_npr2")
        a(f"buffer_load_dword v176, off, {WS}, s36 {prpol}\nbuffer_load_dword v177, off, {WS}, s37 {prpol}")
        if 'nopr' in abl: a("L_npr2:")
        a("s_getreg_b32 s37, hwreg(HW_REG_XCC_ID, 2, 1)\ns_xnor_b32 s35, s35, s37\ns_and_b32 s35, s35, 1")
        a(f"s_lshl3_add_u32 s38, s33, s6\ns_lshl_b32 s38, s38, {vsh}\ns_barrier\ns_waitcnt vmcnt(1)")
        if gap: a(f"s_sleep {gap}")
        a("s_getreg_b32 s36, hwreg(HW_REG_IB_STS, 0, 4)")
        if dforce is not None: a(f"s_mov_b32 s36, 1\ns_mov_b32 s35, {dforce}")
        a(f"s_lshl_b32 s36, s36, s35\ns_waitcnt lgkmcnt(0)\ns_add_u32 s32, s32, {EPOCH_STEP:#x}\ns_xor_b32 s36, s36, s32\nv_mov_b32 v22, s36")
        if 'nost' in abl: a("s_cmp_ge_u32 s33, 28\ns_cbranch_scc0 L_nst2")
        a(f"buffer_store_dword v22, off, {WS}, s38 offset:{W_VOT} {vst}")
        if 'nost' in abl: a("L_nst2:")
        a("s_mov_b64 exec, -1\ns_branch L_prd\nL_nprb:")
    if warm0 is not None:
        a("s_cmp_eq_u32 s3, 4\ns_cbranch_scc0 L_nw0\nv_and_b32 v7, 7, v0")
        srd(48, 30, WSZ)
        warm_addr()
        a(f"s_lshl_b32 s35, s4, 5\ns_lshl2_add_u32 s35, s6, s35\ns_add_u32 s35, s35, s7\ns_lshl_b32 s35, s35, 8\ns_add_u32 s35, s35, {W_H1}\nv_and_b32 v17, 3, v0\nv_lshl_add_u32 v17, v17, 6, s35")
        a(f"v_cmp_gt_u32 vcc, 44, v0\nv_cndmask_b32 v16, v17, v16, vcc\ns_mov_b32 exec_hi, 0xffff\nbuffer_load_dword v178, v16, {WS}, 0 offen {warm0}\ns_mov_b32 exec_hi, -1\nL_nw0:")
    a("s_barrier\nL_prd:")
    if nap0: a(f"s_sleep {nap0}")
    elif hold: lds_spin(F_LD, seg_flag(hold), [], 'ge', 20, nap=4)
    a("s_branch L_comp")
    oth_lines = a.lines; a.lines = main_lines
    TOPS = (8, 9, 14, 15, 18, 19, 28, 29)
    def k_setup_perm():
        pos = {n: 8 + b for b, n in enumerate(perm)}
        a("""v_and_b32 v2, 15, v0
        v_lshrrev_b32 v3, 4, v0
        v_xor_b32 v4, v2, v3
        v_lshlrev_b32 v4, 4, v4""")
        a(f"v_and_b32 v5, 1, v3\nv_lshlrev_b32 v5, {pos['k0']}, v5\nv_lshrrev_b32 v8, 1, v3\nv_lshl_add_u32 v5, v8, {pos['k1']}, v5")
        lo = lambda i: ((i & 1) << pos['i0']) | (((i >> 1) & 1) << pos['i1'])
        for q in range(4): a(f"v_xor_b32 v{8 + q}, {64 * q}, v4\nv_add_u32 v{8 + q}, v{8 + q}, v5")
        for i in range(8): a(f"v_add_u32 v{32 + i}, {lo(i)}, v{8 + ((i >> 1) & 3)}")
        a("s_lshl_b32 s35, s4, 24\ns_add_u32 s35, s35, 15728640")
        a("""s_add_u32 s44, s10, s35
        s_addc_u32 s45, s11, 0
        s_and_b32 s45, s45, 0xffff
        s_mov_b32 s46, 1048576
        s_add_u32 s12, s12, s35
        s_addc_u32 s13, s13, 0
        s_mov_b32 s40, 0""")
        for grp, r in ((('c0', 'c1', 'c2'), 6), (('r0', 'r1'), 7)):
            if all(pos[n] == pos[grp[0]] + b for b, n in enumerate(grp)): a(f"s_lshl_b32 s35, s{r}, {pos[grp[0]]}\ns_or_b32 s40, s40, s35")
            else:
                for b, n in enumerate(grp): a(f"s_bfe_u32 s35, s{r}, {0x10000 + b}\ns_lshl_b32 s35, s35, {pos[n]}\ns_or_b32 s40, s40, s35")
        a(f"s_mul_i32 s60, s4, {rmul}")
        a(top(0))
    def top(t):
        pos = {n: 8 + b for b, n in enumerate(perm)}
        d = TOPS[t]
        if pos['i3'] == pos['i2'] + 1 and pos['i4'] == pos['i2'] + 2:
            return f"s_and_b32 s61, s60, 7\ns_lshl_b32 s61, s61, {pos['i2']}\ns_or_b32 s{d}, s40, s61\ns_add_u32 s60, s60, 1"
        return "\n".join(f"s_bfe_u32 s61, s60, {0x10000 + b}\ns_lshl_b32 s61, s61, {pos[n]}\ns_or_b32 s{d}, s{40 if b == 0 else d}, s61" for n, b in (('i2', 0), ('i3', 1), ('i4', 2))) + "\ns_add_u32 s60, s60, 1"
    def k_setup():
        if perm: return k_setup_perm()
        a("""v_and_b32 v2, 15, v0
        v_lshrrev_b32 v3, 4, v0
        v_xor_b32 v4, v2, v3
        v_lshlrev_b32 v4, 4, v4
        v_lshlrev_b32 v5, 8, v3""")
        for i in range(4): a(f"v_xor_b32 v{8 + i}, {64 * i}, v4\nv_add_u32 v{8 + i}, v{8 + i}, v5")
        if sweep:
            a(f"s_lshl_b32 s35, s4, 24\ns_add_u32 s35, s35, 15728640\ns_mul_i32 s60, s4, {sweep[0]}\ns_add_u32 s60, s60, s5\ns_and_b32 s60, s60, 31\ns_lshl_b32 s60, s60, 10\ns_mov_b32 s40, s60\ns_mov_b32 s61, s60")
            a("s_add_u32 s44, s10, s35\ns_addc_u32 s45, s11, 0\ns_and_b32 s45, s45, 0xffff\ns_mov_b32 s46, 1048576\ns_add_u32 s12, s12, s35\ns_addc_u32 s13, s13, 0")
            return
        a("""s_lshl_b32 s35, s4, 24
        s_lshl_b32 s36, s5, 15
        s_add_u32 s35, s35, s36
        s_add_u32 s35, s35, 15728640""")
        if isinstance(rot, tuple): a(f"s_mul_i32 s40, s4, {rot[0]}\ns_mul_i32 s36, s6, {rot[1]}\ns_add_u32 s40, s40, s36\ns_mul_i32 s36, s7, {rot[2]}\ns_add_u32 s40, s40, s36\ns_and_b32 s40, s40, 7\ns_lshl_b32 s40, s40, 12")
        else: a({True: "s_lshl_b32 s40, s4, 12", False: "s_mov_b32 s40, 0", 'gc': "s_add_u32 s40, s4, s6\ns_and_b32 s40, s40, 7\ns_lshl_b32 s40, s40, 12",
           'gr': "s_lshl1_add_u32 s40, s7, s4\ns_and_b32 s40, s40, 7\ns_lshl_b32 s40, s40, 12", 'c': "s_lshl_b32 s40, s6, 12",
           'x': "s_xor_b32 s40, s4, s6\ns_lshl_b32 s40, s40, 12", 'g3': "s_mul_i32 s40, s4, 3\ns_and_b32 s40, s40, 7\ns_lshl_b32 s40, s40, 12",
           'g2': "s_lshr_b32 s40, s4, 2\ns_lshl1_add_u32 s40, s4, s40\ns_and_b32 s40, s40, 7\ns_lshl_b32 s40, s40, 12",
           'h': "s_and_b32 s40, s4, 6\ns_lshl_b32 s40, s40, 12"}[rot])
        a("""s_add_u32 s44, s10, s35
        s_addc_u32 s45, s11, 0
        s_and_b32 s45, s45, 0xffff
        s_mov_b32 s46, 32768
        s_add_u32 s12, s12, s35
        s_addc_u32 s13, s13, 0""")
    nwarm = 1 if warm and warm0 is None else 0
    def late_setup():
        a("""v_lshrrev_b32 v4, 2, v2
        v_xor_b32 v4, v4, v3
        v_lshl_add_u32 v12, v4, 6, v5
        v_and_b32 v4, 3, v0
        v_lshl_add_u32 v12, v4, 4, v12
        v_mul_u32_u24 v13, 28672, v6
        v_lshl_add_u32 v13, v7, 4, v13
        v_lshlrev_b32 v4, 1, v3
        v_xor_b32 v4, v4, v7
        v_lshlrev_b32 v4, 4, v4
        v_lshl_add_u32 v14, v6, 10, v4
        s_mul_i32 s41, s6, 229376
        s_lshl_b32 s37, s33, 7
        s_add_u32 s41, s41, s37
        s_lshl_b32 s42, s4, 19
        s_lshl_b32 s38, s7, 17
        s_add_u32 s42, s42, s38
        s_lshl_b32 s38, s6, 7
        s_add_u32 s42, s42, s38
        s_lshl_b32 s43, s33, 16
        s_add_u32 s43, s43, s38""")
        if perm:
            pos = {n: 8 + b for b, n in enumerate(perm)}
            for i in range(4): a(f"v_add_u32 v{40 + i}, {((i & 1) << pos['i0']) | ((i >> 1) << pos['i1'])}, v12")
        srd(48, 30, WSZ)
        if h3warm is not None:
            cc0(37)
            inbox(36, 37)
            a("v_lshl_add_u32 v19, v0, 6, s36")
        if warm and warm0 is None:
            warm_addr()
    def addk(r, d): return f"s_addk_i32 s{r}, {d}" if -32768 <= d < 32768 else f"s_add_u32 s{r}, s{r}, {d & 0xffffffff}"
    def seg_loads(name):
        r = []
        if name in ("K", "V"):
            base = L_K if name == "K" else L_V
            for i in range(32):
                if perm:
                    r.append((f"s_mov_b32 m0, {base + 1024 * i}", f"v{32 + (i & 7) if name == 'K' else 40 + (i & 3)}, s[44:47], s{TOPS[i >> 2]} offen", top((i >> 2) + 1) if name == 'K' and i % 4 == 1 and i < 28 else None))
                    continue
                v = f"v{8 + ((i >> 1) & 3)}" if name == "K" else "v12"
                if sweep:
                    r.append((f"s_mov_b32 m0, {base + 1024 * i}" if i % 4 == 0 else None, f"{v}, s[44:47], s40 offen offset:{1024 * (i & 3)}",
                              "s_addk_i32 s40, 0x7c00" if i % 4 < 3 else "s_mov_b32 s60, s61\ns_mov_b32 s40, s61" if i == 31 else
                              f"s_addk_i32 s60, {sweep[1] * 1024}\ns_and_b32 s60, s60, 0x7fff\ns_add_u32 s40, s60, {((i >> 2) + 1) * 131072}"))
                    continue
                r.append((f"s_mov_b32 m0, {base + 1024 * i}" if i % 4 == 0 else None, f"{v}, s[44:47], s40 offen offset:{1024 * (i & 3)}",
                          "s_addk_i32 s40, 0x1000\ns_and_b32 s40, s40, 0x7fff" if i % 4 == 3 else None))
        if name == "Q":
            for i in range(16): r.append((f"s_mov_b32 m0, {L_WQ + 1024 * i}", "v15, s[44:47], s39 offen", "s_addk_i32 s39, 0x2000"))
        if name == "GU":
            for i in range(16): r.append((f"s_mov_b32 m0, {L_GU + 1024 * i}", f"v13, s[{44 + 8 * (i & 1)}:{47 + 8 * (i & 1)}], s41 offen", "s_addk_i32 s41, 0xe00" if i & 1 else None))
        if name == "WO":
            o_ = list(woord or range(16))
            for n_, i in enumerate(o_): r.append((f"s_mov_b32 m0, {L_WO + 1024 * i}", "v14, s[44:47], s42 offen", addk(42, 0x2000 * (o_[n_ + 1] - i)) if n_ < 15 else None))
        if name == "WD":
            o_ = list(wdord or range(8))
            for n_, i in enumerate(o_): r.append((f"s_mov_b32 m0, {L_WD + 1024 * i}", "v14, s[44:47], s43 offen", addk(43, 0x2000 * (o_[n_ + 1] - i)) if n_ < 7 else None))
        return r
    def seg_setup(name):
        if name == "K": k_setup()
        if name == "V": srd(44, 12, 1048576 if perm or sweep else 32768)
        if name == "GU": srd(44, 20, 1835008); srd(52, 22, 1835008)
        if name == "GU" and xb2 is not None: a(f"s_and_b32 s35, s2, 7\ns_bitcmp1_b32 {xb2}, s35\ns_cselect_b64 {'s[100:101]' if adapt else 'vcc'}, -1, 0")
        if name == "WO": srd(44, 16, 4194304)
        if name == "WD": srd(44, 24, 1835008)
    def signal(f):
        a(f"v_mov_b32 v20, {f}\nds_write_b32 v1, v20 offset:{F_LD}")
        if events[f - 1] in order: stamp('l', 1 + order.index(events[f - 1]) if events[f - 1] != 'Q' else 7)
        if adapt and events[f - 1] in adapt:
            a(f"s_memtime s[62:63]\ns_waitcnt lgkmcnt(0)\ns_sub_u32 s62, s62, s60\ns_cmp_gt_u32 s62, {int(adapt[events[f - 1]] * 2.26)}\ns_cselect_b64 vcc, -1, s[100:101]")
    def emit(segs, n0, pend, final, THX=None):
        n = n0
        for name in segs:
            seg_setup(name)
            th = TH if name in ("Q", "K", "V") or TH2 is None else TH2
            if name in ("Q", "K") and THK: th = THK
            if name == "GU" and THG: th = THG
            lo = seg_loads(name)
            if THX: th = THX
            th0 = th
            if name == "Q":
                for c in range(4): pend.append((n + 4 * c + 4, seg_flag("Q" + (str(c) if c < 3 else ""))))
                n += 16
                continue
            if m0k:
                ms = [(i_, int(x[0].split(",")[1])) for i_, x in enumerate(lo) if x[0]]
                for (i0, v0_), (i1, v1_) in zip(ms, ms[1:]):
                    p_ = lo[i1 - 1]
                    lo[i1 - 1] = (p_[0], p_[1], (p_[2] + "\n" if p_[2] else "") + f"s_addk_i32 m0, {v1_ - v0_}")
                    lo[i1] = (None,) + lo[i1][1:]
            for idx, (m0, ad, inc) in enumerate(lo):
                if m0: a(m0)
                th = th0
                for d_ in (dip, dip2):
                    if d_ and d_[0] <= n < d_[1]: th = d_[2]
                if n == (THK or TH) + npre:
                    a("s_barrier")
                    if xfast:
                        a(f"s_waitcnt vmcnt({n - npre})")
                        signal(pend.pop(0)[1])
                    else: late_setup()
                    a("L_split:")
                    if two and not THX:
                        late_setup()
                        a("s_cbranch_vccnz L_wide")
                if xfast and n == (THK or TH) + npre + 4 and not two: late_setup()
                if n >= th and n >= (THK or TH) + npre:
                    sig = pend and pend[0][0] <= n - (th - 1)
                    if boost and not two and name in bseg and not sig and th == th0:
                        L = a.label("bo")
                        a(f"s_cbranch_vccnz {L}\ns_waitcnt vmcnt({th - 1})\n{L}:\ns_waitcnt vmcnt({boost - 1})")
                    else:
                        a(f"s_waitcnt vmcnt({th - 1})")
                    while pend and pend[0][0] <= n - (th - 1):
                        signal(pend.pop(0)[1])
                if pace and n >= th: a(pace)
                a(f"buffer_load_dwordx4 {ad} {ldpol} lds")
                if inc: a(inc)
                n += 1
                if name in ("V", "GU", "Q") and (idx + 1) % (len(lo) // 4) == 0 and idx + 1 < len(lo):
                    pend.append((n, seg_flag(name + str((idx + 1) // (len(lo) // 4) - 1))))
                if name == "K" and h1trig < 32 and idx + 1 == h1trig: pend.append((n, seg_flag("Kpart")))
            pend.append((n, seg_flag(name)))
            if name == "Q" and h1warm is not None:
                srd(52, 30, WSZ)
                a(f"s_lshl_b32 s35, s4, 5\ns_lshl_b32 s36, s6, 2\ns_add_u32 s35, s35, s36\ns_add_u32 s35, s35, s7\ns_lshl_b32 s35, s35, 8\ns_add_u32 s35, s35, {W_H1}")
                a(f"v_lshlrev_b32 v23, 6, v0\ns_mov_b64 exec, 15\nbuffer_load_dword v24, v23, s[52:55], s35 offen {h1warm}\ns_mov_b64 exec, -1")
                n += 1
            if name == warmat:
                if nwarm and warmx:
                    a(f"s_mov_b32 exec_lo, {warmx & 0xffffffff}\ns_mov_b32 exec_hi, {warmx >> 32}\nbuffer_load_dword v21, v16, {WS}, 0 offen {warmpol}\ns_mov_b64 exec, -1")
                    n += 1
                elif nwarm:
                    a(f"s_mov_b32 exec_hi, {0xfff if hbwarm is None else 0xf00}\n" + (f"v_mov_b32 v21, 0\nbuffer_store_dword v21, v16, {WS}, 0 offen" if warmst else f"buffer_load_dword v21, v16, {WS}, 0 offen {warmpol}") + "\ns_mov_b32 exec_hi, -1")
                    n += 1
                    if hbwarm:
                        a(f"s_mov_b32 exec_lo, 0\ns_mov_b32 exec_hi, 0xff\nbuffer_load_dword v21, v16, {WS}, 0 offen {hbwarm}\ns_mov_b64 exec, -1")
                        n += 1
                if h3warm is not None and not consffn:
                    a(f"buffer_load_dword v22, v19, {WS}, 0 offen {h3warm}")
                    n += 1
        if final:
            pend.append((n - ntail, seg_flag("T"))); pend.sort()
            pend[:] = sorted(set((e, len(events) if e == n else max(f for (e2, f) in pend if e2 <= e)) for (e, f) in pend))
            if gate == 'IE': a(f"v_mov_b32 v20, 1\nds_write_b32 v1, v20 offset:{F_IE}")
            stamp('l', 8)
            while pend:
                e, f = pend.pop(0)
                a(f"s_waitcnt vmcnt({n - e})")
                signal(f)
                if events[f - 1] == "T": stamp('l', 5)
        return n
    assert order[0] == "Q" and 16 <= (THK or TH) < 48
    npre = npf + 1
    ffn = ("GU", "WD")
    k = min(order.index(x) for x in ffn)
    if two:
        keep = a.lines; a.lines = []
        pend = [(npre, seg_flag("X"))]
        n = emit(order[:k], npre, pend, False, boost)
        a.lines = a.lines[a.lines.index("L_split:") + 1:]
        a("s_cmp_ge_u32 s33, 28\ns_cbranch_scc1 L_ldb2")
        emit(order[k:], n, list(pend), True, boost)
        a("s_branch L_lde\nL_ldb2:")
        emit([x for x in order[k:] if x not in ffn], n, list(pend), True, boost)
        a("s_branch L_ldw")
        wide = a.lines; a.lines = keep
    pend = [(npre, seg_flag("X"))]
    n = emit(order[:k], npre, pend, False)
    a("s_cmp_ge_u32 s33, 28\ns_cbranch_scc1 L_ldb")
    emit(order[k:], n, list(pend), True)
    a("s_branch L_lde\nL_ldb:")
    emit([x for x in order[k:] if x not in ffn], n, list(pend), True)
    a("L_ldw:")
    if outwarm is not None:
        srd(52, 26, 1024)
        a(f"s_sub_u32 s37, s33, 28\ns_lshl3_add_u32 s37, s37, s6\ns_lshl_b32 s37, s37, 5\ns_mov_b64 exec, 1\nbuffer_load_dword v23, off, s[52:55], s37 {outwarm}\ns_mov_b64 exec, -1")
    if h3warm is not None and near and h3at != 'end': pass
    elif h3warm is not None and near:
        a(f"ds_read_b32 v22, v1 offset:{F_IE}\ns_waitcnt lgkmcnt(0)\nv_readfirstlane_b32 s36, v22\ns_cmp_eq_u32 s36, 0\ns_cbranch_scc1 L_lde")
        if h3pk and ncw == 1: a("s_mov_b32 exec_hi, 0")
        a(f"buffer_load_dword v22, v19, {WS}, s36 offen {h3warm}")
        if ncw == 4: a(f"s_addk_i32 s36, 0x1000\nbuffer_load_dword v22, v19, {WS}, s36 offen {h3warm}")
    elif h3warm is not None and consffn: a(f"buffer_load_dword v22, v19, {WS}, 0 offen {h3warm}")
    if dual:
        a(f"s_movk_i32 s36, 0x2000\nbuffer_load_dword v23, v19, {WS}, s36 offen {h3warm}\ns_waitcnt vmcnt(1)\ns_sleep {dnap}\ns_getreg_b32 s36, hwreg(HW_REG_IB_STS, 0, 4)")
        a(f"s_cmp_eq_u32 s36, 0\ns_cselect_b32 s36, 2, 1")
        if dforce: a(f"s_mov_b32 s36, {dforce}")
        a(f"v_mov_b32 v20, s36\nds_write_b32 v1, v20 offset:{F_IE}")
    if touch: a("s_branch L_lde\nL_t1:\ns_branch L_t2")
    a("L_lde:")
    stamp('l', 9)
    dump('l')
    a("s_endpgm")
    if two:
        a("L_wide:")
        a.lines += wide

    a("L_aux:")
    if 'noa' in abl: a("s_branch L_adone")
    stamp('a', 1)
    srd(48, 30, WSZ)
    a("v_lshrrev_b32 v3, 3, v0\nv_and_b32 v4, 7, v0")
    a("""v_and_b32 v6, 1, v0
    v_lshlrev_b32 v6, 4, v6
    v_mov_b32 v7, 0xffff
    v_lshlrev_b32 v6, v6, v7
    v_bfe_u32 v7, v0, 1, 2""")
    for d in range(4): a(f"v_cmp_eq_u32 vcc, {d}, v7\nv_cndmask_b32 v{12 + d}, 0, v6, vcc")
    a(f"v_lshlrev_b32 v6, 5, v0\nv_add_u32 v6, {L_XX}, v6")
    a(f"s_lshl_b32 s35, s7, 9\ns_add_u32 s35, s35, {L_XX}\nv_lshl_add_u32 v7, v3, 6, s35")
    a(f"v_add_u32 v25, {L_X}, v2")
    lds_spin(F_LD, seg_flag("X"), ["ds_read_b128 v[8:11], v25"], 'ge', 24)
    stamp('a', 2)
    for k in range(4): a(f"v_lshlrev_b32 v{16 + 2 * k}, 16, v{8 + k}\nv_and_b32 v{17 + 2 * k}, 0xffff0000, v{8 + k}")
    def wave_sum(r, t):
        for n in (8, 4, 2, 1): a(f"v_add_f32_dpp v{r}, v{r}, v{r} row_ror:{n} row_mask:0xf bank_mask:0xf")
        a(f"v_mov_b32 v{t}, v{r}\nv_permlane16_swap_b32 v{r}, v{t}\nv_add_f32 v{r}, v{r}, v{t}")
        a(f"v_mov_b32 v{t}, v{r}\nv_permlane32_swap_b32 v{r}, v{t}\nv_add_f32 v{r}, v{r}, v{t}")
    a("""v_add_f32 v24, v16, v17
    v_add_f32 v25, v18, v19
    v_add_f32 v26, v20, v21
    v_add_f32 v27, v22, v23
    v_add_f32 v24, v24, v25
    v_add_f32 v26, v26, v27
    v_add_f32 v24, v24, v26""")
    wave_sum(24, 25)
    a("v_mul_f32 v24, 0x3b000000, v24")
    for k in range(8): a(f"v_sub_f32 v{32 + k}, v{16 + k}, v24")
    a("v_mul_f32 v26, v32, v32\nv_mul_f32 v27, v33, v33")
    for k in range(2, 8): a(f"v_fmac_f32 v{26 + (k & 1)}, v{32 + k}, v{32 + k}")
    a("v_add_f32 v26, v26, v27\nv_cvt_pk_bf16_f32 v24, 0, v24")
    wave_sum(26, 25)
    for k in range(8): a(f"v_sub_f32 v{16 + k}, v{16 + k}, v24")
    a("""v_mul_f32 v26, 0x3b000000, v26
    v_cvt_pk_bf16_f32 v26, 0, v26
    v_add_f32 v26, 0x3727c5ac, v26
    v_cvt_pk_bf16_f32 v26, 0, v26
    v_sqrt_f32 v26, v26""")
    for k in range(8): a(f"v_cvt_pk_bf16_f32 v{16 + k}, 0, v{16 + k}")
    a("v_cvt_pk_bf16_f32 v26, 0, v26\nv_rcp_f32 v27, v26")
    for k in range(8): a(f"v_mul_f32 v{32 + k}, v{16 + k}, v27")
    for k in range(8): a(f"v_fma_f32 v{16 + k}, -v{32 + k}, v26, v{16 + k}")
    for k in range(8): a(f"v_fmac_f32 v{32 + k}, v{16 + k}, v27")
    for k in range(8): a(f"v_cvt_pk_bf16_f32 v{32 + k}, v{32 + k}, v{32 + k}")
    a("ds_write_b128 v6, v[32:35]\nds_write_b128 v6, v[36:39] offset:16")
    for k in range(4): a(f"ds_read_b128 v[{16 + 4 * k}:{19 + 4 * k}], v7 offset:{16 * k}")
    a("""v_lshlrev_b32 v5, 5, v4
    v_bfe_u32 v6, v0, 4, 1
    v_lshl_add_u32 v5, v6, 4, v5
    v_mov_b32 v61, v5
    v_lshrrev_b32 v6, 5, v0
    v_lshl_add_u32 v5, v6, 3, v5
    s_lshl_b32 s35, s4, 5
    s_lshl_b32 s36, s6, 2
    s_add_u32 s35, s35, s36
    s_add_u32 s35, s35, s7
    s_lshl_b32 s35, s35, 8""")
    a(f"s_add_u32 s35, s35, {W_H1}\nv_add_u32 v9, s35, v61\nv_mov_b32 v56, 0xff\ns_mov_b32 s43, {W_H1B - W_H1}")
    a("s_waitcnt lgkmcnt(0)")
    stamp('a', 3)
    tags()
    a("v_mov_b32 v57, s42\nv_lshrrev_b32 v58, 8, v57\nv_lshrrev_b32 v59, 16, v57\nv_lshrrev_b32 v60, 24, v57")
    a(f"v_add_u32 v11, {L_WQ}, v2")
    for i in range(16):
        for d in range(4): a(f"v_and_b32 v{128 + 4 * (i & 7) + d}, v{16 + i}, v{12 + d}")
        if i == 7 or i == 11 or i == 15:
            for c in ((0, 1) if i == 7 else (2,) if i == 11 else (3,)):
                lds_spin(F_LD, seg_flag("Q" + (str(c) if c < 3 else "")), [f"ds_read_b128 v[{64 + 4 * k}:{67 + 4 * k}], v11 offset:{1024 * k}" for k in range(4 * c, 4 * c + 4)], 'ge', 62)
                for k in range(4 * c, 4 * c + 4):
                    a(f"v_mfma_f32_16x16x32_bf16 v[32:35], v[{128 + 4 * (k & 7)}:{131 + 4 * (k & 7)}], v[{64 + 4 * k}:{67 + 4 * k}], {'0' if k == 0 else 'v[32:35]'}")
    stamp('a', 4)
    a("""v_permlane32_swap_b32 v32, v34
    v_permlane32_swap_b32 v33, v35
    v_add_f32_dpp v48, v34, v32 row_shl:8 row_mask:0xf bank_mask:0xf
    v_add_f32_dpp v49, v35, v33 row_shl:8 row_mask:0xf bank_mask:0xf
    v_add_u32 v48, 0x80, v48
    v_add_u32 v49, 0x80, v49
    v_mov_b32 v50, v48
    v_mov_b32 v51, v49
    v_permlane32_swap_b32 v48, v50
    v_permlane32_swap_b32 v49, v51
    s_mov_b64 exec, 0x00ff00ff""")
    for k in range(4): a(f"v_bfi_b32 v{52 + k}, v56, v{57 + k}, v{48 + k}")
    a(f"buffer_store_dwordx4 v[52:55], v9, {WS}, 0 offen" + (" " + h1pol if local and not h1wt else " sc1"))
    if bdem and local: a(f"ds_write_b128 v61, v[48:51] offset:0\n".replace("v61,", "v62,").replace("ds_write", f"v_add_u32 v62, {L_B}, v61\nds_write"))
    elif 'noh1b' not in abl and local:
        a("v_mov_b32 v57, s32\nv_lshrrev_b32 v58, 8, v57\nv_lshrrev_b32 v59, 16, v57\nv_lshrrev_b32 v60, 24, v57")
        for k in range(4): a(f"v_bfi_b32 v{160 + k}, v56, v{57 + k}, v{48 + k}")
        if lateb: a("v_mov_b32 v164, v9")
        else: a(f"buffer_store_dwordx4 v[160:163], v9, {WS}, s43 offen sc1")
    a(f"s_mov_b64 exec, -1\nv_mov_b32 v20, 1\nds_write_b32 v1, v20 offset:{F_A}")
    stamp('a', 5)
    a("L_aux2:")
    def dec_load(pol):
        a(f"s_mov_b64 exec, 1\nbuffer_load_dwordx4 v[44:47], off, {WS}, s33 offset:{W_DEC} {pol}\ns_mov_b64 exec, -1")
    def dec_first():
        a("s_not_b32 s37, s32\nv_mov_b32 v44, s37\ns_lshl_b32 s33, s6, 4")
        lds_spin(F_LD, seg_flag(dat), [], 'ge', 28, nap=lazy)
        dec_load(dpol)
    def dec_use(tag, cnt):
        a(f"s_mov_b32 s40, {SPIN}\ns_waitcnt vmcnt({cnt})\nL_vc0{tag}:\ns_mov_b64 exec, 1")
        for k in range(4): a(f"v_xor_b32 v{44 + k}, s32, v{44 + k}")
        a("s_movk_i32 s39, 0x2000\nv_or_b32 v41, v44, v45\nv_or3_b32 v41, v41, v46, v47\nv_cmp_lt_u32 vcc, 1, v41")
        for k in range(4): a(f"v_lshlrev_b32 v{44 + k}, v{44 + k}, s39")
        a(f"s_cbranch_vccnz L_vc1{tag}\nds_write_b128 v1, v[44:47] offset:{F_D}\ns_mov_b64 exec, -1")
        with outofline():
            a(f"L_vc1{tag}:\ns_waitcnt vmcnt(0)")
            dec_load('sc1')
            a(f"s_sub_u32 s40, s40, 1\ns_cbranch_scc1 L_end\ns_waitcnt vmcnt(0)\ns_branch L_vc0{tag}")
    a("s_cmp_ge_u32 s33, 28\ns_cbranch_scc1 " + ("L_probe" if probe_diag else "L_dec" if near else "L_adone"))
    if near:
        with outofline():
            a("L_dec:")
            if ncw > 1: a(f"s_cmp_ge_u32 s33, {NCONS}\ns_cbranch_scc1 L_dec2")
            if vat: lds_spin(F_LD, seg_flag(vat), [], 'ge', 28, nap=lazy)
            nvc = 1 if (vset, vsh) == (1, 2) else 4
            if nvc == 1: a(f"v_lshlrev_b32 v41, 2, v0\nbuffer_load_dword v44, v41, {WS}, 0 offen offset:{W_VOT} {vpol}")
            else: a(f"buffer_load_dwordx4 v[44:47], v2, {WS}, 0 offen offset:{W_VOT} {vpol}")
            cc0(35)
            a("s_lshl_b32 s35, s35, 2\ns_waitcnt vmcnt(0)")
            for k in range(nvc):
                a(f"v_xor_b32 v41, s32, v{44 + k}")
                for c in range(2):
                    a(f"v_cmp_eq_u32 vcc, {c + 1}, v41\ns_bcnt1_i32_b64 s{(36 if k == 0 else 38) + c}, vcc")
                if k: a("s_add_u32 s36, s36, s38\ns_add_u32 s37, s37, s39")
            a("s_cmp_gt_u32 s37, s36\ns_cselect_b32 s38, 0, 1\ns_getreg_b32 s39, hwreg(HW_REG_XCC_ID, 2, 1)\ns_xor_b32 s39, s39, s38")
            a(f"s_xor_b32 s38, s39, s32\ns_lshl_b32 s39, 0x2000, s39\nv_mov_b32 v41, s39\nv_mov_b32 v42, s38\nds_write_b32 v1, v41 offset:{F_IE}")
            a(f"v_lshlrev_b32 v43, 2, v0\ns_mov_b64 exec, {(1 << ncw) - 1}\nbuffer_store_dword v42, v43, {WS}, s35 offen offset:{W_DEC} sc1\ns_mov_b64 exec, -1")
            if stamps or evdbg: a(f"s_lshl_b32 s37, s37, 8\ns_add_u32 s36, s36, s37\nv_mov_b32 v41, s36\nds_write_b32 v1, v41 offset:{F_N}")
            if evdbg:
                srd(44, 28, 256)
                a(f"s_getreg_b32 s37, hwreg(HW_REG_XCC_ID, 0, 4)\ns_lshl_b32 s37, s37, 24\ns_add_u32 s36, s36, s37\nv_mov_b32 v41, s36\nv_mov_b32 v42, s35\nbuffer_store_dword v41, v42, s[44:47], 0 offen")
            if h3at != 'end':
                if h3at != 'dec': lds_spin(F_LD, seg_flag(h3at), [], 'ge', 28, nap=lazy)
                a("s_lshr_b32 s37, s35, 2")
                inbox(38, 37)
                a(f"v_lshl_add_u32 v42, v0, 6, s38\n" + ("s_mov_b32 exec_hi, 0\n" if h3pk else "") + f"buffer_load_dword v43, v42, {WS}, s39 offen {h3warm}\ns_mov_b64 exec, -1")
            if evpad:
                a({'max': "s_max_u32 s60, s36, s37", 'min': "s_min_u32 s60, s36, s37", 'ev0': "s_mov_b32 s60, s36", 'ev1': "s_mov_b32 s60, s37"}[evpad])
            a("L_dec2:")
            dec_first()
            dec_use('a', 0)
            if evpad:
                a("s_memrealtime s[62:63]\ns_waitcnt lgkmcnt(0)\ns_mul_i32 s60, s60, 200\ns_add_u32 s60, s60, s62\ns_add_u32 s60, s60, 2000")
                a("L_evp:\ns_sleep 4\ns_memrealtime s[62:63]\ns_waitcnt lgkmcnt(0)\ns_sub_u32 s35, s62, s60\ns_cmp_lt_i32 s35, 0\ns_cbranch_scc1 L_evp")
            a("s_branch L_adone")
    if probe_diag:
        with outofline():
            a(f"L_probe:\ns_sub_u32 s35, s33, 28\ns_lshl3_add_u32 s35, s35, s6\ns_lshr_b32 s36, s35, 2\ns_lshl_b32 s36, s36, 14\ns_and_b32 s35, s35, 3\ns_lshl_b32 s35, s35, 10\ns_add_u32 s36, s36, s35\ns_add_u32 s36, s36, {W_PR}")
            if probe_diag == 3:
                lds_spin(F_LD, seg_flag("Kpart"), [], 'ge', 28, nap=2)
                a("s_mul_i32 s36, s6, 768\ns_add_u32 s36, s36, 0x14000")
            for t in range(12):
                a(f"s_memtime s[56:57]\ns_waitcnt lgkmcnt(0)\ns_load_dword s58, s[30:31], s36 offset:{(t >> 1) * 128 + (t & 1) * 8192}{' glc' if probe_diag == 2 else ''}\ns_waitcnt lgkmcnt(0)\ns_memtime s[60:61]\ns_waitcnt lgkmcnt(0)\ns_sub_u32 s{66 + 2 * t}, s60, s56")
            a("s_memtime s[90:91]\ns_branch L_adump")
    if 'noffn' in abl: a("s_branch L_adone")
    a(f"s_lshl_b32 s35, s6, 8\ns_add_u32 s35, s35, {L_XX}\nv_lshl_add_u32 v7, v3, 5, s35")
    a("ds_read_b128 v[16:19], v7\nds_read_b128 v[20:23], v7 offset:16")
    a(f"s_lshl_b32 s35, s4, 2\ns_add_u32 s35, s35, s7\ns_lshl_b32 s35, s35, 12\ns_add_u32 s35, s35, {W_HB}")
    a("v_add_u32 v10, s35, v2\ns_lshl_b32 s36, s6, 9\ns_add_u32 s35, s35, s36\nv_lshl_add_u32 v9, v5, 1, s35")
    a(f"v_add_u32 v11, {L_GU}, v2")
    a("""v_bfe_u32 v8, v0, 4, 1
    v_lshlrev_b32 v8, 6, v8
    v_bfe_u32 v6, v0, 1, 2
    v_lshl_add_u32 v8, v6, 4, v8
    v_bfe_u32 v6, v0, 3, 1
    v_lshl_add_u32 v8, v6, 3, v8
    v_and_b32 v6, 1, v0
    v_lshl_add_u32 v8, v6, 2, v8
    v_lshrrev_b32 v6, 5, v0
    v_lshl_add_u32 v8, v6, 1, v8""")
    a(f"v_add_u32 v8, {L_H}, v8")
    tagbytes(56, 32)
    for k in range(4): a(f"v_mov_b32 v{57 + k}, s{56 + k}")
    a("s_waitcnt lgkmcnt(0)")
    for i in range(8):
        for d in range(4): a(f"v_and_b32 v{128 + 4 * i + d}, v{16 + i}, v{12 + d}")
    if 'hb' in prew:
        for k in range(4): a(f"v_not_b32 v{48 + k}, v{57 + k}")
        a(f"s_mov_b32 exec_lo, 0x00ff00ff\ns_mov_b32 exec_hi, 0x00ff00ff\nbuffer_store_dwordx4 v[48:51], v9, {WS}, 0 offen {pwpol}\ns_mov_b64 exec, -1")
    if near: dec_first()
    for c in range(4):
        rd = [f"ds_read_b128 v[{64 + 4 * i}:{67 + 4 * i}], v11 offset:{1024 * i}" for i in range(4 * c, 4 * c + 4)]
        if c == 3: rd.append(f"ds_read_b128 v[24:27], v1 offset:{F_Q}")
        if c == 0 and lazy: lds_spin(F_LD, seg_flag("V"), [], 'ge', 28, nap=lazy)
        lds_spin(F_LD, seg_flag("GU" + (str(c) if c < 3 else "")), rd, 'ge', 28)
        if c == 3: stamp('a', 6)
        for i in range(2 * c, 2 * c + 2):
            for m in range(2):
                cc = "0" if i == 0 else f"v[{32 + 4 * m}:{35 + 4 * m}]"
                a(f"v_mfma_f32_16x16x32_bf16 v[{32 + 4 * m}:{35 + 4 * m}], v[{128 + 4 * i}:{131 + 4 * i}], v[{64 + 8 * i + 4 * m}:{67 + 8 * i + 4 * m}], {cc}")
    a("v_and_b32 v26, v26, v27\nv_bitop3_b32 v24, v24, v25, v26 bitop3:0x80\nv_readfirstlane_b32 s41, v24\ns_and_b32 s41, s41, 2")
    a("""v_permlane32_swap_b32 v32, v34
    v_permlane32_swap_b32 v33, v35
    v_permlane32_swap_b32 v36, v38
    v_permlane32_swap_b32 v37, v39
    v_add_f32_dpp v48, v34, v32 row_shl:8 row_mask:0xf bank_mask:0xf
    v_add_f32_dpp v50, v35, v33 row_shl:8 row_mask:0xf bank_mask:0xf
    v_add_f32_dpp v49, v38, v36 row_shl:8 row_mask:0xf bank_mask:0xf
    v_add_f32_dpp v51, v39, v37 row_shl:8 row_mask:0xf bank_mask:0xf
    s_mov_b32 exec_lo, 0x00ff00ff
    s_mov_b32 exec_hi, 0x00ff00ff""")
    for k in range(4): a(f"v_add_u32 v{48 + k}, 0x80, v{48 + k}")
    for k in range(4): a(f"v_bfi_b32 v{48 + k}, v56, v{57 + k}, v{48 + k}")
    st2([f"buffer_store_dwordx4 v[48:51], v9, {WS}, 0 offen"], 'hb')
    a("s_mov_b64 exec, -1")
    stamp('a', 7)
    if near: dec_use('b', 1)
    L = a.label("hb")
    a(f"s_mov_b32 s38, {max(seg_flag('WO'), seg_flag('WD'))}\ns_mov_b32 s36, {seg_flag('T')}\ns_mov_b32 s39, {0 if hbfirst else 1}")
    if 'hb' in p1:
        wait_gate(28)
        for i in range(4): a(f"buffer_load_dwordx4 v[{64 + 4 * i}:{67 + 4 * i}], v10, {WS}, 0 offen offset:{1024 * i}")
        a("L_hbin:")
        with outofline():
            a(f"{L}:")
            for i in range(4): a(f"buffer_load_dwordx4 v[{64 + 4 * i}:{67 + 4 * i}], v10, {WS}, 0 offen offset:{1024 * i} {pollpol}")
            a("s_sub_u32 s40, s40, 1\ns_cbranch_scc0 L_hbin\ns_branch L_end")
    else:
        a(f"s_mov_b32 s40, {SPIN}\n{L}:")
        if gate:
            a("s_cmp_eq_u32 s39, 1\ns_cbranch_scc0 L_hbg")
            wait_gate(28)
            if anap: a(f"s_sleep {anap}")
            a("L_hbg:\ns_add_u32 s39, s39, 1")
        for i in range(4): a(f"buffer_load_dwordx4 v[{64 + 4 * i}:{67 + 4 * i}], v10, {WS}, 0 offen offset:{1024 * i} {pollpol}")
        a("s_sub_u32 s40, s40, 1\ns_cbranch_scc1 L_end")
    for i in range(4):
        a(f"s_waitcnt vmcnt({3 - i})")
        strip(20, [64 + 4 * i + k for k in range(4)], first=(i == 0))
        if i:
            for k in range(4): a(f"v_add_f32 v{64 + k}, v{64 + k}, v{64 + 4 * i + k}")
    a(f"v_and_b32 v20, 0xff, v20\nv_cmp_ne_u32 vcc, 0, v20")
    if hbsleep: a(f"s_cbranch_vccz L_hbok\ns_sleep {hbsleep}\ns_branch {L}\nL_hbok:")
    else: a(f"s_cbranch_vccnz {L}")
    stamp('a', 8)
    a(f"""v_permlane32_swap_b32 v64, v66
    v_permlane32_swap_b32 v65, v67
    v_add_f32 v64, v64, v66
    v_add_f32 v66, v65, v67
    v_cvt_pk_bf16_f32 v64, 0, v64
    v_cvt_pk_bf16_f32 v66, 0, v66
    v_mul_f32 v20, {(LOG2E | 0x80000000):#x}, v64
    v_exp_f32 v20, v20
    v_add_f32 v20, 1.0, v20
    v_rcp_f32 v21, v20
    v_mul_f32 v22, v64, v21""")
    if refine: a("""v_fma_f32 v23, -v22, v20, v64
    v_fma_f32 v23, v23, v21, v22
    v_cmp_class_f32 vcc, v23, 3
    v_cndmask_b32 v22, v23, v22, vcc""")
    a(f"""v_cvt_pk_bf16_f32 v22, 0, v22
    v_mul_f32 v22, v22, v66
    v_cvt_pk_bf16_f32 v22, v22, v22
    v_mov_b32 v21, 1
    ds_write_b16 v8, v22
    ds_write_b32 v1, v21 offset:{F_H}""")
    a("L_adone:")
    if lateb and local:
        a(f"s_mov_b64 exec, 0x00ff00ff\nbuffer_store_dwordx4 v[160:163], v164, {WS}, s43 offen sc1")
    stamp('a', 9)
    a("L_adump:")
    dump('a')
    a("s_endpgm")

    a("L_comp:\ns_sub_u32 s34, s3, 2")
    a("s_load_dword s32, s[30:31], 0")
    srd(48, 30, WSZ)
    if warm and not h1wt and h1w and warm0 is None:
        a("s_cmp_eq_u32 s34, 1\ns_cbranch_scc0 L_nowarm")
        a(f"s_lshl_b32 s35, s4, 5\ns_lshl_b32 s36, s6, 2\ns_add_u32 s35, s35, s36\ns_add_u32 s35, s35, s7\ns_lshl_b32 s35, s35, 8\ns_add_u32 s35, s35, {W_H1}")
        a(f"v_lshlrev_b32 v4, 6, v0\ns_mov_b64 exec, 15\nbuffer_load_dword v124, v4, {WS}, s35 offen {warmpol}\ns_mov_b64 exec, -1\nL_nowarm:")
    a("""v_and_b32 v2, 15, v0
    v_lshrrev_b32 v3, 4, v0""")
    a("""v_xor_b32 v4, v2, v3
    v_lshlrev_b32 v4, 4, v4
    v_lshrrev_b32 v5, 2, v2
    v_lshlrev_b32 v5, 11, v5
    v_and_b32 v6, 3, v0
    v_lshl_add_u32 v5, v6, 8, v5
    s_lshr_b32 s35, s34, 1
    s_lshl_b32 s35, s35, 14
    s_and_b32 s36, s34, 1
    s_lshl_b32 s36, s36, 10
    s_add_u32 s35, s35, s36
    v_add_u32 v5, s35, v5""")
    for s_ in range(4):
        a(f"v_xor_b32 v{8 + s_}, {64 * s_}, v4\nv_add_u32 v{8 + s_}, v{8 + s_}, v5")
    a("""v_lshrrev_b32 v4, 2, v2
    v_xor_b32 v5, s34, v4
    v_lshlrev_b32 v5, 6, v5
    v_lshl_add_u32 v5, v4, 8, v5
    v_lshrrev_b32 v7, 1, v3
    v_lshl_add_u32 v5, v7, 10, v5
    v_and_b32 v7, 1, v3
    v_lshl_add_u32 v5, v7, 5, v5
    v_lshl_add_u32 v5, v6, 3, v5""")
    a(f"v_add_u32 v12, {L_V}, v5")
    a("""v_lshl_add_u32 v5, v3, 2, v4
    v_lshrrev_b32 v7, 1, v5
    v_and_b32 v7, 3, v7
    v_xor_b32 v7, s34, v7
    v_lshlrev_b32 v7, 5, v7
    v_lshl_add_u32 v7, v5, 7, v7
    v_lshl_add_u32 v14, v6, 3, v7""")
    a(f"v_add_u32 v14, {L_WO}, v14")
    a(f"v_mul_u32_u24 v15, 320, v6\nv_lshl_add_u32 v15, v3, 4, v15\nv_add_u32 v15, {L_Q}, v15")
    a("""v_lshrrev_b32 v4, 5, v0
    v_lshlrev_b32 v16, 8, v4
    v_and_b32 v5, 1, v3
    v_lshl_add_u32 v16, v5, 10, v16
    v_lshl_add_u32 v16, v2, 4, v16
    s_lshl_b32 s35, s4, 13
    s_lshl_b32 s36, s34, 11
    s_add_u32 s35, s35, s36""")
    a(f"s_add_u32 s35, s35, {W_H1}\nv_add_u32 v16, s35, v16")
    a(f"s_mul_i32 s35, s34, 320\ns_add_u32 s35, s35, {L_Q}\nv_and_b32 v5, 31, v0\nv_lshl_add_u32 v17, v5, 3, s35\nv_lshl_add_u32 v17, v4, 2, v17")
    a("s_lshl_b32 s35, s34, 2\nv_add_u32 v18, s35, v1")
    a(f"s_lshl_b32 s35, s34, 8\ns_add_u32 s35, s35, {L_P}\nv_lshl_add_u32 v19, v3, 5, s35\nv_lshl_add_u32 v19, v6, 3, v19")
    a(f"s_lshl_b32 s35, s34, 4\ns_add_u32 s35, s35, {L_ML}\nv_lshl_add_u32 v112, v0, 2, s35")
    a(f"v_lshlrev_b32 v113, 3, v0\nv_add_u32 v113, {L_P}, v113")
    a(f"v_lshlrev_b32 v114, 4, v4\nv_add_u32 v114, {L_ML}, v114")
    a(f"s_lshl_b32 s35, s34, 2\ns_add_u32 s35, s35, {L_ML}\nv_lshl_add_u32 v13, v6, 4, s35\nv_mov_b32 v144, {L_ML}")
    a("s_lshl_b32 s35, s4, 7\ns_add_u32 s35, s35, s5")
    a(f"s_lshl_b32 s36, s35, 9\ns_lshl_b32 s37, s34, 7\ns_add_u32 s36, s36, s37\ns_add_u32 s36, s36, {W_H2}\nv_lshl_add_u32 v115, v5, 2, s36\nv_lshl_add_u32 v115, v4, 14, v115")
    a(f"s_lshl_b32 s36, s34, 5\ns_add_u32 s36, s36, s35\ns_lshl_b32 s36, s36, 4\ns_add_u32 s36, s36, {W_ML}\nv_mov_b32 v116, s36")
    a("v_lshrrev_b32 v4, 3, v0\nv_and_b32 v5, 7, v0\ns_lshl_b32 s35, s4, 2\ns_add_u32 s35, s35, s7")
    a(f"s_lshl_b32 s36, s35, 14\ns_lshl_b32 s37, s34, 7\ns_add_u32 s36, s36, s37\ns_add_u32 s36, s36, {W_H2}")
    a("v_lshlrev_b32 v117, 9, v4\nv_lshl_add_u32 v117, v5, 4, v117\nv_add_u32 v117, s36, v117")
    a(f"s_lshl_b32 s36, s35, 9\ns_add_u32 s36, s36, {W_ML}\nv_and_b32 v118, 31, v0\nv_lshl_add_u32 v118, v118, 4, s36\nv_lshlrev_b32 v123, 2, v4")
    a("""v_and_b32 v119, 3, v0
    v_lshlrev_b32 v119, 4, v119
    v_bfe_u32 v4, v0, 2, 1
    v_lshl_add_u32 v119, v4, 3, v119
    v_bfe_u32 v4, v0, 4, 1
    v_lshl_add_u32 v119, v4, 2, v119
    v_lshrrev_b32 v4, 5, v0
    v_lshl_add_u32 v119, v4, 1, v119""")
    a(f"s_lshl_b32 s35, s34, 6\ns_add_u32 s35, s35, {L_O}\nv_add_u32 v119, s35, v119")
    a(f"v_lshlrev_b32 v120, 4, v3\nv_add_u32 v120, {L_O}, v120")
    a("s_lshl2_add_u32 s37, s6, s34")
    inbox(35, 37)
    a(f"s_lshl2_add_u32 s36, s4, s7\ns_lshl_b32 s36, s36, {6 if h3pk else 7}\ns_add_u32 s35, s35, s36\nv_lshl_add_u32 v121, v0, {2 if h3pk else 3}, s35")
    a("s_movk_i32 s52, 0x1000\ns_movk_i32 s53, 0x2000\ns_movk_i32 s54, 0x3000\ns_mov_b32 s55, 0x8000\nv_mov_b32 v125, 0xff")
    a("s_waitcnt lgkmcnt(0)")
    tags()
    a("v_lshlrev_b32 v4, 3, v6\nv_lshrrev_b32 v122, v4, s32\nv_mov_b32 v147, s32\nv_mov_b32 v149, s32")
    tagbytes(56, 42)
    if 'noc' in abl: a("s_branch L_cdone")
    if 'h2' in prew:
        a(f"v_not_b32 v20, v122\nbuffer_store_dword v20, v115, {WS}, 0 offen {pwpol}\nbuffer_store_dword v20, v115, {WS}, s55 offen {pwpol}")
    kreads = [f"ds_read_b128 v[{32 + 16 * t + 4 * s}:{35 + 16 * t + 4 * s}], v{8 + s} offset:{L_K + 8192 * t}" for t in range(2) for s in range(4)]
    a("s_mov_b32 s43, 0\ns_mov_b32 s41, 3\ns_mov_b32 s39, 0")
    if forceslow and bdem:
        a("s_xor_b32 s42, s42, 0x80808080")
        tagbytes(56, 42)
    elif forceslow: a(f"s_mov_b32 s39, {NA}")
    if h1own: lds_spin(F_A, 1, [], 'ge', 20)
    else:
        if nap1: a(f"s_sleep {nap1}")
        if both: lds_spin(F_A, 1, [], 'ge', 20, nap=lazy)
        lds_spin(F_LD, seg_flag("Kpart" if h1trig < 32 else "K"), [], 'ge', 20, nap=lazy)
    stamp('c', 1)
    L = a.label("h1"); L2 = a.label("h1k")
    peel = 'h1' in p1
    if peel:
        for i in range(2): a(f"buffer_load_dwordx4 v[{96 + 4 * i}:{99 + 4 * i}], v16, {WS}, 0 offen offset:{512 * i}")
        a("L_h1in:")
        keep1 = a.lines; a.lines = []
    a(f"{L}:")
    if local:
        a(f"s_cmp_{'ge' if bdem else 'eq'}_u32 s39, {NA}\ns_cbranch_scc1 L_h1sw\n{L2}:")
        with outofline():
            a("L_h1sw:")
            if bdem:
                a(f"s_cmp_eq_u32 s39, {NA}\ns_cbranch_scc0 L_h1t")
                lds_spin(F_A, 1, [], 'ge', 20)
                a(f"v_lshlrev_b32 v20, 4, v0\nv_add_u32 v21, {L_B}, v20\ns_mov_b64 exec, 0xffff\nds_read_b128 v[96:99], v21")
                a(f"s_lshl_b32 s35, s4, 5\ns_lshl2_add_u32 s35, s6, s35\ns_add_u32 s35, s35, s7\ns_lshl_b32 s35, s35, 8\ns_add_u32 s35, s35, {W_H1B}")
                tagbytes(56, 32)
                a("s_waitcnt lgkmcnt(0)")
                for k in range(4): a(f"v_bfi_b32 v{96 + k}, v125, s{56 + k}, v{96 + k}")
                a(f"buffer_store_dwordx4 v[96:99], v20, {WS}, s35 offen sc1\ns_waitcnt vmcnt(0)\ns_mov_b64 exec, -1")
                a(f"L_h1t:\ns_xor_b32 s43, s43, {W_H1B - W_H1}\ns_cselect_b32 s35, s32, s42\ns_cselect_b32 s41, 1, 3")
                tagbytes(56, 35)
            else:
                a(f"s_mov_b32 s43, {W_H1B - W_H1}\ns_mov_b32 s41, 1")
                tagbytes(56, 32)
            a(f"s_branch {L2}")
    for i in range(2): a(f"buffer_load_dwordx4 v[{96 + 4 * i}:{99 + 4 * i}], v16, {WS}, s43 offen offset:{512 * i} {pollpol}")
    a(f"s_add_u32 s39, s39, 1\ns_cmp_gt_u32 s39, {SPIN}\ns_cbranch_scc1 L_end")
    if peel:
        a("s_branch L_h1in")
        cold.extend(a.lines); a.lines = keep1
    if h1trig == 32 and not h1own:
        for r in kreads: a(r)
    elif kearly: lds_spin(F_LD, seg_flag("K"), kreads, 'ge', 20)
    a("s_waitcnt vmcnt(0)")
    strip(20, list(range(96, 104)), first=True)
    for k in range(4): a(f"v_add_f32 v{96 + k}, v{96 + k}, v{100 + k}")
    a(f"""v_and_b32 v20, 0xff, v20
    v_cmp_ne_u32 vcc, 0, v20
    v_permlane32_swap_b32 v96, v98
    v_permlane32_swap_b32 v97, v99
    s_cbranch_vccnz {L}""")
    stamp('c', 2)
    if stamps is True: a("s_mov_b32 s88, s39")
    a("""v_add_f32 v96, v96, v98
    v_add_f32 v97, v97, v99
    v_mov_b32 v21, s41
    v_cvt_pk_bf16_f32 v96, v96, v97""")
    a(f"ds_write_b32 v17, v96\nds_write_b32 v18, v21 offset:{F_Q}")
    tagbytes(56, 32)
    if (h1trig < 32 or h1own) and not kearly: lds_spin(F_LD, seg_flag("K"), kreads, 'ge', 20)
    lds_spin(F_Q, 0, [f"ds_read_b128 v[{96 + 4 * s}:{99 + 4 * s}], v15 offset:{64 * s}" for s in range(4)] + ([f"ds_read_b32 v145, v1 offset:{F_LD}"] if look1 else []), 'all4', 20)
    stamp('c', 3)
    for s in range(4):
        for t in range(2):
            c = "0" if s == 0 else f"v[{24 + 4 * t}:{27 + 4 * t}]"
            a(f"v_mfma_f32_16x16x32_bf16 v[{24 + 4 * t}:{27 + 4 * t}], v[{32 + 16 * t + 4 * s}:{35 + 16 * t + 4 * s}], v[{96 + 4 * s}:{99 + 4 * s}], {c}")
    a("v_readfirstlane_b32 s41, v20\ns_and_b32 s41, s41, 2")
    if 'ml' in prew:
        a(f"s_cselect_b64 exec, 1, 0\nv_not_b32 v153, v147\nv_not_b32 v155, v147\nbuffer_store_dwordx4 v[152:155], v116, {WS}, 0 offen {pwpol}\ns_mov_b64 exec, -1")
    vread = lambda u: f"ds_read_b64_tr_b16 v[{64 + 2 * u}:{65 + 2 * u}], v12 offset:{2048 * u}"
    vflag = lambda c: seg_flag("V" + (str(c) if c < 3 else ""))
    if look1:
        a("v_readfirstlane_b32 s38, v145")
        for c in range(4):
            a(f"s_cmp_lt_u32 s38, {vflag(c)}\ns_cbranch_scc1 L_va")
            for u in range(4 * c, 4 * c + 4): a(vread(u))
        a("L_va:")
    else: a("s_mov_b32 s38, 0")
    a(f"s_mov_b32 s35, {SCALE:#x}\ns_mov_b32 s36, {LOG2E:#x}")
    if pks: a("s_mov_b32 s60, s35\ns_mov_b32 s61, s35\ns_mov_b32 s62, s36\ns_mov_b32 s63, s36")
    if mimic:
        for r in range(24, 32): a(f"v_cvt_pk_bf16_f32 v{r}, 0, v{r}")
    if pks:
        for r in range(24, 32, 2): a(f"v_pk_mul_f32 v[{r}:{r + 1}], v[{r}:{r + 1}], s[60:61]")
    else:
        for r in range(24, 32): a(f"v_mul_f32 v{r}, s35, v{r}")
    if mimic:
        for r in range(24, 32): a(f"v_cvt_pk_bf16_f32 v{r}, 0, v{r}")
    a("""v_max3_f32 v20, v24, v25, v26
    v_max3_f32 v21, v27, v28, v29
    v_max3_f32 v20, v20, v30, v31
    v_max_f32 v20, v20, v21
    v_mov_b32 v21, v20
    v_permlane16_swap_b32 v20, v21
    v_max_f32 v20, v20, v21
    v_mov_b32 v21, v20
    v_permlane32_swap_b32 v20, v21
    v_max_f32 v20, v20, v21
    v_mul_f32 v22, s36, v20""")
    if pks:
        for r in range(24, 32, 2): a(f"v_pk_fma_f32 v[{r}:{r + 1}], v[{r}:{r + 1}], s[62:63], v[22:23] op_sel:[0,0,0] op_sel_hi:[1,1,0] neg_lo:[0,0,1] neg_hi:[0,0,1]")
    else:
        for r in range(24, 32): a(f"v_fma_f32 v{r}, v{r}, s36, -v22")
    for r in range(24, 32): a(f"v_exp_f32 v{r}, v{r}")
    for k in range(4): a(f"v_cvt_pk_bf16_f32 v{32 + k}, v{24 + 2 * k}, v{25 + 2 * k}")
    if look2: a(f"ds_read_b32 v145, v1 offset:{F_LD}")
    if pks: a("""v_pk_add_f32 v[24:25], v[24:25], v[26:27]
    v_pk_add_f32 v[28:29], v[28:29], v[30:31]
    ds_write_b64 v19, v[32:33]
    v_pk_add_f32 v[24:25], v[24:25], v[28:29]
    ds_write_b64 v19, v[34:35] offset:128
    v_add_f32 v23, v24, v25""")
    else: a("""v_add_f32 v24, v24, v25
    v_add_f32 v26, v26, v27
    ds_write_b64 v19, v[32:33]
    v_add_f32 v28, v28, v29
    v_add_f32 v30, v30, v31
    ds_write_b64 v19, v[34:35] offset:128
    v_add_f32 v24, v24, v26
    v_add_f32 v28, v28, v30
    v_add_f32 v23, v24, v28""")
    a("""v_mov_b32 v21, v23
    v_permlane16_swap_b32 v23, v21
    v_add_f32 v23, v23, v21
    v_mov_b32 v21, v23
    v_permlane32_swap_b32 v23, v21
    v_add_f32 v23, v23, v21
    v_mov_b32 v21, 1
    s_mov_b64 exec, 15
    ds_write2_b32 v112, v22, v23 offset0:0 offset1:16
    s_mov_b64 exec, -1""")
    a(f"ds_write_b32 v18, v21 offset:{F_P}")
    if look2:
        lgk(4)
        a("v_readfirstlane_b32 s37, v145")
        for c in range(4):
            a(f"s_cmp_ge_u32 s38, {vflag(c)}\ns_cbranch_scc1 L_vl{c}\ns_cmp_lt_u32 s37, {vflag(c)}\ns_cbranch_scc1 L_vld")
            for u in range(4 * c, 4 * c + 4): a(vread(u))
            a(f"L_vl{c}:")
        a("L_vld:\ns_mov_b32 s38, s37")
    stamp('c', 4)
    reads = [f"ds_read_b64 v[{32 + 2 * r}:{33 + 2 * r}], v113 offset:{512 * r}" for r in range(2)]
    reads += ["ds_read2_b32 v[150:151], v13 offset0:0 offset1:16"]
    reads += [f"ds_read_b128 v[{96 + 4 * w}:{99 + 4 * w}], v144 offset:{16 * w}" for w in range(4)]
    reads += [f"ds_read_b128 v[{56 + 4 * r}:{59 + 4 * r}], v114 offset:{32 * r}" for r in range(2)]
    lds_spin(F_P, 0, reads + [f"ds_read_b32 v145, v1 offset:{F_LD}"], 'all4', 20)
    stamp('c', 5)
    fill = ["v_max_f32_dpp v146, v150, v150 quad_perm:[1,0,3,2] row_mask:0xf bank_mask:0xf"]
    fill += [f"v_max3_f32 v{96 + h}, v{96 + h}, v{100 + h}, v{104 + h}" for h in range(4)]
    fill += ["v_max_f32_dpp v146, v146, v146 quad_perm:[2,3,0,1] row_mask:0xf bank_mask:0xf"]
    fill += [f"v_max_f32 v{96 + h}, v{96 + h}, v{108 + h}" for h in range(4)]
    fill += ["v_sub_f32 v150, v150, v146"] + [f"v_sub_f32 v{56 + k}, v{56 + k}, v{96 + (k & 3)}" for k in range(8)]
    fill += ["v_exp_f32 v150, v150"] + [f"v_exp_f32 v{56 + k}, v{56 + k}" for k in range(4)] + ["v_mul_f32 v148, v150, v151"]
    fill += [f"v_exp_f32 v{60 + k}, v{60 + k}" for k in range(2)] + ["v_add_f32_dpp v148, v148, v148 quad_perm:[1,0,3,2] row_mask:0xf bank_mask:0xf"]
    fill += [f"v_exp_f32 v{62 + k}, v{62 + k}" for k in range(2)] + ["v_add_f32_dpp v148, v148, v148 quad_perm:[2,3,0,1] row_mask:0xf bank_mask:0xf"]
    def ml_pub():
        a("s_mov_b64 exec, 1")
        st2([f"buffer_store_dwordx4 v[146:149], v116, {WS}, 0 offen"], 'ml')
        a("s_mov_b64 exec, -1")
    def pv(u):
        r = u >> 3
        c = "0" if u % 8 < 2 else f"v[{40 + 8 * r + 4 * (u & 1)}:{43 + 8 * r + 4 * (u & 1)}]"
        a(f"v_mfma_f32_4x4x4_16b_bf16 v[{40 + 8 * r + 4 * (u & 1)}:{43 + 8 * r + 4 * (u & 1)}], v[{32 + 2 * r}:{33 + 2 * r}], v[{64 + 2 * u}:{65 + 2 * u}], {c} cbsz:3 abid:{u & 7}")
    a("v_readfirstlane_b32 s37, v145")
    assert len(fill) <= 32
    if mlfirst:
        chain = [f_ for f_ in fill if any(f" v{r}," in f_ for r in (146, 148)) or f_.startswith(("v_sub_f32 v150", "v_exp_f32 v150"))]
        fill = [f_ for f_ in fill if f_ not in chain]
        assert len(chain) == 7
        for f_, nf in zip(chain, (2, 0, 0, 1, 2, 2, 0)):
            a(f_)
            for _ in range(nf): a(fill.pop(0))
        ml_pub()
    a(f"s_cmp_lt_u32 s38, {vflag(3)}\ns_cbranch_scc1 L_vb\nL_vc:")
    with outofline():
        a("L_vb:")
        for c in range(4):
            a(f"s_cmp_ge_u32 s38, {vflag(c)}\ns_cbranch_scc1 L_vb{c}\ns_cmp_lt_u32 s37, {vflag(c)}\ns_cbranch_scc1 L_vbd")
            for u in range(4 * c, 4 * c + 4): a(vread(u))
            a(f"L_vb{c}:")
        a("L_vbd:\ns_waitcnt lgkmcnt(0)\ns_branch L_vc")
    for c in range(4):
        a(f"s_cmp_lt_u32 s37, {vflag(c)}\ns_cbranch_scc1 L_vw{c}\nL_vr{c}:")
        with outofline():
            a(f"L_vw{c}:")
            lds_spin(F_LD, vflag(c), [vread(u) for u in range(4 * c, 4 * c + 4)], 'ge', 20)
            a(f"s_branch L_vr{c}")
        for u in range(4 * c, 4 * c + 4):
            pv(u)
            for f_ in fill[4 * u:4 * u + 4]: a(f_)
        if c == 1 and not mlfirst: ml_pub()
    stamp('c', 6)
    a("s_nop 0")
    if pks:
        for h in (0, 2): a(f"v_pk_add_f32 v[{40 + h}:{41 + h}], v[{40 + h}:{41 + h}], v[{44 + h}:{45 + h}]")
        for h in (0, 2): a(f"v_pk_mul_f32 v[{40 + h}:{41 + h}], v[{40 + h}:{41 + h}], v[{56 + h}:{57 + h}]")
        for h in (0, 2): a(f"v_pk_add_f32 v[{48 + h}:{49 + h}], v[{48 + h}:{49 + h}], v[{52 + h}:{53 + h}]")
        for h in (0, 2): a(f"v_pk_fma_f32 v[{40 + h}:{41 + h}], v[{48 + h}:{49 + h}], v[{60 + h}:{61 + h}], v[{40 + h}:{41 + h}]")
    else:
        for h in range(4): a(f"v_add_f32 v{40 + h}, v{40 + h}, v{44 + h}")
        for h in range(4): a(f"v_mul_f32 v{40 + h}, v{40 + h}, v{56 + h}")
        for h in range(4): a(f"v_add_f32 v{48 + h}, v{48 + h}, v{52 + h}")
        for h in range(4): a(f"v_fmac_f32 v{40 + h}, v{48 + h}, v{60 + h}")
    a("""v_permlane32_swap_b32 v40, v41
    v_permlane32_swap_b32 v42, v43
    v_add_f32 v40, v40, v41
    v_add_f32 v42, v42, v43
    v_bfi_b32 v40, v125, v122, v40
    v_bfi_b32 v42, v125, v122, v42""")
    st2([f"buffer_store_dword v40, v115, {WS}, 0 offen", f"buffer_store_dword v42, v115, {WS}, s55 offen"], 'h2')
    stamp('c', 7)
    if fine:
        a("s_waitcnt vmcnt(0)"); stamp('c', 1, True)
    if 'noh2' in abl: a("s_branch L_cdone")
    LF = a.label("h2"); LG = a.label("h2g"); LD = a.label("h2d")
    woreads = [f"ds_read_b64_tr_b16 v[{80 + 4 * s + 2 * x}:{81 + 4 * s + 2 * x}], v14 offset:{4096 * s + 2048 * x}" for s in range(4) for x in range(2)]
    wdreads = [f"ds_read_b64_tr_b16 v[{48 + 4 * s + 2 * x}:{49 + 4 * s + 2 * x}], v14 offset:{L_WD - L_WO + 4096 * s + 2048 * x}" for s in range(2) for x in range(2)]
    hreads = [f"ds_read_b128 v[{56 + 4 * s}:{59 + 4 * s}], v120 offset:{L_H - L_O + 64 * s}" for s in range(2)]
    last = max(seg_flag("WO"), seg_flag("WD"))
    def payload_loads(pol=pollpol):
        for i in range(4): a(f"buffer_load_dwordx4 v[{64 + 4 * i}:{67 + 4 * i}], v117, {WS}, {'s%d' % (51 + i) if i else 0} offen {pol}")
    def payload_check(mul):
        for i in range(4):
            a(f"s_waitcnt vmcnt({3 - i})")
            strip(21, [64 + 4 * i + k for k in range(4)], first=(i == 0))
            if mul:
                for k in range(4): a(fm(i, k))
        a("v_and_b32 v21, 0xff, v21\nv_cmp_ne_u32 vcc, 0, v21\ns_and_b64 exec, vcc, vcc")
    LM = a.label("h2m"); LW = a.label("h2w"); LX = a.label("h2x")
    assert order[-2:] == ("WO", "WD") and ntail <= 8 and gate == 'T'
    a(f"s_cmp_ge_u32 s33, 28\ns_cselect_b32 s36, {last}, {seg_flag('T')}\ns_mov_b32 s37, {SPIN}")
    a("v_mov_b32 v101, s32\nv_mov_b32 v103, s32")
    def ml_loads(pol=pollpol):
        a(f"s_mov_b32 exec_hi, 0\nbuffer_load_dwordx4 v[32:35], v118, {WS}, 0 offen {pol}\ns_mov_b32 exec_hi, -1")
    def ml_check():
        a("s_mov_b32 exec_hi, 0")
        chk(20, 33, 32, first=True); chk(20, 35, 32)
        a("v_cmp_ne_u32 vcc, 0, v20\ns_mov_b32 exec_hi, -1")
    def fm(i, k):
        w = f"v[{36 + (i & 2)}:{37 + (i & 2)}]"; sel = f"op_sel:[0,{i & 1},0] op_sel_hi:[1,{i & 1},1]"
        if i == 0: return f"v_pk_mul_f32 v[{24 + k}:{25 + k}], v[{64 + k}:{65 + k}], {w} op_sel:[0,0] op_sel_hi:[1,0]"
        return f"v_pk_fma_f32 v[{24 + k}:{25 + k}], v[{64 + 4 * i + k}:{65 + 4 * i + k}], {w}, v[{24 + k}:{25 + k}] {sel}"
    def strip_ops(i):
        r = 64 + 4 * i
        return [f"s_waitcnt vmcnt({3 - i})\nv_xor_b32 v{r}, s56, v{r}"] + [f"v_xor_b32 v{r + k}, s{56 + k}, v{r + k}" for k in (1, 2, 3)] + \
               [f"v_or_b32 v28, v{r}, v{r + 1}" if i == 0 else f"v_or3_b32 v28, v28, v{r}, v{r + 1}", f"v_or3_b32 v28, v28, v{r + 2}, v{r + 3}"]
    wait_gate(20)
    stamp('c', 2, True)
    ml_loads('' if 'ml' in p1 else pollpol)
    payload_loads('' if 'h2' in p1 else pollpol if poll1 is None else poll1)
    for r in woreads: a(r)
    a("s_waitcnt vmcnt(4)")
    ml_check()
    a(f"s_cbranch_vccnz {LM}\n{LW}:")
    with outofline():
        a(f"{LM}:")
        if joint:
            def pchk():
                for r in range(64, 80): chk(28, r, 56 + (r & 3), first=(r == 64))
                a("v_and_b32 v28, 0xff, v28\nv_cmp_ne_u32 s[60:61], 0, v28")
            a("s_waitcnt vmcnt(0)")
            pchk()
            a(f"{LX}:")
            ml_loads()
            a("s_mov_b64 exec, s[60:61]")
            payload_loads()
            a("s_sub_u32 s37, s37, 1\ns_cbranch_scc1 L_end\ns_waitcnt vmcnt(0)")
            pchk()
            a("s_mov_b32 exec_lo, -1")
            ml_check()
            a(f"s_or_b64 vcc, vcc, s[60:61]\ns_cbranch_scc1 {LX}\ns_branch {LW}")
        else:
            ml_loads()
            a("s_sub_u32 s37, s37, 1\ns_cbranch_scc1 L_end\ns_waitcnt vmcnt(0)")
            ml_check()
            a(f"s_cbranch_vccnz {LM}\ns_branch {LW}")
    stamp('c', 3, True)
    st = strip_ops(0) + strip_ops(1) + strip_ops(2) + strip_ops(3)
    def red32(op, r, t):
        for n in (1, 2, 4, 8):
            a(st.pop(0)); a(st.pop(0))
            a(f"{op}_dpp v{r}, v{r}, v{r} row_ror:{n} row_mask:0xf bank_mask:0xf")
        a(f"v_mov_b32 v{t}, v{r}")
        a(st.pop(0)); a(st.pop(0))
        a(f"v_permlane16_swap_b32 v{r}, v{t}\n{op} v{r}, v{r}, v{t}")
    if not early: a("v_mov_b32 v21, v32")
    if not near: a("s_mov_b32 s43, 0")
    if early:
        for n in (1, 2, 4, 8): a(f"v_max_f32_dpp v21, v{32 if n == 1 else 21}, v{32 if n == 1 else 21} row_ror:{n} row_mask:0xf bank_mask:0xf")
        a("v_mov_b32 v22, v21\nv_permlane16_swap_b32 v21, v22\nv_max_f32 v21, v21, v22\nv_sub_f32 v32, v32, v21\nv_exp_f32 v32, v32")
        a("v_mul_f32 v22, v32, v34")
        for i in range(4): a(f"ds_bpermute_b32 v{36 + i}, v123, v32 offset:{32 * i}")
        red32("v_add_f32", 22, 23)
        a("v_rcp_f32 v22, v22")
        a(st.pop(0)); a(st.pop(0))
        a("s_waitcnt lgkmcnt(0)")
        for i in range(2): a(fm(i, 0)); a(fm(i, 2))
        a("v_readfirstlane_b32 s35, v22")
        for i in range(6): a(st.pop(0))
        a(fm(2, 0)); a(fm(2, 2))
        while st: a(st.pop(0))
        a("v_and_b32 v28, 0xff, v28")
        a(fm(3, 0))
        a("v_cmp_ne_u32 vcc, 0, v28")
        a(fm(3, 2))
    else:
        red32("v_max_f32", 21, 22)
        a("v_sub_f32 v32, v32, v21\nv_exp_f32 v32, v32")
        a(st.pop(0))
        a("v_mul_f32 v22, v32, v34")
        for i in range(4): a(f"ds_bpermute_b32 v{36 + i}, v123, v32 offset:{32 * i}")
        red32("v_add_f32", 22, 23)
        a("v_rcp_f32 v22, v22")
        while st: a(st.pop(0))
        a("v_readfirstlane_b32 s35, v22\nv_and_b32 v28, 0xff, v28\ns_waitcnt lgkmcnt(0)")
        a(fm(0, 0)); a(fm(0, 2))
        a("v_cmp_ne_u32 vcc, 0, v28")
        for i in range(1, 4): a(fm(i, 0)); a(fm(i, 2))
    stamp('c', 4, True)
    a(f"s_cbranch_vccnz {LG}\n{LD}:")
    with outofline():
        a(f"{LG}:\ns_mov_b64 exec, vcc")
        if h2sleep: a(f"s_sleep {h2sleep}")
        payload_loads()
        a("s_sub_u32 s37, s37, 1\ns_cbranch_scc1 L_end")
        for i in range(4):
            for o in strip_ops(i): a(o)
        a(f"v_and_b32 v28, 0xff, v28\nv_cmp_ne_u32 vcc, 0, v28\ns_cbranch_vccnz {LG}\ns_mov_b64 exec, -1")
        for i in range(4): a(fm(i, 0)); a(fm(i, 2))
        a(f"s_nop 1\ns_branch {LD}")
    stamp('c', 8)
    if wbl == 'h2': a("s_or_b32 s39, s5, s34\ns_cbranch_scc1 L_nwb\nbuffer_wbl2 sc1\nL_nwb:")
    ex = [f"ds_read_b64 v[28:29], v1 offset:{F_LD}"] + wdreads + hreads
    a(f"""v_permlane32_swap_b32 v24, v25
    v_permlane32_swap_b32 v26, v27
    {ex[0]}
    v_add_f32 v24, v24, v25
    v_add_f32 v26, v26, v27
    {ex[1]}
    {ex[2]}
    v_permlane16_swap_b32 v24, v26
    v_add_f32 v24, v24, v26
    {ex[3]}
    {ex[4]}
    v_add_f32_dpp v24, v24, v24 row_ror:8 row_mask:0xf bank_mask:0xf
    v_mov_b32 v21, 1
    v_mul_f32 v24, s35, v24
    {ex[5]}
    v_cvt_pk_bf16_f32 v24, v24, v24
    {ex[6]}""")
    if near: a(f"ds_read_b32 v31, v18 offset:{F_D}")
    a(f"ds_write_b16 v119, v24\nds_write_b32 v18, v21 offset:{F_O}")
    oreads = [f"ds_read_b128 v[{128 + 4 * s}:{131 + 4 * s}], v120 offset:{64 * s}" for s in range(4)]
    def mm_wd(first):
        for s in range(2): a(f"v_mfma_f32_16x16x32_bf16 v[104:107], v[{56 + 4 * s}:{59 + 4 * s}], v[{48 + 4 * s}:{51 + 4 * s}], {'0' if s == 0 else 'v[104:107]'}")
    def mm_wo(first):
        for s in range(4): a(f"v_mfma_f32_16x16x32_bf16 v[96:99], v[{128 + 4 * s}:{131 + 4 * s}], v[{80 + 4 * s}:{83 + 4 * s}], {'0' if s == 0 else 'v[96:99]'}")
    a(f"ds_read_b128 v[20:23], v1 offset:{F_O}")
    for r in oreads: a(r)
    a("s_cmp_ge_u32 s33, 28\ns_cbranch_scc1 L_noffn")
    lgk(7)
    a(f"v_cmp_gt_u32 vcc, {last}, v28\nv_cmp_eq_u32 s[62:63], 0, v29\ns_or_b64 vcc, vcc, s[62:63]\ns_cbranch_vccnz L_hw")
    mm_wd(True)
    a("s_waitcnt lgkmcnt(0)\nv_and_b32 v22, v22, v23\nv_bitop3_b32 v20, v20, v21, v22 bitop3:0x80\nv_cmp_eq_u32 vcc, 0, v20\ns_cbranch_vccnz L_ow\nL_or:")
    stamp('c', 9)
    mm_wo(False)
    a("L_mmd:")
    with outofline():
        a("L_noffn:\nv_mov_b32 v104, 0\nL_ow:")
        lds_spin(F_O, 0, oreads, 'all4', 20)
        a("s_branch L_or\nL_hw:")
        lds_spin(F_O, 0, oreads, 'all4', 20)
        stamp('c', 9)
        mm_wo(True)
        a(f"s_mov_b32 s40, {SPIN}\nL_hw2:")
        for r in ex: a(r)
        a(f"s_sub_u32 s40, s40, 1\ns_cbranch_scc1 L_end\ns_waitcnt lgkmcnt(0)\nv_cmp_gt_u32 vcc, {last}, v28\nv_cmp_eq_u32 s[62:63], 0, v29\ns_or_b64 vcc, vcc, s[62:63]\ns_cbranch_vccnz L_hw2")
        mm_wd(False)
        a("s_branch L_mmd")
    if near:
        a("v_readfirstlane_b32 s43, v31\ns_cmp_eq_u32 s43, 0\ns_cbranch_scc1 L_dw\nL_dr:")
        with outofline():
            a("L_dw:")
            a(f"s_mov_b32 s40, {SPIN}\nL_dw1:\nds_read_b32 v31, v18 offset:{F_D}\ns_sub_u32 s40, s40, 1\ns_cbranch_scc1 L_end\ns_waitcnt lgkmcnt(0)")
            a("v_readfirstlane_b32 s43, v31\ns_cmp_eq_u32 s43, 0\ns_cbranch_scc1 L_dw1\ns_branch L_dr")
    stamp('c', 10)
    if not h3pk: a("v_add_f32 v96, v96, v104")
    if h3pk: a(f"s_mov_b64 exec, 0xffff\nv_add_f32 v96, v96, v104\nv_add_u32 v96, 0x80, v96\nv_bfi_b32 v96, v125, v122, v96\nbuffer_store_dword v96, v121, {WS}, s43 offen {h3st}")
    else:
        a("v_mov_b32 v100, v96\nv_mov_b32_dpp v102, v96 quad_perm:[1,1,3,3] row_mask:0xf bank_mask:0xf")
        a(f"s_mov_b64 exec, 0x5555\nbuffer_store_dwordx4 v[100:103], v121, {WS}, s43 offen {h3st}")
    if dual: a(f"buffer_store_dwordx4 v[100:103], v121, {WS}, s53 offen {h3st}")
    a("s_mov_b64 exec, -1")
    stamp('c', 11)
    if wbl == 'x0': a("s_or_b32 s39, s2, s34\ns_cbranch_scc1 L_nwb\nbuffer_wbl2 sc1\nL_nwb:")
    if wbl == 'h3': a("s_or_b32 s39, s5, s34\ns_cbranch_scc1 L_nwb\nbuffer_wbl2 sc1\nL_nwb:")
    a("s_cmp_ge_u32 s33, 28\ns_cbranch_scc0 L_cdone")
    if ncw > 1: a(f"s_cmp_ge_u32 s33, {NCONS}\ns_cbranch_scc1 L_cdone")
    if ncw < 4: a(f"s_cmp_lt_u32 s34, {ncw}\ns_cbranch_scc0 L_cdone")
    cc0(38)
    if ncw > 1: a("s_add_u32 s38, s38, s34")
    if near: a(f"ds_read_b32 v31, v1 offset:{F_IE}")
    a("s_mov_b32 s37, s38")
    inbox(35, 37)
    a("v_lshl_add_u32 v24, v0, 4, s35")
    if dual:
        lds_spin(F_IE, 1, [], 'ge', 20)
        a("v_lshrrev_b32 v20, 1, v20\nv_lshl_add_u32 v24, v20, 13, v24")
        if stamps: a("v_readfirstlane_b32 s84, v20")
    if h3pk:
        a("v_and_b32 v25, 3, v0\nv_bfe_u32 v26, v0, 4, 1\nv_lshl_add_u32 v25, v25, 1, v26\nv_lshrrev_b32 v26, 5, v0\nv_lshl_add_u32 v25, v25, 1, v26\ns_lshl_b32 s35, s38, 5\nv_lshl_add_u32 v25, v25, 1, s35")
    else: a("v_and_b32 v25, 7, v0\ns_lshl_b32 s35, s38, 5\nv_lshl_add_u32 v25, v25, 2, s35")
    srd(44, 8, 1024)
    a(f"buffer_load_{'ushort' if h3pk else 'dword'} v26, v25, s[44:47], 0 offen")
    srd(52, 26, 1024)
    if near: a("s_waitcnt lgkmcnt(0)\nv_readfirstlane_b32 s43, v31")
    L = a.label("h3"); LD = a.label("h3d")
    nh3 = 2 if h3pk else 4
    def h3issue(k):
        for i in range(nh3): a(f"buffer_load_dwordx4 v[{32 + 16 * k + 4 * i}:{35 + 16 * k + 4 * i}], v24, {WS}, s43 offen offset:{1024 * i} {h3pol}")
    a(f"s_mov_b32 s40, {SPIN}")
    if h3mask:
        h3depth = 0
        a(f"{L}:")
        h3issue(0)
        a("s_sub_u32 s40, s40, 1\ns_cbranch_scc1 L_end")
        for i in range(4):
            a(f"s_waitcnt vmcnt({3 - i})")
            chk(20, 33 + 4 * i, 32, first=(i == 0)); chk(20, 35 + 4 * i, 32)
        a(f"v_cmp_ne_u32 vcc, 0, v20\ns_and_b64 exec, vcc, vcc\ns_cbranch_scc1 {L}\ns_mov_b64 exec, -1")
        a(f"v_add_f32 v22, v32, v36\nv_add_f32 v23, v34, v38\nv_add_f32 v30, v40, v44\nv_add_f32 v31, v42, v46\ns_branch {LD}")
        L = a.label("h3x")
    for k in range(h3depth - (0 if h3cf else 1)):
        h3issue(k)
        if h3gap and k < h3depth - 1: a(f"s_sleep {h3gap}")
    a(f"{L}:")
    for k in range(h3depth):
        if not h3cf: h3issue((k + h3depth - 1) % h3depth)
        a(f"s_waitcnt vmcnt({nh3 * (h3depth - 1)})")
        b = 32 + 16 * k
        if h3pk:
            strip(20, list(range(b, b + 8)), first=True)
            a(f"v_pk_add_f32 v[28:29], v[{b}:{b + 1}], v[{b + 4}:{b + 5}]\nv_and_b32 v20, 0xff, v20\nv_pk_add_f32 v[30:31], v[{b + 2}:{b + 3}], v[{b + 6}:{b + 7}]\nv_cmp_ne_u32 vcc, 0, v20\ns_cbranch_vccz {LD}")
            if h3cf: h3issue(k)
            continue
        for r in range(b + 1, b + 16, 2): chk(20, r, 32, first=(r == b + 1))
        a(f"v_add_f32 v22, v{b}, v{b + 4}\nv_add_f32 v23, v{b + 2}, v{b + 6}\nv_cmp_ne_u32 vcc, 0, v20")
        a(f"v_add_f32 v30, v{b + 8}, v{b + 12}\nv_add_f32 v31, v{b + 10}, v{b + 14}\ns_cbranch_vccz {LD}")
        if h3cf: h3issue(k)
    a(f"s_sub_u32 s40, s40, 1\ns_cbranch_scc0 {L}\ns_branch L_end\n{LD}:")
    stamp('c', 12)
    if h3pk: a("""v_permlane32_swap_b32 v28, v29
    v_permlane32_swap_b32 v30, v31
    v_lshlrev_b32 v27, 16, v26
    v_add_f32 v28, v28, v29
    v_add_f32 v30, v30, v31
    v_permlane16_swap_b32 v28, v30
    v_add_f32 v28, v28, v30
    v_add_f32_dpp v28, v28, v28 row_ror:4 row_mask:0xf bank_mask:0xf
    s_mov_b32 s36, 0x000f000f
    v_add_f32_dpp v28, v28, v28 row_ror:8 row_mask:0xf bank_mask:0xf
    s_mov_b32 exec_lo, s36
    s_mov_b32 exec_hi, s36
    v_add_f32 v28, v28, v27
    v_cvt_pk_bf16_f32 v28, v28, v28
    buffer_store_short v28, v25, s[52:55], 0 offen """ + outpol)
    else: a("""v_add_f32 v22, v22, v30
    v_add_f32 v23, v23, v31
    v_lshlrev_b32 v27, 16, v26
    v_and_b32 v28, 0xffff0000, v26
    v_permlane32_swap_b32 v22, v23
    v_add_f32 v22, v22, v23
    v_mov_b32 v23, v22
    v_permlane16_swap_b32 v22, v23
    v_add_f32 v22, v22, v23
    v_add_f32_dpp v22, v22, v22 row_ror:8 row_mask:0xf bank_mask:0xf
    v_mov_b32 v23, v22
    v_permlane32_swap_b32 v22, v23
    v_add_f32 v22, v22, v27
    v_add_f32 v23, v23, v28
    v_cvt_pk_bf16_f32 v22, v22, v23
    s_mov_b64 exec, 0xff
    buffer_store_dword v22, v25, s[52:55], 0 offen """ + outpol)
    a(f"s_cmp_eq_u32 s38, 0\ns_cbranch_scc0 L_cdone\ns_mov_b64 exec, 1\nv_mov_b32 v25, s32\nbuffer_store_dword v25, off, {WS}, 0")
    if pcdbg:
        srd(44, 28, 256)
        a("s_getpc_b64 s[36:37]\nL_pc2:\ns_sub_u32 s36, s36, L_pc2-" + NAME + "_kernel\nv_mov_b32 v25, s36\nbuffer_store_dword v25, off, s[44:47], 0 offset:4")
        if pcdbg == 2:
            a("s_load_dwordx16 s[8:23], s[0:1], 0\ns_waitcnt lgkmcnt(0)")
            for k_, r_ in enumerate((30, 31, 26, 28, 8, 10, 12, 14, 16, 20, 22, 24, 0)): a(f"v_mov_b32 v25, s{r_}\nbuffer_store_dword v25, off, s[44:47], 0 offset:{8 + 4 * k_}")
    a("L_cdone:")
    stamp('c', 13)
    if stamps and near: a(f"s_mov_b64 exec, -1\nds_read_b32 v30, v1 offset:{F_N}\ns_waitcnt lgkmcnt(0)\nv_readfirstlane_b32 s84, v30")
    dump('c')
    a("s_endpgm")
    a.lines += cold
    a("L_end:\ns_endpgm")
    if touch: a("L_t2:\ns_branch L_comp")

    L = a.lines
    ia = L.index("L_aux:"); ic = L.index("L_comp:"); il = L.index("L_loader:")
    ib = next(i for i in range(il, ia) if L[i].strip() == ("L_split:" if xfast else "s_barrier"))
    assert oth_lines[-1].strip() == "s_branch L_comp"
    k = oth_lines.index("L_cw:")
    oth = oth_lines[:oth_lines.index("  s_cbranch_scc0 L_cw")] + ["  s_cbranch_scc1 L_aw"] + oth_lines[k + 1:] + ["L_aw:"] + oth_lines[oth_lines.index("  s_cbranch_scc0 L_cw") + 1:k - 1]
    a.lines = L[:ib + 1] + ["  s_branch L_ld2"] + oth + L[ia:ic] + ["L_ld2:"] + L[ib + 1:ia] + L[ic:]
    head = open(f"cdna_kernels/{NAME}.s.ref").read().split("; Override")[0]
    out = head + f"; Generated by gen/gen.py (hand-designed kernel; see that script for the layout notes)\n; @launch grid=(256,1,1) block=(384,1,1) lds={L_END}\n"
    out += f'.amdgcn_target "amdgcn-amd-amdhsa--gfx950"\n.text\n'
    if align: out += ".p2align 12\n.fill 0x340, 4, 0xbf800000\n"
    out += f'.globl {NAME}_kernel\n.p2align 8\n.type {NAME}_kernel,@function\n'
    out += a.text()
    out += f""".section .rodata,"a"
.p2align 6
.amdhsa_kernel {NAME}_kernel
  .amdhsa_next_free_vgpr 184
  .amdhsa_next_free_sgpr 102
  .amdhsa_accum_offset 184
  .amdhsa_group_segment_fixed_size 0
  .amdhsa_kernarg_size 96
  .amdhsa_user_sgpr_count 2
  .amdhsa_user_sgpr_kernarg_segment_ptr 1
  .amdhsa_system_sgpr_workgroup_id_x 1
  .amdhsa_float_denorm_mode_32 3
.end_amdhsa_kernel
"""
    return out

if __name__ == "__main__":
    kw = eval("dict(" + (sys.argv[2] if len(sys.argv) > 2 else "") + ")")
    open(sys.argv[1], "w").write(gen(**kw))
```

```python
import sys
from asmlib import Asm

NAME = "parallel_sum__sliding_block_cached__swiglu_ffn__decode"

L_K, L_V, L_GU, L_WO, L_WD = 0, 32768, 65536, 81920, 98304
L_WQ = 106496
L_X  = L_WQ + 16384
L_XX = L_X + 1024
L_Q  = L_XX + 2048
L_P  = L_Q + 1280
L_ML = L_P + 1024
L_O  = L_ML + 128
L_H  = L_O + 256
L_B  = L_H + 128
L_F  = L_B + 256
L_END = L_F + 96
F_LD, F_H, F_A, F_IE, F_Q, F_P, F_O, F_D, F_N = 0, 4, 8, 12, 16, 32, 48, 64, 80

W_EP  = 0
W_VOT = 0x800
W_DEC = 0xc00
W_H1  = 0x1000
W_H1B = W_H1 + 256 * 256
W_HB  = W_H1B + 256 * 256
W_ML  = W_HB + 256 * 512
W_H3  = 0x48000
W_H2  = W_H3 + 64 * 4096
assert W_ML + 32 * 512 <= W_H3 and W_H3 % 16384 == 0
W_PR  = W_H2 + 1024 * 512
W_END = W_PR + 0x40000
W_ST  = 0x400000

LOG2E = 0x3fb8aa3b
SCALE = 0x3db504f3
SPIN = 1 << 16
EPOCH_STEP = 0x9e3779b9

def gen(TH=18, stamps=False, order=("Q", "K", "V", "GU", "WO", "WD"), warm=64, warmpol="sc1 nt", NA=8, h3depth=4,
        forceslow=False, h1trig=26, probe=None, abl=(), rot=True, h3gap=2, TH2=None, mimic=True, pfpol='', h1own=False, h3warm='sc1', pre=True, spec=True, sleep=0, prio=3, h2sleep=0, hbsleep=0, boost=24, gate='T', first=True, hbfirst=False, fine=False, local=True, pollpol='sc1', h1wt=False, lazy=4, ntail=8, wt=(), warmat='V', consffn=True, THK=None, THG=None, h3mask=False, lateb=False, both=False, auxfirst=False, align=False, touch=False, hold='Q0', spf=False, pk=True, h1warm=None, dip=None, dip2=None, kearly=True, look2=False, nap0=0, nap1=0, hbwarm=None, refine=False, h3pol='sc1', h3st='sc1', h3all=False, qloop=4, gx=4, light='hi', xboost=0x55, look1=False, pks=True, xfast=True, warmst=False, gnap=0, dual=False, dnap=2, dforce=None, probe_diag=0, h3x=0, near=True, gap=0, prpol='nt', evdbg=False, vat=None, vpol='sc1', dat='V', dpol='sc1', vst='sc1', vset=1, vsh=2, wbl=None, stpol='', prew=(), warmx=None, bseg=('Q', 'K', 'V', 'GU', 'WO', 'WD'), xb2=0x55, adapt=None, poll1=None, h3cf=True, outpol='', outwarm=None, joint=False, early=True, anap=0, pcdbg=False, evpad=None, ldpol='nt', perm=None, rmul=1, woord=None, wdord=None, pace=None, h1w=True, bdem=True, h3pk=True, two=False, npf=2, m0k=False, h3at='end', remap=0, p1=(), xpol='', sweep=None, dly=None, mlfirst=True, warm0=None, ncw=1, pwpol='', h1pol='', ch=None, datl='V1', lmask=None, cprio=0, aprio=0, qprio=0, dry=()):
    if not local: warm = 0
    a = Asm()
    WS = "s[48:51]"
    WSZ = W_ST + 256 * 512 if stamps else W_END
    diag = bool(stamps or probe)

    def stamp(role, idx, f=False):
        if dly and dly[:2] == (role, idx) and not f: a(f"s_sleep {dly[2]}")
        if fine and role == 'c' and 1 <= idx <= 6 and not f: return
        if f and not fine: return
        if probe and (idx == 0 or probe == (role, idx)):
            a(f"s_memrealtime s[{96 if idx == 0 else 98}:{97 if idx == 0 else 99}]")
            if idx == 0: a("s_waitcnt lgkmcnt(0)\ns_mov_b32 s98, s96")
        if stamps and (stamps is True or idx in (0, 13) or (stamps == 'l' and (role, idx) in (('l', 1), ('l', 7), ('l', 2), ('l', 3), ('l', 9), ('c', 11)))):
            a(f"s_memtime s[{64 + 2 * idx}:{65 + 2 * idx}]")
            if idx == 0: a("s_memrealtime s[94:95]")
            if (role, idx) in (('l', 9), ('c', 13), ('a', 9)): a("s_memrealtime s[92:93]")
    def dump(role):
        if probe and probe[0] == role:
            L = a.label("pad")
            a("s_waitcnt lgkmcnt(0)\ns_sub_u32 s98, s98, s96\ns_mul_i32 s98, s98, 3\ns_add_u32 s96, s96, s98\ns_add_u32 s96, s96, 1500")
            a(f"{L}:\ns_sleep 4\ns_memrealtime s[98:99]\ns_waitcnt lgkmcnt(0)\ns_sub_u32 s35, s98, s96\ns_cmp_lt_i32 s35, 0\ns_cbranch_scc1 {L}")
        if not stamps or (stamps == 'min' and role != 'c') or (stamps == 'l' and role == 'a'): return
        a("s_waitcnt lgkmcnt(0)")
        a(f"s_lshl_b32 s60, s2, 9\ns_lshl_b32 s61, s3, 6\ns_add_u32 s60, s60, s61\ns_add_u32 s60, s60, {W_ST}")
        a("s_mov_b64 exec, 1\nv_mov_b32 v126, s60")
        for i in range(16):
            a(f"v_mov_b32 v127, s{64 + 2 * i}\nbuffer_store_dword v127, v126, {WS}, 0 offen offset:{4 * i}")
    cold = []
    class outofline:
        def __enter__(self): self.keep = a.lines; a.lines = []
        def __exit__(self, *x): cold.extend(a.lines); a.lines = self.keep
    def srd(d, p, size):
        a(f"s_mov_b32 s{d}, s{p}\ns_and_b32 s{d + 1}, s{p + 1}, 0xffff\ns_mov_b32 s{d + 2}, {size}\ns_mov_b32 s{d + 3}, 0x20000")
    events = ["X"]
    for nm in order:
        if nm == "K" and h1trig < 32: events.append("Kpart")
        if nm in ("V", "GU", "Q"): events += [nm + "0", nm + "1", nm + "2"]
        events.append(nm)
    events.insert(len(events) - 1 if ntail <= 8 else len(events) - 2, "T")
    def seg_flag(name):
        return events.index(name) + 1
    def lgk(n):
        a(f"s_waitcnt lgkmcnt({0 if diag else n})")
    def st2(ops, name=None):
        if not local or name in wt:
            for o in ops: a(o + " sc1" if o.startswith("buffer_store") else o)
            return
        L1 = a.label("slow"); L2 = a.label("st")
        a(f"s_cmp_eq_u32 s41, 0\ns_cbranch_scc1 {L1}")
        for o in ops: a(o + " " + stpol if o.startswith("buffer_store") else o)
        a(f"{L2}:")
        with outofline():
            a(f"{L1}:\ns_nop 1")
            for o in ops: a(o + " sc1" if o.startswith("buffer_store") else o)
            a(f"s_nop 1\ns_branch {L2}")
    def lds_spin(flag_off, want, reads, kind, tmp, nap=0):
        if not spec and len(reads) > 4 and kind == 'ge':
            lds_spin(flag_off, want, [], kind, tmp)
            for r in reads: a(r)
            a("s_waitcnt lgkmcnt(0)")
            return
        L = a.label("spin")
        a(f"s_mov_b32 s40, {SPIN}\n{L}:")
        if sleep and kind == 'ge': a(f"s_sleep {sleep}")
        elif nap: a(f"s_sleep {nap}")
        a(f"ds_read_b32 v{tmp}, v1 offset:{flag_off}" if kind == 'ge' else f"ds_read_b128 v[{tmp}:{tmp + 3}], v1 offset:{flag_off}")
        for r in reads: a(r)
        a("s_sub_u32 s40, s40, 1\ns_cbranch_scc1 L_end")
        a("s_waitcnt lgkmcnt(0)")
        if kind == 'ge':
            a(f"v_cmp_gt_u32 vcc, {want}, v{tmp}")
        else:
            a(f"v_and_b32 v{tmp + 2}, v{tmp + 2}, v{tmp + 3}\nv_bitop3_b32 v{tmp}, v{tmp}, v{tmp + 1}, v{tmp + 2} bitop3:0x80")
            a(f"v_cmp_eq_u32 vcc, 0, v{tmp}")
        a(f"s_cbranch_vccnz {L}")
    def wait_gate(tmp):
        if gate == 'IE': lds_spin(F_IE, 1, [], 'ge', tmp)
        elif gate == 'S': lds_spin(F_LD, "s38", [], 'ge', tmp)
        elif gate == 'T': lds_spin(F_LD, "s36", [], 'ge', tmp, nap=gnap)
        elif gate: lds_spin(F_LD, seg_flag(gate), [], 'ge', tmp)
        a(f"s_mov_b32 s40, {SPIN}")
    def inbox(d, cc):
        m, sh = (3, 11) if h3pk else (1, 12)
        a(f"s_and_b32 s{d}, s{cc}, {m}\ns_andn2_b32 s{cc}, s{cc}, {m}\ns_lshl1_add_u32 s{d}, s{cc}, s{d}\ns_lshl_b32 s{d}, s{d}, {sh}\ns_add_u32 s{d}, s{d}, {W_H3 + h3x - (0x2000 if near else 0)}")
    def cc0(d):
        if ncw == 1: a(f"s_sub_u32 s{d}, s33, {28 if ch is None else ch}\ns_lshl3_add_u32 s{d}, s{d}, s6")
        else: a(f"s_sub_u32 s{d}, s33, 28\ns_mul_i32 s{d}, s{d}, {ncw}\ns_lshl2_add_u32 s{d}, s6, s{d}")
    NCONS = 28 + 4 // ncw
    def pick(r, t):
        a(f"s_bfe_u32 s{t}, s{r}, 0x80008\ns_and_b32 s{r}, s{r}, 0xff\ns_cmp_gt_u32 s{t}, s{r}\ns_cselect_b32 s{r}, 0x2000, 0")
    def tagbytes(dst, src):
        a(f"s_and_b32 s{dst}, s{src}, 0xff\ns_bfe_u32 s{dst + 1}, s{src}, 0x80008\ns_bfe_u32 s{dst + 2}, s{src}, 0x80010\ns_lshr_b32 s{dst + 3}, s{src}, 24")
    def chk(acc, r, t, first=False):
        a(f"v_xor_b32 v{acc}, s{t}, v{r}" if first else f"v_bitop3_b32 v{acc}, v{acc}, v{r}, s{t} bitop3:0xf6")
    def strip(acc, regs, first=False):
        for k, r in enumerate(regs): a(f"v_xor_b32 v{r}, s{56 + (k & 3)}, v{r}")
        for k in range(0, len(regs), 2):
            a(f"v_or_b32 v{acc}, v{regs[k]}, v{regs[k + 1]}" if first and k == 0 else f"v_or3_b32 v{acc}, v{acc}, v{regs[k]}, v{regs[k + 1]}")
    def tags():
        if not local:
            a(f"s_add_u32 s32, s32, {EPOCH_STEP:#x}\ns_mov_b32 s42, s32")
            return
        a(f"s_add_u32 s32, s32, {EPOCH_STEP:#x}\ns_getreg_b32 s42, hwreg(HW_REG_XCC_ID, 0, 4)\ns_add_u32 s42, s42, 1\ns_mul_i32 s42, s42, 0x01010101\ns_xor_b32 s42, s42, s32")

    def warm_addr():
        a(f"s_lshl_b32 s36, s4, 7\ns_add_u32 s36, s36, s5\ns_lshl_b32 s37, s36, 9\ns_add_u32 s37, s37, {W_H2}")
        a("v_lshrrev_b32 v16, 3, v0\nv_lshlrev_b32 v16, 14, v16\nv_lshl_add_u32 v16, v7, 6, v16\nv_add_u32 v16, s37, v16")
        a(f"s_lshl_b32 s37, s36, 4\ns_add_u32 s37, s37, {W_ML}\nv_and_b32 v17, 3, v0\nv_lshlrev_b32 v17, 9, v17\nv_add_u32 v17, s37, v17")
        a(f"s_lshl_b32 s36, s4, 2\ns_add_u32 s36, s36, s7\ns_lshl_b32 s36, s36, 3\ns_add_u32 s36, s36, s6\ns_lshl_b32 s36, s36, 9\ns_add_u32 s36, s36, {W_HB}")
        a("v_lshl_add_u32 v18, v7, 6, s36\nv_cmp_gt_u32 s[56:57], 40, v0\nv_cndmask_b32 v17, v17, v18, s[56:57]\nv_cmp_gt_u32 s[56:57], 32, v0\nv_cndmask_b32 v16, v17, v16, s[56:57]")
    ids = """s_and_b32 s6, s5, 7
    s_lshr_b32 s7, s5, 3"""
    if light == 'hi': pg = "s_mov_b32 s59, s4"
    else: pg = "s_lshr_b32 s59, s4, 1\ns_bitcmp" + ("0" if light == 'even' else "1") + "_b32 s4, 0\ns_cselect_b32 s33, 4, 0\ns_add_u32 s59, s59, s33"
    if lmask:
        ids2 = f"""s_lshl3_add_u32 s59, s7, s4
    s_bfm_b32 s33, s59, 0
    s_and_b32 s58, s33, {lmask:#x}
    s_bcnt1_i32_b32 s58, s58
    s_sub_u32 s33, s59, s58
    s_add_u32 s58, s58, 28
    s_bitcmp1_b32 {lmask:#x}, s59
    s_cselect_b32 s33, s58, s33
    v_mov_b32 v1, {L_F}"""
    else: ids2 = pg + f"""
    s_lshl3_add_u32 s33, s7, s59
    v_mov_b32 v1, {L_F}"""
    a(f"{NAME}_kernel:")
    stamp('all', 0)
    a("s_cmp_ge_u32 s2, 256\ns_cbranch_scc1 L_end")
    if remap == 1: a("s_and_b32 s4, s2, 7\ns_lshl_b32 s4, s4, 5\ns_lshr_b32 s2, s2, 3\ns_or_b32 s2, s2, s4")
    if remap == 2: a("s_cmp_lt_u32 s2, 2\ns_cselect_b32 s4, 1, 0\ns_xor_b32 s2, s2, s4")
    a("""    s_load_dwordx16 s[8:23], s[0:1], 0
    s_load_dwordx8 s[24:31], s[0:1], 64
    v_readfirstlane_b32 s3, v0
    s_and_b32 s4, s2, 7
    s_lshr_b32 s5, s2, 3""")
    if gx: a(f"s_xor_b32 s4, s4, {gx}")
    a(ids)
    a("s_cmp_ge_u32 s3, 64\ns_cbranch_scc1 L_oth")
    a("L_loader:")
    if adapt: a("s_memtime s[60:61]")
    a(f"s_getpc_b64 s[36:37]\nL_pc:\nv_lshlrev_b32 v3, 7, v0\nglobal_load_dword v30, v3, s[36:37] {pfpol}")
    for _ in range(npf - 1): a(f"v_add_u32 v3, 0x2000, v3\nv_min_u32 v3, L_end-L_pc, v3\nglobal_load_dword v30, v3, s[36:37] {pfpol}")
    a("""v_lshlrev_b32 v2, 4, v0
    v_lshrrev_b32 v6, 3, v0
    v_and_b32 v7, 7, v0
    v_lshlrev_b32 v15, 17, v6
    v_lshl_add_u32 v15, v7, 4, v15
    s_lshl_b32 s35, s7, 13
    s_lshl3_add_u32 s35, s4, s35
    s_add_u32 s35, s35, s6
    s_lshl_b32 s39, s35, 7
    s_mov_b32 s46, 4194304
    s_mov_b32 s47, 0x20000""")
    a(f"s_movk_i32 s54, 0x400\ns_mov_b32 s55, s47\ns_mov_b32 m0, {L_X}\ns_setprio {prio}")
    if qloop: a(f"s_add_u32 s38, s39, 0x20000")
    a(f"""s_waitcnt lgkmcnt(0)
    s_mov_b32 s52, s8
    s_and_b32 s53, s9, 0xffff
    buffer_load_dwordx4 v2, s[52:55], 0 offen {xpol} lds
    s_mov_b32 m0, {L_WQ}
    s_mov_b32 s44, s14
    s_and_b32 s45, s15, 0xffff""")
    stamp('l', 1)
    if qloop: a("L_ql:")
    for i in range(qloop or 16):
        a(f"buffer_load_dwordx4 v15, s[44:47], s39 offen {ldpol} lds\ns_addk_i32 m0, 0x400\ns_addk_i32 s39, 0x2000")
    if qloop: a("s_cmp_lt_u32 s39, s38\ns_cbranch_scc1 L_ql")
    a(ids2)
    if diag: a("s_mov_b32 s3, 1")
    if boost:
        a("s_cmp_eq_u32 s6, 3\ns_cselect_b64 vcc, -1, 0")
        if xboost is not None: a(f"s_and_b32 s35, s2, 7\ns_bitcmp1_b32 {xboost}, s35\ns_cselect_b64 vcc, -1, vcc")
    if adapt: a("s_mov_b64 s[100:101], vcc")
    main_lines = a.lines; a.lines = []
    a("L_oth:\ns_lshr_b32 s3, s3, 6\nv_and_b32 v0, 63, v0")
    a(ids2)
    a("s_cmp_eq_u32 s3, 1\ns_cbranch_scc0 L_cw")
    if diag: a("s_mov_b32 s3, 0")
    a("v_lshlrev_b32 v2, 4, v0\ns_waitcnt lgkmcnt(0)\ns_load_dword s32, s[30:31], 0\ns_barrier\ns_branch L_aux")
    a("L_cw:\nv_mov_b32 v4, 0\nv_lshl_add_u32 v5, v0, 2, v1\ns_mov_b64 exec, 0xfffff\nds_write_b32 v5, v4\ns_mov_b64 exec, -1")
    a("s_waitcnt lgkmcnt(0)")
    if near:
        if vset < 4: a(f"s_cmp_lt_u32 s7, {vset}\ns_cselect_b32 s35, s3, 0\ns_cmp_eq_u32 s35, 5\ns_cbranch_scc0 L_nprb")
        else: a("s_cmp_eq_u32 s3, 5\ns_cbranch_scc0 L_nprb")
        a("s_load_dword s32, s[30:31], 0\ns_and_b32 s35, s6, 1\ns_andn2_b32 s36, s2, 63\ns_add_u32 s36, s36, s2\ns_lshl_b32 s36, s36, 7")
        srd(48, 30, WSZ)
        a(f"s_lshl_b32 s37, s35, 13\ns_add_u32 s36, s36, s37\ns_add_u32 s36, s36, {W_PR}\ns_xor_b32 s37, s36, 0x2000\ns_mov_b64 exec, 1")
        if 'nopr' in abl: a("s_cmp_ge_u32 s33, 28\ns_cbranch_scc0 L_npr2")
        a(f"buffer_load_dword v176, off, {WS}, s36 {prpol}\nbuffer_load_dword v177, off, {WS}, s37 {prpol}")
        if 'nopr' in abl: a("L_npr2:")
        a("s_getreg_b32 s37, hwreg(HW_REG_XCC_ID, 2, 1)\ns_xnor_b32 s35, s35, s37\ns_and_b32 s35, s35, 1")
        a(f"s_lshl3_add_u32 s38, s33, s6\ns_lshl_b32 s38, s38, {vsh}\ns_barrier\ns_waitcnt vmcnt(1)")
        if gap: a(f"s_sleep {gap}")
        a("s_getreg_b32 s36, hwreg(HW_REG_IB_STS, 0, 4)")
        if dforce is not None: a(f"s_mov_b32 s36, 1\ns_mov_b32 s35, {dforce}")
        a(f"s_lshl_b32 s36, s36, s35\ns_waitcnt lgkmcnt(0)\ns_add_u32 s32, s32, {EPOCH_STEP:#x}\ns_xor_b32 s36, s36, s32\nv_mov_b32 v22, s36")
        if 'nost' in abl: a("s_cmp_ge_u32 s33, 28\ns_cbranch_scc0 L_nst2")
        a(f"buffer_store_dword v22, off, {WS}, s38 offset:{W_VOT} {vst}")
        if 'nost' in abl: a("L_nst2:")
        a("s_mov_b64 exec, -1\ns_branch L_prd\nL_nprb:")
    if warm0 is not None:
        a("s_cmp_eq_u32 s3, 4\ns_cbranch_scc0 L_nw0\nv_and_b32 v7, 7, v0")
        srd(48, 30, WSZ)
        warm_addr()
        a(f"s_lshl_b32 s35, s4, 5\ns_lshl2_add_u32 s35, s6, s35\ns_add_u32 s35, s35, s7\ns_lshl_b32 s35, s35, 8\ns_add_u32 s35, s35, {W_H1}\nv_and_b32 v17, 3, v0\nv_lshl_add_u32 v17, v17, 6, s35")
        a(f"v_cmp_gt_u32 vcc, 44, v0\nv_cndmask_b32 v16, v17, v16, vcc\ns_mov_b32 exec_hi, 0xffff\nbuffer_load_dword v178, v16, {WS}, 0 offen {warm0}\ns_mov_b32 exec_hi, -1\nL_nw0:")
    a("s_barrier\nL_prd:")
    if nap0: a(f"s_sleep {nap0}")
    elif hold: lds_spin(F_LD, seg_flag(hold), [], 'ge', 20, nap=4)
    a("s_branch L_comp")
    oth_lines = a.lines; a.lines = main_lines
    TOPS = (8, 9, 14, 15, 18, 19, 28, 29)
    def k_setup_perm():
        pos = {n: 8 + b for b, n in enumerate(perm)}
        a("""v_and_b32 v2, 15, v0
        v_lshrrev_b32 v3, 4, v0
        v_xor_b32 v4, v2, v3
        v_lshlrev_b32 v4, 4, v4""")
        a(f"v_and_b32 v5, 1, v3\nv_lshlrev_b32 v5, {pos['k0']}, v5\nv_lshrrev_b32 v8, 1, v3\nv_lshl_add_u32 v5, v8, {pos['k1']}, v5")
        lo = lambda i: ((i & 1) << pos['i0']) | (((i >> 1) & 1) << pos['i1'])
        for q in range(4): a(f"v_xor_b32 v{8 + q}, {64 * q}, v4\nv_add_u32 v{8 + q}, v{8 + q}, v5")
        for i in range(8): a(f"v_add_u32 v{32 + i}, {lo(i)}, v{8 + ((i >> 1) & 3)}")
        a("s_lshl_b32 s35, s4, 24\ns_add_u32 s35, s35, 15728640")
        a("""s_add_u32 s44, s10, s35
        s_addc_u32 s45, s11, 0
        s_and_b32 s45, s45, 0xffff
        s_mov_b32 s46, 1048576
        s_add_u32 s12, s12, s35
        s_addc_u32 s13, s13, 0
        s_mov_b32 s40, 0""")
        for grp, r in ((('c0', 'c1', 'c2'), 6), (('r0', 'r1'), 7)):
            if all(pos[n] == pos[grp[0]] + b for b, n in enumerate(grp)): a(f"s_lshl_b32 s35, s{r}, {pos[grp[0]]}\ns_or_b32 s40, s40, s35")
            else:
                for b, n in enumerate(grp): a(f"s_bfe_u32 s35, s{r}, {0x10000 + b}\ns_lshl_b32 s35, s35, {pos[n]}\ns_or_b32 s40, s40, s35")
        a(f"s_mul_i32 s60, s4, {rmul}")
        a(top(0))
    def top(t):
        pos = {n: 8 + b for b, n in enumerate(perm)}
        d = TOPS[t]
        if pos['i3'] == pos['i2'] + 1 and pos['i4'] == pos['i2'] + 2:
            return f"s_and_b32 s61, s60, 7\ns_lshl_b32 s61, s61, {pos['i2']}\ns_or_b32 s{d}, s40, s61\ns_add_u32 s60, s60, 1"
        return "\n".join(f"s_bfe_u32 s61, s60, {0x10000 + b}\ns_lshl_b32 s61, s61, {pos[n]}\ns_or_b32 s{d}, s{40 if b == 0 else d}, s61" for n, b in (('i2', 0), ('i3', 1), ('i4', 2))) + "\ns_add_u32 s60, s60, 1"
    def k_setup():
        if perm: return k_setup_perm()
        a("""v_and_b32 v2, 15, v0
        v_lshrrev_b32 v3, 4, v0
        v_xor_b32 v4, v2, v3
        v_lshlrev_b32 v4, 4, v4
        v_lshlrev_b32 v5, 8, v3""")
        for i in range(4): a(f"v_xor_b32 v{8 + i}, {64 * i}, v4\nv_add_u32 v{8 + i}, v{8 + i}, v5")
        if sweep:
            a(f"s_lshl_b32 s35, s4, 24\ns_add_u32 s35, s35, 15728640\ns_mul_i32 s60, s4, {sweep[0]}\ns_add_u32 s60, s60, s5\ns_and_b32 s60, s60, 31\ns_lshl_b32 s60, s60, 10\ns_mov_b32 s40, s60\ns_mov_b32 s61, s60")
            a("s_add_u32 s44, s10, s35\ns_addc_u32 s45, s11, 0\ns_and_b32 s45, s45, 0xffff\ns_mov_b32 s46, 1048576\ns_add_u32 s12, s12, s35\ns_addc_u32 s13, s13, 0")
            return
        a("""s_lshl_b32 s35, s4, 24
        s_lshl_b32 s36, s5, 15
        s_add_u32 s35, s35, s36
        s_add_u32 s35, s35, 15728640""")
        if isinstance(rot, tuple): a(f"s_mul_i32 s40, s4, {rot[0]}\ns_mul_i32 s36, s6, {rot[1]}\ns_add_u32 s40, s40, s36\ns_mul_i32 s36, s7, {rot[2]}\ns_add_u32 s40, s40, s36\ns_and_b32 s40, s40, 7\ns_lshl_b32 s40, s40, 12")
        else: a({True: "s_lshl_b32 s40, s4, 12", False: "s_mov_b32 s40, 0", 'gc': "s_add_u32 s40, s4, s6\ns_and_b32 s40, s40, 7\ns_lshl_b32 s40, s40, 12",
           'gr': "s_lshl1_add_u32 s40, s7, s4\ns_and_b32 s40, s40, 7\ns_lshl_b32 s40, s40, 12", 'c': "s_lshl_b32 s40, s6, 12",
           'x': "s_xor_b32 s40, s4, s6\ns_lshl_b32 s40, s40, 12", 'g3': "s_mul_i32 s40, s4, 3\ns_and_b32 s40, s40, 7\ns_lshl_b32 s40, s40, 12",
           'g2': "s_lshr_b32 s40, s4, 2\ns_lshl1_add_u32 s40, s4, s40\ns_and_b32 s40, s40, 7\ns_lshl_b32 s40, s40, 12",
           'h': "s_and_b32 s40, s4, 6\ns_lshl_b32 s40, s40, 12"}[rot])
        a("""s_add_u32 s44, s10, s35
        s_addc_u32 s45, s11, 0
        s_and_b32 s45, s45, 0xffff
        s_mov_b32 s46, 32768
        s_add_u32 s12, s12, s35
        s_addc_u32 s13, s13, 0""")
    nwarm = 1 if warm and warm0 is None else 0
    def late_setup():
        a("""v_lshrrev_b32 v4, 2, v2
        v_xor_b32 v4, v4, v3
        v_lshl_add_u32 v12, v4, 6, v5
        v_and_b32 v4, 3, v0
        v_lshl_add_u32 v12, v4, 4, v12
        v_mul_u32_u24 v13, 28672, v6
        v_lshl_add_u32 v13, v7, 4, v13
        v_lshlrev_b32 v4, 1, v3
        v_xor_b32 v4, v4, v7
        v_lshlrev_b32 v4, 4, v4
        v_lshl_add_u32 v14, v6, 10, v4
        s_mul_i32 s41, s6, 229376
        s_lshl_b32 s37, s33, 7
        s_add_u32 s41, s41, s37
        s_lshl_b32 s42, s4, 19
        s_lshl_b32 s38, s7, 17
        s_add_u32 s42, s42, s38
        s_lshl_b32 s38, s6, 7
        s_add_u32 s42, s42, s38
        s_lshl_b32 s43, s33, 16
        s_add_u32 s43, s43, s38""")
        if perm:
            pos = {n: 8 + b for b, n in enumerate(perm)}
            for i in range(4): a(f"v_add_u32 v{40 + i}, {((i & 1) << pos['i0']) | ((i >> 1) << pos['i1'])}, v12")
        srd(48, 30, WSZ)
        if h3warm is not None:
            if ch is None: cc0(37)
            else: a("s_sub_u32 s37, s33, 28\nv_lshl_add_u32 v23, s37, 2, v1\ns_lshl2_add_u32 s37, s6, s37")
            inbox(36, 37)
            a("v_lshl_add_u32 v19, v0, 6, s36")
        if warm and warm0 is None:
            warm_addr()
    def addk(r, d): return f"s_addk_i32 s{r}, {d}" if -32768 <= d < 32768 else f"s_add_u32 s{r}, s{r}, {d & 0xffffffff}"
    def seg_loads(name):
        r = []
        if name in ("K", "V"):
            base = L_K if name == "K" else L_V
            for i in range(32):
                if perm:
                    r.append((f"s_mov_b32 m0, {base + 1024 * i}", f"v{32 + (i & 7) if name == 'K' else 40 + (i & 3)}, s[44:47], s{TOPS[i >> 2]} offen", top((i >> 2) + 1) if name == 'K' and i % 4 == 1 and i < 28 else None))
                    continue
                v = f"v{8 + ((i >> 1) & 3)}" if name == "K" else "v12"
                if sweep:
                    r.append((f"s_mov_b32 m0, {base + 1024 * i}" if i % 4 == 0 else None, f"{v}, s[44:47], s40 offen offset:{1024 * (i & 3)}",
                              "s_addk_i32 s40, 0x7c00" if i % 4 < 3 else "s_mov_b32 s60, s61\ns_mov_b32 s40, s61" if i == 31 else
                              f"s_addk_i32 s60, {sweep[1] * 1024}\ns_and_b32 s60, s60, 0x7fff\ns_add_u32 s40, s60, {((i >> 2) + 1) * 131072}"))
                    continue
                r.append((f"s_mov_b32 m0, {base + 1024 * i}" if i % 4 == 0 else None, f"{v}, s[44:47], s40 offen offset:{1024 * (i & 3)}",
                          "s_addk_i32 s40, 0x1000\ns_and_b32 s40, s40, 0x7fff" if i % 4 == 3 else None))
        if name == "Q":
            for i in range(16): r.append((f"s_mov_b32 m0, {L_WQ + 1024 * i}", "v15, s[44:47], s39 offen", "s_addk_i32 s39, 0x2000"))
        if name == "GU":
            for i in range(16): r.append((f"s_mov_b32 m0, {L_GU + 1024 * i}", f"v13, s[{44 + 8 * (i & 1)}:{47 + 8 * (i & 1)}], s41 offen", "s_addk_i32 s41, 0xe00" if i & 1 else None))
        if name == "WO":
            o_ = list(woord or range(16))
            for n_, i in enumerate(o_): r.append((f"s_mov_b32 m0, {L_WO + 1024 * i}", "v14, s[44:47], s42 offen", addk(42, 0x2000 * (o_[n_ + 1] - i)) if n_ < 15 else None))
        if name == "WD":
            o_ = list(wdord or range(8))
            for n_, i in enumerate(o_): r.append((f"s_mov_b32 m0, {L_WD + 1024 * i}", "v14, s[44:47], s43 offen", addk(43, 0x2000 * (o_[n_ + 1] - i)) if n_ < 7 else None))
        return r
    def seg_setup(name):
        if name == "K": k_setup()
        if name == "V": srd(44, 12, 1048576 if perm or sweep else 32768)
        if name == "GU": srd(44, 20, 1835008); srd(52, 22, 1835008)
        if name == "GU" and xb2 is not None: a(f"s_and_b32 s35, s2, 7\ns_bitcmp1_b32 {xb2}, s35\ns_cselect_b64 {'s[100:101]' if adapt else 'vcc'}, -1, 0")
        if name == "WO": srd(44, 16, 4194304)
        if name == "WD": srd(44, 24, 1835008)
    def signal(f):
        a(f"v_mov_b32 v20, {f}\nds_write_b32 v1, v20 offset:{F_LD}")
        if events[f - 1] in order: stamp('l', 1 + order.index(events[f - 1]) if events[f - 1] != 'Q' else 7)
        if adapt and events[f - 1] in adapt:
            a(f"s_memtime s[62:63]\ns_waitcnt lgkmcnt(0)\ns_sub_u32 s62, s62, s60\ns_cmp_gt_u32 s62, {int(adapt[events[f - 1]] * 2.26)}\ns_cselect_b64 vcc, -1, s[100:101]")
    def emit(segs, n0, pend, final, THX=None):
        n = n0
        for name in segs:
            seg_setup(name)
            th = TH if name in ("Q", "K", "V") or TH2 is None else TH2
            if name in ("Q", "K") and THK: th = THK
            if name == "GU" and THG: th = THG
            lo = seg_loads(name)
            if THX: th = THX
            th0 = th
            if name == "Q":
                for c in range(4): pend.append((n + 4 * c + 4, seg_flag("Q" + (str(c) if c < 3 else ""))))
                n += 16
                continue
            if m0k:
                ms = [(i_, int(x[0].split(",")[1])) for i_, x in enumerate(lo) if x[0]]
                for (i0, v0_), (i1, v1_) in zip(ms, ms[1:]):
                    p_ = lo[i1 - 1]
                    lo[i1 - 1] = (p_[0], p_[1], (p_[2] + "\n" if p_[2] else "") + f"s_addk_i32 m0, {v1_ - v0_}")
                    lo[i1] = (None,) + lo[i1][1:]
            for idx, (m0, ad, inc) in enumerate(lo):
                if m0: a(m0)
                th = th0
                for d_ in (dip, dip2):
                    if d_ and d_[0] <= n < d_[1]: th = d_[2]
                if n == (THK or TH) + npre:
                    a("s_barrier")
                    if xfast:
                        a(f"s_waitcnt vmcnt({n - npre})")
                        signal(pend.pop(0)[1])
                    else: late_setup()
                    a("L_split:")
                    if two and not THX:
                        late_setup()
                        a("s_cbranch_vccnz L_wide")
                if xfast and n == (THK or TH) + npre + 4 and not two: late_setup()
                if n >= th and n >= (THK or TH) + npre:
                    sig = pend and pend[0][0] <= n - (th - 1)
                    if boost and not two and name in bseg and not sig and th == th0:
                        L = a.label("bo")
                        a(f"s_cbranch_vccnz {L}\ns_waitcnt vmcnt({th - 1})\n{L}:\ns_waitcnt vmcnt({boost - 1})")
                    else:
                        a(f"s_waitcnt vmcnt({th - 1})")
                    while pend and pend[0][0] <= n - (th - 1):
                        signal(pend.pop(0)[1])
                if pace and n >= th: a(pace)
                a(f"buffer_load_dwordx4 {ad} {ldpol} lds")
                if inc: a(inc)
                n += 1
                if name in ("V", "GU", "Q") and (idx + 1) % (len(lo) // 4) == 0 and idx + 1 < len(lo):
                    pend.append((n, seg_flag(name + str((idx + 1) // (len(lo) // 4) - 1))))
                if name == "K" and h1trig < 32 and idx + 1 == h1trig: pend.append((n, seg_flag("Kpart")))
            pend.append((n, seg_flag(name)))
            if name == "Q" and h1warm is not None:
                srd(52, 30, WSZ)
                a(f"s_lshl_b32 s35, s4, 5\ns_lshl_b32 s36, s6, 2\ns_add_u32 s35, s35, s36\ns_add_u32 s35, s35, s7\ns_lshl_b32 s35, s35, 8\ns_add_u32 s35, s35, {W_H1}")
                a(f"v_lshlrev_b32 v23, 6, v0\ns_mov_b64 exec, 15\nbuffer_load_dword v24, v23, s[52:55], s35 offen {h1warm}\ns_mov_b64 exec, -1")
                n += 1
            if name == warmat:
                if nwarm and warmx:
                    a(f"s_mov_b32 exec_lo, {warmx & 0xffffffff}\ns_mov_b32 exec_hi, {warmx >> 32}\nbuffer_load_dword v21, v16, {WS}, 0 offen {warmpol}\ns_mov_b64 exec, -1")
                    n += 1
                elif nwarm:
                    a(f"s_mov_b32 exec_hi, {0xfff if hbwarm is None else 0xf00}\n" + (f"v_mov_b32 v21, 0\nbuffer_store_dword v21, v16, {WS}, 0 offen" if warmst else f"buffer_load_dword v21, v16, {WS}, 0 offen {warmpol}") + "\ns_mov_b32 exec_hi, -1")
                    n += 1
                    if hbwarm:
                        a(f"s_mov_b32 exec_lo, 0\ns_mov_b32 exec_hi, 0xff\nbuffer_load_dword v21, v16, {WS}, 0 offen {hbwarm}\ns_mov_b64 exec, -1")
                        n += 1
                if h3warm is not None and not consffn:
                    a(f"buffer_load_dword v22, v19, {WS}, 0 offen {h3warm}")
                    n += 1
        if final:
            pend.append((n - ntail, seg_flag("T"))); pend.sort()
            pend[:] = sorted(set((e, len(events) if e == n else max(f for (e2, f) in pend if e2 <= e)) for (e, f) in pend))
            if gate == 'IE': a(f"v_mov_b32 v20, 1\nds_write_b32 v1, v20 offset:{F_IE}")
            stamp('l', 8)
            while pend:
                e, f = pend.pop(0)
                a(f"s_waitcnt vmcnt({n - e})")
                signal(f)
                if events[f - 1] == "T": stamp('l', 5)
        return n
    assert order[0] == "Q" and 16 <= (THK or TH) < 48
    npre = npf + 1
    ffn = ("GU", "WD")
    k = min(order.index(x) for x in ffn)
    if two:
        keep = a.lines; a.lines = []
        pend = [(npre, seg_flag("X"))]
        n = emit(order[:k], npre, pend, False, boost)
        a.lines = a.lines[a.lines.index("L_split:") + 1:]
        a("s_cmp_ge_u32 s33, 28\ns_cbranch_scc1 L_ldb2")
        emit(order[k:], n, list(pend), True, boost)
        a("s_branch L_lde\nL_ldb2:")
        emit([x for x in order[k:] if x not in ffn], n, list(pend), True, boost)
        a("s_branch L_ldw")
        wide = a.lines; a.lines = keep
    pend = [(npre, seg_flag("X"))]
    n = emit(order[:k], npre, pend, False)
    a("s_cmp_ge_u32 s33, 28\ns_cbranch_scc1 L_ldb")
    emit(order[k:], n, list(pend), True)
    a("s_branch L_lde\nL_ldb:")
    emit([x for x in order[k:] if x not in ffn], n, list(pend), True)
    a("L_ldw:")
    if outwarm is not None:
        srd(52, 26, 1024)
        a(f"s_sub_u32 s37, s33, 28\ns_lshl3_add_u32 s37, s37, s6\ns_lshl_b32 s37, s37, 5\ns_mov_b64 exec, 1\nbuffer_load_dword v23, off, s[52:55], s37 {outwarm}\ns_mov_b64 exec, -1")
    if h3warm is not None and near and h3at != 'end': pass
    elif h3warm is not None and near:
        a((f"ds_read_b32 v22, v1 offset:{F_IE}" if ch is None else f"ds_read_b32 v22, v23 offset:{F_D}") + f"\ns_waitcnt lgkmcnt(0)\nv_readfirstlane_b32 s36, v22\ns_cmp_eq_u32 s36, 0\ns_cbranch_scc1 L_lde")
        if h3pk and ncw == 1: a("s_mov_b32 exec_hi, 0")
        a(f"buffer_load_dword v22, v19, {WS}, s36 offen {h3warm}")
        if ncw == 4: a(f"s_addk_i32 s36, 0x1000\nbuffer_load_dword v22, v19, {WS}, s36 offen {h3warm}")
    elif h3warm is not None and consffn: a(f"buffer_load_dword v22, v19, {WS}, 0 offen {h3warm}")
    if dual:
        a(f"s_movk_i32 s36, 0x2000\nbuffer_load_dword v23, v19, {WS}, s36 offen {h3warm}\ns_waitcnt vmcnt(1)\ns_sleep {dnap}\ns_getreg_b32 s36, hwreg(HW_REG_IB_STS, 0, 4)")
        a(f"s_cmp_eq_u32 s36, 0\ns_cselect_b32 s36, 2, 1")
        if dforce: a(f"s_mov_b32 s36, {dforce}")
        a(f"v_mov_b32 v20, s36\nds_write_b32 v1, v20 offset:{F_IE}")
    if touch: a("s_branch L_lde\nL_t1:\ns_branch L_t2")
    a("L_lde:")
    stamp('l', 9)
    dump('l')
    a("s_endpgm")
    if two:
        a("L_wide:")
        a.lines += wide

    a("L_aux:")
    if aprio: a(f"s_setprio {aprio}")
    if 'noa' in abl: a("s_branch L_adone")
    stamp('a', 1)
    srd(48, 30, WSZ)
    a("v_lshrrev_b32 v3, 3, v0\nv_and_b32 v4, 7, v0")
    a("""v_and_b32 v6, 1, v0
    v_lshlrev_b32 v6, 4, v6
    v_mov_b32 v7, 0xffff
    v_lshlrev_b32 v6, v6, v7
    v_bfe_u32 v7, v0, 1, 2""")
    for d in range(4): a(f"v_cmp_eq_u32 vcc, {d}, v7\nv_cndmask_b32 v{12 + d}, 0, v6, vcc")
    a(f"v_lshlrev_b32 v6, 5, v0\nv_add_u32 v6, {L_XX}, v6")
    a(f"s_lshl_b32 s35, s7, 9\ns_add_u32 s35, s35, {L_XX}\nv_lshl_add_u32 v7, v3, 6, s35")
    a(f"v_add_u32 v25, {L_X}, v2")
    lds_spin(F_LD, seg_flag("X"), ["ds_read_b128 v[8:11], v25"], 'ge', 24)
    stamp('a', 2)
    for k in range(4): a(f"v_lshlrev_b32 v{16 + 2 * k}, 16, v{8 + k}\nv_and_b32 v{17 + 2 * k}, 0xffff0000, v{8 + k}")
    def wave_sum(r, t):
        for n in (8, 4, 2, 1): a(f"v_add_f32_dpp v{r}, v{r}, v{r} row_ror:{n} row_mask:0xf bank_mask:0xf")
        a(f"v_mov_b32 v{t}, v{r}\nv_permlane16_swap_b32 v{r}, v{t}\nv_add_f32 v{r}, v{r}, v{t}")
        a(f"v_mov_b32 v{t}, v{r}\nv_permlane32_swap_b32 v{r}, v{t}\nv_add_f32 v{r}, v{r}, v{t}")
    a("""v_add_f32 v24, v16, v17
    v_add_f32 v25, v18, v19
    v_add_f32 v26, v20, v21
    v_add_f32 v27, v22, v23
    v_add_f32 v24, v24, v25
    v_add_f32 v26, v26, v27
    v_add_f32 v24, v24, v26""")
    wave_sum(24, 25)
    a("v_mul_f32 v24, 0x3b000000, v24")
    for k in range(8): a(f"v_sub_f32 v{32 + k}, v{16 + k}, v24")
    a("v_mul_f32 v26, v32, v32\nv_mul_f32 v27, v33, v33")
    for k in range(2, 8): a(f"v_fmac_f32 v{26 + (k & 1)}, v{32 + k}, v{32 + k}")
    a("v_add_f32 v26, v26, v27\nv_cvt_pk_bf16_f32 v24, 0, v24")
    wave_sum(26, 25)
    for k in range(8): a(f"v_sub_f32 v{16 + k}, v{16 + k}, v24")
    a("""v_mul_f32 v26, 0x3b000000, v26
    v_cvt_pk_bf16_f32 v26, 0, v26
    v_add_f32 v26, 0x3727c5ac, v26
    v_cvt_pk_bf16_f32 v26, 0, v26
    v_sqrt_f32 v26, v26""")
    for k in range(8): a(f"v_cvt_pk_bf16_f32 v{16 + k}, 0, v{16 + k}")
    a("v_cvt_pk_bf16_f32 v26, 0, v26\nv_rcp_f32 v27, v26")
    for k in range(8): a(f"v_mul_f32 v{32 + k}, v{16 + k}, v27")
    for k in range(8): a(f"v_fma_f32 v{16 + k}, -v{32 + k}, v26, v{16 + k}")
    for k in range(8): a(f"v_fmac_f32 v{32 + k}, v{16 + k}, v27")
    for k in range(8): a(f"v_cvt_pk_bf16_f32 v{32 + k}, v{32 + k}, v{32 + k}")
    a("ds_write_b128 v6, v[32:35]\nds_write_b128 v6, v[36:39] offset:16")
    for k in range(4): a(f"ds_read_b128 v[{16 + 4 * k}:{19 + 4 * k}], v7 offset:{16 * k}")
    a("""v_lshlrev_b32 v5, 5, v4
    v_bfe_u32 v6, v0, 4, 1
    v_lshl_add_u32 v5, v6, 4, v5
    v_mov_b32 v61, v5
    v_lshrrev_b32 v6, 5, v0
    v_lshl_add_u32 v5, v6, 3, v5
    s_lshl_b32 s35, s4, 5
    s_lshl_b32 s36, s6, 2
    s_add_u32 s35, s35, s36
    s_add_u32 s35, s35, s7
    s_lshl_b32 s35, s35, 8""")
    a(f"s_add_u32 s35, s35, {W_H1}\nv_add_u32 v9, s35, v61\nv_mov_b32 v56, 0xff\ns_mov_b32 s43, {W_H1B - W_H1}")
    a("s_waitcnt lgkmcnt(0)")
    stamp('a', 3)
    tags()
    a("v_mov_b32 v57, s42\nv_lshrrev_b32 v58, 8, v57\nv_lshrrev_b32 v59, 16, v57\nv_lshrrev_b32 v60, 24, v57")
    a(f"v_add_u32 v11, {L_WQ}, v2")
    for i in range(16):
        for d in range(4): a(f"v_and_b32 v{128 + 4 * (i & 7) + d}, v{16 + i}, v{12 + d}")
        if i == 7 or i == 11 or i == 15:
            for c in ((0, 1) if i == 7 else (2,) if i == 11 else (3,)):
                lds_spin(F_LD, seg_flag("Q" + (str(c) if c < 3 else "")), [f"ds_read_b128 v[{64 + 4 * k}:{67 + 4 * k}], v11 offset:{1024 * k}" for k in range(4 * c, 4 * c + 4)], 'ge', 62)
                for k in range(4 * c, 4 * c + 4):
                    a(f"v_mfma_f32_16x16x32_bf16 v[32:35], v[{128 + 4 * (k & 7)}:{131 + 4 * (k & 7)}], v[{64 + 4 * k}:{67 + 4 * k}], {'0' if k == 0 else 'v[32:35]'}")
    stamp('a', 4)
    a("""v_permlane32_swap_b32 v32, v34
    v_permlane32_swap_b32 v33, v35
    v_add_f32_dpp v48, v34, v32 row_shl:8 row_mask:0xf bank_mask:0xf
    v_add_f32_dpp v49, v35, v33 row_shl:8 row_mask:0xf bank_mask:0xf
    v_add_u32 v48, 0x80, v48
    v_add_u32 v49, 0x80, v49
    v_mov_b32 v50, v48
    v_mov_b32 v51, v49
    v_permlane32_swap_b32 v48, v50
    v_permlane32_swap_b32 v49, v51
    s_mov_b64 exec, 0x00ff00ff""")
    for k in range(4): a(f"v_bfi_b32 v{52 + k}, v56, v{57 + k}, v{48 + k}")
    a(f"buffer_store_dwordx4 v[52:55], v9, {WS}, 0 offen" + (" " + h1pol if local and not h1wt else " sc1"))
    if bdem and local: a(f"ds_write_b128 v61, v[48:51] offset:0\n".replace("v61,", "v62,").replace("ds_write", f"v_add_u32 v62, {L_B}, v61\nds_write"))
    elif 'noh1b' not in abl and local:
        a("v_mov_b32 v57, s32\nv_lshrrev_b32 v58, 8, v57\nv_lshrrev_b32 v59, 16, v57\nv_lshrrev_b32 v60, 24, v57")
        for k in range(4): a(f"v_bfi_b32 v{160 + k}, v56, v{57 + k}, v{48 + k}")
        if lateb: a("v_mov_b32 v164, v9")
        else: a(f"buffer_store_dwordx4 v[160:163], v9, {WS}, s43 offen sc1")
    a(f"s_mov_b64 exec, -1\nv_mov_b32 v20, 1\nds_write_b32 v1, v20 offset:{F_A}")
    stamp('a', 5)
    a("L_aux2:")
    if aprio: a("s_setprio 0")
    def dec_load(pol):
        a(f"s_mov_b64 exec, 1\nbuffer_load_dwordx4 v[44:47], off, {WS}, s33 offset:{W_DEC} {pol}\ns_mov_b64 exec, -1")
    def dec_first(ev=dat):
        a("s_not_b32 s37, s32\nv_mov_b32 v44, s37\ns_lshl_b32 s33, s6, 4")
        lds_spin(F_LD, seg_flag(ev), [], 'ge', 28, nap=lazy)
        dec_load(dpol)
    def dec_use(tag, cnt):
        a(f"s_mov_b32 s40, {SPIN}\ns_waitcnt vmcnt({cnt})\nL_vc0{tag}:\ns_mov_b64 exec, 1")
        for k in range(4): a(f"v_xor_b32 v{44 + k}, s32, v{44 + k}")
        a("s_movk_i32 s39, 0x2000\nv_or_b32 v41, v44, v45\nv_or3_b32 v41, v41, v46, v47\nv_cmp_lt_u32 vcc, 1, v41")
        for k in range(4): a(f"v_lshlrev_b32 v{44 + k}, v{44 + k}, s39")
        a(f"s_cbranch_vccnz L_vc1{tag}\nds_write_b128 v1, v[44:47] offset:{F_D}\ns_mov_b64 exec, -1")
        with outofline():
            a(f"L_vc1{tag}:\ns_waitcnt vmcnt(0)")
            dec_load('sc1')
            a(f"s_sub_u32 s40, s40, 1\ns_cbranch_scc1 L_end\ns_waitcnt vmcnt(0)\ns_branch L_vc0{tag}")
    if ch is not None: a(f"s_cmp_ge_u32 s33, 28\ns_cbranch_scc1 L_dec2\ns_sub_u32 s35, s33, {ch}\ns_cmp_lt_u32 s35, 4\ns_cbranch_scc1 L_dec\nL_ffn:")
    else: a("s_cmp_ge_u32 s33, 28\ns_cbranch_scc1 " + ("L_probe" if probe_diag else "L_dec" if near else "L_adone"))
    if near:
        with outofline():
            a("L_dec:")
            if ncw > 1: a(f"s_cmp_ge_u32 s33, {NCONS}\ns_cbranch_scc1 L_dec2")
            if vat: lds_spin(F_LD, seg_flag(vat), [], 'ge', 28, nap=lazy)
            nvc = 1 if (vset, vsh) == (1, 2) else 4
            if nvc == 1: a(f"v_lshlrev_b32 v41, 2, v0\nbuffer_load_dword v44, v41, {WS}, 0 offen offset:{W_VOT} {vpol}")
            else: a(f"buffer_load_dwordx4 v[44:47], v2, {WS}, 0 offen offset:{W_VOT} {vpol}")
            cc0(35)
            a("s_lshl_b32 s35, s35, 2\ns_waitcnt vmcnt(0)")
            for k in range(nvc):
                a(f"v_xor_b32 v41, s32, v{44 + k}")
                for c in range(2):
                    a(f"v_cmp_eq_u32 vcc, {c + 1}, v41\ns_bcnt1_i32_b64 s{(36 if k == 0 else 38) + c}, vcc")
                if k: a("s_add_u32 s36, s36, s38\ns_add_u32 s37, s37, s39")
            a("s_cmp_gt_u32 s37, s36\ns_cselect_b32 s38, 0, 1\ns_getreg_b32 s39, hwreg(HW_REG_XCC_ID, 2, 1)\ns_xor_b32 s39, s39, s38")
            a(f"s_xor_b32 s38, s39, s32\ns_lshl_b32 s39, 0x2000, s39\nv_mov_b32 v41, s39\nv_mov_b32 v42, s38\nds_write_b32 v1, v41 offset:{F_IE}")
            a(f"v_lshlrev_b32 v43, 2, v0\ns_mov_b64 exec, {(1 << ncw) - 1}\nbuffer_store_dword v42, v43, {WS}, s35 offen offset:{W_DEC} sc1\ns_mov_b64 exec, -1")
            if stamps or evdbg: a(f"s_lshl_b32 s37, s37, 8\ns_add_u32 s36, s36, s37\nv_mov_b32 v41, s36\nds_write_b32 v1, v41 offset:{F_N}")
            if evdbg:
                srd(44, 28, 256)
                a(f"s_getreg_b32 s37, hwreg(HW_REG_XCC_ID, 0, 4)\ns_lshl_b32 s37, s37, 24\ns_add_u32 s36, s36, s37\nv_mov_b32 v41, s36\nv_mov_b32 v42, s35\nbuffer_store_dword v41, v42, s[44:47], 0 offen")
            if h3at != 'end':
                if h3at != 'dec': lds_spin(F_LD, seg_flag(h3at), [], 'ge', 28, nap=lazy)
                a("s_lshr_b32 s37, s35, 2")
                inbox(38, 37)
                a(f"v_lshl_add_u32 v42, v0, 6, s38\n" + ("s_mov_b32 exec_hi, 0\n" if h3pk else "") + f"buffer_load_dword v43, v42, {WS}, s39 offen {h3warm}\ns_mov_b64 exec, -1")
            if evpad:
                a({'max': "s_max_u32 s60, s36, s37", 'min': "s_min_u32 s60, s36, s37", 'ev0': "s_mov_b32 s60, s36", 'ev1': "s_mov_b32 s60, s37"}[evpad])
            if ch is not None: a("s_branch L_ffn")
            a("L_dec2:")
            dec_first(datl if ch is not None else dat)
            dec_use('a', 0)
            if evpad:
                a("s_memrealtime s[62:63]\ns_waitcnt lgkmcnt(0)\ns_mul_i32 s60, s60, 200\ns_add_u32 s60, s60, s62\ns_add_u32 s60, s60, 2000")
                a("L_evp:\ns_sleep 4\ns_memrealtime s[62:63]\ns_waitcnt lgkmcnt(0)\ns_sub_u32 s35, s62, s60\ns_cmp_lt_i32 s35, 0\ns_cbranch_scc1 L_evp")
            a("s_branch L_adone")
    if probe_diag:
        with outofline():
            a(f"L_probe:\ns_sub_u32 s35, s33, 28\ns_lshl3_add_u32 s35, s35, s6\ns_lshr_b32 s36, s35, 2\ns_lshl_b32 s36, s36, 14\ns_and_b32 s35, s35, 3\ns_lshl_b32 s35, s35, 10\ns_add_u32 s36, s36, s35\ns_add_u32 s36, s36, {W_PR}")
            if probe_diag == 3:
                lds_spin(F_LD, seg_flag("Kpart"), [], 'ge', 28, nap=2)
                a("s_mul_i32 s36, s6, 768\ns_add_u32 s36, s36, 0x14000")
            for t in range(12):
                a(f"s_memtime s[56:57]\ns_waitcnt lgkmcnt(0)\ns_load_dword s58, s[30:31], s36 offset:{(t >> 1) * 128 + (t & 1) * 8192}{' glc' if probe_diag == 2 else ''}\ns_waitcnt lgkmcnt(0)\ns_memtime s[60:61]\ns_waitcnt lgkmcnt(0)\ns_sub_u32 s{66 + 2 * t}, s60, s56")
            a("s_memtime s[90:91]\ns_branch L_adump")
    if 'noffn' in abl: a("s_branch L_adone")
    a(f"s_lshl_b32 s35, s6, 8\ns_add_u32 s35, s35, {L_XX}\nv_lshl_add_u32 v7, v3, 5, s35")
    a("ds_read_b128 v[16:19], v7\nds_read_b128 v[20:23], v7 offset:16")
    a(f"s_lshl_b32 s35, s4, 2\ns_add_u32 s35, s35, s7\ns_lshl_b32 s35, s35, 12\ns_add_u32 s35, s35, {W_HB}")
    a("v_add_u32 v10, s35, v2\ns_lshl_b32 s36, s6, 9\ns_add_u32 s35, s35, s36\nv_lshl_add_u32 v9, v5, 1, s35")
    a(f"v_add_u32 v11, {L_GU}, v2")
    a("""v_bfe_u32 v8, v0, 4, 1
    v_lshlrev_b32 v8, 6, v8
    v_bfe_u32 v6, v0, 1, 2
    v_lshl_add_u32 v8, v6, 4, v8
    v_bfe_u32 v6, v0, 3, 1
    v_lshl_add_u32 v8, v6, 3, v8
    v_and_b32 v6, 1, v0
    v_lshl_add_u32 v8, v6, 2, v8
    v_lshrrev_b32 v6, 5, v0
    v_lshl_add_u32 v8, v6, 1, v8""")
    a(f"v_add_u32 v8, {L_H}, v8")
    tagbytes(56, 32)
    for k in range(4): a(f"v_mov_b32 v{57 + k}, s{56 + k}")
    a("s_waitcnt lgkmcnt(0)")
    for i in range(8):
        for d in range(4): a(f"v_and_b32 v{128 + 4 * i + d}, v{16 + i}, v{12 + d}")
    if 'hb' in prew:
        for k in range(4): a(f"v_not_b32 v{48 + k}, v{57 + k}")
        a(f"s_mov_b32 exec_lo, 0x00ff00ff\ns_mov_b32 exec_hi, 0x00ff00ff\nbuffer_store_dwordx4 v[48:51], v9, {WS}, 0 offen {pwpol}\ns_mov_b64 exec, -1")
    if near: dec_first()
    for c in range(4):
        rd = [f"ds_read_b128 v[{64 + 4 * i}:{67 + 4 * i}], v11 offset:{1024 * i}" for i in range(4 * c, 4 * c + 4)]
        if c == 3: rd.append(f"ds_read_b128 v[24:27], v1 offset:{F_Q}")
        if c == 0 and lazy: lds_spin(F_LD, seg_flag("V"), [], 'ge', 28, nap=lazy)
        lds_spin(F_LD, seg_flag("GU" + (str(c) if c < 3 else "")), rd, 'ge', 28)
        if c == 3: stamp('a', 6)
        for i in range(2 * c, 2 * c + 2):
            for m in range(2):
                cc = "0" if i == 0 else f"v[{32 + 4 * m}:{35 + 4 * m}]"
                a(f"v_mfma_f32_16x16x32_bf16 v[{32 + 4 * m}:{35 + 4 * m}], v[{128 + 4 * i}:{131 + 4 * i}], v[{64 + 8 * i + 4 * m}:{67 + 8 * i + 4 * m}], {cc}")
    a("v_and_b32 v26, v26, v27\nv_bitop3_b32 v24, v24, v25, v26 bitop3:0x80\nv_readfirstlane_b32 s41, v24\ns_and_b32 s41, s41, 2")
    a("""v_permlane32_swap_b32 v32, v34
    v_permlane32_swap_b32 v33, v35
    v_permlane32_swap_b32 v36, v38
    v_permlane32_swap_b32 v37, v39
    v_add_f32_dpp v48, v34, v32 row_shl:8 row_mask:0xf bank_mask:0xf
    v_add_f32_dpp v50, v35, v33 row_shl:8 row_mask:0xf bank_mask:0xf
    v_add_f32_dpp v49, v38, v36 row_shl:8 row_mask:0xf bank_mask:0xf
    v_add_f32_dpp v51, v39, v37 row_shl:8 row_mask:0xf bank_mask:0xf
    s_mov_b32 exec_lo, 0x00ff00ff
    s_mov_b32 exec_hi, 0x00ff00ff""")
    for k in range(4): a(f"v_add_u32 v{48 + k}, 0x80, v{48 + k}")
    for k in range(4): a(f"v_bfi_b32 v{48 + k}, v56, v{57 + k}, v{48 + k}")
    st2([f"buffer_store_dwordx4 v[48:51], v9, {WS}, 0 offen"], 'hb')
    a("s_mov_b64 exec, -1")
    stamp('a', 7)
    if near: dec_use('b', 1)
    L = a.label("hb")
    a(f"s_mov_b32 s38, {max(seg_flag('WO'), seg_flag('WD'))}\ns_mov_b32 s36, {seg_flag('T')}\ns_mov_b32 s39, {0 if hbfirst else 1}")
    if 'hb' in p1:
        wait_gate(28)
        for i in range(4): a(f"buffer_load_dwordx4 v[{64 + 4 * i}:{67 + 4 * i}], v10, {WS}, 0 offen offset:{1024 * i}")
        a("L_hbin:")
        with outofline():
            a(f"{L}:")
            for i in range(4): a(f"buffer_load_dwordx4 v[{64 + 4 * i}:{67 + 4 * i}], v10, {WS}, 0 offen offset:{1024 * i} {pollpol}")
            a("s_sub_u32 s40, s40, 1\ns_cbranch_scc0 L_hbin\ns_branch L_end")
    else:
        a(f"s_mov_b32 s40, {SPIN}\n{L}:")
        if gate:
            a("s_cmp_eq_u32 s39, 1\ns_cbranch_scc0 L_hbg")
            wait_gate(28)
            if anap: a(f"s_sleep {anap}")
            a("L_hbg:\ns_add_u32 s39, s39, 1")
        for i in range(4): a(f"buffer_load_dwordx4 v[{64 + 4 * i}:{67 + 4 * i}], v10, {WS}, 0 offen offset:{1024 * i} {pollpol}")
        a("s_sub_u32 s40, s40, 1\ns_cbranch_scc1 L_end")
    for i in range(4):
        a(f"s_waitcnt vmcnt({3 - i})")
        strip(20, [64 + 4 * i + k for k in range(4)], first=(i == 0))
        if i:
            for k in range(4): a(f"v_add_f32 v{64 + k}, v{64 + k}, v{64 + 4 * i + k}")
    a(f"v_and_b32 v20, 0xff, v20\nv_cmp_ne_u32 vcc, 0, v20")
    if hbsleep: a(f"s_cbranch_vccz L_hbok\ns_sleep {hbsleep}\ns_branch {L}\nL_hbok:")
    else: a(f"s_cbranch_vccnz {L}")
    stamp('a', 8)
    a(f"""v_permlane32_swap_b32 v64, v66
    v_permlane32_swap_b32 v65, v67
    v_add_f32 v64, v64, v66
    v_add_f32 v66, v65, v67
    v_cvt_pk_bf16_f32 v64, 0, v64
    v_cvt_pk_bf16_f32 v66, 0, v66
    v_mul_f32 v20, {(LOG2E | 0x80000000):#x}, v64
    v_exp_f32 v20, v20
    v_add_f32 v20, 1.0, v20
    v_rcp_f32 v21, v20
    v_mul_f32 v22, v64, v21""")
    if refine: a("""v_fma_f32 v23, -v22, v20, v64
    v_fma_f32 v23, v23, v21, v22
    v_cmp_class_f32 vcc, v23, 3
    v_cndmask_b32 v22, v23, v22, vcc""")
    a(f"""v_cvt_pk_bf16_f32 v22, 0, v22
    v_mul_f32 v22, v22, v66
    v_cvt_pk_bf16_f32 v22, v22, v22
    v_mov_b32 v21, 1
    ds_write_b16 v8, v22
    ds_write_b32 v1, v21 offset:{F_H}""")
    a("L_adone:")
    if lateb and local:
        a(f"s_mov_b64 exec, 0x00ff00ff\nbuffer_store_dwordx4 v[160:163], v164, {WS}, s43 offen sc1")
    stamp('a', 9)
    a("L_adump:")
    dump('a')
    a("s_endpgm")

    a("L_comp:\ns_sub_u32 s34, s3, 2")
    a("s_load_dword s32, s[30:31], 0")
    srd(48, 30, WSZ)
    if warm and not h1wt and h1w and warm0 is None:
        a("s_cmp_eq_u32 s34, 1\ns_cbranch_scc0 L_nowarm")
        a(f"s_lshl_b32 s35, s4, 5\ns_lshl_b32 s36, s6, 2\ns_add_u32 s35, s35, s36\ns_add_u32 s35, s35, s7\ns_lshl_b32 s35, s35, 8\ns_add_u32 s35, s35, {W_H1}")
        a(f"v_lshlrev_b32 v4, 6, v0\ns_mov_b64 exec, 15\nbuffer_load_dword v124, v4, {WS}, s35 offen {warmpol}\ns_mov_b64 exec, -1\nL_nowarm:")
    a("""v_and_b32 v2, 15, v0
    v_lshrrev_b32 v3, 4, v0""")
    a("""v_xor_b32 v4, v2, v3
    v_lshlrev_b32 v4, 4, v4
    v_lshrrev_b32 v5, 2, v2
    v_lshlrev_b32 v5, 11, v5
    v_and_b32 v6, 3, v0
    v_lshl_add_u32 v5, v6, 8, v5
    s_lshr_b32 s35, s34, 1
    s_lshl_b32 s35, s35, 14
    s_and_b32 s36, s34, 1
    s_lshl_b32 s36, s36, 10
    s_add_u32 s35, s35, s36
    v_add_u32 v5, s35, v5""")
    for s_ in range(4):
        a(f"v_xor_b32 v{8 + s_}, {64 * s_}, v4\nv_add_u32 v{8 + s_}, v{8 + s_}, v5")
    a("""v_lshrrev_b32 v4, 2, v2
    v_xor_b32 v5, s34, v4
    v_lshlrev_b32 v5, 6, v5
    v_lshl_add_u32 v5, v4, 8, v5
    v_lshrrev_b32 v7, 1, v3
    v_lshl_add_u32 v5, v7, 10, v5
    v_and_b32 v7, 1, v3
    v_lshl_add_u32 v5, v7, 5, v5
    v_lshl_add_u32 v5, v6, 3, v5""")
    a(f"v_add_u32 v12, {L_V}, v5")
    a("""v_lshl_add_u32 v5, v3, 2, v4
    v_lshrrev_b32 v7, 1, v5
    v_and_b32 v7, 3, v7
    v_xor_b32 v7, s34, v7
    v_lshlrev_b32 v7, 5, v7
    v_lshl_add_u32 v7, v5, 7, v7
    v_lshl_add_u32 v14, v6, 3, v7""")
    a(f"v_add_u32 v14, {L_WO}, v14")
    a(f"v_mul_u32_u24 v15, 320, v6\nv_lshl_add_u32 v15, v3, 4, v15\nv_add_u32 v15, {L_Q}, v15")
    a("""v_lshrrev_b32 v4, 5, v0
    v_lshlrev_b32 v16, 8, v4
    v_and_b32 v5, 1, v3
    v_lshl_add_u32 v16, v5, 10, v16
    v_lshl_add_u32 v16, v2, 4, v16
    s_lshl_b32 s35, s4, 13
    s_lshl_b32 s36, s34, 11
    s_add_u32 s35, s35, s36""")
    a(f"s_add_u32 s35, s35, {W_H1}\nv_add_u32 v16, s35, v16")
    a(f"s_mul_i32 s35, s34, 320\ns_add_u32 s35, s35, {L_Q}\nv_and_b32 v5, 31, v0\nv_lshl_add_u32 v17, v5, 3, s35\nv_lshl_add_u32 v17, v4, 2, v17")
    a("s_lshl_b32 s35, s34, 2\nv_add_u32 v18, s35, v1")
    a(f"s_lshl_b32 s35, s34, 8\ns_add_u32 s35, s35, {L_P}\nv_lshl_add_u32 v19, v3, 5, s35\nv_lshl_add_u32 v19, v6, 3, v19")
    a(f"s_lshl_b32 s35, s34, 4\ns_add_u32 s35, s35, {L_ML}\nv_lshl_add_u32 v112, v0, 2, s35")
    a(f"v_lshlrev_b32 v113, 3, v0\nv_add_u32 v113, {L_P}, v113")
    a(f"v_lshlrev_b32 v114, 4, v4\nv_add_u32 v114, {L_ML}, v114")
    a(f"s_lshl_b32 s35, s34, 2\ns_add_u32 s35, s35, {L_ML}\nv_lshl_add_u32 v13, v6, 4, s35\nv_mov_b32 v144, {L_ML}")
    a("s_lshl_b32 s35, s4, 7\ns_add_u32 s35, s35, s5")
    a(f"s_lshl_b32 s36, s35, 9\ns_lshl_b32 s37, s34, 7\ns_add_u32 s36, s36, s37\ns_add_u32 s36, s36, {W_H2}\nv_lshl_add_u32 v115, v5, 2, s36\nv_lshl_add_u32 v115, v4, 14, v115")
    a(f"s_lshl_b32 s36, s34, 5\ns_add_u32 s36, s36, s35\ns_lshl_b32 s36, s36, 4\ns_add_u32 s36, s36, {W_ML}\nv_mov_b32 v116, s36")
    a("v_lshrrev_b32 v4, 3, v0\nv_and_b32 v5, 7, v0\ns_lshl_b32 s35, s4, 2\ns_add_u32 s35, s35, s7")
    a(f"s_lshl_b32 s36, s35, 14\ns_lshl_b32 s37, s34, 7\ns_add_u32 s36, s36, s37\ns_add_u32 s36, s36, {W_H2}")
    a("v_lshlrev_b32 v117, 9, v4\nv_lshl_add_u32 v117, v5, 4, v117\nv_add_u32 v117, s36, v117")
    a(f"s_lshl_b32 s36, s35, 9\ns_add_u32 s36, s36, {W_ML}\nv_and_b32 v118, 31, v0\nv_lshl_add_u32 v118, v118, 4, s36\nv_lshlrev_b32 v123, 2, v4")
    a("""v_and_b32 v119, 3, v0
    v_lshlrev_b32 v119, 4, v119
    v_bfe_u32 v4, v0, 2, 1
    v_lshl_add_u32 v119, v4, 3, v119
    v_bfe_u32 v4, v0, 4, 1
    v_lshl_add_u32 v119, v4, 2, v119
    v_lshrrev_b32 v4, 5, v0
    v_lshl_add_u32 v119, v4, 1, v119""")
    a(f"s_lshl_b32 s35, s34, 6\ns_add_u32 s35, s35, {L_O}\nv_add_u32 v119, s35, v119")
    a(f"v_lshlrev_b32 v120, 4, v3\nv_add_u32 v120, {L_O}, v120")
    a("s_lshl2_add_u32 s37, s6, s34")
    inbox(35, 37)
    a(f"s_lshl2_add_u32 s36, s4, s7\ns_lshl_b32 s36, s36, {6 if h3pk else 7}\ns_add_u32 s35, s35, s36\nv_lshl_add_u32 v121, v0, {2 if h3pk else 3}, s35")
    a("s_movk_i32 s52, 0x1000\ns_movk_i32 s53, 0x2000\ns_movk_i32 s54, 0x3000\ns_mov_b32 s55, 0x8000\nv_mov_b32 v125, 0xff")
    a("s_waitcnt lgkmcnt(0)")
    tags()
    a("v_lshlrev_b32 v4, 3, v6\nv_lshrrev_b32 v122, v4, s32\nv_mov_b32 v147, s32\nv_mov_b32 v149, s32")
    if dry:
        a("s_mov_b64 s[100:101], 0\nv_mov_b32 v20, 2\nv_mov_b32 v145, 99\nv_mov_b32 v31, s53\nv_mov_b32 v24, 0\nv_mov_b32 v25, 0\ns_mov_b32 s41, 2\ns_mov_b32 s38, 0\ns_mov_b32 s39, 0\ns_mov_b32 s43, 0\ns_mov_b64 exec, 0")
        tagbytes(56, 42)
        for e in dry:
            if e < 3: a(f"s_cmp_eq_u32 s34, {e}\ns_cbranch_scc1 L_e{e}")
            else: a("s_cmp_ge_u32 s33, 28\ns_cselect_b32 s35, s34, 0\ns_cmp_eq_u32 s35, 3\ns_cbranch_scc1 L_e3")
        a("L_dryret:\ns_mov_b64 s[100:101], -1\ns_mov_b64 exec, -1\ns_movk_i32 s52, 0x1000\ns_movk_i32 s53, 0x2000\ns_movk_i32 s54, 0x3000\ns_mov_b32 s55, 0x8000")
    tagbytes(56, 42)
    if dry: a("L_drybeg:")
    if 'noc' in abl: a("s_branch L_cdone")
    if 'h2' in prew:
        a(f"v_not_b32 v20, v122\nbuffer_store_dword v20, v115, {WS}, 0 offen {pwpol}\nbuffer_store_dword v20, v115, {WS}, s55 offen {pwpol}")
    kreads = [f"ds_read_b128 v[{32 + 16 * t + 4 * s}:{35 + 16 * t + 4 * s}], v{8 + s} offset:{L_K + 8192 * t}" for t in range(2) for s in range(4)]
    a("s_mov_b32 s43, 0\ns_mov_b32 s41, 3\ns_mov_b32 s39, 0")
    if forceslow and bdem:
        a("s_xor_b32 s42, s42, 0x80808080")
        tagbytes(56, 42)
    elif forceslow: a(f"s_mov_b32 s39, {NA}")
    if h1own: lds_spin(F_A, 1, [], 'ge', 20)
    else:
        if nap1: a(f"s_sleep {nap1}")
        if both: lds_spin(F_A, 1, [], 'ge', 20, nap=lazy)
        lds_spin(F_LD, seg_flag("Kpart" if h1trig < 32 else "K"), [], 'ge', 20, nap=lazy)
    stamp('c', 1)
    L = a.label("h1"); L2 = a.label("h1k")
    if dry: a("L_e0:")
    peel = 'h1' in p1
    if peel:
        for i in range(2): a(f"buffer_load_dwordx4 v[{96 + 4 * i}:{99 + 4 * i}], v16, {WS}, 0 offen offset:{512 * i}")
        a("L_h1in:")
        keep1 = a.lines; a.lines = []
    a(f"{L}:")
    if local:
        a(f"s_cmp_{'ge' if bdem else 'eq'}_u32 s39, {NA}\ns_cbranch_scc1 L_h1sw\n{L2}:")
        with outofline():
            a("L_h1sw:")
            if bdem:
                a(f"s_cmp_eq_u32 s39, {NA}\ns_cbranch_scc0 L_h1t")
                lds_spin(F_A, 1, [], 'ge', 20)
                a(f"v_lshlrev_b32 v20, 4, v0\nv_add_u32 v21, {L_B}, v20\ns_mov_b64 exec, 0xffff\nds_read_b128 v[96:99], v21")
                a(f"s_lshl_b32 s35, s4, 5\ns_lshl2_add_u32 s35, s6, s35\ns_add_u32 s35, s35, s7\ns_lshl_b32 s35, s35, 8\ns_add_u32 s35, s35, {W_H1B}")
                tagbytes(56, 32)
                a("s_waitcnt lgkmcnt(0)")
                for k in range(4): a(f"v_bfi_b32 v{96 + k}, v125, s{56 + k}, v{96 + k}")
                a(f"buffer_store_dwordx4 v[96:99], v20, {WS}, s35 offen sc1\ns_waitcnt vmcnt(0)\ns_mov_b64 exec, -1")
                a(f"L_h1t:\ns_xor_b32 s43, s43, {W_H1B - W_H1}\ns_cselect_b32 s35, s32, s42\ns_cselect_b32 s41, 1, 3")
                tagbytes(56, 35)
            else:
                a(f"s_mov_b32 s43, {W_H1B - W_H1}\ns_mov_b32 s41, 1")
                tagbytes(56, 32)
            a(f"s_branch {L2}")
    if dry: a("s_cbranch_execz L_k0")
    for i in range(2): a(f"buffer_load_dwordx4 v[{96 + 4 * i}:{99 + 4 * i}], v16, {WS}, s43 offen offset:{512 * i} {pollpol}")
    if dry: a("L_k0:")
    a(f"s_add_u32 s39, s39, 1\ns_cmp_gt_u32 s39, {SPIN}\ns_cbranch_scc1 L_end")
    if peel:
        a("s_branch L_h1in")
        cold.extend(a.lines); a.lines = keep1
    if h1trig == 32 and not h1own:
        for r in kreads: a(r)
    elif kearly: lds_spin(F_LD, seg_flag("K"), kreads, 'ge', 20)
    a("s_waitcnt vmcnt(0)")
    if qprio: a(f"s_setprio {qprio}")
    strip(20, list(range(96, 104)), first=True)
    for k in range(4): a(f"v_add_f32 v{96 + k}, v{96 + k}, v{100 + k}")
    a(f"""v_and_b32 v20, 0xff, v20
    v_cmp_ne_u32 vcc, 0, v20
    v_permlane32_swap_b32 v96, v98
    v_permlane32_swap_b32 v97, v99
    s_cbranch_vccnz {L}""")
    stamp('c', 2)
    if stamps is True: a("s_mov_b32 s88, s39")
    a("""v_add_f32 v96, v96, v98
    v_add_f32 v97, v97, v99
    v_mov_b32 v21, s41
    v_cvt_pk_bf16_f32 v96, v96, v97""")
    a(f"ds_write_b32 v17, v96\nds_write_b32 v18, v21 offset:{F_Q}")
    tagbytes(56, 32)
    if (h1trig < 32 or h1own) and not kearly: lds_spin(F_LD, seg_flag("K"), kreads, 'ge', 20)
    lds_spin(F_Q, 0, [f"ds_read_b128 v[{96 + 4 * s}:{99 + 4 * s}], v15 offset:{64 * s}" for s in range(4)] + ([f"ds_read_b32 v145, v1 offset:{F_LD}"] if look1 else []), 'all4', 20)
    stamp('c', 3)
    for s in range(4):
        for t in range(2):
            c = "0" if s == 0 else f"v[{24 + 4 * t}:{27 + 4 * t}]"
            a(f"v_mfma_f32_16x16x32_bf16 v[{24 + 4 * t}:{27 + 4 * t}], v[{32 + 16 * t + 4 * s}:{35 + 16 * t + 4 * s}], v[{96 + 4 * s}:{99 + 4 * s}], {c}")
    a("v_readfirstlane_b32 s41, v20\ns_and_b32 s41, s41, 2")
    if 'ml' in prew:
        a(f"s_cselect_b64 exec, 1, 0\nv_not_b32 v153, v147\nv_not_b32 v155, v147\nbuffer_store_dwordx4 v[152:155], v116, {WS}, 0 offen {pwpol}\ns_mov_b64 exec, -1")
    vread = lambda u: f"ds_read_b64_tr_b16 v[{64 + 2 * u}:{65 + 2 * u}], v12 offset:{2048 * u}"
    vflag = lambda c: seg_flag("V" + (str(c) if c < 3 else ""))
    if look1:
        a("v_readfirstlane_b32 s38, v145")
        for c in range(4):
            a(f"s_cmp_lt_u32 s38, {vflag(c)}\ns_cbranch_scc1 L_va")
            for u in range(4 * c, 4 * c + 4): a(vread(u))
        a("L_va:")
    else: a("s_mov_b32 s38, 0")
    a(f"s_mov_b32 s35, {SCALE:#x}\ns_mov_b32 s36, {LOG2E:#x}")
    if pks: a("s_mov_b32 s60, s35\ns_mov_b32 s61, s35\ns_mov_b32 s62, s36\ns_mov_b32 s63, s36")
    if mimic:
        for r in range(24, 32): a(f"v_cvt_pk_bf16_f32 v{r}, 0, v{r}")
    if pks:
        for r in range(24, 32, 2): a(f"v_pk_mul_f32 v[{r}:{r + 1}], v[{r}:{r + 1}], s[60:61]")
    else:
        for r in range(24, 32): a(f"v_mul_f32 v{r}, s35, v{r}")
    if mimic:
        for r in range(24, 32): a(f"v_cvt_pk_bf16_f32 v{r}, 0, v{r}")
    a("""v_max3_f32 v20, v24, v25, v26
    v_max3_f32 v21, v27, v28, v29
    v_max3_f32 v20, v20, v30, v31
    v_max_f32 v20, v20, v21
    v_mov_b32 v21, v20
    v_permlane16_swap_b32 v20, v21
    v_max_f32 v20, v20, v21
    v_mov_b32 v21, v20
    v_permlane32_swap_b32 v20, v21
    v_max_f32 v20, v20, v21
    v_mul_f32 v22, s36, v20""")
    if pks:
        for r in range(24, 32, 2): a(f"v_pk_fma_f32 v[{r}:{r + 1}], v[{r}:{r + 1}], s[62:63], v[22:23] op_sel:[0,0,0] op_sel_hi:[1,1,0] neg_lo:[0,0,1] neg_hi:[0,0,1]")
    else:
        for r in range(24, 32): a(f"v_fma_f32 v{r}, v{r}, s36, -v22")
    for r in range(24, 32): a(f"v_exp_f32 v{r}, v{r}")
    for k in range(4): a(f"v_cvt_pk_bf16_f32 v{32 + k}, v{24 + 2 * k}, v{25 + 2 * k}")
    if look2: a(f"ds_read_b32 v145, v1 offset:{F_LD}")
    if pks: a("""v_pk_add_f32 v[24:25], v[24:25], v[26:27]
    v_pk_add_f32 v[28:29], v[28:29], v[30:31]
    ds_write_b64 v19, v[32:33]
    v_pk_add_f32 v[24:25], v[24:25], v[28:29]
    ds_write_b64 v19, v[34:35] offset:128
    v_add_f32 v23, v24, v25""")
    else: a("""v_add_f32 v24, v24, v25
    v_add_f32 v26, v26, v27
    ds_write_b64 v19, v[32:33]
    v_add_f32 v28, v28, v29
    v_add_f32 v30, v30, v31
    ds_write_b64 v19, v[34:35] offset:128
    v_add_f32 v24, v24, v26
    v_add_f32 v28, v28, v30
    v_add_f32 v23, v24, v28""")
    a("""v_mov_b32 v21, v23
    v_permlane16_swap_b32 v23, v21
    v_add_f32 v23, v23, v21
    v_mov_b32 v21, v23
    v_permlane32_swap_b32 v23, v21
    v_add_f32 v23, v23, v21
    v_mov_b32 v21, 1
    s_mov_b64 exec, 15
    ds_write2_b32 v112, v22, v23 offset0:0 offset1:16
    s_mov_b64 exec, -1""")
    a(f"ds_write_b32 v18, v21 offset:{F_P}")
    if look2:
        lgk(4)
        a("v_readfirstlane_b32 s37, v145")
        for c in range(4):
            a(f"s_cmp_ge_u32 s38, {vflag(c)}\ns_cbranch_scc1 L_vl{c}\ns_cmp_lt_u32 s37, {vflag(c)}\ns_cbranch_scc1 L_vld")
            for u in range(4 * c, 4 * c + 4): a(vread(u))
            a(f"L_vl{c}:")
        a("L_vld:\ns_mov_b32 s38, s37")
    stamp('c', 4)
    if dry: a("s_cbranch_execz L_dryret\nL_e1:")
    reads = [f"ds_read_b64 v[{32 + 2 * r}:{33 + 2 * r}], v113 offset:{512 * r}" for r in range(2)]
    reads += ["ds_read2_b32 v[150:151], v13 offset0:0 offset1:16"]
    reads += [f"ds_read_b128 v[{96 + 4 * w}:{99 + 4 * w}], v144 offset:{16 * w}" for w in range(4)]
    reads += [f"ds_read_b128 v[{56 + 4 * r}:{59 + 4 * r}], v114 offset:{32 * r}" for r in range(2)]
    lds_spin(F_P, 0, reads + [f"ds_read_b32 v145, v1 offset:{F_LD}"], 'all4', 20)
    stamp('c', 5)
    fill = ["v_max_f32_dpp v146, v150, v150 quad_perm:[1,0,3,2] row_mask:0xf bank_mask:0xf"]
    fill += [f"v_max3_f32 v{96 + h}, v{96 + h}, v{100 + h}, v{104 + h}" for h in range(4)]
    fill += ["v_max_f32_dpp v146, v146, v146 quad_perm:[2,3,0,1] row_mask:0xf bank_mask:0xf"]
    fill += [f"v_max_f32 v{96 + h}, v{96 + h}, v{108 + h}" for h in range(4)]
    fill += ["v_sub_f32 v150, v150, v146"] + [f"v_sub_f32 v{56 + k}, v{56 + k}, v{96 + (k & 3)}" for k in range(8)]
    fill += ["v_exp_f32 v150, v150"] + [f"v_exp_f32 v{56 + k}, v{56 + k}" for k in range(4)] + ["v_mul_f32 v148, v150, v151"]
    fill += [f"v_exp_f32 v{60 + k}, v{60 + k}" for k in range(2)] + ["v_add_f32_dpp v148, v148, v148 quad_perm:[1,0,3,2] row_mask:0xf bank_mask:0xf"]
    fill += [f"v_exp_f32 v{62 + k}, v{62 + k}" for k in range(2)] + ["v_add_f32_dpp v148, v148, v148 quad_perm:[2,3,0,1] row_mask:0xf bank_mask:0xf"]
    def ml_pub():
        a("s_mov_b64 exec, 1")
        st2([f"buffer_store_dwordx4 v[146:149], v116, {WS}, 0 offen"], 'ml')
        a("s_mov_b64 exec, -1")
    def pv(u):
        r = u >> 3
        c = "0" if u % 8 < 2 else f"v[{40 + 8 * r + 4 * (u & 1)}:{43 + 8 * r + 4 * (u & 1)}]"
        a(f"v_mfma_f32_4x4x4_16b_bf16 v[{40 + 8 * r + 4 * (u & 1)}:{43 + 8 * r + 4 * (u & 1)}], v[{32 + 2 * r}:{33 + 2 * r}], v[{64 + 2 * u}:{65 + 2 * u}], {c} cbsz:3 abid:{u & 7}")
    a("v_readfirstlane_b32 s37, v145")
    assert len(fill) <= 32
    if mlfirst:
        chain = [f_ for f_ in fill if any(f" v{r}," in f_ for r in (146, 148)) or f_.startswith(("v_sub_f32 v150", "v_exp_f32 v150"))]
        fill = [f_ for f_ in fill if f_ not in chain]
        assert len(chain) == 7
        for f_, nf in zip(chain, (2, 0, 0, 1, 2, 2, 0)):
            a(f_)
            for _ in range(nf): a(fill.pop(0))
        ml_pub()
    a(f"s_cmp_lt_u32 s38, {vflag(3)}\ns_cbranch_scc1 L_vb\nL_vc:")
    with outofline():
        a("L_vb:")
        for c in range(4):
            a(f"s_cmp_ge_u32 s38, {vflag(c)}\ns_cbranch_scc1 L_vb{c}\ns_cmp_lt_u32 s37, {vflag(c)}\ns_cbranch_scc1 L_vbd")
            for u in range(4 * c, 4 * c + 4): a(vread(u))
            a(f"L_vb{c}:")
        a("L_vbd:\ns_waitcnt lgkmcnt(0)\ns_branch L_vc")
    for c in range(4):
        a(f"s_cmp_lt_u32 s37, {vflag(c)}\ns_cbranch_scc1 L_vw{c}\nL_vr{c}:")
        with outofline():
            a(f"L_vw{c}:")
            lds_spin(F_LD, vflag(c), [vread(u) for u in range(4 * c, 4 * c + 4)], 'ge', 20)
            a(f"s_branch L_vr{c}")
        for u in range(4 * c, 4 * c + 4):
            pv(u)
            for f_ in fill[4 * u:4 * u + 4]: a(f_)
        if c == 1 and not mlfirst: ml_pub()
    stamp('c', 6)
    a("s_nop 0")
    if pks:
        for h in (0, 2): a(f"v_pk_add_f32 v[{40 + h}:{41 + h}], v[{40 + h}:{41 + h}], v[{44 + h}:{45 + h}]")
        for h in (0, 2): a(f"v_pk_mul_f32 v[{40 + h}:{41 + h}], v[{40 + h}:{41 + h}], v[{56 + h}:{57 + h}]")
        for h in (0, 2): a(f"v_pk_add_f32 v[{48 + h}:{49 + h}], v[{48 + h}:{49 + h}], v[{52 + h}:{53 + h}]")
        for h in (0, 2): a(f"v_pk_fma_f32 v[{40 + h}:{41 + h}], v[{48 + h}:{49 + h}], v[{60 + h}:{61 + h}], v[{40 + h}:{41 + h}]")
    else:
        for h in range(4): a(f"v_add_f32 v{40 + h}, v{40 + h}, v{44 + h}")
        for h in range(4): a(f"v_mul_f32 v{40 + h}, v{40 + h}, v{56 + h}")
        for h in range(4): a(f"v_add_f32 v{48 + h}, v{48 + h}, v{52 + h}")
        for h in range(4): a(f"v_fmac_f32 v{40 + h}, v{48 + h}, v{60 + h}")
    a("""v_permlane32_swap_b32 v40, v41
    v_permlane32_swap_b32 v42, v43
    v_add_f32 v40, v40, v41
    v_add_f32 v42, v42, v43
    v_bfi_b32 v40, v125, v122, v40
    v_bfi_b32 v42, v125, v122, v42""")
    st2([f"buffer_store_dword v40, v115, {WS}, 0 offen", f"buffer_store_dword v42, v115, {WS}, s55 offen"], 'h2')
    stamp('c', 7)
    if fine:
        a("s_waitcnt vmcnt(0)"); stamp('c', 1, True)
    if dry: a("s_cbranch_execz L_dryret\nL_e2:")
    if 'noh2' in abl: a("s_branch L_cdone")
    LF = a.label("h2"); LG = a.label("h2g"); LD = a.label("h2d")
    woreads = [f"ds_read_b64_tr_b16 v[{80 + 4 * s + 2 * x}:{81 + 4 * s + 2 * x}], v14 offset:{4096 * s + 2048 * x}" for s in range(4) for x in range(2)]
    wdreads = [f"ds_read_b64_tr_b16 v[{48 + 4 * s + 2 * x}:{49 + 4 * s + 2 * x}], v14 offset:{L_WD - L_WO + 4096 * s + 2048 * x}" for s in range(2) for x in range(2)]
    hreads = [f"ds_read_b128 v[{56 + 4 * s}:{59 + 4 * s}], v120 offset:{L_H - L_O + 64 * s}" for s in range(2)]
    last = max(seg_flag("WO"), seg_flag("WD"))
    def payload_loads(pol=pollpol):
        for i in range(4): a(f"buffer_load_dwordx4 v[{64 + 4 * i}:{67 + 4 * i}], v117, {WS}, {'s%d' % (51 + i) if i else 0} offen {pol}")
    def payload_check(mul):
        for i in range(4):
            a(f"s_waitcnt vmcnt({3 - i})")
            strip(21, [64 + 4 * i + k for k in range(4)], first=(i == 0))
            if mul:
                for k in range(4): a(fm(i, k))
        a("v_and_b32 v21, 0xff, v21\nv_cmp_ne_u32 vcc, 0, v21\ns_and_b64 exec, vcc, vcc")
    LM = a.label("h2m"); LW = a.label("h2w"); LX = a.label("h2x")
    assert order[-2:] == ("WO", "WD") and ntail <= 8 and gate == 'T'
    a(f"s_cmp_ge_u32 s33, 28\ns_cselect_b32 s36, {last}, {seg_flag('T')}\ns_mov_b32 s37, {SPIN}")
    a("v_mov_b32 v101, s32\nv_mov_b32 v103, s32")
    def ml_loads(pol=pollpol):
        a(f"s_mov_b32 exec_hi, 0\nbuffer_load_dwordx4 v[32:35], v118, {WS}, 0 offen {pol}\ns_mov_b32 exec_hi, -1")
    def ml_check():
        a("s_mov_b32 exec_hi, 0")
        chk(20, 33, 32, first=True); chk(20, 35, 32)
        a("v_cmp_ne_u32 vcc, 0, v20\ns_mov_b32 exec_hi, -1")
    def fm(i, k):
        w = f"v[{36 + (i & 2)}:{37 + (i & 2)}]"; sel = f"op_sel:[0,{i & 1},0] op_sel_hi:[1,{i & 1},1]"
        if i == 0: return f"v_pk_mul_f32 v[{24 + k}:{25 + k}], v[{64 + k}:{65 + k}], {w} op_sel:[0,0] op_sel_hi:[1,0]"
        return f"v_pk_fma_f32 v[{24 + k}:{25 + k}], v[{64 + 4 * i + k}:{65 + 4 * i + k}], {w}, v[{24 + k}:{25 + k}] {sel}"
    def strip_ops(i):
        r = 64 + 4 * i
        return [f"s_waitcnt vmcnt({3 - i})\nv_xor_b32 v{r}, s56, v{r}"] + [f"v_xor_b32 v{r + k}, s{56 + k}, v{r + k}" for k in (1, 2, 3)] + \
               [f"v_or_b32 v28, v{r}, v{r + 1}" if i == 0 else f"v_or3_b32 v28, v28, v{r}, v{r + 1}", f"v_or3_b32 v28, v28, v{r + 2}, v{r + 3}"]
    wait_gate(20)
    if cprio: a(f"s_setprio {cprio}")
    stamp('c', 2, True)
    if dry: a("s_cbranch_execz L_k2")
    ml_loads('' if 'ml' in p1 else pollpol)
    payload_loads('' if 'h2' in p1 else pollpol if poll1 is None else poll1)
    if dry: a("L_k2:")
    for r in woreads: a(r)
    a("s_waitcnt vmcnt(4)")
    ml_check()
    a(f"s_cbranch_vccnz {LM}\n{LW}:")
    with outofline():
        a(f"{LM}:")
        if joint:
            def pchk():
                for r in range(64, 80): chk(28, r, 56 + (r & 3), first=(r == 64))
                a("v_and_b32 v28, 0xff, v28\nv_cmp_ne_u32 s[60:61], 0, v28")
            a("s_waitcnt vmcnt(0)")
            pchk()
            a(f"{LX}:")
            ml_loads()
            a("s_mov_b64 exec, s[60:61]")
            payload_loads()
            a("s_sub_u32 s37, s37, 1\ns_cbranch_scc1 L_end\ns_waitcnt vmcnt(0)")
            pchk()
            a("s_mov_b32 exec_lo, -1")
            ml_check()
            a(f"s_or_b64 vcc, vcc, s[60:61]\ns_cbranch_scc1 {LX}\ns_branch {LW}")
        else:
            ml_loads()
            a("s_sub_u32 s37, s37, 1\ns_cbranch_scc1 L_end\ns_waitcnt vmcnt(0)")
            ml_check()
            a(f"s_cbranch_vccnz {LM}\ns_branch {LW}")
    stamp('c', 3, True)
    st = strip_ops(0) + strip_ops(1) + strip_ops(2) + strip_ops(3)
    def red32(op, r, t):
        for n in (1, 2, 4, 8):
            a(st.pop(0)); a(st.pop(0))
            a(f"{op}_dpp v{r}, v{r}, v{r} row_ror:{n} row_mask:0xf bank_mask:0xf")
        a(f"v_mov_b32 v{t}, v{r}")
        a(st.pop(0)); a(st.pop(0))
        a(f"v_permlane16_swap_b32 v{r}, v{t}\n{op} v{r}, v{r}, v{t}")
    if not early: a("v_mov_b32 v21, v32")
    if not near: a("s_mov_b32 s43, 0")
    if early:
        for n in (1, 2, 4, 8): a(f"v_max_f32_dpp v21, v{32 if n == 1 else 21}, v{32 if n == 1 else 21} row_ror:{n} row_mask:0xf bank_mask:0xf")
        a("v_mov_b32 v22, v21\nv_permlane16_swap_b32 v21, v22\nv_max_f32 v21, v21, v22\nv_sub_f32 v32, v32, v21\nv_exp_f32 v32, v32")
        a("v_mul_f32 v22, v32, v34")
        for i in range(4): a(f"ds_bpermute_b32 v{36 + i}, v123, v32 offset:{32 * i}")
        red32("v_add_f32", 22, 23)
        a("v_rcp_f32 v22, v22")
        a(st.pop(0)); a(st.pop(0))
        a("s_waitcnt lgkmcnt(0)")
        for i in range(2): a(fm(i, 0)); a(fm(i, 2))
        a("v_readfirstlane_b32 s35, v22")
        for i in range(6): a(st.pop(0))
        a(fm(2, 0)); a(fm(2, 2))
        while st: a(st.pop(0))
        a("v_and_b32 v28, 0xff, v28")
        a(fm(3, 0))
        a("v_cmp_ne_u32 vcc, 0, v28")
        a(fm(3, 2))
    else:
        red32("v_max_f32", 21, 22)
        a("v_sub_f32 v32, v32, v21\nv_exp_f32 v32, v32")
        a(st.pop(0))
        a("v_mul_f32 v22, v32, v34")
        for i in range(4): a(f"ds_bpermute_b32 v{36 + i}, v123, v32 offset:{32 * i}")
        red32("v_add_f32", 22, 23)
        a("v_rcp_f32 v22, v22")
        while st: a(st.pop(0))
        a("v_readfirstlane_b32 s35, v22\nv_and_b32 v28, 0xff, v28\ns_waitcnt lgkmcnt(0)")
        a(fm(0, 0)); a(fm(0, 2))
        a("v_cmp_ne_u32 vcc, 0, v28")
        for i in range(1, 4): a(fm(i, 0)); a(fm(i, 2))
    stamp('c', 4, True)
    a(f"s_cbranch_vccnz {LG}\n{LD}:")
    with outofline():
        a(f"{LG}:\ns_mov_b64 exec, vcc")
        if h2sleep: a(f"s_sleep {h2sleep}")
        payload_loads()
        a("s_sub_u32 s37, s37, 1\ns_cbranch_scc1 L_end")
        for i in range(4):
            for o in strip_ops(i): a(o)
        a(f"v_and_b32 v28, 0xff, v28\nv_cmp_ne_u32 vcc, 0, v28\ns_cbranch_vccnz {LG}\ns_mov_b64 exec, -1")
        for i in range(4): a(fm(i, 0)); a(fm(i, 2))
        a(f"s_nop 1\ns_branch {LD}")
    stamp('c', 8)
    if wbl == 'h2': a("s_or_b32 s39, s5, s34\ns_cbranch_scc1 L_nwb\nbuffer_wbl2 sc1\nL_nwb:")
    ex = [f"ds_read_b64 v[28:29], v1 offset:{F_LD}"] + wdreads + hreads
    a(f"""v_permlane32_swap_b32 v24, v25
    v_permlane32_swap_b32 v26, v27
    {ex[0]}
    v_add_f32 v24, v24, v25
    v_add_f32 v26, v26, v27
    {ex[1]}
    {ex[2]}
    v_permlane16_swap_b32 v24, v26
    v_add_f32 v24, v24, v26
    {ex[3]}
    {ex[4]}
    v_add_f32_dpp v24, v24, v24 row_ror:8 row_mask:0xf bank_mask:0xf
    v_mov_b32 v21, 1
    v_mul_f32 v24, s35, v24
    {ex[5]}
    v_cvt_pk_bf16_f32 v24, v24, v24
    {ex[6]}""")
    if near: a(f"ds_read_b32 v31, v18 offset:{F_D}")
    a(f"ds_write_b16 v119, v24\nds_write_b32 v18, v21 offset:{F_O}")
    oreads = [f"ds_read_b128 v[{128 + 4 * s}:{131 + 4 * s}], v120 offset:{64 * s}" for s in range(4)]
    def mm_wd(first):
        for s in range(2): a(f"v_mfma_f32_16x16x32_bf16 v[104:107], v[{56 + 4 * s}:{59 + 4 * s}], v[{48 + 4 * s}:{51 + 4 * s}], {'0' if s == 0 else 'v[104:107]'}")
    def mm_wo(first):
        for s in range(4): a(f"v_mfma_f32_16x16x32_bf16 v[96:99], v[{128 + 4 * s}:{131 + 4 * s}], v[{80 + 4 * s}:{83 + 4 * s}], {'0' if s == 0 else 'v[96:99]'}")
    a(f"ds_read_b128 v[20:23], v1 offset:{F_O}")
    for r in oreads: a(r)
    a("s_cmp_ge_u32 s33, 28\ns_cbranch_scc1 L_noffn")
    lgk(7)
    a(f"v_cmp_gt_u32 vcc, {last}, v28\nv_cmp_eq_u32 s[62:63], 0, v29\ns_or_b64 vcc, vcc, s[62:63]\ns_cbranch_vccnz L_hw")
    mm_wd(True)
    a("s_waitcnt lgkmcnt(0)\nv_and_b32 v22, v22, v23\nv_bitop3_b32 v20, v20, v21, v22 bitop3:0x80\nv_cmp_eq_u32 vcc, 0, v20\ns_cbranch_vccnz L_ow\nL_or:")
    stamp('c', 9)
    mm_wo(False)
    a("L_mmd:")
    with outofline():
        a("L_noffn:\nv_mov_b32 v104, 0\nL_ow:")
        lds_spin(F_O, 0, oreads, 'all4', 20)
        a("s_branch L_or\nL_hw:")
        lds_spin(F_O, 0, oreads, 'all4', 20)
        stamp('c', 9)
        mm_wo(True)
        a(f"s_mov_b32 s40, {SPIN}\nL_hw2:")
        for r in ex: a(r)
        a(f"s_sub_u32 s40, s40, 1\ns_cbranch_scc1 L_end\ns_waitcnt lgkmcnt(0)\nv_cmp_gt_u32 vcc, {last}, v28\nv_cmp_eq_u32 s[62:63], 0, v29\ns_or_b64 vcc, vcc, s[62:63]\ns_cbranch_vccnz L_hw2")
        mm_wd(False)
        a("s_branch L_mmd")
    if near:
        a("v_readfirstlane_b32 s43, v31\ns_cmp_eq_u32 s43, 0\ns_cbranch_scc1 L_dw\nL_dr:")
        with outofline():
            a("L_dw:")
            a(f"s_mov_b32 s40, {SPIN}\nL_dw1:\nds_read_b32 v31, v18 offset:{F_D}\ns_sub_u32 s40, s40, 1\ns_cbranch_scc1 L_end\ns_waitcnt lgkmcnt(0)")
            a("v_readfirstlane_b32 s43, v31\ns_cmp_eq_u32 s43, 0\ns_cbranch_scc1 L_dw1\ns_branch L_dr")
    stamp('c', 10)
    if not h3pk: a("v_add_f32 v96, v96, v104")
    if h3pk: a(f"s_mov_b64 exec, 0xffff\nv_add_f32 v96, v96, v104\nv_add_u32 v96, 0x80, v96\nv_bfi_b32 v96, v125, v122, v96\nbuffer_store_dword v96, v121, {WS}, s43 offen {h3st}")
    else:
        a("v_mov_b32 v100, v96\nv_mov_b32_dpp v102, v96 quad_perm:[1,1,3,3] row_mask:0xf bank_mask:0xf")
        a(f"s_mov_b64 exec, 0x5555\nbuffer_store_dwordx4 v[100:103], v121, {WS}, s43 offen {h3st}")
    if dual: a(f"buffer_store_dwordx4 v[100:103], v121, {WS}, s53 offen {h3st}")
    a("s_mov_b64 exec, -1")
    stamp('c', 11)
    if dry: a("s_cbranch_execz L_dryret")
    if wbl == 'x0': a("s_or_b32 s39, s2, s34\ns_cbranch_scc1 L_nwb\nbuffer_wbl2 sc1\nL_nwb:")
    if wbl == 'h3': a("s_or_b32 s39, s5, s34\ns_cbranch_scc1 L_nwb\nbuffer_wbl2 sc1\nL_nwb:")
    if ch is None: a("s_cmp_ge_u32 s33, 28\ns_cbranch_scc0 L_cdone")
    else: a(f"s_sub_u32 s38, s33, {ch}\ns_cmp_lt_u32 s38, 4\ns_cbranch_scc0 L_cdone")
    if ncw > 1: a(f"s_cmp_ge_u32 s33, {NCONS}\ns_cbranch_scc1 L_cdone")
    if ncw < 4: a(f"s_cmp_lt_u32 s34, {ncw}\ns_cbranch_scc0 L_cdone")
    if dry: a("L_e3:")
    cc0(38)
    if ncw > 1: a("s_add_u32 s38, s38, s34")
    if near: a(f"ds_read_b32 v31, v1 offset:{F_IE}")
    a("s_mov_b32 s37, s38")
    inbox(35, 37)
    a("v_lshl_add_u32 v24, v0, 4, s35")
    if dual:
        lds_spin(F_IE, 1, [], 'ge', 20)
        a("v_lshrrev_b32 v20, 1, v20\nv_lshl_add_u32 v24, v20, 13, v24")
        if stamps: a("v_readfirstlane_b32 s84, v20")
    if h3pk:
        a("v_and_b32 v25, 3, v0\nv_bfe_u32 v26, v0, 4, 1\nv_lshl_add_u32 v25, v25, 1, v26\nv_lshrrev_b32 v26, 5, v0\nv_lshl_add_u32 v25, v25, 1, v26\ns_lshl_b32 s35, s38, 5\nv_lshl_add_u32 v25, v25, 1, s35")
    else: a("v_and_b32 v25, 7, v0\ns_lshl_b32 s35, s38, 5\nv_lshl_add_u32 v25, v25, 2, s35")
    srd(44, 8, 1024)
    srd(52, 26, 1024)
    if dry: a(f"s_cbranch_execz L_k3")
    a(f"buffer_load_{'ushort' if h3pk else 'dword'} v26, v25, s[44:47], 0 offen")
    if near: a("s_waitcnt lgkmcnt(0)\nv_readfirstlane_b32 s43, v31")
    L = a.label("h3"); LD = a.label("h3d")
    nh3 = 2 if h3pk else 4
    def h3issue(k):
        for i in range(nh3): a(f"buffer_load_dwordx4 v[{32 + 16 * k + 4 * i}:{35 + 16 * k + 4 * i}], v24, {WS}, s43 offen offset:{1024 * i} {h3pol}")
    a(f"s_mov_b32 s40, {SPIN}")
    if h3mask:
        h3depth = 0
        a(f"{L}:")
        h3issue(0)
        a("s_sub_u32 s40, s40, 1\ns_cbranch_scc1 L_end")
        for i in range(4):
            a(f"s_waitcnt vmcnt({3 - i})")
            chk(20, 33 + 4 * i, 32, first=(i == 0)); chk(20, 35 + 4 * i, 32)
        a(f"v_cmp_ne_u32 vcc, 0, v20\ns_and_b64 exec, vcc, vcc\ns_cbranch_scc1 {L}\ns_mov_b64 exec, -1")
        a(f"v_add_f32 v22, v32, v36\nv_add_f32 v23, v34, v38\nv_add_f32 v30, v40, v44\nv_add_f32 v31, v42, v46\ns_branch {LD}")
        L = a.label("h3x")
    for k in range(h3depth - (0 if h3cf else 1)):
        h3issue(k)
        if h3gap and k < h3depth - 1: a(f"s_sleep {h3gap}")
    a(f"{L}:")
    for k in range(h3depth):
        if not h3cf: h3issue((k + h3depth - 1) % h3depth)
        a(f"s_waitcnt vmcnt({nh3 * (h3depth - 1)})")
        b = 32 + 16 * k
        if h3pk:
            strip(20, list(range(b, b + 8)), first=True)
            a(f"v_pk_add_f32 v[28:29], v[{b}:{b + 1}], v[{b + 4}:{b + 5}]\nv_and_b32 v20, 0xff, v20\nv_pk_add_f32 v[30:31], v[{b + 2}:{b + 3}], v[{b + 6}:{b + 7}]\nv_cmp_ne_u32 vcc, 0, v20\ns_cbranch_vccz {LD}")
            if h3cf: h3issue(k)
            continue
        for r in range(b + 1, b + 16, 2): chk(20, r, 32, first=(r == b + 1))
        a(f"v_add_f32 v22, v{b}, v{b + 4}\nv_add_f32 v23, v{b + 2}, v{b + 6}\nv_cmp_ne_u32 vcc, 0, v20")
        a(f"v_add_f32 v30, v{b + 8}, v{b + 12}\nv_add_f32 v31, v{b + 10}, v{b + 14}\ns_cbranch_vccz {LD}")
        if h3cf: h3issue(k)
    a(f"s_sub_u32 s40, s40, 1\ns_cbranch_scc0 {L}\ns_branch L_end\n{LD}:")
    if dry: a("L_k3:")
    stamp('c', 12)
    if h3pk: a("""v_permlane32_swap_b32 v28, v29
    v_permlane32_swap_b32 v30, v31
    v_lshlrev_b32 v27, 16, v26
    v_add_f32 v28, v28, v29
    v_add_f32 v30, v30, v31
    v_permlane16_swap_b32 v28, v30
    v_add_f32 v28, v28, v30
    v_add_f32_dpp v28, v28, v28 row_ror:4 row_mask:0xf bank_mask:0xf
    s_mov_b32 s36, 0x000f000f
    v_add_f32_dpp v28, v28, v28 row_ror:8 row_mask:0xf bank_mask:0xf
    s_mov_b32 exec_lo, s36
    s_mov_b32 exec_hi, s36
    v_add_f32 v28, v28, v27
    v_cvt_pk_bf16_f32 v28, v28, v28
    buffer_store_short v28, v25, s[52:55], 0 offen """ + outpol)
    else: a("""v_add_f32 v22, v22, v30
    v_add_f32 v23, v23, v31
    v_lshlrev_b32 v27, 16, v26
    v_and_b32 v28, 0xffff0000, v26
    v_permlane32_swap_b32 v22, v23
    v_add_f32 v22, v22, v23
    v_mov_b32 v23, v22
    v_permlane16_swap_b32 v22, v23
    v_add_f32 v22, v22, v23
    v_add_f32_dpp v22, v22, v22 row_ror:8 row_mask:0xf bank_mask:0xf
    v_mov_b32 v23, v22
    v_permlane32_swap_b32 v22, v23
    v_add_f32 v22, v22, v27
    v_add_f32 v23, v23, v28
    v_cvt_pk_bf16_f32 v22, v22, v23
    s_mov_b64 exec, 0xff
    buffer_store_dword v22, v25, s[52:55], 0 offen """ + outpol)
    a(f"s_cmp_eq_u32 s38, 0\ns_cbranch_scc0 L_cdone\ns_mov_b64 exec, 1\nv_mov_b32 v25, s32\nbuffer_store_dword v25, off, {WS}, 0")
    if pcdbg:
        srd(44, 28, 256)
        a("s_getpc_b64 s[36:37]\nL_pc2:\ns_sub_u32 s36, s36, L_pc2-" + NAME + "_kernel\nv_mov_b32 v25, s36\nbuffer_store_dword v25, off, s[44:47], 0 offset:4")
        if pcdbg == 2:
            a("s_load_dwordx16 s[8:23], s[0:1], 0\ns_waitcnt lgkmcnt(0)")
            for k_, r_ in enumerate((30, 31, 26, 28, 8, 10, 12, 14, 16, 20, 22, 24, 0)): a(f"v_mov_b32 v25, s{r_}\nbuffer_store_dword v25, off, s[44:47], 0 offset:{8 + 4 * k_}")
    a("L_cdone:")
    if dry:
        i0 = a.lines.index("L_drybeg:")
        for i_ in range(i0, len(a.lines)):
            t = a.lines[i_].strip()
            if t == "s_mov_b64 exec, -1": a.lines[i_] = "  s_mov_b64 exec, s[100:101]"
            elif t == "s_mov_b32 exec_hi, -1": a.lines[i_] = "  s_mov_b32 exec_hi, s101"
            elif t.startswith("s_mov_b64 exec, "): a.lines[i_] = f"  s_and_b64 exec, {t.split(',')[1].strip()}, s[100:101]"
            elif t == "s_mov_b32 s36, 0x000f000f": a.lines[i_] = "  s_and_b32 s36, 0x000f000f, s100"
            else: assert "exec" not in t or t in ("s_mov_b32 exec_hi, 0", "s_mov_b32 exec_lo, s36", "s_mov_b32 exec_hi, s36") or "execz" in t, t
        a("s_cbranch_execz L_dryret")
    stamp('c', 13)
    if stamps and near: a(f"s_mov_b64 exec, -1\nds_read_b32 v30, v1 offset:{F_N}\ns_waitcnt lgkmcnt(0)\nv_readfirstlane_b32 s84, v30")
    dump('c')
    a("s_endpgm")
    a.lines += cold
    a("L_end:\ns_endpgm")
    if touch: a("L_t2:\ns_branch L_comp")

    L = a.lines
    ia = L.index("L_aux:"); ic = L.index("L_comp:"); il = L.index("L_loader:")
    ib = next(i for i in range(il, ia) if L[i].strip() == ("L_split:" if xfast else "s_barrier"))
    assert oth_lines[-1].strip() == "s_branch L_comp"
    k = oth_lines.index("L_cw:")
    oth = oth_lines[:oth_lines.index("  s_cbranch_scc0 L_cw")] + ["  s_cbranch_scc1 L_aw"] + oth_lines[k + 1:] + ["L_aw:"] + oth_lines[oth_lines.index("  s_cbranch_scc0 L_cw") + 1:k - 1]
    a.lines = L[:ib + 1] + ["  s_branch L_ld2"] + oth + L[ia:ic] + ["L_ld2:"] + L[ib + 1:ia] + L[ic:]
    head = open(f"cdna_kernels/{NAME}.s.ref").read().split("; Override")[0]
    out = head + f"; Generated by gen/gen.py (hand-designed kernel; see that script for the layout notes)\n; @launch grid=(256,1,1) block=(384,1,1) lds={L_END}\n"
    out += f'.amdgcn_target "amdgcn-amd-amdhsa--gfx950"\n.text\n'
    if align: out += ".p2align 12\n.fill 0x340, 4, 0xbf800000\n"
    out += f'.globl {NAME}_kernel\n.p2align 8\n.type {NAME}_kernel,@function\n'
    out += a.text()
    out += f""".section .rodata,"a"
.p2align 6
.amdhsa_kernel {NAME}_kernel
  .amdhsa_next_free_vgpr 184
  .amdhsa_next_free_sgpr 102
  .amdhsa_accum_offset 184
  .amdhsa_group_segment_fixed_size 0
  .amdhsa_kernarg_size 96
  .amdhsa_user_sgpr_count 2
  .amdhsa_user_sgpr_kernarg_segment_ptr 1
  .amdhsa_system_sgpr_workgroup_id_x 1
  .amdhsa_float_denorm_mode_32 3
.end_amdhsa_kernel
"""
    return out

if __name__ == "__main__":
    kw = eval("dict(" + (sys.argv[2] if len(sys.argv) > 2 else "") + ")")
    open(sys.argv[1], "w").write(gen(**kw))
```
